```python
import torch

def _softmax(x, axis=-1):
    return torch.softmax(x, dim=axis)
def _gelu(x):
    return torch.nn.functional.gelu(x, approximate="tanh")
def _silu(x):
    return torch.nn.functional.silu(x)
def _sigmoid(x):
    return torch.sigmoid(x)
def _layernorm(x, axis=-1, eps=1e-5):
    m = x.mean(dim=axis, keepdim=True)
    v = x.var(dim=axis, keepdim=True, unbiased=False)
    return (x - m) / torch.sqrt(v + eps)
def _scatter_add(tgt, idx, src, axis=0):
    return tgt.clone().index_add_(axis, idx, src)
def _segment_sum(src, seg, n):
    out = torch.zeros((n,) + src.shape[1:], dtype=src.dtype)
    return out.index_add_(0, seg, src)
def _pad(x, pw):
    flat = tuple(v for pair in reversed(pw) for v in pair)
    return torch.nn.functional.pad(x, flat)

kernel_name = 'recurrent_scan__mha_block_cached__glu_gated_swiglu__prompt'

def setup_inputs():

    _w = (lambda a: (lambda t: t.to(torch.bfloat16) if t.is_floating_point() else t)(torch.as_tensor(a)))
    def _A_setup():
        B, Sq, D = 1, 2048, 512
        H, Sk, Dh = 32, 2048, 128
        return {
            "x": _w((lambda *s: torch.randn(*s, dtype=torch.bfloat16) * 0.05)(B, Sq, D)),
            "k_cache": _w((lambda *s: torch.randn(*s, dtype=torch.bfloat16) * 1.6)(B, H, Sk, Dh)),
            "v_cache": _w((lambda *s: torch.randn(*s, dtype=torch.bfloat16) * 1.6)(B, H, Sk, Dh)),
            "wq": _w((lambda *s: torch.randn(*s, dtype=torch.bfloat16) * 1.6)(D, H * Dh) * (D ** -0.5)),
            "wo": _w((lambda *s: torch.randn(*s, dtype=torch.bfloat16) * 1.6)(H * Dh, D) * ((H * Dh) ** -0.5)),
        }
    _A_in = _A_setup()

    def _B_setup():
        B, S, D, F = 1, 2048, 512, 1792
        return {
            "x": _w((lambda *s: torch.randn(*s, dtype=torch.bfloat16) * 0.05)(B, S, D)),
            "w1": _w((lambda *s: torch.randn(*s, dtype=torch.bfloat16) * 0.2)(D, F) * (2.0 / D) ** 0.5),
            "w3": _w((lambda *s: torch.randn(*s, dtype=torch.bfloat16) * 0.2)(D, F) * (2.0 / D) ** 0.5),
            "w2": _w((lambda *s: torch.randn(*s, dtype=torch.bfloat16) * 0.2)(F, D) * (2.0 / F) ** 0.5),
        }
    _B_in = _B_setup()

    return {
        "A_x": _A_in["x"],
        "A_k_cache": _A_in["k_cache"],
        "A_v_cache": _A_in["v_cache"],
        "A_wq": _A_in["wq"],
        "A_wo": _A_in["wo"],
        "B_x": _B_in["x"],
        "B_w1": _B_in["w1"],
        "B_w3": _B_in["w3"],
        "B_w2": _B_in["w2"],
    }

def reference(A_x, A_k_cache, A_v_cache, A_wq, A_wo, B_x, B_w1, B_w3, B_w2):
    def _A_ref(x, k_cache, v_cache, wq, wo):
        B, Sq, D = x.shape
        H, Dh = 32, 128
        q = (lambda x, *d: x.permute(*d))((x @ wq).reshape(B, Sq, H, Dh), 0, 2, 1, 3)
        scores = torch.einsum("bhqd,bhkd->bhqk", q, k_cache) * (Dh ** -0.5)
        p = _softmax(scores, axis=-1)
        o = torch.einsum("bhqk,bhkd->bhqd", p, v_cache)
        return (lambda x, *d: x.permute(*d))(o, 0, 2, 1, 3).reshape(B, Sq, H * Dh) @ wo

    def _B_ref(x, w1, w3, w2):
        gate = torch.einsum("bsd,df->bsf", x, w1)
        up = torch.einsum("bsd,df->bsf", x, w3)
        h = _silu(gate) * up
        out = torch.einsum("bsf,fd->bsd", h, w2)
        return out

    x = A_x
    xn = _layernorm(x, axis=-1)
    s = _A_ref(xn, A_k_cache, A_v_cache, A_wq, A_wo)
    g = _silu(_B_ref(xn, B_w1, B_w3, B_w2))
    return x + s * g
```

```python
import re

TRANS = ("v_exp_f32", "v_log_f32", "v_rcp_f32", "v_rsq_f32", "v_sqrt_f32", "v_sin_f32", "v_cos_f32")
_rng = re.compile(r"^([vas])\[(\d+):(\d+)\]$")
_one = re.compile(r"^([vas])(\d+)$")

def regs_of(tok):
    tok = tok.strip()
    if tok.startswith("-"): tok = tok[1:]
    if tok.startswith("|") and tok.endswith("|"): tok = tok[1:-1]
    if tok.startswith("abs(") and tok.endswith(")"): tok = tok[4:-1]
    m = _rng.match(tok)
    if m: return [m.group(1) + str(i) for i in range(int(m.group(2)), int(m.group(3)) + 1)]
    m = _one.match(tok)
    if m: return [tok]
    if tok in ("vcc", "exec", "m0"): return [tok]
    if tok in ("vcc_lo", "vcc_hi"): return ["vcc"]
    if tok in ("exec_lo", "exec_hi"): return ["exec"]
    return []

def R(f, i, n=1):
    return f"{f}{i}" if n == 1 else f"{f}[{i}:{i+n-1}]"
def V(i, n=1): return R("v", i, n)
def A(i, n=1): return R("a", i, n)
def S(i, n=1): return R("s", i, n)

class Ins:
    def __init__(self, text, tag=None, waitfor=None):
        self.text = text.strip()
        self.tag = tag
        self.waitfor = waitfor
        self.parse()
    def parse(self):
        t = self.text.split(";")[0].strip()
        self.reads, self.writes = set(), set()
        self.srcC = set(); self.srcAB = set()
        self.kind = "other"; self.nstates = 1; self.wide_store_data = set()
        if not t or t.endswith(":") or t.startswith("."):
            self.kind = "label"; self.op = ""; self.nstates = 0; return
        parts = t.split(None, 1)
        op = self.op = parts[0]
        rest = parts[1] if len(parts) > 1 else ""
        ops = [x.strip() for x in rest.split(",")] if rest else []
        mods = []
        if ops:
            l = ops[-1].split()
            if l:
                ops[-1] = l[0]; mods = l[1:]
        self.mods = mods
        rd = lambda xs: [self.reads.update(regs_of(x)) for x in xs]
        if op.startswith("v_mfma"):
            self.kind = "mfma"
            self.writes.update(regs_of(ops[0])); self.srcAB.update(regs_of(ops[1]) + regs_of(ops[2]))
            self.srcC.update(regs_of(ops[3])); rd(ops[1:4])
            self.passes = 4 if "16x16x32" in op else 8
        elif op.startswith("v_"):
            b = op.replace("_e32", "").replace("_e64", "").replace("_dpp", "").replace("_sdwa", "")
            self.kind = "trans" if b in TRANS else "valu"
            self.dpp = "_dpp" in op
            if b.startswith("v_cmp"):
                self.writes.update(regs_of(ops[0])); rd(ops[1:])
                if b.startswith("v_cmpx"): self.writes.add("exec")
            elif b.startswith("v_permlane") and "swap" in b:
                self.writes.update(regs_of(ops[0]) + regs_of(ops[1])); rd(ops[0:2]); self.permlane = True
            elif b in ("v_add_co_u32", "v_sub_co_u32", "v_addc_co_u32", "v_subb_co_u32"):
                self.writes.update(regs_of(ops[0]) + regs_of(ops[1])); rd(ops[2:])
            elif b == "v_nop":
                pass
            else:
                self.writes.update(regs_of(ops[0])); rd(ops[1:])
                if b.startswith("v_fmac") or b.startswith("v_dot2c") or self.dpp or b == "v_writelane_b32":
                    rd(ops[0:1])
        elif op.startswith("ds_read") or op.startswith("ds_bpermute") or op.startswith("ds_swizzle"):
            self.kind = "dsread"; self.writes.update(regs_of(ops[0])); rd(ops[1:])
        elif op.startswith("ds_"):
            self.kind = "dswrite"; rd(ops)
        elif op.startswith("buffer_load") or op.startswith("global_load"):
            if "lds" in mods or "_lds_" in op:
                self.kind = "dma"; rd(ops); self.reads.add("m0")
            else:
                self.kind = "vload"; self.writes.update(regs_of(ops[0])); rd(ops[1:])
        elif op.startswith("buffer_store") or op.startswith("global_store"):
            self.kind = "vstore"; rd(ops)
            if op.endswith("x4") or op.endswith("x3"):
                self.wide_store_data = set(regs_of(ops[0] if op.startswith("buffer") else ops[1]))
        elif op.startswith("buffer_atomic") or op.startswith("global_atomic"):
            rd(ops)
            if "sc0" in mods: self.kind = "vload"; self.writes.update(regs_of(ops[0]))
            else: self.kind = "vstore"
        elif op in ("buffer_wbl2", "buffer_inv"):
            self.kind = "vstore"
        elif op.startswith("s_load") or op in ("s_memtime", "s_memrealtime"):
            self.kind = "smem"; self.writes.update(regs_of(ops[0])); rd(ops[1:])
        elif op == "s_waitcnt":
            self.kind = "wait"
            self.vm = self.lgkm = None
            m = re.search(r"vmcnt\((\d+)\)", t)
            if m: self.vm = int(m.group(1))
            m = re.search(r"lgkmcnt\((\d+)\)", t)
            if m: self.lgkm = int(m.group(1))
        elif op == "s_nop":
            self.kind = "nop"; self.nstates = int(ops[0]) + 1
        elif op in ("s_barrier", "s_endpgm", "s_sleep", "s_setprio") or op.startswith("s_cbranch") or op == "s_branch":
            self.kind = "sctl"
        elif op.startswith("s_cmp") or op.startswith("s_bitcmp"):
            self.kind = "salu"; rd(ops)
        elif op.startswith("s_"):
            self.kind = "salu"; self.writes.update(regs_of(ops[0])); rd(ops[1:])
            if "saveexec" in op: self.writes.add("exec"); self.reads.add("exec")
        else:
            raise ValueError("unknown instr " + t)
    @property
    def is_valu(self): return self.kind in ("valu", "trans")
    @property
    def is_vmem(self): return self.kind in ("dma", "vload", "vstore")
    @property
    def is_lgkm(self): return self.kind in ("dsread", "dswrite", "smem")
    def __repr__(self): return self.text

def need_states(p, c):
    n = 0
    if p.is_valu:
        vw = {r for r in p.writes if r[0] in "va"}
        sw = {r for r in p.writes if r[0] == "s" or r == "vcc"}
        if c.kind == "mfma" and vw & c.reads: n = max(n, 2)
        if c.kind == "mfma" and "exec" in p.writes: n = max(n, 4)
        if p.kind == "trans" and c.kind == "valu" and vw & c.reads: n = max(n, 1)
        if c.is_vmem and sw & c.reads: n = max(n, 5)
        if c.is_valu and sw & c.reads: n = max(n, 4 if c.op.startswith(("v_readlane", "v_writelane")) else 2)
        if c.kind == "salu" and sw & c.reads: n = max(n, 1)
        if c.kind == "sctl" and "vcc" in sw and "vcc" in c.op: n = max(n, 1)
        if c.is_valu and c.op.startswith(("v_readfirstlane", "v_readlane")) and vw & c.reads: n = max(n, 1)
        if c.is_valu and (getattr(c, "permlane", False) or getattr(c, "dpp", False)) and vw & c.reads: n = max(n, 2)
    if p.kind == "mfma":
        big = {4: 8, 8: 12}[p.passes]
        if c.kind == "mfma":
            if p.writes & c.srcAB: n = max(n, big)
            if p.writes & c.srcC and not (p.writes == c.srcC and p.passes == c.passes): n = max(n, {4: 6, 8: 10}[p.passes])
        elif c.is_valu or c.is_vmem or c.kind in ("dsread", "dswrite"):
            if p.writes & (c.reads | c.writes): n = max(n, big)
            if c.is_valu and p.srcC & c.writes: n = max(n, {4: 3, 8: 7}[p.passes])
    if p.kind == "salu" and "m0" in p.writes and c.kind == "dma": n = max(n, 1)
    if p.wide_store_data and (p.wide_store_data & c.writes): n = max(n, 2)
    return n

def find_hazards(trace):
    out = []
    for i, c in enumerate(trace):
        if c.kind in ("label", "nop", "wait"): continue
        dist = 0; worst = 0; wp = None
        j = i - 1
        while j >= 0 and dist < 13:
            p = trace[j]
            n = need_states(p, c)
            if n - dist > worst: worst = n - dist; wp = p
            dist += p.nstates
            j -= 1
        if worst > 0: out.append((i, worst, wp))
    return out

def check_waits(trace):
    lg, vm = [], []
    errs = []
    for i, c in enumerate(trace):
        if c.kind == "wait":
            if c.lgkm is not None:
                if c.lgkm > 0 and any(x.kind == "smem" for x in lg): pass
                else: lg = lg[len(lg) - c.lgkm:] if c.lgkm < len(lg) and c.lgkm > 0 else ([] if c.lgkm == 0 else lg)
            if c.vm is not None:
                vm = vm[len(vm) - c.vm:] if c.vm < len(vm) and c.vm > 0 else ([] if c.vm == 0 else vm)
            continue
        use = c.reads | c.writes
        for x in lg + vm:
            if x.writes & use:
                if (x.writes & c.reads) or not (c.kind == x.kind):
                    errs.append((i, c, x))
        if c.is_lgkm: lg.append(c)
        if c.is_vmem: vm.append(c)
    return errs

def resolve_waits(trace):
    res = {}
    for i, c in enumerate(trace):
        if c.waitfor is None: continue
        cur = {}
        for cls, tags in c.waitfor.items():
            isk = (lambda x: x.is_lgkm) if cls == "lgkm" else (lambda x: x.is_vmem)
            cnt = 0; found = None
            j = i - 1
            while j >= 0:
                x = trace[j]
                if isk(x):
                    if x.tag is not None and x.tag in tags:
                        found = cnt; break
                    cnt += 1
                j -= 1
            mx = 15 if cls == "lgkm" else 63
            if found is not None: cur[cls] = min(found, mx)
        old = res.setdefault(id(c), (c, {}))[1]
        for k, v in cur.items(): old[k] = min(old.get(k, 99), v)
    for c, d in res.values():
        assert d, f"wait for {c.waitfor} never resolved"
        t = "s_waitcnt"
        if "vm" in d: t += f" vmcnt({d['vm']})"
        if "lgkm" in d: t += f" lgkmcnt({d['lgkm']})"
        c.text = t; c.parse()

class Block:
    def __init__(self): self.ins = []
    def e(self, text, tag=None):
        for l in text.split("\n"):
            if l.strip(): self.ins.append(Ins(l, tag=tag))
        return self
    def add(self, ins): self.ins.append(ins); return self
    def ext(self, lst): self.ins.extend(lst); return self
    def wait(self, lgkm=None, vm=None):
        self.ins.append(W(lgkm, vm)); return self
    def text(self): return "\n".join(("" if i.kind == "label" else "    ") + i.text for i in self.ins)

def W(lgkm=None, vm=None):
    d = {}
    if lgkm: d["lgkm"] = set(lgkm if isinstance(lgkm, (list, tuple, set)) else [lgkm])
    if vm: d["vm"] = set(vm if isinstance(vm, (list, tuple, set)) else [vm])
    return Ins("s_waitcnt vmcnt(0) lgkmcnt(0)", waitfor=d)

def fix_hazards(blocks_trace, verbose=None):
    total = 0
    for _ in range(200):
        tr = []; where = []
        for b in blocks_trace:
            for k, x in enumerate(b.ins): tr.append(x); where.append((b, x))
        hz = find_hazards(tr)
        if not hz: return total
        done = set()
        last = -100
        for i, miss, p in hz:
            if i - last < 14: continue
            b, x = where[i]
            if id(x) in done: continue
            done.add(id(x)); last = i
            k = next(k for k, y in enumerate(b.ins) if y is x)
            b.ins.insert(k, Ins(f"s_nop {miss-1}"))
            total += 1
            if verbose is not None: verbose.append((getattr(b, "name", "?"), x.text, p.text, miss))
    raise RuntimeError("hazard fixing did not converge")

def finalize(traces, verbose=None):
    for _ in range(3):
        n = 0
        for t in traces: n += fix_hazards(t, verbose)
        if n == 0: break
    alltr = []
    sep = Ins("s_waitcnt vmcnt(0) lgkmcnt(0)")
    res = {}
    for t in traces:
        tr = [x for b in t for x in b.ins]
        for i, c in enumerate(tr):
            if c.waitfor is None: continue
            old = res.setdefault(id(c), (c, {}))[1]
            for cls, tags in c.waitfor.items():
                isk = (lambda x: x.is_lgkm) if cls == "lgkm" else (lambda x: x.is_vmem)
                cnt = 0; found = None
                j = i - 1
                while j >= 0:
                    x = tr[j]
                    if isk(x):
                        if x.tag is not None and x.tag in tags:
                            found = cnt; break
                        cnt += 1
                    j -= 1
                mx = 15 if cls == "lgkm" else 63
                if found is not None: old[cls] = min(old.get(cls, 99), min(found, mx))
    for c, d in res.values():
        assert d and set(d) == set(c.waitfor), f"wait for {c.waitfor} never resolved"
        t = "s_waitcnt"
        if "vm" in d: t += f" vmcnt({d['vm']})"
        if "lgkm" in d: t += f" lgkmcnt({d['lgkm']})"
        c.text = t; c.parse()
    for t in traces:
        tr = [x for b in t for x in b.ins]
        errs = check_waits(tr)
        if errs:
            for i, c, x in errs[:10]: print("WAIT ERROR:", i, c, "<- pending", x)
            raise RuntimeError("missing waits")
        hz = find_hazards(tr)
        assert not hz, hz[:3]

def kernel_desc(name, vgpr, accum, sgpr=102):
    return f""".section .rodata,"a"
.p2align 6
.amdhsa_kernel {name}
  .amdhsa_next_free_vgpr {vgpr}
  .amdhsa_next_free_sgpr {sgpr}
  .amdhsa_accum_offset {accum}
  .amdhsa_group_segment_fixed_size 0
  .amdhsa_kernarg_size 96
  .amdhsa_user_sgpr_count 2
  .amdhsa_user_sgpr_kernarg_segment_ptr 1
  .amdhsa_system_sgpr_workgroup_id_x 1
  .amdhsa_float_denorm_mode_32 3
.end_amdhsa_kernel
"""
def kernel_head(name):
    return f".text\n.globl {name}\n.p2align 8\n.type {name},@function\n{name}:\n"
```

```python
import sys, math
sys.path.insert(0, "gen")
from asmgen import *

NAME = "recurrent_scan__mha_block_cached__glu_gated_swiglu__prompt"
WS_XN = 0
WS_B = 0x200000
BSTRIDE = 184 * 1024
LOG2E = 1.4426950408889634
import struct
def f32(x): return "0x%08x" % struct.unpack("<I", struct.pack("<f", x))[0]

OPT = dict(stamp=False)

def srd(b, d, base, nrec):
    b.e(f"s_mov_b32 s{d}, s{base}\ns_and_b32 s{d+1}, s{base+1}, 0xffff")
    b.e(f"s_mov_b32 s{d+2}, {nrec}" if not isinstance(nrec, str) else f"s_mov_b32 s{d+2}, {nrec}")
    b.e(f"s_mov_b32 s{d+3}, 0x20000")

def MF(d, a, bb, c): return Ins(f"v_mfma_f32_16x16x32_bf16 {d}, {a}, {bb}, {c}")

def gen_ln():
    b = Block(); b.name = "ln"
    b.e("s_cmp_ge_u32 s2, 128\ns_cbranch_scc1 L_ln_end")
    b.e("s_load_dwordx2 s[4:5], s[0:1], 0\ns_load_dwordx2 s[6:7], s[0:1], 88")
    b.e("v_and_b32 v1, 63, v0\nv_lshrrev_b32 v2, 6, v0")
    b.e("v_and_b32 v3, 15, v1\nv_lshrrev_b32 v4, 4, v1")
    b.e("v_lshlrev_b32 v5, 10, v3\nv_lshl_add_u32 v5, v2, 8, v5\nv_lshl_add_u32 v5, v4, 4, v5")
    b.e("s_lshl_b32 s3, s2, 14")
    b.e("s_waitcnt lgkmcnt(0)")
    srd(b, 8, 4, 2097152)
    srd(b, 12, 6, 2097152)
    for i in range(4):
        b.e(f"buffer_load_dwordx4 v[{8+4*i}:{11+4*i}], v5, s[8:11], s3 offen offset:{64*i}")
    b.e("v_lshlrev_b32 v6, 6, v3\nv_lshl_add_u32 v7, v2, 4, v6\nv_lshl_add_u32 v7, v4, 2, v7")
    b.e("s_waitcnt vmcnt(0)")
    for i in range(16):
        b.e(f"v_lshlrev_b32 v{32+2*i}, 16, v{8+i}\nv_and_b32 v{33+2*i}, 0xffff0000, v{8+i}")
    def reduce(off):
        b.e(f"ds_write_b32 v7, v24 offset:{off}\ns_waitcnt lgkmcnt(0)\ns_barrier")
        for i in range(4): b.e(f"ds_read_b128 v[{64+4*i}:{67+4*i}], v6 offset:{off+16*i}")
        b.e("s_waitcnt lgkmcnt(0)")
        for i in range(8): b.e(f"v_add_f32 v{64+i}, v{64+i}, v{72+i}")
        for i in range(4): b.e(f"v_add_f32 v{64+i}, v{64+i}, v{68+i}")
        b.e("v_add_f32 v64, v64, v66\nv_add_f32 v65, v65, v67\nv_add_f32 v24, v64, v65")
        b.e(f"v_mul_f32 v24, {f32(1/512)}, v24")
    for k in range(4): b.e(f"v_add_f32 v{24+k}, v{32+k}, v{36+k}")
    for i in range(8, 32): b.e(f"v_add_f32 v{24+i%4}, v{24+i%4}, v{32+i}")
    b.e("v_add_f32 v24, v24, v25\nv_add_f32 v26, v26, v27\nv_add_f32 v24, v24, v26")
    reduce(0)
    b.e("v_mov_b32 v28, v24")
    for i in range(32):
        b.e(f"v_sub_f32 v29, v{32+i}, v28")
        b.e(f"v_mul_f32 v{24+i}, v29, v29" if i < 4 else f"v_fmac_f32 v{24+i%4}, v29, v29")
    b.e("v_add_f32 v24, v24, v25\nv_add_f32 v26, v26, v27\nv_add_f32 v24, v24, v26")
    reduce(1024)
    def rnd(r): b.e(f"v_cvt_pk_bf16_f32 v{r}, v{r}, v{r}\nv_and_b32 v{r}, 0xffff0000, v{r}")
    rnd(28); rnd(24)
    b.e(f"v_add_f32 v24, {f32(1e-5)}, v24"); rnd(24)
    b.e("v_sqrt_f32 v24, v24"); rnd(24)
    b.e("v_rcp_f32 v24, v24")
    for i in range(16):
        b.e(f"v_sub_f32 v29, v{32+2*i}, v28\nv_sub_f32 v30, v{33+2*i}, v28\nv_cvt_pk_bf16_f32 v29, v29, v30")
        b.e(f"v_and_b32 v30, 0xffff0000, v29\nv_lshlrev_b32 v29, 16, v29")
        b.e(f"v_mul_f32 v29, v29, v24\nv_mul_f32 v30, v30, v24\nv_cvt_pk_bf16_f32 v{8+i}, v29, v30")
    b.e("v_lshlrev_b32 v5, 4, v1\nv_lshl_add_u32 v5, v2, 12, v5")
    for i in range(4):
        b.e(f"buffer_store_dwordx4 v[{8+4*i}:{11+4*i}], v5, s[12:15], s3 offen offset:{1024*i}")
    b.e("L_ln_end:\ns_endpgm")
    finalize([[b]])
    return kernel_head("ln_kernel") + b.text() + "\n" + kernel_desc("ln_kernel", 80, 80, 24)

class Gap:
    def __init__(self, m): self.m = m; self.scal = []; self.vec = []; self.load = 0
class TL:
    def __init__(self): self.g = []
    def add(self, m): self.g.append(Gap(m)); return len(self.g) - 1
    def vec_at(self, i, ins, cost=None):
        if cost is None: cost = 2 if ins.kind == "trans" else 1
        self.g[i].vec.append(ins); self.g[i].load += cost
    def vec_in(self, lo, hi, items):
        n = len(items)
        cand = []
        loads = {i: self.g[i].load for i in range(lo, hi + 1)}
        for _ in range(n):
            i = min(loads, key=lambda k: (loads[k], k)); cand.append(i); loads[i] += 1
        cand.sort()
        for i, it in zip(cand, items): self.vec_at(i, it)
        return cand
    def scal_at(self, i, ins, later=True):
        while self.g[i].scal: i += 1 if later else -1
        self.g[i].scal.append(ins); return i
    def emit(self, lo, hi, name):
        b = Block(); b.name = name
        for gp in self.g[lo:hi]:
            if gp.m is not None: b.add(gp.m)
            b.ext(gp.scal); b.ext(gp.vec)
        return b

sK, sV, sWQ, sW1, sW3, sXN, sB, sH = 8, 12, 16, 20, 24, 28, 32, 36
sHead, sQb, sWave, sW8k, sW4k, sXb, sKo, sVo, sCnt, sT, sT2, sWQo, sW13o, sBo, sFB = range(56, 71)
vLane16 = 1
vWQA, vW13A, vDQ, vD13, vKA, vVA, vDK, vDV = 2, 6, 10, 14, 18, 22, 30, 34
vT = 36
vONES = 60
vL, vNM, vS = 64, 80, 96
vZ = 112
def P(pb, kk, t): return 128 + pb * 64 + (t * 4 + kk) * 4
def O(dt, t): return (dt * 4 + t) * 4
def Q(t, ds): return 128 + (t * 4 + ds) * 4
def KF(b, ds): return 192 + b * 16 + ds * 4
def VF(b, kk): return 224 + b * 16 + kk * 4

def dma_K(half, buf, tag):
    sc = [Ins(f"s_add_u32 m0, s{sW8k}, {buf*32768 + half*4096}")]
    ve = [Ins(f"buffer_load_dwordx4 v{vDK+p}, s[{sK}:{sK+3}], s{sKo} offen offset:{p*1024} lds", tag=tag) for p in range(4)]
    post = [Ins(f"s_add_u32 s{sKo}, s{sKo}, {4096 if half == 0 else 28672}")]
    return sc, ve, post
def dma_V(half, buf, tag):
    sc = [Ins(f"s_add_u32 m0, s{sW8k}, {65536 + buf*32768 + half*4096}")]
    ve = [Ins(f"buffer_load_dwordx4 v{vDV+(p&1)}, s[{sV}:{sV+3}], s{sVo} offen offset:{p*1024} lds", tag=tag) for p in range(4)]
    post = [Ins(f"s_add_u32 s{sVo}, s{sVo}, {4096 if half == 0 else 28672}")]
    return sc, ve, post
def emit_dma(b, d):
    b.ext(d[0]); b.ext(d[1]); b.ext(d[2])
def kreads(g, buf, fb, tag):
    return [Ins(f"ds_read_b128 {A(KF(fb,ds),4)}, v{vKA+ds} offset:{buf*32768+g*4096}", tag=tag) for ds in range(4)]
def vreads(dt, buf, fb, tag):
    return [Ins(f"ds_read_b64_tr_b16 {A(VF(fb,kk)+2*kh,2)}, v{vVA+dt} offset:{buf*32768+(32*kk+16*kh)*256}", tag=tag) for kk in range(4) for kh in range(2)]
def qk_chain(t, fb, c0):
    order = range(4) if t % 2 == 0 else range(3, -1, -1)
    d = V(vS + 4 * t, 4)
    return [MF(d, A(KF(fb, ds), 4), A(Q(t, ds), 4), c0 if n == 0 else d) for n, ds in enumerate(order)]
def pv_chain(dt, t, fb, pb):
    order = range(4) if t % 2 == 0 else range(3, -1, -1)
    d = A(O(dt, t), 4)
    return [MF(d, A(VF(fb, kk), 4), V(P(pb, kk, t), 4), d) for kk in order]

def gen_attention():
    tl = TL()
    phases = [-1, 0, 1, 2, 3, 4, 15]
    start = {}; stepb = {}
    for p in phases:
        start[p] = len(tl.g)
        for s in range(8):
            stepb[p, s] = len(tl.g)
            if p != 15:
                for t in range(4):
                    for m in qk_chain(t, s & 1, V(vNM + 4 * t, 4)): tl.add(m)
            if p == -1:
                tl.add(Ins(f"v_mfma_f32_32x32x16_bf16 {A(16*s,16)}, {V(vZ,4)}, {V(vZ,4)}, 0"))
                if s == 0: tl.add(Ins(f"v_mfma_f32_32x32x16_bf16 {V(vL,16)}, {V(vZ,4)}, {V(vZ,4)}, 0"))
            else:
                for t in range(4):
                    for m in pv_chain(s, t, s & 1, p & 1): tl.add(m)
                t = s >> 1
                for kk in (2 * (s & 1), 2 * (s & 1) + 1):
                    tl.add(MF(V(vL + 4 * t, 4), V(vONES, 4), V(P(p & 1, kk, t), 4), V(vL + 4 * t, 4)))
    end = len(tl.g)
    nxt = {p: (start[phases[i + 1]] if i + 1 < len(phases) else end) for i, p in enumerate(phases)}
    for p in phases:
        if p == 15: continue
        pb = (p + 1) & 1
        for s in range(8):
            b0 = stepb[p, s]
            nb = stepb[p, s + 1] if s < 7 else nxt[p]
            for t in range(4):
                sr = vS + 4 * t
                ex = [Ins(f"v_exp_f32 v{sr+r}, v{sr+r}") for r in range(4)]
                pd = P(pb, s >> 1, t) + 2 * (s & 1)
                cv = [Ins(f"v_cvt_pk_bf16_f32 v{pd+h}, v{sr+2*h}, v{sr+2*h+1}") for h in range(2)]
                if p >= 0:
                    pe = [8 * t + 8 + 2 * r for r in range(4)]; pc = [8 * t + 11, 8 * t + 15]
                    pe = [b0 + x for x in pe]; pc = [b0 + x for x in pc]
                else:
                    pe = [b0 + 4 * t + 8 + r for r in range(4)]; pc = [b0 + 4 * t + 10, b0 + 4 * t + 12]
                    if s == 7:
                        pe = [min(x, nb - 1) for x in pe]; pc = [min(x, nb - 1) for x in pc]
                        if t == 3: pe[1:] = [nb + 0, nb + 2, nb + 4]; pc = [nb + 1, nb + 5]
                seq = sorted([(pe[0],0,ex[0]),(pe[1],1,ex[1]),(pc[0],2,cv[0]),(pe[2],3,ex[2]),(pe[3],4,ex[3]),(pc[1],5,cv[1])], key=lambda z: (z[0], z[1]))
                for pos, _, ins in seq: tl.vec_at(pos, ins)
    for p in phases:
        for s in range(8):
            b0 = stepb[p, s]
            nb = stepb[p, s + 1] if s < 7 else nxt[p]
            L = nb - b0
            ns, npz = (s + 1) & 7, (p + 1 if s == 7 else p)
            if p == 15:
                if s == 0: pass
                if s < 7:
                    tl.vec_in(b0 + 1, b0 + 11, vreads(ns, p & 1, ns & 1, f"V{ns}"))
                    tl.scal_at(nb - 1, W(lgkm=f"V{ns}"), later=False)
                continue
            if s == 7:
                i = tl.scal_at(b0 + 4, W(lgkm=["V7", "K7"], vm=["DK", "DV"]))
                tl.scal_at(i + 1, Ins("s_barrier"))
            if p >= 0:
                tl.vec_in(b0 + 6, b0 + 22, kreads(ns, (npz + 1) & 1, ns & 1, f"K{ns}"))
                tl.vec_in(b0 + 9, b0 + 33, vreads(ns, npz & 1, ns & 1, f"V{ns}"))
                tl.scal_at(b0 + 15, W(lgkm=f"V{s}"), later=False)
                tl.scal_at(nb - 1, W(lgkm=f"K{ns}"), later=False)
                if s < 4:
                    d = dma_K(s, p & 1, "DK") if s < 2 else dma_V(s - 2, (p + 1) & 1, "DV")
                    tl.scal_at(b0 + 1, d[0][0])
                    c = tl.vec_in(b0 + 3, b0 + 30, d[1])
                    tl.scal_at(c[-1] + 1, d[2][0])
            else:
                tl.vec_in(b0 + 6, b0 + 10, kreads(ns, (npz + 1) & 1, ns & 1, f"K{ns}"))
                if s == 7: tl.vec_in(b0 + 10, nb - 1, vreads(0, 0, 0, "V0"))
                tl.scal_at(nb - 1, W(lgkm=f"K{ns}"), later=False)
    blk = {p: tl.emit(start[p], nxt[p], f"att{p}") for p in phases}
    tx = lambda b: [(i.text, str(i.waitfor), i.tag) for i in b.ins]
    assert tx(blk[0]) == tx(blk[2]) == tx(blk[4]) and tx(blk[1]) == tx(blk[3])
    last = blk[15]; last.ins.insert(0, W(lgkm="V0"))
    return blk[-1], blk[0], blk[1], last

def gen_proj():
    XB = lambda c, t, ks: (128 if c % 2 == 0 else 64) + (t * 4 + ks) * 4
    WF = lambda fb, ks: 192 + fb * 16 + ks * 4
    def acc(u, t):
        if u < 8: return V(128 + (u * 4 + t) * 4, 4)
        if u < 12: return V(64 + ((u - 8) * 4 + t) * 4, 4)
        return A(((u - 12) * 4 + t) * 4, 4)
    def wreads(u, fb, tag):
        r = []
        for ks in range(4):
            for kh in range(2):
                if u < 8: ad, off = vWQA + (u >> 1), ks * 8192 + kh * 1024 + 8 * (u & 1)
                else: ad, off = vW13A + (u & 3), ks * 4096 + kh * 512 + (16384 if u >= 12 else 0)
                r.append(Ins(f"ds_read_b64_tr_b16 {A(WF(fb,ks)+2*kh,2)}, v{ad} offset:{off}", tag=tag))
        return r
    def wdma(c):
        buf = (c & 1) * 65536; g = []
        for half in range(2):
            g.append(([Ins(f"s_add_u32 m0, s{sW8k}, {buf + half*4096}"), Ins(f"s_add_u32 s{sT}, s{sWQo}, {(c*128+16*half)*8192}")],
                      [Ins(f"buffer_load_dwordx4 v{vDQ+p}, s[{sWQ}:{sWQ+3}], s{sT} offen offset:{p*1024} lds", tag=f"DW{c}") for p in range(4)]))
        for k, sr in enumerate((sW1, sW3)):
            g.append(([Ins(f"s_add_u32 m0, s{sW4k}, {buf + 32768 + k*16384}"), Ins(f"s_add_u32 s{sT}, s{sW13o}, {c*128*3584}")],
                      [Ins(f"buffer_load_dwordx4 v{vD13+p}, s[{sr}:{sr+3}], s{sT} offen offset:{p*1024} lds", tag=f"DW{c}") for p in range(4)]))
        return g
    def xloads(c):
        g = []
        for t in range(4):
            g.append(([Ins(f"s_add_u32 s{sT2}, s{sXb}, {t*16384 + c*4096}")],
                      [Ins(f"buffer_load_dwordx4 {A(XB(c,t,ks),4)}, v{vLane16}, s[{sXN}:{sXN+3}], s{sT2} offen offset:{ks*1024}", tag=f"X{c}") for ks in range(4)]))
        return g
    pre = Block(); pre.name = "projpre"
    for c in range(2):
        for sc, ve in wdma(c): pre.ext(sc); pre.ext(ve)
        for sc, ve in xloads(c): pre.ext(sc); pre.ext(ve)
    pre2 = Block(); pre2.name = "projpre2"
    pre2.wait(vm="DW0"); pre2.e("s_barrier"); pre2.ext(wreads(0, 0, "W0")); pre2.wait(lgkm="W0", vm="X0")
    tl = TL(); tb = {}
    for c in range(4):
        for u in range(16):
            tb[c, u] = len(tl.g)
            for t in range(4):
                order = range(4) if t % 2 == 0 else range(3, -1, -1)
                for n, ks in enumerate(order):
                    tl.add(MF(acc(u, t), A(WF(u & 1, ks), 4), A(XB(c, t, ks), 4), "0" if (c == 0 and n == 0) else acc(u, t)))
    for c in range(4):
        for u in range(16):
            b0 = tb[c, u]
            if u < 15:
                tl.vec_in(b0 + 1, b0 + 10, wreads(u + 1, (u + 1) & 1, f"W{u+1}"))
                tl.scal_at(b0 + 15, W(lgkm=f"W{u+1}"), later=False)
            else:
                tl.scal_at(b0, W(vm=f"DW{c+1}" if c < 3 else "DK0"))
                tl.scal_at(b0 + 1, Ins("s_barrier"))
                if c < 3:
                    tog = [Ins(f"v_xor_b32 v{vWQA+i}, 0x10000, v{vWQA+i}") for i in range(8)]
                    for i, x in enumerate(tog): tl.vec_at(b0 + (0 if i < 2 else 9 + i), x)
                    tl.vec_in(b0 + 2, b0 + 9, wreads(0, 0, "W0"))
                    tl.scal_at(b0 + 15, W(lgkm="W0", vm=f"X{c+1}"), later=False)
            if c >= 1 and u < 8:
                if c < 3: sc, ve = (wdma(c + 1) + xloads(c + 1))[u]; post = []
                elif u < 4: sc, ve, post = dma_K(u & 1, u >> 1, f"DK{u>>1}" if u < 2 else "DK")
                else: continue
                i = b0 + 8
                for x in sc: i = tl.scal_at(i, x) + 1
                cc = tl.vec_in(b0 + 11, b0 + 14, ve)
                for x in post: tl.scal_at(b0 + 16, x)
    body = tl.emit(0, len(tl.g), "proj")
    return pre, pre2, body, acc

def gen_KA():
    b = Block(); b.name = "setup"
    b.e("s_cmp_ge_u32 s2, 256\ns_cbranch_scc1 L_ka_end")
    b.e("s_load_dwordx4 s[40:43], s[0:1], 8\ns_load_dwordx2 s[44:45], s[0:1], 24\ns_load_dwordx4 s[48:51], s[0:1], 48\ns_load_dwordx2 s[46:47], s[0:1], 88")
    if OPT["stamp"]: b.e("s_load_dwordx2 s[94:95], s[0:1], 88\ns_memtime s[72:73]\ns_memrealtime s[74:75]")
    T0, T1, T2, T3, T4 = vT, vT + 1, vT + 2, vT + 3, vT + 4
    vc, vg, vi2, vi3 = vT + 8, vT + 9, vT + 10, vT + 11
    b.e(f"v_lshrrev_b32 v{T0}, 6, v0\nv_and_b32 v0, 63, v0")
    b.e(f"v_readfirstlane_b32 s{sWave}, v{T0}")
    b.e(f"s_and_b32 s{sHead}, s2, 7\ns_lshl_b32 s{sHead}, s{sHead}, 2\ns_lshr_b32 s{sT}, s2, 3\ns_and_b32 s{sT}, s{sT}, 3\ns_add_u32 s{sHead}, s{sHead}, s{sT}")
    b.e(f"s_lshr_b32 s{sQb}, s2, 5")
    b.e(f"s_lshl_b32 s{sW8k}, s{sWave}, 13\ns_lshl_b32 s{sW4k}, s{sWave}, 12")
    b.e(f"s_lshl_b32 s{sT}, s{sQb}, 4\ns_lshl_b32 s{sT2}, s{sWave}, 2\ns_add_u32 s{sT}, s{sT}, s{sT2}")
    b.e(f"s_lshl_b32 s{sXb}, s{sT}, 14\ns_mul_i32 s{sBo}, s{sT}, {BSTRIDE}")
    b.e(f"s_lshl_b32 s{sWQo}, s{sWave}, 18\ns_mul_i32 s{sW13o}, s{sWave}, {32*3584}")
    b.e(f"s_mov_b32 s{sKo}, s{sW8k}\ns_mov_b32 s{sVo}, s{sW8k}\ns_mov_b32 s{sFB}, 0")
    b.e(f"v_lshlrev_b32 v{vLane16}, 4, v0")
    b.e(f"v_and_b32 v{vc}, 15, v0\nv_lshrrev_b32 v{vg}, 4, v0\nv_bfe_u32 v{vi2}, v0, 2, 2\nv_and_b32 v{vi3}, 3, v0")
    b.e(f"v_lshlrev_b32 v{T0}, 2, v{vg}\nv_xor_b32 v{T0}, v{vc}, v{T0}\nv_lshlrev_b32 v{T0}, 4, v{T0}\nv_lshl_add_u32 v{vDQ}, v{vg}, 13, v{T0}")
    for p in range(1, 4): b.e(f"v_add_u32 v{vDQ+p}, {p*31744}, v{vDQ}")
    b.e(f"v_lshrrev_b32 v{T0}, 3, v0\nv_mul_u32_u24 v{T0}, 3584, v{T0}\nv_and_b32 v{T1}, 7, v0\nv_and_b32 v{T2}, 1, v{vg}\nv_lshlrev_b32 v{T2}, 1, v{T2}\nv_xor_b32 v{T1}, v{T1}, v{T2}")
    for p in range(4):
        b.e(f"v_xor_b32 v{T2}, {4*(p&1)}, v{T1}\nv_lshl_add_u32 v{T2}, v{T2}, 4, v{T0}\nv_add_u32 v{vD13+p}, {p*27648}, v{T2}")
    b.e("s_waitcnt lgkmcnt(0)")
    b.e(f"s_lshl_b32 s{sT}, s{sHead}, 8\ns_add_u32 s44, s44, s{sT}\ns_addc_u32 s45, s45, 0\ns_sub_u32 s{sT2}, 0x400000, s{sT}")
    srd(b, sWQ, 44, f"s{sT2}")
    b.e(f"s_lshl_b32 s{sT}, s{sHead}, 7\ns_add_u32 s48, s48, s{sT}\ns_addc_u32 s49, s49, 0\ns_add_u32 s50, s50, s{sT}\ns_addc_u32 s51, s51, 0")
    b.e(f"s_sub_u32 s{sT2}, {512*3584}, s{sT}\ns_cmp_lt_u32 s{sHead}, 28\ns_cselect_b32 s{sT2}, s{sT2}, 0")
    srd(b, sW1, 48, f"s{sT2}"); srd(b, sW3, 50, f"s{sT2}")
    srd(b, sXN, 46, 0x200000)
    pre, pre2, proj, acc = gen_proj()
    c = Block(); c.name = "setup2"
    c.e(f"s_lshl_b32 s{sT}, s{sHead}, 19\ns_add_u32 s40, s40, s{sT}\ns_addc_u32 s41, s41, 0\ns_add_u32 s42, s42, s{sT}\ns_addc_u32 s43, s43, 0")
    srd(c, sK, 40, 0x80000); srd(c, sV, 42, 0x80000)
    c.e(f"s_add_u32 s46, s46, {WS_B}\ns_addc_u32 s47, s47, 0")
    srd(c, sB, 46, 128 * BSTRIDE)
    c.e(f"s_cmp_lt_u32 s{sHead}, 28\ns_cselect_b32 s{sT2}, {128*BSTRIDE}, 0")
    srd(c, sH, 46, f"s{sT2}")
    c.e(f"v_lshl_add_u32 v{T0}, v{vg}, 3, v{vi2}\nv_lshlrev_b32 v{T1}, 8, v{T0}\nv_lshl_add_u32 v{T1}, v{vi3}, 4, v{T1}")
    for ds in range(4): c.e(f"v_xor_b32 v{T2}, {ds}, v{vi2}\nv_lshl_add_u32 v{vWQA+ds}, v{T2}, 6, v{T1}")
    c.e(f"v_lshlrev_b32 v{T1}, 7, v{T0}\nv_lshl_add_u32 v{T1}, v{vi3}, 3, v{T1}\nv_add_u32 v{T1}, 0x8000, v{T1}")
    c.e(f"v_and_b32 v{T3}, 1, v{vg}\nv_lshlrev_b32 v{T3}, 1, v{T3}\nv_lshrrev_b32 v{T4}, 1, v{vi2}\nv_or_b32 v{T3}, v{T3}, v{T4}")
    for v in range(4): c.e(f"v_xor_b32 v{T2}, {v}, v{T3}\nv_lshl_add_u32 v{vW13A+v}, v{T2}, 5, v{T1}")
    c.e(f"v_xor_b32 v{T0}, v{vg}, v{vc}\nv_lshlrev_b32 v{T1}, 8, v{vc}")
    for ds in range(4): c.e(f"v_xor_b32 v{T2}, {4*ds}, v{T0}\nv_lshl_add_u32 v{vKA+ds}, v{T2}, 4, v{T1}")
    c.e(f"v_lshl_add_u32 v{T0}, v{vg}, 2, v{vi2}\nv_lshlrev_b32 v{T1}, 8, v{T0}\nv_lshl_add_u32 v{T1}, v{vi3}, 3, v{T1}\nv_add_u32 v{T1}, 0x10000, v{T1}\nv_and_b32 v{T0}, 7, v{T0}")
    for dt in range(8): c.e(f"v_xor_b32 v{T2}, {dt}, v{T0}\nv_lshl_add_u32 v{vVA+dt}, v{T2}, 5, v{T1}")
    c.e(f"v_lshlrev_b32 v{T1}, 8, v{vg}\nv_xor_b32 v{T0}, v{vg}, v{vc}")
    for p in range(4): c.e(f"v_xor_b32 v{T2}, {4*p}, v{T0}\nv_lshl_add_u32 v{vDK+p}, v{T2}, 4, v{T1}")
    c.e(f"v_lshlrev_b32 v{T0}, 1, v{vg}\nv_xor_b32 v{T0}, v{T0}, v{vc}")
    for p in range(2): c.e(f"v_xor_b32 v{T2}, {8*p}, v{T0}\nv_lshl_add_u32 v{vDV+p}, v{T2}, 4, v{T1}")
    for i in range(4): c.e(f"v_mov_b32 v{vONES+i}, 0x3f803f80")
    e = Block(); e.name = "projepi"
    emit_dma(e, dma_V(0, 0, "DV")); emit_dma(e, dma_V(1, 0, "DV"))
    e.ext(kreads(0, 0, 0, "K0"))
    if OPT["stamp"]: e.e("s_waitcnt lgkmcnt(0)\ns_memtime s[76:77]\ns_waitcnt lgkmcnt(0)")
    cs = LOG2E * 128 ** -0.5
    e.e(f"s_mov_b32 s{sT}, {f32(cs)}\ns_mov_b32 s{sT2}, {f32(-LOG2E)}")
    for t in range(4):
        for ds in range(4):
            rr = [128 + ((2 * ds + hf) * 4 + t) * 4 + r for hf in range(2) for r in range(4)]
            for r in rr: e.e(f"v_mul_f32 v{r}, s{sT}, v{r}")
            for k in range(4): e.e(f"v_cvt_pk_bf16_f32 v{vT+k}, v{rr[2*k]}, v{rr[2*k+1]}")
            for k in range(4): e.e(f"v_accvgpr_write_b32 a{Q(t,ds)+k}, v{vT+k}")
    e.e(f"s_lshl_b32 s{sCnt}, s{sHead}, 11\ns_add_u32 s{sCnt}, s{sCnt}, {128*1024}\ns_add_u32 s{sCnt}, s{sCnt}, s{sBo}")
    for t in range(4):
        for i in range(2):
            o = 128 + (t * 2 + i) * 4
            gr = [64 + ((2 * i + hf) * 4 + t) * 4 + r for hf in range(2) for r in range(4)]
            ur = [((2 * i + hf) * 4 + t) * 4 + r for hf in range(2) for r in range(4)]
            for k in range(8): e.e(f"v_mul_f32 v{vT+k}, s{sT2}, v{gr[k]}\nv_accvgpr_read_b32 v{vT+8+k}, a{ur[k]}")
            for k in range(8): e.e(f"v_exp_f32 v{vT+k}, v{vT+k}")
            for k in range(8): e.e(f"v_mul_f32 v{vT+8+k}, v{vT+8+k}, v{gr[k]}\nv_add_f32 v{vT+k}, 1.0, v{vT+k}")
            for k in range(8): e.e(f"v_rcp_f32 v{vT+k}, v{vT+k}")
            for k in range(8): e.e(f"v_mul_f32 v{vT+k}, v{vT+k}, v{vT+8+k}")
            for k in range(4): e.e(f"v_cvt_pk_bf16_f32 v{o+k}, v{vT+2*k}, v{vT+2*k+1}")
            e.e(f"buffer_store_dwordx4 {V(o,4)}, v{vLane16}, s[{sH}:{sH+3}], s{sCnt} offen offset:{1024*i}")
        e.e(f"s_add_u32 s{sCnt}, s{sCnt}, {BSTRIDE}")
    for i in range(4): e.e(f"v_mov_b32 v{vZ+i}, 0")
    e.wait(lgkm="K0")
    for t in range(4): e.ext(qk_chain(t, 0, "0"))
    def rowmax_finish(blk, src):
        for t in range(4): blk.e(f"v_mov_b32 v{vT+t}, v{src(t)}")
        for t in range(4): blk.e(f"v_permlane32_swap_b32 v{vT+t}, v{src(t)}")
        for t in range(4): blk.e(f"v_max_f32 v{src(t)}, v{src(t)}, v{vT+t}")
        for t in range(4): blk.e(f"v_mov_b32 v{vT+t}, v{src(t)}")
        for t in range(4): blk.e(f"v_permlane16_swap_b32 v{vT+t}, v{src(t)}")
        for t in range(4): blk.e(f"v_max_f32 v{vT+t}, v{src(t)}, v{vT+t}")
        for t in range(4):
            for r in range(4): blk.e(f"v_sub_f32 v{vNM+4*t+r}, 0, v{vT+t}")
    for t in range(4):
        s0 = vS + 4 * t
        e.e(f"v_max3_f32 v{s0}, v{s0}, v{s0+1}, v{s0+2}\nv_max_f32 v{s0}, v{s0}, v{s0+3}")
    rowmax_finish(e, lambda t: vS + 4 * t)
    first, even, odd, last = gen_attention()
    l0 = Block(); l0.e(f"L_att_start:\ns_mov_b32 s{sCnt}, 7")
    if OPT["stamp"]: l0.e("s_memtime s[78:79]\ns_waitcnt lgkmcnt(0)")
    l1 = Block()
    if OPT["stamp"]: l1.e("s_waitcnt lgkmcnt(0)\ns_memtime s[80:81]\ns_waitcnt lgkmcnt(0)")
    l1b = Block(); l1b.e(".p2align 6\nL_att_loop:")
    l2 = Block(); l2.e(f"s_cmp_eq_u32 s{sCnt}, 0\ns_cbranch_scc1 L_att_last")
    l3 = Block(); l3.e(f"s_sub_u32 s{sCnt}, s{sCnt}, 1\ns_branch L_att_loop")
    l4 = Block(); l4.e("L_att_last:")
    if OPT["stamp"]: l4.e("s_waitcnt lgkmcnt(0)\ns_memtime s[82:83]\ns_waitcnt lgkmcnt(0)")
    f = Block(); f.name = "attepi"
    if OPT["stamp"]: f.e("s_memtime s[84:85]\ns_waitcnt lgkmcnt(0)")
    for t in range(4): f.e(f"v_rcp_f32 v{vT+16+t}, v{vL+4*t}")
    f.e(f"s_lshl_b32 s{sCnt}, s{sHead}, 12\ns_add_u32 s{sCnt}, s{sCnt}, s{sBo}")
    chk = V(vS, 4)
    for t in range(4):
        for i in range(4):
            o = 128 + (t * 4 + i) * 4
            ar = [O(2 * i + hf, t) + r for hf in range(2) for r in range(4)]
            tb = vT + 8 * (i & 1)
            for k in range(8): f.e(f"v_accvgpr_read_b32 v{tb+k}, a{ar[k]}")
            for k in range(8): f.e(f"v_mul_f32 v{tb+k}, v{tb+k}, v{vT+16+t}")
            for k in range(4): f.e(f"v_cvt_pk_bf16_f32 v{o+k}, v{tb+2*k}, v{tb+2*k+1}")
            f.e(f"buffer_store_dwordx4 {V(o,4)}, v{vLane16}, s[{sB}:{sB+3}], s{sCnt} offen offset:{1024*i}")
            f.add(MF(chk, V(vZ, 4), V(o, 4), "0" if (t == 0 and i == 0) else chk))
        f.e(f"s_add_u32 s{sCnt}, s{sCnt}, {BSTRIDE}")
    f.e(f"s_mov_b32 s{sT}, {f32(2.0**100)}")
    f.e(f"v_max3_f32 v{vT}, v{vL}, v{vL+4}, v{vL+8}\nv_max_f32 v{vT}, v{vT}, v{vL+12}")
    f.e(f"v_add_f32 v{vT}, v{vT}, v{vS}")
    f.e(f"v_cmp_nlt_f32 vcc, v{vT}, s{sT}")
    f.e(f"s_cmp_lg_u64 vcc, 0\ns_cselect_b32 s{sT}, 1, 0")
    f.e(f"v_mov_b32 v{vT}, s{sT}\nv_mov_b32 v{vT+1}, s{sWave}\nv_lshlrev_b32 v{vT+1}, 2, v{vT+1}\nv_add_u32 v{vT+1}, 0x20000, v{vT+1}")
    f.e(f"ds_write_b32 v{vT+1}, v{vT}\ns_waitcnt lgkmcnt(0)\ns_barrier")
    f.e(f"v_mov_b32 v{vT+1}, 0x20000\nds_read_b128 {V(vT+4,4)}, v{vT+1}\ns_waitcnt lgkmcnt(0)")
    f.e(f"v_or_b32 v{vT+4}, v{vT+4}, v{vT+5}\nv_or3_b32 v{vT+4}, v{vT+4}, v{vT+6}, v{vT+7}")
    f.e(f"v_readfirstlane_b32 s{sT}, v{vT+4}")
    f.e(f"s_andn2_b32 s{sT}, s{sT}, s{sFB}\ns_cmp_lg_u32 s{sT}, 0\ns_cbranch_scc1 L_fallback")
    z = Block(); z.name = "end"
    if OPT["stamp"]:
        z.e("s_waitcnt vmcnt(0)\ns_memtime s[86:87]\ns_memrealtime s[88:89]\ns_waitcnt lgkmcnt(0)")
        z.e("s_add_u32 s94, s94, 0x8000000\ns_addc_u32 s95, s95, 0")
        srd(z, 96, 94, 0x100000)
        for i in range(18): z.e(f"v_mov_b32 v{vT+i}, s{72+i}")
        z.e(f"s_lshl_b32 s{sT}, s2, 2\ns_add_u32 s{sT}, s{sT}, s{sWave}\ns_lshl_b32 s{sT}, s{sT}, 7\nv_mov_b32 v2, s{sT}")
        z.e("v_cmp_eq_u32 vcc, 0, v0\ns_and_saveexec_b64 s[4:5], vcc")
        for i in range(5): z.e(f"buffer_store_dwordx4 {V(vT+4*i,4)}, v2, s[96:99], 0 offen offset:{16*i}")
    z.e("L_ka_end:\ns_endpgm")
    fb0 = Block(); fb0.name = "fb0"
    fb0.e(f"L_fallback:\ns_mov_b32 s{sFB}, 1\ns_mov_b32 s{sKo}, s{sW8k}\ns_mov_b32 s{sVo}, s{sW8k}\ns_mov_b32 s{sCnt}, 16")
    for t in range(4): fb0.e(f"v_mov_b32 v{vNM+4*t}, 0xff800000")
    fb0.e("s_waitcnt vmcnt(0) lgkmcnt(0)")
    fb1 = Block(); fb1.name = "fb1"
    fb1.e("L_fb_loop:\ns_barrier")
    emit_dma(fb1, dma_K(0, 0, "DK")); emit_dma(fb1, dma_K(1, 0, "DK"))
    fb1.e("s_waitcnt vmcnt(0)\ns_barrier")
    for g in range(8):
        fb1.ext(kreads(g, 0, 0, "K0")); fb1.e("s_waitcnt lgkmcnt(0)")
        for t in range(4): fb1.ext(qk_chain(t, 0, "0"))
        for t in range(4):
            s0 = vS + 4 * t
            fb1.e(f"v_max3_f32 v{vNM+4*t}, v{vNM+4*t}, v{s0}, v{s0+1}\nv_max3_f32 v{vNM+4*t}, v{vNM+4*t}, v{s0+2}, v{s0+3}")
    fb1.e(f"s_sub_u32 s{sCnt}, s{sCnt}, 1\ns_cmp_lg_u32 s{sCnt}, 0\ns_cbranch_scc1 L_fb_loop")
    fb2 = Block(); fb2.name = "fb2"
    rowmax_finish(fb2, lambda t: vNM + 4 * t)
    fb2.e(f"s_mov_b32 s{sKo}, s{sW8k}\ns_barrier")
    for u in range(4): emit_dma(fb2, dma_K(u & 1, u >> 1, "DK"))
    emit_dma(fb2, dma_V(0, 0, "DV")); emit_dma(fb2, dma_V(1, 0, "DV"))
    fb2.e("s_waitcnt vmcnt(0)\ns_barrier")
    fb2.ext(kreads(0, 0, 0, "K0")); fb2.e("s_waitcnt lgkmcnt(0)\ns_branch L_att_start")
    att = [l0, first, l1, l1b, even, l2, odd, l3, l1b, even, l2, odd, l3, l1b, even, l2, l4, last, f]
    main = [b, pre, c, pre2, proj, e] + att
    vb = []
    finalize([main + [z], main + [fb0, fb1, fb1, fb2] + att + [z]], vb)
    for x in vb:
        if x[0].startswith("att") or x[0] == "proj": print("nop:", x, file=sys.stderr)
    layout = [b, pre, c, pre2, proj, e, l0, first, l1, l1b, even, l2, odd, l3, l4, last, f, z, fb0, fb1, fb2]
    return kernel_head("att_kernel") + "\n".join(x.text() for x in layout) + "\n" + kernel_desc("att_kernel", 512, 256)

def gen_KB():
    b = Block(); b.name = "kb"
    D = 6
    NS, NG = 32, 14
    sWO, sW2, sBB, sX, sOut = 8, 12, 16, 20, 24
    sWv, sT, sT2, sM, sAo, sBq = 40, 41, 42, 43, 44, 48
    vL16, vDA, vRA, vT = 1, 2, 6, 10
    ACC = lambda which, v, t: 128 + which * 64 + (v * 4 + t) * 4
    BF = lambda slot, t: slot * 16 + t * 4
    AF = lambda fb, v: 128 + fb * 16 + v * 4
    b.e("s_cmp_ge_u32 s2, 256\ns_cbranch_scc1 L_kb_end")
    b.e("s_load_dwordx2 s[28:29], s[0:1], 0\ns_load_dwordx2 s[30:31], s[0:1], 32\ns_load_dwordx4 s[32:35], s[0:1], 64\ns_load_dwordx2 s[36:37], s[0:1], 88")
    b.e(f"v_lshrrev_b32 v{vT}, 6, v0\nv_and_b32 v0, 63, v0\nv_readfirstlane_b32 s{sWv}, v{vT}")
    b.e(f"s_and_b32 s52, s2, 7\ns_lshl_b32 s52, s52, 2\ns_lshr_b32 s{sT}, s2, 3\ns_and_b32 s{sT}, s{sT}, 3\ns_add_u32 s52, s52, s{sT}\ns_lshr_b32 s53, s2, 5")
    b.e(f"v_lshlrev_b32 v{vL16}, 4, v0")
    b.e(f"v_lshrrev_b32 v{vT}, 4, v0\nv_lshlrev_b32 v{vT}, 1, v{vT}\nv_and_b32 v{vT+1}, 7, v0\nv_xor_b32 v{vT}, v{vT}, v{vT+1}\nv_lshlrev_b32 v{vT}, 4, v{vT}")
    b.e(f"v_lshrrev_b32 v{vT+1}, 3, v0\nv_lshl_add_u32 v{vDA}, v{vT+1}, 10, v{vT}")
    for p in range(1, 4): b.e(f"v_add_u32 v{vDA+p}, {p*7168}, v{vDA}")
    b.e(f"s_mul_i32 s{sM}, s{sWv}, {D*4096}")
    b.e(f"s_mul_i32 s{sT}, s52, {4*BSTRIDE}")
    for t in range(4): b.e(f"s_add_u32 s{sBq+t}, s{sT}, {t*BSTRIDE}")
    b.e("s_waitcnt lgkmcnt(0)")
    b.e(f"s_lshl_b32 s{sT}, s53, 7\ns_add_u32 s30, s30, s{sT}\ns_addc_u32 s31, s31, 0\ns_add_u32 s32, s32, s{sT}\ns_addc_u32 s33, s33, 0")
    b.e(f"s_sub_u32 s{sT2}, {4096*1024}, s{sT}"); srd(b, sWO, 30, f"s{sT2}")
    b.e(f"s_sub_u32 s{sT2}, {1792*1024}, s{sT}"); srd(b, sW2, 32, f"s{sT2}")
    b.e(f"s_add_u32 s36, s36, {WS_B}\ns_addc_u32 s37, s37, 0"); srd(b, sBB, 36, 128 * BSTRIDE)
    srd(b, sX, 28, 0x200000); srd(b, sOut, 34, 0x200000)
    b.e(f"s_lshl_b32 s54, s{sWv}, 20\ns_mul_i32 s55, s{sWv}, {14*32768}")
    b.e(f"s_lshl_b32 s{sT}, s{sWv}, 15\nv_add_u32 v{vT+6}, s{sT}, v{vL16}")
    b.e(f"s_mul_i32 s{sT}, s{sWv}, {14*1024}\ns_add_u32 s{sT}, s{sT}, {128*1024}\nv_add_u32 v{vT+7}, s{sT}, v{vL16}")
    vBs, vBg = vT + 6, vT + 7
    steps = [(1, k) for k in range(NG)] + [(0, k) for k in range(NS)]
    def loads(n):
        which, k = steps[n]; slot = n % D
        r = [Ins(f"s_add_u32 m0, s{sM}, {slot*4096}"), Ins(f"s_add_u32 s{sAo}, s{55 if which else 54}, {k*32768}")]
        sr = sW2 if which else sWO
        r += [Ins(f"buffer_load_dwordx4 v{vDA+p}, s[{sr}:{sr+3}], s{sAo} offen offset:{p*1024} lds", tag=f"A{n}") for p in range(4)]
        vb = vBg if which else vBs
        r += [Ins(f"buffer_load_dwordx4 {A(BF(slot,t),4)}, v{vb}, s[{sBB}:{sBB+3}], s{sBq+t} offen offset:{(k&3)*1024}", tag=f"B{n}") for t in range(4)]
        if k & 3 == 3: r.append(Ins(f"v_add_u32 v{vb}, 0x1000, v{vb}"))
        return r
    def areads(n):
        slot = n % D
        return [Ins(f"ds_read_b64_tr_b16 {A(AF(n&1,v)+2*kh,2)}, v{vRA+v} offset:{slot*4096+kh*2048}", tag=f"R{n}") for v in range(4) for kh in range(2)]
    for n in range(D - 1): b.ext(loads(n))
    b.e(f"v_lshrrev_b32 v{vT}, 2, v0\nv_lshlrev_b32 v{vT+1}, 7, v{vT}\nv_and_b32 v{vT+2}, 3, v0\nv_lshl_add_u32 v{vT+1}, v{vT+2}, 3, v{vT+1}\nv_add_u32 v{vT+1}, s{sM}, v{vT+1}\nv_bfe_u32 v{vT}, v{vT}, 1, 2")
    for v in range(4): b.e(f"v_xor_b32 v{vT+2}, {v}, v{vT}\nv_lshl_add_u32 v{vRA+v}, v{vT+2}, 5, v{vT+1}")
    b.wait(vm="A0"); b.ext(areads(0))
    N = len(steps)
    for n in range(N):
        which, k = steps[n]
        tl = TL()
        for v in range(4):
            for t in (range(4) if v % 2 == 0 else range(3, -1, -1)):
                d = V(ACC(which, v, t), 4)
                tl.add(MF(d, A(AF(n & 1, v), 4), A(BF(n % D, t), 4), "0" if k == 0 else d))
        b.wait(lgkm=f"R{n}", vm=(f"A{n+1}" if n + 1 < N else f"B{n}"))
        if n + D - 1 < N: b.ext(loads(n + D - 1))
        if n + 1 < N: tl.vec_in(0, 7, areads(n + 1))
        b.ext(tl.emit(0, 16, "x").ins)
    b.e("s_barrier")
    b.e(f"s_lshl_b32 s{sT}, s{sWv}, 15\nv_add_u32 v{vT}, s{sT}, v{vL16}")
    for which in range(2):
        for v in range(4):
            for t in range(4):
                b.e(f"ds_write_b128 v{vT}, {V(ACC(which,v,t),4)} offset:{(t*8+which*4+v)*1024}")
    b.e(f"v_and_b32 v{vT+1}, 15, v0\nv_lshrrev_b32 v{vT+2}, 4, v0\nv_lshlrev_b32 v{vT+1}, 10, v{vT+1}\nv_lshl_add_u32 v{vT+1}, v{vT+2}, 3, v{vT+1}")
    b.e(f"s_lshl_b32 s{sT}, s52, 2\ns_add_u32 s{sT}, s{sT}, s{sWv}\ns_lshl_b32 s{sT}, s{sT}, 14\ns_lshl_b32 s{sT2}, s53, 7\ns_add_u32 s{sT}, s{sT}, s{sT2}")
    for v in range(4): b.e(f"buffer_load_dwordx2 {V(24+2*v,2)}, v{vT+1}, s[{sX}:{sX+3}], s{sT} offen offset:{32*v}", tag="XL")
    b.e(f"s_lshl_b32 s{sT2}, s{sWv}, 13\nv_add_u32 v{vT}, s{sT2}, v{vL16}\nv_add_u32 v{vT+2}, 0x10000, v{vT}")
    b.e("s_waitcnt lgkmcnt(0)\ns_barrier")
    for w in range(4):
        for j in range(8):
            b.e(f"ds_read_b128 {V(128+(w*8+j)*4,4)}, v{vT + (2 if w >= 2 else 0)} offset:{(w&1)*32768 + j*1024}")
        if w & 1: b.e("s_waitcnt lgkmcnt(0)")
    for r in range(32): b.e(f"v_add_f32 v{128+r}, v{128+r}, v{160+r}\nv_add_f32 v{192+r}, v{192+r}, v{224+r}")
    for r in range(32): b.e(f"v_add_f32 v{128+r}, v{128+r}, v{192+r}")
    b.e(f"s_mov_b32 s{sT2}, {f32(-LOG2E)}")
    for r in range(16): b.e(f"v_mul_f32 v{160+r}, s{sT2}, v{144+r}")
    for r in range(16): b.e(f"v_exp_f32 v{160+r}, v{160+r}")
    for r in range(16): b.e(f"v_mul_f32 v{128+r}, v{128+r}, v{144+r}\nv_add_f32 v{160+r}, 1.0, v{160+r}")
    for r in range(16): b.e(f"v_rcp_f32 v{160+r}, v{160+r}")
    b.wait(vm="XL")
    for r in range(8): b.e(f"v_lshlrev_b32 v{192+2*r}, 16, v{24+r}\nv_and_b32 v{193+2*r}, 0xffff0000, v{24+r}")
    for r in range(16): b.e(f"v_fmac_f32 v{192+r}, v{128+r}, v{160+r}")
    for r in range(8): b.e(f"v_cvt_pk_bf16_f32 v{24+r}, v{192+2*r}, v{193+2*r}")
    for v in range(4): b.e(f"buffer_store_dwordx2 {V(24+2*v,2)}, v{vT+1}, s[{sOut}:{sOut+3}], s{sT} offen offset:{32*v}")
    b.e("L_kb_end:\ns_endpgm")
    finalize([[b]])
    return kernel_head("out_kernel") + b.text() + "\n" + kernel_desc("out_kernel", 416, 256)

def build():
    head = open("cdna_kernels/" + NAME + ".s.ref").read().split("; Override launch")[0]
    s = head
    s += "; @launch kernel=ln_kernel grid=(128,1,1) block=(256,1,1) lds=2048\n"
    s += "; @launch kernel=att_kernel grid=(256,1,1) block=(256,1,1) lds=135168\n"
    s += "; @launch kernel=out_kernel grid=(256,1,1) block=(256,1,1) lds=131072\n"
    s += '.amdgcn_target "amdgcn-amd-amdhsa--gfx950"\n'
    s += gen_ln() + gen_KA() + gen_KB()
    return s

if __name__ == "__main__":
    out = sys.argv[1] if len(sys.argv) > 1 else "cdna_kernels/" + NAME + ".s"
    for a in sys.argv[2:]:
        k, v = a.split("="); OPT[k] = eval(v)
    open(out, "w").write(build())
```

```python
import sys, math, struct
sys.path.insert(0, "gen")
from asmgen import *

NAME = "recurrent_scan__mha_block_cached__glu_gated_swiglu__prompt"
KN = NAME + "_kernel"
WS_ST, WS_FL, WS_B = 0, 0x8000, 0x200000
BSTRIDE = 184 * 1024
LOG2E = 1.4426950408889634
OOB = 0x7ffffff0
def f32(x): return "0x%08x" % struct.unpack("<I", struct.pack("<f", x))[0]
OPT = dict(stamp=False, early=4, pollstep=10)

L_K, L_SP, L_V = 0, 65536, 98304
sX, sWQ, sW1, sW3, sK, sV, sB, sH, sWS, sDBG, sWO, sW2, sOut = range(4, 56, 4)
sHead, sQb, sWave, sW8k, sW4k, sXb, sKo, sVo, sCnt, sT, sT2, sWQo, sW13o, sBo, sFB, sW16k = range(56, 72)
sRt, sCt = sHead, sQb
vL16, vKA, vVA, vDK, vDV, vZ, vT = 1, 2, 6, 14, 18, 20, 24
vS, vNM = 32, 48
def Q(t, ds): return 64 + (t * 4 + ds) * 4
def P(pb, kk, t): return 128 + pb * 64 + (t * 4 + kk) * 4
def O(dt, t): return (dt * 4 + t) * 4
def VF(b, kk): return 128 + b * 16 + kk * 4
aL, aONES = 192, 208
def KF(b, ds): return 212 + b * 16 + ds * 4
aCHK = 244
vWQA, vW13A, vDQ, vD13, vXA, vDX = 24, 28, 32, 36, 40, 44

def SR(s): return f"s[{s}:{s+3}]"
def MF(d, a, bb, c): return Ins(f"v_mfma_f32_16x16x32_bf16 {d}, {a}, {bb}, {c}")
def II(txt, tag=None): return [Ins(x, tag=tag) for x in txt.split("\n") if x.strip()]
def srd_fin(b, d, nrec):
    b.e(f"s_and_b32 s{d+1}, s{d+1}, 0xffff\ns_mov_b32 s{d+2}, {nrec}\ns_mov_b32 s{d+3}, 0x20000")
def ptr_add(b, d, off): b.e(f"s_add_u32 s{d}, s{d}, {off}\ns_addc_u32 s{d+1}, s{d+1}, 0")

def stamp_ins(i):
    if not OPT["stamp"] or i is None: return []
    return II(f"s_waitcnt lgkmcnt(0)\ns_memtime s[96:97]\ns_memrealtime s[98:99]\ns_waitcnt lgkmcnt(0)\ns_mov_b32 s{72+2*i}, s96\ns_mov_b32 s{73+2*i}, s98")
STAMPS = {}
def stamp(b, name): b.ext(stamp_ins(STAMPS.get(name)))

class Gap:
    def __init__(self, m): self.m = m; self.scal = []; self.vec = []; self.load = 0
def cost_of(ins): return 2 if ins.kind == "trans" else (0 if ins.kind in ("salu", "wait", "sctl", "label") else 1)
class TL:
    def __init__(self): self.g = []
    def add(self, m): self.g.append(Gap(m)); return len(self.g) - 1
    def vec_at(self, i, ins): self.g[i].vec.append(ins); self.g[i].load += cost_of(ins)
    def vec_in(self, lo, hi, items):
        loads = {i: self.g[i].load for i in range(lo, hi + 1)}
        cand = []
        for _ in items:
            i = min(loads, key=lambda k: (loads[k], k)); cand.append(i); loads[i] += 1
        cand.sort()
        for i, it in zip(cand, items): self.vec_at(i, it)
        return cand
    def scal_at(self, i, ins, later=True):
        while self.g[i].scal: i += 1 if later else -1
        self.g[i].scal.append(ins); return i
    def spread(self, lo, hi, groups):
        n = sum(len(g[1]) for g in groups); k = 0; prev = lo - 3
        for grp in groups:
            sc, ve, post = grp
            for x in ve: x.grp = grp; x.role = "vec"
            first = True
            for it in ve:
                tgt = lo + (hi - lo) * k // max(n - 1, 1); k += 1
                mn = prev + 1
                if first:
                    i = max(prev + 1, tgt - len(sc) - 1)
                    for x in sc: i = self.scal_at(i, x) + 1
                    mn = max(mn, i); first = False
                cands = [j for j in range(max(mn, tgt - 1), max(mn, tgt - 1) + 4) if j < len(self.g)]
                j = min(cands, key=lambda z: (self.g[z].load, abs(z - tgt)))
                self.vec_at(j, it); prev = j
            for x in post: prev = self.scal_at(prev + 1, x)
        return prev
    def stream(self, lo, hi, items, cap=2):
        i = lo; items = list(items)
        while items and i <= hi:
            it = items[0]; c = cost_of(it)
            if c == 0:
                i += 1
                while i <= hi and self.g[i].scal: i += 1
                if i > hi: break
                self.g[i].scal.append(it); items.pop(0); continue
            if self.g[i].load + c <= cap: self.vec_at(i, it); items.pop(0)
            else: i += 1
        return items
    def emit(self, lo, hi, name):
        b = Block(); b.name = name
        for gp in self.g[lo:hi]:
            if gp.m is not None: b.add(gp.m)
            b.ext(gp.scal); b.ext(gp.vec)
        return b

SLOW = []
def poll_check(name, vreg, load_txt, ready_cmp):
    inl = II(ready_cmp) + II(f"s_cbranch_scc0 L_spin_{name}\nL_back_{name}:")
    sl = Block(); sl.name = "spin" + name
    sl.e(f"L_spin_{name}:\ns_mov_b32 s3, 0x40000\nL_spin2_{name}:\ns_sleep 2\n{load_txt}\ns_waitcnt vmcnt(0)\ns_sub_u32 s3, s3, 1\ns_cmp_eq_u32 s3, 0\ns_cbranch_scc1 L_back_{name}")
    sl.e(ready_cmp); sl.e(f"s_cbranch_scc0 L_spin2_{name}\ns_branch L_back_{name}")
    SLOW.append(sl)
    return inl

def dma_K(half, buf, tag):
    return (II(f"s_add_u32 m0, s{sW8k}, {L_K + buf*32768 + half*4096}"),
            [Ins(f"buffer_load_dwordx4 v{vDK+p}, {SR(sK)}, s{sKo} offen offset:{p*1024} lds", tag=tag) for p in range(4)],
            II(f"s_add_u32 s{sKo}, s{sKo}, {4096 if half == 0 else 28672}"))
def dma_V(half, buf, tag):
    return (II(f"s_add_u32 m0, s{sW8k}, {L_V + buf*32768 + half*4096}"),
            [Ins(f"buffer_load_dwordx4 v{vDV+(p&1)}, {SR(sV)}, s{sVo} offen offset:{p*1024} lds", tag=tag) for p in range(4)],
            II(f"s_add_u32 s{sVo}, s{sVo}, {4096 if half == 0 else 28672}"))
def emit_grp(b, d): b.ext(d[0]); b.ext(d[1]); b.ext(d[2])
def check_groups(trace):
    last = {}; cnt = {}
    for x in trace:
        g = getattr(x, "grp", None)
        if g is not None and x.role == "vec":
            for sc in g[0]:
                for r in sc.writes & x.reads: assert last.get(r) is sc, ("group scalar clobbered", x.text, last.get(r))
            for sc in g[2]:
                for r in sc.writes & x.reads:
                    key = (id(g), r)
                    if x is g[1][0]: cnt[key] = last.get(r)
                    assert last.get(r) is cnt[key] and last.get(r) is not sc, ("post scalar order", x.text)
        for r in x.writes:
            if r[0] == "s" or r == "m0": last[r] = x
def kreads(g, buf, fb, tag):
    return [Ins(f"ds_read_b128 {A(KF(fb,ds),4)}, v{vKA+ds} offset:{buf*32768+g*4096}", tag=tag) for ds in range(4)]
def vreads(dt, buf, fb, tag):
    return [Ins(f"ds_read_b64_tr_b16 {A(VF(fb,kk)+2*kh,2)}, v{vVA+dt} offset:{buf*32768+(32*kk+16*kh)*256}", tag=tag) for kk in range(4) for kh in range(2)]
def snake(t): return range(4) if t % 2 == 0 else range(3, -1, -1)
def qk_chain(t, fb, c0):
    d = V(vS + 4 * t, 4)
    return [MF(d, A(KF(fb, ds), 4), V(Q(t, ds), 4), c0 if n == 0 else d) for n, ds in enumerate(snake(t))]
def pv_chain(dt, t, fb, pb):
    d = A(O(dt, t), 4)
    return [MF(d, A(VF(fb, kk), 4), V(P(pb, kk, t), 4), d) for kk in snake(t)]
def rs(t, kk, pb): return MF(A(aL + 4 * t, 4), A(aONES, 4), V(P(pb, kk, t), 4), A(aL + 4 * t, 4))

RING, DB, NG, NS = 8, 8, 14, 32
vDA, vRA, vBg, vBs, vPoll, vPA = 2, 6, 14, 15, 16, 17
sM, sAo, sWOo, sW2o = sW4k, sT2, sWQo, sW13o
sBq = [sXb, sKo, sVo, sW16k]
def tBF(n, t):
    s = n % DB
    if s < 4: return V(64 + s * 16 + t * 4, 4)
    if s < 6: return A(160 + (s - 4) * 16 + t * 4, 4)
    return A(212 + (s - 6) * 16 + t * 4, 4)
def tAF(n, v): return 32 + (n & 1) * 16 + v * 4
def tACC(which, v, t): return which * 64 + (v * 4 + t) * 4
def tstep(n): return (1, n) if n < NG else (0, n - NG)
def tA(n):
    which, k = tstep(n); sr = sW2 if which else sWO
    return (II(f"s_add_u32 m0, s{sM}, {(n % RING)*4096}\ns_add_u32 s{sAo}, s{sW2o if which else sWOo}, {k*32768}"),
            [Ins(f"buffer_load_dwordx4 v{vDA+p}, {SR(sr)}, s{sAo} offen offset:{p*1024} lds", tag=f"A{n}") for p in range(4)], [])
def tB(n):
    which, k = tstep(n); vb = vBg if which else vBs
    r = [Ins(f"buffer_load_dwordx4 {tBF(n,t)}, v{vb}, {SR(sB)}, s{sBq[t]} offen offset:{(k&3)*1024} sc1", tag=f"B{n}") for t in range(4)]
    if k & 3 == 3: r.append(Ins(f"v_add_u32 v{vb}, 0x1000, v{vb}"))
    return ([], r, [])
def tR(n):
    return [Ins(f"ds_read_b64_tr_b16 {V(tAF(n,v)+2*kh,2)}, v{vRA+4*kh+v} offset:{(n % RING)*4096}", tag=f"R{n}") for v in range(4) for kh in range(2)]

def gen_attention():
    tl = TL()
    phases = [-1, 0, 1, 2, 3, 4, 15]
    start = {}; stepb = {}
    for p in phases:
        start[p] = len(tl.g)
        if p == 15:
            for t in range(4):
                for kk in range(4): tl.add(rs(t, kk, 1))
        for s in range(8):
            stepb[p, s] = len(tl.g)
            if p != 15:
                for t in range(4):
                    for m in qk_chain(t, s & 1, V(vNM + 4 * t, 4)): tl.add(m)
            if p == -1:
                tl.add(Ins(f"v_mfma_f32_32x32x16_bf16 {A(16*s,16)}, {V(vZ,4)}, {V(vZ,4)}, 0"))
                if s == 0: tl.add(Ins(f"v_mfma_f32_32x32x16_bf16 {A(aL,16)}, {V(vZ,4)}, {V(vZ,4)}, 0"))
            else:
                for t in range(4):
                    for m in pv_chain(s, t, s & 1, p & 1): tl.add(m)
                if p != 15:
                    for kk in (2 * (s & 1), 2 * (s & 1) + 1): tl.add(rs(s >> 1, kk, p & 1))
    end = len(tl.g)
    nxt = {p: (start[phases[i + 1]] if i + 1 < len(phases) else end) for i, p in enumerate(phases)}
    for p in phases:
        if p == 15: continue
        pb = (p + 1) & 1
        for s in range(8):
            b0 = stepb[p, s]; nb = stepb[p, s + 1] if s < 7 else nxt[p]
            for t in range(4):
                sr = vS + 4 * t
                ex = [Ins(f"v_exp_f32 v{sr+r}, v{sr+r}") for r in range(4)]
                pd = P(pb, s >> 1, t) + 2 * (s & 1)
                cv = [Ins(f"v_cvt_pk_bf16_f32 v{pd+h}, v{sr+2*h}, v{sr+2*h+1}") for h in range(2)]
                if p >= 0:
                    pe = [b0 + 8 * t + 8 + 2 * r for r in range(4)]; pc = [b0 + 8 * t + 11, b0 + 8 * t + 15]
                else:
                    pe = [b0 + 4 * t + 8 + r for r in range(4)]; pc = [b0 + 4 * t + 10, b0 + 4 * t + 12]
                    if s == 7:
                        pe = [min(x, nb - 1) for x in pe]; pc = [min(x, nb - 1) for x in pc]
                        if t == 3: pe[1:] = [nb + 0, nb + 2, nb + 4]; pc = [nb + 1, nb + 5]
                seq = sorted([(pe[0],0,ex[0]),(pe[1],1,ex[1]),(pc[0],3 if p < 0 else 2,cv[0]),(pe[2],2.5,ex[2]),(pe[3],4,ex[3]),(pc[1],5,cv[1])], key=lambda z: (z[0], z[1]))
                for pos, _, ins in seq: tl.vec_at(pos, ins)
    for p in phases:
        if 0 <= p < 15:
            b0 = stepb[p, 0]
            grps = [dma_K(0, p & 1, "DK"), dma_K(1, p & 1, "DK"), dma_V(0, (p + 1) & 1, "DV"), dma_V(1, (p + 1) & 1, "DV")]
            for s in range(8):
                nb = stepb[p, s + 1] if s < 7 else nxt[p]
                tl.scal_at(stepb[p, s] + 15, W(lgkm=f"V{s}"), later=False)
                tl.scal_at(nb - 1, W(lgkm=f"K{(s+1)&7}"), later=False)
            tl.spread(b0 + 3, b0 + OPT.get("dmaspan", 120), grps)
        for s in range(8):
            b0 = stepb[p, s]; nb = stepb[p, s + 1] if s < 7 else nxt[p]
            ns, npz = (s + 1) & 7, (p + 1 if s == 7 else p)
            if p == 15:
                if s == 0: tl.scal_at(b0 - 1, W(lgkm="V0"), later=False)
                if s < 7:
                    r = vreads(ns, 1, ns & 1, f"V{ns}")
                    for k, x in enumerate(r): tl.vec_at(b0 + 2 * (k // 2), x)
                    tl.scal_at(nb - 1, W(lgkm=f"V{ns}"), later=False)
                continue
            if s == 7:
                i = tl.scal_at(b0 + 4, W(lgkm=["V7", "K7"], vm=["DK", "DV"]))
                tl.scal_at(i + 1, Ins("s_barrier"))
            if p >= 0:
                tl.vec_in(b0 + 6, b0 + 22, kreads(ns, (npz + 1) & 1, ns & 1, f"K{ns}"))
                tl.vec_in(b0 + 9, b0 + 33, vreads(ns, npz & 1, ns & 1, f"V{ns}"))
            else:
                tl.vec_in(b0 + 6, b0 + 10, kreads(ns, (npz + 1) & 1, ns & 1, f"K{ns}"))
                if s == 7: tl.vec_in(b0 + 10, nb - 1, vreads(0, 0, 0, "V0"))
                tl.scal_at(nb - 1, W(lgkm=f"K{ns}"), later=False)
    p0 = start[15]
    T = vT
    su = II(f"""v_and_b32 v{T}, 63, v0
v_lshrrev_b32 v{T+1}, 4, v{T}
v_lshlrev_b32 v{T+1}, 1, v{T+1}
v_and_b32 v{T+2}, 7, v{T}
v_xor_b32 v{T+1}, v{T+1}, v{T+2}
v_lshlrev_b32 v{T+1}, 4, v{T+1}
v_lshrrev_b32 v{T+2}, 3, v{T}
v_lshl_add_u32 v{vDA}, v{T+2}, 10, v{T+1}
v_add_u32 v{vDA+1}, 7168, v{vDA}
v_add_u32 v{vDA+2}, {2*7168}, v{vDA}
v_add_u32 v{vDA+3}, {3*7168}, v{vDA}
v_add_u32 v{vBg}, s{sT}, v{vL16}
v_add_u32 v{vBs}, s{sM}, v{vL16}""")
    left = tl.stream(p0 + 6, p0 + 15, su); assert not left
    vRL = vNM
    lr = II("\n".join(f"v_accvgpr_read_b32 v{vRL+4+t}, a{aL+4*t}" for t in range(4)) + "\n" + "\n".join(f"v_rcp_f32 v{vRL+t}, v{vRL+4+t}" for t in range(4)))
    left = tl.stream(stepb[15, 0] + 8, stepb[15, 1] + 15, lr); assert not left
    E = OPT["early"]
    ld1 = f"buffer_load_dword v{vPoll}, v{vPA}, {SR(sDBG)}, 0 offen sc1"
    chk1 = poll_check("h", vPoll, ld1, f"v_readfirstlane_b32 s{sT}, v{vPoll}\ns_nop 0\ns_cmp_ge_u32 s{sT}, 32")
    if E:
        tl.spread(stepb[15, 0] + 1, stepb[15, 0] + 16 * E, [tA(n) for n in range(E)])
        g = tl.g[stepb[15, 2] + 9]
        g.vec += [W(vm="C1")] + chk1; g.load += 2
        tl.spread(stepb[15, 2] + 12, stepb[15, 7] + 12, [tB(n) for n in range(E)])
    ep = []
    for i in range(4):
        items = []
        for t in range(4):
            o = 128 + (t * 4 + i) * 4
            ar = [O(2 * i + hf, t) + r for hf in range(2) for r in range(4)]
            tb = vS + 8 * (t & 1)
            items += II("\n".join(f"v_accvgpr_read_b32 v{tb+k}, a{ar[k]}" for k in range(8)))
            items += II("\n".join(f"v_mul_f32 v{tb+k}, v{tb+k}, v{vRL+t}" for k in range(8)))
            items += II("\n".join(f"v_cvt_pk_bf16_f32 v{o+k}, v{tb+2*k}, v{tb+2*k+1}" for k in range(4)))
            items += II(f"s_add_u32 s{sCnt}, s{sBo}, {t*BSTRIDE}")
            items += [Ins(f"buffer_store_dwordx4 {V(o,4)}, v{vL16}, {SR(sB)}, s{sCnt} offen offset:{1024*i} sc1", tag="OS")]
        ep.append(items)
    left = []
    for i in range(3):
        left = tl.stream(stepb[15, 2 * i + 2] + 3, (stepb[15, 2 * i + 4] + 2) if i < 2 else end - 1, left + ep[i], cap=OPT.get("epcap", 3))
    left += ep[3]
    blk = {p: tl.emit(start[p], nxt[p], f"att{p}") for p in phases}
    tx = lambda b: [(i.text, str(i.waitfor), i.tag) for i in b.ins]
    assert tx(blk[0]) == tx(blk[2]) == tx(blk[4]) and tx(blk[1]) == tx(blk[3])
    last = blk[15]
    pre = II(f"""s_lshl_b32 s{sM}, s{sWave}, 15
s_lshl_b32 s{sWOo}, s{sWave}, 20
s_mul_i32 s{sW2o}, s{sWave}, {14*32768}
s_mul_i32 s{sBq[0]}, s{sRt}, {4*BSTRIDE}
s_add_u32 s{sBq[1]}, s{sBq[0]}, {BSTRIDE}
s_add_u32 s{sBq[2]}, s{sBq[0]}, {2*BSTRIDE}
s_add_u32 s{sBq[3]}, s{sBq[0]}, {3*BSTRIDE}
s_lshl_b32 s{sT}, s{sHead}, 12
s_add_u32 s{sBo}, s{sBo}, s{sT}
s_lshr_b32 s{sT}, s{sRt}, 2
s_lshl_b32 s{sT}, s{sT}, 4
s_add_u32 s{sT}, s{sT}, 128
v_mov_b32 v{vPA}, s{sT}
s_mul_i32 s{sT}, s{sWave}, {14*1024}
s_add_u32 s{sT}, s{sT}, {128*1024}""") + [Ins(ld1, tag="C1")]
    last.ins = pre + last.ins + left
    if not E: last.ins += [W(vm="C1")] + chk1
    return blk[-1], blk[0], blk[1], last

PARTS = [("G", 0), ("Q", 0), ("G", 1), ("Q", 1), ("G", 2), ("G", 3), ("Q", 2), ("Q", 3)]
SLOT = lambda i: (L_V + 32768, L_SP, L_V)[i % 3]
vNMU, vAQ, vAE, vIR = 32, 36, 40, 44
def XB(c, t, ks): return (c & 1) * 64 + (t * 4 + ks) * 4
def WF(fb, ks): return 212 + fb * 16 + ks * 4
def pacc(kind, u, t):
    if kind == "G": return V(128 + (u & 1) * 64 + ((u >> 1) * 4 + t) * 4, 4)
    ds, hf = u >> 1, u & 1
    return V(Q(t, ds), 4) if hf == 0 else A(128 + (t * 4 + ds) * 4, 4)
def wdma(i):
    kind, c = PARTS[i]; base = SLOT(i); g = []
    if kind == "Q":
        for half in range(2):
            g.append((II(f"s_add_u32 m0, s{sW8k}, {base + half*4096}\ns_add_u32 s{sT}, s{sWQo}, {(c*128+16*half)*8192}"),
                      [Ins(f"buffer_load_dwordx4 v{vDQ+p}, {SR(sWQ)}, s{sT} offen offset:{p*1024} lds", tag=f"DW{i}") for p in range(4)], []))
    else:
        for k, sr in enumerate((sW1, sW3)):
            g.append((II(f"s_add_u32 m0, s{sW4k}, {base + k*16384}\ns_add_u32 s{sT}, s{sW13o}, {c*128*3584}"),
                      [Ins(f"buffer_load_dwordx4 v{vD13+p}, {SR(sr)}, s{sT} offen offset:{p*1024} lds", tag=f"DW{i}") for p in range(4)], []))
    return g
def xdma(c):
    return [(II(f"s_add_u32 m0, s{sW16k}, {t*4096}\ns_add_u32 s{sT}, s{sXb}, {t*16384 + c*256}"),
             [Ins(f"buffer_load_dwordx4 v{vDX+p}, {SR(sX)}, s{sT} offen offset:{p*1024} lds", tag=f"DX{c}") for p in range(4)], []) for t in range(4)]
def xreads(c):
    return [Ins(f"ds_read_b128 {A(XB(c,t,ks),4)}, v{vXA+ks} offset:{t*4096}", tag=f"X{c}") for t in range(4) for ks in range(4)]

def gen_proj():
    base = {"G": L_V, "Q": L_SP}
    def wreads(i, u, tag):
        kind, c = PARTS[i]; off0 = SLOT(i) - base[kind]; assert 0 <= off0 <= 32768
        r = []
        for ks in range(4):
            for kh in range(2):
                if kind == "Q": ad, off = vWQA + (u >> 1), ks * 8192 + kh * 1024 + 8 * (u & 1)
                else: ad, off = vW13A + (u >> 1), ks * 4096 + kh * 512 + 16384 * (u & 1)
                r.append(Ins(f"ds_read_b64_tr_b16 {A(WF(u&1,ks)+2*kh,2)}, v{ad} offset:{off0+off}", tag=tag))
        return r
    first_reads = wreads(0, 0, "W0")
    tl = TL(); tb = {}
    for i, (kind, c) in enumerate(PARTS):
        for u in range(8):
            tb[i, u] = len(tl.g)
            for t in range(4):
                d = pacc(kind, u, t)
                for n, ks in enumerate(snake(t)):
                    tl.add(MF(d, A(WF(u & 1, ks), 4), A(XB(c, t, ks), 4), "0" if (c == 0 and n == 0) else d))
            if u < 2:
                d = A(aL + (8 if kind == "Q" else 0) + 4 * u, 4)
                for ks in range(4): tl.add(MF(d, A(WF(u & 1, ks), 4), A(aONES, 4), "0" if (c == 0 and ks == 0) else d))
    end = len(tl.g)
    tb[8, 0] = end
    nx = lambda i, u: tb[i, u + 1] if u < 7 else tb[i + 1, 0]
    extra_vm = {0: ["ST"], 7: ["DK0"]}
    for i, (kind, c) in enumerate(PARTS):
        for u in range(8):
            b0 = tb[i, u]; nb = nx(i, u)
            if u < 7:
                r = wreads(i, u + 1, f"W{u+1}")
                if i >= 6:
                    for k, x in enumerate(r): tl.vec_at(b0 + 1 + 2 * (k // 2), x)
                else: tl.vec_in(b0 + 1, b0 + 8, r)
                tl.scal_at(nb - 1, W(lgkm=f"W{u+1}"), later=False)
            else:
                vm = ([f"DW{i+1}"] if i < 7 else []) + extra_vm.get(i, [])
                tl.scal_at(b0, W(vm=vm, lgkm={4: ["X3"], 5: ["CS"], 7: ["CS"]}.get(i)))
                tl.scal_at(b0 + 1, Ins("s_barrier"))
                if i < 7:
                    nk = PARTS[i + 1][0]
                    if not 0 <= SLOT(i + 1) - base[nk] <= 32768:
                        dlt = SLOT(i + 1) - base[nk]; base[nk] += dlt
                        ad = vWQA if nk == "Q" else vW13A
                        for k in range(4): tl.vec_at(b0 + k // 2, Ins(f"v_add_u32 v{ad+k}, {dlt & 0xffffffff}, v{ad+k}"))
                    tl.vec_in(b0 + 2, b0 + 9, wreads(i + 1, 0, "W0"))
                    tl.scal_at(nb - 1, W(lgkm="W0"), later=False)
                else:
                    tl.vec_in(b0 + 2, b0 + 9, kreads(0, 0, 0, "K0"))
    P_ = lambda i, f: tb[i, 0] + int(f * (tb[i + 1, 0] - tb[i, 0]))
    def xout(c, lo, hi):
        j = tl.scal_at(lo, W(vm=f"DX{c}"))
        cc = tl.vec_in(j, hi, xreads(c))
        return cc[-1]
    tl.spread(P_(0, 0) + 3, P_(0, .72), xdma(1) + wdma(2))
    tl.spread(P_(1, 0) + 6, P_(1, .3), wdma(3))
    xout(1, P_(1, .55), tb[1, 7] - 2)
    tl.spread(P_(2, 0) + 3, P_(2, .72), xdma(2) + wdma(4))
    tl.spread(P_(3, 0) + 3, P_(3, .25), wdma(5))
    l = xout(2, P_(3, .2), P_(3, .45))
    j = tl.scal_at(l + 6, W(lgkm="X2"))
    tl.spread(j + 3, P_(3, .98), xdma(3))
    tl.spread(P_(4, 0) + 6, P_(4, .3), wdma(6))
    xout(3, P_(4, .55), tb[4, 7] - 8)
    tl.spread(P_(5, 0) + 3, P_(5, .5), wdma(7) + [dma_K(0, 0, "DK0"), dma_K(1, 0, "DK0")])
    tl.spread(P_(6, 0) + 3, P_(6, .3), [dma_V(0, 0, "DV"), dma_V(1, 0, "DV")])
    tl.spread(P_(7, 0) + 3, P_(7, .3), [dma_K(0, 1, "DK"), dma_K(1, 1, "DK")])
    tl.vec_in(tb[0, 7] + 10, tb[0, 7] + 14, [Ins(f"buffer_atomic_add v49, v48, {SR(sDBG)}, 0 offen")])
    ld0 = f"buffer_load_dword v50, v51, {SR(sDBG)}, 0 offen sc1"
    tl.vec_in(P_(4, .4), P_(4, .45), [Ins(ld0, tag="C0")])
    g = tl.g[P_(5, .55)]
    g.vec += [W(vm="C0")] + poll_check("st", 50, ld0, f"v_readfirstlane_b32 s{sT2}, v50\ns_nop 0\ns_cmp_ge_u32 s{sT2}, 32"); g.load += 2
    tl.spread(P_(5, .55) + 2, P_(5, .7), [([], [Ins(f"buffer_load_dwordx2 {V(56+2*t,2)}, v52, {SR(sWS)}, 0 offen offset:{128*t} sc1", tag="SL") for t in range(4)], [])])
    for i, off in ((5, L_K + 32768), (7, L_V + 32768)):
        a0 = aL + (8 if i == 7 else 0)
        tl.vec_in(tb[i, 3], tb[i, 3] + 12, [Ins(f"ds_write_b128 v{54 if i == 5 else 30}, {A(a0+4*u,4)} offset:{64*u}", tag="CS") for u in range(2)])
    it = [W(vm="SL")]
    for t in range(4): it += II(f"v_rsq_f32 v{vAQ+t}, v{57+2*t}")
    for t in range(4): it += II(f"v_sub_f32 v{vNMU+t}, 0, v{56+2*t}\nv_mov_b32 v{vIR+t}, v{57+2*t}")
    for t in range(4): it += II(f"v_mul_f32 v{vAE+t}, {f32(-LOG2E)}, v{vAQ+t}\nv_mul_f32 v{vAQ+t}, {f32(LOG2E * 128 ** -0.5)}, v{vAQ+t}")
    for v in range(4): it += II(f"v_xor_b32 v{28+v}, {128*v}, v54")
    def csread(v): return [Ins(f"ds_read_b128 {V(48+8*(v&1)+4*m,4)}, v{28+v} offset:{64*m}", tag=f"CG{v}") for m in range(2)]
    it += csread(0)
    for v in range(4):
        if v < 3: it += csread(v + 1)
        it += [W(lgkm=f"CG{v}")]
        for m in range(2):
            for t in range(4):
                d = 128 + m * 64 + (v * 4 + t) * 4
                for r in range(4): it += II(f"v_fmac_f32 v{d+r}, v{48+8*(v&1)+4*m+r}, v{vNMU+t}")
    mv30 = Ins(f"v_add_u32 v30, {L_V - L_K}, v28"); it.append(mv30)
    it += II(f"s_lshl_b32 s{sCnt}, s{sHead}, 11\ns_add_u32 s{sCnt}, s{sCnt}, {128*1024}\ns_add_u32 s{sCnt}, s{sCnt}, s{sBo}")
    it += II(f"s_and_b32 s{sT2}, s{sWave}, 2\ns_lshl_b32 s{sT2}, s{sT2}, 9\nv_add_u32 v28, s{sT2}, v{vL16}\nv_xor_b32 v29, 0x400, v28")
    for t in range(4):
        for i in range(2):
            gr = [128 + ((2 * i + hf) * 4 + t) * 4 + r for hf in range(2) for r in range(4)]
            ur = [x + 64 for x in gr]; T = 48 + 8 * i
            for k in range(8): it += II(f"v_mul_f32 v{T+k}, v{vAE+t}, v{gr[k]}")
            for k in range(8): it += II(f"v_exp_f32 v{T+k}, v{T+k}")
            for k in range(8): it += II(f"v_mul_f32 v{ur[k]}, v{ur[k]}, v{gr[k]}")
            for k in range(8): it += II(f"v_fma_f32 v{T+k}, v{T+k}, v{vIR+t}, v{vIR+t}")
            for k in range(8): it += II(f"v_rcp_f32 v{T+k}, v{T+k}")
            for k in range(8): it += II(f"v_mul_f32 v{T+k}, v{T+k}, v{ur[k]}")
            for k in range(4): it += II(f"v_cvt_pk_bf16_f32 v{gr[0]+k}, v{T+2*k}, v{T+2*k+1}")
            it += II(f"buffer_store_dwordx4 {V(gr[0],4)}, v{28+i}, {SR(sH)}, s{sCnt} offen sc1")
        if t < 3: it += II(f"s_add_u32 s{sCnt}, s{sCnt}, {BSTRIDE}")
    lastcs = [x for x in it if x.tag == "CG3"][-1]
    left = tl.stream(tb[6, 0] + 4, end - 1, it)
    pos = [k for k, gp in enumerate(tl.g) if any(x is lastcs for x in gp.vec)]
    assert pos and pos[0] < tb[6, 6], (pos, tb[6, 6])
    pos = [k for k, gp in enumerate(tl.g) if any(x is mv30 for x in gp.vec)]
    assert pos and pos[0] < tb[7, 3], (pos, tb[7, 3])
    for nm, i in (("p2", 2), ("p4", 4), ("p6", 6)):
        tl.g[tb[i, 0]].scal = stamp_ins(STAMPS.get(nm)) + tl.g[tb[i, 0]].scal
    body = tl.emit(0, end, "proj")
    print("h epilogue leftover", len(left), "of", len(it), file=sys.stderr)
    return first_reads, body, left

def gen_kernel():
    b = Block(); b.name = "setup"
    b.e(f"s_cmp_ge_u32 s2, 256\ns_cbranch_scc1 L_end\ns_mov_b32 s{sFB}, 0")
    if OPT["stamp"]:
        for i in range(20): b.e(f"s_mov_b32 s{72+i}, 0")
        stamp(b, "start")
    b2 = Block(); b2.name = "setup1"; b_ = b; b = b2
    b.e("L_restart:")
    for sr, off in ((sX, 0), (sW1, 48), (sW3, 56), (sWQ, 24), (sK, 8), (sV, 16), (sB, 88), (sH, 88), (sWS, 88), (sDBG, 80), (sWO, 32), (sW2, 64), (sOut, 72)):
        b.e(f"s_load_dwordx2 s[{sr}:{sr+1}], s[0:1], {off}")
    T0, T1, T2, T3, T4 = 56, 57, 58, 59, 60
    vl, vc, vg, vi2, vi3 = 61, 62, 63, 22, 23
    b.e(f"v_lshrrev_b32 v{T0}, 6, v0\nv_and_b32 v{vl}, 63, v0\nv_readfirstlane_b32 s{sWave}, v{T0}")
    b.e(f"s_and_b32 s{sHead}, s2, 7\ns_lshl_b32 s{sHead}, s{sHead}, 2\ns_lshr_b32 s{sT}, s2, 3\ns_and_b32 s{sT}, s{sT}, 3\ns_add_u32 s{sHead}, s{sHead}, s{sT}")
    b.e(f"s_lshr_b32 s{sQb}, s2, 5")
    b.e(f"s_lshl_b32 s{sW8k}, s{sWave}, 13\ns_lshl_b32 s{sW4k}, s{sWave}, 12\ns_lshl_b32 s{sW16k}, s{sWave}, 14")
    b.e(f"s_lshl_b32 s{sT}, s{sQb}, 4\ns_lshl_b32 s{sT2}, s{sWave}, 2\ns_add_u32 s{sT}, s{sT}, s{sT2}")
    b.e(f"s_lshl_b32 s{sXb}, s{sT}, 14\ns_mul_i32 s{sBo}, s{sT}, {BSTRIDE}")
    b.e(f"s_lshl_b32 s{sWQo}, s{sWave}, 18\ns_mul_i32 s{sW13o}, s{sWave}, {32*3584}")
    b.e(f"s_mov_b32 s{sKo}, s{sW8k}\ns_mov_b32 s{sVo}, s{sW8k}")
    b.e(f"s_lshl_b32 s{sCnt}, s{sQb}, 7\ns_lshl_b32 s{sT2}, s{sHead}, 2\ns_add_u32 s{sCnt}, s{sCnt}, s{sT2}\ns_add_u32 s{sCnt}, s{sCnt}, s{sWave}")
    b.e(f"v_lshlrev_b32 v{vL16}, 4, v{vl}\nv_and_b32 v{vc}, 15, v0\nv_bfe_u32 v{vg}, v0, 4, 2")
    b.e(f"v_xor_b32 v{T0}, v{vg}, v{vc}\nv_lshlrev_b32 v{T1}, 10, v{vg}")
    for p in range(4): b.e(f"v_xor_b32 v{T2}, {4*p}, v{T0}\nv_lshl_add_u32 v{T2}, v{T2}, 4, v{T1}\nv_add_u32 v{vDX+p}, {p*3072}, v{T2}")
    b.e(f"v_lshrrev_b32 v{T0}, 3, v{vl}\nv_mul_u32_u24 v{T0}, 3584, v{T0}\nv_and_b32 v{T1}, 7, v0\nv_and_b32 v{T2}, 1, v{vg}\nv_lshlrev_b32 v{T2}, 1, v{T2}\nv_xor_b32 v{T1}, v{T1}, v{T2}")
    for p in range(4): b.e(f"v_xor_b32 v{T2}, {4*(p&1)}, v{T1}\nv_lshl_add_u32 v{T2}, v{T2}, 4, v{T0}\nv_add_u32 v{vD13+p}, {p*27648}, v{T2}")
    b.e(f"v_lshlrev_b32 v{T0}, 2, v{vg}\nv_xor_b32 v{T0}, v{vc}, v{T0}\nv_lshlrev_b32 v{T0}, 4, v{T0}\nv_lshl_add_u32 v{vDQ}, v{vg}, 13, v{T0}")
    for p in range(1, 4): b.e(f"v_add_u32 v{vDQ+p}, {p*31744}, v{vDQ}")
    b.e("s_waitcnt lgkmcnt(0)")
    stamp(b, "karg")
    srd_fin(b, sX, 0x200000)
    b.e(f"s_lshl_b32 s{sT}, s{sCnt}, 11")
    for r in range(2): b.e(f"buffer_load_dwordx4 {V(64+4*r,4)}, v{vL16}, {SR(sX)}, s{sT} offen offset:{1024*r}", tag="SR")
    b.e(f"s_lshl_b32 s{sT}, s{sHead}, 7"); ptr_add(b, sW1, f"s{sT}"); ptr_add(b, sW3, f"s{sT}")
    b.e(f"s_sub_u32 s{sT2}, {512*3584}, s{sT}\ns_cmp_lt_u32 s{sHead}, 28\ns_cselect_b32 s{sT2}, s{sT2}, 0")
    srd_fin(b, sW1, f"s{sT2}"); srd_fin(b, sW3, f"s{sT2}")
    xg = xdma(0); wg = wdma(0)
    for g in (xg[0], xg[1], wg[0], xg[2], xg[3], wg[1]): emit_grp(b, g)
    b.e(f"s_lshl_b32 s{sT}, s{sHead}, 8"); ptr_add(b, sWQ, f"s{sT}"); b.e(f"s_sub_u32 s{sT2}, 0x400000, s{sT}")
    srd_fin(b, sWQ, f"s{sT2}")
    for g in wdma(1): emit_grp(b, g)
    c = Block(); c.name = "setup2"
    c.e(f"s_lshl_b32 s{sT}, s{sHead}, 19"); ptr_add(c, sK, f"s{sT}"); ptr_add(c, sV, f"s{sT}")
    srd_fin(c, sK, 0x80000); srd_fin(c, sV, 0x80000)
    ptr_add(c, sB, WS_B); ptr_add(c, sH, WS_B); srd_fin(c, sB, 128 * BSTRIDE)
    c.e(f"s_cmp_lt_u32 s{sHead}, 28\ns_cselect_b32 s{sT2}, {128*BSTRIDE}, 0"); srd_fin(c, sH, f"s{sT2}")
    srd_fin(c, sWS, 0x10000); srd_fin(c, sDBG, 256); srd_fin(c, sOut, 0x200000)
    c.e(f"s_lshl_b32 s{sT}, s{sCt}, 7"); ptr_add(c, sWO, f"s{sT}"); ptr_add(c, sW2, f"s{sT}")
    c.e(f"s_sub_u32 s{sT2}, {4096*1024}, s{sT}"); srd_fin(c, sWO, f"s{sT2}")
    c.e(f"s_sub_u32 s{sT2}, {1792*1024}, s{sT}"); srd_fin(c, sW2, f"s{sT2}")
    c.e(f"v_bfe_u32 v{vi2}, v0, 2, 2\nv_and_b32 v{vi3}, 3, v0")
    c.e(f"v_lshl_add_u32 v{T0}, v{vg}, 3, v{vi2}\nv_lshlrev_b32 v{T1}, 8, v{T0}\nv_lshl_add_u32 v{T1}, v{vi3}, 4, v{T1}\nv_add_u32 v{T1}, {L_SP}, v{T1}\nv_xor_b32 v{T3}, s{sWave}, v{vi2}")
    for i in range(4): c.e(f"v_xor_b32 v{T2}, {i}, v{T3}\nv_lshl_add_u32 v{vWQA+i}, v{T2}, 6, v{T1}")
    c.e(f"v_lshlrev_b32 v{T1}, 7, v{T0}\nv_lshl_add_u32 v{T1}, v{vi3}, 3, v{T1}\nv_add_u32 v{T1}, {L_V}, v{T1}")
    c.e(f"v_and_b32 v{T3}, 1, v{vg}\nv_lshlrev_b32 v{T3}, 1, v{T3}\nv_lshrrev_b32 v{T4}, 1, v{vi2}\nv_or_b32 v{T3}, v{T3}, v{T4}\nv_xor_b32 v{T3}, s{sWave}, v{T3}")
    for i in range(4): c.e(f"v_xor_b32 v{T2}, {i}, v{T3}\nv_lshl_add_u32 v{vW13A+i}, v{T2}, 5, v{T1}")
    c.e(f"v_xor_b32 v{T0}, v{vg}, v{vc}\nv_lshlrev_b32 v{T1}, 8, v{vc}\nv_add_u32 v{T3}, s{sW16k}, v{T1}\ns_lshl_b32 s{sT}, s{sWave}, 2")
    for i in range(4): c.e(f"v_xor_b32 v{T2}, {4*i}, v{T0}\nv_lshl_add_u32 v{vXA+i}, v{T2}, 4, v{T3}\nv_xor_b32 v{T2}, s{sT}, v{T2}\nv_lshl_add_u32 v{vKA+i}, v{T2}, 4, v{T1}")
    c.e(f"v_lshl_add_u32 v{T0}, v{vg}, 2, v{vi2}\nv_lshlrev_b32 v{T1}, 8, v{T0}\nv_lshl_add_u32 v{T1}, v{vi3}, 3, v{T1}\nv_add_u32 v{T1}, {L_V}, v{T1}\nv_and_b32 v{T0}, 7, v{T0}")
    for dt in range(8): c.e(f"v_xor_b32 v{T2}, {dt}, v{T0}\nv_lshl_add_u32 v{vVA+dt}, v{T2}, 5, v{T1}")
    c.e(f"v_lshlrev_b32 v{T1}, 8, v{vg}\nv_xor_b32 v{T0}, v{vg}, v{vc}")
    for p in range(4): c.e(f"v_xor_b32 v{T2}, {4*p}, v{T0}\nv_lshl_add_u32 v{vDK+p}, v{T2}, 4, v{T1}")
    c.e(f"v_lshlrev_b32 v{T0}, 1, v{vg}\nv_xor_b32 v{T0}, v{T0}, v{vc}")
    for p in range(2): c.e(f"v_xor_b32 v{T2}, {8*p}, v{T0}\nv_lshl_add_u32 v{vDV+p}, v{T2}, 4, v{T1}")
    c.e(f"v_mov_b32 v{T0}, 0x3f803f80")
    for i in range(4): c.e(f"v_accvgpr_write_b32 a{aONES+i}, v{T0}")
    c.e(f"s_lshl_b32 s{sT}, s{sQb}, 4\nv_mov_b32 v51, s{sT}\ns_cmp_eq_u32 s{sFB}, 0\ns_cselect_b32 s{sT}, s{sT}, {OOB}")
    c.e(f"v_mov_b32 v{T0}, {OOB}\nv_mov_b32 v{T1}, s{sT}\nv_cmp_eq_u32 vcc, 0, v0\nv_mov_b32 v49, 1\nv_cndmask_b32 v48, v{T0}, v{T1}, vcc")
    c.e(f"s_lshl_b32 s{sT}, s{sQb}, 5\ns_add_u32 s{sT}, s{sT}, s{sHead}\ns_lshl_b32 s{sT}, s{sT}, 2\ns_add_u32 s{sT}, s{sT}, {WS_FL}")
    c.e(f"v_mov_b32 v{T1}, s{sT}\nv_mov_b32 v{T2}, 0\nv_cndmask_b32 v{T1}, v{T0}, v{T1}, vcc")
    c.e(f"buffer_store_dword v{T2}, v{T1}, {SR(sWS)}, 0 offen sc1")
    c.e(f"s_lshr_b32 s{sT}, s{sXb}, 7\nv_lshlrev_b32 v52, 3, v{vc}\nv_add_u32 v52, s{sT}, v52")
    c.e(f"s_lshl_b32 s{sT}, s{sWave}, 7\nv_lshlrev_b32 v54, 4, v{vg}\nv_add_u32 v54, s{sT}, v54\nv_add_u32 v54, {L_K+32768}, v54")
    for i in range(4): c.e(f"v_mov_b32 v{vZ+i}, 0")
    c.wait(vm="SR")
    X = 72
    for r in range(2):
        for k in range(4): c.e(f"v_lshlrev_b32 v{X+8*r+2*k}, 16, v{64+4*r+k}\nv_and_b32 v{X+8*r+2*k+1}, 0xffff0000, v{64+4*r+k}")
    def wred():
        for sh in (8, 4, 2, 1):
            c.e("s_nop 0")
            for r in range(2): c.e(f"v_add_f32_dpp v{90+r}, v{90+r}, v{90+r} row_ror:{sh} row_mask:0xf bank_mask:0xf")
        for sw in ("16", "32"):
            for r in range(2): c.e(f"v_mov_b32 v{92+r}, v{90+r}")
            for r in range(2): c.e(f"v_permlane{sw}_swap_b32 v{92+r}, v{90+r}")
            for r in range(2): c.e(f"v_add_f32 v{90+r}, v{90+r}, v{92+r}")
        for r in range(2): c.e(f"v_mul_f32 v{90+r}, {f32(1/512)}, v{90+r}")
    for k in range(7):
        for r in range(2): c.e(f"v_add_f32 v{90+r}, v{X+8*r+k+1}, v{(X+8*r) if k == 0 else (90+r)}")
    wred()
    for r in range(2): c.e(f"v_mov_b32 v{94+r}, v{90+r}")
    for k in range(8):
        for r in range(2): c.e(f"v_sub_f32 v{X+8*r+k}, v{X+8*r+k}, v{94+r}")
    for k in range(8):
        for r in range(2): c.e(f"v_mul_f32 v{90+r}, v{X+8*r}, v{X+8*r}" if k == 0 else f"v_fmac_f32 v{90+r}, v{X+8*r+k}, v{X+8*r+k}")
    wred()
    def rnd(r): c.e(f"v_cvt_pk_bf16_f32 v{r}, v{r}, v{r}\nv_and_b32 v{r}, 0xffff0000, v{r}")
    for r in range(2): rnd(94 + r); rnd(90 + r)
    for r in range(2): c.e(f"v_add_f32 v{90+r}, {f32(1e-5)}, v{90+r}"); rnd(90 + r)
    for r in range(2): c.e(f"v_sqrt_f32 v{90+r}, v{90+r}")
    for r in range(2): rnd(90 + r)
    c.e("v_mov_b32 v96, v94\nv_mul_f32 v97, v90, v90\nv_mov_b32 v98, v95\nv_mul_f32 v99, v91, v91")
    c.e(f"s_lshl_b32 s{sT}, s{sCnt}, 4\nv_mov_b32 v{T1}, s{sT}\nv_cmp_eq_u32 vcc, 0, v{vl}\nv_cndmask_b32 v{T1}, v{T0}, v{T1}, vcc")
    c.e(f"buffer_store_dwordx4 v[96:99], v{T1}, {SR(sWS)}, 0 offen sc1", tag="ST")
    first_reads, proj, hleft = gen_proj()
    c.wait(vm="DX0"); c.ext(xreads(0)); c.wait(vm="DW0"); c.e("s_barrier"); c.ext(first_reads); c.wait(lgkm="W0")
    stamp(c, "p0")
    e = Block(); e.name = "projepi"
    stamp(e, "projend")
    e.ext(hleft)
    CS = 192
    for i in range(4): e.e(f"v_xor_b32 v{48+i}, {128*i}, v30")
    for i in range(4):
        for hf in range(2): e.e(f"ds_read_b128 {V(CS+8*i+4*hf,4)}, v{48+i} offset:{64*hf}", tag="CQ")
    for t in range(4): e.e(f"v_mov_b32 v{224+2*t}, v{vNMU+t}\nv_mov_b32 v{225+2*t}, v{vAQ+t}")
    e.wait(lgkm="CQ")
    for t in range(4):
        for ds in range(4):
            d = Q(t, ds); h = 232 + 4 * (ds & 1); st = V(224 + 2 * t, 2)
            for k in range(4): e.e(f"v_accvgpr_read_b32 v{h+k}, a{128+(t*4+ds)*4+k}")
            prs = [(d, CS + 8 * ds), (d + 2, CS + 8 * ds + 2), (h, CS + 8 * ds + 4), (h + 2, CS + 8 * ds + 6)]
            for x, cs in prs: e.e(f"v_pk_fma_f32 {V(x,2)}, {V(cs,2)}, {st}, {V(x,2)} op_sel_hi:[1,0,1]")
            for x, cs in prs: e.e(f"v_pk_mul_f32 {V(x,2)}, {V(x,2)}, {st} op_sel:[0,1] op_sel_hi:[1,1]")
            for k, (x, cs) in enumerate(prs): e.e(f"v_cvt_pk_bf16_f32 v{d+k}, v{x}, v{x+1}")
    e.e(f"s_cmp_lg_u32 s{sFB}, 0\ns_cbranch_scc1 L_truemax")
    e2 = Block(); e2.name = "premax"
    for t in range(4): e2.ext(qk_chain(t, 0, "0"))
    def rowmax_finish(blk, src):
        for sw in ("32", "16"):
            for t in range(4): blk.e(f"v_mov_b32 v{vT+t}, v{src(t)}")
            for t in range(4): blk.e(f"v_permlane{sw}_swap_b32 v{vT+t}, v{src(t)}")
            for t in range(4): blk.e(f"v_max_f32 v{src(t) if sw == '32' else vT+t}, v{src(t)}, v{vT+t}")
        for t in range(4):
            for r in range(4): blk.e(f"v_sub_f32 v{vNM+4*t+r}, 0, v{vT+t}")
    for t in range(4):
        s0 = vS + 4 * t
        e2.e(f"v_max3_f32 v{s0}, v{s0}, v{s0+1}, v{s0+2}\nv_max_f32 v{s0}, v{s0}, v{s0+3}")
    rowmax_finish(e2, lambda t: vS + 4 * t)
    first, even, odd, last = gen_attention()
    l0 = Block(); l0.e(f"L_att_start:\ns_mov_b32 s{sCnt}, 7"); stamp(l0, "att0")
    l1 = Block(); stamp(l1, "loop")
    l1b = Block(); l1b.e(".p2align 6\nL_att_loop:")
    l2 = Block(); l2.e(f"s_cmp_eq_u32 s{sCnt}, 0\ns_cbranch_scc1 L_att_last\ns_cmp_eq_u32 s{sCnt}, 7\ns_cbranch_scc1 L_first_trip")
    l2b = Block(); l2b.e("L_att_odd:")
    l3 = Block(); l3.e(f"s_sub_u32 s{sCnt}, s{sCnt}, 1\ns_branch L_att_loop")
    l4 = Block(); l4.e("L_att_last:"); stamp(l4, "last")
    ft = Block(); ft.name = "ft"
    ft.e(f"L_first_trip:\ns_lshl_b32 s{sT}, s{sQb}, 4\ns_add_u32 s{sT}, s{sT}, 128\ns_cmp_eq_u32 s{sFB}, 0\ns_cselect_b32 s{sT}, s{sT}, {OOB}")
    ft.e(f"v_mov_b32 v{vT}, {OOB}\nv_mov_b32 v{vT+1}, s{sT}\nv_cmp_eq_u32 vcc, 0, v0\nv_mov_b32 v{vT+2}, 1\ns_lshl_b32 s{sT}, s2, 15\nv_cndmask_b32 v{vT+1}, v{vT}, v{vT+1}, vcc")
    ft.e(f"buffer_atomic_add v{vT+2}, v{vT+1}, {SR(sDBG)}, 0 offen")
    ft.e(f"v_lshlrev_b32 v{vT+3}, 7, v0\nv_add_u32 v{vT+3}, s{sT}, v{vT+3}\nv_add_u32 v{vT+4}, {(-4096*1024) & 0xffffffff}, v{vT+3}")
    ft.e(f"buffer_load_dword v{vT+5}, v{vT+3}, {SR(sWO)}, 0 offen\nbuffer_load_dword v{vT+6}, v{vT+4}, {SR(sW2)}, 0 offen\ns_branch L_att_odd")
    f = Block(); f.name = "check"
    stamp(f, "attend")
    for n in range(16): f.add(MF(A(aCHK, 4), V(vZ, 4), V(128 + 4 * n, 4), "0" if n == 0 else A(aCHK, 4)))
    vRL = vNM
    f.e(f"v_bfe_u32 v{vT}, v0, 2, 4\nv_lshlrev_b32 v{vT+1}, 7, v{vT}\nv_and_b32 v{vT+2}, 3, v0\nv_lshl_add_u32 v{vT+1}, v{vT+2}, 3, v{vT+1}\nv_add_u32 v{vT+1}, s{sM}, v{vT+1}\nv_bfe_u32 v{vT}, v{vT}, 1, 2")
    f.e(f"s_and_b32 s{sW8k}, s{sRt}, 1\ns_lshl_b32 s{sW8k}, s{sW8k}, 11\nv_add_u32 v{vT+1}, s{sW8k}, v{vT+1}")
    for v in range(4): f.e(f"v_xor_b32 v{vT+2}, {v}, v{vT}\nv_lshl_add_u32 v{vRA+v}, v{vT+2}, 5, v{vT+1}\nv_xor_b32 v{vRA+4+v}, 0x800, v{vRA+v}")
    f.e(f"s_mov_b32 s{sT}, {f32(2.0**100)}")
    f.e(f"v_max3_f32 v{vT}, v{vRL+4}, v{vRL+5}, v{vRL+6}\nv_max_f32 v{vT}, v{vT}, v{vRL+7}\nv_accvgpr_read_b32 v{vT+1}, a{aCHK}")
    f.e(f"v_add_f32 v{vT}, v{vT}, v{vT+1}\nv_cmp_nlt_f32 vcc, v{vT}, s{sT}")
    f.e(f"s_cmp_lg_u64 vcc, 0\ns_cselect_b32 s{sT}, 1, 0")
    f.e(f"v_mov_b32 v{vT}, s{sT}\nv_and_b32 v{vT+1}, 3, v0\nv_lshlrev_b32 v{vT+1}, 15, v{vT+1}\ns_lshl_b32 s{sT}, s{sWave}, 2\nv_add_u32 v{vT+1}, s{sT}, v{vT+1}")
    f.e(f"ds_write_b32 v{vT+1}, v{vT} offset:{7*4096}\nv_mov_b32 v{vT+1}, s{sM}\ns_waitcnt lgkmcnt(0)\ns_barrier")
    f.e(f"ds_read_b128 {V(vT+4,4)}, v{vT+1} offset:{7*4096}", tag="FL")
    E = OPT["early"]
    for n in range(E, RING - 1): emit_grp(f, tA(n)); emit_grp(f, tB(n))
    f.wait(lgkm="FL")
    f.e(f"v_or_b32 v{vT+4}, v{vT+4}, v{vT+5}\nv_or3_b32 v{vT+4}, v{vT+4}, v{vT+6}, v{vT+7}\nv_readfirstlane_b32 s{sT}, v{vT+4}")
    f.e(f"s_andn2_b32 s{sT}, s{sT}, s{sFB}\ns_cmp_lg_u32 s{sT}, 0\ns_cbranch_scc1 L_fallback")
    k = Block(); k.name = "tail"
    stamp(k, "tail0")
    k.e(f"s_lshl_b32 s{sT}, s{sQb}, 5\ns_add_u32 s{sT}, s{sT}, s{sHead}\ns_lshl_b32 s{sT}, s{sT}, 2\ns_add_u32 s{sT}, s{sT}, {WS_FL}")
    k.e(f"v_mov_b32 v24, {OOB}\nv_mov_b32 v26, s{sT}\nv_cmp_eq_u32 vcc, 0, v0\nv_mov_b32 v25, 1\nv_and_b32 v{vPA}, 7, v0\nv_cndmask_b32 v26, v24, v26, vcc")
    k.e(f"s_lshr_b32 s{sT}, s{sRt}, 2\ns_lshl_b32 s{sT}, s{sT}, 2\ns_add_u32 s{sT}, s{sT}, s{sWave}\ns_lshl_b32 s{sT}, s{sT}, 5\ns_add_u32 s{sT}, s{sT}, {WS_FL}")
    k.e(f"v_lshlrev_b32 v27, 4, v{vPA}\nv_lshl_add_u32 v{vPA}, v{vPA}, 2, s{sT}\nv_bfe_u32 v24, v0, 3, 3\nv_lshl_add_u32 v27, v24, 10, v27")
    k.e(f"s_lshl_b32 s{sCnt}, s{sRt}, 2\ns_add_u32 s{sCnt}, s{sCnt}, s{sWave}\ns_lshl_b32 s{sCnt}, s{sCnt}, 14\ns_lshl_b32 s{sT}, s{sCt}, 7\ns_add_u32 s{sCnt}, s{sCnt}, s{sT}\ns_add_u32 s{sBo}, s{sCnt}, 8192")
    k.wait(vm="A0"); k.ext(tR(0))
    N = NG + NS
    ldf = f"buffer_load_dword v{vPoll}, v{vPA}, {SR(sWS)}, 0 offen sc1"
    nB = RING - 1
    flag_done = False
    for n in range(N):
        which, kk = tstep(n)
        if n == NG:
            stamp(k, "gend")
            k.wait(vm="PF")
            k.ext(poll_check("o", vPoll, ldf, f"v_cmp_eq_u32 vcc, 0, v{vPoll}\ns_nop 0\ns_cmp_eq_u64 vcc, 0"))
            stamp(k, "polled")
            while nB < n + DB - 1: emit_grp(k, tB(nB)); nB += 1
        tl = TL()
        for v in range(4):
            for t in snake(v):
                d = A(tACC(which, v, t), 4)
                tl.add(MF(d, V(tAF(n, v), 4), tBF(n, t), "0" if kk == 0 else d))
        vm = [f"B{n}"] + ([f"A{n+1}"] if n + 1 < N else [])
        if not flag_done and n + 1 >= E: vm.append("OS")
        k.wait(lgkm=f"R{n}", vm=vm)
        if not flag_done and n + 1 >= E:
            k.e(f"s_barrier\nbuffer_store_dword v25, v26, {SR(sWS)}, 0 offen sc1"); flag_done = True
        if n == OPT["pollstep"]: k.add(Ins(ldf, tag="PF"))
        if n + RING - 1 < N: emit_grp(k, tA(n + RING - 1))
        if nB < N and nB == n + DB - 1 and (nB < NG or n >= NG): emit_grp(k, tB(nB)); nB += 1
        if n == N - 4:
            k.e(f"buffer_load_dwordx4 v[128:131], v27, {SR(sX)}, s{sCnt} offen\nbuffer_load_dwordx4 v[132:135], v27, {SR(sX)}, s{sBo} offen", tag="XL")
        if n == NG - 1:
            for r in range(8): k.e(f"v_xor_b32 v{vRA+r}, s{sW8k}, v{vRA+r}")
        if n + 1 < N: tl.vec_in(0, 7, tR(n + 1))
        k.ext(tl.emit(0, 16, "x").ins)
    stamp(k, "send")
    k.e(f"v_and_b32 v2, 15, v0\nv_bfe_u32 v3, v0, 4, 2\nv_and_b32 v4, 7, v0\nv_xor_b32 v3, v3, v4\nv_lshlrev_b32 v2, 8, v2\nv_lshl_add_u32 v2, v3, 4, v2\nv_add_u32 v2, s{sM}, v2\nv_xor_b32 v3, 64, v2")
    k.e(f"v_bfe_u32 v5, v0, 3, 3\nv_lshlrev_b32 v4, 1, v4\nv_xor_b32 v4, v4, v5\nv_lshlrev_b32 v5, 8, v5\nv_lshl_add_u32 v4, v4, 4, v5\ns_lshl_b32 s{sT}, s{sWave}, 13\nv_add_u32 v4, s{sT}, v4\nv_xor_b32 v5, 16, v4\nv_add_u32 v6, 0x10000, v4\nv_add_u32 v7, 0x10000, v5")
    for which in (1, 0):
        for t in range(4):
            for v in range(4):
                k.e(f"ds_write_b128 v{2+(v&1)}, {A(tACC(which,v,t),4)} offset:{(t*2+which)*4096 + (v>>1)*128}")
    k.e("s_waitcnt lgkmcnt(0)\ns_barrier")
    RR = lambda w, which, hh, e_: (32 if which else 136) + w * 16 + hh * 8 + e_ * 4
    for which in (1, 0):
        for w in range(4):
            for hh in range(2):
                for e_ in range(2):
                    k.e(f"ds_read_b128 {V(RR(w,which,hh,e_),4)}, v{4 + e_ + (2 if w >= 2 else 0)} offset:{(w&1)*32768 + which*4096 + hh*2048}", tag=f"Z{which}{w}")
        if which == 1: k.wait(lgkm="Z11")
    def red(b0):
        for r in range(0, 16, 2): k.e(f"v_pk_add_f32 {V(b0+r,2)}, {V(b0+r,2)}, {V(b0+16+r,2)}")
    k.wait(lgkm="Z13"); red(32); red(64)
    for r in range(0, 16, 2): k.e(f"v_pk_add_f32 {V(32+r,2)}, {V(32+r,2)}, {V(64+r,2)}")
    for r in range(16): k.e(f"v_mul_f32 v{48+r}, {f32(-LOG2E)}, v{32+r}")
    for r in range(16): k.e(f"v_exp_f32 v{48+r}, v{48+r}")
    for r in range(16): k.e(f"v_add_f32 v{48+r}, 1.0, v{48+r}")
    for r in range(16): k.e(f"v_rcp_f32 v{48+r}, v{48+r}")
    k.wait(lgkm="Z03", vm="XL"); red(136); red(168)
    for r in range(0, 16, 2): k.e(f"v_pk_add_f32 {V(136+r,2)}, {V(136+r,2)}, {V(168+r,2)}")
    for r in range(0, 16, 2): k.e(f"v_pk_mul_f32 {V(32+r,2)}, {V(32+r,2)}, {V(48+r,2)}")
    for r in range(8): k.e(f"v_lshlrev_b32 v{64+2*r}, 16, v{128+r}\nv_and_b32 v{65+2*r}, 0xffff0000, v{128+r}")
    for r in range(0, 16, 2): k.e(f"v_pk_fma_f32 {V(64+r,2)}, {V(136+r,2)}, {V(32+r,2)}, {V(64+r,2)}")
    for r in range(8): k.e(f"v_cvt_pk_bf16_f32 v{128+r}, v{64+2*r}, v{65+2*r}")
    k.e(f"buffer_store_dwordx4 v[128:131], v27, {SR(sOut)}, s{sCnt} offen\nbuffer_store_dwordx4 v[132:135], v27, {SR(sOut)}, s{sBo} offen")
    z = Block(); z.name = "end"
    if OPT["stamp"]:
        z.e("s_waitcnt vmcnt(0) lgkmcnt(0)"); stamp(z, "end")
        z.e(f"s_load_dwordx2 s[96:97], s[0:1], 88\ns_waitcnt lgkmcnt(0)"); ptr_add(z, 96, 0x8000000 + 0x40000); srd_fin(z, 96, 0x40000)
        for i in range(20): z.e(f"v_mov_b32 v{36+i}, s{72+i}")
        z.e(f"s_lshl_b32 s92, s2, 2\ns_add_u32 s92, s92, s{sWave}\ns_lshl_b32 s92, s92, 7\nv_mov_b32 v2, s92\ns_mov_b64 exec, 1")
        for i in range(5): z.e(f"buffer_store_dwordx4 {V(36+4*i,4)}, v2, s[96:99], 0 offen offset:{16*i}")
    z.e("L_end:\ns_endpgm")
    fb = Block(); fb.name = "fb"
    fb.e(f"L_fallback:\ns_mov_b32 s{sFB}, 1\ns_waitcnt vmcnt(0) lgkmcnt(0)\ns_barrier\ns_branch L_restart")
    m0 = Block(); m0.name = "tm0"
    m0.e(f"L_truemax:\ns_mov_b32 s{sKo}, s{sW8k}\ns_mov_b32 s{sCnt}, 16")
    for t in range(4): m0.e(f"v_mov_b32 v{vNM+4*t}, 0xff800000")
    m0.e("s_waitcnt vmcnt(0) lgkmcnt(0)")
    m1 = Block(); m1.name = "tm1"
    m1.e("L_tm_loop:\ns_barrier")
    emit_grp(m1, dma_K(0, 0, "DK")); emit_grp(m1, dma_K(1, 0, "DK"))
    m1.e("s_waitcnt vmcnt(0)\ns_barrier")
    for g in range(8):
        m1.ext(kreads(g, 0, 0, "K0")); m1.e("s_waitcnt lgkmcnt(0)")
        for t in range(4): m1.ext(qk_chain(t, 0, "0"))
        for t in range(4):
            s0 = vS + 4 * t
            m1.e(f"v_max3_f32 v{vNM+4*t}, v{vNM+4*t}, v{s0}, v{s0+1}\nv_max3_f32 v{vNM+4*t}, v{vNM+4*t}, v{s0+2}, v{s0+3}")
    m1.e(f"s_sub_u32 s{sCnt}, s{sCnt}, 1\ns_cmp_lg_u32 s{sCnt}, 0\ns_cbranch_scc1 L_tm_loop")
    m2 = Block(); m2.name = "tm2"
    rowmax_finish(m2, lambda t: vNM + 4 * t)
    m2.e(f"s_mov_b32 s{sKo}, s{sW8k}\ns_barrier")
    emit_grp(m2, dma_K(0, 0, "DK")); emit_grp(m2, dma_K(1, 0, "DK"))
    m2.e(f"s_add_u32 s{sKo}, s{sKo}, 32768\ns_waitcnt vmcnt(0)\ns_barrier")
    m2.ext(kreads(0, 0, 0, "K0")); m2.e("s_waitcnt lgkmcnt(0)\ns_branch L_att_start")
    att = [l0, first, l1, l1b, even, l2, ft, l2b, odd, l3, l1b, even, l2, l2b, odd, l3, l1b, even, l2, l4, last, f]
    front = [b2, c, proj, e]
    vb = []
    finalize([[b_] + front + [e2] + att + [k, z], [b_] + front + [e2] + att + [fb] + front + [m0, m1, m1, m2] + att + [k, z]] + [[s] for s in SLOW], vb)
    check_groups([x for bb in [b_] + front + [e2] + att + [k, z] for x in bb.ins])
    for x in vb:
        if x[0].startswith("att") or x[0] == "proj": print("nop:", x, file=sys.stderr)
    layout = [b_, b2, c, proj, e, e2, l0, first, l1, l1b, even, l2, l2b, odd, l3, l4, last, f, k, z, ft, fb, m0, m1, m2] + SLOW
    return kernel_head(KN) + "\n".join(x.text() for x in layout) + "\n" + kernel_desc(KN, 512, 256)

def build():
    head = open("cdna_kernels/" + NAME + ".s.ref").read().split("; Override launch")[0]
    s = head + "; @launch grid=(256,1,1) block=(256,1,1) lds=163840\n" + '.amdgcn_target "amdgcn-amd-amdhsa--gfx950"\n'
    return s + gen_kernel()

if __name__ == "__main__":
    out = sys.argv[1] if len(sys.argv) > 1 else "cdna_kernels/" + NAME + ".s"
    for a in sys.argv[2:]:
        k, v = a.split("="); OPT[k] = eval(v)
    names = OPT.get("stamps", "p0,p4,projend,att0,loop,last,tail0,gend").split(",")
    STAMPS.update({n: i + 1 for i, n in enumerate(names)}); STAMPS["start"] = 0; STAMPS["end"] = 9
    open(out, "w").write(build())
```

```python
import sys, math, struct
sys.path.insert(0, "gen")
from asmgen import *

NAME = "recurrent_scan__mha_block_cached__glu_gated_swiglu__prompt"
KN = NAME + "_kernel"
WS_ST, WS_FH, WS_FO, WS_FG, WS_FS = 0, 0x8000, 0x10000, 0x18000, 0x20000
WS_B, WS_X = 0x200000, 0x2000000
BSTRIDE = 184 * 1024
LOG2E = 1.4426950408889634
OOB = 0x7ffffff0
def f32(x): return "0x%08x" % struct.unpack("<I", struct.pack("<f", x))[0]
OPT = dict(stamp=False, early=6, pollstage=4, flagstage=3, c2=0, ospace=14, osg=4, f1stage=10, f2stage=14)

L_K, L_SP, L_V = 0, 65536, 98304
sX, sWQ, sW1, sW3, sK, sV, sB, sH, sWS, sDBG, sWO, sW2, sOut = range(4, 56, 4)
sHead, sQb, sWave, sW8k, sW4k, sXb, sKo, sVo, sCnt, sT, sT2, sWQo, sW13o, sBo, sFB, sW16k = range(56, 72)
sTr, sTc, sSp = 93, 94, 95
sTW, sT2W = 100, 101
vL16, vKA, vVA, vDK, vDV, vZ, vT = 1, 2, 6, 14, 18, 20, 24
vS, vNM = 32, 48
def Q(t, ds): return 64 + (t * 4 + ds) * 4
def P(pb, kk, t): return 128 + pb * 64 + (t * 4 + kk) * 4
def O(dt, t): return (dt * 4 + t) * 4
def VF(b, kk): return 128 + b * 16 + kk * 4
aL, aONES = 192, 208
def KF(b, ds): return 212 + b * 16 + ds * 4
aCHK = 244
vWQA, vW13A, vDQ, vD13, vXA, vDX = 24, 28, 32, 36, 40, 44

def SR(s): return f"s[{s}:{s+3}]"
def MF(d, a, bb, c): return Ins(f"v_mfma_f32_16x16x32_bf16 {d}, {a}, {bb}, {c}")
def II(txt, tag=None): return [Ins(x, tag=tag) for x in txt.split("\n") if x.strip()]
def srd_fin(b, d, nrec):
    b.e(f"s_and_b32 s{d+1}, s{d+1}, 0xffff\ns_mov_b32 s{d+2}, {nrec}\ns_mov_b32 s{d+3}, 0x20000")
def ptr_add(b, d, off): b.e(f"s_add_u32 s{d}, s{d}, {off}\ns_addc_u32 s{d+1}, s{d+1}, 0")

def stamp_ins(i):
    if not OPT["stamp"] or i is None: return []
    return II(f"s_waitcnt lgkmcnt(0)\ns_memtime s[96:97]\ns_memrealtime s[98:99]\ns_waitcnt lgkmcnt(0)\ns_mov_b32 s{72+2*i}, s96\ns_mov_b32 s{73+2*i}, s98")
STAMPS = {}
def stamp(b, name): b.ext(stamp_ins(STAMPS.get(name)))

class Gap:
    def __init__(self, m): self.m = m; self.scal = []; self.vec = []; self.load = 0
def cost_of(ins): return 2 if ins.kind == "trans" else (0 if ins.kind in ("salu", "wait", "sctl", "label") else 1)
class TL:
    def __init__(self): self.g = []
    def add(self, m): self.g.append(Gap(m)); return len(self.g) - 1
    def vec_at(self, i, ins): self.g[i].vec.append(ins); self.g[i].load += cost_of(ins)
    def vec_in(self, lo, hi, items):
        loads = {i: self.g[i].load for i in range(lo, hi + 1)}
        cand = []
        for _ in items:
            i = min(loads, key=lambda k: (loads[k], k)); cand.append(i); loads[i] += 1
        cand.sort()
        for i, it in zip(cand, items): self.vec_at(i, it)
        return cand
    def scal_at(self, i, ins, later=True):
        while self.g[i].scal: i += 1 if later else -1
        self.g[i].scal.append(ins); return i
    def spread(self, lo, hi, groups):
        n = sum(len(g[1]) for g in groups); k = 0; prev = lo - 3
        for grp in groups:
            sc, ve, post = grp
            for x in ve: x.grp = grp; x.role = "vec"
            first = True
            for it in ve:
                tgt = lo + (hi - lo) * k // max(n - 1, 1); k += 1
                mn = prev + 1
                if first:
                    i = max(prev + 1, tgt - len(sc) - 1)
                    for x in sc: i = self.scal_at(i, x) + 1
                    mn = max(mn, i); first = False
                cands = [j for j in range(max(mn, tgt - 1), max(mn, tgt - 1) + 4) if j < len(self.g)]
                j = min(cands, key=lambda z: (self.g[z].load, abs(z - tgt)))
                self.vec_at(j, it); prev = j
            for x in post: prev = self.scal_at(prev + 1, x)
        return prev
    def stream(self, lo, hi, items, cap=2):
        i = lo; items = list(items)
        while items and i <= hi:
            it = items[0]; c = cost_of(it)
            if c == 0:
                i += 1
                while i <= hi and self.g[i].scal: i += 1
                if i > hi: break
                self.g[i].scal.append(it); items.pop(0); continue
            if self.g[i].load + c <= cap: self.vec_at(i, it); items.pop(0)
            else: i += 1
        return items
    def emit(self, lo, hi, name):
        b = Block(); b.name = name
        for gp in self.g[lo:hi]:
            if gp.m is not None: b.add(gp.m)
            b.ext(gp.scal); b.ext(gp.vec)
        return b

SLOW = []
def poll_check(name, vreg, load_txt, ready_cmp):
    inl = II(ready_cmp) + II(f"s_cbranch_scc0 L_spin_{name}\nL_back_{name}:")
    sl = Block(); sl.name = "spin" + name
    sl.e(f"L_spin_{name}:\ns_mov_b32 s3, 0x40000\nL_spin2_{name}:\ns_sleep 2\n{load_txt}\ns_waitcnt vmcnt(0)\ns_sub_u32 s3, s3, 1\ns_cmp_eq_u32 s3, 0\ns_cbranch_scc1 L_back_{name}")
    sl.e(ready_cmp); sl.e(f"s_cbranch_scc0 L_spin2_{name}\ns_branch L_back_{name}")
    SLOW.append(sl)
    return inl

def dma_K(half, buf, tag):
    return (II(f"s_add_u32 m0, s{sW8k}, {L_K + buf*32768 + half*4096}"),
            [Ins(f"buffer_load_dwordx4 v{vDK+p}, {SR(sK)}, s{sKo} offen offset:{p*1024} lds", tag=tag) for p in range(4)],
            II(f"s_add_u32 s{sKo}, s{sKo}, {4096 if half == 0 else 28672}"))
def dma_V(half, buf, tag):
    return (II(f"s_add_u32 m0, s{sW8k}, {L_V + buf*32768 + half*4096}"),
            [Ins(f"buffer_load_dwordx4 v{vDV+(p&1)}, {SR(sV)}, s{sVo} offen offset:{p*1024} lds", tag=tag) for p in range(4)],
            II(f"s_add_u32 s{sVo}, s{sVo}, {4096 if half == 0 else 28672}"))
def emit_grp(b, d): b.ext(d[0]); b.ext(d[1]); b.ext(d[2])
def check_groups(trace):
    last = {}; cnt = {}
    for x in trace:
        g = getattr(x, "grp", None)
        if g is not None and x.role == "vec":
            for sc in g[0]:
                for r in sc.writes & x.reads: assert last.get(r) is sc, ("group scalar clobbered", x.text, last.get(r))
            for sc in g[2]:
                for r in sc.writes & x.reads:
                    key = (id(g), r)
                    if x is g[1][0]: cnt[key] = last.get(r)
                    assert last.get(r) is cnt[key] and last.get(r) is not sc, ("post scalar order", x.text)
        for r in x.writes:
            if r[0] == "s" or r == "m0": last[r] = x
def kreads(g, buf, fb, tag):
    return [Ins(f"ds_read_b128 {A(KF(fb,ds),4)}, v{vKA+ds} offset:{buf*32768+g*4096}", tag=tag) for ds in range(4)]
def vreads(dt, buf, fb, tag):
    return [Ins(f"ds_read_b64_tr_b16 {A(VF(fb,kk)+2*kh,2)}, v{vVA+dt} offset:{buf*32768+(32*kk+16*kh)*256}", tag=tag) for kk in range(4) for kh in range(2)]
def snake(t): return range(4) if t % 2 == 0 else range(3, -1, -1)
def qk_chain(t, fb, c0):
    d = V(vS + 4 * t, 4)
    return [MF(d, A(KF(fb, ds), 4), V(Q(t, ds), 4), c0 if n == 0 else d) for n, ds in enumerate(snake(t))]
def pv_chain(dt, t, fb, pb):
    d = A(O(dt, t), 4)
    return [MF(d, A(VF(fb, kk), 4), V(P(pb, kk, t), 4), d) for kk in snake(t)]
def rs(t, kk, pb): return MF(A(aL + 4 * t, 4), A(aONES, 4), V(P(pb, kk, t), 4), A(aL + 4 * t, 4))

vDA, vB1, vPoll, vPA = 2, 14, 16, 17
vRAs, vRB, vRAg = 6, (12, 13, 15), 48
sM, sAo, sWOo, sW2o = sW4k, sT2, sWQo, sW13o
sBg, sQ0, sBt = sXb, sKo, sVo
sBs = [sV, sV + 1, sV + 2, sV + 3]
sXP = sK
UNITS = []
for i_ in range(7): UNITS += [("Ag", i_), ("Bg", i_), ("As", 2 * i_), ("As", 2 * i_ + 1)]
UNITS += [("As", 14), ("As", 15)] + [("Bs", i_) for i_ in range(16)]
USEQ = {u: n for n, u in enumerate(UNITS)}
LAM = (1, 2, 3, 0)
def udma(n):
    kind, i = UNITS[n]; m0 = f"s_add_u32 m0, s{sM}, {(n % 10)*16384}\n"; tag = f"U{n}"
    if kind[0] == "A":
        sr, so = (sW2, sW2o) if kind == "Ag" else (sWO, sWOo)
        return (II(m0 + f"s_add_u32 s{sAo}, s{so}, {i*65536}"),
                [Ins(f"buffer_load_dwordx4 v{vDA+p}, {SR(sr)}, s{sAo} offen offset:{p*1024} lds", tag=tag) for p in range(4)], [])
    if kind == "Bg":
        return (II(m0 + f"s_add_u32 s{sBt}, s{sBg}, {i*2048}"),
                [Ins(f"buffer_load_dwordx4 v{vL16 if p < 2 else vB1}, {SR(sB)}, s{sBt} offen offset:{p*1024} sc1 lds", tag=tag) for p in range(4)], [])
    return (II(m0 + f"s_add_u32 s{sBt}, s{sBs[LAM[i >> 2]]}, {(i & 3)*8192}"),
            [Ins(f"buffer_load_dwordx4 v{vL16}, {SR(sB)}, s{sBt} offen offset:{p*1024} sc1 lds", tag=tag) for p in range(4)], [])
def uloc(u): sl = USEQ[u] % 10; return sl // 4, (sl % 4) * 16384
def AS(v, ks): return (ks * 2 + v) * 4
def AG(v, ks): return 32 + (v * 2 + ks) * 4
def BG(j, ks): return 64 + (j * 2 + ks) * 4
def BS(i, e, ks): return 64 + (i & 1) * 64 + (e * 8 + ks) * 4
def ACG(j, v): return 192 + (j * 2 + v) * 4
def ACS(i, e, v): return 32 + ((i >> 2) & 1) * 16 + (e * 2 + v) * 4
def r_As(i):
    st, o = uloc(("As", i))
    return [Ins(f"ds_read_b64_tr_b16 {A(AS(v,2*i+ks)+2*kh,2)}, v{vRAs+2*st+v} offset:{o+ks*8192+kh*4096}", tag="RS") for ks in range(2) for v in range(2) for kh in range(2)]
def r_Ag(i):
    st, o = uloc(("Ag", i))
    return [Ins(f"ds_read_b64_tr_b16 {V(AG(v,ks)+2*kh,2)}, v{vRAg+4*st+2*kh+v} offset:{o+ks*8192}", tag="RA") for v in range(2) for ks in range(2) for kh in range(2)]
def r_Bg(i, j):
    st, o = uloc(("Bg", i))
    return [Ins(f"ds_read_b128 {V(BG(j,ks),4)}, v{vRB[st]} offset:{o+j*2048+ks*1024}", tag=f"RB{j}") for ks in range(2)]
def r_Bs(i):
    st, o = uloc(("Bs", i))
    return [Ins(f"ds_read_b128 {V(BS(i,e,ks),4)}, v{vRB[st]} offset:{o+e*8192+ks*1024}", tag=f"R{i}") for e in range(2) for ks in range(8)]
OSTORES = []

def gen_attention():
    tl = TL()
    phases = [-1, 0, 1, 2, 3, 4, 15]
    start = {}; stepb = {}
    for p in phases:
        start[p] = len(tl.g)
        if p == 15:
            for t in range(4):
                for kk in range(4): tl.add(rs(t, kk, 1))
        for s in range(8):
            stepb[p, s] = len(tl.g)
            if p != 15:
                for t in range(4):
                    for m in qk_chain(t, s & 1, V(vNM + 4 * t, 4)): tl.add(m)
            if p == -1:
                tl.add(Ins(f"v_mfma_f32_32x32x16_bf16 {A(16*s,16)}, {V(vZ,4)}, {V(vZ,4)}, 0"))
                if s == 0: tl.add(Ins(f"v_mfma_f32_32x32x16_bf16 {A(aL,16)}, {V(vZ,4)}, {V(vZ,4)}, 0"))
            else:
                for t in range(4):
                    for m in pv_chain(s, t, s & 1, p & 1): tl.add(m)
                if p != 15:
                    for kk in (2 * (s & 1), 2 * (s & 1) + 1): tl.add(rs(s >> 1, kk, p & 1))
    end = len(tl.g)
    nxt = {p: (start[phases[i + 1]] if i + 1 < len(phases) else end) for i, p in enumerate(phases)}
    for p in phases:
        if p == 15: continue
        pb = (p + 1) & 1
        for s in range(8):
            b0 = stepb[p, s]; nb = stepb[p, s + 1] if s < 7 else nxt[p]
            for t in range(4):
                sr = vS + 4 * t
                ex = [Ins(f"v_exp_f32 v{sr+r}, v{sr+r}") for r in range(4)]
                pd = P(pb, s >> 1, t) + 2 * (s & 1)
                cv = [Ins(f"v_cvt_pk_bf16_f32 v{pd+h}, v{sr+2*h}, v{sr+2*h+1}") for h in range(2)]
                if p >= 0:
                    pe = [b0 + 8 * t + 8 + 2 * r for r in range(4)]; pc = [b0 + 8 * t + 11, b0 + 8 * t + 15]
                else:
                    pe = [b0 + 4 * t + 8 + r for r in range(4)]; pc = [b0 + 4 * t + 10, b0 + 4 * t + 12]
                    if s == 7:
                        pe = [min(x, nb - 1) for x in pe]; pc = [min(x, nb - 1) for x in pc]
                        if t == 3: pe[1:] = [nb + 0, nb + 2, nb + 4]; pc = [nb + 1, nb + 5]
                seq = sorted([(pe[0],0,ex[0]),(pe[1],1,ex[1]),(pc[0],3 if p < 0 else 2,cv[0]),(pe[2],2.5,ex[2]),(pe[3],4,ex[3]),(pc[1],5,cv[1])], key=lambda z: (z[0], z[1]))
                for pos, _, ins in seq: tl.vec_at(pos, ins)
    for p in phases:
        if 0 <= p < 15:
            b0 = stepb[p, 0]
            grps = [dma_K(0, p & 1, "DK"), dma_K(1, p & 1, "DK"), dma_V(0, (p + 1) & 1, "DV"), dma_V(1, (p + 1) & 1, "DV")]
            for s in range(8):
                nb = stepb[p, s + 1] if s < 7 else nxt[p]
                tl.scal_at(stepb[p, s] + 15, W(lgkm=f"V{s}"), later=False)
                tl.scal_at(nb - 1, W(lgkm=f"K{(s+1)&7}"), later=False)
            if OPT.get("nodma"): grps = [([], [], g[2]) for g in grps]
            if not OPT.get("notouch"):
                so, sr = (sTW, sWO) if p % 2 == 0 else (sT2W, sW2)
                g0 = stepb[p, 5]
                tl.vec_at(g0 + 3, Ins(f"buffer_load_dword v31, v{30 if p % 2 == 0 else 29}, {SR(sr)}, s{so} offen"))
                tl.scal_at(g0 + 4, Ins(f"s_add_u32 s{so}, s{so}, 0x2000"))
                tl.scal_at(g0 + 5, Ins(f"s_and_b32 s{so}, s{so}, {0x7fff if p % 2 == 0 else 0x3fff}"))
            if OPT.get("dmamode", 0) == 0: tl.spread(b0 + 3, b0 + OPT.get("dmaspan", 120), grps)
            else:
                pos = OPT["dmapos"]; k = 0
                for grp in grps:
                    for j, x in enumerate(grp[1]):
                        gi = stepb[p, k // len(pos)] + pos[k % len(pos)]; k += 1
                        if j == 0: tl.scal_at(gi - 1, grp[0][0], later=False)
                        tl.vec_at(gi, x); tl.g[gi].load += OPT.get("dmaexcl", 1)
                        x.grp = grp; x.role = "vec"
                    tl.scal_at(gi + 1, grp[2][0])
        for s in range(8):
            b0 = stepb[p, s]; nb = stepb[p, s + 1] if s < 7 else nxt[p]
            ns, npz = (s + 1) & 7, (p + 1 if s == 7 else p)
            if p == 15:
                if s == 0: tl.scal_at(b0 - 1, W(lgkm="V0"), later=False)
                if s < 7:
                    r = vreads(ns, 1, ns & 1, f"V{ns}")
                    for k, x in enumerate(r): tl.vec_at(b0 + 2 * (k // 2), x)
                    tl.scal_at(nb - 1, W(lgkm=f"V{ns}"), later=False)
                continue
            if s == 7:
                i = tl.scal_at(b0 + 4, W(lgkm=["V7", "K7"], vm=["DK", "DV"]))
                if not (OPT.get("nobar") and p >= 0): tl.scal_at(i + 1, Ins("s_barrier"))
            if p >= 0:
                kr = kreads(ns, (npz + 1) & 1, ns & 1, f"K{ns}"); vr = vreads(ns, npz & 1, ns & 1, f"V{ns}")
                if OPT.get("nolds"): kr = kr[:1]; vr = vr[:1]
                if OPT.get("kpos"):
                    for x, o in zip(kr, OPT["kpos"]): tl.vec_at(b0 + o, x)
                    for x, o in zip(vr, OPT["vpos"]): tl.vec_at(b0 + o, x)
                else:
                    tl.vec_in(b0 + 6, b0 + 22, kr)
                    tl.vec_in(b0 + 9, b0 + 33, vr)
            else:
                tl.vec_in(b0 + 6, b0 + 10, kreads(ns, (npz + 1) & 1, ns & 1, f"K{ns}"))
                if s == 7: tl.vec_in(b0 + 10, nb - 1, vreads(0, 0, 0, "V0"))
                tl.scal_at(nb - 1, W(lgkm=f"K{ns}"), later=False)
    p0 = start[15]
    T = vT
    su = II(f"""v_bfe_u32 v{T}, v0, 4, 2
v_mul_u32_u24 v{T}, 768, v{T}
v_add_u32 v{vDA}, v{vDV}, v{T}
v_add3_u32 v{vDA+1}, v{vDV+1}, v{T}, s{sT}
v_add_u32 v{vDA+2}, 6144, v{vDA}
v_add_u32 v{vDA+3}, 6144, v{vDA+1}
v_add_u32 v{vB1}, {BSTRIDE-2048}, v{vL16}""")
    left = tl.stream(p0 + 6, p0 + 15, su); assert not left
    vRL = vNM
    lr = II("\n".join(f"v_accvgpr_read_b32 v{vRL+4+t}, a{aL+4*t}" for t in range(4)) + "\n" + "\n".join(f"v_rcp_f32 v{vRL+t}, v{vRL+4+t}" for t in range(4)))
    left = tl.stream(stepb[15, 0] + 8, stepb[15, 1] + 15, lr); assert not left
    E = OPT["early"]
    ld1 = f"buffer_load_dword v{vPoll}, v{vPA}, {SR(sWS)}, 0 offen sc1"
    chk1 = poll_check("h", vPoll, ld1, f"v_cmp_eq_u32 vcc, 0, v{vPoll}\ns_nop 0\ns_cmp_eq_u64 vcc, 0")
    ea = [n for n in range(E) if UNITS[n][0] != "Bg"]; eb = [n for n in range(E) if UNITS[n][0] == "Bg"]
    l = tl.spread(stepb[15, 0] + 1, stepb[15, 0] + 28, [udma(n) for n in ea[:2]])
    g = tl.g[l + 1]
    g.vec += [W(vm="C1")] + chk1; g.load += 2
    rest = sorted(ea[2:] + eb)
    tl.spread(l + 5, l + 5 + OPT.get("espace", 16) * len(rest), [udma(n) for n in rest])
    ep = []; lastcvt = {}
    for i in range(4):
        items = []
        for t in range(4):
            o = 128 + (t * 4 + i) * 4
            ar = [O(2 * i + hf, t) + r for hf in range(2) for r in range(4)]
            tb = vS + 8 * (t & 1)
            items += II("\n".join(f"v_accvgpr_read_b32 v{tb+k}, a{ar[k]}" for k in range(8)))
            items += II("\n".join(f"v_mul_f32 v{tb+k}, v{tb+k}, v{vRL+t}" for k in range(8)))
            items += II("\n".join(f"v_cvt_pk_bf16_f32 v{o+k}, v{tb+2*k}, v{tb+2*k+1}" for k in range(4)))
            lastcvt[i, t] = items[-1]
            OSTORES.append((II(f"s_add_u32 s{sCnt}, s{sBo}, {t*BSTRIDE}"),
                            [Ins(f"buffer_store_dwordx4 {V(o,4)}, v{vL16}, {SR(sB)}, s{sCnt} offen offset:{1024*i} sc1", tag="OS")], []))
        ep.append(items)
    left = []
    for i in range(3):
        left = tl.stream(stepb[15, 2 * i + 2] + 3, (stepb[15, 2 * i + 4] + 2) if i < 2 else end - 1, left + ep[i], cap=OPT.get("epcap", 3))
    left += ep[3]
    where = {id(x): k for k, gp in enumerate(tl.g) for x in gp.vec}
    pos = 0; n = 0
    while n < 16:
        c_ = where.get(id(lastcvt[n // 4, n % 4]))
        if c_ is None: break
        pos = max(pos + OPT["ospace"], c_ + 2)
        if pos >= end - 1: break
        grp = OSTORES.pop(0)
        q = tl.scal_at(pos - 1, grp[0][0])
        if q + 1 >= end: raise RuntimeError("os")
        tl.vec_at(q + 1, grp[1][0]); grp[1][0].grp = grp; grp[1][0].role = "vec"; pos = q + 1; n += 1
    l2_ = []; done = set(id(x) for gp in tl.g for x in gp.vec)
    for k_, x in enumerate(left):
        l2_.append(x); done.add(id(x))
        if k_ % OPT.get("oleft", 60) == 30 and n < 16 and id(lastcvt[n // 4, n % 4]) in done:
            grp = OSTORES.pop(0); l2_ += grp[0] + grp[1]; n += 1
    left = l2_
    print("O stores placed in the last phase:", n, "left-over VALU", len(left), file=sys.stderr)
    blk = {p: tl.emit(start[p], nxt[p], f"att{p}") for p in phases}
    tx = lambda b: [(i.text, str(i.waitfor), i.tag) for i in b.ins]
    assert tx(blk[0]) == tx(blk[2]) == tx(blk[4]) and tx(blk[1]) == tx(blk[3])
    last = blk[15]
    pre = II(f"""s_lshl_b32 s{sT}, s{sTc}, 8
s_lshl_b32 s{sWOo}, s{sWave}, 14
s_add_u32 s{sWOo}, s{sWOo}, s{sT}
s_mul_i32 s{sW2o}, s{sSp}, {448*1024}
s_add_u32 s{sW2o}, s{sW2o}, s{sWOo}
s_lshl_b32 s{sT}, s{sSp}, 20
s_add_u32 s{sWOo}, s{sWOo}, s{sT}
s_lshr_b32 s{sQ0}, s{sTr}, 1
s_lshl_b32 s{sQ0}, s{sQ0}, 2
s_and_b32 s{sT}, s{sTr}, 1
s_add_u32 s{sQ0}, s{sQ0}, s{sT}
s_lshl_b32 s{sQ0}, s{sQ0}, 2
s_xor_b32 s{sT}, s{sWave}, s{sSp}
s_and_b32 s{sT2}, s{sT}, 2
s_add_u32 s{sT}, s{sT}, s{sT2}
s_lshl_b32 s{sT}, s{sT}, 1
s_add_u32 s{sT}, s{sT}, s{sQ0}
s_mul_i32 s{sBg}, s{sT}, {BSTRIDE}
s_mul_i32 s{sT}, s{sSp}, {14*1024}
s_add_u32 s{sT}, s{sT}, {128*1024}
s_add_u32 s{sBg}, s{sBg}, s{sT}
s_lshl_b32 s{sT}, s{sHead}, 12
s_add_u32 s{sBo}, s{sBo}, s{sT}
s_lshr_b32 s{sT}, s{sTr}, 1
s_lshl_b32 s{sT}, s{sT}, 5
s_mul_i32 s{sT2}, s{sSp}, 7
s_add_u32 s{sT}, s{sT}, s{sT2}
s_lshl_b32 s{sT}, s{sT}, 7
s_add_u32 s{sT}, s{sT}, {WS_FH}
v_and_b32 v{vPA}, 7, v0
v_min_u32 v{vPA}, 6, v{vPA}
v_lshl_add_u32 v{vPA}, v{vPA}, 7, s{sT}
s_movk_i32 s{sT}, 3072""") + [Ins(ld1, tag="C1")]
    last.ins = pre + last.ins + left
    return blk[-1], blk[0], blk[1], last

PARTS = [("G", 0), ("Q", 0), ("G", 1), ("Q", 1), ("G", 2), ("G", 3), ("Q", 2), ("Q", 3)]
SLOT = lambda i: (L_V + 32768, L_SP, L_V)[i % 3]
vNMU, vAQ, vAE, vIR = 32, 36, 40, 44
def XB(c, t, ks): return (c & 1) * 64 + (t * 4 + ks) * 4
def WF(fb, ks): return 212 + fb * 16 + ks * 4
def pacc(kind, u, t):
    if kind == "G": return V(128 + (u & 1) * 64 + ((u >> 1) * 4 + t) * 4, 4)
    ds, hf = u >> 1, u & 1
    return V(Q(t, ds), 4) if hf == 0 else A(128 + (t * 4 + ds) * 4, 4)
def wdma(i):
    kind, c = PARTS[i]; base = SLOT(i); g = []
    if kind == "Q":
        for half in range(2):
            g.append((II(f"s_add_u32 m0, s{sW8k}, {base + half*4096}\ns_add_u32 s{sT}, s{sWQo}, {(c*128+16*half)*8192}"),
                      [Ins(f"buffer_load_dwordx4 v{vDQ+p}, {SR(sWQ)}, s{sT} offen offset:{p*1024} lds", tag=f"DW{i}") for p in range(4)], []))
    else:
        for k, sr in enumerate((sW1, sW3)):
            g.append((II(f"s_add_u32 m0, s{sW4k}, {base + k*16384}\ns_add_u32 s{sT}, s{sW13o}, {c*128*3584}"),
                      [Ins(f"buffer_load_dwordx4 v{vD13+p}, {SR(sr)}, s{sT} offen offset:{p*1024} lds", tag=f"DW{i}") for p in range(4)], []))
    return g
def xdma(c):
    return [(II(f"s_add_u32 m0, s{sW16k}, {t*4096}\ns_add_u32 s{sT}, s{sXb}, {t*16384 + c*256}"),
             [Ins(f"buffer_load_dwordx4 v{vDX+p}, {SR(sX)}, s{sT} offen offset:{p*1024} lds", tag=f"DX{c}") for p in range(4)], []) for t in range(4)]
def xreads(c):
    return [Ins(f"ds_read_b128 {A(XB(c,t,ks),4)}, v{vXA+ks} offset:{t*4096}", tag=f"X{c}") for t in range(4) for ks in range(4)]

def gen_proj():
    base = {"G": L_V, "Q": L_SP}
    def wreads(i, u, tag):
        kind, c = PARTS[i]; off0 = SLOT(i) - base[kind]; assert 0 <= off0 <= 32768
        r = []
        for ks in range(4):
            for kh in range(2):
                if kind == "Q": ad, off = vWQA + (u >> 1), ks * 8192 + kh * 1024 + 8 * (u & 1)
                else: ad, off = vW13A + (u >> 1), ks * 4096 + kh * 512 + 16384 * (u & 1)
                r.append(Ins(f"ds_read_b64_tr_b16 {A(WF(u&1,ks)+2*kh,2)}, v{ad} offset:{off0+off}", tag=tag))
        return r
    first_reads = wreads(0, 0, "W0")
    tl = TL(); tb = {}
    for i, (kind, c) in enumerate(PARTS):
        for u in range(8):
            tb[i, u] = len(tl.g)
            for t in range(4):
                d = pacc(kind, u, t)
                for n, ks in enumerate(snake(t)):
                    tl.add(MF(d, A(WF(u & 1, ks), 4), A(XB(c, t, ks), 4), "0" if (c == 0 and n == 0) else d))
            if u < 2:
                d = A(aL + (8 if kind == "Q" else 0) + 4 * u, 4)
                for ks in range(4): tl.add(MF(d, A(WF(u & 1, ks), 4), A(aONES, 4), "0" if (c == 0 and ks == 0) else d))
    end = len(tl.g)
    tb[8, 0] = end
    nx = lambda i, u: tb[i, u + 1] if u < 7 else tb[i + 1, 0]
    extra_vm = {0: ["ST"], 7: ["DK0"]}
    for i, (kind, c) in enumerate(PARTS):
        for u in range(8):
            b0 = tb[i, u]; nb = nx(i, u)
            if u < 7:
                r = wreads(i, u + 1, f"W{u+1}")
                if i >= 6:
                    for k, x in enumerate(r): tl.vec_at(b0 + 1 + 2 * (k // 2), x)
                else: tl.vec_in(b0 + 1, b0 + 8, r)
                tl.scal_at(nb - 1, W(lgkm=f"W{u+1}"), later=False)
            else:
                vm = ([f"DW{i+1}"] if i < 7 else []) + extra_vm.get(i, [])
                tl.scal_at(b0, W(vm=vm, lgkm={4: ["X3"], 5: ["CS"], 7: ["CS"]}.get(i)))
                tl.scal_at(b0 + 1, Ins("s_barrier"))
                if i < 7:
                    nk = PARTS[i + 1][0]
                    if not 0 <= SLOT(i + 1) - base[nk] <= 32768:
                        dlt = SLOT(i + 1) - base[nk]; base[nk] += dlt
                        ad = vWQA if nk == "Q" else vW13A
                        for k in range(4): tl.vec_at(b0 + k // 2, Ins(f"v_add_u32 v{ad+k}, {dlt & 0xffffffff}, v{ad+k}"))
                    tl.vec_in(b0 + 2, b0 + 9, wreads(i + 1, 0, "W0"))
                    tl.scal_at(nb - 1, W(lgkm="W0"), later=False)
                else:
                    tl.vec_in(b0 + 2, b0 + 9, kreads(0, 0, 0, "K0"))
    P_ = lambda i, f: tb[i, 0] + int(f * (tb[i + 1, 0] - tb[i, 0]))
    def xout(c, lo, hi):
        j = tl.scal_at(lo, W(vm=f"DX{c}"))
        cc = tl.vec_in(j, hi, xreads(c))
        return cc[-1]
    tl.spread(P_(0, 0) + 3, P_(0, .72), xdma(1) + wdma(2))
    tl.spread(P_(1, 0) + 6, P_(1, .3), wdma(3))
    xout(1, P_(1, .55), tb[1, 7] - 2)
    tl.spread(P_(2, 0) + 3, P_(2, .72), xdma(2) + wdma(4))
    tl.spread(P_(3, 0) + 3, P_(3, .25), wdma(5))
    l = xout(2, P_(3, .2), P_(3, .45))
    j = tl.scal_at(l + 6, W(lgkm="X2"))
    tl.spread(j + 3, P_(3, .98), xdma(3))
    tl.spread(P_(4, 0) + 6, P_(4, .3), wdma(6))
    xout(3, P_(4, .55), tb[4, 7] - 8)
    tl.spread(P_(5, 0) + 3, P_(5, .5), wdma(7) + [dma_K(0, 0, "DK0"), dma_K(1, 0, "DK0")])
    tl.spread(P_(6, 0) + 3, P_(6, .3), [dma_V(0, 0, "DV"), dma_V(1, 0, "DV")])
    tl.spread(P_(7, 0) + 3, P_(7, .3), [dma_K(0, 1, "DK"), dma_K(1, 1, "DK")])
    tl.vec_in(tb[0, 7] + 10, tb[0, 7] + 14, [Ins(f"buffer_atomic_add v49, v48, {SR(sDBG)}, 0 offen")])
    ld0 = f"buffer_load_dword v50, v51, {SR(sDBG)}, 0 offen sc1"
    tl.vec_in(P_(4, .4), P_(4, .45), [Ins(ld0, tag="C0")])
    g = tl.g[P_(5, .55)]
    g.vec += [W(vm="C0")] + poll_check("st", 50, ld0, f"v_cmp_gt_u32 vcc, 32, v50\ns_nop 0\ns_cmp_eq_u64 vcc, 0"); g.load += 2
    tl.spread(P_(5, .55) + 2, P_(5, .7), [([], [Ins(f"buffer_load_dwordx2 {V(56+2*t,2)}, v52, {SR(sWS)}, 0 offen offset:{128*t} sc1", tag="SL") for t in range(4)], [])])
    for i, off in ((5, L_K + 32768), (7, L_V + 32768)):
        a0 = aL + (8 if i == 7 else 0)
        tl.vec_in(tb[i, 3], tb[i, 3] + 12, [Ins(f"ds_write_b128 v{54 if i == 5 else 30}, {A(a0+4*u,4)} offset:{64*u}", tag="CS") for u in range(2)])
    it = [W(vm="SL")]
    for t in range(4): it += II(f"v_rsq_f32 v{vAQ+t}, v{57+2*t}")
    for t in range(4): it += II(f"v_sub_f32 v{vNMU+t}, 0, v{56+2*t}\nv_mov_b32 v{vIR+t}, v{57+2*t}")
    for t in range(4): it += II(f"v_mul_f32 v{vAE+t}, {f32(-LOG2E)}, v{vAQ+t}\nv_mul_f32 v{vAQ+t}, {f32(LOG2E * 128 ** -0.5)}, v{vAQ+t}")
    for v in range(4): it += II(f"v_xor_b32 v{28+v}, {128*v}, v54")
    def csread(v): return [Ins(f"ds_read_b128 {V(48+8*(v&1)+4*m,4)}, v{28+v} offset:{64*m}", tag=f"CG{v}") for m in range(2)]
    it += csread(0)
    for v in range(4):
        if v < 3: it += csread(v + 1)
        it += [W(lgkm=f"CG{v}")]
        for m in range(2):
            for t in range(4):
                d = 128 + m * 64 + (v * 4 + t) * 4
                for r in range(4): it += II(f"v_fmac_f32 v{d+r}, v{48+8*(v&1)+4*m+r}, v{vNMU+t}")
    mv30 = Ins(f"v_add_u32 v30, {L_V - L_K}, v28"); it.append(mv30)
    it += II(f"s_lshl_b32 s{sCnt}, s{sHead}, 11\ns_add_u32 s{sCnt}, s{sCnt}, {128*1024}\ns_add_u32 s{sCnt}, s{sCnt}, s{sBo}")
    it += II(f"s_and_b32 s{sT2}, s{sWave}, 2\ns_lshl_b32 s{sT2}, s{sT2}, 9\nv_add_u32 v28, s{sT2}, v{vL16}\nv_xor_b32 v29, 0x400, v28")
    for t in range(4):
        for i in range(2):
            gr = [128 + ((2 * i + hf) * 4 + t) * 4 + r for hf in range(2) for r in range(4)]
            ur = [x + 64 for x in gr]; T = 48 + 8 * i
            for k in range(8): it += II(f"v_mul_f32 v{T+k}, v{vAE+t}, v{gr[k]}")
            for k in range(8): it += II(f"v_exp_f32 v{T+k}, v{T+k}")
            for k in range(8): it += II(f"v_mul_f32 v{ur[k]}, v{ur[k]}, v{gr[k]}")
            for k in range(8): it += II(f"v_fma_f32 v{T+k}, v{T+k}, v{vIR+t}, v{vIR+t}")
            for k in range(8): it += II(f"v_rcp_f32 v{T+k}, v{T+k}")
            for k in range(8): it += II(f"v_mul_f32 v{T+k}, v{T+k}, v{ur[k]}")
            for k in range(4): it += II(f"v_cvt_pk_bf16_f32 v{gr[0]+k}, v{T+2*k}, v{T+2*k+1}")
            it += II(f"buffer_store_dwordx4 {V(gr[0],4)}, v{28+i}, {SR(sH)}, s{sCnt} offen sc1")
        if t < 3: it += II(f"s_add_u32 s{sCnt}, s{sCnt}, {BSTRIDE}")
    lastcs = [x for x in it if x.tag == "CG3"][-1]
    left = tl.stream(tb[6, 0] + 4, end - 1, it)
    pos = [k for k, gp in enumerate(tl.g) if any(x is lastcs for x in gp.vec)]
    assert pos and pos[0] < tb[6, 6], (pos, tb[6, 6])
    pos = [k for k, gp in enumerate(tl.g) if any(x is mv30 for x in gp.vec)]
    assert pos and pos[0] < tb[7, 3], (pos, tb[7, 3])
    for nm, i in (("p2", 2), ("p4", 4), ("p6", 6)):
        tl.g[tb[i, 0]].scal = stamp_ins(STAMPS.get(nm)) + tl.g[tb[i, 0]].scal
    body = tl.emit(0, end, "proj")
    print("h epilogue leftover", len(left), "of", len(it), file=sys.stderr)
    return first_reads, body, left

def gen_kernel():
    b = Block(); b.name = "setup"
    b.e(f"s_cmp_ge_u32 s2, 256\ns_cbranch_scc1 L_end\ns_mov_b32 s{sFB}, 0")
    if OPT["stamp"]:
        for i in range(20): b.e(f"s_mov_b32 s{72+i}, 0")
        stamp(b, "start")
    b2 = Block(); b2.name = "setup1"; b_ = b; b = b2
    b.e("L_restart:")
    for sr, off in ((sX, 0), (sW1, 48), (sW3, 56), (sWQ, 24), (sK, 8), (sV, 16), (sB, 88), (sH, 88), (sWS, 88), (sDBG, 80), (sWO, 32), (sW2, 64), (sOut, 72)):
        b.e(f"s_load_dwordx2 s[{sr}:{sr+1}], s[0:1], {off}")
    T0, T1, T2, T3, T4 = 56, 57, 58, 59, 60
    vl, vc, vg, vi2, vi3 = 61, 62, 63, 22, 23
    b.e(f"v_lshrrev_b32 v{T0}, 6, v0\nv_and_b32 v{vl}, 63, v0\nv_readfirstlane_b32 s{sWave}, v{T0}")
    b.e(f"s_and_b32 s{sHead}, s2, 7\ns_lshl_b32 s{sHead}, s{sHead}, 2\ns_lshr_b32 s{sT}, s2, 3\ns_and_b32 s{sT}, s{sT}, 3\ns_add_u32 s{sHead}, s{sHead}, s{sT}")
    b.e(f"s_lshr_b32 s{sQb}, s2, 5\ns_bfe_u32 s{sSp}, s2, 0x20001\ns_lshr_b32 s{sTc}, s2, 6\ns_bfe_u32 s{sTr}, s2, 0x30003\ns_and_b32 s{sT}, s2, 1\ns_lshl_b32 s{sT}, s{sT}, 3\ns_add_u32 s{sTr}, s{sTr}, s{sT}")
    b.e(f"s_lshl_b32 s{sW8k}, s{sWave}, 13\ns_lshl_b32 s{sW4k}, s{sWave}, 12\ns_lshl_b32 s{sW16k}, s{sWave}, 14")
    b.e(f"s_lshl_b32 s{sT}, s{sQb}, 4\ns_lshl_b32 s{sT2}, s{sWave}, 2\ns_add_u32 s{sT}, s{sT}, s{sT2}")
    b.e(f"s_lshl_b32 s{sXb}, s{sT}, 14\ns_mul_i32 s{sBo}, s{sT}, {BSTRIDE}")
    b.e(f"s_lshl_b32 s{sWQo}, s{sWave}, 18\ns_mul_i32 s{sW13o}, s{sWave}, {32*3584}")
    b.e(f"s_mov_b32 s{sKo}, s{sW8k}\ns_mov_b32 s{sVo}, s{sW8k}")
    b.e(f"s_lshl_b32 s{sCnt}, s{sQb}, 7\ns_lshl_b32 s{sT2}, s{sHead}, 2\ns_add_u32 s{sCnt}, s{sCnt}, s{sT2}\ns_add_u32 s{sCnt}, s{sCnt}, s{sWave}")
    b.e(f"v_lshlrev_b32 v{vL16}, 4, v{vl}\nv_and_b32 v{vc}, 15, v0\nv_bfe_u32 v{vg}, v0, 4, 2")
    b.e(f"v_xor_b32 v{T0}, v{vg}, v{vc}\nv_lshlrev_b32 v{T1}, 10, v{vg}")
    for p in range(4): b.e(f"v_xor_b32 v{T2}, {4*p}, v{T0}\nv_lshl_add_u32 v{T2}, v{T2}, 4, v{T1}\nv_add_u32 v{vDX+p}, {p*3072}, v{T2}")
    b.e(f"v_lshrrev_b32 v{T0}, 3, v{vl}\nv_mul_u32_u24 v{T0}, 3584, v{T0}\nv_and_b32 v{T1}, 7, v0\nv_and_b32 v{T2}, 1, v{vg}\nv_lshlrev_b32 v{T2}, 1, v{T2}\nv_xor_b32 v{T1}, v{T1}, v{T2}")
    for p in range(4): b.e(f"v_xor_b32 v{T2}, {4*(p&1)}, v{T1}\nv_lshl_add_u32 v{T2}, v{T2}, 4, v{T0}\nv_add_u32 v{vD13+p}, {p*27648}, v{T2}")
    b.e(f"v_lshlrev_b32 v{T0}, 2, v{vg}\nv_xor_b32 v{T0}, v{vc}, v{T0}\nv_lshlrev_b32 v{T0}, 4, v{T0}\nv_lshl_add_u32 v{vDQ}, v{vg}, 13, v{T0}")
    for p in range(1, 4): b.e(f"v_add_u32 v{vDQ+p}, {p*31744}, v{vDQ}")
    if not OPT.get("nocodepf"):
        b.e(f"s_getpc_b64 s[{sT}:{sT+1}]".replace(f"s[{sT}:{sT+1}]", "s[100:101]") + "\nL_pc:")
        b.e(f"s_lshr_b32 s{sT}, s2, 3\ns_lshl_b32 s{sT}, s{sT}, 2\ns_add_u32 s{sT}, s{sT}, s{sWave}\ns_lshl_b32 s{sT}, s{sT}, 9")
        b.e(f"v_and_b32 v{T0}, 3, v0\nv_lshl_add_u32 v{T0}, v{T0}, 7, s{sT}\nv_min_u32 v{T0}, L_end-L_pc, v{T0}\nv_mov_b32 v{T1}, s101")
        b.e(f"v_add_co_u32 v{T0}, vcc, s100, v{T0}\nv_addc_co_u32 v{T1}, vcc, 0, v{T1}, vcc\nglobal_load_dword v100, v[{T0}:{T1}], off")
    b.e("s_waitcnt lgkmcnt(0)")
    stamp(b, "karg")
    srd_fin(b, sX, 0x200000)
    b.e(f"s_lshl_b32 s{sT}, s{sCnt}, 11")
    for r in range(2): b.e(f"buffer_load_dwordx4 {V(64+4*r,4)}, v{vL16}, {SR(sX)}, s{sT} offen offset:{1024*r}", tag="SR")
    b.e(f"s_lshl_b32 s{sT}, s{sHead}, 7"); ptr_add(b, sW1, f"s{sT}"); ptr_add(b, sW3, f"s{sT}")
    b.e(f"s_sub_u32 s{sT2}, {512*3584}, s{sT}\ns_cmp_lt_u32 s{sHead}, 28\ns_cselect_b32 s{sT2}, s{sT2}, 0")
    srd_fin(b, sW1, f"s{sT2}"); srd_fin(b, sW3, f"s{sT2}")
    xg = xdma(0); wg = wdma(0)
    for g in (xg[0], xg[1], wg[0], xg[2], xg[3], wg[1]): emit_grp(b, g)
    b.e(f"s_lshl_b32 s{sT}, s{sHead}, 8"); ptr_add(b, sWQ, f"s{sT}"); b.e(f"s_sub_u32 s{sT2}, 0x400000, s{sT}")
    srd_fin(b, sWQ, f"s{sT2}")
    for g in wdma(1): emit_grp(b, g)
    c = Block(); c.name = "setup2"
    c.e(f"s_lshl_b32 s{sT}, s{sHead}, 19"); ptr_add(c, sK, f"s{sT}"); ptr_add(c, sV, f"s{sT}")
    srd_fin(c, sK, 0x80000); srd_fin(c, sV, 0x80000)
    ptr_add(c, sB, WS_B); ptr_add(c, sH, WS_B); srd_fin(c, sB, 128 * BSTRIDE)
    c.e(f"s_cmp_lt_u32 s{sHead}, 28\ns_cselect_b32 s{sT2}, {128*BSTRIDE}, 0"); srd_fin(c, sH, f"s{sT2}")
    srd_fin(c, sWS, 0x28000); srd_fin(c, sDBG, 256); srd_fin(c, sOut, 0x200000)
    srd_fin(c, sWO, 0 if OPT.get("noA") else 4096 * 1024); srd_fin(c, sW2, 1792 * 1024)
    c.e(f"v_bfe_u32 v{vi2}, v0, 2, 2\nv_and_b32 v{vi3}, 3, v0")
    c.e(f"v_lshl_add_u32 v{T0}, v{vg}, 3, v{vi2}\nv_lshlrev_b32 v{T1}, 8, v{T0}\nv_lshl_add_u32 v{T1}, v{vi3}, 4, v{T1}\nv_add_u32 v{T1}, {L_SP}, v{T1}\nv_xor_b32 v{T3}, s{sWave}, v{vi2}")
    for i in range(4): c.e(f"v_xor_b32 v{T2}, {i}, v{T3}\nv_lshl_add_u32 v{vWQA+i}, v{T2}, 6, v{T1}")
    c.e(f"v_lshlrev_b32 v{T1}, 7, v{T0}\nv_lshl_add_u32 v{T1}, v{vi3}, 3, v{T1}\nv_add_u32 v{T1}, {L_V}, v{T1}")
    c.e(f"v_and_b32 v{T3}, 1, v{vg}\nv_lshlrev_b32 v{T3}, 1, v{T3}\nv_lshrrev_b32 v{T4}, 1, v{vi2}\nv_or_b32 v{T3}, v{T3}, v{T4}\nv_xor_b32 v{T3}, s{sWave}, v{T3}")
    for i in range(4): c.e(f"v_xor_b32 v{T2}, {i}, v{T3}\nv_lshl_add_u32 v{vW13A+i}, v{T2}, 5, v{T1}")
    c.e(f"v_xor_b32 v{T0}, v{vg}, v{vc}\nv_lshlrev_b32 v{T1}, 8, v{vc}\nv_add_u32 v{T3}, s{sW16k}, v{T1}\ns_lshl_b32 s{sT}, s{sWave}, 2")
    for i in range(4): c.e(f"v_xor_b32 v{T2}, {4*i}, v{T0}\nv_lshl_add_u32 v{vXA+i}, v{T2}, 4, v{T3}\nv_xor_b32 v{T2}, s{sT}, v{T2}\nv_lshl_add_u32 v{vKA+i}, v{T2}, 4, v{T1}")
    c.e(f"v_lshl_add_u32 v{T0}, v{vg}, 2, v{vi2}\nv_lshlrev_b32 v{T1}, 8, v{T0}\nv_lshl_add_u32 v{T1}, v{vi3}, 3, v{T1}\nv_add_u32 v{T1}, {L_V}, v{T1}\nv_and_b32 v{T0}, 7, v{T0}")
    for dt in range(8): c.e(f"v_xor_b32 v{T2}, {dt}, v{T0}\nv_lshl_add_u32 v{vVA+dt}, v{T2}, 5, v{T1}")
    c.e(f"v_lshlrev_b32 v{T1}, 8, v{vg}\nv_xor_b32 v{T0}, v{vg}, v{vc}")
    for p in range(4): c.e(f"v_xor_b32 v{T2}, {4*p}, v{T0}\nv_lshl_add_u32 v{vDK+p}, v{T2}, 4, v{T1}")
    c.e(f"v_lshlrev_b32 v{T0}, 1, v{vg}\nv_xor_b32 v{T0}, v{T0}, v{vc}")
    for p in range(2): c.e(f"v_xor_b32 v{T2}, {8*p}, v{T0}\nv_lshl_add_u32 v{vDV+p}, v{T2}, 4, v{T1}")
    c.e(f"v_mov_b32 v{T0}, 0x3f803f80")
    for i in range(4): c.e(f"v_accvgpr_write_b32 a{aONES+i}, v{T0}")
    c.e(f"s_lshl_b32 s{sT}, s{sQb}, 5\nv_and_b32 v51, 7, v0\nv_lshlrev_b32 v51, 5, v51\ns_cmp_eq_u32 s{sFB}, 0\ns_cselect_b32 s{sT}, s{sT}, {OOB}")
    c.e(f"v_mov_b32 v{T0}, {OOB}\nv_mov_b32 v{T1}, s{sT}\nv_cmp_eq_u32 vcc, 0, v0\nv_mov_b32 v49, 1\nv_cndmask_b32 v48, v{T0}, v{T1}, vcc")
    c.e(f"s_lshl_b32 s{sT}, s{sQb}, 5\ns_add_u32 s{sT}, s{sT}, s{sHead}\ns_lshl_b32 s{sT}, s{sT}, 7\ns_add_u32 s{sT}, s{sT}, {WS_FH}\ns_cmp_eq_u32 s{sFB}, 0\ns_cselect_b32 s{sT}, s{sT}, {OOB >> 1}")
    c.e(f"v_lshl_add_u32 v{T1}, v0, 15, s{sT}\nv_mov_b32 v{T2}, 0")
    c.e(f"buffer_store_dword v{T2}, v{T1}, {SR(sWS)}, 0 offen sc1")
    c.e(f"s_lshr_b32 s{sT}, s{sXb}, 7\nv_lshlrev_b32 v52, 3, v{vc}\nv_add_u32 v52, s{sT}, v52")
    c.e(f"s_lshl_b32 s{sT}, s{sWave}, 7\nv_lshlrev_b32 v54, 4, v{vg}\nv_add_u32 v54, s{sT}, v54\nv_add_u32 v54, {L_K+32768}, v54")
    for i in range(4): c.e(f"v_mov_b32 v{vZ+i}, 0")
    c.wait(vm="SR")
    X = 72
    for r in range(2):
        for k in range(4): c.e(f"v_lshlrev_b32 v{X+8*r+2*k}, 16, v{64+4*r+k}\nv_and_b32 v{X+8*r+2*k+1}, 0xffff0000, v{64+4*r+k}")
    def wred():
        for sh in (8, 4, 2, 1):
            c.e("s_nop 0")
            for r in range(2): c.e(f"v_add_f32_dpp v{90+r}, v{90+r}, v{90+r} row_ror:{sh} row_mask:0xf bank_mask:0xf")
        for sw in ("16", "32"):
            for r in range(2): c.e(f"v_mov_b32 v{92+r}, v{90+r}")
            for r in range(2): c.e(f"v_permlane{sw}_swap_b32 v{92+r}, v{90+r}")
            for r in range(2): c.e(f"v_add_f32 v{90+r}, v{90+r}, v{92+r}")
        for r in range(2): c.e(f"v_mul_f32 v{90+r}, {f32(1/512)}, v{90+r}")
    for k in range(7):
        for r in range(2): c.e(f"v_add_f32 v{90+r}, v{X+8*r+k+1}, v{(X+8*r) if k == 0 else (90+r)}")
    wred()
    for r in range(2): c.e(f"v_mov_b32 v{94+r}, v{90+r}")
    for k in range(8):
        for r in range(2): c.e(f"v_sub_f32 v{X+8*r+k}, v{X+8*r+k}, v{94+r}")
    for k in range(8):
        for r in range(2): c.e(f"v_mul_f32 v{90+r}, v{X+8*r}, v{X+8*r}" if k == 0 else f"v_fmac_f32 v{90+r}, v{X+8*r+k}, v{X+8*r+k}")
    wred()
    def rnd(r): c.e(f"v_cvt_pk_bf16_f32 v{r}, v{r}, v{r}\nv_and_b32 v{r}, 0xffff0000, v{r}")
    for r in range(2): rnd(94 + r); rnd(90 + r)
    for r in range(2): c.e(f"v_add_f32 v{90+r}, {f32(1e-5)}, v{90+r}"); rnd(90 + r)
    for r in range(2): c.e(f"v_sqrt_f32 v{90+r}, v{90+r}")
    for r in range(2): rnd(90 + r)
    c.e("v_mov_b32 v96, v94\nv_mul_f32 v97, v90, v90\nv_mov_b32 v98, v95\nv_mul_f32 v99, v91, v91")
    c.e(f"s_lshl_b32 s{sT}, s{sCnt}, 4\nv_mov_b32 v{T1}, s{sT}\nv_cmp_eq_u32 vcc, 0, v{vl}\nv_cndmask_b32 v{T1}, v{T0}, v{T1}, vcc")
    c.e(f"buffer_store_dwordx4 v[96:99], v{T1}, {SR(sWS)}, 0 offen sc1", tag="ST")
    first_reads, proj, hleft = gen_proj()
    c.wait(vm="DX0"); c.ext(xreads(0)); c.wait(vm="DW0"); c.e("s_barrier"); c.ext(first_reads); c.wait(lgkm="W0")
    stamp(c, "p0")
    e = Block(); e.name = "projepi"
    stamp(e, "projend")
    e.ext(hleft)
    CS = 192
    for i in range(4): e.e(f"v_xor_b32 v{48+i}, {128*i}, v30")
    for i in range(4):
        for hf in range(2): e.e(f"ds_read_b128 {V(CS+8*i+4*hf,4)}, v{48+i} offset:{64*hf}", tag="CQ")
    for t in range(4): e.e(f"v_mov_b32 v{224+2*t}, v{vNMU+t}\nv_mov_b32 v{225+2*t}, v{vAQ+t}")
    e.wait(lgkm="CQ")
    for t in range(4):
        for ds in range(4):
            d = Q(t, ds); h = 232 + 4 * (ds & 1); st = V(224 + 2 * t, 2)
            for k in range(4): e.e(f"v_accvgpr_read_b32 v{h+k}, a{128+(t*4+ds)*4+k}")
            prs = [(d, CS + 8 * ds), (d + 2, CS + 8 * ds + 2), (h, CS + 8 * ds + 4), (h + 2, CS + 8 * ds + 6)]
            for x, cs in prs: e.e(f"v_pk_fma_f32 {V(x,2)}, {V(cs,2)}, {st}, {V(x,2)} op_sel_hi:[1,0,1]")
            for x, cs in prs: e.e(f"v_pk_mul_f32 {V(x,2)}, {V(x,2)}, {st} op_sel:[0,1] op_sel_hi:[1,1]")
            for k, (x, cs) in enumerate(prs): e.e(f"v_cvt_pk_bf16_f32 v{d+k}, v{x}, v{x+1}")
    e.e(f"s_cmp_lg_u32 s{sFB}, 0\ns_cbranch_scc1 L_truemax")
    e2 = Block(); e2.name = "premax"
    for t in range(4): e2.ext(qk_chain(t, 0, "0"))
    def rowmax_finish(blk, src):
        for sw in ("32", "16"):
            for t in range(4): blk.e(f"v_mov_b32 v{vT+t}, v{src(t)}")
            for t in range(4): blk.e(f"v_permlane{sw}_swap_b32 v{vT+t}, v{src(t)}")
            for t in range(4): blk.e(f"v_max_f32 v{src(t) if sw == '32' else vT+t}, v{src(t)}, v{vT+t}")
        for t in range(4):
            for r in range(4): blk.e(f"v_sub_f32 v{vNM+4*t+r}, 0, v{vT+t}")
    for t in range(4):
        s0 = vS + 4 * t
        e2.e(f"v_max3_f32 v{s0}, v{s0}, v{s0+1}, v{s0+2}\nv_max_f32 v{s0}, v{s0}, v{s0+3}")
    rowmax_finish(e2, lambda t: vS + 4 * t)
    first, even, odd, last = gen_attention()
    l0 = Block(); l0.e(f"L_att_start:\ns_mov_b32 s{sCnt}, 7\ns_mov_b32 s{sTW}, 0\ns_mov_b32 s{sT2W}, 0")
    l0.e(f"s_lshr_b32 s{sT}, s2, 3\ns_mul_i32 s{sT2}, s{sT}, {14*1024}\ns_lshl_b32 s{sT}, s{sT}, 15\ns_lshl_b32 s3, s{sSp}, 20\ns_add_u32 s{sT}, s{sT}, s3\ns_mul_i32 s3, s{sSp}, {448*1024}\ns_add_u32 s{sT2}, s{sT2}, s3")
    l0.e(f"v_and_b32 v28, 15, v0\nv_lshrrev_b32 v29, 6, v0\nv_lshl_add_u32 v28, v29, 4, v28\nv_bfe_u32 v29, v0, 4, 2\nv_lshlrev_b32 v29, 29, v29\nv_lshl_add_u32 v28, v28, 7, v29\nv_add_u32 v30, s{sT}, v28\nv_add_u32 v29, s{sT2}, v28")
    stamp(l0, "att0")
    l1 = Block(); stamp(l1, "loop")
    l1b = Block(); l1b.e(".p2align 6\nL_att_loop:")
    l2 = Block(); l2.e(f"s_cmp_eq_u32 s{sCnt}, 0\ns_cbranch_scc1 L_att_last\ns_cmp_eq_u32 s{sCnt}, 7\ns_cbranch_scc0 L_att_odd")
    l2b = Block(); l2b.e("L_att_odd:")
    l3 = Block(); l3.e(f"s_sub_u32 s{sCnt}, s{sCnt}, 1")
    l3b = Block(); l3c = Block()
    if OPT.get("c2", 1):
        l3.e(f"s_cmp_eq_u32 s{sCnt}, {OPT.get('c2trip', 1)}\ns_cbranch_scc0 L_att_loop")
        l3b.e(f"s_getpc_b64 s[100:101]\nL_pc2:\ns_lshr_b32 s{sT}, s2, 3\ns_lshl_b32 s{sT}, s{sT}, 2\ns_add_u32 s{sT}, s{sT}, s{sWave}\ns_lshl_b32 s{sT}, s{sT}, 8")
        l3b.e(f"v_and_b32 v{vT}, 1, v0\nv_lshl_add_u32 v{vT}, v{vT}, 7, s{sT}\nv_min_u32 v{vT}, L_end-L_pc2, v{vT}\nv_mov_b32 v{vT+1}, s101")
        l3b.e(f"v_add_co_u32 v{vT}, vcc, s100, v{vT}\nv_addc_co_u32 v{vT+1}, vcc, 0, v{vT+1}, vcc\nglobal_load_dword v{vT+5}, v[{vT}:{vT+1}], off")
        if OPT.get("w2touch"):
            l3b.e(f"s_lshr_b32 s{sT}, s2, 3\ns_mul_i32 s{sT}, s{sT}, {56*1024}\ns_lshl_b32 s{sT2}, s{sCt}, 7\ns_sub_u32 s{sT}, s{sT}, s{sT2}\nv_lshl_add_u32 v{vT+2}, v0, 7, s{sT}")
            l3b.e(f"v_min_u32 v{vT+3}, 191, v0\nv_lshl_add_u32 v{vT+3}, v{vT+3}, 7, s{sT}\nv_add_u32 v{vT+3}, 0x8000, v{vT+3}")
            l3b.e(f"buffer_load_dword v{vT+6}, v{vT+2}, {SR(sW2)}, 0 offen\nbuffer_load_dword v{vT+7}, v{vT+3}, {SR(sW2)}, 0 offen")
    l3c.e("s_branch L_att_loop")
    l4 = Block(); l4.e("L_att_last:"); stamp(l4, "last")
    if OPT.get("loopstamp"):
        l1b.e(f"s_memtime s[96:97]\ns_mov_b32 m0, s{sCnt}\ns_waitcnt lgkmcnt(0)\nv_writelane_b32 v31, s96, m0")
        for i in range(8): l4.e(f"v_readlane_b32 s{74+2*i}, v31, {7-i}\nv_readlane_b32 s{75+2*i}, v31, {7-i}")
    ft = Block(); ft.name = "ft"
    ft.e(f"s_lshl_b32 s{sT}, s{sQb}, 5\ns_add_u32 s{sT}, s{sT}, s{sHead}\ns_lshl_b32 s{sT}, s{sT}, 7\ns_add_u32 s{sT}, s{sT}, {WS_FH}")
    ft.e(f"v_lshl_add_u32 v{vT+1}, v0, 18, s{sT}\nv_mov_b32 v{vT+2}, 1")
    ft.e(f"buffer_store_dword v{vT+2}, v{vT+1}, {SR(sWS)}, 0 offen sc1")
    f = Block(); f.name = "check"
    stamp(f, "attend")
    for n in range(16): f.add(MF(A(aCHK, 4), V(vZ, 4), V(128 + 4 * n, 4), "0" if n == 0 else A(aCHK, 4)))
    vRL = vNM
    f.e(f"s_mov_b32 s{sT}, {f32(2.0**100)}")
    f.e(f"v_max3_f32 v{vT}, v{vRL+4}, v{vRL+5}, v{vRL+6}\nv_max_f32 v{vT}, v{vT}, v{vRL+7}\nv_accvgpr_read_b32 v{vT+1}, a{aCHK}")
    f.e(f"v_add_f32 v{vT}, v{vT}, v{vT+1}\nv_cmp_nlt_f32 vcc, v{vT}, s{sT}")
    f.e(f"s_cmp_lg_u64 vcc, 0\ns_cselect_b32 s{sT}, 1, 0")
    E = OPT["early"]; assert 4 <= E <= 7
    f.e(f"v_mov_b32 v{vT}, s{sT}\nv_and_b32 v{vT+1}, 3, v0\nv_lshlrev_b32 v{vT+1}, 12, v{vT+1}\ns_add_u32 s{sT}, s{sWave}, {7*4096}\ns_lshl_b32 s{sT}, s{sT}, 2\nv_add_u32 v{vT+1}, s{sT}, v{vT+1}")
    f.e(f"ds_write_b32 v{vT+1}, v{vT}", tag="VW"); f.e(f"s_add_u32 s{sT}, s{sM}, {7*16384}\nv_mov_b32 v{vT+1}, s{sT}")
    if OSTORES: emit_grp(f, OSTORES.pop(0))
    f.e(f"s_lshl_b32 s{sT}, s{sWave}, 6\ns_or_b32 s{sT}, s{sT}, {L_V}\ns_and_b32 s{sT2}, s{sTr}, 1\ns_lshl_b32 s{sT2}, s{sT2}, 12")
    for v in range(2): f.e(f"v_xor_b32 v{vRAs+v}, s{sT}, v{vVA+v}")
    for st in (1, 2):
        for v in range(2): f.e(f"v_add_u32 v{vRAs+2*st+v}, {st*65536}, v{vRAs+v}")
    for st in range(3):
        for v in range(2): f.e(f"v_xor_b32 v{vRAg+4*st+v}, s{sT2}, v{vRAs+2*st+v}\nv_xor_b32 v{vRAg+4*st+2+v}, 0x1000, v{vRAg+4*st+v}")
        f.e(f"v_add_u32 v{vRB[st]}, {st*65536}, v{vL16}")
    f.wait(lgkm="VW", vm=["U0", "U1", "U2", "U3"]); f.e("s_barrier")
    f.e(f"ds_read_b128 {V(vT+4,4)}, v{vT+1}", tag="FL")
    f.ext(r_Ag(0) + r_Bg(0, 0) + r_Bg(0, 1))
    f.wait(lgkm="FL")
    f.e(f"v_or_b32 v{vT+4}, v{vT+4}, v{vT+5}\nv_or3_b32 v{vT+4}, v{vT+4}, v{vT+6}, v{vT+7}\nv_readfirstlane_b32 s{sT}, v{vT+4}")
    f.e(f"s_andn2_b32 s{sT}, s{sT}, s{sFB}\ns_cmp_lg_u32 s{sT}, 0\n" + ("" if OPT.get("nofb") else "s_cbranch_scc1 L_fallback"))
    k = Block(); k.name = "tail"
    stamp(k, "tail0")
    sXW, sXR, sOo = sW16k, sW8k, sQ0
    su = II(f"""s_lshl_b32 s{sT}, s{sQb}, 5
s_add_u32 s{sT}, s{sT}, s{sHead}
s_lshl_b32 s{sT}, s{sT}, 7
s_add_u32 s{sT}, s{sT}, {WS_FO}
v_lshl_add_u32 v26, v0, 18, s{sT}
v_mov_b32 v25, 1
v_add_u32 v20, {WS_FG-WS_FO}, v26
v_add_u32 v21, {WS_FS-WS_FO}, v26
v_and_b32 v{vPA}, 7, v0
s_lshr_b32 s{sT}, s{sTr}, 1
s_lshl_b32 s{sT}, s{sT}, 2
s_add_u32 s{sT}, s{sT}, s{sSp}
s_lshl_b32 s{sT}, s{sT}, 10
s_add_u32 s{sT}, s{sT}, {WS_FO}
v_lshl_add_u32 v{vPA}, v{vPA}, 7, s{sT}
s_lshl_b32 s{sT}, s{sQb}, 5
s_and_b32 s3, s{sHead}, 7
s_add_u32 s{sT}, s{sT}, s3
s_lshl_b32 s{sT}, s{sT}, 7
s_add_u32 s{sT}, s{sT}, {WS_FG}
v_and_b32 v28, 3, v0
v_lshlrev_b32 v27, 4, v28
v_lshl_add_u32 v28, v28, 10, s{sT}
s_xor_b32 s3, s{sSp}, 3
s_lshl_b32 s3, s3, 10
s_add_u32 s{sT}, s{sT}, s3
s_add_u32 s{sT}, s{sT}, {WS_FS-WS_FG}
v_mov_b32 v29, s{sT}
v_bfe_u32 v24, v0, 2, 4
v_lshl_add_u32 v27, v24, 10, v27
s_add_u32 s{sXP}, s{sWS}, {WS_X}
s_addc_u32 s{sXP+1}, s{sWS+1}, 0
s_mov_b32 s{sXP+2}, 0x1000000
s_lshl_b32 s{sT}, s{sTr}, 2
s_add_u32 s{sT}, s{sT}, s{sTc}
s_lshl_b32 s{sT}, s{sT}, 2
s_add_u32 s{sT}, s{sT}, s{sSp}
s_lshl_b32 s{sT}, s{sT}, 16
s_lshl_b32 s{sXR}, s{sWave}, 11
s_add_u32 s{sXR}, s{sXR}, s{sT}""")
    for lam in range(4):
        su += II(f"""s_xor_b32 s{sT}, s{sSp}, {lam}
s_and_b32 s3, s{sT}, 2
s_add_u32 s{sT}, s{sT}, s3
s_lshl_b32 s{sT}, s{sT}, 1
s_add_u32 s{sT}, s{sT}, s{sQ0}""")
        if lam == 0: su += II(f"s_lshl_b32 s{sXW}, s{sT}, 14")
        su += II(f"""s_lshr_b32 s3, s{sWave}, 1
s_add_u32 s{sT}, s{sT}, s3
s_mul_i32 s{sBs[lam]}, s{sT}, {BSTRIDE}
s_and_b32 s3, s{sWave}, 1
s_lshl_b32 s3, s3, 12
s_add_u32 s{sBs[lam]}, s{sBs[lam]}, s3
s_lshl_b32 s3, s{sSp}, 15
s_add_u32 s{sBs[lam]}, s{sBs[lam]}, s3""")
    su += II(f"""s_lshl_b32 s3, s{sTc}, 8
s_add_u32 s{sOo}, s{sXW}, s3
s_lshl_b32 s3, s{sWave}, 6
s_add_u32 s{sOo}, s{sOo}, s3
s_add_u32 s{sXW}, s{sOo}, 16384""")
    nU = E
    for n in range(E, min(E + 2, 10)): emit_grp(k, udma(n)); nU = n + 1
    k.ext(su)
    ldf = f"buffer_load_dword v{vPoll}, v{vPA}, {SR(sWS)}, 0 offen sc1"
    allset = f"v_cmp_eq_u32 vcc, 0, v{vPoll}\ns_nop 0\ns_cmp_eq_u64 vcc, 0"
    polled = False
    def take(limit):
        nonlocal nU
        r = []
        while nU < min(limit, len(UNITS)) and (polled or UNITS[nU][0] != "Bs"): r.append(udma(nU)); nU += 1
        return r
    for i in range(7):
        stamp(k, f"g{i}")
        u0 = 4 * i
        if i > 0:
            vm = [f"U{u0+m}" for m in range(4)]
            if i == OPT["flagstage"]: assert not OSTORES; vm.append("OS")
            if i == OPT["pollstage"] + 1: vm.append("PF")
            k.wait(vm=vm); k.e("s_barrier")
            k.ext(r_Ag(i) + r_Bg(i, 0) + r_Bg(i, 1))
            if i == OPT["flagstage"]: k.e(f"buffer_store_dword v25, v26, {SR(sWS)}, 0 offen sc1")
            if i == OPT["pollstage"]: k.add(Ins(ldf, tag="PF"))
            if i == OPT["pollstage"] + 1:
                k.ext(poll_check("o", vPoll, ldf, allset)); polled = True; stamp(k, "polled")
        grp = take(u0 + 10)
        if i > 0 and grp: emit_grp(k, grp.pop(0))
        os_ = [OSTORES.pop(0) for _ in range(min(OPT["osg"], len(OSTORES)))]
        mix = []
        while grp or os_:
            if os_: mix.append(os_.pop(0))
            if grp: mix.append(grp.pop(0))
        tl = TL()
        for j in range(8):
            for v in ((0, 1) if j % 2 == 0 else (1, 0)):
                d = V(ACG(j, v), 4)
                for m, ks in enumerate((0, 1) if v == 0 else (1, 0)):
                    tl.add(MF(d, V(AG(v, ks), 4), V(BG(j, ks), 4), "0" if (i == 0 and m == 0) else d))
        k.wait(lgkm="RB0")
        for j in range(1, 8): tl.scal_at(4 * j - 1, W(lgkm=f"RB{j}"))
        tl.scal_at(31, W(lgkm="RS"))
        for j in range(2, 8):
            for m, x in enumerate(r_Bg(i, j)): tl.vec_at(2 * (j - 2) + m, x)
        tl.vec_in(8, 25, r_As(2 * i) + r_As(2 * i + 1))
        if mix: tl.spread(2, 28, mix)
        k.ext(tl.emit(0, 32, "x").ins)
    assert polled
    stamp(k, "gend")
    k.wait(vm=["U28", "U29", "U30"]); k.e("s_barrier")
    k.ext(r_Bs(0)); k.ext(r_As(14) + r_As(15))
    for g in take(38): emit_grp(k, g)
    def pack(src, dst): return II("\n".join(f"v_cvt_pk_bf16_f32 v{dst+r}, v{src+2*r}, v{src+2*r+1}" for r in range(8)))
    def xst(which, lam, reg, tag):
        return (II(f"s_xor_b32 s{sCnt}, s{sXR}, {lam*65536 + (which*4+lam)*8192}"),
                [Ins(f"buffer_store_dwordx4 {V(reg+4*m,4)}, v{vL16}, {SR(sXP)}, s{sCnt} offen offset:{m*1024} sc1", tag=tag) for m in range(2)], [])
    def xld(which, lam, reg, tag):
        return (II(f"s_add_u32 s{sCnt}, s{sXR}, {(which*4+lam)*8192}"),
                [Ins(f"buffer_load_dwordx4 {V(reg+4*m,4)}, v{vL16}, {SR(sXP)}, s{sCnt} offen offset:{m*1024} sc1", tag=tag) for m in range(2)], [])
    for lam in (1, 2, 3): k.ext(pack(ACG(2 * lam, 0), ACG(2 * lam, 0)))
    k.wait(lgkm="RS")
    stamp(k, "s0")
    ld1_ = f"buffer_load_dword v{vPoll}, v28, {SR(sWS)}, 0 offen sc1"
    ld2_ = f"buffer_load_dword v{vPoll}, v29, {SR(sWS)}, 0 offen sc1"
    F1, F2 = OPT["f1stage"], OPT["f2stage"]
    PK = lambda lam: ACG(2 * lam, 0) + 8
    IN = lambda which, lam: ACG(2 * lam, 0) + (0 if which else 8)
    for i in range(16):
        stamp(k, f"s{i+1}" if i else "none")
        tl = TL()
        for e_ in range(2):
            for v in ((0, 1) if e_ == 0 else (1, 0)):
                d = V(ACS(i, e_, v), 4)
                for m, ks in enumerate(range(8) if v == 0 else range(7, -1, -1)):
                    tl.add(MF(d, A(AS(v, (i & 3) * 8 + ks), 4), V(BS(i, e_, ks), 4), "0" if (i & 3 == 0 and m == 0) else d))
        grp = []; vm = []
        if i < 15: vm.append(f"U{31+i}")
        if i == F1: vm.append("X1"); grp.append(([], II(f"buffer_store_dword v25, v20, {SR(sWS)}, 0 offen sc1"), []))
        if i == F2: vm.append("X2"); grp.append(([], II(f"buffer_store_dword v25, v21, {SR(sWS)}, 0 offen sc1"), []))
        if vm: tl.scal_at(0, W(vm=vm)); tl.scal_at(1, Ins("s_barrier"))
        if i < 15:
            tl.scal_at(31, W(lgkm=f"R{i+1}")); tl.vec_in(2, 22, r_Bs(i + 1))
        if i in (4, 8, 12):
            lam = i // 4
            left = tl.stream(5, 16, pack(ACS(i - 1, 0, 0), PK(lam))); assert not left
            tl.spread(18, 22, [xst(0, lam, PK(lam), "X2" if lam == 3 else "X1")])
        else:
            grp += take(41 + i)
            if 1 <= i <= 3: grp.append(xst(1, i, ACG(2 * i, 0), "X1"))
        if i == F1 + 1: grp.append(([], II(f"buffer_load_dwordx4 v[2:5], v27, {SR(sX)}, s{sOo} offen\nbuffer_load_dwordx4 v[6:9], v27, {SR(sX)}, s{sXW} offen", tag="XL"), []))
        if i == 13: grp.append(([], [Ins(ld1_, tag="P1")], []))
        if i == 15:
            g = tl.g[3]; g.vec += [W(vm="P1")] + poll_check("x1", vPoll, ld1_, allset); g.load += 2
            if grp: tl.spread(2, 2, grp)
            tl.spread(6, 28, [xld(1, 1, IN(1, 1), "IG"), xld(1, 2, IN(1, 2), "IG"), xld(1, 3, IN(1, 3), "IG"), xld(0, 1, IN(0, 1), "IS"), xld(0, 2, IN(0, 2), "IS")])
        elif grp: tl.spread(4, 28, grp)
        k.ext(tl.emit(0, 32, "x").ins)
    assert nU == len(UNITS)
    stamp(k, "send")
    k.add(Ins(ld2_, tag="P2"))
    k.e(f"v_and_b32 v10, 15, v0\nv_bfe_u32 v11, v0, 4, 2\nv_and_b32 v12, 7, v0\nv_xor_b32 v11, v11, v12\nv_lshlrev_b32 v10, 7, v10\nv_lshl_add_u32 v10, v11, 4, v10\nv_add_u32 v10, s{sM}, v10\nv_xor_b32 v11, 64, v10")
    k.e(f"v_and_b32 v12, 3, v0\nv_lshlrev_b32 v12, 1, v12\nv_bfe_u32 v13, v0, 2, 3\nv_xor_b32 v12, v12, v13\nv_bfe_u32 v13, v0, 2, 4\nv_lshlrev_b32 v13, 7, v13\nv_lshl_add_u32 v12, v12, 4, v13\nv_add_u32 v12, s{sM}, v12\nv_xor_b32 v13, 16, v12")
    def addin(acc, src, tmp=64):
        for r in range(8): k.e(f"v_lshlrev_b32 v{tmp+2*r}, 16, v{src+r}\nv_and_b32 v{tmp+2*r+1}, 0xffff0000, v{src+r}")
        for r in range(0, 16, 2): k.e(f"v_pk_add_f32 {V(acc+r,2)}, {V(acc+r,2)}, {V(tmp+r,2)}")
    G0, S0 = ACG(0, 0), ACS(15, 0, 0)
    for r in range(8): k.e(f"v_lshlrev_b32 v{96+2*r}, 16, v{2+r}\nv_and_b32 v{97+2*r}, 0xffff0000, v{2+r}")
    k.wait(vm="IG")
    for lam in (1, 2, 3): addin(G0, IN(1, lam))
    k.wait(vm="P2"); k.ext(poll_check("x2", vPoll, ld2_, allset))
    stamp(k, "spolled")
    emit_grp(k, xld(0, 3, IN(0, 3), "I3"))
    for r in range(16): k.e(f"v_mul_f32 v{80+r}, {f32(-LOG2E)}, v{G0+r}")
    for r in range(16): k.e(f"v_exp_f32 v{80+r}, v{80+r}")
    for r in range(16): k.e(f"v_add_f32 v{80+r}, 1.0, v{80+r}")
    for r in range(16): k.e(f"v_rcp_f32 v{80+r}, v{80+r}")
    for lam in (1, 2): addin(S0, IN(0, lam))
    for r in range(0, 16, 2): k.e(f"v_pk_mul_f32 {V(G0+r,2)}, {V(G0+r,2)}, {V(80+r,2)}")
    k.wait(vm="I3"); addin(S0, IN(0, 3))
    for r in range(0, 16, 2): k.e(f"v_pk_mul_f32 {V(S0+r,2)}, {V(S0+r,2)}, {V(G0+r,2)}")
    for e_ in range(2):
        for v in range(2): k.e(f"ds_write_b128 v{10+v}, {V(S0+(e_*2+v)*4,4)} offset:{e_*2048}")
    for e_ in range(2):
        for m in range(2): k.e(f"ds_read_b128 {V(64+e_*8+m*4,4)}, v{12+m} offset:{e_*2048}", tag=f"T{e_}")
    for e_ in range(2):
        k.wait(lgkm=f"T{e_}")
        for r in range(0, 8, 2): k.e(f"v_pk_add_f32 {V(96+8*e_+r,2)}, {V(96+8*e_+r,2)}, {V(64+8*e_+r,2)}")
        for r in range(4): k.e(f"v_cvt_pk_bf16_f32 v{112+4*e_+r}, v{96+8*e_+2*r}, v{97+8*e_+2*r}")
        k.e(f"buffer_store_dwordx4 {V(112+4*e_,4)}, v27, {SR(sOut)}, s{sXW if e_ else sOo} offen")
    z = Block(); z.name = "end"
    if OPT["stamp"]:
        z.e("s_waitcnt vmcnt(0) lgkmcnt(0)"); stamp(z, "end")
        z.e(f"s_load_dwordx2 s[96:97], s[0:1], 88\ns_waitcnt lgkmcnt(0)"); ptr_add(z, 96, 0x8000000 + 0x40000); srd_fin(z, 96, 0x40000)
        for i in range(20): z.e(f"v_mov_b32 v{36+i}, s{72+i}")
        z.e(f"s_lshl_b32 s92, s2, 2\ns_add_u32 s92, s92, s{sWave}\ns_lshl_b32 s92, s92, 7\nv_mov_b32 v2, s92\ns_mov_b64 exec, 1")
        for i in range(5): z.e(f"buffer_store_dwordx4 {V(36+4*i,4)}, v2, s[96:99], 0 offen offset:{16*i}")
    z.e("L_end:\ns_endpgm")
    fb = Block(); fb.name = "fb"
    fb.e(f"L_fallback:\ns_mov_b32 s{sFB}, 1\ns_waitcnt vmcnt(0) lgkmcnt(0)\ns_barrier\ns_branch L_restart")
    m0 = Block(); m0.name = "tm0"
    m0.e(f"L_truemax:\ns_mov_b32 s{sKo}, s{sW8k}\ns_mov_b32 s{sCnt}, 16")
    for t in range(4): m0.e(f"v_mov_b32 v{vNM+4*t}, 0xff800000")
    m0.e("s_waitcnt vmcnt(0) lgkmcnt(0)")
    m1 = Block(); m1.name = "tm1"
    m1.e("L_tm_loop:\ns_barrier")
    emit_grp(m1, dma_K(0, 0, "DK")); emit_grp(m1, dma_K(1, 0, "DK"))
    m1.e("s_waitcnt vmcnt(0)\ns_barrier")
    for g in range(8):
        m1.ext(kreads(g, 0, 0, "K0")); m1.e("s_waitcnt lgkmcnt(0)")
        for t in range(4): m1.ext(qk_chain(t, 0, "0"))
        for t in range(4):
            s0 = vS + 4 * t
            m1.e(f"v_max3_f32 v{vNM+4*t}, v{vNM+4*t}, v{s0}, v{s0+1}\nv_max3_f32 v{vNM+4*t}, v{vNM+4*t}, v{s0+2}, v{s0+3}")
    m1.e(f"s_sub_u32 s{sCnt}, s{sCnt}, 1\ns_cmp_lg_u32 s{sCnt}, 0\ns_cbranch_scc1 L_tm_loop")
    m2 = Block(); m2.name = "tm2"
    rowmax_finish(m2, lambda t: vNM + 4 * t)
    m2.e(f"s_mov_b32 s{sKo}, s{sW8k}\ns_barrier")
    emit_grp(m2, dma_K(0, 0, "DK")); emit_grp(m2, dma_K(1, 0, "DK"))
    m2.e(f"s_add_u32 s{sKo}, s{sKo}, 32768\ns_waitcnt vmcnt(0)\ns_barrier")
    m2.ext(kreads(0, 0, 0, "K0")); m2.e("s_waitcnt lgkmcnt(0)\ns_branch L_att_start")
    att = [l0, first, l1, l1b, even, l2, ft, l2b, odd, l3, l1b, even, l2, l2b, odd, l3, l3b, l3c, l1b, even, l2, l4, last, f]
    front = [b2, c, proj, e]
    vb = []
    finalize([[b_] + front + [e2] + att + [k, z], [b_] + front + [e2] + att + [fb] + front + [m0, m1, m1, m2] + att + [k, z]] + [[s] for s in SLOW], vb)
    check_groups([x for bb in [b_] + front + [e2] + att + [k, z] for x in bb.ins])
    for x in vb:
        if x[0].startswith("att") or x[0] == "proj": print("nop:", x, file=sys.stderr)
    layout = [b_, b2, c, proj, e, e2, l0, first, l1, l1b, even, l2, ft, l2b, odd, l3, l3b, l3c, l4, last, f, k, z, fb, m0, m1, m2] + SLOW
    return kernel_head(KN) + "\n".join(x.text() for x in layout) + "\n" + kernel_desc(KN, 512, 256)

def build():
    head = open("cdna_kernels/" + NAME + ".s.ref").read().split("; Override launch")[0]
    s = head + "; @launch grid=(256,1,1) block=(256,1,1) lds=163840\n" + '.amdgcn_target "amdgcn-amd-amdhsa--gfx950"\n'
    return s + gen_kernel()

if __name__ == "__main__":
    out = sys.argv[1] if len(sys.argv) > 1 else "cdna_kernels/" + NAME + ".s"
    for a in sys.argv[2:]:
        k, v = a.split("="); OPT[k] = eval(v)
    names = OPT.get("stamps", "p0,p4,projend,att0,loop,last,tail0,gend").split(",")
    STAMPS.update({n: i + 1 for i, n in enumerate(names)}); STAMPS["start"] = 0; STAMPS["end"] = 9
    open(out, "w").write(build())
```

```python
import re

TRANS = ("v_exp_f32", "v_log_f32", "v_rcp_f32", "v_rsq_f32", "v_sqrt_f32", "v_sin_f32", "v_cos_f32")
_rng = re.compile(r"^([vas])\[(\d+):(\d+)\]$")
_one = re.compile(r"^([vas])(\d+)$")

def regs_of(tok):
    tok = tok.strip()
    if tok.startswith("-"): tok = tok[1:]
    if tok.startswith("|") and tok.endswith("|"): tok = tok[1:-1]
    if tok.startswith("abs(") and tok.endswith(")"): tok = tok[4:-1]
    m = _rng.match(tok)
    if m: return [m.group(1) + str(i) for i in range(int(m.group(2)), int(m.group(3)) + 1)]
    m = _one.match(tok)
    if m: return [tok]
    if tok in ("vcc", "exec", "m0"): return [tok]
    if tok in ("vcc_lo", "vcc_hi"): return ["vcc"]
    if tok in ("exec_lo", "exec_hi"): return ["exec"]
    return []

def R(f, i, n=1):
    return f"{f}{i}" if n == 1 else f"{f}[{i}:{i+n-1}]"
def V(i, n=1): return R("v", i, n)
def A(i, n=1): return R("a", i, n)
def S(i, n=1): return R("s", i, n)

class Ins:
    def __init__(self, text, tag=None, waitfor=None):
        self.text = text.strip()
        self.tag = tag
        self.waitfor = waitfor
        self.parse()
    def parse(self):
        t = self.text.split(";")[0].strip()
        self.reads, self.writes = set(), set()
        self.srcC = set(); self.srcAB = set()
        self.kind = "other"; self.nstates = 1; self.wide_store_data = set()
        if not t or t.endswith(":") or t.startswith("."):
            self.kind = "label"; self.op = ""; self.nstates = 0; return
        parts = t.split(None, 1)
        op = self.op = parts[0]
        rest = parts[1] if len(parts) > 1 else ""
        rest = re.sub(r"\s+(op_sel|op_sel_hi|neg_lo|neg_hi):\[[^\]]*\]", "", rest)
        ops = [x.strip() for x in rest.split(",")] if rest else []
        mods = []
        if ops:
            l = ops[-1].split()
            if l:
                ops[-1] = l[0]; mods = l[1:]
        self.mods = mods
        rd = lambda xs: [self.reads.update(regs_of(x)) for x in xs]
        if op.startswith("v_mfma"):
            self.kind = "mfma"
            self.writes.update(regs_of(ops[0])); self.srcAB.update(regs_of(ops[1]) + regs_of(ops[2]))
            self.srcC.update(regs_of(ops[3])); rd(ops[1:4])
            self.passes = 4 if "16x16x32" in op else 8
        elif op.startswith("v_smfmac"):
            self.kind = "mfma"
            self.writes.update(regs_of(ops[0])); self.srcAB.update(regs_of(ops[1]) + regs_of(ops[2]) + regs_of(ops[3]))
            self.srcC.update(regs_of(ops[0])); rd(ops[0:4])
            self.passes = 8
        elif op.startswith("v_"):
            b = op.replace("_e32", "").replace("_e64", "").replace("_dpp", "").replace("_sdwa", "")
            self.kind = "trans" if b in TRANS else "valu"
            self.dpp = "_dpp" in op
            if b.startswith("v_cmp"):
                self.writes.update(regs_of(ops[0])); rd(ops[1:])
                if b.startswith("v_cmpx"): self.writes.add("exec")
            elif b.startswith("v_permlane") and "swap" in b:
                self.writes.update(regs_of(ops[0]) + regs_of(ops[1])); rd(ops[0:2]); self.permlane = True
            elif b in ("v_add_co_u32", "v_sub_co_u32", "v_addc_co_u32", "v_subb_co_u32"):
                self.writes.update(regs_of(ops[0]) + regs_of(ops[1])); rd(ops[2:])
            elif b == "v_nop":
                pass
            else:
                self.writes.update(regs_of(ops[0])); rd(ops[1:])
                if b.startswith("v_fmac") or b.startswith("v_dot2c") or self.dpp or b == "v_writelane_b32":
                    rd(ops[0:1])
        elif op.startswith("ds_read") or op.startswith("ds_bpermute") or op.startswith("ds_swizzle"):
            self.kind = "dsread"; self.writes.update(regs_of(ops[0])); rd(ops[1:])
        elif op.startswith("ds_"):
            self.kind = "dswrite"; rd(ops)
        elif op.startswith("buffer_load") or op.startswith("global_load"):
            if "lds" in mods or "_lds_" in op:
                self.kind = "dma"; rd(ops); self.reads.add("m0")
            else:
                self.kind = "vload"; self.writes.update(regs_of(ops[0])); rd(ops[1:])
        elif op.startswith("buffer_store") or op.startswith("global_store"):
            self.kind = "vstore"; rd(ops)
            if op.endswith("x4") or op.endswith("x3"):
                self.wide_store_data = set(regs_of(ops[0] if op.startswith("buffer") else ops[1]))
        elif op.startswith("buffer_atomic") or op.startswith("global_atomic"):
            rd(ops)
            if "sc0" in mods: self.kind = "vload"; self.writes.update(regs_of(ops[0]))
            else: self.kind = "vstore"
        elif op in ("buffer_wbl2", "buffer_inv"):
            self.kind = "vstore"
        elif op.startswith("s_load") or op in ("s_memtime", "s_memrealtime"):
            self.kind = "smem"; self.writes.update(regs_of(ops[0])); rd(ops[1:])
        elif op == "s_waitcnt":
            self.kind = "wait"
            self.vm = self.lgkm = None
            m = re.search(r"vmcnt\((\d+)\)", t)
            if m: self.vm = int(m.group(1))
            m = re.search(r"lgkmcnt\((\d+)\)", t)
            if m: self.lgkm = int(m.group(1))
        elif op == "s_nop":
            self.kind = "nop"; self.nstates = int(ops[0]) + 1
        elif op in ("s_barrier", "s_endpgm", "s_sleep", "s_setprio") or op.startswith("s_cbranch") or op == "s_branch":
            self.kind = "sctl"
        elif op.startswith("s_cmp") or op.startswith("s_bitcmp"):
            self.kind = "salu"; rd(ops)
        elif op.startswith("s_"):
            self.kind = "salu"; self.writes.update(regs_of(ops[0])); rd(ops[1:])
            if "saveexec" in op: self.writes.add("exec"); self.reads.add("exec")
        else:
            raise ValueError("unknown instr " + t)
    @property
    def is_valu(self): return self.kind in ("valu", "trans")
    @property
    def is_vmem(self): return self.kind in ("dma", "vload", "vstore")
    @property
    def is_lgkm(self): return self.kind in ("dsread", "dswrite", "smem")
    def __repr__(self): return self.text

def need_states(p, c):
    n = 0
    if p.is_valu:
        vw = {r for r in p.writes if r[0] in "va"}
        sw = {r for r in p.writes if r[0] == "s" or r == "vcc"}
        if c.kind == "mfma" and vw & c.reads: n = max(n, 2)
        if c.kind == "mfma" and "exec" in p.writes: n = max(n, 4)
        if c.kind == "mfma" and p.op.startswith("v_pk_"): n = max(n, 2)
        if p.kind == "trans" and c.kind == "valu" and vw & c.reads: n = max(n, 1)
        if c.is_vmem and sw & c.reads: n = max(n, 5)
        if c.is_valu and sw & c.reads: n = max(n, 4 if c.op.startswith(("v_readlane", "v_writelane")) else 2)
        if c.kind == "salu" and sw & c.reads: n = max(n, 1)
        if c.kind == "sctl" and "vcc" in sw and "vcc" in c.op: n = max(n, 1)
        if c.is_valu and c.op.startswith(("v_readfirstlane", "v_readlane")) and vw & c.reads: n = max(n, 1)
        if c.is_valu and (getattr(c, "permlane", False) or getattr(c, "dpp", False)) and vw & c.reads: n = max(n, 2)
    if p.kind == "mfma":
        big = {4: 8, 8: 12}[p.passes]
        if c.kind == "mfma":
            if p.writes & c.srcAB: n = max(n, big)
            if p.writes & c.srcC and not (p.writes == c.srcC and p.passes == c.passes): n = max(n, {4: 6, 8: 10}[p.passes])
        elif c.is_valu or c.is_vmem or c.kind in ("dsread", "dswrite"):
            if p.writes & (c.reads | c.writes): n = max(n, big)
            if c.is_valu and p.srcC & c.writes: n = max(n, {4: 3, 8: 7}[p.passes])
    if p.kind == "salu" and "m0" in p.writes and c.kind == "dma": n = max(n, 1)
    if p.wide_store_data and (p.wide_store_data & c.writes): n = max(n, 2)
    return n

def find_hazards(trace):
    out = []
    for i, c in enumerate(trace):
        if c.kind in ("label", "nop", "wait"): continue
        dist = 0; worst = 0; wp = None
        j = i - 1
        while j >= 0 and dist < 13:
            p = trace[j]
            n = need_states(p, c)
            if n - dist > worst: worst = n - dist; wp = p
            dist += p.nstates
            j -= 1
        if worst > 0: out.append((i, worst, wp))
    return out

def check_waits(trace):
    lg, vm = [], []
    errs = []
    for i, c in enumerate(trace):
        if c.kind == "wait":
            if c.lgkm is not None:
                if c.lgkm > 0 and any(x.kind == "smem" for x in lg):
                    ds = [x for x in lg if x.kind != "smem"]
                    lg = [x for x in lg if x.kind == "smem"] + ds[max(0, len(ds) - c.lgkm):]
                else: lg = lg[len(lg) - c.lgkm:] if c.lgkm < len(lg) and c.lgkm > 0 else ([] if c.lgkm == 0 else lg)
            if c.vm is not None:
                vm = vm[len(vm) - c.vm:] if c.vm < len(vm) and c.vm > 0 else ([] if c.vm == 0 else vm)
            continue
        use = c.reads | c.writes
        for x in lg + vm:
            if x.writes & use:
                if (x.writes & c.reads) or not (c.kind == x.kind):
                    errs.append((i, c, x))
        if c.is_lgkm: lg.append(c)
        if c.is_vmem: vm.append(c)
    return errs

def resolve_waits(trace):
    res = {}
    for i, c in enumerate(trace):
        if c.waitfor is None: continue
        cur = {}
        for cls, tags in c.waitfor.items():
            isk = (lambda x: x.is_lgkm) if cls == "lgkm" else (lambda x: x.is_vmem)
            cnt = 0; found = None
            j = i - 1
            while j >= 0:
                x = trace[j]
                if isk(x):
                    if x.tag is not None and x.tag in tags:
                        found = cnt; break
                    cnt += 1
                j -= 1
            mx = 15 if cls == "lgkm" else 63
            if found is not None: cur[cls] = min(found, mx)
        old = res.setdefault(id(c), (c, {}))[1]
        for k, v in cur.items(): old[k] = min(old.get(k, 99), v)
    for c, d in res.values():
        assert d, f"wait for {c.waitfor} never resolved"
        t = "s_waitcnt"
        if "vm" in d: t += f" vmcnt({d['vm']})"
        if "lgkm" in d: t += f" lgkmcnt({d['lgkm']})"
        c.text = t; c.parse()

class Block:
    def __init__(self): self.ins = []
    def e(self, text, tag=None):
        for l in text.split("\n"):
            if l.strip(): self.ins.append(Ins(l, tag=tag))
        return self
    def add(self, ins): self.ins.append(ins); return self
    def ext(self, lst): self.ins.extend(lst); return self
    def wait(self, lgkm=None, vm=None):
        self.ins.append(W(lgkm, vm)); return self
    def text(self): return "\n".join(("" if i.kind == "label" else "    ") + i.text for i in self.ins)

def W(lgkm=None, vm=None):
    d = {}
    if lgkm: d["lgkm"] = set(lgkm if isinstance(lgkm, (list, tuple, set)) else [lgkm])
    if vm: d["vm"] = set(vm if isinstance(vm, (list, tuple, set)) else [vm])
    return Ins("s_waitcnt vmcnt(0) lgkmcnt(0)", waitfor=d)

def fix_hazards(blocks_trace, verbose=None):
    total = 0
    for _ in range(200):
        tr = []; where = []
        for b in blocks_trace:
            for k, x in enumerate(b.ins): tr.append(x); where.append((b, x))
        hz = find_hazards(tr)
        if not hz: return total
        done = set()
        last = -100
        for i, miss, p in hz:
            if i - last < 14: continue
            b, x = where[i]
            if id(x) in done: continue
            done.add(id(x)); last = i
            k = next(k for k, y in enumerate(b.ins) if y is x)
            b.ins.insert(k, Ins(f"s_nop {miss-1}"))
            total += 1
            if verbose is not None: verbose.append((getattr(b, "name", "?"), x.text, p.text, miss))
    raise RuntimeError("hazard fixing did not converge")

def finalize(traces, verbose=None):
    for _ in range(3):
        n = 0
        for t in traces: n += fix_hazards(t, verbose)
        if n == 0: break
    alltr = []
    sep = Ins("s_waitcnt vmcnt(0) lgkmcnt(0)")
    res = {}
    for t in traces:
        tr = [x for b in t for x in b.ins]
        for i, c in enumerate(tr):
            if c.waitfor is None: continue
            old = res.setdefault(id(c), (c, {}))[1]
            for cls, tags in c.waitfor.items():
                isk = (lambda x: x.is_lgkm) if cls == "lgkm" else (lambda x: x.is_vmem)
                cnt = 0; found = None
                j = i - 1
                while j >= 0:
                    x = tr[j]
                    if isk(x):
                        if x.tag is not None and x.tag in tags:
                            found = cnt; break
                        cnt += 1
                    j -= 1
                mx = 15 if cls == "lgkm" else 63
                if found is not None: old[cls] = min(old.get(cls, 99), min(found, mx))
    for c, d in res.values():
        assert d and set(d) == set(c.waitfor), f"wait for {c.waitfor} never resolved"
        t = "s_waitcnt"
        if "vm" in d: t += f" vmcnt({d['vm']})"
        if "lgkm" in d: t += f" lgkmcnt({d['lgkm']})"
        c.text = t; c.parse()
    for t in traces:
        tr = [x for b in t for x in b.ins]
        errs = check_waits(tr)
        if errs:
            for i, c, x in errs[:10]: print("WAIT ERROR:", i, c, "<- pending", x)
            raise RuntimeError("missing waits")
        hz = find_hazards(tr)
        assert not hz, hz[:3]

def kernel_desc(name, vgpr, accum, sgpr=102):
    return f""".section .rodata,"a"
.p2align 6
.amdhsa_kernel {name}
  .amdhsa_next_free_vgpr {vgpr}
  .amdhsa_next_free_sgpr {sgpr}
  .amdhsa_accum_offset {accum}
  .amdhsa_group_segment_fixed_size 0
  .amdhsa_kernarg_size 96
  .amdhsa_user_sgpr_count 2
  .amdhsa_user_sgpr_kernarg_segment_ptr 1
  .amdhsa_system_sgpr_workgroup_id_x 1
  .amdhsa_float_denorm_mode_32 3
.end_amdhsa_kernel
"""
def kernel_head(name):
    return f".text\n.globl {name}\n.p2align 8\n.type {name},@function\n{name}:\n"
```

```python
import sys, math, struct
sys.path.insert(0, "gen")
from asmgen import *

NAME = "recurrent_scan__mha_block_cached__glu_gated_swiglu__prompt"
KN = NAME + "_kernel"
WS_ST, WS_FH, WS_FO, WS_FG, WS_FS = 0, 0x8000, 0x10000, 0x18000, 0x20000
WS_B, WS_X = 0x200000, 0x2000000
BSTRIDE = 184 * 1024
LOG2E = 1.4426950408889634
OOB = 0x7ffffff0
def f32(x): return "0x%08x" % struct.unpack("<I", struct.pack("<f", x))[0]
OPT = dict(stamp=False, early=7, pollstage=3, polld=1, flagstage=0, osr=1, osg=4, fgstage=5, fsstage=11, lead=5, ramp=0, i3gap=6, tq0=0, pa=.02, pb=.6, pc=.3, nh=2, asat=(0, 0, 1, 1, 1, 2, 2, 3, 3, 3, 4, 4, 5, 5, 6, 6), bsat=(0, 0, 0, 0, 0, 2, 2, 3, 4, 6, 6, 7, 8, 10, 10, 11), gld=4, gck=7)

L_K, L_SP, L_V = 0, 65536, 98304
sX, sWQ, sW1, sW3, sK, sV, sB, sH, sWS, sDBG, sWO, sW2, sOut = range(4, 56, 4)
sHead, sQb, sWave, sW8k, sW4k, sXb, sKo, sVo, sCnt, sT, sT2, sWQo, sW13o, sBo, sFB, sW16k = range(56, 72)
sTr, sTc, sSp = 93, 94, 95
sTW, sT2W = 100, 101
vL16, vKA, vVA, vDK, vDV, vIDX, vT = 1, 2, 6, 14, 18, 20, 24
vS, vNM = 32, 48
def Q(t, ds): return 64 + (t * 4 + ds) * 4
def P(pb, kk, t): return 128 + pb * 64 + (t * 4 + kk) * 4
def O(dt, t): return (dt * 4 + t) * 4
def VF(b, kk): return 128 + b * 16 + kk * 4
aL, aONES = 192, 208
def KF(b, ds): return 212 + b * 16 + ds * 4
aCHK, aZ = 244, 248
vWQA, vW13A, vDQ, vD13, vXA, vDX = 24, 28, 32, 36, 40, 44

def SR(s): return f"s[{s}:{s+3}]"
def MF(d, a, bb, c): return Ins(f"v_mfma_f32_16x16x32_bf16 {d}, {a}, {bb}, {c}")
def II(txt, tag=None): return [Ins(x, tag=tag) for x in txt.split("\n") if x.strip()]
def srd_fin(b, d, nrec):
    b.e(f"s_and_b32 s{d+1}, s{d+1}, 0xffff\ns_mov_b32 s{d+2}, {nrec}\ns_mov_b32 s{d+3}, 0x20000")
def ptr_add(b, d, off): b.e(f"s_add_u32 s{d}, s{d}, {off}\ns_addc_u32 s{d+1}, s{d+1}, 0")

def stamp_ins(i):
    if not OPT["stamp"] or i is None: return []
    return II(f"s_waitcnt lgkmcnt(0)\ns_memtime s[96:97]\ns_memrealtime s[98:99]\ns_waitcnt lgkmcnt(0)\ns_mov_b32 s{72+2*i}, s96\ns_mov_b32 s{73+2*i}, s98")
STAMPS = {}
def stamp(b, name): b.ext(stamp_ins(STAMPS.get(name)))

class Gap:
    def __init__(self, m): self.m = m; self.scal = []; self.vec = []; self.load = 0
def cost_of(ins): return 2 if (ins.kind == "trans" or ins.is_vmem) else (0 if ins.kind in ("salu", "wait", "sctl", "label") else 1)
def is_ds(x): return x.kind in ("dsread", "dswrite")
def dep(a, b): return bool(a.writes & (b.reads | b.writes)) or bool(a.reads & b.writes)
class TL:
    def __init__(self): self.g = []
    def add(self, m):
        gp = Gap(m); self.g.append(gp)
        if m.op.startswith("v_smfmac"): gp.load = 1
        return len(self.g) - 1
    def pen(self, i, ins):
        gp = self.g[i]; l = gp.load + cost_of(ins)
        if is_ds(ins):
            if any(is_ds(x) for x in gp.vec): l += 1
            if any(x.is_valu and dep(x, ins) for x in gp.vec): l += 2
        return l
    def vec_at(self, i, ins):
        gp = self.g[i]; k = len(gp.vec)
        if is_ds(ins) or ins.is_vmem:
            while k > 0 and gp.vec[k - 1].is_valu and not dep(gp.vec[k - 1], ins): k -= 1
        gp.vec.insert(k, ins); gp.load += cost_of(ins)
    def vec_in(self, lo, hi, items):
        extra = {i: 0 for i in range(lo, hi + 1)}
        cand = []
        for it in items:
            i = min(extra, key=lambda k: (max(self.pen(k, it) + extra[k], 2), self.pen(k, it) + extra[k] if not OPT.get("pack") else 0, k)); cand.append(i); extra[i] += 2
        cand.sort()
        for i, it in zip(cand, items): self.vec_at(i, it)
        return cand
    def scal_at(self, i, ins, later=True):
        while self.g[i].scal: i += 1 if later else -1
        self.g[i].scal.append(ins); return i
    def spread(self, lo, hi, groups):
        n = sum(len(g[1]) for g in groups); k = 0; prev = lo - 3
        for grp in groups:
            sc, ve, post = grp
            for x in ve: x.grp = grp; x.role = "vec"
            first = True
            for it in ve:
                tgt = lo + (hi - lo) * k // max(n - 1, 1); k += 1
                mn = prev + 1
                if first:
                    i = max(prev + 1, tgt - len(sc) - 1)
                    for x in sc: i = self.scal_at(i, x) + 1
                    mn = max(mn, i); first = False
                cands = [j for j in range(max(mn, tgt - 1), max(mn, tgt - 1) + 4) if j < len(self.g)]
                j = min(cands, key=lambda z: (self.g[z].load, abs(z - tgt)))
                self.vec_at(j, it); prev = j
            for x in post: prev = self.scal_at(prev + 1, x)
        return prev
    def stream(self, lo, hi, items, cap=2):
        i = lo; items = list(items)
        while items and i <= hi:
            it = items[0]; c = cost_of(it)
            if c == 0:
                i += 1
                while i <= hi and self.g[i].scal: i += 1
                if i > hi: break
                self.g[i].scal.append(it); items.pop(0); continue
            if self.pen(i, it) <= cap: self.vec_at(i, it); items.pop(0)
            else: i += 1
        return items
    def emit(self, lo, hi, name):
        b = Block(); b.name = name
        for gp in self.g[lo:hi]:
            if gp.m is not None: b.add(gp.m)
            b.ext(gp.scal); b.ext(gp.vec)
        return b

SLOW = []
def poll_check(name, vreg, load_txt, ready_cmp):
    inl = II(ready_cmp) + II(f"s_cbranch_scc0 L_spin_{name}\nL_back_{name}:")
    sl = Block(); sl.name = "spin" + name
    sl.e(f"L_spin_{name}:\ns_mov_b32 s3, 0x40000\nL_spin2_{name}:\ns_sleep 2\n{load_txt}\ns_waitcnt vmcnt(0)\ns_sub_u32 s3, s3, 1\ns_cmp_eq_u32 s3, 0\ns_cbranch_scc1 L_back_{name}")
    sl.e(ready_cmp); sl.e(f"s_cbranch_scc0 L_spin2_{name}\ns_branch L_back_{name}")
    SLOW.append(sl)
    return inl

def dma_K(half, buf, tag):
    return (II(f"s_add_u32 m0, s{sW8k}, {L_K + buf*32768 + half*4096}"),
            [Ins(f"buffer_load_dwordx4 v{vDK+p}, {SR(sK)}, s{sKo} offen offset:{p*1024} lds", tag=tag) for p in range(4)],
            II(f"s_add_u32 s{sKo}, s{sKo}, {4096 if half == 0 else 28672}"))
def dma_V(half, buf, tag):
    return (II(f"s_add_u32 m0, s{sW8k}, {L_V + buf*32768 + half*4096}"),
            [Ins(f"buffer_load_dwordx4 v{vDV+(p&1)}, {SR(sV)}, s{sVo} offen offset:{p*1024} lds", tag=tag) for p in range(4)],
            II(f"s_add_u32 s{sVo}, s{sVo}, {4096 if half == 0 else 28672}"))
def emit_grp(b, d): b.ext(d[0]); b.ext(d[1]); b.ext(d[2])
def check_groups(trace):
    last = {}; cnt = {}
    for x in trace:
        g = getattr(x, "grp", None)
        if g is not None and x.role == "vec":
            for r in x.reads:
                ws_ = [sc for sc in g[0] if r in sc.writes]
                if ws_: assert last.get(r) is ws_[-1], ("group scalar clobbered", x.text, last.get(r))
            for sc in g[2]:
                for r in sc.writes & x.reads:
                    key = (id(g), r)
                    if x is g[1][0]: cnt[key] = last.get(r)
                    assert last.get(r) is cnt[key] and (len(g[1]) == 1 or last.get(r) is not sc), ("post scalar order", x.text)
        for r in x.writes:
            if r[0] == "s" or r == "m0": last[r] = x
def kreads(g, buf, fb, tag):
    return [Ins(f"ds_read_b128 {A(KF(fb,ds),4)}, v{vKA+ds} offset:{buf*32768+g*4096}", tag=tag) for ds in range(4)]
def vreads(dt, buf, fb, tag):
    return [Ins(f"ds_read_b64_tr_b16 {A(VF(fb,kk)+2*kh,2)}, v{vVA+dt} offset:{buf*32768+(32*kk+16*kh)*256}", tag=tag) for kk in range(4) for kh in range(2)]
def snake(t): return range(4) if t % 2 == 0 else range(3, -1, -1)
def qk_chain(t, fb, c0):
    d = V(vS + 4 * t, 4)
    return [MF(d, A(KF(fb, ds), 4), V(Q(t, ds), 4), c0 if n == 0 else d) for n, ds in enumerate(snake(t))]
def pv_chain(dt, t, fb, pb):
    d = A(O(dt, t), 4)
    return [MF(d, A(VF(fb, kk), 4), V(P(pb, kk, t), 4), d) for kk in snake(t)]
def rs(t, kp, pb): return Ins(f"v_smfmac_f32_16x16x64_bf16 {A(aL+4*t,4)}, {A(aONES,4)}, {V(P(pb,2*kp,t),8)}, v{vIDX}")

vDA, vB1, vPoll, vPA = 2, 14, 16, 17
vRAs, vRB, vRAg = 6, (12, 13, 15), 48
sM, sAo, sWOo, sW2o = sW4k, sT2, sWQo, sW13o
sBg, sQ0, sBt = sXb, sW1 + 3, sVo
sBs = [sDBG, sDBG + 1, sDBG + 2, sDBG + 3]
sXP = sH
sXW, sXR, sOo, sFl2 = sW16k, 92, sQ0, 99
sGk = list(range(sWQ, sWQ + 7))
sHp = list(range(sW3, sW3 + 4))
UNITS = []; USEQ = {}; RD = {}
def plan_units():
    for n in range(-1, 22):
        r = [("Ag", n + 1), ("Bg", n + 1)] if n < 6 else [("Bs", n - 6)]
        r = [("As", a) for a in range(16) if OPT["asat"][a] == n] + r if n >= 6 else r + [("As", a) for a in range(16) if OPT["asat"][a] == n]
        RD[n] = list(range(len(UNITS), len(UNITS) + len(r))); UNITS.extend(r)
    RD[22] = []
    USEQ.update({u: n for n, u in enumerate(UNITS)})
    for a in range(16): assert OPT["asat"][a] <= 6 + a // 4
    assert OPT["asat"][14] >= 6 and max(OPT["asat"]) <= 7
def udma(n):
    kind, i = UNITS[n]; m0 = f"s_add_u32 m0, s{sM}, {(n % 10)*16384}\n"; tag = f"U{n}"
    rot = OPT.get("rot", 1)
    if kind[0] == "A":
        sr, so = (sW2, sW2o) if kind == "Ag" else (sWO, sWOo)
        if kind == "As": ad = f"s_xor_b32 s{sAo}, s{so}, {i*65536}"
        else: ad = f"s_lshl_b32 s{sAo}, s{sGk[i]}, 5\ns_add_u32 s{sAo}, s{sAo}, s{so}"
        return (II(m0 + ad),
                [Ins(f"buffer_load_dwordx4 v{vDA+p}, {SR(sr)}, s{sAo} offen offset:{p*1024} lds", tag=tag) for p in range(4)], [])
    if kind == "Bg":
        return (II(m0 + f"s_add_u32 s{sBt}, s{sBg}, s{sGk[i]}"),
                [Ins(f"buffer_load_dwordx4 v{vL16 if p < 2 else vB1}, {SR(sB)}, s{sBt} offen offset:{p*1024} sc1 lds", tag=tag) for p in range(4)], [])
    bs, hp = sBs[(1, 2, 3, 0)[i >> 2]], sHp[i & 3]
    return (II(m0 + f"s_add_u32 s{sBt}, s{bs}, s{hp}"),
            [Ins(f"buffer_load_dwordx4 v{vL16}, {SR(sB)}, s{sBt} offen offset:{p*1024} sc1 lds", tag=tag) for p in range(4)], [])
def uloc(u): sl = USEQ[u] % 10; return sl // 4, (sl % 4) * 16384
def AS(v, ks): return (ks * 2 + v) * 4
def AG(i, v, ks): return ("v", 32 + (v * 2 + ks) * 4) if i % 2 == 0 else ("a", 224 + (v * 2 + ks) * 4)
def BF(n, m): return 64 + (n & 1) * 64 + m * 4
def ACG(j, v): return 192 + (j * 2 + v) * 4
def ACS(q, v): return 32 + (q * 2 + v) * 4
def ureads(u):
    kind, i = UNITS[u]; st, o = uloc(UNITS[u])
    if kind == "As":
        return [Ins(f"ds_read_b64_tr_b16 {A(AS(v,2*i+ks)+2*kh,2)}, v{vRAs+2*st+v} offset:{o+ks*8192+kh*4096}", tag="R") for ks in range(2) for v in range(2) for kh in range(2)]
    if kind == "Ag":
        return [Ins(f"ds_read_b64_tr_b16 {R(AG(i,v,ks)[0], AG(i,v,ks)[1]+2*kh, 2)}, v{vRAg+4*st+2*kh+v} offset:{o+ks*8192}", tag="R") for v in range(2) for ks in range(2) for kh in range(2)]
    n = i if kind == "Bg" else 7 + i
    return [Ins(f"ds_read_b128 {V(BF(n,m),4)}, v{vRB[st]} offset:{o+m*1024}", tag="R") for m in range(16)]
OSTORES = []

def gen_attention():
    tl = TL()
    phases = [-1, 0, 1, 2, 3, 4, 15]
    VPOS = OPT.get("vmpos", (5, 13, 21, 29))
    start = {}; stepb = {}
    for p in phases:
        start[p] = len(tl.g)
        if p == 15:
            def pv(dt, t, fwd):
                d = A(O(dt, t), 4)
                for kk in (range(4) if fwd else range(3, -1, -1)): tl.add(MF(d, A(VF(dt & 3, kk), 4), V(P(1, kk, t), 4), d))
            def chk(n): tl.add(MF(A(aCHK, 4), A(aZ, 4), V(128 + ((n & 3) * 4 + (n >> 2)) * 4, 4), "0" if n == 0 else A(aCHK, 4)))
            for t in range(3):
                for kp in range(2): tl.add(rs(t, kp, 1))
            cdone = {}; fwdt = {}
            pv(0, 0, 1); pv(0, 1, 0); tl.add(rs(3, 0, 1)); tl.add(rs(3, 1, 1)); v1pos = len(tl.g)
            pv(1, 0, 1); cdone[0] = len(tl.g) - 1; pv(1, 1, 0); cdone[1] = len(tl.g) - 1; fwdt[0] = fwdt[1] = 0
            bstart = {}
            for n in range(2, 16):
                i, t = n >> 2, n & 3
                bstart[n] = len(tl.g)
                a_, b_ = (2 * i + 1, 2 * i) if (t & 1) == (0 if i == 0 else 1) else (2 * i, 2 * i + 1)
                pv(a_, t, 1); pv(b_, t, 0); cdone[n] = len(tl.g) - 1; fwdt[n] = a_ & 1
                if n >= 3: chk(n - 3)
            continue
        for s in range(8):
            stepb[p, s] = len(tl.g)
            if p != 15:
                for t in range(4):
                    for m in qk_chain(t, s & 1, V(vNM + 4 * t, 4)): tl.add(m)
            if p == -1:
                tl.add(Ins(f"v_mfma_f32_32x32x16_bf16 {A(16*s,16)}, {A(aZ,4)}, {A(aZ,4)}, 0"))
                if s == 0: tl.add(Ins(f"v_mfma_f32_32x32x16_bf16 {A(aL,16)}, {A(aZ,4)}, {A(aZ,4)}, 0"))
            else:
                for t in range(4):
                    for m in pv_chain(s, t, s & 1, p & 1): tl.add(m)
                if p != 15:
                    tl.add(rs(s >> 1, s & 1, p & 1))
    end = len(tl.g)
    nxt = {p: (start[phases[i + 1]] if i + 1 < len(phases) else end) for i, p in enumerate(phases)}
    for p in phases:
        if p == 15: continue
        pb = (p + 1) & 1
        for s in range(8):
            b0 = stepb[p, s]; nb = stepb[p, s + 1] if s < 7 else nxt[p]
            for t in range(4):
                sr = vS + 4 * t
                ex = [Ins(f"v_exp_f32 v{sr+r}, v{sr+r}") for r in range(4)]
                pd = P(pb, s >> 1, t) + 2 * (s & 1)
                cv = [Ins(f"v_cvt_pk_bf16_f32 v{pd+h}, v{sr+2*h}, v{sr+2*h+1}") for h in range(2)]
                if p >= 0:
                    o = b0 + 8 * t + (1 if t == 3 else 0)
                    pe = [o + 8 + 2 * r for r in range(4)]; pc = [o + 11, o + 15]
                else:
                    pe = [b0 + 4 * t + 8 + r for r in range(4)]; pc = [b0 + 4 * t + 10, b0 + 4 * t + 12]
                    if s == 7:
                        pe = [min(x, nb - 1) for x in pe]; pc = [min(x, nb - 1) for x in pc]
                        if t == 3: pe = [nb + 0, nb + 2, nb + 4, nb + 6]; pc = [nb + 3, nb + 7]
                seq = sorted([(pe[0],0,ex[0]),(pe[1],1,ex[1]),(pc[0],3 if p < 0 else 2,cv[0]),(pe[2],2.5,ex[2]),(pe[3],4,ex[3]),(pc[1],5,cv[1])], key=lambda z: (z[0], z[1]))
                for pos, _, ins in seq: tl.vec_at(pos, ins)
    for p in phases:
        if p == 15: continue
        if 0 <= p < 15:
            grps = [dma_K(0, p & 1, "DK"), dma_K(1, p & 1, "DK"), dma_V(0, (p + 1) & 1, "DV"), dma_V(1, (p + 1) & 1, "DV")]
            for s in range(8):
                tl.scal_at(stepb[p, s] + 15, W(lgkm=f"V{s}"), later=False)
                tl.scal_at(stepb[p, s] + 31, W(lgkm=f"K{(s+1)&7}"), later=False)
            if OPT.get("kvtouch", 1): grps.append(([], II(f"buffer_load_dword a252, v28, {SR(sK if p % 2 == 0 else sV)}, s{sKo if p % 2 == 0 else sVo} offen"), []))
            so, sr = (sTW, sWO) if p % 2 == 0 else (sT2W, sW2)
            grps.append(([], II(f"buffer_load_dword a252, v{30 if p % 2 == 0 else 29}, {SR(sr)}, s{so} offen"),
                         II(f"s_add_u32 s{so}, s{so}, 0x2000\ns_and_b32 s{so}, s{so}, {0x7fff if p % 2 == 0 else 0x3fff}")))
            if p % 2 == 0 and OPT.get("cpl", 1): grps.append(([], II("global_load_dword a252, v[24:25], off"), []))
            if p % 2 == 1:
                grps.append(([], II(f"buffer_store_dword v22, v21, {SR(sWS)}, 0 offen sc1"), []))
                tl.vec_at(stepb[p, 7] + 1, Ins("v_add_u32 v22, 1, v22"))
            if not OPT.get("noclr"): grps.append(([], II(f"buffer_store_dwordx4 {A(aCHK,4)}, v{vL16}, {SR(sXP)}, s{sT2} offen offset:{1024*(p&1)} sc1"), []))
            if p % 2 == 0:
                q = stepb[p, 0] + 6
                for x in II(f"s_cmp_lt_u32 s{sCnt}, 5\ns_subb_u32 s3, s{sCnt}, 0\ns_and_b32 s{sT2}, s3, 3\ns_lshl_b32 s{sT2}, s{sT2}, 3\ns_or_b32 s{sT2}, s{sT2}, s3\ns_lshl_b32 s{sT2}, s{sT2}, 13\ns_xor_b32 s{sT2}, s{sT2}, s{sXR}\ns_cmp_gt_u32 s{sCnt}, 1\ns_cselect_b32 s{sT2}, s{sT2}, 0x40000000"):
                    q2 = tl.scal_at(q, x); assert q2 == q; q += 1
            if p % 2 == 1 and OPT.get("htouch", 1):
                grps.append((II(f"s_cmp_eq_u32 s{sCnt}, {OPT.get('htrip', 1)}\ns_cselect_b32 s{sT}, s{sBg}, 0x40000000"), II(f"buffer_load_dword a252, v27, {SR(sB)}, s{sT} offen"), []))
            k = 0
            for grp in grps:
                for j, x in enumerate(grp[1]):
                    gi = stepb[p, k // len(VPOS)] + VPOS[k % len(VPOS)]; k += 1
                    if j == 0:
                        q = gi
                        for y in reversed(grp[0]):
                            q2 = tl.scal_at(q - 1, y, later=False); assert len(grp[0]) == 1 or q2 == q - 1; q = q2
                    tl.vec_at(gi, x); x.grp = grp; x.role = "vec"
                for x in grp[2]: gi = tl.scal_at(gi + 1, x)
            assert gi < stepb[p, 7]
            e_ = stepb[p, 7]
            if p % 2 == 0: tl.scal_at(e_ + 30, Ins(f"s_cmp_eq_u32 s{sCnt}, 0")); tl.scal_at(e_ + 32, Ins("s_cbranch_scc1 L_att_last"))
            else: tl.scal_at(e_ + 30, Ins(f"s_sub_u32 s{sCnt}, s{sCnt}, 1")); tl.scal_at(e_ + 32, Ins("s_branch L_att_loop"))
        for s in range(8):
            b0 = stepb[p, s]; nb = stepb[p, s + 1] if s < 7 else nxt[p]
            ns, npz = (s + 1) & 7, (p + 1 if s == 7 else p)
            if s == 7:
                i = tl.scal_at(b0 + (5 if p >= 0 else 4), W(lgkm=["V7", "K7"], vm=["DK", "DV"]))
                if not (OPT.get("nobar") and p >= 0): tl.scal_at(i + 1, Ins("s_barrier"))
            if p >= 0:
                kr = kreads(ns, (npz + 1) & 1, ns & 1, f"K{ns}"); vr = vreads(ns, npz & 1, ns & 1, f"V{ns}")
                free = [o for o in range(7 if s == 7 else 1, 32, 2) if not any(x.is_vmem for x in tl.g[b0 + o].vec)]
                assert len(free) >= 12
                for x, o in zip(kr + vr, free): tl.vec_at(b0 + o, x)
            else:
                tl.vec_in(b0 + 6, b0 + 10, kreads(ns, (npz + 1) & 1, ns & 1, f"K{ns}"))
                if s == 7: tl.vec_in(b0 + 10, nb - 1, vreads(0, 0, 0, "V0"))
                tl.scal_at(nb - 1, W(lgkm=f"K{ns}"), later=False)
    rot = OPT.get("rot", 1)
    sc = f"""s_add_u32 s{sXP}, s{sWS}, {WS_X}
s_addc_u32 s{sXP+1}, s{sWS+1}, 0
s_mov_b32 s{sXP+2}, 0x1000000
s_lshl_b32 s{sT}, s{sTr}, 2
s_add_u32 s{sT}, s{sT}, s{sTc}
s_lshl_b32 s{sT}, s{sT}, 2
s_add_u32 s{sT}, s{sT}, s{sSp}
s_lshl_b32 s{sT}, s{sT}, 16
s_lshl_b32 s{sXR}, s{sWave}, 11
s_add_u32 s{sXR}, s{sXR}, s{sT}
"""
    sc += f"""s_lshl_b32 s{sT}, s{sTc}, 8
s_lshl_b32 s{sWOo}, s{sWave}, 14
s_add_u32 s{sWOo}, s{sWOo}, s{sT}
s_mul_i32 s{sW2o}, s{sSp}, {448*1024}
s_add_u32 s{sW2o}, s{sW2o}, s{sWOo}
s_lshl_b32 s{sT}, s{sSp}, 20
s_add_u32 s{sWOo}, s{sWOo}, s{sT}
s_lshr_b32 s{sQ0}, s{sTr}, 1
s_lshl_b32 s{sQ0}, s{sQ0}, 2
s_and_b32 s{sT}, s{sTr}, 1
s_add_u32 s{sQ0}, s{sQ0}, s{sT}
s_lshl_b32 s{sQ0}, s{sQ0}, 2
s_xor_b32 s{sT}, s{sWave}, s{sSp}
s_and_b32 s{sT2}, s{sT}, 2
s_add_u32 s{sT}, s{sT}, s{sT2}
s_lshl_b32 s{sT}, s{sT}, 1
s_add_u32 s{sT}, s{sT}, s{sQ0}
s_mul_i32 s{sBg}, s{sT}, {BSTRIDE}
s_mul_i32 s{sT}, s{sSp}, {14*1024}
s_add_u32 s{sT}, s{sT}, {128*1024}
s_add_u32 s{sBg}, s{sBg}, s{sT}
s_lshl_b32 s{sT}, s{sHead}, 12
s_add_u32 s{sBo}, s{sBo}, s{sT}
s_mul_i32 s{sGk[0]}, s{sTc}, {4096*rot}
s_mul_i32 s{sHp[0]}, s{sTc}, {8192*rot}
s_lshl_b32 s{sT2}, s{sHp[0]}, 5
s_xor_b32 s{sWOo}, s{sWOo}, s{sT2}
"""
    for i in range(1, 7): sc += f"s_add_u32 s{sGk[i]}, s{sGk[i-1]}, 2048\ns_cmp_eq_u32 s{sGk[i]}, {7*2048}\ns_cselect_b32 s{sGk[i]}, 0, s{sGk[i]}\n"
    for i in range(1, 4): sc += f"s_xor_b32 s{sHp[i]}, s{sHp[0]}, {8192*i}\n"
    sc += f"""s_lshr_b32 s{sT}, s{sWave}, 1
s_mul_i32 s{sT}, s{sT}, {BSTRIDE}
s_and_b32 s3, s{sWave}, 1
s_lshl_b32 s3, s3, 12
s_add_u32 s3, s3, s{sT}
s_lshl_b32 s{sT}, s{sSp}, 15
s_add_u32 s3, s3, s{sT}
"""
    for lam in (3, 2, 1, 0):
        sc += f"s_xor_b32 s{sT}, s{sSp}, {lam}\ns_and_b32 s{sT2}, s{sT}, 2\ns_add_u32 s{sT}, s{sT}, s{sT2}\ns_lshl_b32 s{sT}, s{sT}, 1\ns_add_u32 s{sT}, s{sT}, s{sQ0}\ns_mul_i32 s{sBs[lam]}, s{sT}, {BSTRIDE}\ns_add_u32 s{sBs[lam]}, s{sBs[lam]}, s3\n"
    sc += f"""s_lshl_b32 s{sOo}, s{sT}, 14
s_lshl_b32 s{sT}, s{sTc}, 8
s_add_u32 s{sOo}, s{sOo}, s{sT}
s_lshl_b32 s{sT}, s{sWave}, 6
s_add_u32 s{sOo}, s{sOo}, s{sT}
s_add_u32 s{sXW}, s{sOo}, 16384
"""
    if OPT.get("noBg"): sc += f"s_mov_b32 s{sBg}, 0x40000000\n"
    if OPT.get("noOS"): sc += f"s_mov_b32 s{sBo}, 0x40000000\n"
    left = tl.stream(start[-1], nxt[-1] - 1, II(sc)); assert not left, len(left)
    p0 = start[15]; T = vT
    tl.scal_at(p0 + 5, W(lgkm="V0"))
    for x, o in zip(vreads(1, 1, 1, "V1"), (1, 3, 5, 6, 7, 8, 9, 10)): tl.vec_at(p0 + o, x)
    tl.scal_at(v1pos - 1, W(lgkm="V1"))
    su = II(f"""v_bfe_u32 v{T}, v0, 4, 2
v_mul_u32_u24 v{T}, 768, v{T}
v_add_u32 v{vDA}, v{vDV}, v{T}
v_add_u32 v{vDA+1}, v{vDV+1}, v{T}
v_add_u32 v{vDA+1}, 3072, v{vDA+1}
v_add_u32 v{vDA+2}, 6144, v{vDA}
v_add_u32 v{vDA+3}, 6144, v{vDA+1}
v_add_u32 v{vB1}, {BSTRIDE-2048}, v{vL16}""")
    vRL = vNM
    def lr(t): return II(f"v_accvgpr_read_b32 v{vRL+4+t}, a{aL+4*t}\nv_accvgpr_read_b32 v{vRL+t}, a{aL+4*t+1}\nv_add_f32 v{vRL+4+t}, v{vRL+4+t}, v{vRL+t}\nv_rcp_f32 v{vRL+t}, v{vRL+4+t}")
    left = tl.stream(p0 + 8, cdone[0] + 1, su + lr(0) + lr(1) + lr(2), cap=3); assert not left
    E = OPT["early"]
    ld1 = f"buffer_load_dword v{vPoll}, v23, {SR(sWS)}, 0 offen sc1"
    chk1 = poll_check("h", vPoll, ld1, f"v_cmp_gt_u32 vcc, v31, v{vPoll}\ns_nop 0\ns_cmp_eq_u64 vcc, 0")
    for n in range(16):
        i, t = n >> 2, n & 3
        OSTORES.append((II(f"s_add_u32 s{sCnt}, s{sBo}, {t*BSTRIDE}"),
                        [Ins(f"buffer_store_dwordx4 {V(128+(t*4+i)*4,4)}, v{vL16}, {SR(sB)}, s{sCnt} offen offset:{1024*i} sc1", tag="OS")], []))
    ea = [n for n in range(E) if UNITS[n][0] != "Bg"]; eb = [n for n in range(E) if UNITS[n][0] == "Bg"]
    order = ea[:2] + sorted(ea[2:] + eb)
    vm = [(udma(n), m) for n in order for m in range(1)]
    dq = [(g, x) for g, _ in vm for x in g[1]]
    nos = 0
    for n in range(2, 16):
        b0 = bstart[n]
        for o in ((2, 6) if len(dq) <= 2 * (16 - n) else (2, 6, 8 if n >= 3 else 7)):
            if not dq: break
            g, x = dq[0]
            if x is g[1][0]:
                if g is vm[2][0]:
                    gp = tl.g[b0 + o - 1]; gp.vec += [W(vm="C1")] + chk1; gp.load += 1
                q = b0 + o - 1
                for y in reversed(g[0]): q = tl.scal_at(q, y, later=False) - 1
            dq.pop(0); tl.vec_at(b0 + o, x); x.grp = g; x.role = "vec"
        if n >= 3 and nos < min(n - 2, (n - 2) * OPT["osr"]):
            g = OSTORES.pop(0); nos += 1
            tl.scal_at(b0 + 3, g[0][0], later=False); tl.vec_at(b0 + 4, g[1][0]); g[1][0].grp = g; g[1][0].role = "vec"
    assert not dq
    for i in range(3):
        lo = v1pos if i == 0 else bstart[4 * i]
        r = vreads(2 * i + 2, 1, (2 * i + 2) & 3, f"V{2*i+2}") + vreads(2 * i + 3, 1, (2 * i + 3) & 3, f"V{2*i+2}")
        free = [q for q in range(lo, bstart[4 * i + 4] - 5) if not any(x.is_vmem or is_ds(x) for x in tl.g[q].vec)]
        if len(free) < 16: free = sorted(free + free[:16 - len(free)])
        for x, q in zip(r, free): tl.vec_at(q, x)
        tl.scal_at(bstart[4 * i + 4] - 1, W(lgkm=f"V{2*i+2}"), later=False)
    left = []
    for n in range(16):
        i, t = n >> 2, n & 3
        o = 128 + (t * 4 + i) * 4; tb = vS + 8 * (n & 1)
        ar = [(k, O(2 * i + (k >> 2), t) + (k & 3)) for k in range(8)]
        if fwdt[n]: ar = ar[4:] + ar[:4]
        items = (lr(3) if n == 2 else []) + II("\n".join(f"v_accvgpr_read_b32 v{tb+k}, a{a_}" for k, a_ in ar))
        items += II("\n".join(f"v_mul_f32 v{tb+k}, v{tb+k}, v{vRL+t}" for k, a_ in ar))
        items += II("\n".join(f"v_cvt_pk_bf16_f32 v{o+k}, v{tb+2*k}, v{tb+2*k+1}" for k in range(4)))
        if n < 15:
            left = tl.stream(cdone[n] + 2, cdone[n + 1] + 1, left + items, cap=OPT.get("epcap", 4))
            assert len(left) <= 20, (n, len(left))
        else: l14 = left; left = items
    print("O stores placed in the last phase:", nos, file=sys.stderr)
    blk = {p: tl.emit(start[p], nxt[p], f"att{p}") for p in phases}
    tx = lambda b: [(i.text, str(i.waitfor), i.tag) for i in b.ins]
    assert tx(blk[0]) == tx(blk[2]) == tx(blk[4]) and tx(blk[1]) == tx(blk[3])
    last = blk[15]
    mk = lambda n: MF(A(aCHK, 4), A(aZ, 4), V(128 + ((n & 3) * 4 + (n >> 2)) * 4, 4), A(aCHK, 4))
    last.ins = [Ins(ld1, tag="C1")] + last.ins + [mk(13)] + l14 + left[:10] + [mk(14)] + left[10:]
    last.tailchk = mk(15)
    return blk[-1], blk[0], blk[1], last

PARTS = [("G", 0), ("Q", 0), ("G", 1), ("Q", 1), ("G", 2), ("G", 3), ("Q", 2), ("Q", 3)]
SLOT = lambda i: (L_V + 32768, L_SP, L_V)[i % 3]
vNMU, vAQ, vAE, vIR = 32, 36, 40, 44
def XB(c, t, ks): return (c & 1) * 64 + (t * 4 + ks) * 4
def WF(fb, ks): return 212 + fb * 16 + ks * 4
def pacc(kind, u, t):
    if kind == "G": return V(128 + (u & 1) * 64 + ((u >> 1) * 4 + t) * 4, 4)
    ds, hf = u >> 1, u & 1
    return V(Q(t, ds), 4) if hf == 0 else A(128 + (t * 4 + ds) * 4, 4)
def wdma(i):
    kind, c = PARTS[i]; base = SLOT(i); g = []
    if kind == "Q":
        for half in range(2):
            g.append((II(f"s_add_u32 m0, s{sW8k}, {base + half*4096}\ns_add_u32 s{sT}, s{sWQo}, {(c*128+16*half)*8192}"),
                      [Ins(f"buffer_load_dwordx4 v{vDQ+p}, {SR(sWQ)}, s{sT} offen offset:{p*1024} lds", tag=f"DW{i}") for p in range(4)], []))
    else:
        for k, sr in enumerate((sW1, sW3)):
            g.append((II(f"s_add_u32 m0, s{sW4k}, {base + k*16384}\ns_add_u32 s{sT}, s{sW13o}, {c*128*3584}"),
                      [Ins(f"buffer_load_dwordx4 v{vD13+p}, {SR(sr)}, s{sT} offen offset:{p*1024} lds", tag=f"DW{i}") for p in range(4)], []))
    return g
def xdma(c):
    return [(II(f"s_xor_b32 m0, s100, {t*4096}\ns_xor_b32 s{sT}, s101, {t*16384 + c*256}"),
             [Ins(f"buffer_load_dwordx4 v{vDX+p}, {SR(sX)}, s{sT} offen offset:{p*1024} lds", tag=f"DX{c}") for p in range(4)], []) for t in range(4)]
def xreads(c):
    return [Ins(f"ds_read_b128 {A(XB(c,t,ks),4)}, v{vXA+ks} offset:{t*4096}", tag=f"X{c}") for t in range(4) for ks in range(4)]

def gen_proj(stats):
    base = {"G": L_V, "Q": L_SP}
    def wreads(i, u, tag):
        kind, c = PARTS[i]; off0 = SLOT(i) - base[kind]; assert 0 <= off0 <= 32768
        r = []
        for ks in range(4):
            for kh in range(2):
                if kind == "Q": ad, off = vWQA + (u >> 1), ks * 8192 + kh * 1024 + 8 * (u & 1)
                else: ad, off = vW13A + (u >> 1), ks * 4096 + kh * 512 + 16384 * (u & 1)
                r.append(Ins(f"ds_read_b64_tr_b16 {A(WF(u&1,ks)+2*kh,2)}, v{ad} offset:{off0+off}", tag=tag))
        return r
    first_reads = wreads(0, 0, "W0")
    tl = TL(); tb = {}
    for i, (kind, c) in enumerate(PARTS):
        for u in range(8):
            tb[i, u] = len(tl.g)
            for t in range(4):
                d = pacc(kind, u, t)
                for n, ks in enumerate(snake(t)):
                    tl.add(MF(d, A(WF(u & 1, ks), 4), A(XB(c, t, ks), 4), "0" if (c == 0 and n == 0) else d))
            if u < 2:
                d = A(aL + (8 if kind == "Q" else 0) + 4 * u, 4)
                for kp in range(2): tl.add(Ins(f"v_smfmac_f32_16x16x64_bf16 {d}, {A(aONES,4)}, {A(WF(u&1,2*kp),8)}, v{vIDX}"))
    end = len(tl.g)
    tb[8, 0] = end
    nx = lambda i, u: tb[i, u + 1] if u < 7 else tb[i + 1, 0]
    extra_vm = {1: ["ST"], 7: ["DK0"]}
    for i, (kind, c) in enumerate(PARTS):
        for u in range(8):
            b0 = tb[i, u]; nb = nx(i, u)
            if u < 7:
                r = wreads(i, u + 1, f"W{u+1}")
                for k, x in enumerate(r): tl.vec_at(b0 + (0, 1, 2, 4, 5, 6, 8, 9)[k], x)
                tl.scal_at(nb - 1, W(lgkm=f"W{u+1}"), later=False)
            else:
                vm = ([f"DW{i+1}"] if i < 7 else []) + extra_vm.get(i, [])
                tl.scal_at(b0, W(vm=vm, lgkm={4: ["X3"], 5: ["CS"], 7: ["CS"]}.get(i)))
                tl.scal_at(b0 + 1, Ins("s_barrier"))
                if i < 7:
                    nk = PARTS[i + 1][0]
                    if not 0 <= SLOT(i + 1) - base[nk] <= 32768:
                        dlt = SLOT(i + 1) - base[nk]; base[nk] += dlt
                        ad = vWQA if nk == "Q" else vW13A
                        for k in range(4): tl.vec_at(b0 + k // 2, Ins(f"v_add_u32 v{ad+k}, {dlt & 0xffffffff}, v{ad+k}"))
                    tl.vec_in(b0 + 2, b0 + 9, wreads(i + 1, 0, "W0"))
                    tl.scal_at(nb - 1, W(lgkm="W0"), later=False)
                else:
                    tl.vec_in(b0 + 2, b0 + 9, kreads(0, 0, 0, "K0"))
    P_ = lambda i, f: tb[i, 0] + int(f * (tb[i + 1, 0] - tb[i, 0]))
    def xout(c, lo, hi):
        j = tl.scal_at(lo, W(vm=f"DX{c}"))
        cc = tl.vec_in(j, hi, xreads(c))
        return cc[-1]
    def tch(dst, ad, sr, so): return Ins(f"buffer_load_dword a252, v{ad}, {SR(sr)}, {so} offen")
    TQ = lambda c: [(II(f"s_mov_b32 s{sT}, {c*128*8192}"), [tch(55, 22, sWQ, f"s{sT}")], [])]
    TG = lambda c: [(II(f"s_mov_b32 s{sT}, {c*128*3584}"), [tch(55, 23, sW1, f"s{sT}"), tch(55, 23, sW3, f"s{sT}")], [])]
    TK = [([], [tch(55, 53, sK, 0)], [])]; TV = [([], [tch(55, 53, sV, 0)], [])]
    kv = OPT.get("kvp", (9, 9, 9))
    at = lambda p: (TK if kv[0] == p else []) + (TV if kv[1] == p else []) + (TK2 if kv[2] == p else [])
    TK2 = [(II(f"s_mov_b32 s{sT}, 65536"), [tch(55, 53, sK, f"s{sT}")], [])]
    x1, x2, x3 = xdma(1), xdma(2), xdma(3)
    prev = [0]
    def sp(lo, hi, grps):
        lo = max(lo, prev[0] + 4); prev[0] = tl.spread(lo, max(hi, lo + 1), grps); return prev[0]
    a = OPT.get("pa", .2)
    sp(P_(0, a), P_(0, a + .25), wdma(1))
    sp(0, P_(0, a + .45), TG(1) + x1[:1])
    sp(P_(0, OPT.get("pb", .8)), P_(1, OPT.get("pc", .45)), x1[1:] + wdma(2))
    sp(0, P_(1, .6), TQ(1) + TG(2) + at(1))
    xout(1, P_(1, .6), tb[1, 7] - 2)
    sp(P_(2, 0) + 3, P_(2, .45), x2[:1] + wdma(3))
    sp(0, P_(2, .85), x2[1:])
    sp(0, P_(3, .2), TG(3) + at(2) + wdma(4))
    l = xout(2, P_(3, .22), P_(3, .42))
    j = tl.scal_at(l + 5, W(lgkm="X2"))
    sp(j + 4, P_(3, .97), x3[:1] + TQ(2) + at(3) + wdma(5))
    sp(P_(4, .02), P_(4, .4), x3[1:])
    sp(P_(4, .45), P_(4, .95), TQ(3) + at(4) + wdma(6))
    xout(3, P_(4, .6), tb[4, 7] - 6)
    sp(P_(5, .1), P_(5, .55), wdma(7) + [dma_K(0, 0, "DK0"), dma_K(1, 0, "DK0")] + at(5))
    if at(55): sp(P_(5, .75), P_(5, .8), at(55))
    sp(P_(6, 0) + 3, P_(6, .3), [dma_V(0, 0, "DV"), dma_V(1, 0, "DV")])
    sp(P_(7, 0) + 3, P_(7, .3), [dma_K(0, 1, "DK"), dma_K(1, 1, "DK")])
    for pp in OPT.get("cpf", (3,)):
        left = tl.stream(P_(pp, .05), P_(pp, .2), II("v_accvgpr_read_b32 v58, a254\nv_accvgpr_read_b32 v59, a255\nglobal_load_dword a252, v[58:59], off")); assert not left
    def span(tag):
        ps = [q for q, gp in enumerate(tl.g) for x in gp.vec if x.tag == tag]; return min(ps), max(ps)
    for i in range(1, 8):
        assert span(f"DW{i}")[1] < tb[i - 1, 7] and (i < 3 or span(f"DW{i}")[0] > tb[i - 3, 7] + 1), i
    for c in (1, 2, 3): assert span(f"DX{c}")[1] < span(f"X{c}")[0], c
    tl.vec_in(tb[1, 7] + 10, tb[1, 7] + 14, [Ins(f"buffer_atomic_add v49, v48, {SR(sDBG)}, 0 offen")])
    left = tl.stream(P_(0, OPT.get("stpos", .4)), tb[1, 0] - 1, stats, cap=OPT.get("stcap", 3)); assert not left, len(left)
    ld0 = f"buffer_load_dword v50, v51, {SR(sDBG)}, 0 offen sc1"
    tl.vec_in(P_(4, .97), P_(4, .99), [Ins(ld0, tag="C0")])
    g = tl.g[P_(5, .6)]
    g.vec += [W(vm="C0")] + poll_check("st", 50, ld0, f"v_cmp_gt_u32 vcc, 32, v50\ns_nop 0\ns_cmp_eq_u64 vcc, 0"); g.load += 2
    tl.spread(P_(5, .6) + 3, P_(5, .72), [([], [Ins(f"buffer_load_dwordx2 {V(56+2*t,2)}, v52, {SR(sWS)}, 0 offen offset:{128*t} sc1", tag="SL") for t in range(4)], [])])
    for i, off in ((5, 0), (7, 1)):
        a0 = aL + 8 * off; it_ = []
        for u in range(2):
            it_ += II(f"v_accvgpr_read_b32 v22, a{a0+4*u}\nv_accvgpr_read_b32 v23, a{a0+4*u+1}\nv_add_f32 v22, v22, v23")
            it_ += [Ins(f"ds_write_b32 v21, v22 offset:{64*u}", tag="CS")]
        if i == 5: it_ += II(f"v_add_u32 v21, {L_V - L_K}, v21")
        left = tl.stream(tb[i, 3], tb[i, 4], it_); assert not left
    it = [W(vm="SL")]
    for t in range(4): it += II(f"v_rsq_f32 v{vAQ+t}, v{57+2*t}")
    for t in range(4): it += II(f"v_sub_f32 v{vNMU+t}, 0, v{56+2*t}\nv_mov_b32 v{vIR+t}, v{57+2*t}")
    for t in range(4): it += II(f"v_mul_f32 v{vAE+t}, {f32(-LOG2E)}, v{vAQ+t}\nv_mul_f32 v{vAQ+t}, {f32(LOG2E * 128 ** -0.5)}, v{vAQ+t}")
    for v in range(4): it += II(f"v_xor_b32 v{28+v}, {128*v}, v54")
    def csread(v): return [Ins(f"ds_read_b128 {V(48+8*(v&1)+4*m,4)}, v{28+v} offset:{64*m}", tag=f"CG{v}") for m in range(2)]
    it += csread(0)
    for v in range(4):
        if v < 3: it += csread(v + 1)
        it += [W(lgkm=f"CG{v}")]
        for m in range(2):
            for t in range(4):
                d = 128 + m * 64 + (v * 4 + t) * 4
                for r in range(4): it += II(f"v_fmac_f32 v{d+r}, v{48+8*(v&1)+4*m+r}, v{vNMU+t}")
    mv30 = Ins(f"v_add_u32 v30, {L_V - L_K}, v28"); it.append(mv30)
    it += II(f"s_lshl_b32 s{sCnt}, s{sHead}, 11\ns_add_u32 s{sCnt}, s{sCnt}, {128*1024}\ns_add_u32 s{sCnt}, s{sCnt}, s{sBo}")
    it += II(f"s_and_b32 s{sT2}, s{sWave}, 2\ns_lshl_b32 s{sT2}, s{sT2}, 9\nv_add_u32 v28, s{sT2}, v{vL16}\nv_xor_b32 v29, 0x400, v28")
    rest = []
    for n in range(8):
        t, i = n >> 1, n & 1
        gr = [128 + ((2 * i + hf) * 4 + t) * 4 + r for hf in range(2) for r in range(4)]
        ur = [x + 64 for x in gr]; q = []
        if n < OPT["nh"]:
            for k in range(8): q += II(f"v_mul_f32 v{ur[k]}, v{ur[k]}, v{gr[k]}\nv_mul_f32 v{gr[k]}, v{vAE+t}, v{gr[k]}")
            for k in range(8): q += II(f"v_exp_f32 v{gr[k]}, v{gr[k]}") + (II(f"v_fma_f32 v{gr[k-2]}, v{gr[k-2]}, v{vIR+t}, v{vIR+t}") if k >= 2 else [])
            for k in range(8): q += II(f"v_rcp_f32 v{gr[k]}, v{gr[k]}") + II(f"v_fma_f32 v{gr[k+6]}, v{gr[k+6]}, v{vIR+t}, v{vIR+t}" if k < 2 else f"v_mul_f32 v{gr[k-2]}, v{gr[k-2]}, v{ur[k-2]}")
            for k in (6, 7): q += II(f"v_mul_f32 v{gr[k]}, v{gr[k]}, v{ur[k]}")
        else:
            o = t & 1; ae, ir = V(vAE + t - o, 2), V(vIR + t - o, 2)
            for k in range(0, 8, 2): q += II(f"v_pk_mul_f32 {V(ur[k],2)}, {V(ur[k],2)}, {V(gr[k],2)}\nv_pk_mul_f32 {V(gr[k],2)}, {V(gr[k],2)}, {ae} op_sel:[0,{o}] op_sel_hi:[1,{o}]")
            for k in range(8): q += II(f"v_exp_f32 v{gr[k]}, v{gr[k]}")
            for k in range(0, 8, 2): q += II(f"v_pk_fma_f32 {V(gr[k],2)}, {V(gr[k],2)}, {ir}, {ir} op_sel:[0,{o},{o}] op_sel_hi:[1,{o},{o}]")
            for k in range(8): q += II(f"v_rcp_f32 v{gr[k]}, v{gr[k]}")
            for k in range(0, 8, 2): q += II(f"v_pk_mul_f32 {V(gr[k],2)}, {V(gr[k],2)}, {V(ur[k],2)}")
        for k in range(4): q += II(f"v_cvt_pk_bf16_f32 v{gr[0]+k}, v{gr[2*k]}, v{gr[2*k+1]}")
        q += II(f"buffer_store_dwordx4 {V(gr[0],4)}, v{28+i}, {SR(sH)}, s{sCnt} offen sc1")
        if i == 1 and t < 3: q += II(f"s_add_u32 s{sCnt}, s{sCnt}, {BSTRIDE}")
        if n < OPT["nh"]: it += q
        else: rest += q
    lastcs = [x for x in it if x.tag == "CG3"][-1]
    left = tl.stream(tb[6, 0] + 4, end - 1, it)
    assert len(left) <= 54 * OPT["nh"] and not any(x is mv30 for x in left)
    pos = [k for k, gp in enumerate(tl.g) if any(x is lastcs for x in gp.vec)]
    assert pos and pos[0] < tb[6, 6], (pos, tb[6, 6])

    for nm, i in [(f"p{i}", i) for i in range(1, 8)]:
        tl.g[tb[i, 0]].scal = stamp_ins(STAMPS.get(nm)) + tl.g[tb[i, 0]].scal
    body = tl.emit(0, end, "proj")
    print("h epilogue leftover", len(left), "of", len(it), file=sys.stderr)
    return first_reads, body, left + rest

def gen_kernel():
    b = Block(); b.name = "setup"
    b.e(f"s_cmp_ge_u32 s2, 256\ns_cbranch_scc1 L_end\ns_mov_b32 s{sFB}, 0")
    if OPT.get("shuffle"): b.e("s_and_b32 s3, s2, 7\ns_lshl_b32 s3, s3, 5\ns_lshr_b32 s2, s2, 3\ns_or_b32 s2, s2, s3")
    if OPT.get("delay"): b.e(f"s_mov_b32 s3, {OPT['delay']}\nL_dly:\ns_sub_u32 s3, s3, 1\ns_cmp_lg_u32 s3, 0\ns_cbranch_scc1 L_dly")
    if OPT["stamp"]:
        for i in range(20): b.e(f"s_mov_b32 s{72+i}, 0")
        stamp(b, "start")
    b2 = Block(); b2.name = "setup1"; b_ = b; b = b2
    b.e("L_restart:")
    for sr, off in ((sX, 0), (sW1, 48), (sW3, 56), (sWQ, 24)): b.e(f"s_load_dwordx2 s[{sr}:{sr+1}], s[0:1], {off}")
    T0, T1, T2, T3, T4 = 56, 57, 58, 59, 60
    vl, vc, vg, vi2, vi3 = 61, 62, 63, 22, 23
    b.e("s_getpc_b64 s[100:101]\nL_pc:")
    b.e(f"s_lshr_b32 s{sT}, s2, 3\ns_lshl_b32 s{sT2}, s{sT}, 11\nv_lshrrev_b32 v108, 4, v0\nv_lshl_add_u32 v108, v108, 7, s{sT2}\nv_min_u32 v108, L_end-L_pc, v108\nv_mov_b32 v109, s101")
    b.e(f"v_add_co_u32 v108, vcc, s100, v108\nv_lshrrev_b32 v{T0}, 6, v0\nv_and_b32 v{vc}, 15, v0\nv_addc_co_u32 v109, vcc, 0, v109, vcc\nglobal_load_dword v107, v[108:109], off")
    b.e(f"v_readfirstlane_b32 s{sWave}, v{T0}\nv_bfe_u32 v{vg}, v0, 4, 2\ns_and_b32 s{sT}, s{sT}, 3\ns_lshr_b32 s{sQb}, s2, 5")
    b.e(f"s_lshl_b32 s{sW16k}, s{sWave}, 14\ns_lshl_b32 s{sXb}, s{sQb}, 18\ns_lshl_b32 s{sT2}, s{sWave}, 16\ns_add_u32 s{sXb}, s{sXb}, s{sT2}")
    b.e(f"s_lshl_b32 s100, s{sT}, 12\ns_add_u32 s100, s100, s{sW16k}\ns_lshl_b32 s101, s{sT}, 14\ns_add_u32 s101, s101, s{sXb}")
    b.e(f"s_and_b32 s{sHead}, s2, 7\ns_lshl_b32 s{sHead}, s{sHead}, 2\ns_add_u32 s{sHead}, s{sHead}, s{sT}")
    b.e(f"v_xor_b32 v{T0}, v{vg}, v{vc}\nv_lshlrev_b32 v{T0}, 4, v{T0}\nv_lshl_add_u32 v{vDX}, v{vg}, 10, v{T0}")
    for p in range(1, 4): b.e(f"v_xor_b32 v{T2}, {64*p}, v{vDX}\nv_add_u32 v{vDX+p}, {p*3072}, v{T2}")
    b.e(f"s_mov_b32 s{sX+2}, 0x200000\ns_mov_b32 s{sX+3}, 0x20000\ns_waitcnt lgkmcnt(0)")
    stamp(b, "karg")
    b.e(f"s_and_b32 s{sX+1}, s{sX+1}, 0xffff")
    xg = xdma(0); wg = wdma(0)
    emit_grp(b, xg[0])
    for sr, off in ((sK, 8), (sV, 16), (sB, 88), (sH, 88), (sWS, 88), (sDBG, 80), (sWO, 32), (sW2, 64), (sOut, 72)):
        b.e(f"s_load_dwordx2 s[{sr}:{sr+1}], s[0:1], {off}")
    b.e(f"s_lshl_b32 s{sT}, s{sHead}, 7"); ptr_add(b, sW1, f"s{sT}"); ptr_add(b, sW3, f"s{sT}")
    b.e(f"s_sub_u32 s{sT2}, {512*3584}, s{sT}\ns_cmp_lt_u32 s{sHead}, 28\ns_cselect_b32 s{sT2}, s{sT2}, 0")
    srd_fin(b, sW1, f"s{sT2}"); srd_fin(b, sW3, f"s{sT2}")
    b.e(f"s_lshr_b32 s{sBo}, s{sXb}, 14\nv_and_b32 v{vl}, 63, v0")
    b.e(f"v_lshrrev_b32 v{T0}, 2, v{vl}\nv_and_b32 v{T1}, 3, v0\nv_lshl_add_u32 v{T1}, v{T0}, 7, v{T1}\nv_add_u32 v{T1}, s{sBo}, v{T1}\nv_mul_u32_u24 v101, 3584, v{T1}\nv_lshl_add_u32 v103, v{T0}, 26, v101")
    if not OPT.get("noptouch"): b.e(f"buffer_load_dword v105, v103, {SR(sW1)}, 0 offen\nbuffer_load_dword v106, v103, {SR(sW3)}, 0 offen")
    b.e(f"s_lshl_b32 s{sCnt}, s{sQb}, 7\ns_lshl_b32 s{sT2}, s{sHead}, 2\ns_add_u32 s{sCnt}, s{sCnt}, s{sT2}\ns_add_u32 s{sCnt}, s{sCnt}, s{sWave}\nv_lshlrev_b32 v{vL16}, 4, v{vl}")
    for g in (xg[1], xg[2], xg[3])[:OPT.get("nx", 1)]: emit_grp(b, g)
    b.e(f"s_lshl_b32 s{sT}, s{sHead}, 8"); ptr_add(b, sWQ, f"s{sT}"); b.e(f"s_sub_u32 s{sT2}, 0x400000, s{sT}")
    srd_fin(b, sWQ, f"s{sT2}")
    b.e(f"v_lshrrev_b32 v{T0}, 3, v{vl}\nv_bfe_u32 v{T1}, v0, 1, 2\nv_lshl_add_u32 v{T1}, v{T0}, 7, v{T1}\nv_add_u32 v{T1}, s{sBo}, v{T1}\nv_and_b32 v{T2}, 1, v0\nv_lshlrev_b32 v{T2}, 7, v{T2}\nv_lshl_add_u32 v100, v{T1}, 13, v{T2}\nv_lshl_add_u32 v102, v{T0}, 26, v100")
    b.e(f"s_bfe_u32 s{sSp}, s2, 0x20001\ns_lshr_b32 s{sTc}, s2, 6\ns_bfe_u32 s{sTr}, s2, 0x30003\ns_and_b32 s{sT}, s2, 1\ns_lshl_b32 s{sT}, s{sT}, 3\ns_add_u32 s{sTr}, s{sTr}, s{sT}")
    b.e(f"s_lshl_b32 s{sW8k}, s{sWave}, 13\ns_lshl_b32 s{sW4k}, s{sWave}, 12\ns_mul_i32 s{sBo}, s{sBo}, {BSTRIDE}")
    b.e(f"s_lshl_b32 s{sWQo}, s{sWave}, 18\ns_mul_i32 s{sW13o}, s{sWave}, {32*3584}\ns_mov_b32 s{sKo}, s{sW8k}\ns_mov_b32 s{sVo}, s{sW8k}")
    b.e(f"v_mul_u32_u24 v{T0}, 3584, v{T0}\nv_and_b32 v{T1}, 7, v0\nv_and_b32 v{T2}, 1, v{vg}\nv_lshlrev_b32 v{T2}, 1, v{T2}\nv_xor_b32 v{T1}, v{T1}, v{T2}")
    for p in range(4): b.e(f"v_xor_b32 v{T2}, {4*(p&1)}, v{T1}\nv_lshl_add_u32 v{T2}, v{T2}, 4, v{T0}\nv_add_u32 v{vD13+p}, {p*27648}, v{T2}")
    b.e(f"v_lshlrev_b32 v{T0}, 2, v{vg}\nv_xor_b32 v{T0}, v{vc}, v{T0}\nv_lshlrev_b32 v{T0}, 4, v{T0}\nv_lshl_add_u32 v{vDQ}, v{vg}, 13, v{T0}")
    for p in range(1, 4): b.e(f"v_add_u32 v{vDQ+p}, {p*31744}, v{vDQ}")
    b.e("s_waitcnt lgkmcnt(0)")
    late = [xg[1], xg[2], xg[3], wg[0], wg[1]][OPT.get("nx", 1):]
    stamp(b, "a1")
    c = Block(); c.name = "setup2"
    c.e(f"s_lshl_b32 s{sT}, s{sHead}, 19"); ptr_add(c, sK, f"s{sT}"); ptr_add(c, sV, f"s{sT}")
    srd_fin(c, sK, 0x80000); srd_fin(c, sV, 0x80000)
    wso = OPT.get("wsoff", 0) << 20
    if wso: ptr_add(c, sWS, wso)
    ptr_add(c, sB, WS_B + wso); ptr_add(c, sH, WS_B + wso); srd_fin(c, sB, 128 * BSTRIDE)
    c.e(f"s_cmp_lt_u32 s{sHead}, 28\ns_cselect_b32 s{sT2}, {128*BSTRIDE}, 0"); srd_fin(c, sH, f"s{sT2}")
    srd_fin(c, sWS, 0x28000); srd_fin(c, sDBG, 256); srd_fin(c, sOut, 0x200000)
    srd_fin(c, sWO, 0 if OPT.get("noA") else 4096 * 1024); srd_fin(c, sW2, 0 if OPT.get("noA") else 1792 * 1024)
    c.e(f"v_bfe_u32 v{vi2}, v0, 2, 2\nv_and_b32 v{vi3}, 3, v0")
    c.e(f"v_lshl_add_u32 v{T0}, v{vg}, 3, v{vi2}\nv_lshlrev_b32 v{T1}, 8, v{T0}\nv_lshl_add_u32 v{T1}, v{vi3}, 4, v{T1}\nv_add_u32 v{T1}, {L_SP}, v{T1}\nv_xor_b32 v{T3}, s{sWave}, v{vi2}")
    for i in range(4): c.e(f"v_xor_b32 v{T2}, {i}, v{T3}\nv_lshl_add_u32 v{vWQA+i}, v{T2}, 6, v{T1}")
    c.e(f"v_lshlrev_b32 v{T1}, 7, v{T0}\nv_lshl_add_u32 v{T1}, v{vi3}, 3, v{T1}\nv_add_u32 v{T1}, {L_V}, v{T1}")
    c.e(f"v_and_b32 v{T3}, 1, v{vg}\nv_lshlrev_b32 v{T3}, 1, v{T3}\nv_lshrrev_b32 v{T4}, 1, v{vi2}\nv_or_b32 v{T3}, v{T3}, v{T4}\nv_xor_b32 v{T3}, s{sWave}, v{T3}")
    for i in range(4): c.e(f"v_xor_b32 v{T2}, {i}, v{T3}\nv_lshl_add_u32 v{vW13A+i}, v{T2}, 5, v{T1}")
    c.e(f"v_xor_b32 v{T0}, v{vg}, v{vc}\nv_lshlrev_b32 v{T1}, 8, v{vc}\nv_add_u32 v{T3}, s{sW16k}, v{T1}\ns_lshl_b32 s{sT}, s{sWave}, 2")
    for i in range(4): c.e(f"v_xor_b32 v{T2}, {4*i}, v{T0}\nv_lshl_add_u32 v{vXA+i}, v{T2}, 4, v{T3}\nv_xor_b32 v{T2}, s{sT}, v{T2}\nv_lshl_add_u32 v{vKA+i}, v{T2}, 4, v{T1}")
    c.e(f"v_lshl_add_u32 v{T0}, v{vg}, 2, v{vi2}\nv_lshlrev_b32 v{T1}, 8, v{T0}\nv_lshl_add_u32 v{T1}, v{vi3}, 3, v{T1}\nv_add_u32 v{T1}, {L_V}, v{T1}\nv_and_b32 v{T0}, 7, v{T0}")
    for dt in range(8): c.e(f"v_xor_b32 v{T2}, {dt}, v{T0}\nv_lshl_add_u32 v{vVA+dt}, v{T2}, 5, v{T1}")
    c.e(f"v_lshlrev_b32 v{T1}, 8, v{vg}\nv_xor_b32 v{T0}, v{vg}, v{vc}")
    for p in range(4): c.e(f"v_xor_b32 v{T2}, {4*p}, v{T0}\nv_lshl_add_u32 v{vDK+p}, v{T2}, 4, v{T1}")
    c.e(f"v_lshlrev_b32 v{T0}, 1, v{vg}\nv_xor_b32 v{T0}, v{T0}, v{vc}")
    for p in range(2): c.e(f"v_xor_b32 v{T2}, {8*p}, v{T0}\nv_lshl_add_u32 v{vDV+p}, v{T2}, 4, v{T1}")
    c.e(f"v_mov_b32 v{T0}, 0x3f803f80")
    for i in range(4): c.e(f"v_accvgpr_write_b32 a{aONES+i}, v{T0}")
    c.e(f"s_lshl_b32 s{sT}, s{sQb}, 5\nv_and_b32 v51, 7, v0\nv_lshlrev_b32 v51, 5, v51\ns_cmp_eq_u32 s{sFB}, 0\ns_cselect_b32 s{sT}, s{sT}, {OOB}")
    c.e(f"v_mov_b32 v{T0}, {OOB}\nv_mov_b32 v{T1}, s{sT}\nv_cmp_eq_u32 vcc, 0, v0\nv_mov_b32 v49, 1\nv_cndmask_b32 v48, v{T0}, v{T1}, vcc")
    c.e(f"s_lshl_b32 s{sT}, s{sQb}, 5\ns_add_u32 s{sT}, s{sT}, s{sHead}\ns_lshl_b32 s{sT}, s{sT}, 7\ns_add_u32 s{sT}, s{sT}, {WS_FH}\ns_cmp_eq_u32 s{sFB}, 0\ns_cselect_b32 s{sT}, s{sT}, {OOB >> 1}")
    c.e(f"s_and_b32 s{sT2}, s{sHead}, 7\ns_mul_i32 s{sT2}, s{sT2}, 124\ns_sub_u32 s{sT2}, {WS_FO-WS_FH}, s{sT2}\nv_mov_b32 v{T2}, s{sT}\nv_mad_u32_u24 v{T1}, v0, s{sT2}, v{T2}\nv_cmp_gt_u32 vcc, 2, v0\nv_mov_b32 v{T2}, 0\nv_cndmask_b32 v{T1}, v{T0}, v{T1}, vcc")
    c.e(f"buffer_store_dword v{T2}, v{T1}, {SR(sWS)}, 0 offen sc1")
    c.e(f"s_lshr_b32 s{sT}, s{sXb}, 7\nv_lshlrev_b32 v52, 3, v{vc}\nv_add_u32 v52, s{sT}, v52")
    c.e(f"s_lshl_b32 s{sT}, s{sWave}, 7\nv_lshlrev_b32 v54, 4, v{vg}\nv_add_u32 v54, s{sT}, v54\nv_add_u32 v54, {L_K+32768}, v54\ns_add_u32 s{sT}, s{sT}, {L_K+32768}\nv_lshl_add_u32 v21, v{vc}, 2, s{sT}")
    for i in range(4): c.e(f"v_accvgpr_write_b32 a{aZ+i}, 0")
    c.e(f"v_and_b32 v{vIDX}, 1, v0\nv_mul_u32_u24 v{vIDX}, 0xaaaa, v{vIDX}\nv_add_u32 v{vIDX}, 0x4444, v{vIDX}")
    c.e(f"v_mfma_f32_32x32x16_bf16 {A(aL,16)}, {A(aZ,4)}, {A(aZ,4)}, 0")
    c.e(f"s_lshl_b32 s{sT}, s{sQb}, 2\ns_add_u32 s{sT}, s{sT}, s{sWave}\ns_lshl_b32 s{sT}, s{sT}, 11\nv_lshlrev_b32 v53, 29, v{vg}\nv_lshl_add_u32 v53, v{vc}, 7, v53\nv_add_u32 v53, s{sT}, v53")
    stamp(c, "a2")
    c.e(f"s_lshl_b32 s{sT2}, s{sCnt}, 4\nv_mov_b32 v{T1}, s{sT2}\nv_cmp_eq_u32 vcc, 0, v{vl}\nv_cndmask_b32 v{T1}, v{T0}, v{T1}, vcc")
    c.e("v_mov_b32 v22, v102\nv_mov_b32 v23, v103\nv_accvgpr_write_b32 a254, v108\nv_accvgpr_write_b32 a255, v109")
    for g in late: emit_grp(c, g)
    if OPT.get("tq0", 1): c.e(f"buffer_load_dword a252, v22, {SR(sWQ)}, 0 offen")
    c.e(f"s_lshl_b32 s{sT}, s{sCnt}, 11")
    for r in range(2): c.e(f"buffer_load_dwordx4 {V(64+4*r,4)}, v{vL16}, {SR(sX)}, s{sT} offen offset:{1024*r}", tag="SR")
    stamp(c, "a4")
    c_ = c; c = Block(); c.wait(vm="SR")
    X = 72
    for r in range(2):
        for k in range(4): c.e(f"v_lshlrev_b32 v{X+8*r+2*k}, 16, v{64+4*r+k}\nv_and_b32 v{X+8*r+2*k+1}, 0xffff0000, v{64+4*r+k}")
    def wred():
        for sh in (8, 4, 2, 1):
            c.e("s_nop 0")
            for r in range(2): c.e(f"v_add_f32_dpp v{90+r}, v{90+r}, v{90+r} row_ror:{sh} row_mask:0xf bank_mask:0xf")
        for sw in ("16", "32"):
            for r in range(2): c.e(f"v_mov_b32 v{92+r}, v{90+r}")
            for r in range(2): c.e(f"v_permlane{sw}_swap_b32 v{92+r}, v{90+r}")
            for r in range(2): c.e(f"v_add_f32 v{90+r}, v{90+r}, v{92+r}")
        for r in range(2): c.e(f"v_mul_f32 v{90+r}, {f32(1/512)}, v{90+r}")
    for k in range(7):
        for r in range(2): c.e(f"v_add_f32 v{90+r}, v{X+8*r+k+1}, v{(X+8*r) if k == 0 else (90+r)}")
    wred()
    for r in range(2): c.e(f"v_mov_b32 v{94+r}, v{90+r}")
    for k in range(8):
        for r in range(2): c.e(f"v_sub_f32 v{X+8*r+k}, v{X+8*r+k}, v{94+r}")
    for k in range(8):
        for r in range(2): c.e(f"v_mul_f32 v{90+r}, v{X+8*r}, v{X+8*r}" if k == 0 else f"v_fmac_f32 v{90+r}, v{X+8*r+k}, v{X+8*r+k}")
    wred()
    def rnd(r): c.e(f"v_cvt_pk_bf16_f32 v{r}, v{r}, v{r}\nv_and_b32 v{r}, 0xffff0000, v{r}")
    for r in range(2): rnd(94 + r); rnd(90 + r)
    for r in range(2): c.e(f"v_add_f32 v{90+r}, {f32(1e-5)}, v{90+r}"); rnd(90 + r)
    for r in range(2): c.e(f"v_sqrt_f32 v{90+r}, v{90+r}")
    for r in range(2): rnd(90 + r)
    c.e("v_mov_b32 v96, v94\nv_mul_f32 v97, v90, v90\nv_mov_b32 v98, v95\nv_mul_f32 v99, v91, v91")
    c.e(f"buffer_store_dwordx4 v[96:99], v{T1}, {SR(sWS)}, 0 offen sc1", tag="ST")
    st_ = [x for x in c.ins if x.kind != "nop"]; c = c_
    first_reads, proj, hleft = gen_proj(st_)
    stamp(c, "a5")
    c.wait(vm="DX0"); c.ext(xreads(0)); c.wait(vm="DW0"); stamp(c, "a6"); c.e("s_barrier"); c.ext(first_reads); c.wait(lgkm="W0")
    stamp(c, "p0")
    e = Block(); e.name = "projepi"
    stamp(e, "projend")
    for i in range(4): e.e(f"v_xor_b32 v{24+i}, {128*i}, v30")
    def cq(i): return [Ins(f"ds_read_b128 {V(48+8*(i&1)+4*hf,4)}, v{24+i} offset:{64*hf}", tag=f"CQ{i}") for hf in range(2)]
    e.ext(cq(0) + cq(1))
    nfirst = [k for k, x in enumerate(hleft) if x.kind == "vstore"][0] + 1
    e.ext(hleft[:nfirst]); hleft = hleft[nfirst:]
    H = 192
    for ds in range(4):
        e.wait(lgkm=f"CQ{ds}")
        for t in range(4):
            d = Q(t, ds); h = H + 16 * (t & 1); o = t & 1; nm, aq = V(vNMU + t - o, 2), V(vAQ + t - o, 2); CS = 48 + 8 * (ds & 1)
            for k in range(4): e.e(f"v_accvgpr_read_b32 v{h+k}, a{128+(t*4+ds)*4+k}")
            prs = [(d, CS), (d + 2, CS + 2), (h, CS + 4), (h + 2, CS + 6)]
            for x, cs in prs: e.e(f"v_pk_fma_f32 {V(x,2)}, {V(cs,2)}, {nm}, {V(x,2)} op_sel:[0,{o},0] op_sel_hi:[1,{o},1]")
            for x, cs in prs: e.e(f"v_pk_mul_f32 {V(x,2)}, {V(x,2)}, {aq} op_sel:[0,{o}] op_sel_hi:[1,{o}]")
            for k, (x, cs) in enumerate(prs): e.e(f"v_cvt_pk_bf16_f32 v{d+k}, v{x}, v{x+1}")
        if ds < 2: e.ext(cq(ds + 2))
    PM = 48
    ch = [MF(V(PM + 4 * t, 4), A(KF(0, ds), 4), V(Q(t, ds), 4), "0" if n == 0 else V(PM + 4 * t, 4)) for t in range(4) for n, ds in enumerate(snake(t))]
    run = 0
    for k, x in enumerate(hleft):
        run = run + 1 if x.kind == "trans" else 0
        if ch and x.kind == "trans" and 3 <= run <= 5: e.add(ch.pop(0))
        e.add(x)
    e.ext(ch)
    e.e(f"s_cmp_lg_u32 s{sFB}, 0\ns_cbranch_scc1 L_truemax")
    e2 = Block(); e2.name = "premax"
    def rowmax_finish(blk, src):
        for sw in ("32", "16"):
            for t in range(4): blk.e(f"v_mov_b32 v{vT+t}, v{src(t)}")
            for t in range(4): blk.e(f"v_permlane{sw}_swap_b32 v{vT+t}, v{src(t)}")
            for t in range(4): blk.e(f"v_max_f32 v{src(t) if sw == '32' else vT+t}, v{src(t)}, v{vT+t}")
        for t in range(4):
            for r in range(4): blk.e(f"v_sub_f32 v{vNM+4*t+r}, 0, v{vT+t}")
    for t in range(4):
        s0 = PM + 4 * t
        e2.e(f"v_max3_f32 v{s0}, v{s0}, v{s0+1}, v{s0+2}\nv_max_f32 v{s0}, v{s0}, v{s0+3}")
    rowmax_finish(e2, lambda t: PM + 4 * t)
    first, even, odd, last = gen_attention()
    l0 = Block(); l0.e(f"L_att_start:\ns_mov_b32 s{sCnt}, 7\ns_mov_b32 s{sTW}, 0\ns_mov_b32 s{sT2W}, 0")
    l0.e(f"s_lshr_b32 s{sT}, s2, 3\ns_mul_i32 s{sT2}, s{sT}, {14*1024}\ns_lshl_b32 s{sT}, s{sT}, 15\ns_lshl_b32 s3, s{sSp}, 20\ns_add_u32 s{sT}, s{sT}, s3\ns_mul_i32 s3, s{sSp}, {448*1024}\ns_add_u32 s{sT2}, s{sT2}, s3")
    l0.e(f"v_and_b32 v28, 15, v0\nv_lshrrev_b32 v29, 6, v0\nv_lshl_add_u32 v28, v29, 4, v28\nv_bfe_u32 v29, v0, 4, 2\nv_lshlrev_b32 v29, 29, v29\nv_lshl_add_u32 v28, v28, 7, v29\nv_add_u32 v30, s{sT}, v28\nv_add_u32 v29, s{sT2}, v28")
    l0.e(f"s_lshl_b32 s{sT}, s{sQb}, 13\ns_add_u32 s{sT}, s{sT}, 32768\ns_sub_u32 s{sT}, s{sT}, s{sW8k}\nv_add_u32 v28, s{sT}, v28")
    l0.e(f"s_lshl_b32 s{sT}, s{sQb}, 5\ns_add_u32 s{sT}, s{sT}, s{sHead}\ns_lshl_b32 s{sT}, s{sT}, 7\ns_add_u32 s{sT}, s{sT}, {WS_FH}\nv_lshl_add_u32 v21, v0, 18, s{sT}\nv_mov_b32 v22, 1")
    l0.e(f"s_lshr_b32 s{sT}, s{sTr}, 1\ns_lshl_b32 s{sT}, s{sT}, 5\ns_mul_i32 s{sT2}, s{sSp}, 7\ns_add_u32 s{sT}, s{sT}, s{sT2}\ns_lshl_b32 s{sT}, s{sT}, 7\ns_add_u32 s{sT}, s{sT}, {WS_FH}\nv_and_b32 v23, 7, v0\nv_min_u32 v23, 6, v23\nv_lshl_add_u32 v23, v23, 7, s{sT}")
    l0.e(f"s_lshl_b32 s{sT}, s{sQb}, 5\ns_and_b32 s{sT2}, s{sHead}, 7\ns_add_u32 s{sT}, s{sT}, s{sT2}\ns_lshl_b32 s{sT}, s{sT}, 7\ns_add_u32 s{sT}, s{sT}, {WS_FH}")
    l0.e(f"v_and_b32 v24, 8, v0\nv_cmp_eq_u32 vcc, 0, v24\nv_and_b32 v24, 3, v0\nv_lshl_add_u32 v24, v24, 10, s{sT}\nv_cndmask_b32 v23, v24, v23, vcc\nv_cndmask_b32 v31, 7, v22, vcc")
    for r in range(4): l0.e(f"v_accvgpr_write_b32 a{aCHK+r}, -1")
    l0.e(f"s_mul_i32 s{sT}, s{sTc}, 3584\nv_and_b32 v27, 31, v0\nv_min_u32 v27, 27, v27\nv_lshl_add_u32 v27, v27, 7, s{sT}\nv_bfe_u32 v26, v0, 5, 1\nv_mul_u32_u24 v26, {BSTRIDE}, v26\nv_add_u32 v27, v27, v26")
    l0.e("v_accvgpr_read_b32 v24, a254\nv_accvgpr_read_b32 v25, a255")
    if OPT.get("kvtouch", 1):
        if OPT.get("l0t", 0) & 1: l0.e(f"s_sub_u32 s{sT}, s{sKo}, 32768\nbuffer_load_dword a252, v28, {SR(sK)}, s{sT} offen")
        if OPT.get("l0t", 0) & 2: l0.e(f"buffer_load_dword a252, v28, {SR(sV)}, s{sW8k} offen")
        l0.e(f"buffer_load_dword a252, v28, {SR(sV)}, s{sVo} offen")
    stamp(l0, "att0")
    l1 = Block(); stamp(l1, "loop")
    l1b = Block(); l1b.e(".p2align 6\nL_att_loop:")
    l4 = Block(); l4.e("L_att_last:"); stamp(l4, "last")
    if OPT.get("loopstamp"):
        l1b.e(f"s_memtime s[96:97]\ns_mov_b32 m0, s{sCnt}\ns_waitcnt lgkmcnt(0)\nv_writelane_b32 v31, s96, m0")
        for i in range(8): l4.e(f"v_readlane_b32 s{74+2*i}, v31, {7-i}\nv_readlane_b32 s{75+2*i}, v31, {7-i}")
    f = Block(); f.name = "check"
    stamp(f, "attend")
    vRL = vNM
    for _ in range(min(OPT.get("osf", 2), len(OSTORES))): emit_grp(f, OSTORES.pop(0))
    f.add(last.tailchk)
    f.e(f"s_mov_b32 s{sT}, {f32(2.0**100)}")
    f.e(f"v_max3_f32 v{vT}, v{vRL+4}, v{vRL+5}, v{vRL+6}\nv_max_f32 v{vT}, v{vT}, v{vRL+7}\nv_accvgpr_read_b32 v{vT+1}, a{aCHK}")
    f.e(f"v_add_f32 v{vT}, v{vT}, v{vT+1}\nv_cmp_nlt_f32 vcc, v{vT}, s{sT}")
    f.e(f"s_cmp_lg_u64 vcc, 0\ns_cselect_b32 s{sT}, 1, 0")
    E = OPT["early"]; assert 4 <= E <= 7
    f.e(f"v_mov_b32 v{vT}, s{sT}\nv_and_b32 v{vT+1}, 3, v0\nv_lshlrev_b32 v{vT+1}, 12, v{vT+1}\ns_add_u32 s{sT}, s{sWave}, {7*4096}\ns_lshl_b32 s{sT}, s{sT}, 2\nv_add_u32 v{vT+1}, s{sT}, v{vT+1}")
    f.e(f"ds_write_b32 v{vT+1}, v{vT}", tag="VW"); f.e(f"s_add_u32 s{sT}, s{sM}, {7*16384}\nv_mov_b32 v{vT+1}, s{sT}")
    if OSTORES: emit_grp(f, OSTORES.pop(0))
    f.e(f"s_lshl_b32 s{sT}, s{sWave}, 6\ns_or_b32 s{sT}, s{sT}, {L_V}\ns_and_b32 s{sT2}, s{sTr}, 1\ns_lshl_b32 s{sT2}, s{sT2}, 12")
    for v in range(2): f.e(f"v_xor_b32 v{vRAs+v}, s{sT}, v{vVA+v}")
    for st in (1, 2):
        for v in range(2): f.e(f"v_add_u32 v{vRAs+2*st+v}, {st*65536}, v{vRAs+v}")
    for st in range(3):
        for v in range(2): f.e(f"v_xor_b32 v{vRAg+4*st+v}, s{sT2}, v{vRAs+2*st+v}\nv_xor_b32 v{vRAg+4*st+2+v}, 0x1000, v{vRAg+4*st+v}")
        f.e(f"v_add_u32 v{vRB[st]}, {st*65536}, v{vL16}")
    while OSTORES: emit_grp(f, OSTORES.pop(0))
    f.wait(lgkm="VW", vm=[f"U{u}" for u in RD[-1]]); f.e("s_barrier")
    f.e(f"ds_read_b128 {V(vT+4,4)}, v{vT+1}", tag="FL")
    for u in RD[-1]: f.ext(ureads(u))
    f.wait(lgkm="FL")
    f.e(f"v_or_b32 v{vT+4}, v{vT+4}, v{vT+5}\nv_or3_b32 v{vT+4}, v{vT+4}, v{vT+6}, v{vT+7}\nv_readfirstlane_b32 s{sT}, v{vT+4}")
    f.e(f"s_andn2_b32 s{sT}, s{sT}, s{sFB}\ns_cmp_lg_u32 s{sT}, 0\n" + ("" if OPT.get("nofb") else "s_cbranch_scc1 L_fallback"))
    k = Block(); k.name = "tail"
    stamp(k, "tail0")
    su = II(f"""s_and_b32 s{sT}, s{sHead}, 7
s_mul_i32 s{sT}, s{sT}, 124
s_sub_u32 s{sT}, {WS_FO-WS_FH}, s{sT}
v_add_u32 v26, s{sT}, v21
v_mov_b32 v25, 1
v_and_b32 v{vPA}, 7, v0
s_lshr_b32 s{sT}, s{sTr}, 1
s_lshl_b32 s{sT}, s{sT}, 2
s_add_u32 s{sT}, s{sT}, s{sSp}
s_lshl_b32 s{sT}, s{sT}, 10
s_add_u32 s{sT}, s{sT}, {WS_FO}
v_lshl_add_u32 v{vPA}, v{vPA}, 2, s{sT}
s_add_u32 s100, s{sWS}, s{sT}
s_addc_u32 s101, s{sWS+1}, 0
v_and_b32 v27, 3, v0
v_lshlrev_b32 v27, 4, v27
v_bfe_u32 v24, v0, 2, 4
v_lshl_add_u32 v27, v24, 10, v27""")
    nU = E
    for n in range(E, 10): emit_grp(k, udma(n)); nU = n + 1
    k.ext(su)
    k.wait(lgkm="R")
    ldf = f"buffer_load_dword v{vPoll}, v{vPA}, {SR(sWS)}, 0 offen sc1"
    allset = f"v_cmp_eq_u32 vcc, 0, v{vPoll}\ns_nop 0\ns_cmp_eq_u64 vcc, 0"
    polled = False
    def take(n):
        nonlocal nU
        if n > 21: return []
        limit = min(RD[n][0] + 10, len(UNITS))
        r = []
        while nU < limit:
            kd, a_ = UNITS[nU]
            if kd == "Bs" and not (polled and (a_ < 4 or n - 7 >= OPT["bsat"][a_])): break
            r.append(udma(nU)); nU += 1
        return r
    def pack(src, dst): return II("\n".join(f"v_cvt_pk_bf16_f32 v{dst+r}, v{src+2*r}, v{src+2*r+1}" for r in range(8)) + "\n" + "\n".join(f"v_min_u32 v{dst+r}, -2, v{dst+r}" for r in range(8)))
    def xst(which, lam, reg):
        return (II(f"s_xor_b32 s{sCnt}, s{sXR}, {lam*65536 + (which*4+lam)*8192}"),
                [Ins(f"buffer_store_dwordx4 {V(reg+4*m,4)}, v{vL16}, {SR(sXP)}, s{sCnt} offen offset:{m*1024} sc1") for m in range(2)], [])
    def xld(which, lam, tag, so=sCnt):
        return (II(f"s_add_u32 s{so}, s{sXR}, {(which*4+lam)*8192}"),
                [Ins(f"buffer_load_dwordx4 {V(IN(which,lam)+4*m,4)}, v{vL16}, {SR(sXP)}, s{so} offen offset:{m*1024} sc1", tag=tag) for m in range(2)], [])
    IN = lambda which, lam: ACG(2 * lam, 0) + (0 if which else 8)
    def arrived(name, parts):
        regs = [IN(w_, l_) + r for w_, l_ in parts for r in range(8)]
        t = f"v_max3_u32 v28, v{regs[0]}, v{regs[1]}, v{regs[2]}\nv_max3_u32 v29, v{regs[3]}, v{regs[4]}, v{regs[5]}\n"
        for m in range(6, len(regs), 2): t += f"v_max3_u32 v{28+(m>>1)%2}, v{28+(m>>1)%2}, v{regs[m]}, v{regs[m+1]}\n"
        t += "v_max_u32 v28, v28, v29\nv_cmp_eq_u32 vcc, -1, v28\ns_nop 0\ns_cmp_eq_u64 vcc, 0"
        ld = "\n".join(x.text for w_, l_ in parts for g in [xld(w_, l_, None, sT)] for x in g[0] + g[1])
        r = poll_check(name, 0, ld, t)
        return r[:-5], r[-5:]
    G0, S0 = ACG(0, 0), ACS(2, 0)
    def unp(src, dst): return II("\n".join(f"v_lshlrev_b32 v{dst(2*r)}, 16, v{src+r}\nv_and_b32 v{dst(2*r+1)}, 0xffff0000, v{src+r}" for r in range(8)))
    gm = []
    for lam in (1, 2, 3):
        for h_ in range(2):
            for r in range(4): gm += II(f"v_lshlrev_b32 v{2+2*r}, 16, v{IN(1,lam)+4*h_+r}\nv_and_b32 v{3+2*r}, 0xffff0000, v{IN(1,lam)+4*h_+r}")
            for r in range(8): gm += II(f"v_add_f32 v{G0+8*h_+r}, v{G0+8*h_+r}, v{2+r}")
    nsum = len(gm)
    for h_ in range(2):
        g_ = lambda r: G0 + 8 * h_ + r
        for r in range(8): gm += II(f"v_mul_f32 v{2+r}, {f32(-LOG2E)}, v{g_(r)}")
        for r in range(8): gm += II(f"v_exp_f32 v{2+r}, v{2+r}") + (II(f"v_add_f32 v{r}, 1.0, v{r}") if r >= 2 else [])
        for r in range(8): gm += II(f"v_rcp_f32 v{2+r}, v{2+r}") + II(f"v_add_f32 v{8+r}, 1.0, v{8+r}" if r < 2 else f"v_mul_f32 v{g_(r-2)}, v{g_(r-2)}, v{r}")
        for r in (6, 7): gm += II(f"v_mul_f32 v{g_(r)}, v{g_(r)}, v{2+r}")
    nrest = len(gm) - nsum
    ta = II(f"""v_and_b32 v10, 15, v0
v_bfe_u32 v11, v0, 4, 2
v_and_b32 v18, 7, v0
v_xor_b32 v11, v11, v18
v_lshlrev_b32 v10, 7, v10
v_lshl_add_u32 v10, v11, 4, v10
v_add_u32 v10, s{sM}, v10
v_xor_b32 v11, 64, v10
v_and_b32 v18, 3, v0
v_lshlrev_b32 v18, 1, v18
v_bfe_u32 v19, v0, 2, 3
v_xor_b32 v18, v18, v19
v_bfe_u32 v19, v0, 2, 4
v_lshlrev_b32 v19, 7, v19
v_lshl_add_u32 v18, v18, 4, v19
v_add_u32 v18, s{sM}, v18
v_xor_b32 v19, 16, v18""")
    XR = IN(1, 1)
    at = lambda tl, y: max(q for q, gp in enumerate(tl.g) if any(x is y for x in gp.vec))
    for n in range(23):
        i = n - 7
        stamp(k, f"g{n}" if n < 7 else f"s{i}")
        tl = TL()
        if n < 7:
            for c_, j in enumerate((2, 3, 4, 5, 6, 7, 0, 1) if n == 6 else range(8)):
                for v in ((0, 1) if c_ % 2 == 0 else (1, 0)):
                    d = V(ACG(j, v), 4)
                    for m, ks in enumerate((0, 1) if v == (c_ & 1) else (1, 0)):
                        tl.add(MF(d, R(*AG(n, v, ks), 4), V(BF(n, j * 2 + ks), 4), "0" if (n == 0 and m == 0) else d))
        else:
            for e_ in range(2):
                for v in ((0, 1) if e_ == 0 else (1, 0)):
                    d = V(ACS(2 * ((i >> 2) & 1) + e_, v), 4)
                    for m, ks in enumerate(range(8) if v == e_ else range(7, -1, -1)):
                        tl.add(MF(d, A(AS(v, (i & 3) * 8 + ks), 4), V(BF(n, e_ * 8 + ks), 4), "0" if (i in (0, 4, 8) and m == 0) else d))
        grp = []; vm = [f"U{u}" for u in RD[n]]
        assert all(u < nU for u in RD[n]), n
        if n == OPT["flagstage"]: vm.append("OS"); grp.append(([], II(f"buffer_store_dword v25, v26, {SR(sWS)}, 0 offen sc1"), []))
        ck = None
        if i == OPT["gck"]: vm.append("IG"); ck = arrived("g", [(1, 1), (1, 2), (1, 3)])
        if i == 11: vm.append("I1"); ck = arrived("s1", [(0, 1)])
        if i == 15: vm.append("I2"); ck = arrived("s2", [(0, 2)])
        tl.scal_at(0, W(vm=vm))
        if RD[n]: tl.scal_at(1, Ins("s_barrier")); tl.scal_at(31, W(lgkm="R"))
        lo = 3
        if n == OPT["pollstage"]: tl.scal_at(OPT.get("pollgap", 2), Ins(f"s_load_dwordx8 s[{sK}:{sK+7}], s[100:101], 0 glc", tag="R"))
        if n == OPT["pollstage"] + 1:
            pc = poll_check("o", vPoll, ldf, allset)
            g = tl.g[2]; g.load += 2; polled = True; lo = 5
            g.vec += II(f"s_and_b64 s[{sK}:{sK+1}], s[{sK}:{sK+1}], s[{sK+2}:{sK+3}]\ns_and_b64 s[{sK+4}:{sK+5}], s[{sK+4}:{sK+5}], s[{sK+6}:{sK+7}]\ns_and_b64 s[{sK}:{sK+1}], s[{sK}:{sK+1}], s[{sK+4}:{sK+5}]\ns_and_b32 s{sK}, s{sK}, s{sK+1}") + pc[-2:]
        pk = []
        if n == 6: pk = [(11, 23, pack(ACG(2, 0), ACG(2, 0)))]
        if i == 0: pk = [(0, 14, pack(ACG(4, 0), ACG(4, 0))), (8, 24, pack(ACG(6, 0), ACG(6, 0)))]
        if i in (4, 8, 12): pk = [(4, 14, pack(ACS(2 * ((i // 4 + 1) & 1), 0), IN(0, i // 4)))]
        grp += take(n)
        if i == OPT["gld"]: grp += [xld(1, lam, "IG") for lam in (1, 2, 3)]
        if i == 8: grp.append(xld(0, 1, "I1"))
        if i == 0: grp += [xst(1, lam, IN(1, lam)) for lam in (1, 2, 3)]
        if i in (4, 8, 12): grp.append(xst(0, i // 4, IN(0, i // 4)))
        if i == 12:
            lo = 16
            grp += [([], II(f"buffer_load_dwordx4 {V(XR,4)}, v27, {SR(sX)}, s{sOo} offen\nbuffer_load_dwordx4 {V(XR+4,4)}, v27, {SR(sX)}, s{sXW} offen"), []), xld(0, 2, "I2")]
            assert len(gm) <= nsum + nrest - 32
        if i == 15: lo = OPT["i3gap"]; grp.append(xld(0, 3, "I3"))
        spill = []
        while sum(len(g[1]) + len(g[0]) // 2 for g in grp) > 22: spill.insert(0, grp.pop())
        nv = sum(len(g[1]) for g in grp)
        if grp: tl.spread(lo, min(29, lo + 4 * nv - 4) if i > 0 else 29, grp)
        rd = [x for u in RD[n] for x in ureads(u)]
        if len(rd) > 16: tl.vec_in(2, 27, rd)
        elif rd:
            free = [q for q in range(2, 27) if tl.g[q].load == 0]
            while len(free) > 16: free.pop(2 + 2 * (len(free) - 17) if 2 + 2 * (len(free) - 17) < len(free) else -1)
            if len(free) < 16: tl.vec_in(2, 27, rd)
            else:
                for x, q in zip(rd, free): tl.vec_at(q, x)
        for lo_, hi_, its in pk:
            left = tl.stream(lo_, hi_, its, cap=3); assert not left, (n, len(left))
            for y in its:
                for q, gp in enumerate(tl.g): assert not (gp.m.writes & y.reads) or at(tl, y) >= q, n
                for g in grp:
                    for x in g[1]: assert not (y.writes & x.reads) or at(tl, x) > at(tl, y), n
        q0 = 0
        if ck:
            left = tl.stream(0, 20, ck[0]); assert not left
            q0 = at(tl, ck[0][-1]) + 1; tl.g[q0].vec += ck[1]; tl.g[q0].load += 2; q0 += 1
        if i == 1: left = tl.stream(0, 31, ta); assert not left
        if i == 11: left = tl.stream(q0, 29, unp(IN(0, 1), lambda r: S0 + r)); assert not left
        if i == 15: left = tl.stream(q0, 31, unp(IN(0, 2), lambda r: 144 + r) + unp(XR, lambda r: 128 + r)); assert not left
        if i >= OPT["gck"] and gm: gm = tl.stream(q0 if i == OPT["gck"] else 0, 31, gm)
        k.ext(tl.emit(0, 32, "x").ins)
        for g in spill: emit_grp(k, g)
    assert nU == len(UNITS)
    stamp(k, "send")
    print("g math left over", len(gm), file=sys.stderr)
    k.ext(gm)
    def padd(acc, tmp):
        for r in range(0, 16, 2): k.e(f"v_pk_add_f32 {V(acc+r,2)}, {V(acc+r,2)}, {V(tmp+r,2)}")
    k.wait(vm="I3")
    ck = arrived("s3", [(0, 3)]); k.ext(ck[0] + ck[1])
    stamp(k, "spolled")
    k.ext(unp(IN(0, 3), lambda r: 160 + r)); padd(144, 160); padd(S0, 144)
    for r in range(0, 16, 2): k.e(f"v_pk_mul_f32 {V(S0+r,2)}, {V(S0+r,2)}, {V(G0+r,2)}")
    for e_ in range(2):
        for v in range(2): k.e(f"ds_write_b128 v{10+v}, {V(S0+(e_*2+v)*4,4)} offset:{e_*2048}")
    for e_ in range(2):
        for m in range(2): k.e(f"ds_read_b128 {V(160+e_*8+m*4,4)}, v{18+m} offset:{e_*2048}", tag=f"T{e_}")
    for e_ in range(2):
        k.wait(lgkm=f"T{e_}")
        for r in range(0, 8, 2): k.e(f"v_pk_add_f32 {V(128+8*e_+r,2)}, {V(128+8*e_+r,2)}, {V(160+8*e_+r,2)}")
        for r in range(4): k.e(f"v_cvt_pk_bf16_f32 v{176+4*e_+r}, v{128+8*e_+2*r}, v{129+8*e_+2*r}")
        k.e(f"buffer_store_dwordx4 {V(176+4*e_,4)}, v27, {SR(sOut)}, s{sXW if e_ else sOo} offen")
    z = Block(); z.name = "end"
    if OPT.get("encode") is not None:
        z.e("s_waitcnt vmcnt(0) lgkmcnt(0)"); stamp(z, "end")
        i0, i1 = (STAMPS[x] for x in OPT["encode"])
        fld = 72 if OPT.get("enccyc") else 73
        z.e(f"s_sub_u32 s92, s{fld+2*i1}, s{fld+2*i0}")
        z.e("s_lshr_b32 s92, s92, 2" if OPT.get("enccyc") else "s_lshl_b32 s92, s92, 2")
        z.e(f"s_add_u32 s92, s92, 20000\nL_enc:\ns_sleep 1\ns_memrealtime s[98:99]\ns_waitcnt lgkmcnt(0)\ns_sub_u32 s98, s98, s73\ns_cmp_lt_u32 s98, s92\ns_cbranch_scc1 L_enc")
    elif OPT["stamp"]:
        z.e("s_waitcnt vmcnt(0) lgkmcnt(0)"); stamp(z, "end")
        z.e(f"s_load_dwordx2 s[96:97], s[0:1], 88\ns_waitcnt lgkmcnt(0)"); ptr_add(z, 96, 0x8000000 + 0x40000); srd_fin(z, 96, 0x40000)
        for i in range(20): z.e(f"v_mov_b32 v{36+i}, s{72+i}")
        z.e(f"s_lshl_b32 s92, s2, 2\ns_add_u32 s92, s92, s{sWave}\ns_lshl_b32 s92, s92, 7\nv_mov_b32 v2, s92\ns_mov_b64 exec, 1")
        for i in range(5): z.e(f"buffer_store_dwordx4 {V(36+4*i,4)}, v2, s[96:99], 0 offen offset:{16*i}")
    z.e("L_end:\ns_endpgm")
    fb = Block(); fb.name = "fb"
    fb.e(f"L_fallback:\ns_mov_b32 s{sFB}, 1\ns_waitcnt vmcnt(0) lgkmcnt(0)\ns_barrier\ns_branch L_restart")
    m0 = Block(); m0.name = "tm0"
    m0.e(f"L_truemax:\ns_mov_b32 s{sKo}, s{sW8k}\ns_mov_b32 s{sCnt}, 16")
    for t in range(4): m0.e(f"v_mov_b32 v{vNM+4*t}, 0xff800000")
    m0.e("s_waitcnt vmcnt(0) lgkmcnt(0)")
    m1 = Block(); m1.name = "tm1"
    m1.e("L_tm_loop:\ns_barrier")
    emit_grp(m1, dma_K(0, 0, "DK")); emit_grp(m1, dma_K(1, 0, "DK"))
    m1.e("s_waitcnt vmcnt(0)\ns_barrier")
    for g in range(8):
        m1.ext(kreads(g, 0, 0, "K0")); m1.e("s_waitcnt lgkmcnt(0)")
        for t in range(4): m1.ext(qk_chain(t, 0, "0"))
        for t in range(4):
            s0 = vS + 4 * t
            m1.e(f"v_max3_f32 v{vNM+4*t}, v{vNM+4*t}, v{s0}, v{s0+1}\nv_max3_f32 v{vNM+4*t}, v{vNM+4*t}, v{s0+2}, v{s0+3}")
    m1.e(f"s_sub_u32 s{sCnt}, s{sCnt}, 1\ns_cmp_lg_u32 s{sCnt}, 0\ns_cbranch_scc1 L_tm_loop")
    m2 = Block(); m2.name = "tm2"
    rowmax_finish(m2, lambda t: vNM + 4 * t)
    m2.e(f"s_mov_b32 s{sKo}, s{sW8k}\ns_barrier")
    emit_grp(m2, dma_K(0, 0, "DK")); emit_grp(m2, dma_K(1, 0, "DK"))
    m2.e(f"s_add_u32 s{sKo}, s{sKo}, 32768\ns_waitcnt vmcnt(0)\ns_barrier")
    m2.ext(kreads(0, 0, 0, "K0")); m2.e("s_waitcnt lgkmcnt(0)\ns_branch L_att_start")
    att = [l0, first, l1, l1b, even, odd, l1b, even, odd, l1b, even, l4, last, f]
    front = [b2, c, proj, e]
    vb = []
    finalize([[b_] + front + [e2] + att + [k, z], [b_] + front + [e2] + att + [fb] + front + [m0, m1, m1, m2] + att + [k, z]] + [[s] for s in SLOW], vb)
    check_groups([x for bb in [b_] + front + [e2] + att + [k, z] for x in bb.ins])
    for x in vb:
        if x[0].startswith("att") or x[0] == "proj": print("nop:", x, file=sys.stderr)
    layout = [b_, b2, c, proj, e, e2, l0, first, l1, l1b, even, odd, l4, last, f, k, z, fb, m0, m1, m2] + SLOW
    return kernel_head(KN) + "\n".join(x.text() for x in layout) + "\n" + kernel_desc(KN, 512, 256)

def build():
    head = open("cdna_kernels/" + NAME + ".s.ref").read().split("; Override launch")[0]
    s = head + "; @launch grid=(256,1,1) block=(256,1,1) lds=163840\n" + '.amdgcn_target "amdgcn-amd-amdhsa--gfx950"\n'
    plan_units()
    return s + gen_kernel()

if __name__ == "__main__":
    out = sys.argv[1] if len(sys.argv) > 1 else "cdna_kernels/" + NAME + ".s"
    for a in sys.argv[2:]:
        k, v = a.split("="); OPT[k] = eval(v)
    names = OPT.get("stamps", "p0,p4,projend,att0,loop,last,tail0,gend").split(",")
    STAMPS.update({n: i + 1 for i, n in enumerate(names)}); STAMPS["start"] = 0; STAMPS["end"] = 9
    open(out, "w").write(build())
```

```python
import sys, math, struct
sys.path.insert(0, "gen")
from asmgen import *

NAME = "recurrent_scan__mha_block_cached__glu_gated_swiglu__prompt"
KN = NAME + "_kernel"
WS_ST, WS_FH, WS_FO, WS_FG, WS_FS = 0, 0x8000, 0x10000, 0x18000, 0x20000
WS_B, WS_X = 0x200000, 0x2000000
BSTRIDE = 184 * 1024
LOG2E = 1.4426950408889634
OOB = 0x7ffffff0
def f32(x): return "0x%08x" % struct.unpack("<I", struct.pack("<f", x))[0]
OPT = dict(stamp=False, early=7, pollstage=3, polld=1, htrip=2, flagstage=0, osr=1, osg=4, fgstage=5, fsstage=11, lead=5, ramp=0, i3gap=6, tq0=0, pa=.1, pb=.75, pc=.4, x2o=.15, x3a=.92, nh=3, asat=(-9, -9, -9, -9, 0, 0, 1, 1, 2, 2, 3, 3, 4, 4, 6, 5), bsat=(0, 0, 0, 0, 0, 2, 2, 3, 4, 6, 6, 7, 8, 10, 10, 11), gld=4, gck=7)

L_K, L_SP, L_V = 0, 65536, 98304
sX, sWQ, sW1, sW3, sK, sV, sB, sH, sWS, sDBG, sWO, sW2, sOut = range(4, 56, 4)
sHead, sQb, sWave, sW8k, sW4k, sXb, sKo, sVo, sCnt, sT, sT2, sWQo, sW13o, sBo, sFB, sW16k = range(56, 72)
sTr, sTc, sSp = 93, 94, 95
sTW, sT2W = 100, 101
sFs, sFv = 92, sOut + 2
vL16, vKA, vVA, vDK, vDV, vIDX, vT = 1, 2, 6, 14, 18, 20, 24
vS, vNM = 32, 48
def Q(t, ds): return 64 + (t * 4 + ds) * 4
def P(pb, kk, t): return 128 + pb * 64 + (t * 4 + kk) * 4
def O(dt, t): return (dt * 4 + t) * 4
def VF(b, kk): return (128 + b * 16 if b < 4 else 148 + b * 16) + kk * 4
aL, aONES = 192, 208
def KF(b, ds): return 212 + b * 16 + ds * 4
aCHK, aZ = 244, 248
vWQA, vW13A, vDQ, vD13, vXA, vDX = 24, 28, 32, 36, 40, 44

def SR(s): return f"s[{s}:{s+3}]"
def MF(d, a, bb, c): return Ins(f"v_mfma_f32_16x16x32_bf16 {d}, {a}, {bb}, {c}")
def II(txt, tag=None): return [Ins(x, tag=tag) for x in txt.split("\n") if x.strip()]
def srd_fin(b, d, nrec):
    b.e(f"s_and_b32 s{d+1}, s{d+1}, 0xffff\ns_mov_b32 s{d+2}, {nrec}\ns_mov_b32 s{d+3}, 0x20000")
def ptr_add(b, d, off): b.e(f"s_add_u32 s{d}, s{d}, {off}\ns_addc_u32 s{d+1}, s{d+1}, 0")

def stamp_ins(i):
    if not OPT["stamp"] or i is None: return []
    return II(f"s_waitcnt lgkmcnt(0)\ns_memtime s[96:97]\ns_memrealtime s[98:99]\ns_waitcnt lgkmcnt(0)\ns_mov_b32 s{72+2*i}, s96\ns_mov_b32 s{73+2*i}, s98")
STAMPS = {}
def stamp(b, name): b.ext(stamp_ins(STAMPS.get(name)))

class Gap:
    def __init__(self, m): self.m = m; self.scal = []; self.vec = []; self.load = 0
def cost_of(ins): return 2 if (ins.kind == "trans" or ins.is_vmem) else (0 if ins.kind in ("salu", "wait", "sctl", "label") else 1)
def is_ds(x): return x.kind in ("dsread", "dswrite")
def dep(a, b): return bool(a.writes & (b.reads | b.writes)) or bool(a.reads & b.writes)
class TL:
    def __init__(self): self.g = []
    def add(self, m):
        gp = Gap(m); self.g.append(gp)
        if m.op.startswith("v_smfmac"): gp.load = 1
        return len(self.g) - 1
    def pen(self, i, ins):
        gp = self.g[i]; l = gp.load + cost_of(ins)
        if is_ds(ins) and any(x.is_vmem for x in gp.vec): l += OPT.get("vmpen", .5)
        if is_ds(ins):
            if any(is_ds(x) for x in gp.vec): l += 1
            if any(x.is_valu and dep(x, ins) for x in gp.vec): l += 2
        return l
    def vec_at(self, i, ins):
        gp = self.g[i]; k = len(gp.vec)
        if is_ds(ins) or ins.is_vmem:
            while k > 0 and gp.vec[k - 1].is_valu and not dep(gp.vec[k - 1], ins): k -= 1
        gp.vec.insert(k, ins); gp.load += cost_of(ins)
    def vec_in(self, lo, hi, items):
        extra = {i: 0 for i in range(lo, hi + 1)}
        cand = []
        for it in items:
            i = min(extra, key=lambda k: (max(self.pen(k, it) + extra[k], 2), self.pen(k, it) + extra[k] if not OPT.get("pack") else 0, k)); cand.append(i); extra[i] += 2
        cand.sort()
        for i, it in zip(cand, items): self.vec_at(i, it)
        return cand
    def scal_at(self, i, ins, later=True):
        while self.g[i].scal: i += 1 if later else -1
        self.g[i].scal.append(ins); return i
    def spread(self, lo, hi, groups):
        n = sum(len(g[1]) for g in groups); k = 0; prev = lo - 3
        for grp in groups:
            sc, ve, post = grp
            for x in ve: x.grp = grp; x.role = "vec"
            first = True
            for it in ve:
                tgt = lo + (hi - lo) * k // max(n - 1, 1); k += 1
                mn = prev + 1
                if first:
                    i = max(prev + 1, tgt - len(sc) - 1)
                    for x in sc: i = self.scal_at(i, x) + 1
                    mn = max(mn, i); first = False
                cands = [j for j in range(max(mn, tgt - 1), max(mn, tgt - 1) + 4) if j < len(self.g)]
                j = min(cands, key=lambda z: (self.g[z].load, abs(z - tgt)))
                self.vec_at(j, it); prev = j
            for x in post: prev = self.scal_at(prev + 1, x)
        return prev
    def stream(self, lo, hi, items, cap=2):
        i = lo; items = list(items)
        while items and i <= hi:
            it = items[0]; c = cost_of(it)
            if c == 0:
                i += 1
                while i <= hi and self.g[i].scal: i += 1
                if i > hi: break
                self.g[i].scal.append(it); items.pop(0); continue
            if self.pen(i, it) <= cap: self.vec_at(i, it); items.pop(0)
            else: i += 1
        return items
    def sched(self, lo, hi, items, look=70, lat=6):
        items = list(items); rw = {}; pos = {}
        for x in items:
            r, w = set(x.reads), set(x.writes)
            if x.waitfor is not None:
                for y in items:
                    if y.tag is not None and any(y.tag in t for t in x.waitfor.values()): r |= y.writes; w |= y.writes
                r |= getattr(x, "guards", set()); w |= getattr(x, "guards", set())
            if x.is_vmem: r.add("vm"); w.add("vm")
            rw[id(x)] = (r, w)
        dp = lambda a, b: bool(rw[id(a)][1] & (rw[id(b)][0] | rw[id(b)][1])) or bool(rw[id(a)][0] & rw[id(b)][1])
        placed = []
        def ready(k, i):
            x = items[k]
            if any(dp(y, x) for y in items[:k]): return False
            for y in placed[-40:]:
                if not dp(y, x): continue
                d = 0
                if cost_of(x) == 0 or is_ds(x) or x.is_vmem: d = 1 if cost_of(y) > 0 or cost_of(x) == 0 else 0
                if x.waitfor is not None and is_ds(y): d = lat
                if (getattr(x, "dpp", False) or getattr(x, "permlane", False)) and y.is_valu: d = 2
                if i < pos[id(y)] + d: return False
            return True
        for i in range(lo, hi + 1):
            for want in (0, 2, 1, 1):
                for k in range(min(look, len(items))):
                    x = items[k]
                    if cost_of(x) != want: continue
                    if (self.g[i].scal if want == 0 else self.pen(i, x) > 2) or not ready(k, i): continue
                    if want == 0: self.g[i].scal.append(x)
                    else: self.vec_at(i, x)
                    pos[id(x)] = i; placed.append(x); items.pop(k); break
        return items
    def emit(self, lo, hi, name):
        b = Block(); b.name = name
        for gp in self.g[lo:hi]:
            if gp.m is not None: b.add(gp.m)
            b.ext(gp.scal); b.ext(gp.vec)
        return b

SLOW = []
def poll_check(name, vreg, load_txt, ready_cmp):
    inl = II(ready_cmp) + II(f"s_cbranch_scc0 L_spin_{name}\nL_back_{name}:")
    sl = Block(); sl.name = "spin" + name
    sl.e(f"L_spin_{name}:\ns_mov_b32 s3, 0x40000\nL_spin2_{name}:\ns_sleep {OPT.get('slp', 2)}\n{load_txt}\ns_waitcnt vmcnt(0)\ns_sub_u32 s3, s3, 1\ns_cmp_eq_u32 s3, 0\ns_cbranch_scc1 L_back_{name}")
    sl.e(ready_cmp); sl.e(f"s_cbranch_scc0 L_spin2_{name}\ns_branch L_back_{name}")
    SLOW.append(sl)
    return inl

def dma_K(half, buf, tag):
    return (II(f"s_add_u32 m0, s{sW8k}, {L_K + buf*32768 + half*4096}"),
            [Ins(f"buffer_load_dwordx4 v{vDK+p}, {SR(sK)}, s{sKo} offen offset:{p*1024} lds", tag=tag) for p in range(4)],
            II(f"s_add_u32 s{sKo}, s{sKo}, {4096 if half == 0 else 28672}"))
def dma_V(half, buf, tag):
    return (II(f"s_add_u32 m0, s{sW8k}, {L_V + buf*32768 + half*4096}"),
            [Ins(f"buffer_load_dwordx4 v{vDV+(p&1)}, {SR(sV)}, s{sVo} offen offset:{p*1024} lds", tag=tag) for p in range(4)],
            II(f"s_add_u32 s{sVo}, s{sVo}, {4096 if half == 0 else 28672}"))
def emit_grp(b, d): b.ext(d[0]); b.ext(d[1]); b.ext(d[2])
def check_groups(trace):
    last = {}; cnt = {}
    for x in trace:
        g = getattr(x, "grp", None)
        if g is not None and x.role == "vec":
            for r in x.reads:
                ws_ = [sc for sc in g[0] if r in sc.writes]
                if ws_: assert last.get(r) is ws_[-1], ("group scalar clobbered", x.text, last.get(r))
            for sc in g[2]:
                for r in sc.writes & x.reads:
                    key = (id(g), r)
                    if x is g[1][0]: cnt[key] = last.get(r)
                    assert last.get(r) is cnt[key] and (len(g[1]) == 1 or last.get(r) is not sc), ("post scalar order", x.text)
        for r in x.writes:
            if r[0] == "s" or r == "m0": last[r] = x
def kreads(g, buf, fb, tag):
    return [Ins(f"ds_read_b128 {A(KF(fb,ds),4)}, v{vKA+ds} offset:{buf*32768+g*4096}", tag=tag) for ds in range(4)]
def vreads(dt, buf, fb, tag):
    return [Ins(f"ds_read_b64_tr_b16 {A(VF(fb,kk)+2*kh,2)}, v{vVA+dt} offset:{buf*32768+(32*kk+16*kh)*256}", tag=tag) for kk in range(4) for kh in range(2)]
def snake(t): return range(4) if t % 2 == 0 else range(3, -1, -1)
def qk_chain(t, fb, c0):
    d = V(vS + 4 * t, 4)
    return [MF(d, A(KF(fb, ds), 4), V(Q(t, ds), 4), c0 if n == 0 else d) for n, ds in enumerate(snake(t))]
def pv_chain(dt, t, fb, pb):
    d = A(O(dt, t), 4)
    return [MF(d, A(VF(fb, kk), 4), V(P(pb, kk, t), 4), d) for kk in snake(t)]
def rs(t, kp, pb): return Ins(f"v_smfmac_f32_16x16x64_bf16 {A(aL+4*t,4)}, {A(aONES,4)}, {V(P(pb,2*kp,t),8)}, v{vIDX}")

vDA, vB1, vPoll, vPA = 14, 30, 29, 23
vRAs, vRB, vRAg = 6, (12, 13, 20), 48
sM, sAo, sWOo, sW2o = sW4k, sT2, sWQo, sW13o
sBg, sQ0, sBt = sXb, sW1 + 3, sKo
sBs = [sDBG, sDBG + 1, sDBG + 2, sDBG + 3]
sXP = sH
sXW, sXR, sOo, sFl2 = sW16k, 92, sQ0, 99
sGk = list(range(sWQ, sWQ + 7))
sHp = list(range(sW3, sW3 + 4))
UNITS = []; USEQ = {}; RD = {}
def plan_units():
    for n in range(-1, 22):
        r = [("Ag", n + 1), ("Bg", n + 1)] if n < 6 else [("Bs", n - 6)]
        r = [("As", a) for a in range(16) if OPT["asat"][a] == n] + r if n == 6 else r + [("As", a) for a in range(16) if OPT["asat"][a] == n]
        RD[n] = list(range(len(UNITS), len(UNITS) + len(r))); UNITS.extend(r)
    RD[22] = []
    USEQ.update({u: n for n, u in enumerate(UNITS)})
    for a in range(16): assert OPT["asat"][a] <= 6 + a // 4
    assert OPT["asat"][14] >= 6 and max(OPT["asat"]) <= 9
def udma(n):
    kind, i = UNITS[n] if isinstance(n, int) else n
    m0 = f"s_add_u32 m0, s{sM}, {uslot((kind, i))*16384}\n"; tag = f"U{n}" if isinstance(n, int) else f"E{i}"
    rot = OPT.get("rot", 1)
    if kind[0] == "A":
        sr, so = (sW2, sW2o) if kind == "Ag" else (sWO, sWOo)
        if kind == "As": ad = f"s_xor_b32 s{sAo}, s{so}, {i*65536}"
        else: ad = f"s_lshl_b32 s{sAo}, s{sGk[i]}, 5\ns_add_u32 s{sAo}, s{sAo}, s{so}"
        return (II(m0 + ad),
                [Ins(f"buffer_load_dwordx4 v{vDA+p}, {SR(sr)}, s{sAo} offen offset:{p*1024} lds", tag=tag) for p in range(4)], [])
    if kind == "Bg":
        return (II(m0 + f"s_add_u32 s{sBt}, s{sBg}, s{sGk[i]}"),
                [Ins(f"buffer_load_dwordx4 v{vL16 if p < 2 else vB1}, {SR(sB)}, s{sBt} offen offset:{p*1024} sc1 lds", tag=tag) for p in range(4)], [])
    bs, hp = sBs[(1, 2, 3, 0)[i >> 2]], sHp[i & 3]
    return (II(m0 + f"s_add_u32 s{sBt}, s{bs}, s{hp}"),
            [Ins(f"buffer_load_dwordx4 v{vL16}, {SR(sB)}, s{sBt} offen offset:{p*1024} sc1 lds", tag=tag) for p in range(4)], [])
XSLOT = {("As", 0): 0, ("As", 1): 1, ("As", 2): 4, ("As", 3): 5}
def uslot(u): return XSLOT[u] if u not in USEQ else USEQ[u] % 10
def uloc(u): sl = uslot(u); return sl // 4, (sl % 4) * 16384
_first = list(range(160, 192, 4)) + [0, 4, 16, 20, 32, 36, 48, 52]
ASREG = _first + [r for r in range(0, 256, 4) if r not in _first]
assert ASREG[56:60] == [224, 228, 232, 236]
def AS(v, ks): return ASREG[ks * 2 + v]
def AG(i, v, ks): return ("v", 32 + (v * 2 + ks) * 4) if i % 2 == 0 else ("a", 224 + (v * 2 + ks) * 4)
def BF(n, m): return 64 + (n & 1) * 64 + m * 4
def ACG(j, v): return 192 + (j * 2 + v) * 4
def ACS(q, v): return 32 + (q * 2 + v) * 4
def ureads(u, vRAs=vRAs):
    kind, i = UNITS[u] if isinstance(u, int) else u
    st, o = uloc((kind, i))
    if kind == "As":
        return [Ins(f"ds_read_b64_tr_b16 {A(AS(v,2*i+ks)+2*kh,2)}, v{vRAs+2*st+v} offset:{o+ks*8192+kh*4096}", tag="R") for ks in range(2) for v in range(2) for kh in range(2)]
    if kind == "Ag":
        return [Ins(f"ds_read_b64_tr_b16 {R(AG(i,v,ks)[0], AG(i,v,ks)[1]+2*kh, 2)}, v{vRAg+4*st+2*kh+v} offset:{o+ks*8192}", tag="R") for v in range(2) for ks in range(2) for kh in range(2)]
    n = i if kind == "Bg" else 7 + i
    return [Ins(f"ds_read_b128 {V(BF(n,m),4)}, v{vRB[st]} offset:{o+m*1024}", tag="R") for m in range(16)]
OSTORES = []
EARLY = []

def gen_attention():
    tl = TL()
    phases = [-1, 0, 1, 2, 3, 15]
    VPOS = OPT.get("vmpos", (5, 13, 21, 29))
    start = {}; stepb = {}
    for p in phases:
        start[p] = len(tl.g)
        if p == 15:
            def qk(t, s):
                d = V(vS + 4 * (2 * (s & 1) + (t & 1)), 4)
                for n, ds in enumerate(snake(t)): tl.add(MF(d, A(KF(s & 1, ds), 4), V(Q(t, ds), 4), V(vNM + 4 * t, 4) if n == 0 else d))
            def pv(dt, t, vs, pb, fwd):
                d = A(O(dt, t), 4)
                for kk in (range(4) if fwd else range(3, -1, -1)): tl.add(MF(d, A(VF(vs, kk), 4), V(P(pb, kk, t), 4), d))
            FR = [(i, t) for h_ in (0, 2) for i in range(4) for t in (h_, h_ + 1)]
            ost = lambda n: 128 + (FR[n][1] * 4 + FR[n][0]) * 4
            mk = lambda n: MF(A(aCHK, 4), A(aZ, 4), V(ost(n), 4), "0" if n == 0 else A(aCHK, 4))
            xb = {}; cdone = {}; chkpos = {}
            def chk(n): chkpos[n] = tl.add(mk(n))
            v3 = lambda dt: (0, 4, 1, 5)[dt & 3]
            for s in range(8):
                xb[s] = len(tl.g); qk(0, s); qk(1, s)
                for t in range(4): pv(s, t, s & 1, 0, 1 - (t & 1))
                tl.add(rs(s >> 1, s & 1, 0))
            for s in range(8):
                xb[8 + s] = len(tl.g); qk(2, s); qk(3, s)
                pv(s, 0, s & 1, 1, 1)
                if s & 1: cdone[s - 1] = len(tl.g) - 1
                pv(s, 1, s & 1, 1, 0)
                if s & 1: cdone[s] = len(tl.g) - 1
                if s == 0:
                    for t in (0, 1): tl.add(rs(t, 0, 1)); tl.add(rs(t, 1, 1))
                if s >= 4: chk(s - 4)
            for n in range(8, 16):
                i, t = FR[n]; xb[8 + n] = len(tl.g)
                if i == 0: tl.add(rs(t, 0, 1)); tl.add(rs(t, 1, 1))
                a_, b_ = (2 * i, 2 * i + 1) if t == 2 else (2 * i + 1, 2 * i)
                pv(a_, t, v3(a_), 1, 1); pv(b_, t, v3(b_), 1, 0); cdone[n] = len(tl.g) - 1
                chk(n - 4)
            xb[24] = len(tl.g)
            continue
        for s in range(8):
            stepb[p, s] = len(tl.g)
            if p != 15:
                for t in range(4):
                    for m in qk_chain(t, s & 1, V(vNM + 4 * t, 4)): tl.add(m)
            if p == -1:
                tl.add(Ins(f"v_mfma_f32_32x32x16_bf16 {A(16*s,16)}, {A(aZ,4)}, {A(aZ,4)}, 0"))
                if s == 0: tl.add(Ins(f"v_mfma_f32_32x32x16_bf16 {A(aL,16)}, {A(aZ,4)}, {A(aZ,4)}, 0"))
            else:
                for t in range(4):
                    for m in pv_chain(s, t, s & 1, p & 1): tl.add(m)
                if p != 15:
                    tl.add(rs(s >> 1, s & 1, p & 1))
    end = len(tl.g)
    nxt = {p: (start[phases[i + 1]] if i + 1 < len(phases) else end) for i, p in enumerate(phases)}
    for p in phases:
        if p == 15: continue
        pb = (p + 1) & 1
        for s in range(8):
            b0 = stepb[p, s]; nb = stepb[p, s + 1] if s < 7 else nxt[p]
            for t in range(4):
                sr = vS + 4 * t
                ex = [Ins(f"v_exp_f32 v{sr+r}, v{sr+r}") for r in range(4)]
                pd = P(pb, s >> 1, t) + 2 * (s & 1)
                cv = [Ins(f"v_cvt_pk_bf16_f32 v{pd+h}, v{sr+2*h}, v{sr+2*h+1}") for h in range(2)]
                if p >= 0:
                    o = b0 + 8 * t + (1 if t == 3 else 0)
                    pe = [o + 8 + 2 * r for r in range(4)]; pc = [o + 11, o + 15]
                else:
                    pe = [b0 + 4 * t + 8 + r for r in range(4)]; pc = [b0 + 4 * t + 10, b0 + 4 * t + 12]
                    if s == 7:
                        pe = [min(x, nb - 1) for x in pe]; pc = [min(x, nb - 1) for x in pc]
                        if t == 3: pe = [nb + 0, nb + 2, nb + 4, nb + 6]; pc = [nb + 3, nb + 7]
                seq = sorted([(pe[0],0,ex[0]),(pe[1],1,ex[1]),(pc[0],3 if p < 0 else 2,cv[0]),(pe[2],2.5,ex[2]),(pe[3],4,ex[3]),(pc[1],5,cv[1])], key=lambda z: (z[0], z[1]))
                for pos, _, ins in seq: tl.vec_at(pos, ins)
    for p in phases:
        if p == 15: continue
        if 0 <= p < 15:
            grps = [dma_K(0, p & 1, "DK"), dma_K(1, p & 1, "DK"), dma_V(0, (p + 1) & 1, "DV"), dma_V(1, (p + 1) & 1, "DV")]
            for s in range(8):
                tl.scal_at(stepb[p, s] + 15, W(lgkm=f"V{s}"), later=False)
                tl.scal_at(stepb[p, s] + 31, W(lgkm=f"K{(s+1)&7}"), later=False)
            if OPT.get("kvtouch", 1): grps.append(([], II(f"buffer_load_dword a252, v28, {SR(sK if p % 2 == 0 else sV)}, s{sKo if p % 2 == 0 else sVo} offen"), []))
            so, sr = (sTW, sWO) if p % 2 == 0 else (sT2W, sW2)
            grps.append((II(f"s_cmp_le_u32 s{sCnt}, {OPT.get('wtrip', 2)}\ns_cselect_b32 s{sT}, s{so}, 0x40000000"), II(f"buffer_load_dword a252, v{30 if p % 2 == 0 else 29}, {SR(sr)}, s{sT} offen"),
                         II(f"s_add_u32 s{so}, s{so}, {0x4000 if (p % 2 == 0 and OPT.get('wo2', 1)) else 0x2000}\ns_and_b32 s{so}, s{so}, {0x7fff if p % 2 == 0 else 0x3fff}")))
            if p % 2 == 0 and OPT.get("cpl", 1): grps.append(([], II("global_load_dword a252, v[24:25], off"), []))
            if p % 2 == 1:
                grps.append(([], II(f"buffer_store_dword v22, v21, {SR(sWS)}, 0 offen sc1"), []))
                tl.vec_at(stepb[p, 7] + 1, Ins("v_add_u32 v22, 1, v22"))
            if not OPT.get("noclr"): grps.append(([], II(f"buffer_store_dwordx4 {A(aCHK,4)}, v{vL16}, {SR(sXP)}, s{sT2} offen offset:{1024*(p&1)} sc1"), []))
            if p % 2 == 0:
                q = stepb[p, 0] + 6
                for x in II(f"s_cmp_lt_u32 s{sCnt}, 5\ns_subb_u32 s3, s{sCnt}, 0\ns_and_b32 s{sT2}, s3, 3\ns_lshl_b32 s{sT2}, s{sT2}, 3\ns_or_b32 s{sT2}, s{sT2}, s3\ns_lshl_b32 s{sT2}, s{sT2}, 13\ns_xor_b32 s{sT2}, s{sT2}, s{sXR}\ns_cmp_gt_u32 s{sCnt}, 1\ns_cselect_b32 s{sT2}, s{sT2}, 0x40000000"):
                    q2 = tl.scal_at(q, x); assert q2 == q; q += 1
            if p % 2 == 1 and OPT.get("htouch", 1):
                grps.append((II(f"s_cmp_eq_u32 s{sCnt}, {OPT.get('htrip', 1)}\ns_cselect_b32 s{sT}, s{sBg}, 0x40000000"), II(f"buffer_load_dword a252, v27, {SR(sB)}, s{sT} offen"), []))
            k = 0
            for grp in grps:
                for j, x in enumerate(grp[1]):
                    gi = stepb[p, k // len(VPOS)] + VPOS[k % len(VPOS)]; k += 1
                    if j == 0:
                        q = gi
                        for y in reversed(grp[0]):
                            q2 = tl.scal_at(q - 1, y, later=False); assert len(grp[0]) == 1 or q2 == q - 1; q = q2
                    tl.vec_at(gi, x); x.grp = grp; x.role = "vec"
                for x in grp[2]: gi = tl.scal_at(gi + 1, x)
            assert gi < stepb[p, 7]
            e_ = stepb[p, 7]
            if p % 2 == 1:
                tl.scal_at(e_ + 29, Ins(f"s_sub_u32 s{sCnt}, s{sCnt}, 1")); tl.scal_at(e_ + 30, Ins(f"s_cmp_lg_u32 s{sCnt}, 0")); tl.scal_at(e_ + 32, Ins("s_cbranch_scc1 L_att_loop"))
        for s in range(8):
            b0 = stepb[p, s]; nb = stepb[p, s + 1] if s < 7 else nxt[p]
            ns, npz = (s + 1) & 7, (p + 1 if s == 7 else p)
            if s == 7:
                i = tl.scal_at(b0 + (5 if p >= 0 else 4), W(lgkm=["V7", "K7"], vm=["DK", "DV"]))
                if not (OPT.get("nobar") and p >= 0): tl.scal_at(i + 1, Ins("s_barrier"))
            if p >= 0:
                kr = kreads(ns, (npz + 1) & 1, ns & 1, f"K{ns}"); vr = vreads(ns, npz & 1, ns & 1, f"V{ns}")
                free = [o for o in range(7 if s == 7 else 1, 32, 2) if not any(x.is_vmem for x in tl.g[b0 + o].vec)]
                assert len(free) >= 12
                for x, o in zip(kr + vr, free): tl.vec_at(b0 + o, x)
            else:
                tl.vec_in(b0 + 6, b0 + 10, kreads(ns, (npz + 1) & 1, ns & 1, f"K{ns}"))
                if s == 7: tl.vec_in(b0 + 10, nb - 1, vreads(0, 0, 0, "V0"))
                tl.scal_at(nb - 1, W(lgkm=f"K{ns}"), later=False)
    rot = OPT.get("rot", 1)
    sc = f"""s_add_u32 s{sXP}, s{sWS}, {WS_X}
s_addc_u32 s{sXP+1}, s{sWS+1}, 0
s_mov_b32 s{sXP+2}, 0x1000000
s_lshl_b32 s{sT}, s{sTr}, 2
s_add_u32 s{sT}, s{sT}, s{sTc}
s_lshl_b32 s{sT}, s{sT}, 2
s_add_u32 s{sT}, s{sT}, s{sSp}
s_lshl_b32 s{sT}, s{sT}, 16
s_lshl_b32 s{sXR}, s{sWave}, 11
s_add_u32 s{sXR}, s{sXR}, s{sT}
"""
    sc += f"""s_lshl_b32 s{sT}, s{sTc}, 8
s_lshl_b32 s{sWOo}, s{sWave}, 14
s_add_u32 s{sWOo}, s{sWOo}, s{sT}
s_mul_i32 s{sW2o}, s{sSp}, {448*1024}
s_add_u32 s{sW2o}, s{sW2o}, s{sWOo}
s_lshl_b32 s{sT}, s{sSp}, 20
s_add_u32 s{sWOo}, s{sWOo}, s{sT}
s_lshr_b32 s{sQ0}, s{sTr}, 1
s_lshl_b32 s{sQ0}, s{sQ0}, 2
s_and_b32 s{sT}, s{sTr}, 1
s_add_u32 s{sQ0}, s{sQ0}, s{sT}
s_lshl_b32 s{sQ0}, s{sQ0}, 2
s_xor_b32 s{sT}, s{sWave}, s{sSp}
s_and_b32 s{sT2}, s{sT}, 2
s_add_u32 s{sT}, s{sT}, s{sT2}
s_lshl_b32 s{sT}, s{sT}, 1
s_add_u32 s{sT}, s{sT}, s{sQ0}
s_mul_i32 s{sBg}, s{sT}, {BSTRIDE}
s_mul_i32 s{sT}, s{sSp}, {14*1024}
s_add_u32 s{sT}, s{sT}, {128*1024}
s_add_u32 s{sBg}, s{sBg}, s{sT}
s_lshl_b32 s{sT}, s{sHead}, 12
s_add_u32 s{sBo}, s{sBo}, s{sT}
s_mul_i32 s{sGk[0]}, s{sTc}, {4096*rot}
s_mul_i32 s{sHp[0]}, s{sTc}, {8192*rot}
s_lshl_b32 s{sT2}, s{sHp[0]}, 5
s_xor_b32 s{sWOo}, s{sWOo}, s{sT2}
"""
    for i in range(1, 7): sc += f"s_add_u32 s{sGk[i]}, s{sGk[i-1]}, 2048\ns_cmp_eq_u32 s{sGk[i]}, {7*2048}\ns_cselect_b32 s{sGk[i]}, 0, s{sGk[i]}\n"
    for i in range(1, 4): sc += f"s_xor_b32 s{sHp[i]}, s{sHp[0]}, {8192*i}\n"
    sc += f"""s_lshr_b32 s{sT}, s{sWave}, 1
s_mul_i32 s{sT}, s{sT}, {BSTRIDE}
s_and_b32 s3, s{sWave}, 1
s_lshl_b32 s3, s3, 12
s_add_u32 s3, s3, s{sT}
s_lshl_b32 s{sT}, s{sSp}, 15
s_add_u32 s3, s3, s{sT}
"""
    for lam in (3, 2, 1, 0):
        sc += f"s_xor_b32 s{sT}, s{sSp}, {lam}\ns_and_b32 s{sT2}, s{sT}, 2\ns_add_u32 s{sT}, s{sT}, s{sT2}\ns_lshl_b32 s{sT}, s{sT}, 1\ns_add_u32 s{sT}, s{sT}, s{sQ0}\ns_mul_i32 s{sBs[lam]}, s{sT}, {BSTRIDE}\ns_add_u32 s{sBs[lam]}, s{sBs[lam]}, s3\n"
    sc += f"""s_lshl_b32 s{sOo}, s{sT}, 14
s_lshl_b32 s{sT}, s{sTc}, 8
s_add_u32 s{sOo}, s{sOo}, s{sT}
s_lshl_b32 s{sT}, s{sWave}, 6
s_add_u32 s{sOo}, s{sOo}, s{sT}
s_add_u32 s{sXW}, s{sOo}, 16384
"""
    if OPT.get("noBg"): sc += f"s_mov_b32 s{sBg}, 0x40000000\n"
    if OPT.get("noOS"): sc += f"s_mov_b32 s{sBo}, 0x40000000\n"
    left = tl.stream(start[-1], nxt[-1] - 1, II(sc)); assert not left, len(left)
    T = vT
    for x in range(16):
        s_ = x & 7; b0, nb = xb[x], xb[x + 1]
        for h_ in range(2):
            t = (x >> 3) * 2 + h_; sr = vS + 4 * (2 * (s_ & 1) + h_); pd = P(1, s_ >> 1, t) + 2 * (s_ & 1); o = (nb if x >= 8 else b0 + 16) if h_ else b0 + 8
            for r in range(4): tl.vec_at(o + 2 * r, Ins(f"v_exp_f32 v{sr+r}, v{sr+r}"))
            for h in range(2): tl.vec_at(o + 3 + 4 * h, Ins(f"v_cvt_pk_bf16_f32 v{pd+h}, v{sr+2*h}, v{sr+2*h+1}"))
    for x in range(16):
        tl.scal_at(xb[x] + 7, W(lgkm=f"V{x}"))
        if x < 15: tl.scal_at(xb[x + 1] - 1, W(lgkm=f"K{x+1}"))
    for x in range(16, 24, 2): tl.scal_at(xb[x] - 1, W(lgkm=f"V{x}"))
    tl.scal_at(xb[4] + 8, W(vm="E1")); tl.scal_at(xb[4] + 9, Ins("s_barrier"))
    tl.scal_at(xb[7] + 8, W(vm=["DV", "E3"], lgkm="R")); tl.scal_at(xb[7] + 9, Ins("s_barrier"))
    tl.scal_at(xb[15] + 8, W(lgkm="R")); tl.scal_at(xb[15] + 9, Ins("s_barrier"))
    ld1 = f"buffer_load_dword v{vPoll}, v23, {SR(sWS)}, 0 offen sc1"
    chk1 = poll_check("h", vPoll, ld1, f"v_cmp_gt_u32 vcc, v31, v{vPoll}\ns_nop 0\ns_cmp_eq_u64 vcc, 0")
    def put(grps, slots):
        slots = list(slots); prev = slots[0] - 5
        for g in grps:
            for x in g[1]:
                gi = slots.pop(0)
                if x is g[1][0] and g[0]:
                    free = [q for q in range(max(prev + 1, gi - 5), gi) if not tl.g[q].scal][-len(g[0]):]
                    free = sorted(free + [gi - 1] * (len(g[0]) - len(free)))
                    for y, q in zip(g[0], free): tl.g[q].scal.append(y)
                tl.vec_at(gi, x); x.grp = g; x.role = "vec"; prev = gi
            for y in g[2]: tl.scal_at(gi + 1, y)
    assert [UNITS[u][0] for u in range(7)] == ["Ag", "Bg", "Ag", "Bg", "As", "As", "Ag"]
    sl = [xb[x] + o for x in range(8) for o in (1, 5, 13, 21)]
    put([dma_V(0, 1, "DV"), udma(("As", 0)), udma(("As", 1)), dma_V(1, 1, "DV"), udma(("As", 2)), udma(("As", 3)), ([], [Ins(ld1, tag="C1")], [])], sl[1:])
    gp = tl.g[xb[9] + 4]; gp.vec += [W(vm="C1")] + chk1; gp.load += 1
    put([udma(0), udma(6), udma(1)], [xb[7] + 13, xb[7] + 17, xb[7] + 21, xb[8] + 1, xb[8] + 5, xb[8] + 9, xb[8] + 13, xb[9] + 1, xb[9] + 5, xb[9] + 9, xb[9] + 13, xb[10] + 1])
    EARLY[:] = [0, 1, 6] + [2, 3, 4, 5][:OPT.get("e3", 4)]
    put([udma(u) for u in EARLY[3:]], [xb[x] + 6 for x in range(16, 24)] if len(EARLY) <= 5 else [xb[x] + o for x in range(16, 24) for o in ((1, 5) if x == 16 else (0, 6))])
    su = II(f"""v_bfe_u32 v{T}, v0, 4, 2
v_mul_u32_u24 v{T}, 768, v{T}
v_add_u32 v{vDA}, v{vDV}, v{T}
v_add_u32 v{vDA+1}, v{vDV+1}, v{T}
v_add_u32 v{vDA+1}, 3072, v{vDA+1}
v_add_u32 v{vDA+2}, 6144, v{vDA}
v_add_u32 v{vDA+3}, 6144, v{vDA+1}
v_add_u32 v{vB1}, {BSTRIDE-2048}, v{vL16}""")
    su2 = II(f"""s_lshl_b32 s{sT}, s{sWave}, 6
s_or_b32 s{sT}, s{sT}, {L_V}
v_xor_b32 v25, s{sT}, v{vVA}
v_xor_b32 v26, s{sT}, v{vVA+1}
v_add_u32 v27, 0x10000, v25
v_add_u32 v28, 0x10000, v26""")
    for n in range(16):
        i, t = FR[n]
        OSTORES.append((II(f"s_add_u32 s{sCnt}, s{sBo}, {t*BSTRIDE}"),
                        [Ins(f"buffer_store_dwordx4 {V(ost(n),4)}, v{vL16}, {SR(sB)}, s{sCnt} offen offset:{1024*i} sc1", tag="OS")], []))
    ospos = {}
    for n in range(13):
        ospos[n] = xb[11 + n] + (9 if n < 5 else (9, 3, 2)[min(n - 5, 2)]); put([OSTORES.pop(0)], [ospos[n]])
    for x in range(15):
        nx = x + 1; b0, nb = xb[x], xb[nx]
        if x < 8:
            kr = kreads(nx & 7, 1, nx & 1, f"K{nx}"); vr = vreads(nx & 7, nx >> 3, nx & 1, f"V{nx}")
            if x == 0: tl.vec_in(b0 + 3, nb - 5, kr); tl.vec_in(b0 + 9, nb + 2, vr)
            elif x < 7: tl.vec_in(b0 + 3, nb - 2, kr + vr)
            else: tl.vec_in(b0, b0 + 7, kr); tl.vec_in(b0 + 11, nb + 3, vr)
        else:
            tl.vec_in(b0 + 3, b0 + 11, kreads(nx & 7, 1, nx & 1, f"K{nx}"))
            tl.vec_in(b0 + 8, nb + 2, vreads(nx & 7, 1, nx & 1, f"V{nx}"))
    for i in range(4):
        r = vreads(2 * i, 1, v3(2 * i), f"V{16+2*i}") + vreads(2 * i + 1, 1, v3(2 * i + 1), f"V{16+2*i}")
        tl.vec_in(xb[15] + 3 if i == 0 else xb[14 + 2 * i], xb[16 + 2 * i] - 3, r)
    left = tl.stream(xb[0], xb[1] + 4, su, cap=3); assert not left
    left = tl.stream(xb[2], xb[4], su2); assert not left
    tl.vec_in(xb[4] + 10, xb[7] + 1, ureads(("As", 0), 25) + ureads(("As", 1), 25))
    vRL = vNM
    def lr(t): return II(f"v_accvgpr_read_b32 v{vRL+4+t}, a{aL+4*t}\nv_accvgpr_read_b32 v{vRL+t}, a{aL+4*t+1}\nv_add_f32 v{vRL+4+t}, v{vRL+4+t}, v{vRL+t}\nv_rcp_f32 v{vRL+t}, v{vRL+4+t}")
    left = tl.stream(xb[9] + 4, xb[10] - 1, lr(0) + lr(1), cap=4); assert not left
    where = lambda y: max(q for q, gp in enumerate(tl.g) if any(x is y for x in gp.vec))
    lo = xb[10]; tail_ = []
    for n in range(16):
        i, t = FR[n]; o = ost(n); tb = 64 + 8 * (n & 1)
        ar = [(k, O(2 * i + (k >> 2), t) + (k & 3)) for k in range(8)]
        if t == 3: ar = ar[4:] + ar[:4]
        items = (lr(t) if n in (8, 9) else []) + II("\n".join(f"v_accvgpr_read_b32 v{tb+k}, a{a_}" for k, a_ in ar))
        items += II("\n".join(f"v_mul_f32 v{tb+k}, v{tb+k}, v{vRL+t}" for k, a_ in ar))
        items += II("\n".join(f"v_cvt_pk_bf16_f32 v{o+k}, v{tb+2*k}, v{tb+2*k+1}" for k in range(4)))
        lo = max(lo, cdone[n] + 2)
        if tail_ or lo >= end: tail_ += items; continue
        hi = min(ospos.get(n, end), chkpos.get(n, end + 1) - 1) - 1
        hi2 = min(hi, lo + (OPT.get("epspan", 17) if n < 6 else OPT.get("epspan3", 7)))
        for cap in (2, 3, 4, 5, 6, 7, 8):
            room = sum(max(0, cap - tl.g[q].load) for q in range(lo, hi2 + 1) if not any(x.is_vmem for x in tl.g[q].vec))
            if room >= len(items) + 2: break
        blocked = [q for q in range(lo, hi + 1) if any(x.is_vmem for x in tl.g[q].vec)]
        for q in blocked: tl.g[q].load += 10
        left = tl.stream(lo, hi, items, cap=cap)
        for q in blocked: tl.g[q].load -= 10
        if left: assert n >= 13, n; tail_ += left
        else: lo = where(items[-1])
        if n in (1, 3):
            q = where(items[7]) + 1; assert q + 12 < xb[15] + 2
            tl.vec_in(q, min(q + 24, xb[15] + 2), ureads(("As", 2 + n // 2), 25))
    print("ending: VALU left over", len(tail_), file=sys.stderr)
    blk = {p: tl.emit(start[p], nxt[p], f"att{p}") for p in phases}
    tx = lambda b: [(i.text, str(i.waitfor), i.tag) for i in b.ins]
    assert tx(blk[0]) == tx(blk[2]) and tx(blk[1]) == tx(blk[3])
    last = blk[15]
    for nm, x in (("x2", 8), ("x3", 16)):
        k_ = next(q for q, y in enumerate(last.ins) if y is tl.g[xb[x]].m); last.ins[k_:k_] = stamp_ins(STAMPS.get(nm))
    last.ins += tail_[:-12] + [mk(12)] + tail_[-12:-8] + [mk(13)] + tail_[-8:-4] + [mk(14)] + tail_[-4:]
    last.tailchk = mk(15)
    return blk[-1], blk[0], blk[1], last

PARTS = [("G", 0), ("Q", 0), ("G", 1), ("Q", 1), ("G", 2), ("G", 3), ("Q", 2), ("Q", 3)]
SLOT = lambda i: (L_V + 32768, L_SP, L_V)[i % 3]
vNMU, vAQ, vAE, vIR = 32, 36, 40, 44
def XB(c, t, ks): return (c & 1) * 64 + (t * 4 + ks) * 4
def WF(fb, ks): return 212 + fb * 16 + ks * 4
def pacc(kind, u, t):
    if kind == "G": return V(128 + (u & 1) * 64 + ((u >> 1) * 4 + t) * 4, 4)
    ds, hf = u >> 1, u & 1
    return V(Q(t, ds), 4) if hf == 0 else A(128 + (t * 4 + ds) * 4, 4)
def wdma(i):
    kind, c = PARTS[i]; base = SLOT(i); g = []
    if kind == "Q":
        for half in range(2):
            g.append((II(f"s_add_u32 m0, s{sW8k}, {base + half*4096}\ns_add_u32 s{sT}, s{sWQo}, {(c*128+16*half)*8192}"),
                      [Ins(f"buffer_load_dwordx4 v{vDQ+p}, {SR(sWQ)}, s{sT} offen offset:{p*1024} lds", tag=f"DW{i}") for p in range(4)], []))
    else:
        for k, sr in enumerate((sW1, sW3)):
            g.append((II(f"s_add_u32 m0, s{sW4k}, {base + k*16384}\ns_add_u32 s{sT}, s{sW13o}, {c*128*3584}"),
                      [Ins(f"buffer_load_dwordx4 v{vD13+p}, {SR(sr)}, s{sT} offen offset:{p*1024} lds", tag=f"DW{i}") for p in range(4)], []))
    return g
def xdma(c):
    return [(II(f"s_xor_b32 m0, s100, {t*4096}\ns_xor_b32 s{sT}, s101, {t*16384 + c*256}"),
             [Ins(f"buffer_load_dwordx4 v{vDX+p}, {SR(sX)}, s{sT} offen offset:{p*1024} lds", tag=f"DX{c}") for p in range(4)], []) for t in range(4)]
def xreads(c):
    return [Ins(f"ds_read_b128 {A(XB(c,t,ks),4)}, v{vXA+ks} offset:{t*4096}", tag=f"X{c}") for t in range(4) for ks in range(4)]

def gen_proj(stats):
    base = {"G": L_V, "Q": L_SP}
    def wreads(i, u, tag):
        kind, c = PARTS[i]; off0 = SLOT(i) - base[kind]; assert 0 <= off0 <= 32768
        r = []
        for ks in range(4):
            for kh in range(2):
                if kind == "Q": ad, off = vWQA + (u >> 1), ks * 8192 + kh * 1024 + 8 * (u & 1)
                else: ad, off = vW13A + (u >> 1), ks * 4096 + kh * 512 + 16384 * (u & 1)
                r.append(Ins(f"ds_read_b64_tr_b16 {A(WF(u&1,ks)+2*kh,2)}, v{ad} offset:{off0+off}", tag=tag))
        return r
    first_reads = wreads(0, 0, "W0")
    tl = TL(); tb = {}
    for i, (kind, c) in enumerate(PARTS):
        for u in range(8):
            tb[i, u] = len(tl.g)
            for t in range(4):
                d = pacc(kind, u, t)
                for n, ks in enumerate(snake(t)):
                    tl.add(MF(d, A(WF(u & 1, ks), 4), A(XB(c, t, ks), 4), "0" if (c == 0 and n == 0) else d))
            if u < 2:
                d = A(aL + (8 if kind == "Q" else 0) + 4 * u, 4)
                for kp in range(2): tl.add(Ins(f"v_smfmac_f32_16x16x64_bf16 {d}, {A(aONES,4)}, {A(WF(u&1,2*kp),8)}, v{vIDX}"))
    end = len(tl.g)
    tb[8, 0] = end
    nx = lambda i, u: tb[i, u + 1] if u < 7 else tb[i + 1, 0]
    extra_vm = {1: ["ST"], 7: ["DK0"]}
    for i, (kind, c) in enumerate(PARTS):
        for u in range(8):
            b0 = tb[i, u]; nb = nx(i, u)
            if u < 7:
                r = wreads(i, u + 1, f"W{u+1}")
                for k, x in enumerate(r): tl.vec_at(b0 + (0, 1, 2, 4, 5, 6, 8, 9)[k], x)
                tl.scal_at(nb - 1, W(lgkm=f"W{u+1}"), later=False)
            else:
                vm = ([f"DW{i+1}"] if i < 7 else []) + extra_vm.get(i, [])
                tl.scal_at(b0, W(vm=vm, lgkm={4: ["X3"], 5: ["CS"], 7: ["CS"]}.get(i)))
                tl.scal_at(b0 + 1, Ins("s_barrier"))
                if i < 7:
                    nk = PARTS[i + 1][0]
                    if not 0 <= SLOT(i + 1) - base[nk] <= 32768:
                        dlt = SLOT(i + 1) - base[nk]; base[nk] += dlt
                        ad = vWQA if nk == "Q" else vW13A
                        for k in range(4): tl.vec_at(b0 + k // 2, Ins(f"v_add_u32 v{ad+k}, {dlt & 0xffffffff}, v{ad+k}"))
                    tl.vec_in(b0 + 2, b0 + 9, wreads(i + 1, 0, "W0"))
                    tl.scal_at(nb - 1, W(lgkm="W0"), later=False)
                else:
                    tl.vec_in(b0 + 2, b0 + 9, kreads(0, 0, 0, "K0"))
    P_ = lambda i, f: tb[i, 0] + int(f * (tb[i + 1, 0] - tb[i, 0]))
    def xout(c, lo, hi):
        j = tl.scal_at(lo, W(vm=f"DX{c}"))
        cc = tl.vec_in(j, hi, xreads(c))
        return cc[-1]
    def tch(dst, ad, sr, so): return Ins(f"buffer_load_dword a252, v{ad}, {SR(sr)}, {so} offen")
    TQ = lambda c: [(II(f"s_mov_b32 s{sT}, {c*128*8192}"), [tch(55, 22, sWQ, f"s{sT}")], [])]
    TG = lambda c: [(II(f"s_mov_b32 s{sT}, {c*128*3584}"), [tch(55, 23, sW1, f"s{sT}"), tch(55, 23, sW3, f"s{sT}")], [])]
    TK = [([], [tch(55, 53, sK, 0)], [])]; TV = [([], [tch(55, 53, sV, 0)], [])]
    kv = OPT.get("kvp", (9, 9, 9))
    at = lambda p: (TK if kv[0] == p else []) + (TV if kv[1] == p else []) + (TK2 if kv[2] == p else [])
    TK2 = [(II(f"s_mov_b32 s{sT}, 65536"), [tch(55, 53, sK, f"s{sT}")], [])]
    x1, x2, x3 = xdma(1), xdma(2), xdma(3)
    prev = [0]
    def sp(lo, hi, grps):
        lo = max(lo, prev[0] + 4); prev[0] = tl.spread(lo, max(hi, lo + 1), grps); return prev[0]
    a = OPT.get("pa", .2)
    sp(P_(0, a), P_(0, a + .25), wdma(1))
    sp(0, P_(0, a + .45), TG(1) + x1[:1])
    sp(P_(0, OPT.get("pb", .8)), P_(1, OPT.get("pc", .45)), x1[1:] + wdma(2))
    sp(0, P_(1, .6), TQ(1) + TG(2) + at(1))
    xout(1, P_(1, .6), tb[1, 7] - 2)
    sp(P_(2, 0) + 3, P_(2, .45), x2[:1] + wdma(3))
    sp(0, P_(2, .85), x2[1:])
    sp(0, P_(3, .2), TG(3) + at(2) + wdma(4))
    l = xout(2, P_(3, OPT.get('x2o', .22)), P_(3, OPT.get('x2o', .22) + .2))
    j = tl.scal_at(l + 5, W(lgkm="X2"))
    sp(j + 4, P_(3, OPT.get('x3a', 1.02) - .05), x3[:1] + TQ(2) + at(3) + wdma(5))
    sp(P_(3, OPT.get('x3a', 1.02)), P_(3, OPT.get('x3a', 1.02) + .38), x3[1:])
    sp(P_(4, .45), P_(4, .85), TQ(3) + at(4) + wdma(6))
    xout(3, P_(4, .6), tb[4, 7] - 6)
    sp(P_(5, .03), P_(5, .3), wdma(7))
    ld0 = f"buffer_load_dword v50, v51, {SR(sDBG)}, 0 offen sc1"
    ck0 = OPT.get("ck0", .33)
    g = tl.g[P_(5, ck0)]
    g.vec += [W(vm="C0")] + poll_check("st", 50, ld0, f"v_cmp_gt_u32 vcc, 32, v50\ns_nop 0\ns_cmp_eq_u64 vcc, 0"); g.load += 2
    sp(P_(5, ck0) + 3, P_(5, ck0 + .1), [([], [Ins(f"buffer_load_dwordx2 {V(56+2*t,2)}, v52, {SR(sWS)}, 0 offen offset:{128*t} sc1", tag="SL") for t in range(4)], [])])
    sp(0, P_(5, .97), [dma_K(0, 0, "DK0"), dma_K(1, 0, "DK0")])
    sp(P_(6, OPT.get("v0a", .3)), P_(6, OPT.get("v0b", .9)), [dma_V(0, 0, "DV"), dma_V(1, 0, "DV")])
    sp(P_(7, OPT.get("v0a", .3)), P_(7, OPT.get("v0b", .9)), [dma_K(0, 1, "DK"), dma_K(1, 1, "DK")])
    for pp in OPT.get("cpf", (3,)):
        left = tl.stream(P_(pp, .05), P_(pp, .2), II("v_accvgpr_read_b32 v58, a254\nv_accvgpr_read_b32 v59, a255\nglobal_load_dword a252, v[58:59], off")); assert not left
    def span(tag):
        ps = [q for q, gp in enumerate(tl.g) for x in gp.vec if x.tag == tag]; return min(ps), max(ps)
    for i in range(1, 8):
        assert span(f"DW{i}")[1] < tb[i - 1, 7] and (i < 3 or span(f"DW{i}")[0] > tb[i - 3, 7] + 1), i
    for c in (1, 2, 3): assert span(f"DX{c}")[1] < span(f"X{c}")[0], c
    tl.vec_in(tb[1, 7] + 10, tb[1, 7] + 14, [Ins(f"buffer_atomic_add v49, v48, {SR(sDBG)}, 0 offen")])
    left = tl.sched(P_(0, OPT.get("stpos", .3)), tb[1, 0] - 1, stats); assert not left, len(left)
    tl.vec_in(P_(4, OPT.get("c0pos", .9)), P_(4, OPT.get("c0pos", .9) + .05), [Ins(ld0, tag="C0")])
    for i, off in ((5, 0), (7, 1)):
        a0 = aL + 8 * off; it_ = []
        for u in range(2):
            it_ += II(f"v_accvgpr_read_b32 v22, a{a0+4*u}\nv_accvgpr_read_b32 v23, a{a0+4*u+1}\nv_add_f32 v22, v22, v23")
            it_ += [Ins(f"ds_write_b32 v21, v22 offset:{64*u}", tag="CS")]
        if i == 5: it_ += II(f"v_add_u32 v21, {L_V - L_K}, v21")
        left = tl.stream(tb[i, 3], tb[i, 4], it_); assert not left
    it = [W(vm="SL")]
    for t in range(4): it += II(f"v_rsq_f32 v{vAQ+t}, v{57+2*t}")
    for t in range(4): it += II(f"v_sub_f32 v{vNMU+t}, 0, v{56+2*t}\nv_mov_b32 v{vIR+t}, v{57+2*t}")
    for t in range(4): it += II(f"v_mul_f32 v{vAE+t}, {f32(-LOG2E)}, v{vAQ+t}\nv_mul_f32 v{vAQ+t}, {f32(LOG2E * 128 ** -0.5)}, v{vAQ+t}")
    left = tl.stream(P_(5, OPT.get("slpos", .8)), tb[6, 0] - 1, it); assert not left, len(left)
    it = []
    for v in range(4): it += II(f"v_xor_b32 v{28+v}, {128*v}, v54")
    def csread(v): return [Ins(f"ds_read_b128 {V(48+8*(v&1)+4*m,4)}, v{28+v} offset:{64*m}", tag=f"CG{v}") for m in range(2)]
    it += csread(0)
    for v in range(4):
        if v < 3: it += csread(v + 1)
        it += [W(lgkm=f"CG{v}")]
        for m in range(2):
            for t in range(4):
                d = 128 + m * 64 + (v * 4 + t) * 4
                for r in range(4): it += II(f"v_fmac_f32 v{d+r}, v{48+8*(v&1)+4*m+r}, v{vNMU+t}")
    mv30 = Ins(f"v_add_u32 v30, {L_V - L_K}, v28"); it.append(mv30)
    it += II(f"s_lshl_b32 s{sCnt}, s{sFs}, 11\ns_add_u32 s{sCnt}, s{sCnt}, {128*1024}\ns_add_u32 s{sCnt}, s{sCnt}, s{sBo}")
    it += II(f"s_and_b32 s{sT2}, s{sWave}, 2\ns_lshl_b32 s{sT2}, s{sT2}, 9\nv_add_u32 v28, s{sT2}, v{vL16}\nv_xor_b32 v29, 0x400, v28")
    rest = []
    for n in range(8):
        t, i = n >> 1, n & 1
        gr = [128 + ((2 * i + hf) * 4 + t) * 4 + r for hf in range(2) for r in range(4)]
        ur = [x + 64 for x in gr]; q = []
        if n < OPT["nh"]:
            for k in range(8): q += II(f"v_mul_f32 v{ur[k]}, v{ur[k]}, v{gr[k]}\nv_mul_f32 v{gr[k]}, v{vAE+t}, v{gr[k]}")
            for k in range(8): q += II(f"v_exp_f32 v{gr[k]}, v{gr[k]}") + (II(f"v_fma_f32 v{gr[k-2]}, v{gr[k-2]}, v{vIR+t}, v{vIR+t}") if k >= 2 else [])
            for k in range(8): q += II(f"v_rcp_f32 v{gr[k]}, v{gr[k]}") + II(f"v_fma_f32 v{gr[k+6]}, v{gr[k+6]}, v{vIR+t}, v{vIR+t}" if k < 2 else f"v_mul_f32 v{gr[k-2]}, v{gr[k-2]}, v{ur[k-2]}")
            for k in (6, 7): q += II(f"v_mul_f32 v{gr[k]}, v{gr[k]}, v{ur[k]}")
        else:
            o = t & 1; ae, ir = V(vAE + t - o, 2), V(vIR + t - o, 2)
            for k in range(0, 8, 2): q += II(f"v_pk_mul_f32 {V(ur[k],2)}, {V(ur[k],2)}, {V(gr[k],2)}\nv_pk_mul_f32 {V(gr[k],2)}, {V(gr[k],2)}, {ae} op_sel:[0,{o}] op_sel_hi:[1,{o}]")
            for k in range(8): q += II(f"v_exp_f32 v{gr[k]}, v{gr[k]}")
            for k in range(0, 8, 2): q += II(f"v_pk_fma_f32 {V(gr[k],2)}, {V(gr[k],2)}, {ir}, {ir} op_sel:[0,{o},{o}] op_sel_hi:[1,{o},{o}]")
            for k in range(8): q += II(f"v_rcp_f32 v{gr[k]}, v{gr[k]}")
            for k in range(0, 8, 2): q += II(f"v_pk_mul_f32 {V(gr[k],2)}, {V(gr[k],2)}, {V(ur[k],2)}")
        for k in range(4): q += II(f"v_cvt_pk_bf16_f32 v{gr[0]+k}, v{gr[2*k]}, v{gr[2*k+1]}")
        q += II(f"buffer_store_dwordx4 {V(gr[0],4)}, v{28+i}, {SR(sH)}, s{sCnt} offen sc1")
        if i == 1 and t < 3: q += II(f"s_add_u32 s{sCnt}, s{sCnt}, {BSTRIDE}")
        if n < OPT["nh"]: it += q
        else: rest += q
    lastcs = [x for x in it if x.tag == "CG3"][-1]
    left = tl.sched(tb[6, 0] + 2, end - 1, it, look=OPT.get("look", 70))
    assert len(left) <= 54 * OPT["nh"] and not any(x is mv30 for x in left)
    pos = [k for k, gp in enumerate(tl.g) if any(x is lastcs for x in gp.vec)]
    assert pos and pos[0] < tb[6, 6], (pos, tb[6, 6])

    for nm, i in [(f"p{i}", i) for i in range(1, 8)]:
        tl.g[tb[i, 0]].scal = stamp_ins(STAMPS.get(nm)) + tl.g[tb[i, 0]].scal
    body = tl.emit(0, end, "proj")
    print("h epilogue leftover", len(left), "of", len(it), file=sys.stderr)
    return first_reads, body, left + rest

def gen_kernel():
    b = Block(); b.name = "setup"
    b.e(f"s_cmp_ge_u32 s2, 256\ns_cbranch_scc1 L_end\ns_mov_b32 s{sFB}, 0")
    if OPT.get("shuffle"): b.e("s_and_b32 s3, s2, 7\ns_lshl_b32 s3, s3, 5\ns_lshr_b32 s2, s2, 3\ns_or_b32 s2, s2, s3")
    if OPT.get("delay"): b.e(f"s_mov_b32 s3, {OPT['delay']}\nL_dly:\ns_sub_u32 s3, s3, 1\ns_cmp_lg_u32 s3, 0\ns_cbranch_scc1 L_dly")
    if OPT["stamp"]:
        for i in range(20): b.e(f"s_mov_b32 s{72+i}, 0")
        stamp(b, "start")
    b2 = Block(); b2.name = "setup1"; b_ = b; b = b2
    b.e("L_restart:")
    for sr, off in ((sX, 0), (sW1, 48), (sW3, 56), (sWQ, 24)): b.e(f"s_load_dwordx2 s[{sr}:{sr+1}], s[0:1], {off}")
    T0, T1, T2, T3, T4 = 56, 57, 58, 59, 60
    vl, vc, vg, vi2, vi3 = 61, 62, 63, 22, 23
    b.e("s_getpc_b64 s[100:101]\nL_pc:")
    b.e(f"s_lshr_b32 s{sT}, s2, 3\ns_lshl_b32 s{sT2}, s{sT}, 11\nv_lshrrev_b32 v108, 4, v0\nv_lshl_add_u32 v108, v108, 7, s{sT2}\nv_min_u32 v108, L_end-L_pc, v108\nv_mov_b32 v109, s101")
    b.e(f"v_add_co_u32 v108, vcc, s100, v108\nv_lshrrev_b32 v{T0}, 6, v0\nv_and_b32 v{vc}, 15, v0\nv_addc_co_u32 v109, vcc, 0, v109, vcc\nglobal_load_dword v107, v[108:109], off")
    b.e(f"v_readfirstlane_b32 s{sWave}, v{T0}\nv_bfe_u32 v{vg}, v0, 4, 2\ns_and_b32 s{sT}, s{sT}, 3\ns_lshr_b32 s{sQb}, s2, 5")
    b.e(f"s_lshl_b32 s{sW16k}, s{sWave}, 14\ns_lshl_b32 s{sXb}, s{sQb}, 18\ns_lshl_b32 s{sT2}, s{sWave}, 16\ns_add_u32 s{sXb}, s{sXb}, s{sT2}")
    b.e(f"s_lshl_b32 s100, s{sT}, 12\ns_add_u32 s100, s100, s{sW16k}\ns_lshl_b32 s101, s{sT}, 14\ns_add_u32 s101, s101, s{sXb}")
    b.e(f"s_and_b32 s{sHead}, s2, 7\ns_lshl_b32 s{sHead}, s{sHead}, 2\ns_add_u32 s{sHead}, s{sHead}, s{sT}")
    b.e(f"v_xor_b32 v{T0}, v{vg}, v{vc}\nv_lshlrev_b32 v{T0}, 4, v{T0}\nv_lshl_add_u32 v{vDX}, v{vg}, 10, v{T0}")
    for p in range(1, 4): b.e(f"v_xor_b32 v{T2}, {64*p}, v{vDX}\nv_add_u32 v{vDX+p}, {p*3072}, v{T2}")
    b.e(f"s_mov_b32 s{sX+2}, 0x200000\ns_mov_b32 s{sX+3}, 0x20000\ns_waitcnt lgkmcnt(0)")
    stamp(b, "karg")
    b.e(f"s_and_b32 s{sX+1}, s{sX+1}, 0xffff")
    xg = xdma(0); wg = wdma(0)
    emit_grp(b, xg[0])
    for sr, off in ((sK, 8), (sV, 16), (sB, 88), (sH, 88), (sWS, 88), (sDBG, 80), (sWO, 32), (sW2, 64), (sOut, 72)):
        b.e(f"s_load_dwordx2 s[{sr}:{sr+1}], s[0:1], {off}")
    b.e(f"s_and_b32 s{sT}, s{sQb}, 1\ns_lshl_b32 s{sT}, s{sT}, 2\ns_add_u32 s{sT}, s{sT}, 3\ns_and_b32 s{sT2}, s{sHead}, 7\ns_lshr_b32 s3, s{sHead}, 3\ns_cmp_gt_u32 s{sT2}, s{sT}\ns_subb_u32 s{sFs}, s{sHead}, s3\ns_cmp_lg_u32 s{sT2}, s{sT}\ns_cselect_b32 s{sFv}, -1, 0")
    b.e(f"s_lshl_b32 s{sT}, s{sFs}, 7"); ptr_add(b, sW1, f"s{sT}"); ptr_add(b, sW3, f"s{sT}")
    b.e(f"s_sub_u32 s{sT2}, {512*3584}, s{sT}\ns_and_b32 s{sT2}, s{sT2}, s{sFv}")
    srd_fin(b, sW1, f"s{sT2}"); srd_fin(b, sW3, f"s{sT2}")
    b.e(f"s_lshr_b32 s{sBo}, s{sXb}, 14\nv_and_b32 v{vl}, 63, v0")
    b.e(f"v_lshrrev_b32 v{T0}, 2, v{vl}\nv_and_b32 v{T1}, 3, v0\nv_lshl_add_u32 v{T1}, v{T0}, 7, v{T1}\nv_add_u32 v{T1}, s{sBo}, v{T1}\nv_mul_u32_u24 v101, 3584, v{T1}\nv_lshl_add_u32 v103, v{T0}, 26, v101")
    if not OPT.get("noptouch"): b.e(f"buffer_load_dword v105, v103, {SR(sW1)}, 0 offen\nbuffer_load_dword v106, v103, {SR(sW3)}, 0 offen")
    b.e(f"s_lshl_b32 s{sCnt}, s{sQb}, 7\ns_lshl_b32 s{sT2}, s{sHead}, 2\ns_add_u32 s{sCnt}, s{sCnt}, s{sT2}\ns_add_u32 s{sCnt}, s{sCnt}, s{sWave}\nv_lshlrev_b32 v{vL16}, 4, v{vl}")
    for g in (xg[1], xg[2], xg[3])[:OPT.get("nx", 1)]: emit_grp(b, g)
    b.e(f"s_lshl_b32 s{sT}, s{sHead}, 8"); ptr_add(b, sWQ, f"s{sT}"); b.e(f"s_sub_u32 s{sT2}, 0x400000, s{sT}")
    srd_fin(b, sWQ, f"s{sT2}")
    b.e(f"v_lshrrev_b32 v{T0}, 3, v{vl}\nv_bfe_u32 v{T1}, v0, 1, 2\nv_lshl_add_u32 v{T1}, v{T0}, 7, v{T1}\nv_add_u32 v{T1}, s{sBo}, v{T1}\nv_and_b32 v{T2}, 1, v0\nv_lshlrev_b32 v{T2}, 7, v{T2}\nv_lshl_add_u32 v100, v{T1}, 13, v{T2}\nv_lshl_add_u32 v102, v{T0}, 26, v100")
    b.e(f"s_bfe_u32 s{sSp}, s2, 0x20001\ns_lshr_b32 s{sTc}, s2, 6\ns_bfe_u32 s{sTr}, s2, 0x30003\ns_and_b32 s{sT}, s2, 1\ns_lshl_b32 s{sT}, s{sT}, 3\ns_add_u32 s{sTr}, s{sTr}, s{sT}")
    b.e(f"s_lshl_b32 s{sW8k}, s{sWave}, 13\ns_lshl_b32 s{sW4k}, s{sWave}, 12\ns_mul_i32 s{sBo}, s{sBo}, {BSTRIDE}")
    b.e(f"s_lshl_b32 s{sWQo}, s{sWave}, 18\ns_mul_i32 s{sW13o}, s{sWave}, {32*3584}\ns_mov_b32 s{sKo}, s{sW8k}\ns_mov_b32 s{sVo}, s{sW8k}")
    b.e(f"v_mul_u32_u24 v{T0}, 3584, v{T0}\nv_and_b32 v{T1}, 7, v0\nv_and_b32 v{T2}, 1, v{vg}\nv_lshlrev_b32 v{T2}, 1, v{T2}\nv_xor_b32 v{T1}, v{T1}, v{T2}")
    for p in range(4): b.e(f"v_xor_b32 v{T2}, {4*(p&1)}, v{T1}\nv_lshl_add_u32 v{T2}, v{T2}, 4, v{T0}\nv_add_u32 v{vD13+p}, {p*27648}, v{T2}")
    b.e(f"v_lshlrev_b32 v{T0}, 2, v{vg}\nv_xor_b32 v{T0}, v{vc}, v{T0}\nv_lshlrev_b32 v{T0}, 4, v{T0}\nv_lshl_add_u32 v{vDQ}, v{vg}, 13, v{T0}")
    for p in range(1, 4): b.e(f"v_add_u32 v{vDQ+p}, {p*31744}, v{vDQ}")
    b.e("s_waitcnt lgkmcnt(0)")
    late = [xg[1], xg[2], xg[3], wg[0], wg[1]][OPT.get("nx", 1):]
    stamp(b, "a1")
    c = Block(); c.name = "setup2"
    c.e(f"s_lshl_b32 s{sT}, s{sHead}, 19"); ptr_add(c, sK, f"s{sT}"); ptr_add(c, sV, f"s{sT}")
    srd_fin(c, sK, 0x80000); srd_fin(c, sV, 0x80000)
    wso = OPT.get("wsoff", 0) << 20
    if wso: ptr_add(c, sWS, wso)
    ptr_add(c, sB, WS_B + wso); ptr_add(c, sH, WS_B + wso); srd_fin(c, sB, 128 * BSTRIDE)
    c.e(f"s_and_b32 s{sT2}, s{sFv}, {128*BSTRIDE}"); srd_fin(c, sH, f"s{sT2}")
    srd_fin(c, sWS, 0x28000); srd_fin(c, sDBG, 256); srd_fin(c, sOut, 0x200000)
    srd_fin(c, sWO, 0 if OPT.get("noA") else 4096 * 1024); srd_fin(c, sW2, 0 if OPT.get("noA") else 1792 * 1024)
    c.e(f"v_bfe_u32 v{vi2}, v0, 2, 2\nv_and_b32 v{vi3}, 3, v0")
    c.e(f"v_lshl_add_u32 v{T0}, v{vg}, 3, v{vi2}\nv_lshlrev_b32 v{T1}, 8, v{T0}\nv_lshl_add_u32 v{T1}, v{vi3}, 4, v{T1}\nv_add_u32 v{T1}, {L_SP}, v{T1}\nv_xor_b32 v{T3}, s{sWave}, v{vi2}")
    for i in range(4): c.e(f"v_xor_b32 v{T2}, {i}, v{T3}\nv_lshl_add_u32 v{vWQA+i}, v{T2}, 6, v{T1}")
    c.e(f"v_lshlrev_b32 v{T1}, 7, v{T0}\nv_lshl_add_u32 v{T1}, v{vi3}, 3, v{T1}\nv_add_u32 v{T1}, {L_V}, v{T1}")
    c.e(f"v_and_b32 v{T3}, 1, v{vg}\nv_lshlrev_b32 v{T3}, 1, v{T3}\nv_lshrrev_b32 v{T4}, 1, v{vi2}\nv_or_b32 v{T3}, v{T3}, v{T4}\nv_xor_b32 v{T3}, s{sWave}, v{T3}")
    for i in range(4): c.e(f"v_xor_b32 v{T2}, {i}, v{T3}\nv_lshl_add_u32 v{vW13A+i}, v{T2}, 5, v{T1}")
    c.e(f"v_xor_b32 v{T0}, v{vg}, v{vc}\nv_lshlrev_b32 v{T1}, 8, v{vc}\nv_add_u32 v{T3}, s{sW16k}, v{T1}\ns_lshl_b32 s{sT}, s{sWave}, 2")
    for i in range(4): c.e(f"v_xor_b32 v{T2}, {4*i}, v{T0}\nv_lshl_add_u32 v{vXA+i}, v{T2}, 4, v{T3}\nv_xor_b32 v{T2}, s{sT}, v{T2}\nv_lshl_add_u32 v{vKA+i}, v{T2}, 4, v{T1}")
    c.e(f"v_lshl_add_u32 v{T0}, v{vg}, 2, v{vi2}\nv_lshlrev_b32 v{T1}, 8, v{T0}\nv_lshl_add_u32 v{T1}, v{vi3}, 3, v{T1}\nv_add_u32 v{T1}, {L_V}, v{T1}\nv_and_b32 v{T0}, 7, v{T0}")
    for dt in range(8): c.e(f"v_xor_b32 v{T2}, {dt}, v{T0}\nv_lshl_add_u32 v{vVA+dt}, v{T2}, 5, v{T1}")
    c.e(f"v_lshlrev_b32 v{T1}, 8, v{vg}\nv_xor_b32 v{T0}, v{vg}, v{vc}")
    for p in range(4): c.e(f"v_xor_b32 v{T2}, {4*p}, v{T0}\nv_lshl_add_u32 v{vDK+p}, v{T2}, 4, v{T1}")
    c.e(f"v_lshlrev_b32 v{T0}, 1, v{vg}\nv_xor_b32 v{T0}, v{T0}, v{vc}")
    for p in range(2): c.e(f"v_xor_b32 v{T2}, {8*p}, v{T0}\nv_lshl_add_u32 v{vDV+p}, v{T2}, 4, v{T1}")
    c.e(f"v_mov_b32 v{T0}, 0x3f803f80")
    for i in range(4): c.e(f"v_accvgpr_write_b32 a{aONES+i}, v{T0}")
    c.e(f"s_lshl_b32 s{sT}, s{sQb}, 5\nv_and_b32 v51, 7, v0\nv_lshlrev_b32 v51, 5, v51\ns_cmp_eq_u32 s{sFB}, 0\ns_cselect_b32 s{sT}, s{sT}, {OOB}")
    c.e(f"v_mov_b32 v{T0}, {OOB}\nv_mov_b32 v{T1}, s{sT}\nv_cmp_eq_u32 vcc, 0, v0\nv_mov_b32 v49, 1\nv_cndmask_b32 v48, v{T0}, v{T1}, vcc")
    c.e(f"s_lshl_b32 s{sT}, s{sQb}, 5\ns_add_u32 s{sT}, s{sT}, s{sHead}\ns_lshl_b32 s{sT}, s{sT}, 7\ns_add_u32 s{sT}, s{sT}, {WS_FH}\ns_cmp_eq_u32 s{sFB}, 0\ns_cselect_b32 s{sT}, s{sT}, {OOB >> 1}")
    c.e(f"s_and_b32 s{sT2}, s{sHead}, 7\ns_mul_i32 s{sT2}, s{sT2}, 124\ns_sub_u32 s{sT2}, {WS_FO-WS_FH}, s{sT2}\nv_mov_b32 v{T2}, s{sT}\nv_mad_u32_u24 v{T1}, v0, s{sT2}, v{T2}\nv_cmp_gt_u32 vcc, 2, v0\nv_mov_b32 v{T2}, 0\nv_cndmask_b32 v{T1}, v{T0}, v{T1}, vcc")
    c.e(f"buffer_store_dword v{T2}, v{T1}, {SR(sWS)}, 0 offen sc1")
    c.e(f"s_lshr_b32 s{sT}, s{sXb}, 7\nv_lshlrev_b32 v52, 3, v{vc}\nv_add_u32 v52, s{sT}, v52")
    c.e(f"s_lshl_b32 s{sT}, s{sWave}, 7\nv_lshlrev_b32 v54, 4, v{vg}\nv_add_u32 v54, s{sT}, v54\nv_add_u32 v54, {L_K+32768}, v54\ns_add_u32 s{sT}, s{sT}, {L_K+32768}\nv_lshl_add_u32 v21, v{vc}, 2, s{sT}")
    for i in range(4): c.e(f"v_accvgpr_write_b32 a{aZ+i}, 0")
    c.e(f"v_and_b32 v{vIDX}, 1, v0\nv_mul_u32_u24 v{vIDX}, 0xaaaa, v{vIDX}\nv_add_u32 v{vIDX}, 0x4444, v{vIDX}")
    c.e(f"v_mfma_f32_32x32x16_bf16 {A(aL,16)}, {A(aZ,4)}, {A(aZ,4)}, 0")
    c.e(f"s_lshl_b32 s{sT}, s{sQb}, 2\ns_add_u32 s{sT}, s{sT}, s{sWave}\ns_lshl_b32 s{sT}, s{sT}, 11\nv_lshlrev_b32 v53, 29, v{vg}\nv_lshl_add_u32 v53, v{vc}, 7, v53\nv_add_u32 v53, s{sT}, v53")
    stamp(c, "a2")
    c.e(f"s_lshl_b32 s{sT2}, s{sCnt}, 4\nv_lshrrev_b32 v{T2}, 5, v{vl}\nv_lshl_add_u32 v{T1}, v{T2}, 3, s{sT2}\nv_lshl_add_u32 v{T2}, v{T2}, 9, v{vL16}\nv_and_b32 v{T3}, 31, v0\nv_cmp_eq_u32 vcc, 0, v{T3}\nv_cndmask_b32 v{T1}, v{T0}, v{T1}, vcc")
    c.e("v_mov_b32 v22, v102\nv_mov_b32 v23, v103\nv_accvgpr_write_b32 a254, v108\nv_accvgpr_write_b32 a255, v109")
    for g in late: emit_grp(c, g)
    if OPT.get("tq0", 1): c.e(f"buffer_load_dword a252, v22, {SR(sWQ)}, 0 offen")
    c.e(f"s_lshl_b32 s{sT}, s{sCnt}, 11")
    for r in range(2): c.e(f"buffer_load_dwordx4 {V(64+4*r,4)}, v{T2}, {SR(sX)}, s{sT} offen offset:{512*r}", tag="SR")
    stamp(c, "a4")
    c_ = c; c = Block(); c.wait(vm="SR")
    c.ins[-1].guards = {f"v{64+k}" for k in range(8)}
    X = 72
    for k in range(8): c.e(f"v_lshlrev_b32 v{X+2*k}, 16, v{64+k}\nv_and_b32 v{X+2*k+1}, 0xffff0000, v{64+k}")
    def wred(d):
        c.e("v_add_f32 v90, v90, v91")
        for sh in (8, 4, 2, 1): c.e(f"v_add_f32_dpp v90, v90, v90 row_ror:{sh} row_mask:0xf bank_mask:0xf")
        c.e(f"v_mov_b32 v91, v90\nv_permlane16_swap_b32 v91, v90\nv_add_f32 v90, v90, v91\nv_mul_f32 v{d}, {f32(1/512)}, v90")
    for k in range(7):
        for r in range(2): c.e(f"v_add_f32 v{90+r}, v{X+8*r+k+1}, v{(X+8*r) if k == 0 else (90+r)}")
    wred(94)
    for k in range(16): c.e(f"v_sub_f32 v{X+k}, v{X+k}, v94")
    for k in range(8):
        for r in range(2): c.e(f"v_mul_f32 v{90+r}, v{X+8*r}, v{X+8*r}" if k == 0 else f"v_fmac_f32 v{90+r}, v{X+8*r+k}, v{X+8*r+k}")
    wred(95)
    def rnd(r): c.e(f"v_cvt_pk_bf16_f32 v{r}, v{r}, v{r}\nv_and_b32 v{r}, 0xffff0000, v{r}")
    rnd(94); rnd(95); c.e(f"v_add_f32 v95, {f32(1e-5)}, v95"); rnd(95); c.e("v_sqrt_f32 v95, v95"); rnd(95); c.e("v_mul_f32 v95, v95, v95")
    c.e(f"buffer_store_dwordx2 v[94:95], v{T1}, {SR(sWS)}, 0 offen sc1", tag="ST")
    st_ = [x for x in c.ins if x.kind != "nop"]; c = c_
    first_reads, proj, hleft = gen_proj(st_)
    stamp(c, "a5")
    c.wait(vm="DX0"); c.ext(xreads(0)); c.wait(vm="DW0"); stamp(c, "a6"); c.e("s_barrier"); c.ext(first_reads); c.wait(lgkm="W0")
    stamp(c, "p0")
    e = Block(); e.name = "projepi"
    stamp(e, "projend")
    for i in range(4): e.e(f"v_xor_b32 v{24+i}, {128*i}, v30")
    def cq(i): return [Ins(f"ds_read_b128 {V(48+8*(i&1)+4*hf,4)}, v{24+i} offset:{64*hf}", tag=f"CQ{i}") for hf in range(2)]
    e.ext(cq(0) + cq(1))
    nfirst = [k for k, x in enumerate(hleft) if x.kind == "vstore"][0] + 1
    e.ext(hleft[:nfirst]); hleft = hleft[nfirst:]
    H = 192
    for ds in range(4):
        e.wait(lgkm=f"CQ{ds}")
        for t in range(4):
            d = Q(t, ds); h = H + 16 * (t & 1); o = t & 1; nm, aq = V(vNMU + t - o, 2), V(vAQ + t - o, 2); CS = 48 + 8 * (ds & 1)
            for k in range(4): e.e(f"v_accvgpr_read_b32 v{h+k}, a{128+(t*4+ds)*4+k}")
            prs = [(d, CS), (d + 2, CS + 2), (h, CS + 4), (h + 2, CS + 6)]
            for x, cs in prs: e.e(f"v_pk_fma_f32 {V(x,2)}, {V(cs,2)}, {nm}, {V(x,2)} op_sel:[0,{o},0] op_sel_hi:[1,{o},1]")
            for x, cs in prs: e.e(f"v_pk_mul_f32 {V(x,2)}, {V(x,2)}, {aq} op_sel:[0,{o}] op_sel_hi:[1,{o}]")
            for k, (x, cs) in enumerate(prs): e.e(f"v_cvt_pk_bf16_f32 v{d+k}, v{x}, v{x+1}")
        if ds < 2: e.ext(cq(ds + 2))
    PM = 48
    ch = [MF(V(PM + 4 * t, 4), A(KF(0, ds), 4), V(Q(t, ds), 4), "0" if n == 0 else V(PM + 4 * t, 4)) for t in range(4) for n, ds in enumerate(snake(t))]
    run = 0
    for k, x in enumerate(hleft):
        run = run + 1 if x.kind == "trans" else 0
        if ch and x.kind == "trans" and 3 <= run <= 5: e.add(ch.pop(0))
        e.add(x)
    e.ext(ch)
    e.e(f"s_cmp_lg_u32 s{sFB}, 0\ns_cbranch_scc1 L_truemax")
    e2 = Block(); e2.name = "premax"
    def rowmax_finish(blk, src):
        for sw in ("32", "16"):
            for t in range(4): blk.e(f"v_mov_b32 v{vT+t}, v{src(t)}")
            for t in range(4): blk.e(f"v_permlane{sw}_swap_b32 v{vT+t}, v{src(t)}")
            for t in range(4): blk.e(f"v_max_f32 v{src(t) if sw == '32' else vT+t}, v{src(t)}, v{vT+t}")
        for t in range(4):
            for r in range(4): blk.e(f"v_sub_f32 v{vNM+4*t+r}, 0, v{vT+t}")
    for t in range(4):
        s0 = PM + 4 * t
        e2.e(f"v_max3_f32 v{s0}, v{s0}, v{s0+1}, v{s0+2}\nv_max_f32 v{s0}, v{s0}, v{s0+3}")
    rowmax_finish(e2, lambda t: PM + 4 * t)
    first, even, odd, last = gen_attention()
    l0 = Block(); l0.e(f"L_att_start:\ns_mov_b32 s{sCnt}, 7\ns_mov_b32 s{sTW}, 0\ns_mov_b32 s{sT2W}, 0")
    l0.e(f"s_lshr_b32 s{sT}, s2, 3\ns_mul_i32 s{sT2}, s{sT}, {14*1024}\ns_lshl_b32 s{sT}, s{sT}, 15\ns_lshl_b32 s3, s{sSp}, 20\ns_add_u32 s{sT}, s{sT}, s3\ns_mul_i32 s3, s{sSp}, {448*1024}\ns_add_u32 s{sT2}, s{sT2}, s3")
    l0.e(f"v_and_b32 v28, 15, v0\nv_lshrrev_b32 v29, 6, v0\nv_lshl_add_u32 v28, v29, 4, v28\nv_bfe_u32 v29, v0, 4, 2\nv_lshlrev_b32 v29, 29, v29\nv_lshl_add_u32 v28, v28, 7, v29\nv_add_u32 v30, s{sT}, v28\nv_add_u32 v29, s{sT2}, v28")
    if OPT.get('wo2', 1): l0.e(f"v_bfe_u32 v26, v0, 4, 1\nv_mul_u32_u24 v26, 0xffff, v26\nv_lshlrev_b32 v26, 13, v26\nv_sub_u32 v30, v30, v26")
    l0.e(f"s_lshl_b32 s{sT}, s{sQb}, 13\ns_add_u32 s{sT}, s{sT}, 32768\ns_sub_u32 s{sT}, s{sT}, s{sW8k}\nv_add_u32 v28, s{sT}, v28")
    l0.e(f"s_lshl_b32 s{sT}, s{sQb}, 5\ns_add_u32 s{sT}, s{sT}, s{sHead}\ns_lshl_b32 s{sT}, s{sT}, 7\ns_add_u32 s{sT}, s{sT}, {WS_FH}\nv_lshl_add_u32 v21, v0, 18, s{sT}\nv_mov_b32 v22, 1")
    l0.e(f"s_lshr_b32 s{sT}, s{sTr}, 1\ns_lshl_b32 s{sT}, s{sT}, 5\ns_lshl_b32 s{sT2}, s{sSp}, 3\ns_add_u32 s{sT}, s{sT}, s{sT2}\ns_lshl_b32 s{sT}, s{sT}, 7\ns_add_u32 s{sT}, s{sT}, {WS_FH}\nv_and_b32 v23, 7, v0\nv_lshl_add_u32 v23, v23, 7, s{sT}")
    l0.e(f"s_lshl_b32 s{sT}, s{sQb}, 5\ns_and_b32 s{sT2}, s{sHead}, 7\ns_add_u32 s{sT}, s{sT}, s{sT2}\ns_lshl_b32 s{sT}, s{sT}, 7\ns_add_u32 s{sT}, s{sT}, {WS_FH}")
    l0.e(f"v_and_b32 v24, 8, v0\nv_cmp_eq_u32 vcc, 0, v24\nv_and_b32 v24, 3, v0\nv_lshl_add_u32 v24, v24, 10, s{sT}\nv_cndmask_b32 v23, v24, v23, vcc\nv_cndmask_b32 v31, 7, v22, vcc")
    for r in range(4): l0.e(f"v_accvgpr_write_b32 a{aCHK+r}, -1")
    l0.e(f"s_mul_i32 s{sT}, s{sTc}, 3584\nv_and_b32 v27, 31, v0\nv_min_u32 v27, 27, v27\nv_lshl_add_u32 v27, v27, 7, s{sT}\nv_bfe_u32 v26, v0, 5, 1\nv_mul_u32_u24 v26, {BSTRIDE}, v26\nv_add_u32 v27, v27, v26")
    l0.e("v_accvgpr_read_b32 v24, a254\nv_accvgpr_read_b32 v25, a255")
    if OPT.get("kvtouch", 1):
        if OPT.get("l0t", 0) & 1: l0.e(f"s_sub_u32 s{sT}, s{sKo}, 32768\nbuffer_load_dword a252, v28, {SR(sK)}, s{sT} offen")
        if OPT.get("l0t", 0) & 2: l0.e(f"buffer_load_dword a252, v28, {SR(sV)}, s{sW8k} offen")
        l0.e(f"buffer_load_dword a252, v28, {SR(sV)}, s{sVo} offen")
    stamp(l0, "att0")
    l1 = Block(); stamp(l1, "loop")
    l1b = Block(); l1b.e(".p2align 6\nL_att_loop:")
    l4 = Block(); l4.e("L_att_last:"); stamp(l4, "last")
    if OPT.get("loopstamp"):
        l1b.e(f"s_memtime s[96:97]\ns_mov_b32 m0, s{sCnt}\ns_waitcnt lgkmcnt(0)\nv_writelane_b32 v31, s96, m0")
        for i in range(8): l4.e(f"v_readlane_b32 s{74+2*i}, v31, {7-i}\nv_readlane_b32 s{75+2*i}, v31, {7-i}")
    f = Block(); f.name = "check"
    stamp(f, "attend")
    vRL = vNM
    for _ in range(min(OPT.get("osf", 2), len(OSTORES))): emit_grp(f, OSTORES.pop(0))
    f.add(last.tailchk)
    f.e(f"s_mov_b32 s{sT}, {f32(2.0**100)}")
    f.e(f"v_max3_f32 v{vT}, v{vRL+4}, v{vRL+5}, v{vRL+6}\nv_max_f32 v{vT}, v{vT}, v{vRL+7}\nv_accvgpr_read_b32 v{vT+1}, a{aCHK}")
    f.e(f"v_add_f32 v{vT}, v{vT}, v{vT+1}\nv_cmp_nlt_f32 vcc, v{vT}, s{sT}")
    f.e(f"s_cmp_lg_u64 vcc, 0\ns_cselect_b32 s{sT}, 1, 0")
    f.e(f"v_mov_b32 v{vT}, s{sT}\nv_and_b32 v{vT+1}, 3, v0\nv_lshlrev_b32 v{vT+1}, 12, v{vT+1}\ns_add_u32 s{sT}, s{sWave}, {7*4096}\ns_lshl_b32 s{sT}, s{sT}, 2\nv_add_u32 v{vT+1}, s{sT}, v{vT+1}")
    f.e(f"ds_write_b32 v{vT+1}, v{vT}", tag="VW"); f.e(f"s_add_u32 s{sT}, s{sM}, {7*16384}\nv_mov_b32 v{vT+1}, s{sT}")
    if OSTORES: emit_grp(f, OSTORES.pop(0))
    f.e(f"s_lshl_b32 s{sT}, s{sWave}, 6\ns_or_b32 s{sT}, s{sT}, {L_V}\ns_and_b32 s{sT2}, s{sTr}, 1\ns_lshl_b32 s{sT2}, s{sT2}, 12")
    for v in range(2): f.e(f"v_xor_b32 v{vRAs+v}, s{sT}, v{vVA+v}")
    for st in (1, 2):
        for v in range(2): f.e(f"v_add_u32 v{vRAs+2*st+v}, {st*65536}, v{vRAs+v}")
    for st in range(3):
        for v in range(2): f.e(f"v_xor_b32 v{vRAg+4*st+v}, s{sT2}, v{vRAs+2*st+v}\nv_xor_b32 v{vRAg+4*st+2+v}, 0x1000, v{vRAg+4*st+v}")
        f.e(f"v_add_u32 v{vRB[st]}, {st*65536}, v{vL16}")
    while OSTORES: emit_grp(f, OSTORES.pop(0))
    f.wait(lgkm="VW", vm=[f"U{u}" for u in RD[-1]]); f.e("s_barrier")
    f.e(f"ds_read_b128 v[2:5], v{vT+1}", tag="FL")
    for u in RD[-1]: f.ext(ureads(u))
    f.wait(lgkm="FL")
    f.e(f"v_or_b32 v2, v2, v3\nv_or3_b32 v2, v2, v4, v5\nv_readfirstlane_b32 s{sT}, v2")
    f.e(f"s_andn2_b32 s{sT}, s{sT}, s{sFB}\ns_cmp_lg_u32 s{sT}, 0\n" + ("" if OPT.get("nofb") else "s_cbranch_scc1 L_fallback"))
    k = Block(); k.name = "tail"
    stamp(k, "tail0")
    su = II(f"""s_and_b32 s{sT}, s{sHead}, 7
s_mul_i32 s{sT}, s{sT}, 124
s_sub_u32 s{sT}, {WS_FO-WS_FH}, s{sT}
v_add_u32 v26, s{sT}, v21
v_mov_b32 v25, 1
v_and_b32 v{vPA}, 7, v0
s_lshr_b32 s{sT}, s{sTr}, 1
s_lshl_b32 s{sT}, s{sT}, 2
s_add_u32 s{sT}, s{sT}, s{sSp}
s_lshl_b32 s{sT}, s{sT}, 10
s_add_u32 s{sT}, s{sT}, {WS_FO}
v_lshl_add_u32 v{vPA}, v{vPA}, 2, s{sT}
s_add_u32 s100, s{sWS}, s{sT}
s_addc_u32 s101, s{sWS+1}, 0
v_and_b32 v27, 3, v0
v_lshlrev_b32 v27, 4, v27
v_bfe_u32 v24, v0, 2, 4
v_lshl_add_u32 v27, v24, 10, v27""")
    nU = 10
    for n in range(10):
        if n not in EARLY: emit_grp(k, udma(n))
    k.ext(su)
    k.wait(lgkm="R")
    ldf = f"buffer_load_dword v{vPoll}, v{vPA}, {SR(sWS)}, 0 offen sc1"
    allset = f"v_cmp_eq_u32 vcc, 0, v{vPoll}\ns_nop 0\ns_cmp_eq_u64 vcc, 0"
    polled = False
    def take(n):
        nonlocal nU
        if n > 21: return []
        limit = min(RD[max(m for m in range(n + 1) if m - 7 not in OPT.get("nobs", ()))][0] + 10, len(UNITS))
        r = []
        while nU < limit:
            kd, a_ = UNITS[nU]
            if kd == "Bs" and not (polled and (a_ < 4 or n - 7 >= OPT["bsat"][a_])): break
            r.append(udma(nU)); nU += 1
        return r
    def pack(src, dst): return II("\n".join(f"v_cvt_pk_bf16_f32 v{dst+r}, v{src+2*r}, v{src+2*r+1}" for r in range(8)) + "\n" + "\n".join(f"v_min_u32 v{dst+r}, -2, v{dst+r}" for r in range(8)))
    def xst(which, lam, reg):
        return (II(f"s_xor_b32 s{sCnt}, s{sXR}, {lam*65536 + (which*4+lam)*8192}"),
                [Ins(f"buffer_store_dwordx4 {V(reg+4*m,4)}, v{vL16}, {SR(sXP)}, s{sCnt} offen offset:{m*1024} sc1") for m in range(2)], [])
    def xld(which, lam, tag, so=sCnt):
        if OPT.get("xdummy") == 2: return (II(f"s_mov_b32 s{so}, 0x40000000"), [Ins(f"buffer_load_dwordx4 {V(IN(which,lam)+4*m,4)}, v{vL16}, {SR(sXP)}, s{so} offen offset:{m*1024} sc1", tag=tag) for m in range(2)], [])
        if OPT.get("xdummy") == 1: return (II(f"s_add_u32 s{so}, s{sBo}, {(which*4+lam-1)*2048 % 4096 + ((which*4+lam-1)//2)*BSTRIDE}"), [Ins(f"buffer_load_dwordx4 {V(IN(which,lam)+4*m,4)}, v{vL16}, {SR(sB)}, s{so} offen offset:{m*1024} sc1", tag=tag) for m in range(2)], [])
        return (II(f"s_add_u32 s{so}, s{sXR}, {(which*4+lam)*8192}"),
                [Ins(f"buffer_load_dwordx4 {V(IN(which,lam)+4*m,4)}, v{vL16}, {SR(sXP)}, s{so} offen offset:{m*1024} sc1", tag=tag) for m in range(2)], [])
    IN = lambda which, lam: ACG(2 * lam, 0) + (0 if which else 8)
    def arrived(name, parts):
        regs = [IN(w_, l_) + r for w_, l_ in parts for r in range(8)]
        t = f"v_max3_u32 v28, v{regs[0]}, v{regs[1]}, v{regs[2]}\nv_max3_u32 v29, v{regs[3]}, v{regs[4]}, v{regs[5]}\n"
        for m in range(6, len(regs), 2): t += f"v_max3_u32 v{28+(m>>1)%2}, v{28+(m>>1)%2}, v{regs[m]}, v{regs[m+1]}\n"
        t += "v_max_u32 v28, v28, v29\nv_cmp_eq_u32 vcc, -1, v28\ns_nop 0\ns_cmp_eq_u64 vcc, 0"
        ld = "\n".join(x.text for w_, l_ in parts for g in [xld(w_, l_, None, sT)] for x in g[0] + g[1])
        r = poll_check(name, 0, ld, t)
        return r[:-5], r[-5:]
    G0, S0 = ACG(0, 0), ACS(2, 0)
    def unp(src, dst): return II("\n".join(f"v_lshlrev_b32 v{dst(2*r)}, 16, v{src+r}\nv_and_b32 v{dst(2*r+1)}, 0xffff0000, v{src+r}" for r in range(8)))
    gm = []
    for lam in (1, 2, 3):
        for h_ in range(2):
            for r in range(4): gm += II(f"v_lshlrev_b32 v{2+2*r}, 16, v{IN(1,lam)+4*h_+r}\nv_and_b32 v{3+2*r}, 0xffff0000, v{IN(1,lam)+4*h_+r}")
            for r in range(8): gm += II(f"v_add_f32 v{G0+8*h_+r}, v{G0+8*h_+r}, v{2+r}")
    nsum = len(gm)
    for h_ in range(2):
        g_ = lambda r: G0 + 8 * h_ + r
        for r in range(8): gm += II(f"v_mul_f32 v{2+r}, {f32(-LOG2E)}, v{g_(r)}")
        for r in range(8): gm += II(f"v_exp_f32 v{2+r}, v{2+r}") + (II(f"v_add_f32 v{r}, 1.0, v{r}") if r >= 2 else [])
        for r in range(8): gm += II(f"v_rcp_f32 v{2+r}, v{2+r}") + II(f"v_add_f32 v{8+r}, 1.0, v{8+r}" if r < 2 else f"v_mul_f32 v{g_(r-2)}, v{g_(r-2)}, v{r}")
        for r in (6, 7): gm += II(f"v_mul_f32 v{g_(r)}, v{g_(r)}, v{2+r}")
    nrest = len(gm) - nsum
    ta = II(f"""v_and_b32 v10, 15, v0
v_bfe_u32 v11, v0, 4, 2
v_and_b32 v18, 7, v0
v_xor_b32 v11, v11, v18
v_lshlrev_b32 v10, 7, v10
v_lshl_add_u32 v10, v11, 4, v10
v_add_u32 v10, s{sM}, v10
v_xor_b32 v11, 64, v10
v_and_b32 v18, 3, v0
v_lshlrev_b32 v18, 1, v18
v_bfe_u32 v19, v0, 2, 3
v_xor_b32 v18, v18, v19
v_bfe_u32 v19, v0, 2, 4
v_lshlrev_b32 v19, 7, v19
v_lshl_add_u32 v18, v18, 4, v19
v_add_u32 v18, s{sM}, v18
v_xor_b32 v19, 16, v18""")
    XR = IN(1, 1)
    at = lambda tl, y: max(q for q, gp in enumerate(tl.g) if any(x is y for x in gp.vec))
    for n in range(23):
        i = n - 7
        stamp(k, f"g{n}" if n < 7 else f"s{i}")
        tl = TL()
        if n < 7:
            for c_, j in enumerate((2, 3, 4, 5, 6, 7, 0, 1) if n == 6 else range(8)):
                for v in ((0, 1) if c_ % 2 == 0 else (1, 0)):
                    d = V(ACG(j, v), 4)
                    for m, ks in enumerate((0, 1) if v == (c_ & 1) else (1, 0)):
                        tl.add(MF(d, R(*AG(n, v, ks), 4), V(BF(n, j * 2 + ks), 4), "0" if (n == 0 and m == 0) else d))
        else:
            for e_ in range(2):
                for v in ((0, 1) if e_ == 0 else (1, 0)):
                    d = V(ACS(2 * ((i >> 2) & 1) + e_, v), 4)
                    for m, ks in enumerate(range(8) if v == e_ else range(7, -1, -1)):
                        tl.add(MF(d, A(AS(v, (i & 3) * 8 + ks), 4), V(BF(n, e_ * 8 + ks), 4), "0" if (i in (0, 4, 8) and m == 0) else d))
        bar = bool(RD[n]) and i not in OPT.get("nobs", ())
        need = []
        if bar:
            m = n
            while True:
                need += RD[m]; m += 1
                if m > 21 or m - 7 not in OPT.get("nobs", ()): break
        grp = []; vm = [f"U{u}" for u in need]
        assert all(u < nU for u in need), n
        if n == OPT["flagstage"]: vm.append("OS"); grp.append(([], II(f"buffer_store_dword v25, v26, {SR(sWS)}, 0 offen sc1"), []))
        ck = None
        if i == OPT["gck"]: vm.append("IG"); ck = arrived("g", [(1, 1), (1, 2), (1, 3)])
        if i == 11: vm.append("I1"); ck = arrived("s1", [(0, 1)])
        if i == 15: vm.append("I2"); ck = arrived("s2", [(0, 2)])
        if vm: tl.scal_at(0, W(vm=vm))
        span = n == OPT["pollstage"] and OPT["polld"] == 2
        if bar: tl.scal_at(1, Ins("s_barrier"))
        if RD[n]: tl.scal_at(31, W(lgkm="R") if not span else Ins("s_waitcnt lgkmcnt(2)"))
        lo = 3
        if n == OPT["pollstage"]: tl.scal_at(OPT.get("pollgap", 2), Ins(f"s_load_dwordx8 s[{sK}:{sK+7}], s[100:101], 0 glc", tag="R"))
        if n == OPT["pollstage"] + OPT["polld"]:
            pc = poll_check("o", vPoll, ldf, allset)
            g = tl.g[2]; g.load += 2; polled = True; lo = 5
            g.vec += II(f"s_and_b64 s[{sK}:{sK+1}], s[{sK}:{sK+1}], s[{sK+2}:{sK+3}]\ns_and_b64 s[{sK+4}:{sK+5}], s[{sK+4}:{sK+5}], s[{sK+6}:{sK+7}]\ns_and_b64 s[{sK}:{sK+1}], s[{sK}:{sK+1}], s[{sK+4}:{sK+5}]\ns_and_b32 s{sK}, s{sK}, s{sK+1}") + pc[-2:]
        pk = []
        if n == 6: pk = [(11, 21, pack(ACG(2, 0), ACG(2, 0)))]
        gst = OPT.get("gst", 0)
        if i == 0 and gst == 0: pk = [(0, 14, pack(ACG(4, 0), ACG(4, 0))), (8, 24, pack(ACG(6, 0), ACG(6, 0)))]
        if i == 0 and gst > 0: pk = [(0, 31, pack(ACG(4, 0), ACG(4, 0)) + pack(ACG(6, 0), ACG(6, 0)))]
        if i in (4, 8, 12): pk = [(4, 14, pack(ACS(2 * ((i // 4 + 1) & 1), 0), IN(0, i // 4)))]
        grp += take(n)
        if i == OPT["gld"]: grp += [xld(1, lam, "IG") for lam in (1, 2, 3)]
        if i == 8: grp.append(xld(0, 1, "I1"))
        g1 = OPT.get("g1early", 0)
        if i == gst: grp += [xst(1, lam, IN(1, lam)) for lam in (1, 2, 3) if lam > g1]
        if n == 6 and g1: late_ = [xst(1, lam, IN(1, lam)) for lam in range(1, g1 + 1)]
        else: late_ = []
        if i in (4, 8, 12): grp.append(xst(0, i // 4, IN(0, i // 4)))
        if i == 12:
            lo = 16
            grp += [([], II(f"buffer_load_dwordx4 {V(XR,4)}, v27, {SR(sX)}, s{sOo} offen\nbuffer_load_dwordx4 {V(XR+4,4)}, v27, {SR(sX)}, s{sXW} offen"), []), xld(0, 2, "I2")]
            assert len(gm) <= nsum + nrest - 32
        if i == 15: lo = OPT["i3gap"]; grp.append(xld(0, 3, "I3"))
        if i == 0 and gst == 0 and g1 and len(grp) == 3 - g1: lo = 17
        spill = []
        while sum(len(g[1]) + len(g[0]) // 2 for g in grp) > 22: spill.insert(0, grp.pop())
        nv = sum(len(g[1]) for g in grp)
        if grp and n < 7 and OPT.get("gfront"):
            q = lo - 1
            for g in grp:
                gp = tl.g[q]; gp.vec += g[0] + g[1]; gp.load += 6; q += OPT["gfront"]
            for g in spill: tl.g[q].vec += g[0] + g[1]; tl.g[q].load += 6; q += OPT["gfront"]
            spill = []
        elif grp: tl.spread(lo, min(29, lo + 4 * nv - 4) if i > 0 else (29 if not late_ else 18), grp)
        if late_: tl.spread(24, 29, late_); grp += late_
        rd = [x for u in RD[n] for x in ureads(u)]
        if span: rd += II(f"ds_read_b32 v28, v{vL16}\nds_read_b32 v28, v{vL16}")
        if len(rd) > 16: tl.vec_in(2, 27, rd)
        elif rd:
            free = [q for q in range(2, 27) if tl.g[q].load == 0]
            while len(free) > 16: free.pop(2 + 2 * (len(free) - 17) if 2 + 2 * (len(free) - 17) < len(free) else -1)
            if len(free) < 16: tl.vec_in(2, 27, rd)
            else:
                for x, q in zip(rd, free): tl.vec_at(q, x)
        for lo_, hi_, its in pk:
            left = tl.stream(lo_, hi_, its, cap=3); assert not left, (n, len(left))
            for y in its:
                for q, gp in enumerate(tl.g): assert not (gp.m.writes & y.reads) or at(tl, y) >= q, n
                for g in grp:
                    for x in g[1]: assert not (y.writes & x.reads) or at(tl, x) > at(tl, y), n
        q0 = 0
        if ck:
            left = tl.stream(0, 20, ck[0]); assert not left
            q0 = at(tl, ck[0][-1]) + 1; tl.g[q0].vec += ck[1]; tl.g[q0].load += 2; q0 += 1
        if i == 5: left = tl.stream(0, 31, ta); assert not left
        if i == 11: left = tl.stream(q0, 29, unp(IN(0, 1), lambda r: S0 + r)); assert not left
        if i == 15: left = tl.stream(q0, 31, unp(IN(0, 2), lambda r: 144 + r) + unp(XR, lambda r: 128 + r)); assert not left
        if i >= OPT["gck"] and gm: gm = tl.stream(q0 if i == OPT["gck"] else 0, 31, gm)
        k.ext(tl.emit(0, 32, "x").ins)
        for g in spill: emit_grp(k, g)
    assert nU == len(UNITS)
    stamp(k, "send")
    print("g math left over", len(gm), file=sys.stderr)
    k.ext(gm)
    def padd(acc, tmp):
        for r in range(0, 16, 2): k.e(f"v_pk_add_f32 {V(acc+r,2)}, {V(acc+r,2)}, {V(tmp+r,2)}")
    k.wait(vm="I3")
    ck = arrived("s3", [(0, 3)]); k.ext(ck[0] + ck[1])
    stamp(k, "spolled")
    k.ext(unp(IN(0, 3), lambda r: 160 + r)); padd(144, 160); padd(S0, 144)
    for r in range(0, 16, 2): k.e(f"v_pk_mul_f32 {V(S0+r,2)}, {V(S0+r,2)}, {V(G0+r,2)}")
    for e_ in range(2):
        for v in range(2): k.e(f"ds_write_b128 v{10+v}, {V(S0+(e_*2+v)*4,4)} offset:{e_*2048}")
    for e_ in range(2):
        for m in range(2): k.e(f"ds_read_b128 {V(160+e_*8+m*4,4)}, v{18+m} offset:{e_*2048}", tag=f"T{e_}")
    for e_ in range(2):
        k.wait(lgkm=f"T{e_}")
        for r in range(0, 8, 2): k.e(f"v_pk_add_f32 {V(128+8*e_+r,2)}, {V(128+8*e_+r,2)}, {V(160+8*e_+r,2)}")
        for r in range(4): k.e(f"v_cvt_pk_bf16_f32 v{176+4*e_+r}, v{128+8*e_+2*r}, v{129+8*e_+2*r}")
        k.e(f"buffer_store_dwordx4 {V(176+4*e_,4)}, v27, {SR(sOut)}, s{sXW if e_ else sOo} offen")
    z = Block(); z.name = "end"
    if OPT.get("encode") is not None:
        z.e("s_waitcnt vmcnt(0) lgkmcnt(0)"); stamp(z, "end")
        i0, i1 = (STAMPS[x] for x in OPT["encode"])
        fld = 72 if OPT.get("enccyc") else 73
        z.e(f"s_sub_u32 s92, s{fld+2*i1}, s{fld+2*i0}")
        if OPT.get("encx") is not None: z.e(f"s_and_b32 s3, s2, {OPT.get('encm', 7)}\ns_cmp_eq_u32 s3, {OPT['encx']}\ns_cselect_b32 s92, s92, 0")
        z.e("s_lshr_b32 s92, s92, 2" if OPT.get("enccyc") else "s_lshl_b32 s92, s92, 2")
        z.e(f"s_add_u32 s92, s92, 20000\nL_enc:\ns_sleep 1\ns_memrealtime s[98:99]\ns_waitcnt lgkmcnt(0)\ns_sub_u32 s98, s98, s73\ns_cmp_lt_u32 s98, s92\ns_cbranch_scc1 L_enc")
    elif OPT["stamp"]:
        z.e("s_waitcnt vmcnt(0) lgkmcnt(0)"); stamp(z, "end")
        z.e(f"s_load_dwordx2 s[96:97], s[0:1], 88\ns_waitcnt lgkmcnt(0)"); ptr_add(z, 96, 0x8000000 + 0x40000); srd_fin(z, 96, 0x40000)
        for i in range(20): z.e(f"v_mov_b32 v{36+i}, s{72+i}")
        z.e(f"s_lshl_b32 s92, s2, 2\ns_add_u32 s92, s92, s{sWave}\ns_lshl_b32 s92, s92, 7\nv_mov_b32 v2, s92\ns_mov_b64 exec, 1")
        for i in range(5): z.e(f"buffer_store_dwordx4 {V(36+4*i,4)}, v2, s[96:99], 0 offen offset:{16*i}")
    z.e("L_end:\ns_endpgm")
    fb = Block(); fb.name = "fb"
    fb.e(f"L_fallback:\ns_mov_b32 s{sFB}, 1\ns_waitcnt vmcnt(0) lgkmcnt(0)\ns_barrier\ns_branch L_restart")
    m0 = Block(); m0.name = "tm0"
    m0.e(f"L_truemax:\ns_mov_b32 s{sKo}, s{sW8k}\ns_mov_b32 s{sCnt}, 16")
    for t in range(4): m0.e(f"v_mov_b32 v{vNM+4*t}, 0xff800000")
    m0.e("s_waitcnt vmcnt(0) lgkmcnt(0)")
    m1 = Block(); m1.name = "tm1"
    m1.e("L_tm_loop:\ns_barrier")
    emit_grp(m1, dma_K(0, 0, "DK")); emit_grp(m1, dma_K(1, 0, "DK"))
    m1.e("s_waitcnt vmcnt(0)\ns_barrier")
    for g in range(8):
        m1.ext(kreads(g, 0, 0, "K0")); m1.e("s_waitcnt lgkmcnt(0)")
        for t in range(4): m1.ext(qk_chain(t, 0, "0"))
        for t in range(4):
            s0 = vS + 4 * t
            m1.e(f"v_max3_f32 v{vNM+4*t}, v{vNM+4*t}, v{s0}, v{s0+1}\nv_max3_f32 v{vNM+4*t}, v{vNM+4*t}, v{s0+2}, v{s0+3}")
    m1.e(f"s_sub_u32 s{sCnt}, s{sCnt}, 1\ns_cmp_lg_u32 s{sCnt}, 0\ns_cbranch_scc1 L_tm_loop")
    m2 = Block(); m2.name = "tm2"
    rowmax_finish(m2, lambda t: vNM + 4 * t)
    m2.e(f"s_mov_b32 s{sKo}, s{sW8k}\ns_barrier")
    emit_grp(m2, dma_K(0, 0, "DK")); emit_grp(m2, dma_K(1, 0, "DK"))
    m2.e(f"s_add_u32 s{sKo}, s{sKo}, 32768\ns_waitcnt vmcnt(0)\ns_barrier")
    m2.ext(kreads(0, 0, 0, "K0")); m2.e("s_waitcnt lgkmcnt(0)\ns_branch L_att_start")
    att = [l0, first, l1, l1b, even, odd, l1b, even, odd, l4, last, f]
    front = [b2, c, proj, e]
    vb = []
    finalize([[b_] + front + [e2] + att + [k, z], [b_] + front + [e2] + att + [fb] + front + [m0, m1, m1, m2] + att + [k, z]] + [[s] for s in SLOW], vb)
    check_groups([x for bb in [b_] + front + [e2] + att + [k, z] for x in bb.ins])
    for x in vb:
        if x[0].startswith("att") or x[0] == "proj": print("nop:", x, file=sys.stderr)
    layout = [b_, b2, c, proj, e, e2, l0, first, l1, l1b, even, odd, l4, last, f, k, z, fb, m0, m1, m2] + SLOW
    return kernel_head(KN) + "\n".join(x.text() for x in layout) + "\n" + kernel_desc(KN, 512, 256)

def build():
    head = open("cdna_kernels/" + NAME + ".s.ref").read().split("; Override launch")[0]
    s = head + "; @launch grid=(256,1,1) block=(256,1,1) lds=163840\n" + '.amdgcn_target "amdgcn-amd-amdhsa--gfx950"\n'
    plan_units()
    return s + gen_kernel()

if __name__ == "__main__":
    out = sys.argv[1] if len(sys.argv) > 1 else "cdna_kernels/" + NAME + ".s"
    for a in sys.argv[2:]:
        k, v = a.split("="); OPT[k] = eval(v)
    names = OPT.get("stamps", "p0,p4,projend,att0,loop,last,tail0,gend").split(",")
    STAMPS.update({n: i + 1 for i, n in enumerate(names)}); STAMPS["start"] = 0; STAMPS["end"] = 9
    open(out, "w").write(build())
```

```python
import sys, math, struct
sys.path.insert(0, "gen")
from asmgen import *

NAME = "recurrent_scan__mha_block_cached__glu_gated_swiglu__prompt"
KN = NAME + "_kernel"
WS_ST, WS_FH, WS_FO, WS_FG, WS_FS = 0, 0x8000, 0x10000, 0x18000, 0x20000
WS_B, WS_X = 0x200000, 0x2000000
BSTRIDE = 184 * 1024
LOG2E = 1.4426950408889634
OOB = 0x7ffffff0
def f32(x): return "0x%08x" % struct.unpack("<I", struct.pack("<f", x))[0]
OPT = dict(stamp=False, early=7, pollstage=3, polld=1, htrip=2, flagstage=0, osr=1, osg=4, fgstage=5, fsstage=11, lead=5, ramp=0, i3gap=6, tq0=0, pa=.1, pb=.75, pc=.4, x2o=.15, x3a=.92, nh=3, nhS=4, sthiS=.45, pre="Q0 S", sthi=.2,
    sch=[(.05,'W1 r1 G1 Q1'),(.75,'x1 W2'),('o',1,1.45,1.65),(0,'r2 G2 W3 A'),(2.25,'x2 W4 G3'),('o',2,3.05,3.25),(0,'r3 Q2 C'),(3.65,'x3 W5'),(4.5,'Q3 W6', 6),('o',3,4.6,4.9)], clrpos=(7, 5), asat=(-9, -9, -9, -9, 0, 0, 1, 1, 2, 2, 3, 3, 4, 4, 6, 5), bsat=(0, 0, 0, 0, 0, 2, 2, 3, 4, 6, 6, 7, 8, 10, 10, 11), gld=4, gck=7)

L_K, L_SP, L_V = 0, 65536, 98304
sX, sWQ, sW1, sW3, sK, sV, sB, sH, sWS, sDBG, sWO, sW2, sOut = range(4, 56, 4)
sHead, sQb, sWave, sW8k, sW4k, sXb, sKo, sVo, sCnt, sT, sT2, sWQo, sW13o, sBo, sFB, sW16k = range(56, 72)
sTr, sTc, sSp = 93, 94, 95
sTW, sT2W = 100, 101
sFs, sFv = 92, sOut + 2
vL16, vKA, vVA, vDK, vDV, vIDX, vT = 1, 2, 6, 14, 18, 20, 24
vS, vNM = 32, 48
def Q(t, ds): return 64 + (t * 4 + ds) * 4
def P(pb, kk, t): return 128 + pb * 64 + (t * 4 + kk) * 4
def O(dt, t): return (dt * 4 + t) * 4
def VF(b, kk): return (128 + b * 16 if b < 4 else 148 + b * 16) + kk * 4
aL, aONES = 192, 208
def KF(b, ds): return 212 + b * 16 + ds * 4
aCHK, aZ = 244, 248
vWQA, vW13A, vDQ, vD13, vXA, vDX = 24, 28, 32, 36, 40, 44

def SR(s): return f"s[{s}:{s+3}]"
def MF(d, a, bb, c): return Ins(f"v_mfma_f32_16x16x32_bf16 {d}, {a}, {bb}, {c}")
def II(txt, tag=None): return [Ins(x, tag=tag) for x in txt.split("\n") if x.strip()]
def srd_fin(b, d, nrec):
    b.e(f"s_and_b32 s{d+1}, s{d+1}, 0xffff\ns_mov_b32 s{d+2}, {nrec}\ns_mov_b32 s{d+3}, 0x20000")
def ptr_add(b, d, off): b.e(f"s_add_u32 s{d}, s{d}, {off}\ns_addc_u32 s{d+1}, s{d+1}, 0")

def stamp_ins(i):
    if not OPT["stamp"] or i is None: return []
    return II(f"s_waitcnt lgkmcnt(0)\ns_memtime s[96:97]\ns_memrealtime s[98:99]\ns_waitcnt lgkmcnt(0)\ns_mov_b32 s{72+2*i}, s96\ns_mov_b32 s{73+2*i}, s98")
STAMPS = {}
def stamp(b, name): b.ext(stamp_ins(STAMPS.get(name)))

class Gap:
    def __init__(self, m): self.m = m; self.scal = []; self.vec = []; self.load = 0
def cost_of(ins): return 2 if (ins.kind == "trans" or ins.is_vmem) else (0 if ins.kind in ("salu", "wait", "sctl", "label") else 1)
def is_ds(x): return x.kind in ("dsread", "dswrite")
def dep(a, b): return bool(a.writes & (b.reads | b.writes)) or bool(a.reads & b.writes)
class TL:
    def __init__(self): self.g = []
    def add(self, m):
        gp = Gap(m); self.g.append(gp)
        if m.op.startswith("v_smfmac"): gp.load = 1
        return len(self.g) - 1
    def pen(self, i, ins):
        gp = self.g[i]; l = gp.load + cost_of(ins)
        if is_ds(ins) and any(x.is_vmem for x in gp.vec): l += OPT.get("vmpen", .5)
        if is_ds(ins):
            if any(is_ds(x) for x in gp.vec): l += 1
            if any(x.is_valu and dep(x, ins) for x in gp.vec): l += 2
        return l
    def vec_at(self, i, ins):
        gp = self.g[i]; k = len(gp.vec)
        if is_ds(ins) or ins.is_vmem:
            while k > 0 and gp.vec[k - 1].is_valu and not dep(gp.vec[k - 1], ins): k -= 1
        gp.vec.insert(k, ins); gp.load += cost_of(ins)
    def vec_in(self, lo, hi, items):
        extra = {i: 0 for i in range(lo, hi + 1)}
        cand = []
        for it in items:
            i = min(extra, key=lambda k: (max(self.pen(k, it) + extra[k], 2), self.pen(k, it) + extra[k] if not OPT.get("pack") else 0, k)); cand.append(i); extra[i] += 2
        cand.sort()
        for i, it in zip(cand, items): self.vec_at(i, it)
        return cand
    def scal_at(self, i, ins, later=True):
        while self.g[i].scal: i += 1 if later else -1
        self.g[i].scal.append(ins); return i
    def spread(self, lo, hi, groups):
        n = sum(len(g[1]) for g in groups); k = 0; prev = lo - 3
        for grp in groups:
            sc, ve, post = grp
            for x in ve: x.grp = grp; x.role = "vec"
            first = True
            for it in ve:
                tgt = lo + (hi - lo) * k // max(n - 1, 1); k += 1
                mn = prev + 1
                if first:
                    i = max(prev + 1, tgt - len(sc) - 1)
                    for x in sc: i = self.scal_at(i, x) + 1
                    mn = max(mn, i); first = False
                cands = [j for j in range(max(mn, tgt - 1), max(mn, tgt - 1) + 4) if j < len(self.g)]
                j = min(cands, key=lambda z: (self.g[z].load, abs(z - tgt)))
                self.vec_at(j, it); prev = j
            for x in post: prev = self.scal_at(prev + 1, x)
        return prev
    def stream(self, lo, hi, items, cap=2):
        i = lo; items = list(items)
        while items and i <= hi:
            it = items[0]; c = cost_of(it)
            if c == 0:
                i += 1
                while i <= hi and self.g[i].scal: i += 1
                if i > hi: break
                self.g[i].scal.append(it); items.pop(0); continue
            if self.pen(i, it) <= cap: self.vec_at(i, it); items.pop(0)
            else: i += 1
        return items
    def sched(self, lo, hi, items, look=70, lat=6):
        items = list(items); rw = {}; pos = {}
        for x in items:
            r, w = set(x.reads), set(x.writes)
            if x.waitfor is not None:
                for y in items:
                    if y.tag is not None and any(y.tag in t for t in x.waitfor.values()): r |= y.writes; w |= y.writes
                r |= getattr(x, "guards", set()); w |= getattr(x, "guards", set())
            if x.is_vmem: r.add("vm"); w.add("vm")
            rw[id(x)] = (r, w)
        dp = lambda a, b: bool(rw[id(a)][1] & (rw[id(b)][0] | rw[id(b)][1])) or bool(rw[id(a)][0] & rw[id(b)][1])
        placed = []
        def ready(k, i):
            x = items[k]
            if any(dp(y, x) for y in items[:k]): return False
            for y in placed[-40:]:
                if not dp(y, x): continue
                d = 0
                if cost_of(x) == 0 or is_ds(x) or x.is_vmem: d = 1 if cost_of(y) > 0 or cost_of(x) == 0 else 0
                if x.waitfor is not None and is_ds(y): d = lat
                if (getattr(x, "dpp", False) or getattr(x, "permlane", False)) and y.is_valu: d = 2
                if i < pos[id(y)] + d: return False
            return True
        for i in range(lo, hi + 1):
            for want in (0, 2, 1, 1):
                for k in range(min(look, len(items))):
                    x = items[k]
                    if cost_of(x) != want: continue
                    if (self.g[i].scal if want == 0 else self.pen(i, x) > 2) or not ready(k, i): continue
                    if want == 0: self.g[i].scal.append(x)
                    else: self.vec_at(i, x)
                    pos[id(x)] = i; placed.append(x); items.pop(k); break
        return items
    def emit(self, lo, hi, name):
        b = Block(); b.name = name
        for gp in self.g[lo:hi]:
            if gp.m is not None: b.add(gp.m)
            b.ext(gp.scal); b.ext(gp.vec)
        return b

SLOW = []
def poll_check(name, vreg, load_txt, ready_cmp):
    inl = II(ready_cmp) + II(f"s_cbranch_scc0 L_spin_{name}\nL_back_{name}:")
    sl = Block(); sl.name = "spin" + name
    sl.e(f"L_spin_{name}:\ns_mov_b32 s3, 0x40000\nL_spin2_{name}:\ns_sleep {OPT.get('slp', 2)}\n{load_txt}\ns_waitcnt vmcnt(0)\ns_sub_u32 s3, s3, 1\ns_cmp_eq_u32 s3, 0\ns_cbranch_scc1 L_back_{name}")
    sl.e(ready_cmp); sl.e(f"s_cbranch_scc0 L_spin2_{name}\ns_branch L_back_{name}")
    SLOW.append(sl)
    return inl

def dma_K(half, buf, tag):
    return (II(f"s_add_u32 m0, s{sW8k}, {L_K + buf*32768 + half*4096}"),
            [Ins(f"buffer_load_dwordx4 v{vDK+p}, {SR(sK)}, s{sKo} offen offset:{p*1024} lds", tag=tag) for p in range(4)],
            II(f"s_add_u32 s{sKo}, s{sKo}, {4096 if half == 0 else 28672}"))
def dma_V(half, buf, tag):
    return (II(f"s_add_u32 m0, s{sW8k}, {L_V + buf*32768 + half*4096}"),
            [Ins(f"buffer_load_dwordx4 v{vDV+(p&1)}, {SR(sV)}, s{sVo} offen offset:{p*1024} lds", tag=tag) for p in range(4)],
            II(f"s_add_u32 s{sVo}, s{sVo}, {4096 if half == 0 else 28672}"))
def emit_grp(b, d): b.ext(d[0]); b.ext(d[1]); b.ext(d[2])
def check_groups(trace):
    last = {}; cnt = {}
    for x in trace:
        g = getattr(x, "grp", None)
        if g is not None and x.role == "vec":
            for r in x.reads:
                ws_ = [sc for sc in g[0] if r in sc.writes]
                if ws_: assert last.get(r) is ws_[-1], ("group scalar clobbered", x.text, last.get(r))
            for sc in g[2]:
                for r in sc.writes & x.reads:
                    key = (id(g), r)
                    if x is g[1][0]: cnt[key] = last.get(r)
                    assert last.get(r) is cnt[key] and (len(g[1]) == 1 or last.get(r) is not sc), ("post scalar order", x.text)
        for r in x.writes:
            if r[0] == "s" or r == "m0": last[r] = x
def kreads(g, buf, fb, tag):
    return [Ins(f"ds_read_b128 {A(KF(fb,ds),4)}, v{vKA+ds} offset:{buf*32768+g*4096}", tag=tag) for ds in range(4)]
def vreads(dt, buf, fb, tag):
    return [Ins(f"ds_read_b64_tr_b16 {A(VF(fb,kk)+2*kh,2)}, v{vVA+dt} offset:{buf*32768+(32*kk+16*kh)*256}", tag=tag) for kk in range(4) for kh in range(2)]
def snake(t): return range(4) if t % 2 == 0 else range(3, -1, -1)
def qk_chain(t, fb, c0):
    d = V(vS + 4 * t, 4)
    return [MF(d, A(KF(fb, ds), 4), V(Q(t, ds), 4), c0 if n == 0 else d) for n, ds in enumerate(snake(t))]
def pv_chain(dt, t, fb, pb):
    d = A(O(dt, t), 4)
    return [MF(d, A(VF(fb, kk), 4), V(P(pb, kk, t), 4), d) for kk in snake(t)]
def rs(t, kp, pb): return Ins(f"v_smfmac_f32_16x16x64_bf16 {A(aL+4*t,4)}, {A(aONES,4)}, {V(P(pb,2*kp,t),8)}, v{vIDX}")

vDA, vB1, vPoll, vPA = 14, 30, 29, 23
vRAs, vRB, vRAg = 6, (12, 13, 20), 48
sM, sAo, sWOo, sW2o = sW4k, sT2, sWQo, sW13o
sBg, sQ0, sBt = sXb, sW1 + 3, sKo
sBs = [sDBG, sDBG + 1, sDBG + 2, sDBG + 3]
sXP = sH
sXW, sXR, sOo, sFl2 = sW16k, 92, sQ0, 99
sGk = list(range(sWQ, sWQ + 7))
sHp = list(range(sW3, sW3 + 4))
UNITS = []; USEQ = {}; RD = {}
def plan_units():
    for n in range(-1, 22):
        r = [("Ag", n + 1), ("Bg", n + 1)] if n < 6 else [("Bs", n - 6)]
        r = [("As", a) for a in range(16) if OPT["asat"][a] == n] + r if n == 6 else r + [("As", a) for a in range(16) if OPT["asat"][a] == n]
        RD[n] = list(range(len(UNITS), len(UNITS) + len(r))); UNITS.extend(r)
    RD[22] = []
    USEQ.update({u: n for n, u in enumerate(UNITS)})
    for a in range(16): assert OPT["asat"][a] <= 6 + a // 4
    assert OPT["asat"][14] >= 6 and max(OPT["asat"]) <= 9
def udma(n):
    kind, i = UNITS[n] if isinstance(n, int) else n
    m0 = f"s_add_u32 m0, s{sM}, {uslot((kind, i))*16384}\n"; tag = f"U{n}" if isinstance(n, int) else f"E{i}"
    rot = OPT.get("rot", 1)
    if kind[0] == "A":
        sr, so = (sW2, sW2o) if kind == "Ag" else (sWO, sWOo)
        if kind == "As": ad = f"s_xor_b32 s{sAo}, s{so}, {i*65536}"
        else: ad = f"s_lshl_b32 s{sAo}, s{sGk[i]}, 5\ns_add_u32 s{sAo}, s{sAo}, s{so}"
        return (II(m0 + ad),
                [Ins(f"buffer_load_dwordx4 v{vDA+p}, {SR(sr)}, s{sAo} offen offset:{p*1024} lds", tag=tag) for p in range(4)], [])
    if kind == "Bg":
        return (II(m0 + f"s_add_u32 s{sBt}, s{sBg}, s{sGk[i]}"),
                [Ins(f"buffer_load_dwordx4 v{vL16 if p < 2 else vB1}, {SR(sB)}, s{sBt} offen offset:{p*1024} sc1 lds", tag=tag) for p in range(4)], [])
    bs, hp = sBs[(1, 2, 3, 0)[i >> 2]], sHp[i & 3]
    return (II(m0 + f"s_add_u32 s{sBt}, s{bs}, s{hp}"),
            [Ins(f"buffer_load_dwordx4 v{vL16}, {SR(sB)}, s{sBt} offen offset:{p*1024} sc1 lds", tag=tag) for p in range(4)], [])
XSLOT = {("As", 0): 0, ("As", 1): 1, ("As", 2): 4, ("As", 3): 5}
def uslot(u): return XSLOT[u] if u not in USEQ else USEQ[u] % 10
def uloc(u): sl = uslot(u); return sl // 4, (sl % 4) * 16384
_first = list(range(160, 192, 4)) + [0, 4, 16, 20, 32, 36, 48, 52]
ASREG = _first + [r for r in range(0, 256, 4) if r not in _first]
assert ASREG[56:60] == [224, 228, 232, 236]
def AS(v, ks): return ASREG[ks * 2 + v]
def AG(i, v, ks): return ("v", 32 + (v * 2 + ks) * 4) if i % 2 == 0 else ("a", 224 + (v * 2 + ks) * 4)
def BF(n, m): return 64 + (n & 1) * 64 + m * 4
def ACG(j, v): return 192 + (j * 2 + v) * 4
def ACS(q, v): return 32 + (q * 2 + v) * 4
def ureads(u, vRAs=vRAs):
    kind, i = UNITS[u] if isinstance(u, int) else u
    st, o = uloc((kind, i))
    if kind == "As":
        return [Ins(f"ds_read_b64_tr_b16 {A(AS(v,2*i+ks)+2*kh,2)}, v{vRAs+2*st+v} offset:{o+ks*8192+kh*4096}", tag="R") for ks in range(2) for v in range(2) for kh in range(2)]
    if kind == "Ag":
        return [Ins(f"ds_read_b64_tr_b16 {R(AG(i,v,ks)[0], AG(i,v,ks)[1]+2*kh, 2)}, v{vRAg+4*st+2*kh+v} offset:{o+ks*8192}", tag="R") for v in range(2) for ks in range(2) for kh in range(2)]
    n = i if kind == "Bg" else 7 + i
    return [Ins(f"ds_read_b128 {V(BF(n,m),4)}, v{vRB[st]} offset:{o+m*1024}", tag="R") for m in range(16)]
OSTORES = []
EARLY = []

def gen_attention():
    tl = TL()
    phases = [-1, 0, 1, 2, 3, 15]
    VPOS = OPT.get("vmpos", (5, 13, 21, 29))
    start = {}; stepb = {}
    for p in phases:
        start[p] = len(tl.g)
        if p == 15:
            def qk(t, s):
                d = V(vS + 4 * (2 * (s & 1) + (t & 1)), 4)
                for n, ds in enumerate(snake(t)): tl.add(MF(d, A(KF(s & 1, ds), 4), V(Q(t, ds), 4), V(vNM + 4 * t, 4) if n == 0 else d))
            def pv(dt, t, vs, pb, fwd):
                d = A(O(dt, t), 4)
                for kk in (range(4) if fwd else range(3, -1, -1)): tl.add(MF(d, A(VF(vs, kk), 4), V(P(pb, kk, t), 4), d))
            FR = [(i, t) for h_ in (0, 2) for i in range(4) for t in (h_, h_ + 1)]
            ost = lambda n: 128 + (FR[n][1] * 4 + FR[n][0]) * 4
            mk = lambda n: MF(A(aCHK, 4), A(aZ, 4), V(ost(n), 4), "0" if n == 0 else A(aCHK, 4))
            xb = {}; cdone = {}; chkpos = {}
            def chk(n): chkpos[n] = tl.add(mk(n))
            v3 = lambda dt: (0, 4, 1, 5)[dt & 3]
            for s in range(8):
                xb[s] = len(tl.g); qk(0, s); qk(1, s)
                for t in range(4): pv(s, t, s & 1, 0, 1 - (t & 1))
                tl.add(rs(s >> 1, s & 1, 0))
            for s in range(8):
                xb[8 + s] = len(tl.g); qk(2, s); qk(3, s)
                pv(s, 0, s & 1, 1, 1)
                if s & 1: cdone[s - 1] = len(tl.g) - 1
                pv(s, 1, s & 1, 1, 0)
                if s & 1: cdone[s] = len(tl.g) - 1
                if s == 0:
                    for t in (0, 1): tl.add(rs(t, 0, 1)); tl.add(rs(t, 1, 1))
                if s >= 4: chk(s - 4)
            for n in range(8, 16):
                i, t = FR[n]; xb[8 + n] = len(tl.g)
                if i == 0: tl.add(rs(t, 0, 1)); tl.add(rs(t, 1, 1))
                a_, b_ = (2 * i, 2 * i + 1) if t == 2 else (2 * i + 1, 2 * i)
                pv(a_, t, v3(a_), 1, 1); pv(b_, t, v3(b_), 1, 0); cdone[n] = len(tl.g) - 1
                chk(n - 4)
            xb[24] = len(tl.g)
            continue
        for s in range(8):
            stepb[p, s] = len(tl.g)
            if p != 15:
                for t in range(4):
                    for m in qk_chain(t, s & 1, V(vNM + 4 * t, 4)): tl.add(m)
            if p == -1:
                tl.add(Ins(f"v_mfma_f32_32x32x16_bf16 {A(16*s,16)}, {A(aZ,4)}, {A(aZ,4)}, 0"))
                if s == 0: tl.add(Ins(f"v_mfma_f32_32x32x16_bf16 {A(aL,16)}, {A(aZ,4)}, {A(aZ,4)}, 0"))
            else:
                for t in range(4):
                    for m in pv_chain(s, t, s & 1, p & 1): tl.add(m)
                if p != 15:
                    tl.add(rs(s >> 1, s & 1, p & 1))
    end = len(tl.g)
    nxt = {p: (start[phases[i + 1]] if i + 1 < len(phases) else end) for i, p in enumerate(phases)}
    for p in phases:
        if p == 15: continue
        pb = (p + 1) & 1
        for s in range(8):
            b0 = stepb[p, s]; nb = stepb[p, s + 1] if s < 7 else nxt[p]
            for t in range(4):
                sr = vS + 4 * t
                ex = [Ins(f"v_exp_f32 v{sr+r}, v{sr+r}") for r in range(4)]
                pd = P(pb, s >> 1, t) + 2 * (s & 1)
                cv = [Ins(f"v_cvt_pk_bf16_f32 v{pd+h}, v{sr+2*h}, v{sr+2*h+1}") for h in range(2)]
                if p >= 0:
                    o = b0 + 8 * t + (1 if t == 3 else 0)
                    pe = [o + 8 + 2 * r for r in range(4)]; pc = [o + 11, o + 15]
                else:
                    pe = [b0 + 4 * t + 8 + r for r in range(4)]; pc = [b0 + 4 * t + 10, b0 + 4 * t + 12]
                    if s == 7:
                        pe = [min(x, nb - 1) for x in pe]; pc = [min(x, nb - 1) for x in pc]
                        if t == 3: pe = [nb + 0, nb + 2, nb + 4, nb + 6]; pc = [nb + 3, nb + 7]
                seq = sorted([(pe[0],0,ex[0]),(pe[1],1,ex[1]),(pc[0],3 if p < 0 else 2,cv[0]),(pe[2],2.5,ex[2]),(pe[3],4,ex[3]),(pc[1],5,cv[1])], key=lambda z: (z[0], z[1]))
                for pos, _, ins in seq: tl.vec_at(pos, ins)
    for p in phases:
        if p == 15: continue
        if 0 <= p < 15:
            grps = [dma_K(0, p & 1, "DK"), dma_K(1, p & 1, "DK"), dma_V(0, (p + 1) & 1, "DV"), dma_V(1, (p + 1) & 1, "DV")]
            for s in range(8):
                tl.scal_at(stepb[p, s] + 15, W(lgkm=f"V{s}"), later=False)
                tl.scal_at(stepb[p, s] + 31, W(lgkm=f"K{(s+1)&7}"), later=False)
            if OPT.get("kvtouch", 1): grps.append(([], II(f"buffer_load_dword a252, v28, {SR(sK if p % 2 == 0 else sV)}, s{sKo if p % 2 == 0 else sVo} offen"), []))
            so, sr = (sTW, sWO) if p % 2 == 0 else (sT2W, sW2)
            grps.append((II(f"s_cmp_le_u32 s{sCnt}, {OPT.get('wtrip', 2)}\ns_cselect_b32 s{sT}, s{so}, 0x40000000"), II(f"buffer_load_dword a252, v{30 if p % 2 == 0 else 29}, {SR(sr)}, s{sT} offen"),
                         II(f"s_add_u32 s{so}, s{so}, {0x4000 if (p % 2 == 0 and OPT.get('wo2', 1)) else 0x2000}\ns_and_b32 s{so}, s{so}, {0x7fff if p % 2 == 0 else 0x3fff}")))
            if p % 2 == 0 and OPT.get("cpl", 1): grps.append(([], II("global_load_dword a252, v[24:25], off"), []))
            if p % 2 == 1:
                grps.append(([], II(f"buffer_store_dword v22, v21, {SR(sWS)}, 0 offen sc1"), []))
                tl.vec_at(stepb[p, 7] + 3, Ins("v_add_u32 v22, 1, v22"))
            clr = II(f"buffer_store_dwordx4 {A(aCHK,4)}, v{vL16}, {SR(sXP)}, s{sT2} offen offset:{1024*(p&1)} sc1")
            if OPT.get("clrpos") is not None: tl.vec_at(stepb[p, OPT["clrpos"][0]] + OPT["clrpos"][1], clr[0])
            elif not OPT.get("noclr"): grps.append(([], clr, []))
            if p % 2 == 0:
                q = stepb[p, 0] + 6
                for x in II(f"s_cmp_lt_u32 s{sCnt}, 5\ns_subb_u32 s3, s{sCnt}, 0\ns_and_b32 s{sT2}, s3, 3\ns_lshl_b32 s{sT2}, s{sT2}, 3\ns_or_b32 s{sT2}, s{sT2}, s3\ns_lshl_b32 s{sT2}, s{sT2}, 13\ns_xor_b32 s{sT2}, s{sT2}, s{sXR}\ns_cmp_gt_u32 s{sCnt}, 1\ns_cselect_b32 s{sT2}, s{sT2}, 0x40000000"):
                    q2 = tl.scal_at(q, x); assert q2 == q; q += 1
            if p % 2 == 0 and OPT.get("otouch"):
                grps.append((II(f"s_sub_u32 s3, s{sCnt}, {OPT['otouch']}\ns_mul_i32 s{sT}, s3, {BSTRIDE}\ns_add_u32 s{sT}, s{sT}, s{sBo}\ns_cmp_lt_u32 s3, 4\ns_cselect_b32 s{sT}, s{sT}, 0x40000000"), II(f"buffer_load_dword a252, v26, {SR(sB)}, s{sT} offen"), []))
            if p % 2 == 1 and OPT.get("htouch", 1):
                grps.append((II(f"s_cmp_eq_u32 s{sCnt}, {OPT.get('htrip', 1)}\ns_cselect_b32 s{sT}, s{sBg}, 0x40000000"), II(f"buffer_load_dword a252, v27, {SR(sB)}, s{sT} offen"), []))
            k = 0
            for grp in grps:
                for j, x in enumerate(grp[1]):
                    gi = stepb[p, k // len(VPOS)] + VPOS[k % len(VPOS)]; k += 1
                    if j == 0:
                        q = gi
                        for y in reversed(grp[0]):
                            q2 = tl.scal_at(q - 1, y, later=False); assert len(grp[0]) == 1 or q2 == q - 1; q = q2
                    tl.vec_at(gi, x); x.grp = grp; x.role = "vec"
                for x in grp[2]: gi = tl.scal_at(gi + 1, x)
            assert gi < stepb[p, 7]
            e_ = stepb[p, 7]
            if p % 2 == 1:
                tl.scal_at(e_ + 29, Ins(f"s_sub_u32 s{sCnt}, s{sCnt}, 1")); tl.scal_at(e_ + 30, Ins(f"s_cmp_lg_u32 s{sCnt}, 0")); tl.scal_at(e_ + 32, Ins("s_cbranch_scc1 L_att_loop"))
        for s in range(8):
            b0 = stepb[p, s]; nb = stepb[p, s + 1] if s < 7 else nxt[p]
            ns, npz = (s + 1) & 7, (p + 1 if s == 7 else p)
            if s == 7:
                i = tl.scal_at(b0 + (5 if p >= 0 else 4), W(lgkm=["V7", "K7"], vm=["DK", "DV"]))
                if not (OPT.get("nobar") and p >= 0): tl.scal_at(i + 1, Ins("s_barrier"))
            if p >= 0:
                kr = kreads(ns, (npz + 1) & 1, ns & 1, f"K{ns}"); vr = vreads(ns, npz & 1, ns & 1, f"V{ns}")
                free = [o for o in range(7 if s == 7 else 1, 32, 2) if not any(x.is_vmem for x in tl.g[b0 + o].vec)]
                assert len(free) >= 12
                for x, o in zip(kr + vr, free): tl.vec_at(b0 + o, x)
            else:
                tl.vec_in(b0 + 6, b0 + 10, kreads(ns, (npz + 1) & 1, ns & 1, f"K{ns}"))
                if s == 7: tl.vec_in(b0 + 10, nb - 1, vreads(0, 0, 0, "V0"))
                tl.scal_at(nb - 1, W(lgkm=f"K{ns}"), later=False)
    rot = OPT.get("rot", 1)
    sc = f"""s_add_u32 s{sXP}, s{sWS}, {WS_X}
s_addc_u32 s{sXP+1}, s{sWS+1}, 0
s_mov_b32 s{sXP+2}, 0x1000000
s_lshl_b32 s{sT}, s{sTr}, 2
s_add_u32 s{sT}, s{sT}, s{sTc}
s_lshl_b32 s{sT}, s{sT}, 2
s_add_u32 s{sT}, s{sT}, s{sSp}
s_lshl_b32 s{sT}, s{sT}, 16
s_lshl_b32 s{sXR}, s{sWave}, 11
s_add_u32 s{sXR}, s{sXR}, s{sT}
"""
    sc += f"""s_lshl_b32 s{sT}, s{sTc}, 8
s_lshl_b32 s{sWOo}, s{sWave}, 14
s_add_u32 s{sWOo}, s{sWOo}, s{sT}
s_mul_i32 s{sW2o}, s{sSp}, {448*1024}
s_add_u32 s{sW2o}, s{sW2o}, s{sWOo}
s_lshl_b32 s{sT}, s{sSp}, 20
s_add_u32 s{sWOo}, s{sWOo}, s{sT}
s_lshr_b32 s{sQ0}, s{sTr}, 1
s_lshl_b32 s{sQ0}, s{sQ0}, 2
s_and_b32 s{sT}, s{sTr}, 1
s_add_u32 s{sQ0}, s{sQ0}, s{sT}
s_lshl_b32 s{sQ0}, s{sQ0}, 2
s_xor_b32 s{sT}, s{sWave}, s{sSp}
s_and_b32 s{sT2}, s{sT}, 2
s_add_u32 s{sT}, s{sT}, s{sT2}
s_lshl_b32 s{sT}, s{sT}, 1
s_add_u32 s{sT}, s{sT}, s{sQ0}
s_mul_i32 s{sBg}, s{sT}, {BSTRIDE}
s_mul_i32 s{sT}, s{sSp}, {14*1024}
s_add_u32 s{sT}, s{sT}, {128*1024}
s_add_u32 s{sBg}, s{sBg}, s{sT}
s_lshl_b32 s{sT}, s{sHead}, 12
s_add_u32 s{sBo}, s{sBo}, s{sT}
s_mul_i32 s{sGk[0]}, s{sTc}, {4096*rot}
s_mul_i32 s{sHp[0]}, s{sTc}, {8192*rot}
s_lshl_b32 s{sT2}, s{sHp[0]}, 5
s_xor_b32 s{sWOo}, s{sWOo}, s{sT2}
"""
    for i in range(1, 7): sc += f"s_add_u32 s{sGk[i]}, s{sGk[i-1]}, 2048\ns_cmp_eq_u32 s{sGk[i]}, {7*2048}\ns_cselect_b32 s{sGk[i]}, 0, s{sGk[i]}\n"
    for i in range(1, 4): sc += f"s_xor_b32 s{sHp[i]}, s{sHp[0]}, {8192*i}\n"
    sc += f"""s_lshr_b32 s{sT}, s{sWave}, 1
s_mul_i32 s{sT}, s{sT}, {BSTRIDE}
s_and_b32 s3, s{sWave}, 1
s_lshl_b32 s3, s3, 12
s_add_u32 s3, s3, s{sT}
s_lshl_b32 s{sT}, s{sSp}, 15
s_add_u32 s3, s3, s{sT}
"""
    for lam in (3, 2, 1, 0):
        sc += f"s_xor_b32 s{sT}, s{sSp}, {lam}\ns_and_b32 s{sT2}, s{sT}, 2\ns_add_u32 s{sT}, s{sT}, s{sT2}\ns_lshl_b32 s{sT}, s{sT}, 1\ns_add_u32 s{sT}, s{sT}, s{sQ0}\ns_mul_i32 s{sBs[lam]}, s{sT}, {BSTRIDE}\ns_add_u32 s{sBs[lam]}, s{sBs[lam]}, s3\n"
    sc += f"""s_lshl_b32 s{sOo}, s{sT}, 14
s_lshl_b32 s{sT}, s{sTc}, 8
s_add_u32 s{sOo}, s{sOo}, s{sT}
s_lshl_b32 s{sT}, s{sWave}, 6
s_add_u32 s{sOo}, s{sOo}, s{sT}
s_add_u32 s{sXW}, s{sOo}, 16384
"""
    if OPT.get("noBg"): sc += f"s_mov_b32 s{sBg}, 0x40000000\n"
    if OPT.get("noOS"): sc += f"s_mov_b32 s{sBo}, 0x40000000\n"
    left = tl.stream(start[-1], nxt[-1] - 1, II(sc)); assert not left, len(left)
    T = vT
    for x in range(16):
        s_ = x & 7; b0, nb = xb[x], xb[x + 1]
        for h_ in range(2):
            t = (x >> 3) * 2 + h_; sr = vS + 4 * (2 * (s_ & 1) + h_); pd = P(1, s_ >> 1, t) + 2 * (s_ & 1); o = (nb if x >= 8 else b0 + 16) if h_ else b0 + 8
            for r in range(4): tl.vec_at(o + 2 * r, Ins(f"v_exp_f32 v{sr+r}, v{sr+r}"))
            for h in range(2): tl.vec_at(o + 3 + 4 * h, Ins(f"v_cvt_pk_bf16_f32 v{pd+h}, v{sr+2*h}, v{sr+2*h+1}"))
    for x in range(16):
        tl.scal_at(xb[x] + 7, W(lgkm=f"V{x}"))
        if x < 15: tl.scal_at(xb[x + 1] - 1, W(lgkm=f"K{x+1}"))
    for x in range(16, 24, 2): tl.scal_at(xb[x] - 1, W(lgkm=f"V{x}"))
    tl.scal_at(xb[4] + 8, W(vm="E1")); tl.scal_at(xb[4] + 9, Ins("s_barrier"))
    tl.scal_at(xb[7] + 8, W(vm=["DV", "E3"], lgkm="R")); tl.scal_at(xb[7] + 9, Ins("s_barrier"))
    tl.scal_at(xb[15] + 8, W(lgkm="R")); tl.scal_at(xb[15] + 9, Ins("s_barrier"))
    ld1 = f"buffer_load_dword v{vPoll}, v23, {SR(sWS)}, 0 offen sc1"
    chk1 = poll_check("h", vPoll, ld1, f"v_cmp_gt_u32 vcc, v31, v{vPoll}\ns_nop 0\ns_cmp_eq_u64 vcc, 0")
    def put(grps, slots):
        slots = list(slots); prev = slots[0] - 5
        for g in grps:
            for x in g[1]:
                gi = slots.pop(0)
                if x is g[1][0] and g[0]:
                    free = [q for q in range(max(prev + 1, gi - 5), gi) if not tl.g[q].scal][-len(g[0]):]
                    free = sorted(free + [gi - 1] * (len(g[0]) - len(free)))
                    for y, q in zip(g[0], free): tl.g[q].scal.append(y)
                tl.vec_at(gi, x); x.grp = g; x.role = "vec"; prev = gi
            for y in g[2]: tl.scal_at(gi + 1, y)
    assert [UNITS[u][0] for u in range(7)] == ["Ag", "Bg", "Ag", "Bg", "As", "As", "Ag"]
    sl = [xb[x] + o for x in range(8) for o in (1, 5, 13, 21)]
    put([dma_V(0, 1, "DV"), udma(("As", 0)), udma(("As", 1)), dma_V(1, 1, "DV"), udma(("As", 2)), udma(("As", 3)), ([], [Ins(ld1, tag="C1")], [])], sl[1:])
    gp = tl.g[xb[9] + 4]; gp.vec += [W(vm="C1")] + chk1; gp.load += 1
    put([udma(0), udma(6), udma(1)], [xb[7] + 13, xb[7] + 17, xb[7] + 21, xb[8] + 1, xb[8] + 5, xb[8] + 9, xb[8] + 13, xb[9] + 1, xb[9] + 5, xb[9] + 9, xb[9] + 13, xb[10] + 1])
    EARLY[:] = [0, 1, 6] + [2, 3, 4, 5][:OPT.get("e3", 4)]
    put([udma(u) for u in EARLY[3:]], [xb[x] + 6 for x in range(16, 24)] if len(EARLY) <= 5 else [xb[x] + o for x in range(16, 24) for o in ((1, 5) if x == 16 else (0, 6))])
    su = II(f"""v_bfe_u32 v{T}, v0, 4, 2
v_mul_u32_u24 v{T}, 768, v{T}
v_add_u32 v{vDA}, v{vDV}, v{T}
v_add_u32 v{vDA+1}, v{vDV+1}, v{T}
v_add_u32 v{vDA+1}, 3072, v{vDA+1}
v_add_u32 v{vDA+2}, 6144, v{vDA}
v_add_u32 v{vDA+3}, 6144, v{vDA+1}
v_add_u32 v{vB1}, {BSTRIDE-2048}, v{vL16}""")
    su2 = II(f"""s_lshl_b32 s{sT}, s{sWave}, 6
s_or_b32 s{sT}, s{sT}, {L_V}
v_xor_b32 v25, s{sT}, v{vVA}
v_xor_b32 v26, s{sT}, v{vVA+1}
v_add_u32 v27, 0x10000, v25
v_add_u32 v28, 0x10000, v26""")
    for n in range(16):
        i, t = FR[n]
        OSTORES.append((II(f"s_add_u32 s{sCnt}, s{sBo}, {t*BSTRIDE}"),
                        [Ins(f"buffer_store_dwordx4 {V(ost(n),4)}, v{vL16}, {SR(sB)}, s{sCnt} offen offset:{1024*i} sc1", tag="OS")], []))
    ospos = {}
    for n in range(13):
        ospos[n] = xb[11 + n] + (9 if n < 5 else (9, 3, 2)[min(n - 5, 2)]); put([OSTORES.pop(0)], [ospos[n]])
    for x in range(15):
        nx = x + 1; b0, nb = xb[x], xb[nx]
        if x < 8:
            kr = kreads(nx & 7, 1, nx & 1, f"K{nx}"); vr = vreads(nx & 7, nx >> 3, nx & 1, f"V{nx}")
            if x == 0: tl.vec_in(b0 + 3, nb - 5, kr); tl.vec_in(b0 + 9, nb + 2, vr)
            elif x < 7: tl.vec_in(b0 + 3, nb - 2, kr + vr)
            else: tl.vec_in(b0, b0 + 7, kr); tl.vec_in(b0 + 11, nb + 3, vr)
        else:
            tl.vec_in(b0 + 3, b0 + 11, kreads(nx & 7, 1, nx & 1, f"K{nx}"))
            tl.vec_in(b0 + 8, nb + 2, vreads(nx & 7, 1, nx & 1, f"V{nx}"))
    for i in range(4):
        r = vreads(2 * i, 1, v3(2 * i), f"V{16+2*i}") + vreads(2 * i + 1, 1, v3(2 * i + 1), f"V{16+2*i}")
        tl.vec_in(xb[15] + 3 if i == 0 else xb[14 + 2 * i], xb[16 + 2 * i] - 3, r)
    left = tl.stream(xb[0], xb[1] + 4, su, cap=3); assert not left
    left = tl.stream(xb[2], xb[4], su2); assert not left
    tl.vec_in(xb[4] + 10, xb[7] + 1, ureads(("As", 0), 25) + ureads(("As", 1), 25))
    vRL = vNM
    def lr(t): return II(f"v_accvgpr_read_b32 v{vRL+4+t}, a{aL+4*t}\nv_accvgpr_read_b32 v{vRL+t}, a{aL+4*t+1}\nv_add_f32 v{vRL+4+t}, v{vRL+4+t}, v{vRL+t}\nv_rcp_f32 v{vRL+t}, v{vRL+4+t}")
    left = tl.stream(xb[9] + 4, xb[10] - 1, lr(0) + lr(1), cap=4); assert not left
    where = lambda y: max(q for q, gp in enumerate(tl.g) if any(x is y for x in gp.vec))
    lo = xb[10]; tail_ = []
    for n in range(16):
        i, t = FR[n]; o = ost(n); tb = 64 + 8 * (n & 1)
        ar = [(k, O(2 * i + (k >> 2), t) + (k & 3)) for k in range(8)]
        if t == 3: ar = ar[4:] + ar[:4]
        items = (lr(t) if n in (8, 9) else []) + II("\n".join(f"v_accvgpr_read_b32 v{tb+k}, a{a_}" for k, a_ in ar))
        items += II("\n".join(f"v_mul_f32 v{tb+k}, v{tb+k}, v{vRL+t}" for k, a_ in ar))
        items += II("\n".join(f"v_cvt_pk_bf16_f32 v{o+k}, v{tb+2*k}, v{tb+2*k+1}" for k in range(4)))
        lo = max(lo, cdone[n] + 2)
        if tail_ or lo >= end: tail_ += items; continue
        hi = min(ospos.get(n, end), chkpos.get(n, end + 1) - 1) - 1
        hi2 = min(hi, lo + (OPT.get("epspan", 17) if n < 6 else OPT.get("epspan3", 7)))
        for cap in (2, 3, 4, 5, 6, 7, 8):
            room = sum(max(0, cap - tl.g[q].load) for q in range(lo, hi2 + 1) if not any(x.is_vmem for x in tl.g[q].vec))
            if room >= len(items) + 2: break
        blocked = [q for q in range(lo, hi + 1) if any(x.is_vmem for x in tl.g[q].vec)]
        for q in blocked: tl.g[q].load += 10
        left = tl.stream(lo, hi, items, cap=cap)
        for q in blocked: tl.g[q].load -= 10
        if left: assert n >= 13, n; tail_ += left
        else: lo = where(items[-1])
        if n in (1, 3):
            q = where(items[7]) + 1; assert q + 12 < xb[15] + 2
            tl.vec_in(q, min(q + 24, xb[15] + 2), ureads(("As", 2 + n // 2), 25))
    print("ending: VALU left over", len(tail_), file=sys.stderr)
    blk = {p: tl.emit(start[p], nxt[p], f"att{p}") for p in phases}
    tx = lambda b: [(i.text, str(i.waitfor), i.tag) for i in b.ins]
    assert tx(blk[0]) == tx(blk[2]) and tx(blk[1]) == tx(blk[3])
    last = blk[15]
    for nm, x in (("x2", 8), ("x3", 16)):
        k_ = next(q for q, y in enumerate(last.ins) if y is tl.g[xb[x]].m); last.ins[k_:k_] = stamp_ins(STAMPS.get(nm))
    last.ins += tail_[:-12] + [mk(12)] + tail_[-12:-8] + [mk(13)] + tail_[-8:-4] + [mk(14)] + tail_[-4:]
    last.tailchk = mk(15)
    return blk[-1], blk[0], blk[1], last

PARTS = [("G", 0), ("Q", 0), ("G", 1), ("Q", 1), ("G", 2), ("G", 3), ("Q", 2), ("Q", 3)]
SLOT = lambda i: (L_V + 32768, L_SP, L_V)[i % 3]
vNMU, vAQ, vAE, vIR = 32, 36, 40, 44
def XB(c, t, ks): return (c & 1) * 64 + (t * 4 + ks) * 4
def WF(fb, ks): return 212 + fb * 16 + ks * 4
def pacc(kind, u, t):
    if kind == "G": return V(128 + (u & 1) * 64 + ((u >> 1) * 4 + t) * 4, 4)
    ds, hf = u >> 1, u & 1
    return V(Q(t, ds), 4) if hf == 0 else A(128 + (t * 4 + ds) * 4, 4)
def wdma(i):
    kind, c = PARTS[i]; base = SLOT(i); g = []
    if kind == "Q":
        for half in range(2):
            g.append((II(f"s_add_u32 m0, s{sW8k}, {base + half*4096}\ns_add_u32 s{sT}, s{sWQo}, {(c*128+16*half)*8192}"),
                      [Ins(f"buffer_load_dwordx4 v{vDQ+p}, {SR(sWQ)}, s{sT} offen offset:{p*1024} lds", tag=f"DW{i}") for p in range(4)], []))
    else:
        for k, sr in enumerate((sW1, sW3)):
            g.append((II(f"s_add_u32 m0, s{sW4k}, {base + k*16384}\ns_add_u32 s{sT}, s{sW13o}, {c*128*3584}"),
                      [Ins(f"buffer_load_dwordx4 v{vD13+p}, {SR(sr)}, s{sT} offen offset:{p*1024} lds", tag=f"DW{i}") for p in range(4)], []))
    return g
def xdma(c):
    return [(II(f"s_xor_b32 m0, s100, {t*4096}\ns_xor_b32 s{sT}, s101, {t*16384 + c*256}"),
             [Ins(f"buffer_load_dwordx4 v{vDX+p}, {SR(sX)}, s{sT} offen offset:{p*1024} lds", tag=f"DX{c}") for p in range(4)], []) for t in range(4)]
def xreads(c):
    return [Ins(f"ds_read_b128 {A(XB(c,t,ks),4)}, v{vXA+ks} offset:{t*4096}", tag=f"X{c}") for t in range(4) for ks in range(4)]

def gen_proj(stats, var):
    S_ = var == "S"
    O_ = lambda k, d: OPT.get(k + var, OPT.get(k, d))
    tiles = lambda i: [0, 1, 4, 5, 2, 3] if (S_ and PARTS[i][0] == "G") else list(range(8))
    base = {"G": L_V, "Q": L_SP}
    def wreads(i, u, tag):
        kind, c = PARTS[i]; off0 = SLOT(i) - base[kind]; assert 0 <= off0 <= 32768
        r = []
        for ks in range(4):
            for kh in range(2):
                if kind == "Q": ad, off = vWQA + (u >> 1), ks * 8192 + kh * 1024 + 8 * (u & 1)
                else: ad, off = vW13A + (u >> 1), ks * 4096 + kh * 512 + 16384 * (u & 1)
                r.append(Ins(f"ds_read_b64_tr_b16 {A(WF(u&1,ks)+2*kh,2)}, v{ad} offset:{off0+off}", tag=tag))
        return r
    first_reads = wreads(0, 0, "W0")
    tl = TL(); tb = {}
    for i, (kind, c) in enumerate(PARTS):
        for pos_, u in enumerate(tiles(i)):
            tb[i, pos_] = len(tl.g)
            for t in range(4):
                d = pacc(kind, u, t)
                for n, ks in enumerate(snake(t)):
                    tl.add(MF(d, A(WF(u & 1, ks), 4), A(XB(c, t, ks), 4), "0" if (c == 0 and n == 0) else d))
            if u < 2 or (S_ and kind == "G" and u >= 4):
                d = A(aL + (8 if kind == "Q" else 0) + 4 * u, 4) if u < 2 else V(176 + 4 * (u - 4), 4)
                for kp in range(2): tl.add(Ins(f"v_smfmac_f32_16x16x64_bf16 {d}, {A(aONES,4)}, {A(WF(u&1,2*kp),8)}, v{vIDX}"))
    end = len(tl.g)
    tb[8, 0] = end
    LAST = lambda i: tb[i, len(tiles(i)) - 1]
    extra_vm = {1: ["ST"], 7: ["DK0"]}
    for i, (kind, c) in enumerate(PARTS):
        for u in range(len(tiles(i))):
            b0 = tb[i, u]; nb = tb.get((i, u + 1), tb[i + 1, 0])
            if b0 != LAST(i):
                r = wreads(i, tiles(i)[u + 1], f"W{u+1}")
                for k, x in enumerate(r): tl.vec_at(b0 + (0, 1, 2, 4, 5, 6, 8, 9)[k], x)
                tl.scal_at(nb - 1, W(lgkm=f"W{u+1}"), later=False)
            else:
                vm = ([f"DW{i+1}"] if i < 7 else []) + extra_vm.get(i, [])
                tl.scal_at(b0, W(vm=vm, lgkm={4: ["X3"], 5: ["CS"], 7: ["CS"]}.get(i)))
                tl.scal_at(b0 + 1, Ins("s_barrier"))
                if i < 7:
                    nk = PARTS[i + 1][0]
                    if not 0 <= SLOT(i + 1) - base[nk] <= 32768:
                        dlt = SLOT(i + 1) - base[nk]; base[nk] += dlt
                        ad = vWQA if nk == "Q" else vW13A
                        for k in range(4): tl.vec_at(b0 + k // 2, Ins(f"v_add_u32 v{ad+k}, {dlt & 0xffffffff}, v{ad+k}"))
                    tl.vec_in(b0 + 2, b0 + 9, wreads(i + 1, 0, "W0"))
                    tl.scal_at(nb - 1, W(lgkm="W0"), later=False)
                else:
                    tl.vec_in(b0 + 2, b0 + 9, kreads(0, 0, 0, "K0"))
    P_ = lambda i, f: tb[i, 0] + int(f * (tb[i + 1, 0] - tb[i, 0]))
    def xout(c, lo, hi):
        j = tl.scal_at(lo, W(vm=f"DX{c}"))
        cc = tl.vec_in(j, hi, xreads(c))
        return cc[-1]
    def tch(dst, ad, sr, so): return Ins(f"buffer_load_dword a252, v{ad}, {SR(sr)}, {so} offen")
    TQ = lambda c: [(II(f"s_mov_b32 s{sT}, {c*128*8192}"), [tch(55, 22, sWQ, f"s{sT}")], [])]
    TG = lambda c: [(II(f"s_mov_b32 s{sT}, {c*128*3584}"), [tch(55, 23, sW1, f"s{sT}"), tch(55, 23, sW3, f"s{sT}")], [])]
    TK = [([], [tch(55, 53, sK, 0)], [])]; TV = [([], [tch(55, 53, sV, 0)], [])]
    kv = OPT.get("kvp", (9, 9, 9))
    at = lambda p: (TK if kv[0] == p else []) + (TV if kv[1] == p else []) + (TK2 if kv[2] == p else [])
    TK2 = [(II(f"s_mov_b32 s{sT}, 65536"), [tch(55, 53, sK, f"s{sT}")], [])]
    x1, x2, x3 = xdma(1), xdma(2), xdma(3)
    prev = [0]
    def sp(lo, hi, grps):
        lo = max(lo, prev[0] + 4); prev[0] = tl.spread(lo, max(hi, lo + 1), grps); return prev[0]
    SRL = [(II(f"s_lshl_b32 s{sT}, s{sCnt}, 11"), [Ins(f"buffer_load_dwordx4 {V(72+4*r,4)}, v58, {SR(sX)}, s{sT} offen offset:{512*r}", tag="SR") for r in range(2)], [])]
    CP = [([], II("global_load_dword a252, v[60:61], off"), [])]
    item = lambda n: {"W": lambda: wdma(int(n[1])), "Q": lambda: TQ(int(n[1])), "G": lambda: TG(int(n[1])), "S": lambda: SRL, "C": lambda: CP,
                      "A": lambda: [([], [Ins(f"buffer_atomic_add v49, v48, {SR(sDBG)}, 0 offen", tag="AT")], [])],
                      "r": lambda: (x1, x2, x3)[int(n[1]) - 1][:1], "x": lambda: (x1, x2, x3)[int(n[1]) - 1][1:]}[n[0]]()
    PP = lambda f: P_(int(f), f - int(f))
    for ent in O_("sch", None):
        if ent[0] == "o":
            l = xout(ent[1], PP(ent[2]), min(PP(ent[3]), LAST((0, 1, 3, 4)[ent[1]]) - 6))
            assert PP(ent[2]) >= tb[(0, 0, 2, 4)[ent[1]], 0]
            if ent[1] < 3: prev[0] = max(prev[0], tl.scal_at(l + 5, W(lgkm=f"X{ent[1]}")))
        else:
            g_ = [g for n in ent[1].split() for g in item(n)]
            lo = max(PP(ent[0]), prev[0] + 4)
            sp(lo, lo + int((ent[2] if len(ent) > 2 else 4.4) * (sum(len(g[1]) for g in g_) - 1)), g_)
    sp(P_(5, .03), P_(5, .3), wdma(7))
    ld0 = f"buffer_load_dword v50, v51, {SR(sDBG)}, 0 offen sc1"
    ck0 = O_("ck0", .33)
    g = tl.g[P_(5, ck0)]
    g.vec += [W(vm="C0")] + poll_check("st" + var, 50, ld0, f"v_cmp_gt_u32 vcc, 32, v50\ns_nop 0\ns_cmp_eq_u64 vcc, 0"); g.load += 2
    sp(P_(5, ck0) + 3, P_(5, ck0 + .1), [([], [Ins(f"buffer_load_dwordx2 {V(56+2*t,2)}, v52, {SR(sWS)}, 0 offen offset:{128*t} sc1", tag="SL") for t in range(4)], [])])
    sp(0, P_(5, O_("k0e", .97)), [dma_K(0, 0, "DK0"), dma_K(1, 0, "DK0")])
    sp(P_(6, O_("v0a", .3)), P_(6, O_("v0b", .9)), [dma_V(0, 0, "DV"), dma_V(1, 0, "DV")])
    sp(P_(7, O_("v0a", .3)), P_(7, O_("v0b", .9)), [dma_K(0, 1, "DK"), dma_K(1, 1, "DK")])
    def span(tag):
        ps = [q for q, gp in enumerate(tl.g) for x in gp.vec if x.tag == tag]; return min(ps), max(ps)
    for i in range(1, 8):
        assert span(f"DW{i}")[1] < LAST(i - 1) and (i < 3 or span(f"DW{i}")[0] > LAST(i - 3) + 1), i
    for c in (1, 2, 3): assert span(f"DX{c}")[1] < span(f"X{c}")[0] and (c == 1 or span(f"DX{c}")[0] > span(f"X{c-1}")[1] + 5), c
    if not any("A" in e_[1].split() for e_ in O_("sch", None) if e_[0] != "o"): tl.vec_in(LAST(1) + 10, LAST(1) + 14, item("A")[0][1])
    assert span("AT")[0] > LAST(1) + 1
    left = tl.sched(P_(0, O_("stpos", .3)), P_(1, O_('sthi', 0)) - 1, stats); assert not left and P_(1, O_('sthi', 0)) <= tb[1, 4], len(left)
    tl.vec_in(PP(4 + O_("c0pos", .9)), PP(4 + O_("c0pos", .9)) + 6, [Ins(ld0, tag="C0")])
    for i, off in ((5, 0), (7, 1)):
        a0 = aL + 8 * off; it_ = []
        for u in range(2):
            it_ += II(f"v_accvgpr_read_b32 v22, a{a0+4*u}\nv_accvgpr_read_b32 v23, a{a0+4*u+1}\nv_add_f32 v22, v22, v23")
            it_ += [Ins(f"ds_write_b32 v21, v22 offset:{64*u}", tag="CS")]
        left = tl.stream(tb[i, 3], tb[i, 4] - 1, it_); assert not left
        if i == 5:
            it_ = []
            if S_:
                for u in range(2): it_ += II(f"v_add_f32 v{176+4*u}, v{176+4*u}, v{177+4*u}") + [Ins(f"ds_write_b32 v21, v{176+4*u} offset:{512+64*u}", tag="CS")]
            left = tl.stream(tb[i, 4] + 6, tb[i, 5] - 1, it_ + II(f"v_add_u32 v21, {L_V - L_K}, v21")); assert not left
    it = [W(vm="SL")]
    for t in range(4): it += II(f"v_rsq_f32 v{vAQ+t}, v{57+2*t}")
    for t in range(4): it += II(f"v_sub_f32 v{vNMU+t}, 0, v{56+2*t}\nv_mov_b32 v{vIR+t}, v{57+2*t}")
    for t in range(4): it += II(f"v_mul_f32 v{vAE+t}, {f32(-LOG2E)}, v{vAQ+t}\nv_mul_f32 v{vAQ+t}, {f32(LOG2E * 128 ** -0.5)}, v{vAQ+t}")
    h0 = tb[6, 0] + 2
    if O_("slpos", .8) < 1:
        left = tl.stream(P_(5, O_("slpos", .8)), tb[6, 0] - 1, it); assert not left, len(left)
        it = []
    else: it[0].guards = {f"v{56+k}" for k in range(8)}; h0 = P_(6, O_("slpos", .8) - 1) + 2
    NV = 3 if S_ else 4
    for v in range(NV): it += II(f"v_xor_b32 v{28+v}, {512 if (S_ and v == 2) else 128*v}, v54")
    def csread(v): return [Ins(f"ds_read_b128 {V(48+8*(v&1)+4*m,4)}, v{28+v} offset:{64*m}", tag=f"CG{v}") for m in range(2)]
    it += csread(0)
    for v in range(NV):
        if v < NV - 1: it += csread(v + 1)
        it += [W(lgkm=f"CG{v}")]
        for m in range(2):
            for t in range(4):
                d = 128 + m * 64 + (v * 4 + t) * 4
                for r in range(4): it += II(f"v_fmac_f32 v{d+r}, v{48+8*(v&1)+4*m+r}, v{vNMU+t}")
    mv30 = Ins(f"v_add_u32 v30, {L_V - L_K}, v28"); it.append(mv30)
    it += II(f"s_add_u32 s{sCnt}, s{sFs}, s{sBo}")
    if not S_: it += II(f"s_and_b32 s{sT2}, s{sWave}, 2\ns_lshl_b32 s{sT2}, s{sT2}, 9\nv_add_u32 v28, s{sT2}, v{vL16}\nv_xor_b32 v29, 0x400, v28")
    else:
        it += II(f"s_and_b32 s{sT2}, s{sHead}, 1\ns_lshl_b32 s{sT2}, s{sT2}, 11\nv_add_u32 v28, s{sT2}, v{vL16}\ns_xor_b32 s{sT2}, s{sHead}, s{sWave}\ns_and_b32 s{sT2}, s{sT2}, 1\ns_lshl_b32 s{sT2}, s{sT2}, 3\ns_add_u32 s{sT2}, s{sT2}, 1024\nv_add_u32 v29, s{sT2}, v{vL16}")
    rest = []
    for n in range(8):
        t, i = n >> 1, n & 1
        N = 4 if (S_ and i == 1) else 8
        gr = [128 + ((2 * i + hf) * 4 + t) * 4 + r for hf in range(2) for r in range(4)][:N]
        ur = [x + 64 for x in gr]; q = []
        if n < O_("nh", 0):
            for k in range(N): q += II(f"v_mul_f32 v{ur[k]}, v{ur[k]}, v{gr[k]}\nv_mul_f32 v{gr[k]}, v{vAE+t}, v{gr[k]}")
            for k in range(N): q += II(f"v_exp_f32 v{gr[k]}, v{gr[k]}") + (II(f"v_fma_f32 v{gr[k-2]}, v{gr[k-2]}, v{vIR+t}, v{vIR+t}") if k >= 2 else [])
            for k in range(N): q += II(f"v_rcp_f32 v{gr[k]}, v{gr[k]}") + II(f"v_fma_f32 v{gr[k+N-2]}, v{gr[k+N-2]}, v{vIR+t}, v{vIR+t}" if k < 2 else f"v_mul_f32 v{gr[k-2]}, v{gr[k-2]}, v{ur[k-2]}")
            for k in (N - 2, N - 1): q += II(f"v_mul_f32 v{gr[k]}, v{gr[k]}, v{ur[k]}")
        else:
            o = t & 1; ae, ir = V(vAE + t - o, 2), V(vIR + t - o, 2)
            for k in range(0, N, 2): q += II(f"v_pk_mul_f32 {V(ur[k],2)}, {V(ur[k],2)}, {V(gr[k],2)}\nv_pk_mul_f32 {V(gr[k],2)}, {V(gr[k],2)}, {ae} op_sel:[0,{o}] op_sel_hi:[1,{o}]")
            for k in range(N): q += II(f"v_exp_f32 v{gr[k]}, v{gr[k]}")
            for k in range(0, N, 2): q += II(f"v_pk_fma_f32 {V(gr[k],2)}, {V(gr[k],2)}, {ir}, {ir} op_sel:[0,{o},{o}] op_sel_hi:[1,{o},{o}]")
            for k in range(N): q += II(f"v_rcp_f32 v{gr[k]}, v{gr[k]}")
            for k in range(0, N, 2): q += II(f"v_pk_mul_f32 {V(gr[k],2)}, {V(gr[k],2)}, {V(ur[k],2)}")
        for k in range(N // 2): q += II(f"v_cvt_pk_bf16_f32 v{gr[0]+k}, v{gr[2*k]}, v{gr[2*k+1]}")
        q += II(f"buffer_store_dwordx{N//2} {V(gr[0],N//2)}, v{28+i}, {SR(sB)}, s{sCnt} offen sc1")
        if i == 1 and t < 3: q += II(f"s_add_u32 s{sCnt}, s{sCnt}, {BSTRIDE}")
        if n < O_("nh", 0): it += q
        else: rest += q
    lastcs = [x for x in it if x.tag == f"CG{NV-1}"][-1]
    left = tl.sched(h0, end - 1, it, look=O_("look", 70))
    assert len(left) <= 54 * O_("nh", 0) and not any(x is mv30 for x in left)
    pos = [k for k, gp in enumerate(tl.g) if any(x is lastcs for x in gp.vec)]
    assert pos and pos[0] < tb[6, 6], (pos, tb[6, 6])

    for nm, i in [(f"p{i}", i) for i in range(1, 8)]:
        tl.g[tb[i, 0]].scal = stamp_ins(STAMPS.get(nm)) + tl.g[tb[i, 0]].scal
    body = tl.emit(0, end, "proj" + var)
    print("h epilogue leftover", len(left), "of", len(it), file=sys.stderr)
    return first_reads, body, left + rest

def gen_kernel():
    b = Block(); b.name = "setup"
    b.e(f"s_cmp_ge_u32 s2, 256\ns_cbranch_scc1 L_end\ns_mov_b32 s{sFB}, 0")
    if OPT.get("shuffle"): b.e("s_and_b32 s3, s2, 7\ns_lshl_b32 s3, s3, 5\ns_lshr_b32 s2, s2, 3\ns_or_b32 s2, s2, s3")
    if OPT.get("delay"): b.e(f"s_mov_b32 s3, {OPT['delay']}\nL_dly:\ns_sub_u32 s3, s3, 1\ns_cmp_lg_u32 s3, 0\ns_cbranch_scc1 L_dly")
    if OPT["stamp"]:
        for i in range(20): b.e(f"s_mov_b32 s{72+i}, 0")
        stamp(b, "start")
    b2 = Block(); b2.name = "setup1"; b_ = b; b = b2
    b.e("L_restart:")
    for sr, off in ((sX, 0), (sW1, 48), (sW3, 56), (sWQ, 24)): b.e(f"s_load_dwordx2 s[{sr}:{sr+1}], s[0:1], {off}")
    T0, T1, T2, T3, T4 = 56, 57, 58, 59, 60
    vl, vc, vg, vi2, vi3 = 61, 62, 63, 22, 23
    b.e("s_getpc_b64 s[100:101]\nL_pc:")
    b.e(f"s_lshr_b32 s{sT}, s2, 3\ns_mul_i32 s{sT2}, s{sT}, 2560\nv_mul_u32_u24 v108, 10, v0\nv_add_u32 v108, s{sT2}, v108\nv_and_b32 v108, 0xffffff80, v108\nv_min_u32 v108, L_code_end-L_pc, v108\nv_mov_b32 v109, s101")
    b.e(f"v_add_co_u32 v108, vcc, s100, v108\nv_lshrrev_b32 v{T0}, 6, v0\nv_and_b32 v{vc}, 15, v0\nv_addc_co_u32 v109, vcc, 0, v109, vcc\nglobal_load_dword v107, v[108:109], off")
    b.e(f"v_readfirstlane_b32 s{sWave}, v{T0}\nv_bfe_u32 v{vg}, v0, 4, 2\ns_and_b32 s{sT}, s{sT}, 3\ns_lshr_b32 s{sQb}, s2, 5")
    b.e(f"s_lshl_b32 s{sW16k}, s{sWave}, 14\ns_lshl_b32 s{sXb}, s{sQb}, 18\ns_lshl_b32 s{sT2}, s{sWave}, 16\ns_add_u32 s{sXb}, s{sXb}, s{sT2}")
    b.e(f"s_lshl_b32 s100, s{sT}, 12\ns_add_u32 s100, s100, s{sW16k}\ns_lshl_b32 s101, s{sT}, 14\ns_add_u32 s101, s101, s{sXb}")
    b.e(f"s_and_b32 s{sHead}, s2, 7\ns_lshl_b32 s{sHead}, s{sHead}, 2\ns_add_u32 s{sHead}, s{sHead}, s{sT}")
    b.e(f"v_xor_b32 v{T0}, v{vg}, v{vc}\nv_lshlrev_b32 v{T0}, 4, v{T0}\nv_lshl_add_u32 v{vDX}, v{vg}, 10, v{T0}")
    for p in range(1, 4): b.e(f"v_xor_b32 v{T2}, {64*p}, v{vDX}\nv_add_u32 v{vDX+p}, {p*3072}, v{T2}")
    b.e(f"s_mov_b32 s{sX+2}, 0x200000\ns_mov_b32 s{sX+3}, 0x20000\ns_waitcnt lgkmcnt(0)")
    stamp(b, "karg")
    b.e(f"s_and_b32 s{sX+1}, s{sX+1}, 0xffff")
    xg = xdma(0); wg = wdma(0)
    emit_grp(b, xg[0])
    for sr, off in ((sK, 8), (sV, 16), (sB, 88), (sH, 88), (sWS, 88), (sDBG, 80), (sWO, 32), (sW2, 64), (sOut, 72)):
        b.e(f"s_load_dwordx2 s[{sr}:{sr+1}], s[0:1], {off}")
    b.e(f"s_and_b32 s{sT2}, s{sHead}, 3\ns_lshr_b32 s3, s{sT2}, 1\ns_add_u32 s{sT}, s3, 8\ns_mul_i32 s3, s3, 3\ns_add_u32 s3, s3, 8\ns_lshl_b32 s{sFs}, s{sT2}, 1\ns_bitcmp1_b32 s2, 0")
    b.e(f"s_cselect_b32 s{sT}, s{sT}, s{sT2}\ns_cselect_b32 s{sFs}, s3, s{sFs}\ns_add_u32 s{sT}, s{sT}, s{sT2}\ns_lshr_b32 s3, s{sHead}, 3\ns_mul_i32 s3, s3, 14\ns_add_u32 s{sT}, s{sT}, s3\ns_lshl_b32 s{sT}, s{sT}, 6")
    ptr_add(b, sW1, f"s{sT}"); ptr_add(b, sW3, f"s{sT}")
    b.e(f"s_sub_u32 s{sT2}, {512*3584}, s{sT}\ns_add_u32 s{sFs}, s{sFs}, s3\ns_add_u32 s{sFs}, s{sFs}, 128\ns_lshl_b32 s{sFs}, s{sFs}, 10")
    srd_fin(b, sW1, f"s{sT2}"); srd_fin(b, sW3, f"s{sT2}")
    b.e(f"s_lshr_b32 s{sBo}, s{sXb}, 14\nv_and_b32 v{vl}, 63, v0")
    b.e(f"v_lshrrev_b32 v{T0}, 2, v{vl}\nv_and_b32 v{T1}, 3, v0\nv_lshl_add_u32 v{T1}, v{T0}, 7, v{T1}\nv_add_u32 v{T1}, s{sBo}, v{T1}\nv_mul_u32_u24 v101, 3584, v{T1}\nv_lshl_add_u32 v103, v{T0}, 26, v101")
    if not OPT.get("noptouch"): b.e(f"buffer_load_dword v105, v103, {SR(sW1)}, 0 offen\nbuffer_load_dword v106, v103, {SR(sW3)}, 0 offen")
    b.e(f"s_lshl_b32 s{sCnt}, s{sQb}, 7\ns_lshl_b32 s{sT2}, s{sHead}, 2\ns_add_u32 s{sCnt}, s{sCnt}, s{sT2}\ns_add_u32 s{sCnt}, s{sCnt}, s{sWave}\nv_lshlrev_b32 v{vL16}, 4, v{vl}")
    for g in (xg[1], xg[2], xg[3])[:OPT.get("nx", 1)]: emit_grp(b, g)
    b.e(f"s_lshl_b32 s{sT}, s{sHead}, 8"); ptr_add(b, sWQ, f"s{sT}"); b.e(f"s_sub_u32 s{sT2}, 0x400000, s{sT}")
    srd_fin(b, sWQ, f"s{sT2}")
    b.e(f"v_lshrrev_b32 v{T0}, 3, v{vl}\nv_bfe_u32 v{T1}, v0, 1, 2\nv_lshl_add_u32 v{T1}, v{T0}, 7, v{T1}\nv_add_u32 v{T1}, s{sBo}, v{T1}\nv_and_b32 v{T2}, 1, v0\nv_lshlrev_b32 v{T2}, 7, v{T2}\nv_lshl_add_u32 v100, v{T1}, 13, v{T2}\nv_lshl_add_u32 v102, v{T0}, 26, v100")
    b.e(f"s_bfe_u32 s{sSp}, s2, 0x20001\ns_lshr_b32 s{sTc}, s2, 6\ns_bfe_u32 s{sTr}, s2, 0x30003\ns_and_b32 s{sT}, s2, 1\ns_lshl_b32 s{sT}, s{sT}, 3\ns_add_u32 s{sTr}, s{sTr}, s{sT}")
    b.e(f"s_lshl_b32 s{sW8k}, s{sWave}, 13\ns_lshl_b32 s{sW4k}, s{sWave}, 12\ns_mul_i32 s{sBo}, s{sBo}, {BSTRIDE}")
    b.e(f"s_lshl_b32 s{sWQo}, s{sWave}, 18\ns_mul_i32 s{sW13o}, s{sWave}, {32*3584}\ns_mov_b32 s{sKo}, s{sW8k}\ns_mov_b32 s{sVo}, s{sW8k}")
    b.e(f"v_mul_u32_u24 v{T0}, 3584, v{T0}\nv_and_b32 v{T1}, 7, v0\nv_and_b32 v{T2}, 1, v{vg}\nv_lshlrev_b32 v{T2}, 1, v{T2}\nv_xor_b32 v{T1}, v{T1}, v{T2}")
    for p in range(4): b.e(f"v_xor_b32 v{T2}, {4*(p&1)}, v{T1}\nv_lshl_add_u32 v{T2}, v{T2}, 4, v{T0}\nv_add_u32 v{vD13+p}, {p*27648}, v{T2}")
    b.e(f"v_lshlrev_b32 v{T0}, 2, v{vg}\nv_xor_b32 v{T0}, v{vc}, v{T0}\nv_lshlrev_b32 v{T0}, 4, v{T0}\nv_lshl_add_u32 v{vDQ}, v{vg}, 13, v{T0}")
    for p in range(1, 4): b.e(f"v_add_u32 v{vDQ+p}, {p*31744}, v{vDQ}")
    b.e("s_waitcnt lgkmcnt(0)")
    late = [xg[1], xg[2], xg[3], wg[0], wg[1]][OPT.get("nx", 1):]
    stamp(b, "a1")
    c = Block(); c.name = "setup2"
    c.e(f"s_lshl_b32 s{sT}, s{sHead}, 19"); ptr_add(c, sK, f"s{sT}"); ptr_add(c, sV, f"s{sT}")
    srd_fin(c, sK, 0x80000); srd_fin(c, sV, 0x80000)
    wso = OPT.get("wsoff", 0) << 20
    if wso: ptr_add(c, sWS, wso)
    ptr_add(c, sB, WS_B + wso); ptr_add(c, sH, WS_B + wso); srd_fin(c, sB, 128 * BSTRIDE)
    srd_fin(c, sH, 0)
    srd_fin(c, sWS, 0x28000); srd_fin(c, sDBG, 256); srd_fin(c, sOut, 0x200000)
    srd_fin(c, sWO, 0 if OPT.get("noA") else 4096 * 1024); srd_fin(c, sW2, 0 if OPT.get("noA") else 1792 * 1024)
    c.e(f"v_bfe_u32 v{vi2}, v0, 2, 2\nv_and_b32 v{vi3}, 3, v0")
    c.e(f"v_lshl_add_u32 v{T0}, v{vg}, 3, v{vi2}\nv_lshlrev_b32 v{T1}, 8, v{T0}\nv_lshl_add_u32 v{T1}, v{vi3}, 4, v{T1}\nv_add_u32 v{T1}, {L_SP}, v{T1}\nv_xor_b32 v{T3}, s{sWave}, v{vi2}")
    for i in range(4): c.e(f"v_xor_b32 v{T2}, {i}, v{T3}\nv_lshl_add_u32 v{vWQA+i}, v{T2}, 6, v{T1}")
    c.e(f"v_lshlrev_b32 v{T1}, 7, v{T0}\nv_lshl_add_u32 v{T1}, v{vi3}, 3, v{T1}\nv_add_u32 v{T1}, {L_V}, v{T1}")
    c.e(f"v_and_b32 v{T3}, 1, v{vg}\nv_lshlrev_b32 v{T3}, 1, v{T3}\nv_lshrrev_b32 v{T4}, 1, v{vi2}\nv_or_b32 v{T3}, v{T3}, v{T4}")
    c.e(f"s_and_b32 s3, s{sHead}, 1\ns_sub_u32 s{sT2}, 2, s3\ns_lshl_b32 s3, s3, 1\ns_and_b32 s{sT}, s{sWave}, 1\ns_or_b32 s{sT}, s{sT}, s3\ns_xor_b32 s3, s{sWave}, 2\ns_bitcmp1_b32 s2, 0\ns_cselect_b32 s{sT}, s{sT}, s{sWave}\ns_cselect_b32 s{sT2}, s{sT2}, s3")
    for i in (0, 2): c.e(f"v_xor_b32 v{T2}, s{sT2 if i else sT}, v{T3}\nv_lshl_add_u32 v{vW13A+i}, v{T2}, 5, v{T1}\nv_xor_b32 v{vW13A+i+1}, 32, v{vW13A+i}")
    for r in range(8): c.e(f"v_mov_b32 v{176+r}, 0")
    c.e(f"v_xor_b32 v{T0}, v{vg}, v{vc}\nv_lshlrev_b32 v{T1}, 8, v{vc}\nv_add_u32 v{T3}, s{sW16k}, v{T1}\ns_lshl_b32 s{sT}, s{sWave}, 2")
    for i in range(4): c.e(f"v_xor_b32 v{T2}, {4*i}, v{T0}\nv_lshl_add_u32 v{vXA+i}, v{T2}, 4, v{T3}\nv_xor_b32 v{T2}, s{sT}, v{T2}\nv_lshl_add_u32 v{vKA+i}, v{T2}, 4, v{T1}")
    c.e(f"v_lshl_add_u32 v{T0}, v{vg}, 2, v{vi2}\nv_lshlrev_b32 v{T1}, 8, v{T0}\nv_lshl_add_u32 v{T1}, v{vi3}, 3, v{T1}\nv_add_u32 v{T1}, {L_V}, v{T1}\nv_and_b32 v{T0}, 7, v{T0}")
    for dt in range(8): c.e(f"v_xor_b32 v{T2}, {dt}, v{T0}\nv_lshl_add_u32 v{vVA+dt}, v{T2}, 5, v{T1}")
    c.e(f"v_lshlrev_b32 v{T1}, 8, v{vg}\nv_xor_b32 v{T0}, v{vg}, v{vc}")
    for p in range(4): c.e(f"v_xor_b32 v{T2}, {4*p}, v{T0}\nv_lshl_add_u32 v{vDK+p}, v{T2}, 4, v{T1}")
    c.e(f"v_lshlrev_b32 v{T0}, 1, v{vg}\nv_xor_b32 v{T0}, v{T0}, v{vc}")
    for p in range(2): c.e(f"v_xor_b32 v{T2}, {8*p}, v{T0}\nv_lshl_add_u32 v{vDV+p}, v{T2}, 4, v{T1}")
    c.e(f"v_mov_b32 v{T0}, 0x3f803f80")
    for i in range(4): c.e(f"v_accvgpr_write_b32 a{aONES+i}, v{T0}")
    c.e(f"s_lshl_b32 s{sT}, s{sQb}, 5\nv_and_b32 v51, 7, v0\nv_lshlrev_b32 v51, 5, v51\ns_cmp_eq_u32 s{sFB}, 0\ns_cselect_b32 s{sT}, s{sT}, {OOB}")
    c.e(f"v_mov_b32 v{T0}, {OOB}\nv_mov_b32 v{T1}, s{sT}\nv_cmp_eq_u32 vcc, 0, v0\nv_mov_b32 v49, 1\nv_cndmask_b32 v48, v{T0}, v{T1}, vcc")
    c.e(f"s_lshl_b32 s{sT}, s{sQb}, 5\ns_add_u32 s{sT}, s{sT}, s{sHead}\ns_lshl_b32 s{sT}, s{sT}, 7\ns_add_u32 s{sT}, s{sT}, {WS_FH}\ns_cmp_eq_u32 s{sFB}, 0\ns_cselect_b32 s{sT}, s{sT}, {OOB >> 1}")
    c.e(f"s_and_b32 s{sT2}, s{sHead}, 7\ns_mul_i32 s{sT2}, s{sT2}, 124\ns_sub_u32 s{sT2}, {WS_FO-WS_FH}, s{sT2}\nv_mov_b32 v{T2}, s{sT}\nv_mad_u32_u24 v{T1}, v0, s{sT2}, v{T2}\nv_cmp_gt_u32 vcc, 2, v0\nv_mov_b32 v{T2}, 0\nv_cndmask_b32 v{T1}, v{T0}, v{T1}, vcc")
    c.e(f"buffer_store_dword v{T2}, v{T1}, {SR(sWS)}, 0 offen sc1")
    c.e(f"s_lshr_b32 s{sT}, s{sXb}, 7\nv_lshlrev_b32 v52, 3, v{vc}\nv_add_u32 v52, s{sT}, v52")
    c.e(f"s_lshl_b32 s{sT}, s{sWave}, 7\nv_lshlrev_b32 v54, 4, v{vg}\nv_add_u32 v54, s{sT}, v54\nv_add_u32 v54, {L_K+32768}, v54\ns_add_u32 s{sT}, s{sT}, {L_K+32768}\nv_lshl_add_u32 v21, v{vc}, 2, s{sT}")
    for i in range(4): c.e(f"v_accvgpr_write_b32 a{aZ+i}, 0")
    c.e(f"v_and_b32 v{vIDX}, 1, v0\nv_mul_u32_u24 v{vIDX}, 0xaaaa, v{vIDX}\nv_add_u32 v{vIDX}, 0x4444, v{vIDX}")
    c.e(f"v_mfma_f32_32x32x16_bf16 {A(aL,16)}, {A(aZ,4)}, {A(aZ,4)}, 0")
    c.e(f"s_lshl_b32 s{sT}, s{sQb}, 2\ns_add_u32 s{sT}, s{sT}, s{sWave}\ns_lshl_b32 s{sT}, s{sT}, 11\nv_lshlrev_b32 v53, 29, v{vg}\nv_lshl_add_u32 v53, v{vc}, 7, v53\nv_add_u32 v53, s{sT}, v53")
    stamp(c, "a2")
    c.e(f"s_lshl_b32 s{sT2}, s{sCnt}, 4\nv_lshrrev_b32 v{T2}, 5, v{vl}\nv_lshl_add_u32 v{T1}, v{T2}, 3, s{sT2}\nv_lshl_add_u32 v{T2}, v{T2}, 9, v{vL16}\nv_and_b32 v{T3}, 31, v0\nv_cmp_eq_u32 vcc, 0, v{T3}\nv_cndmask_b32 v{T1}, v{T0}, v{T1}, vcc")
    c.e("v_mov_b32 v22, v102\nv_mov_b32 v23, v103\nv_accvgpr_write_b32 a254, v108\nv_accvgpr_write_b32 a255, v109")
    for g in late: emit_grp(c, g)
    c.e("v_mov_b32 v60, v108\nv_mov_b32 v61, v109")
    for n in OPT["pre"].split():
        if n == "Q0": c.e(f"buffer_load_dword a252, v22, {SR(sWQ)}, 0 offen")
        if n == "G1": c.e(f"s_mov_b32 s{sT}, {128*3584}\nbuffer_load_dword a252, v23, {SR(sW1)}, s{sT} offen\nbuffer_load_dword a252, v23, {SR(sW3)}, s{sT} offen")
        if n == "S":
            c.e(f"s_lshl_b32 s{sT}, s{sCnt}, 11")
            for r in range(2): c.e(f"buffer_load_dwordx4 {V(72+4*r,4)}, v{T2}, {SR(sX)}, s{sT} offen offset:{512*r}", tag="SR")
    stamp(c, "a4")
    c_ = c; c = Block(); c.wait(vm="SR")
    X = lambda k: 88 + k + (8 if k >= 8 else 0)
    for k in range(8): c.e(f"v_lshlrev_b32 v{X(2*k)}, 16, v{72+k}\nv_and_b32 v{X(2*k+1)}, 0xffff0000, v{72+k}")
    def wred(d):
        c.e("v_add_f32 v120, v120, v121")
        for sh in (8, 4, 2, 1): c.e(f"v_add_f32_dpp v120, v120, v120 row_ror:{sh} row_mask:0xf bank_mask:0xf")
        c.e(f"v_mov_b32 v121, v120\nv_permlane16_swap_b32 v121, v120\nv_add_f32 v120, v120, v121\nv_mul_f32 v{d}, {f32(1/512)}, v120")
    for k in range(7):
        for r in range(2): c.e(f"v_add_f32 v{120+r}, v{X(8*r+k+1)}, v{X(8*r) if k == 0 else (120+r)}")
    wred(122)
    for k in range(16): c.e(f"v_sub_f32 v{X(k)}, v{X(k)}, v122")
    for k in range(8):
        for r in range(2): c.e(f"v_mul_f32 v{120+r}, v{X(8*r)}, v{X(8*r)}" if k == 0 else f"v_fmac_f32 v{120+r}, v{X(8*r+k)}, v{X(8*r+k)}")
    wred(123)
    def rnd(r): c.e(f"v_cvt_pk_bf16_f32 v{r}, v{r}, v{r}\nv_and_b32 v{r}, 0xffff0000, v{r}")
    rnd(122); rnd(123); c.e(f"v_add_f32 v123, {f32(1e-5)}, v123"); rnd(123); c.e("v_sqrt_f32 v123, v123"); rnd(123); c.e("v_mul_f32 v123, v123, v123")
    c.e(f"buffer_store_dwordx2 v[122:123], v{T1}, {SR(sWS)}, 0 offen sc1", tag="ST")
    st_ = [x for x in c.ins if x.kind != "nop"]; c = c_
    def stats():
        w_ = W(vm="SR"); w_.guards = {f"v{72+k}" for k in range(8)}
        return [w_] + [Ins(x.text, tag=x.tag) for x in st_[1:]]
    PJ = {}
    for var in "FS":
      first_reads, proj, hleft = gen_proj(stats(), var)
      e = Block(); e.name = "projepi"
      stamp(e, "projend")
      for i in range(4): e.e(f"v_xor_b32 v{24+i}, {128*i}, v30")
      def cq(i): return [Ins(f"ds_read_b128 {V(48+8*(i&1)+4*hf,4)}, v{24+i} offset:{64*hf}", tag=f"CQ{i}") for hf in range(2)]
      e.ext(cq(0) + cq(1))
      nfirst = [k for k, x in enumerate(hleft) if x.kind == "vstore"][0] + 1
      e.ext(hleft[:nfirst]); hleft = hleft[nfirst:]
      H = 192
      for ds in range(4):
          e.wait(lgkm=f"CQ{ds}")
          for t in range(4):
              d = Q(t, ds); h = H + 16 * (t & 1); o = t & 1; nm, aq = V(vNMU + t - o, 2), V(vAQ + t - o, 2); CS = 48 + 8 * (ds & 1)
              for k in range(4): e.e(f"v_accvgpr_read_b32 v{h+k}, a{128+(t*4+ds)*4+k}")
              prs = [(d, CS), (d + 2, CS + 2), (h, CS + 4), (h + 2, CS + 6)]
              for x, cs in prs: e.e(f"v_pk_fma_f32 {V(x,2)}, {V(cs,2)}, {nm}, {V(x,2)} op_sel:[0,{o},0] op_sel_hi:[1,{o},1]")
              for x, cs in prs: e.e(f"v_pk_mul_f32 {V(x,2)}, {V(x,2)}, {aq} op_sel:[0,{o}] op_sel_hi:[1,{o}]")
              for k, (x, cs) in enumerate(prs): e.e(f"v_cvt_pk_bf16_f32 v{d+k}, v{x}, v{x+1}")
          if ds < 2: e.ext(cq(ds + 2))
      PM = 48
      ch = [MF(V(PM + 4 * t, 4), A(KF(0, ds), 4), V(Q(t, ds), 4), "0" if n == 0 else V(PM + 4 * t, 4)) for t in range(4) for n, ds in enumerate(snake(t))]
      run = 0
      for k, x in enumerate(hleft):
          run = run + 1 if x.kind == "trans" else 0
          if ch and x.kind == "trans" and 3 <= run <= 5: e.add(ch.pop(0))
          e.add(x)
      e.ext(ch)
      if var == "F": proj.ins.insert(0, Ins("L_proj_F:")); e.e("s_branch L_proj_join")
      PJ[var] = [proj, e]
    stamp(c, "a5")
    c.wait(vm="DX0"); c.ext(xreads(0)); c.wait(vm="DW0"); stamp(c, "a6"); c.e("s_barrier"); c.ext(first_reads)
    if not OPT["stamp"]: c.e("s_bitcmp1_b32 s2, 0\ns_cbranch_scc0 L_proj_F")
    for var in "FS": PJ[var][0].ins.insert(1 if var == "F" else 0, W(lgkm="W0"))
    if OPT["stamp"]: stamp(c, "p0"); c.e("s_bitcmp1_b32 s2, 0\ns_cbranch_scc0 L_proj_F")
    e = Block(); e.name = "join"; e.e("L_proj_join:")
    e.e(f"s_cmp_lg_u32 s{sFB}, 0\ns_cbranch_scc1 L_truemax")
    e2 = Block(); e2.name = "premax"
    def rowmax_finish(blk, src):
        for sw in ("32", "16"):
            for t in range(4): blk.e(f"v_mov_b32 v{vT+t}, v{src(t)}")
            for t in range(4): blk.e(f"v_permlane{sw}_swap_b32 v{vT+t}, v{src(t)}")
            for t in range(4): blk.e(f"v_max_f32 v{src(t) if sw == '32' else vT+t}, v{src(t)}, v{vT+t}")
        for t in range(4):
            for r in range(4): blk.e(f"v_sub_f32 v{vNM+4*t+r}, 0, v{vT+t}")
    for t in range(4):
        s0 = PM + 4 * t
        e2.e(f"v_max3_f32 v{s0}, v{s0}, v{s0+1}, v{s0+2}\nv_max_f32 v{s0}, v{s0}, v{s0+3}")
    rowmax_finish(e2, lambda t: PM + 4 * t)
    first, even, odd, last = gen_attention()
    l0 = Block(); l0.e(f"L_att_start:\ns_mov_b32 s{sCnt}, 7\ns_mov_b32 s{sTW}, 0\ns_mov_b32 s{sT2W}, 0")
    l0.e(f"s_lshr_b32 s{sT}, s2, 3\ns_mul_i32 s{sT2}, s{sT}, {14*1024}\ns_lshl_b32 s{sT}, s{sT}, 15\ns_lshl_b32 s3, s{sSp}, 20\ns_add_u32 s{sT}, s{sT}, s3\ns_mul_i32 s3, s{sSp}, {448*1024}\ns_add_u32 s{sT2}, s{sT2}, s3")
    l0.e(f"v_and_b32 v28, 15, v0\nv_lshrrev_b32 v29, 6, v0\nv_lshl_add_u32 v28, v29, 4, v28\nv_bfe_u32 v29, v0, 4, 2\nv_lshlrev_b32 v29, 29, v29\nv_lshl_add_u32 v28, v28, 7, v29\nv_add_u32 v30, s{sT}, v28\nv_add_u32 v29, s{sT2}, v28")
    if OPT.get('wo2', 1): l0.e(f"v_bfe_u32 v26, v0, 4, 1\nv_mul_u32_u24 v26, 0xffff, v26\nv_lshlrev_b32 v26, 13, v26\nv_sub_u32 v30, v30, v26")
    l0.e(f"s_lshl_b32 s{sT}, s{sQb}, 13\ns_add_u32 s{sT}, s{sT}, 32768\ns_sub_u32 s{sT}, s{sT}, s{sW8k}\nv_add_u32 v28, s{sT}, v28")
    l0.e(f"s_lshl_b32 s{sT}, s{sQb}, 5\ns_add_u32 s{sT}, s{sT}, s{sHead}\ns_lshl_b32 s{sT}, s{sT}, 7\ns_add_u32 s{sT}, s{sT}, {WS_FH}\nv_lshl_add_u32 v21, v0, 18, s{sT}\nv_mov_b32 v22, 1")
    l0.e(f"s_lshr_b32 s{sT}, s{sTr}, 1\ns_lshl_b32 s{sT}, s{sT}, 5\ns_lshl_b32 s{sT2}, s{sSp}, 3\ns_add_u32 s{sT}, s{sT}, s{sT2}\ns_lshl_b32 s{sT}, s{sT}, 7\ns_add_u32 s{sT}, s{sT}, {WS_FH}\nv_and_b32 v23, 7, v0\nv_lshl_add_u32 v23, v23, 7, s{sT}")
    l0.e(f"s_lshl_b32 s{sT}, s{sQb}, 5\ns_and_b32 s{sT2}, s{sHead}, 7\ns_add_u32 s{sT}, s{sT}, s{sT2}\ns_lshl_b32 s{sT}, s{sT}, 7\ns_add_u32 s{sT}, s{sT}, {WS_FH}")
    l0.e(f"v_and_b32 v24, 8, v0\nv_cmp_eq_u32 vcc, 0, v24\nv_and_b32 v24, 3, v0\nv_lshl_add_u32 v24, v24, 10, s{sT}\nv_cndmask_b32 v23, v24, v23, vcc\nv_cndmask_b32 v31, 7, v22, vcc")
    for r in range(4): l0.e(f"v_accvgpr_write_b32 a{aCHK+r}, -1")
    l0.e(f"s_mul_i32 s{sT}, s{sTc}, 3584\nv_and_b32 v27, 31, v0\nv_min_u32 v27, 27, v27\nv_lshl_add_u32 v27, v27, 7, s{sT}\nv_bfe_u32 v26, v0, 5, 1\nv_mul_u32_u24 v26, {BSTRIDE}, v26\nv_add_u32 v27, v27, v26")
    l0.e("v_accvgpr_read_b32 v24, a254\nv_accvgpr_read_b32 v25, a255")
    if OPT.get("otouch"): l0.e("v_and_b32 v26, 31, v0\nv_lshlrev_b32 v26, 7, v26")
    if OPT.get("kvtouch", 1):
        if OPT.get("l0t", 0) & 1: l0.e(f"s_sub_u32 s{sT}, s{sKo}, 32768\nbuffer_load_dword a252, v28, {SR(sK)}, s{sT} offen")
        if OPT.get("l0t", 0) & 2: l0.e(f"buffer_load_dword a252, v28, {SR(sV)}, s{sW8k} offen")
        l0.e(f"buffer_load_dword a252, v28, {SR(sV)}, s{sVo} offen")
    stamp(l0, "att0")
    l1 = Block(); stamp(l1, "loop")
    l1b = Block(); l1b.e(".p2align 6\nL_att_loop:")
    l4 = Block(); l4.e("L_att_last:"); stamp(l4, "last")
    if OPT.get("loopstamp"):
        l1b.e(f"s_memtime s[96:97]\ns_mov_b32 m0, s{sCnt}\ns_waitcnt lgkmcnt(0)\nv_writelane_b32 v31, s96, m0")
        for i in range(8): l4.e(f"v_readlane_b32 s{74+2*i}, v31, {7-i}\nv_readlane_b32 s{75+2*i}, v31, {7-i}")
    f = Block(); f.name = "check"
    stamp(f, "attend")
    vRL = vNM
    for _ in range(min(OPT.get("osf", 2), len(OSTORES))): emit_grp(f, OSTORES.pop(0))
    f.add(last.tailchk)
    f.e(f"s_mov_b32 s{sT}, {f32(2.0**100)}")
    f.e(f"v_max3_f32 v{vT}, v{vRL+4}, v{vRL+5}, v{vRL+6}\nv_max_f32 v{vT}, v{vT}, v{vRL+7}\nv_accvgpr_read_b32 v{vT+1}, a{aCHK}")
    f.e(f"v_add_f32 v{vT}, v{vT}, v{vT+1}\nv_cmp_nlt_f32 vcc, v{vT}, s{sT}")
    f.e(f"s_cmp_lg_u64 vcc, 0\ns_cselect_b32 s{sT}, 1, 0")
    f.e(f"v_mov_b32 v{vT}, s{sT}\nv_and_b32 v{vT+1}, 3, v0\nv_lshlrev_b32 v{vT+1}, 12, v{vT+1}\ns_add_u32 s{sT}, s{sWave}, {7*4096}\ns_lshl_b32 s{sT}, s{sT}, 2\nv_add_u32 v{vT+1}, s{sT}, v{vT+1}")
    f.e(f"ds_write_b32 v{vT+1}, v{vT}", tag="VW"); f.e(f"s_add_u32 s{sT}, s{sM}, {7*16384}\nv_mov_b32 v{vT+1}, s{sT}")
    if OSTORES: emit_grp(f, OSTORES.pop(0))
    f.e(f"s_lshl_b32 s{sT}, s{sWave}, 6\ns_or_b32 s{sT}, s{sT}, {L_V}\ns_and_b32 s{sT2}, s{sTr}, 1\ns_lshl_b32 s{sT2}, s{sT2}, 12")
    for v in range(2): f.e(f"v_xor_b32 v{vRAs+v}, s{sT}, v{vVA+v}")
    for st in (1, 2):
        for v in range(2): f.e(f"v_add_u32 v{vRAs+2*st+v}, {st*65536}, v{vRAs+v}")
    for st in range(3):
        for v in range(2): f.e(f"v_xor_b32 v{vRAg+4*st+v}, s{sT2}, v{vRAs+2*st+v}\nv_xor_b32 v{vRAg+4*st+2+v}, 0x1000, v{vRAg+4*st+v}")
        f.e(f"v_add_u32 v{vRB[st]}, {st*65536}, v{vL16}")
    while OSTORES: emit_grp(f, OSTORES.pop(0))
    f.wait(lgkm="VW", vm=[f"U{u}" for u in RD[-1]]); f.e("s_barrier")
    f.e(f"ds_read_b128 v[2:5], v{vT+1}", tag="FL")
    for u in RD[-1]: f.ext(ureads(u))
    f.wait(lgkm="FL")
    f.e(f"v_or_b32 v2, v2, v3\nv_or3_b32 v2, v2, v4, v5\nv_readfirstlane_b32 s{sT}, v2")
    f.e(f"s_andn2_b32 s{sT}, s{sT}, s{sFB}\ns_cmp_lg_u32 s{sT}, 0\n" + ("" if OPT.get("nofb") else "s_cbranch_scc1 L_fallback"))
    k = Block(); k.name = "tail"
    stamp(k, "tail0")
    su = II(f"""s_and_b32 s{sT}, s{sHead}, 7
s_mul_i32 s{sT}, s{sT}, 124
s_sub_u32 s{sT}, {WS_FO-WS_FH}, s{sT}
v_add_u32 v26, s{sT}, v21
v_mov_b32 v25, 1
v_and_b32 v{vPA}, 7, v0
s_lshr_b32 s{sT}, s{sTr}, 1
s_lshl_b32 s{sT}, s{sT}, 2
s_add_u32 s{sT}, s{sT}, s{sSp}
s_lshl_b32 s{sT}, s{sT}, 10
s_add_u32 s{sT}, s{sT}, {WS_FO}
v_lshl_add_u32 v{vPA}, v{vPA}, 2, s{sT}
s_add_u32 s100, s{sWS}, s{sT}
s_addc_u32 s101, s{sWS+1}, 0
v_and_b32 v27, 3, v0
v_lshlrev_b32 v27, 4, v27
v_bfe_u32 v24, v0, 2, 4
v_lshl_add_u32 v27, v24, 10, v27""")
    nU = 10
    for n in range(10):
        if n not in EARLY: emit_grp(k, udma(n))
    k.ext(su)
    k.wait(lgkm="R")
    ldf = f"buffer_load_dword v{vPoll}, v{vPA}, {SR(sWS)}, 0 offen sc1"
    allset = f"v_cmp_eq_u32 vcc, 0, v{vPoll}\ns_nop 0\ns_cmp_eq_u64 vcc, 0"
    polled = False
    def take(n):
        nonlocal nU
        if n > 21: return []
        limit = min(RD[max(m for m in range(n + 1) if m - 7 not in OPT.get("nobs", ()))][0] + 10, len(UNITS))
        r = []
        while nU < limit:
            kd, a_ = UNITS[nU]
            if kd == "Bs" and not (polled and (a_ < 4 or n - 7 >= OPT["bsat"][a_])): break
            r.append(udma(nU)); nU += 1
        return r
    def pack(src, dst): return II("\n".join(f"v_cvt_pk_bf16_f32 v{dst+r}, v{src+2*r}, v{src+2*r+1}" for r in range(8)) + "\n" + "\n".join(f"v_min_u32 v{dst+r}, -2, v{dst+r}" for r in range(8)))
    def xst(which, lam, reg):
        return (II(f"s_xor_b32 s{sCnt}, s{sXR}, {lam*65536 + (which*4+lam)*8192}"),
                [Ins(f"buffer_store_dwordx4 {V(reg+4*m,4)}, v{vL16}, {SR(sXP)}, s{sCnt} offen offset:{m*1024} sc1") for m in range(2)], [])
    def xld(which, lam, tag, so=sCnt):
        if OPT.get("xdummy") == 2: return (II(f"s_mov_b32 s{so}, 0x40000000"), [Ins(f"buffer_load_dwordx4 {V(IN(which,lam)+4*m,4)}, v{vL16}, {SR(sXP)}, s{so} offen offset:{m*1024} sc1", tag=tag) for m in range(2)], [])
        if OPT.get("xdummy") == 1: return (II(f"s_add_u32 s{so}, s{sBo}, {(which*4+lam-1)*2048 % 4096 + ((which*4+lam-1)//2)*BSTRIDE}"), [Ins(f"buffer_load_dwordx4 {V(IN(which,lam)+4*m,4)}, v{vL16}, {SR(sB)}, s{so} offen offset:{m*1024} sc1", tag=tag) for m in range(2)], [])
        return (II(f"s_add_u32 s{so}, s{sXR}, {(which*4+lam)*8192}"),
                [Ins(f"buffer_load_dwordx4 {V(IN(which,lam)+4*m,4)}, v{vL16}, {SR(sXP)}, s{so} offen offset:{m*1024} sc1", tag=tag) for m in range(2)], [])
    IN = lambda which, lam: ACG(2 * lam, 0) + (0 if which else 8)
    def arrived(name, parts):
        regs = [IN(w_, l_) + r for w_, l_ in parts for r in range(8)]
        t = f"v_max3_u32 v28, v{regs[0]}, v{regs[1]}, v{regs[2]}\nv_max3_u32 v29, v{regs[3]}, v{regs[4]}, v{regs[5]}\n"
        for m in range(6, len(regs), 2): t += f"v_max3_u32 v{28+(m>>1)%2}, v{28+(m>>1)%2}, v{regs[m]}, v{regs[m+1]}\n"
        t += "v_max_u32 v28, v28, v29\nv_cmp_eq_u32 vcc, -1, v28\ns_nop 0\ns_cmp_eq_u64 vcc, 0"
        ld = "\n".join(x.text for w_, l_ in parts for g in [xld(w_, l_, None, sT)] for x in g[0] + g[1])
        r = poll_check(name, 0, ld, t)
        return r[:-5], r[-5:]
    G0, S0 = ACG(0, 0), ACS(2, 0)
    def unp(src, dst): return II("\n".join(f"v_lshlrev_b32 v{dst(2*r)}, 16, v{src+r}\nv_and_b32 v{dst(2*r+1)}, 0xffff0000, v{src+r}" for r in range(8)))
    gm = []
    for lam in (1, 2, 3):
        for h_ in range(2):
            for r in range(4): gm += II(f"v_lshlrev_b32 v{2+2*r}, 16, v{IN(1,lam)+4*h_+r}\nv_and_b32 v{3+2*r}, 0xffff0000, v{IN(1,lam)+4*h_+r}")
            for r in range(8): gm += II(f"v_add_f32 v{G0+8*h_+r}, v{G0+8*h_+r}, v{2+r}")
    nsum = len(gm)
    for h_ in range(2):
        g_ = lambda r: G0 + 8 * h_ + r
        for r in range(8): gm += II(f"v_mul_f32 v{2+r}, {f32(-LOG2E)}, v{g_(r)}")
        for r in range(8): gm += II(f"v_exp_f32 v{2+r}, v{2+r}") + (II(f"v_add_f32 v{r}, 1.0, v{r}") if r >= 2 else [])
        for r in range(8): gm += II(f"v_rcp_f32 v{2+r}, v{2+r}") + II(f"v_add_f32 v{8+r}, 1.0, v{8+r}" if r < 2 else f"v_mul_f32 v{g_(r-2)}, v{g_(r-2)}, v{r}")
        for r in (6, 7): gm += II(f"v_mul_f32 v{g_(r)}, v{g_(r)}, v{2+r}")
    nrest = len(gm) - nsum
    ta = II(f"""v_and_b32 v10, 15, v0
v_bfe_u32 v11, v0, 4, 2
v_and_b32 v18, 7, v0
v_xor_b32 v11, v11, v18
v_lshlrev_b32 v10, 7, v10
v_lshl_add_u32 v10, v11, 4, v10
v_add_u32 v10, s{sM}, v10
v_xor_b32 v11, 64, v10
v_and_b32 v18, 3, v0
v_lshlrev_b32 v18, 1, v18
v_bfe_u32 v19, v0, 2, 3
v_xor_b32 v18, v18, v19
v_bfe_u32 v19, v0, 2, 4
v_lshlrev_b32 v19, 7, v19
v_lshl_add_u32 v18, v18, 4, v19
v_add_u32 v18, s{sM}, v18
v_xor_b32 v19, 16, v18""")
    XR = IN(1, 1)
    at = lambda tl, y: max(q for q, gp in enumerate(tl.g) if any(x is y for x in gp.vec))
    for n in range(23):
        i = n - 7
        stamp(k, f"g{n}" if n < 7 else f"s{i}")
        tl = TL()
        if n < 7:
            for c_, j in enumerate((2, 3, 4, 5, 6, 7, 0, 1) if n == 6 else range(8)):
                for v in ((0, 1) if c_ % 2 == 0 else (1, 0)):
                    d = V(ACG(j, v), 4)
                    for m, ks in enumerate((0, 1) if v == (c_ & 1) else (1, 0)):
                        tl.add(MF(d, R(*AG(n, v, ks), 4), V(BF(n, j * 2 + ks), 4), "0" if (n == 0 and m == 0) else d))
        else:
            for e_ in range(2):
                for v in ((0, 1) if e_ == 0 else (1, 0)):
                    d = V(ACS(2 * ((i >> 2) & 1) + e_, v), 4)
                    for m, ks in enumerate(range(8) if v == e_ else range(7, -1, -1)):
                        tl.add(MF(d, A(AS(v, (i & 3) * 8 + ks), 4), V(BF(n, e_ * 8 + ks), 4), "0" if (i in (0, 4, 8) and m == 0) else d))
        bar = bool(RD[n]) and i not in OPT.get("nobs", ())
        need = []
        if bar:
            m = n
            while True:
                need += RD[m]; m += 1
                if m > 21 or m - 7 not in OPT.get("nobs", ()): break
        grp = []; vm = [f"U{u}" for u in need]
        assert all(u < nU for u in need), n
        if n == OPT["flagstage"]: vm.append("OS"); grp.append(([], II(f"buffer_store_dword v25, v26, {SR(sWS)}, 0 offen sc1"), []))
        ck = None
        if i == OPT["gck"]: vm.append("IG"); ck = arrived("g", [(1, 1), (1, 2), (1, 3)])
        if i == 11: vm.append("I1"); ck = arrived("s1", [(0, 1)])
        if i == 15: vm.append("I2"); ck = arrived("s2", [(0, 2)])
        if vm: tl.scal_at(0, W(vm=vm))
        span = n == OPT["pollstage"] and OPT["polld"] == 2
        if bar: tl.scal_at(1, Ins("s_barrier"))
        if RD[n]: tl.scal_at(31, W(lgkm="R") if not span else Ins("s_waitcnt lgkmcnt(2)"))
        lo = 3
        if n == OPT["pollstage"]: tl.scal_at(OPT.get("pollgap", 2), Ins(f"s_load_dwordx8 s[{sK}:{sK+7}], s[100:101], 0 glc", tag="R"))
        if n == OPT["pollstage"] + OPT["polld"]:
            pc = poll_check("o", vPoll, ldf, allset)
            g = tl.g[2]; g.load += 2; polled = True; lo = 5
            g.vec += II(f"s_and_b64 s[{sK}:{sK+1}], s[{sK}:{sK+1}], s[{sK+2}:{sK+3}]\ns_and_b64 s[{sK+4}:{sK+5}], s[{sK+4}:{sK+5}], s[{sK+6}:{sK+7}]\ns_and_b64 s[{sK}:{sK+1}], s[{sK}:{sK+1}], s[{sK+4}:{sK+5}]\ns_and_b32 s{sK}, s{sK}, s{sK+1}") + pc[-2:]
        pk = []
        if n == 6: pk = [(11, 21, pack(ACG(2, 0), ACG(2, 0)))]
        gst = OPT.get("gst", 0)
        if i == 0 and gst == 0: pk = [(0, 14, pack(ACG(4, 0), ACG(4, 0))), (8, 24, pack(ACG(6, 0), ACG(6, 0)))]
        if i == 0 and gst > 0: pk = [(0, 31, pack(ACG(4, 0), ACG(4, 0)) + pack(ACG(6, 0), ACG(6, 0)))]
        if i in (4, 8, 12): pk = [(4, 14, pack(ACS(2 * ((i // 4 + 1) & 1), 0), IN(0, i // 4)))]
        grp += take(n)
        if i == OPT["gld"]: grp += [xld(1, lam, "IG") for lam in (1, 2, 3)]
        if i == 8: grp.append(xld(0, 1, "I1"))
        g1 = OPT.get("g1early", 0)
        if i == gst: grp += [xst(1, lam, IN(1, lam)) for lam in (1, 2, 3) if lam > g1]
        if n == 6 and g1: late_ = [xst(1, lam, IN(1, lam)) for lam in range(1, g1 + 1)]
        else: late_ = []
        if i in (4, 8, 12): grp.append(xst(0, i // 4, IN(0, i // 4)))
        if i == 12:
            lo = 16
            grp += [([], II(f"buffer_load_dwordx4 {V(XR,4)}, v27, {SR(sX)}, s{sOo} offen\nbuffer_load_dwordx4 {V(XR+4,4)}, v27, {SR(sX)}, s{sXW} offen"), []), xld(0, 2, "I2")]
            assert len(gm) <= nsum + nrest - 32
        if i == 15: lo = OPT["i3gap"]; grp.append(xld(0, 3, "I3"))
        if i == 0 and gst == 0 and g1 and len(grp) == 3 - g1: lo = 17
        spill = []
        while sum(len(g[1]) + len(g[0]) // 2 for g in grp) > 22: spill.insert(0, grp.pop())
        nv = sum(len(g[1]) for g in grp)
        if grp and n < 7 and OPT.get("gfront"):
            q = lo - 1
            for g in grp:
                gp = tl.g[q]; gp.vec += g[0] + g[1]; gp.load += 6; q += OPT["gfront"]
            for g in spill: tl.g[q].vec += g[0] + g[1]; tl.g[q].load += 6; q += OPT["gfront"]
            spill = []
        elif grp: tl.spread(lo, min(29, lo + 4 * nv - 4) if i > 0 else (29 if not late_ else 18), grp)
        if late_: tl.spread(24, 29, late_); grp += late_
        rd = [x for u in RD[n] for x in ureads(u)]
        if span: rd += II(f"ds_read_b32 v28, v{vL16}\nds_read_b32 v28, v{vL16}")
        if len(rd) > 16: tl.vec_in(2, 27, rd)
        elif rd:
            free = [q for q in range(2, 27) if tl.g[q].load == 0]
            while len(free) > 16: free.pop(2 + 2 * (len(free) - 17) if 2 + 2 * (len(free) - 17) < len(free) else -1)
            if len(free) < 16: tl.vec_in(2, 27, rd)
            else:
                for x, q in zip(rd, free): tl.vec_at(q, x)
        for lo_, hi_, its in pk:
            left = tl.stream(lo_, hi_, its, cap=3); assert not left, (n, len(left))
            for y in its:
                for q, gp in enumerate(tl.g): assert not (gp.m.writes & y.reads) or at(tl, y) >= q, n
                for g in grp:
                    for x in g[1]: assert not (y.writes & x.reads) or at(tl, x) > at(tl, y), n
        q0 = 0
        if ck:
            left = tl.stream(0, 20, ck[0]); assert not left
            q0 = at(tl, ck[0][-1]) + 1; tl.g[q0].vec += ck[1]; tl.g[q0].load += 2; q0 += 1
        if i == 5: left = tl.stream(0, 31, ta); assert not left
        if i == 11: left = tl.stream(q0, 29, unp(IN(0, 1), lambda r: S0 + r)); assert not left
        if i == 15: left = tl.stream(q0, 31, unp(IN(0, 2), lambda r: 144 + r) + unp(XR, lambda r: 128 + r)); assert not left
        if i >= OPT["gck"] and gm: gm = tl.stream(q0 if i == OPT["gck"] else 0, 31, gm)
        k.ext(tl.emit(0, 32, "x").ins)
        for g in spill: emit_grp(k, g)
    assert nU == len(UNITS)
    stamp(k, "send")
    print("g math left over", len(gm), file=sys.stderr)
    k.ext(gm)
    def padd(acc, tmp):
        for r in range(0, 16, 2): k.e(f"v_pk_add_f32 {V(acc+r,2)}, {V(acc+r,2)}, {V(tmp+r,2)}")
    k.wait(vm="I3")
    ck = arrived("s3", [(0, 3)]); k.ext(ck[0] + ck[1])
    stamp(k, "spolled")
    k.ext(unp(IN(0, 3), lambda r: 160 + r)); padd(144, 160); padd(S0, 144)
    for r in range(0, 16, 2): k.e(f"v_pk_mul_f32 {V(S0+r,2)}, {V(S0+r,2)}, {V(G0+r,2)}")
    for e_ in range(2):
        for v in range(2): k.e(f"ds_write_b128 v{10+v}, {V(S0+(e_*2+v)*4,4)} offset:{e_*2048}")
    for e_ in range(2):
        for m in range(2): k.e(f"ds_read_b128 {V(160+e_*8+m*4,4)}, v{18+m} offset:{e_*2048}", tag=f"T{e_}")
    for e_ in range(2):
        k.wait(lgkm=f"T{e_}")
        for r in range(0, 8, 2): k.e(f"v_pk_add_f32 {V(128+8*e_+r,2)}, {V(128+8*e_+r,2)}, {V(160+8*e_+r,2)}")
        for r in range(4): k.e(f"v_cvt_pk_bf16_f32 v{176+4*e_+r}, v{128+8*e_+2*r}, v{129+8*e_+2*r}")
        k.e(f"buffer_store_dwordx4 {V(176+4*e_,4)}, v27, {SR(sOut)}, s{sXW if e_ else sOo} offen {OPT.get('outf', '')}")
    z = Block(); z.name = "end"
    if OPT.get("encode") is not None:
        z.e("s_waitcnt vmcnt(0) lgkmcnt(0)"); stamp(z, "end")
        i0, i1 = (STAMPS[x] for x in OPT["encode"])
        fld = 72 if OPT.get("enccyc") else 73
        z.e(f"s_sub_u32 s92, s{fld+2*i1}, s{fld+2*i0}")
        if OPT.get("encx") is not None: z.e(f"s_and_b32 s3, s2, {OPT.get('encm', 7)}\ns_cmp_eq_u32 s3, {OPT['encx']}\ns_cselect_b32 s92, s92, 0")
        z.e("s_lshr_b32 s92, s92, 2" if OPT.get("enccyc") else "s_lshl_b32 s92, s92, 2")
        z.e(f"s_add_u32 s92, s92, 20000\nL_enc:\ns_sleep 1\ns_memrealtime s[98:99]\ns_waitcnt lgkmcnt(0)\ns_sub_u32 s98, s98, s73\ns_cmp_lt_u32 s98, s92\ns_cbranch_scc1 L_enc")
    elif OPT["stamp"]:
        z.e("s_waitcnt vmcnt(0) lgkmcnt(0)"); stamp(z, "end")
        z.e(f"s_load_dwordx2 s[96:97], s[0:1], 88\ns_waitcnt lgkmcnt(0)"); ptr_add(z, 96, 0x8000000 + 0x40000); srd_fin(z, 96, 0x40000)
        for i in range(20): z.e(f"v_mov_b32 v{36+i}, s{72+i}")
        z.e(f"s_lshl_b32 s92, s2, 2\ns_add_u32 s92, s92, s{sWave}\ns_lshl_b32 s92, s92, 7\nv_mov_b32 v2, s92\ns_mov_b64 exec, 1")
        for i in range(5): z.e(f"buffer_store_dwordx4 {V(36+4*i,4)}, v2, s[96:99], 0 offen offset:{16*i}")
    z.e("L_end:\ns_endpgm")
    fb = Block(); fb.name = "fb"
    fb.e(f"L_fallback:\ns_mov_b32 s{sFB}, 1\ns_waitcnt vmcnt(0) lgkmcnt(0)\ns_barrier\ns_branch L_restart")
    m0 = Block(); m0.name = "tm0"
    m0.e(f"L_truemax:\ns_mov_b32 s{sKo}, s{sW8k}\ns_mov_b32 s{sCnt}, 16")
    for t in range(4): m0.e(f"v_mov_b32 v{vNM+4*t}, 0xff800000")
    m0.e("s_waitcnt vmcnt(0) lgkmcnt(0)")
    m1 = Block(); m1.name = "tm1"
    m1.e("L_tm_loop:\ns_barrier")
    emit_grp(m1, dma_K(0, 0, "DK")); emit_grp(m1, dma_K(1, 0, "DK"))
    m1.e("s_waitcnt vmcnt(0)\ns_barrier")
    for g in range(8):
        m1.ext(kreads(g, 0, 0, "K0")); m1.e("s_waitcnt lgkmcnt(0)")
        for t in range(4): m1.ext(qk_chain(t, 0, "0"))
        for t in range(4):
            s0 = vS + 4 * t
            m1.e(f"v_max3_f32 v{vNM+4*t}, v{vNM+4*t}, v{s0}, v{s0+1}\nv_max3_f32 v{vNM+4*t}, v{vNM+4*t}, v{s0+2}, v{s0+3}")
    m1.e(f"s_sub_u32 s{sCnt}, s{sCnt}, 1\ns_cmp_lg_u32 s{sCnt}, 0\ns_cbranch_scc1 L_tm_loop")
    m2 = Block(); m2.name = "tm2"
    rowmax_finish(m2, lambda t: vNM + 4 * t)
    m2.e(f"s_mov_b32 s{sKo}, s{sW8k}\ns_barrier")
    emit_grp(m2, dma_K(0, 0, "DK")); emit_grp(m2, dma_K(1, 0, "DK"))
    m2.e(f"s_add_u32 s{sKo}, s{sKo}, 32768\ns_waitcnt vmcnt(0)\ns_barrier")
    m2.ext(kreads(0, 0, 0, "K0")); m2.e("s_waitcnt lgkmcnt(0)\ns_branch L_att_start")
    att = [l0, first, l1, l1b, even, odd, l1b, even, odd, l4, last, f]
    front = [b2, c] + PJ['F'] + [e]; frontS = [b2, c] + PJ['S'] + [e]
    vb = []
    finalize([[b_] + front + [e2] + att + [k, z], [b_] + frontS + [e2] + att + [fb] + frontS + [m0, m1, m1, m2] + att + [k, z], [b_] + front + [m0, m1]] + [[s] for s in SLOW], vb)
    for fr in (front, frontS): check_groups([x for bb in [b_] + fr + [e2] + att + [k, z] for x in bb.ins])
    for x in vb:
        if x[0].startswith("att") or x[0] in ("projF", "projS"): print("nop:", x, file=sys.stderr)
    cend = Block(); cend.e('L_code_end:')
    layout = [b_, b2, c] + PJ['S'] + [e, e2, l0, first, l1, l1b, even, odd, l4, last, f, k, z] + PJ['F'] + [cend, fb, m0, m1, m2] + SLOW
    return kernel_head(KN) + "\n".join(x.text() for x in layout) + "\n" + kernel_desc(KN, 512, 256)

def build():
    head = open("cdna_kernels/" + NAME + ".s.ref").read().split("; Override launch")[0]
    s = head + "; @launch grid=(256,1,1) block=(256,1,1) lds=163840\n" + '.amdgcn_target "amdgcn-amd-amdhsa--gfx950"\n'
    plan_units()
    return s + gen_kernel()

if __name__ == "__main__":
    out = sys.argv[1] if len(sys.argv) > 1 else "cdna_kernels/" + NAME + ".s"
    for a in sys.argv[2:]:
        k, v = a.split("="); OPT[k] = eval(v)
    names = OPT.get("stamps", "p0,p4,projend,att0,loop,last,tail0,gend").split(",")
    STAMPS.update({n: i + 1 for i, n in enumerate(names)}); STAMPS["start"] = 0; STAMPS["end"] = 9
    open(out, "w").write(build())
```

```python
import sys, math, struct, re
sys.path.insert(0, "gen")
from asmgen import *

NAME = "recurrent_scan__mha_block_cached__glu_gated_swiglu__prompt"
KN = NAME + "_kernel"
WS_ST, WS_FH, WS_FO, WS_FG, WS_FS = 0, 0x8000, 0x10000, 0x18000, 0x20000
WS_B, WS_X = 0x200000, 0x2000000
BSTRIDE = 184 * 1024
LOG2E = 1.4426950408889634
OOB = 0x7ffffff0
def f32(x): return "0x%08x" % struct.unpack("<I", struct.pack("<f", x))[0]
OPT = dict(stamp=False, early=7, pollstage=3, polld=1, htrip=2, flagstage=0, osr=1, osg=4, fgstage=5, fsstage=11, lead=5, ramp=0, i3gap=6, tq0=0, pa=.1, pb=.75, pc=.4, x2o=.15, x3a=.92, nh=3, nhS=4, sthiS=.45, pre="Q0 S", sthi=.2,
    sch=[(.05,'W1 r1 G1 Q1'),(.75,'x1 W2'),('o',1,1.45,1.65),(0,'r2 G2 W3 A'),(2.25,'x2 W4 G3 Q2'),('o',2,3.05,3.25),(0,'r3 Q3 C'),(3.7,'x3 W5'),(4.5,'W6'),('o',3,4.6,4.9)], clrpos=(7, 5), asat=(-9, -9, -9, -9, 0, 0, 1, 1, 2, 2, 3, 3, 4, 4, 6, 5), bsat=(0, 0, 0, 0, 0, 2, 2, 3, 4, 6, 6, 7, 8, 10, 10, 11), gld=4, gck=7)

L_K, L_SP, L_V = 0, 65536, 98304
sX, sWQ, sW1, sW3, sK, sV, sB, sH, sWS, sDBG, sWO, sW2, sOut = range(4, 56, 4)
sHead, sQb, sWave, sW8k, sW4k, sXb, sKo, sVo, sCnt, sT, sT2, sWQo, sW13o, sBo, sFB, sW16k = range(56, 72)
sTr, sTc, sSp = 93, 94, 95
sTW, sT2W = 100, 101
sFs, sFv = 92, sOut + 2
vL16, vKA, vVA, vDK, vDV, vIDX, vT = 1, 2, 6, 14, 18, 20, 24
vS, vNM = 32, 48
def Q(t, ds): return 64 + (t * 4 + ds) * 4
def P(pb, kk, t): return 128 + pb * 64 + (t * 4 + kk) * 4
def O(dt, t): return (dt * 4 + t) * 4
def VF(b, kk): return (128 + b * 16 if b < 4 else 148 + b * 16) + kk * 4
aL, aONES = 192, 208
def KF(b, ds): return 212 + b * 16 + ds * 4
aCHK, aZ = 244, 248
vWQA, vW13A, vDQ, vD13, vXA, vDX = 24, 28, 32, 36, 40, 44

def SR(s): return f"s[{s}:{s+3}]"
def MF(d, a, bb, c): return Ins(f"v_mfma_f32_16x16x32_bf16 {d}, {a}, {bb}, {c}")
def II(txt, tag=None): return [Ins(x, tag=tag) for x in txt.split("\n") if x.strip()]
def srd_fin(b, d, nrec):
    b.e(f"s_and_b32 s{d+1}, s{d+1}, 0xffff\ns_mov_b32 s{d+2}, {nrec}\ns_mov_b32 s{d+3}, 0x20000")
def ptr_add(b, d, off): b.e(f"s_add_u32 s{d}, s{d}, {off}\ns_addc_u32 s{d+1}, s{d+1}, 0")

def stamp_ins(i):
    if not OPT["stamp"] or i is None: return []
    return II(f"s_waitcnt lgkmcnt(0)\ns_memtime s[96:97]\ns_memrealtime s[98:99]\ns_waitcnt lgkmcnt(0)\ns_mov_b32 s{72+2*i}, s96\ns_mov_b32 s{73+2*i}, s98")
_jit = [0]
def jitter(b, wave=False):
    if not OPT.get("jit"): return
    _jit[0] += 1; n = _jit[0]
    b.e(f"s_waitcnt lgkmcnt(0)\ns_memtime s[96:97]\ns_waitcnt lgkmcnt(0)\ns_lshr_b32 s96, s96, {4 if wave else 14}\ns_add_u32 s96, s96, s2\ns_mul_i32 s96, s96, 0x9e3779b1\ns_lshr_b32 s96, s96, 16\ns_mul_i32 s96, s96, {OPT['jit'] // (8 if wave else 1)}\ns_lshr_b32 s96, s96, 16\ns_add_u32 s96, s96, 1")
    b.e(f"L_jit{n}:\ns_sleep 1\ns_sub_u32 s96, s96, 1\ns_cmp_lg_u32 s96, 0\ns_cbranch_scc1 L_jit{n}")
STAMPS = {}
def stamp(b, name):
    b.ext(stamp_ins(STAMPS.get(name)))
    if name in ("karg", "projend", "last", "tail0", "s0", "s6", "s13"): jitter(b)
    if name in ("p0", "att0", "loop", "attend", "send") or re.fullmatch(r"[gs]\d+", name): jitter(b, True)

class Gap:
    def __init__(self, m): self.m = m; self.scal = []; self.vec = []; self.load = 0
def cost_of(ins): return 2 if (ins.kind == "trans" or ins.is_vmem) else (0 if ins.kind in ("salu", "wait", "sctl", "label") else 1)
def is_ds(x): return x.kind in ("dsread", "dswrite")
def dep(a, b): return bool(a.writes & (b.reads | b.writes)) or bool(a.reads & b.writes)
class TL:
    def __init__(self): self.g = []
    def add(self, m):
        gp = Gap(m); self.g.append(gp)
        if m.op.startswith("v_smfmac"): gp.load = 1
        if "32x32" in m.op: gp.load = -4
        return len(self.g) - 1
    def pen(self, i, ins):
        gp = self.g[i]; l = gp.load + cost_of(ins)
        if is_ds(ins) and any(x.is_vmem for x in gp.vec): l += OPT.get("vmpen", .5)
        if is_ds(ins):
            if any(is_ds(x) for x in gp.vec): l += 1
            if any(x.is_valu and dep(x, ins) for x in gp.vec): l += 2
        return l
    def vec_at(self, i, ins):
        gp = self.g[i]; k = len(gp.vec)
        if is_ds(ins) or ins.is_vmem:
            while k > 0 and gp.vec[k - 1].is_valu and not dep(gp.vec[k - 1], ins): k -= 1
        gp.vec.insert(k, ins); gp.load += cost_of(ins)
    def vec_in(self, lo, hi, items):
        extra = {i: 0 for i in range(lo, hi + 1)}
        cand = []
        for it in items:
            i = min(extra, key=lambda k: (max(self.pen(k, it) + extra[k], 2), self.pen(k, it) + extra[k] if not OPT.get("pack") else 0, k)); cand.append(i); extra[i] += 2
        cand.sort()
        for i, it in zip(cand, items): self.vec_at(i, it)
        return cand
    def scal_at(self, i, ins, later=True):
        while self.g[i].scal: i += 1 if later else -1
        self.g[i].scal.append(ins); return i
    def spread(self, lo, hi, groups):
        n = sum(len(g[1]) for g in groups); k = 0; prev = lo - 3
        for grp in groups:
            sc, ve, post = grp
            for x in ve: x.grp = grp; x.role = "vec"
            first = True
            for it in ve:
                tgt = lo + (hi - lo) * k // max(n - 1, 1); k += 1
                mn = prev + 1
                if first:
                    i = max(prev + 1, tgt - len(sc) - 1)
                    for x in sc: i = self.scal_at(i, x) + 1
                    mn = max(mn, i); first = False
                cands = [j for j in range(max(mn, tgt - 1), max(mn, tgt - 1) + 4) if j < len(self.g)]
                j = min(cands, key=lambda z: (self.g[z].load, abs(z - tgt)))
                self.vec_at(j, it); prev = j
            for x in post: prev = self.scal_at(prev + 1, x)
        return prev
    def stream(self, lo, hi, items, cap=2):
        i = lo; items = list(items)
        while items and i <= hi:
            it = items[0]; c = cost_of(it)
            if c == 0:
                i += 1
                while i <= hi and self.g[i].scal: i += 1
                if i > hi: break
                self.g[i].scal.append(it); items.pop(0); continue
            if self.pen(i, it) <= cap: self.vec_at(i, it); items.pop(0)
            else: i += 1
        return items
    def sched(self, lo, hi, items, look=70, lat=6):
        items = list(items); rw = {}; pos = {}
        for x in items:
            r, w = set(x.reads), set(x.writes)
            if x.waitfor is not None:
                for y in items:
                    if y.tag is not None and any(y.tag in t for t in x.waitfor.values()): r |= y.writes; w |= y.writes
                r |= getattr(x, "guards", set()); w |= getattr(x, "guards", set())
            if x.is_vmem: r.add("vm"); w.add("vm")
            if x.kind == "salu": r.add("scc"); w.add("scc")
            rw[id(x)] = (r, w)
        dp = lambda a, b: bool(rw[id(a)][1] & (rw[id(b)][0] | rw[id(b)][1])) or bool(rw[id(a)][0] & rw[id(b)][1])
        placed = []
        def ready(k, i):
            x = items[k]
            if any(dp(y, x) for y in items[:k]): return False
            for y in placed[-40:]:
                if not dp(y, x): continue
                d = 0
                if cost_of(x) == 0 or is_ds(x) or x.is_vmem: d = 1 if cost_of(y) > 0 or cost_of(x) == 0 else 0
                if x.waitfor is not None and is_ds(y): d = lat
                if (getattr(x, "dpp", False) or getattr(x, "permlane", False)) and y.is_valu: d = 2
                if i < pos[id(y)] + d: return False
            return True
        for i in range(lo, hi + 1):
            for want in (0, 2, 1, 1, 1, 1, 1, 1):
                for k in range(min(look, len(items))):
                    x = items[k]
                    if cost_of(x) != want: continue
                    if (self.g[i].scal if want == 0 else self.pen(i, x) > 2) or not ready(k, i): continue
                    if want == 0: self.g[i].scal.append(x)
                    else: self.vec_at(i, x)
                    pos[id(x)] = i; placed.append(x); items.pop(k); break
        return items
    def emit(self, lo, hi, name):
        b = Block(); b.name = name
        for gp in self.g[lo:hi]:
            if gp.m is not None: b.add(gp.m)
            b.ext(gp.scal); b.ext(gp.vec)
        return b

SLOW = []
def poll_check(name, vreg, load_txt, ready_cmp):
    inl = II(ready_cmp) + II(f"s_cbranch_scc0 L_spin_{name}\nL_back_{name}:")
    sl = Block(); sl.name = "spin" + name
    sl.e(f"L_spin_{name}:\ns_mov_b32 s3, 0x40000\nL_spin2_{name}:\ns_sleep {OPT.get('slp', 2)}\n{load_txt}\ns_waitcnt vmcnt(0)\ns_sub_u32 s3, s3, 1\ns_cmp_eq_u32 s3, 0\ns_cbranch_scc1 L_back_{name}")
    sl.e(ready_cmp); sl.e(f"s_cbranch_scc0 L_spin2_{name}\ns_branch L_back_{name}")
    SLOW.append(sl)
    return inl

def dma_K(half, buf, tag):
    return (II(f"s_add_u32 m0, s{sW8k}, {L_K + buf*32768 + half*4096}"),
            [Ins(f"buffer_load_dwordx4 v{vDK+p}, {SR(sK)}, s{sKo} offen offset:{p*1024} lds", tag=tag) for p in range(4)],
            II(f"s_add_u32 s{sKo}, s{sKo}, {4096 if half == 0 else 28672}"))
def dma_V(half, buf, tag):
    return (II(f"s_add_u32 m0, s{sW8k}, {L_V + buf*32768 + half*4096}"),
            [Ins(f"buffer_load_dwordx4 v{vDV+(p&1)}, {SR(sV)}, s{sVo} offen offset:{p*1024} lds", tag=tag) for p in range(4)],
            II(f"s_add_u32 s{sVo}, s{sVo}, {4096 if half == 0 else 28672}"))
def emit_grp(b, d): b.ext(d[0]); b.ext(d[1]); b.ext(d[2])
def check_groups(trace):
    last = {}; cnt = {}
    for x in trace:
        g = getattr(x, "grp", None)
        if g is not None and x.role == "vec":
            for r in x.reads:
                ws_ = [sc for sc in g[0] if r in sc.writes]
                if ws_: assert last.get(r) is ws_[-1], ("group scalar clobbered", x.text, last.get(r))
            for sc in g[2]:
                for r in sc.writes & x.reads:
                    key = (id(g), r)
                    if x is g[1][0]: cnt[key] = last.get(r)
                    assert last.get(r) is cnt[key] and (len(g[1]) == 1 or last.get(r) is not sc), ("post scalar order", x.text)
        for r in x.writes:
            if r[0] == "s" or r == "m0": last[r] = x
def kreads(g, buf, fb, tag):
    return [Ins(f"ds_read_b128 {A(KF(fb,ds),4)}, v{vKA+ds} offset:{buf*32768+g*4096}", tag=tag) for ds in range(4)]
def vreads(dt, buf, fb, tag):
    return [Ins(f"ds_read_b64_tr_b16 {A(VF(fb,kk)+2*kh,2)}, v{vVA+dt} offset:{buf*32768+(32*kk+16*kh)*256}", tag=tag) for kk in range(4) for kh in range(2)]
def snake(t): return range(4) if t % 2 == 0 else range(3, -1, -1)
def qk_chain(t, fb, c0):
    d = V(vS + 4 * t, 4)
    return [MF(d, A(KF(fb, ds), 4), V(Q(t, ds), 4), c0 if n == 0 else d) for n, ds in enumerate(snake(t))]
def pv_chain(dt, t, fb, pb):
    d = A(O(dt, t), 4)
    return [MF(d, A(VF(fb, kk), 4), V(P(pb, kk, t), 4), d) for kk in snake(t)]
def rs(t, kp, pb): return Ins(f"v_smfmac_f32_16x16x64_bf16 {A(aL+4*t,4)}, {A(aONES,4)}, {V(P(pb,2*kp,t),8)}, v{vIDX}")

vDA, vB1, vPoll, vPA = 14, 30, 29, 23
vRAs, vRB, vRAg = 6, (12, 13, 20), 48
sM, sAo, sWOo, sW2o = sW4k, sT2, sWQo, sW13o
sBg, sQ0, sBt = sXb, sW1 + 3, sKo
sBs = [sDBG, sDBG + 1, sDBG + 2, sDBG + 3]
sXP = sH
sXW, sXR, sOo, sFl2 = sW16k, 92, sQ0, 99
sGk = list(range(sWQ, sWQ + 7))
sHp = list(range(sW3, sW3 + 4))
UNITS = []; USEQ = {}; RD = {}
def plan_units():
    for n in range(-1, 22):
        r = [("Ag", n + 1), ("Bg", n + 1)] if n < 6 else [("Bs", n - 6)]
        r = [("As", a) for a in range(16) if OPT["asat"][a] == n] + r if n == 6 else r + [("As", a) for a in range(16) if OPT["asat"][a] == n]
        RD[n] = list(range(len(UNITS), len(UNITS) + len(r))); UNITS.extend(r)
    RD[22] = []
    USEQ.update({u: n for n, u in enumerate(UNITS)})
    for a in range(16): assert OPT["asat"][a] <= 6 + a // 4
    assert OPT["asat"][14] >= 6 and max(OPT["asat"]) <= 9
def udma(n):
    kind, i = UNITS[n] if isinstance(n, int) else n
    m0 = f"s_add_u32 m0, s{sM}, {uslot((kind, i))*16384}\n"; tag = f"U{n}" if isinstance(n, int) else f"E{i}"
    rot = OPT.get("rot", 1)
    if kind[0] == "A":
        sr, so = (sW2, sW2o) if kind == "Ag" else (sWO, sWOo)
        if kind == "As": ad = f"s_xor_b32 s{sAo}, s{so}, {i*65536}"
        else: ad = f"s_lshl_b32 s{sAo}, s{sGk[i]}, 5\ns_add_u32 s{sAo}, s{sAo}, s{so}"
        return (II(m0 + ad),
                [Ins(f"buffer_load_dwordx4 v{vDA+p}, {SR(sr)}, s{sAo} offen offset:{p*1024} lds", tag=tag) for p in range(4)], [])
    if kind == "Bg":
        return (II(m0 + f"s_add_u32 s{sBt}, s{sBg}, s{sGk[i]}"),
                [Ins(f"buffer_load_dwordx4 v{vL16 if p < 2 else vB1}, {SR(sB)}, s{sBt} offen offset:{p*1024} sc1 lds", tag=tag) for p in range(4)], [])
    bs, hp = sBs[(1, 2, 3, 0)[i >> 2]], sHp[i & 3]
    return (II(m0 + f"s_add_u32 s{sBt}, s{bs}, s{hp}"),
            [Ins(f"buffer_load_dwordx4 v{vL16}, {SR(sB)}, s{sBt} offen offset:{p*1024} sc1 lds", tag=tag) for p in range(4)], [])
XSLOT = {("As", 0): 0, ("As", 1): 1, ("As", 2): 4, ("As", 3): 5}
def uslot(u): return XSLOT[u] if u not in USEQ else USEQ[u] % 10
def uloc(u): sl = uslot(u); return sl // 4, (sl % 4) * 16384
_first = list(range(160, 192, 4)) + [0, 4, 16, 20, 32, 36, 48, 52]
ASREG = _first + [r for r in range(0, 256, 4) if r not in _first]
assert ASREG[56:60] == [224, 228, 232, 236]
def AS(v, ks): return ASREG[ks * 2 + v]
def AG(i, v, ks): return ("v", 32 + (v * 2 + ks) * 4) if i % 2 == 0 else ("a", 224 + (v * 2 + ks) * 4)
def BF(n, m): return 64 + (n & 1) * 64 + m * 4
def ACG(j, v): return 192 + (j * 2 + v) * 4
def ACS(q, v): return 32 + (q * 2 + v) * 4
def ureads(u, vRAs=vRAs):
    kind, i = UNITS[u] if isinstance(u, int) else u
    st, o = uloc((kind, i))
    if kind == "As":
        return [Ins(f"ds_read_b64_tr_b16 {A(AS(v,2*i+ks)+2*kh,2)}, v{vRAs+2*st+v} offset:{o+ks*8192+kh*4096}", tag="R") for ks in range(2) for v in range(2) for kh in range(2)]
    if kind == "Ag":
        return [Ins(f"ds_read_b64_tr_b16 {R(AG(i,v,ks)[0], AG(i,v,ks)[1]+2*kh, 2)}, v{vRAg+4*st+2*kh+v} offset:{o+ks*8192}", tag="R") for v in range(2) for ks in range(2) for kh in range(2)]
    n = i if kind == "Bg" else 7 + i
    return [Ins(f"ds_read_b128 {V(BF(n,m),4)}, v{vRB[st]} offset:{o+m*1024}", tag="R") for m in range(16)]
OSTORES = []
EARLY = []

def gen_attention(l0items):
    tl = TL()
    phases = [-1, 0, 1, 2, 3, 15]
    VPOS = OPT.get("vmpos", (5, 13, 21, 29))
    start = {}; stepb = {}
    for p in phases:
        start[p] = len(tl.g)
        if p == 15:
            def qk(t, s):
                d = V(vS + 4 * (2 * (s & 1) + (t & 1)), 4)
                for n, ds in enumerate(snake(t)): tl.add(MF(d, A(KF(s & 1, ds), 4), V(Q(t, ds), 4), V(vNM + 4 * t, 4) if n == 0 else d))
            def pv(dt, t, vs, pb, fwd):
                d = A(O(dt, t), 4)
                for kk in (range(4) if fwd else range(3, -1, -1)): tl.add(MF(d, A(VF(vs, kk), 4), V(P(pb, kk, t), 4), d))
            FR = [(i, t) for h_ in (0, 2) for i in range(4) for t in (h_, h_ + 1)]
            ost = lambda n: 128 + (FR[n][1] * 4 + FR[n][0]) * 4
            mk = lambda n: MF(A(aCHK, 4), A(aZ, 4), V(ost(n), 4), "0" if n == 0 else A(aCHK, 4))
            xb = {}; cdone = {}; chkpos = {}
            def chk(n): chkpos[n] = tl.add(mk(n))
            v3 = lambda dt: (0, 4, 1, 5)[dt & 3]
            for s in range(8):
                xb[s] = len(tl.g); qk(0, s); qk(1, s)
                for t in range(4): pv(s, t, s & 1, 0, 1 - (t & 1))
                tl.add(rs(s >> 1, s & 1, 0))
            for s in range(8):
                xb[8 + s] = len(tl.g); qk(2, s); qk(3, s)
                pv(s, 0, s & 1, 1, 1)
                if s & 1: cdone[s - 1] = len(tl.g) - 1
                pv(s, 1, s & 1, 1, 0)
                if s & 1: cdone[s] = len(tl.g) - 1
                if s == 0:
                    for t in (0, 1): tl.add(rs(t, 0, 1)); tl.add(rs(t, 1, 1))
                if s >= 4: chk(s - 4)
            for n in range(8, 16):
                i, t = FR[n]; xb[8 + n] = len(tl.g)
                if i == 0: tl.add(rs(t, 0, 1)); tl.add(rs(t, 1, 1))
                a_, b_ = (2 * i, 2 * i + 1) if t == 2 else (2 * i + 1, 2 * i)
                pv(a_, t, v3(a_), 1, 1); pv(b_, t, v3(b_), 1, 0); cdone[n] = len(tl.g) - 1
                chk(n - 4)
            xb[24] = len(tl.g)
            continue
        for s in range(8):
            stepb[p, s] = len(tl.g)
            if p != 15:
                for t in range(4):
                    for m in qk_chain(t, s & 1, V(vNM + 4 * t, 4)): tl.add(m)
            if p == -1:
                tl.add(Ins(f"v_mfma_f32_32x32x16_bf16 {A(16*s,16)}, {A(aZ,4)}, {A(aZ,4)}, 0"))
                if s == 0: tl.add(Ins(f"v_mfma_f32_32x32x16_bf16 {A(aL,16)}, {A(aZ,4)}, {A(aZ,4)}, 0"))
            else:
                for t in range(4):
                    for m in pv_chain(s, t, s & 1, p & 1): tl.add(m)
                if p != 15:
                    tl.add(rs(s >> 1, s & 1, p & 1))
    end = len(tl.g)
    nxt = {p: (start[phases[i + 1]] if i + 1 < len(phases) else end) for i, p in enumerate(phases)}
    for p in phases:
        if p == 15: continue
        pb = (p + 1) & 1
        for s in range(8):
            b0 = stepb[p, s]; nb = stepb[p, s + 1] if s < 7 else nxt[p]
            for t in range(4):
                sr = vS + 4 * t
                ex = [Ins(f"v_exp_f32 v{sr+r}, v{sr+r}") for r in range(4)]
                pd = P(pb, s >> 1, t) + 2 * (s & 1)
                cv = [Ins(f"v_cvt_pk_bf16_f32 v{pd+h}, v{sr+2*h}, v{sr+2*h+1}") for h in range(2)]
                if p >= 0:
                    o = b0 + 8 * t + (1 if t == 3 else 0)
                    pe = [o + 8 + 2 * r for r in range(4)]; pc = [o + 11, o + 15]
                else:
                    pe = [b0 + 4 * t + 8 + r for r in range(4)]; pc = [b0 + 4 * t + 10, b0 + 4 * t + 12]
                    if s == 7:
                        pe = [min(x, nb - 1) for x in pe]; pc = [min(x, nb - 1) for x in pc]
                        if t == 3: pe = [nb + 0, nb + 2, nb + 4, nb + 6]; pc = [nb + 3, nb + 7]
                seq = sorted([(pe[0],0,ex[0]),(pe[1],1,ex[1]),(pc[0],3 if p < 0 else 2,cv[0]),(pe[2],2.5,ex[2]),(pe[3],4,ex[3]),(pc[1],5,cv[1])], key=lambda z: (z[0], z[1]))
                for pos, _, ins in seq: tl.vec_at(pos, ins)
    for p in phases:
        if p == 15: continue
        if 0 <= p < 15:
            grps = [dma_K(0, p & 1, "DK"), dma_K(1, p & 1, "DK"), dma_V(0, (p + 1) & 1, "DV"), dma_V(1, (p + 1) & 1, "DV")]
            for s in range(8):
                tl.scal_at(stepb[p, s] + 15, W(lgkm=f"V{s}"), later=False)
                tl.scal_at(stepb[p, s] + 31, W(lgkm=f"K{(s+1)&7}"), later=False)
            if OPT.get("kvtouch", 1): grps.append(([], II(f"buffer_load_dword a252, v28, {SR(sK if p % 2 == 0 else sV)}, s{sKo if p % 2 == 0 else sVo} offen"), []))
            so, sr = (sTW, sWO) if p % 2 == 0 else (sT2W, sW2)
            grps.append((II(f"s_cmp_le_u32 s{sCnt}, {OPT.get('wtrip', 2)}\ns_cselect_b32 s{sT}, s{so}, 0x40000000"), II(f"buffer_load_dword a252, v{30 if p % 2 == 0 else 29}, {SR(sr)}, s{sT} offen"),
                         II(f"s_add_u32 s{so}, s{so}, {0x4000 if (p % 2 == 0 and OPT.get('wo2', 1)) else 0x2000}\ns_and_b32 s{so}, s{so}, {0x7fff if p % 2 == 0 else 0x3fff}")))
            if p % 2 == 0 and OPT.get("cpl", 1): grps.append(([], II("global_load_dword a252, v[24:25], off"), []))
            if p % 2 == 1:
                grps.append(([], II(f"buffer_store_dword v22, v21, {SR(sWS)}, 0 offen sc1"), []))
                tl.vec_at(stepb[p, 7] + 3, Ins("v_add_u32 v22, 1, v22"))
            clr = II(f"buffer_store_dwordx4 {A(aCHK,4)}, v{vL16}, {SR(sXP)}, s{sT2} offen offset:{1024*(p&1)} sc1")
            if OPT.get("clrpos") is not None: tl.vec_at(stepb[p, OPT["clrpos"][0]] + OPT["clrpos"][1], clr[0])
            elif not OPT.get("noclr"): grps.append(([], clr, []))
            if p % 2 == 0:
                q = stepb[p, 0] + 6
                for x in II(f"s_cmp_lt_u32 s{sCnt}, 5\ns_subb_u32 s3, s{sCnt}, 0\ns_and_b32 s{sT2}, s3, 3\ns_lshl_b32 s{sT2}, s{sT2}, 3\ns_or_b32 s{sT2}, s{sT2}, s3\ns_lshl_b32 s{sT2}, s{sT2}, 13\ns_xor_b32 s{sT2}, s{sT2}, s{sXR}\ns_cmp_gt_u32 s{sCnt}, 1\ns_cselect_b32 s{sT2}, s{sT2}, 0x40000000"):
                    q2 = tl.scal_at(q, x); assert q2 == q; q += 1
            if p % 2 == 0 and OPT.get("otouch"):
                grps.append((II(f"s_sub_u32 s3, s{sCnt}, {OPT['otouch']}\ns_mul_i32 s{sT}, s3, {BSTRIDE}\ns_add_u32 s{sT}, s{sT}, s{sBo}\ns_cmp_lt_u32 s3, 4\ns_cselect_b32 s{sT}, s{sT}, 0x40000000"), II(f"buffer_load_dword a252, v26, {SR(sB)}, s{sT} offen"), []))
            if p % 2 == 1 and OPT.get("htouch", 1):
                grps.append((II(f"s_cmp_eq_u32 s{sCnt}, {OPT.get('htrip', 1)}\ns_cselect_b32 s{sT}, s{sBg}, 0x40000000"), II(f"buffer_load_dword a252, v27, {SR(sB)}, s{sT} offen"), []))
            k = 0
            for grp in grps:
                for j, x in enumerate(grp[1]):
                    gi = stepb[p, k // len(VPOS)] + VPOS[k % len(VPOS)]; k += 1
                    if j == 0:
                        q = gi
                        for y in reversed(grp[0]):
                            q2 = tl.scal_at(q - 1, y, later=False); assert len(grp[0]) == 1 or q2 == q - 1; q = q2
                    tl.vec_at(gi, x); x.grp = grp; x.role = "vec"
                for x in grp[2]: gi = tl.scal_at(gi + 1, x)
            assert gi < stepb[p, 7]
            e_ = stepb[p, 7]
            if p % 2 == 1:
                tl.scal_at(e_ + 29, Ins(f"s_sub_u32 s{sCnt}, s{sCnt}, 1")); tl.scal_at(e_ + 30, Ins(f"s_cmp_lg_u32 s{sCnt}, 0")); tl.scal_at(e_ + 32, Ins("s_cbranch_scc1 L_att_loop"))
        for s in range(8):
            b0 = stepb[p, s]; nb = stepb[p, s + 1] if s < 7 else nxt[p]
            ns, npz = (s + 1) & 7, (p + 1 if s == 7 else p)
            if s == 7:
                i = tl.scal_at(b0 + (5 if p >= 0 else 4), W(lgkm=["V7", "K7"], vm=["DK", "DV"]))
                if not (OPT.get("nobar") and p >= 0): tl.scal_at(i + 1, Ins("s_barrier"))
            if p >= 0:
                kr = kreads(ns, (npz + 1) & 1, ns & 1, f"K{ns}"); vr = vreads(ns, npz & 1, ns & 1, f"V{ns}")
                free = [o for o in range(7 if s == 7 else 1, 32, 2) if not any(x.is_vmem for x in tl.g[b0 + o].vec)]
                assert len(free) >= 12
                for x, o in zip(kr + vr, free): tl.vec_at(b0 + o, x)
            else:
                tl.vec_in(b0 + 6, b0 + 10, kreads(ns, (npz + 1) & 1, ns & 1, f"K{ns}"))
                if s == 7: tl.vec_in(b0 + 10, nb - 1, vreads(0, 0, 0, "V0"))
                tl.scal_at(nb - 1, W(lgkm=f"K{ns}"), later=False)
    rot = OPT.get("rot", 1)
    sc = f"""s_add_u32 s{sXP}, s{sWS}, {WS_X}
s_addc_u32 s{sXP+1}, s{sWS+1}, 0
s_mov_b32 s{sXP+2}, 0x1000000
s_lshl_b32 s{sT}, s{sTr}, 2
s_add_u32 s{sT}, s{sT}, s{sTc}
s_lshl_b32 s{sT}, s{sT}, 2
s_add_u32 s{sT}, s{sT}, s{sSp}
s_lshl_b32 s{sT}, s{sT}, 16
s_lshl_b32 s{sXR}, s{sWave}, 11
s_add_u32 s{sXR}, s{sXR}, s{sT}
"""
    sc += f"""s_lshl_b32 s{sT}, s{sTc}, 8
s_lshl_b32 s{sWOo}, s{sWave}, 14
s_add_u32 s{sWOo}, s{sWOo}, s{sT}
s_mul_i32 s{sW2o}, s{sSp}, {448*1024}
s_add_u32 s{sW2o}, s{sW2o}, s{sWOo}
s_lshl_b32 s{sT}, s{sSp}, 20
s_add_u32 s{sWOo}, s{sWOo}, s{sT}
s_lshr_b32 s{sQ0}, s{sTr}, 1
s_lshl_b32 s{sQ0}, s{sQ0}, 2
s_and_b32 s{sT}, s{sTr}, 1
s_add_u32 s{sQ0}, s{sQ0}, s{sT}
s_lshl_b32 s{sQ0}, s{sQ0}, 2
s_xor_b32 s{sT}, s{sWave}, s{sSp}
s_and_b32 s{sT2}, s{sT}, 2
s_add_u32 s{sT}, s{sT}, s{sT2}
s_lshl_b32 s{sT}, s{sT}, 1
s_add_u32 s{sT}, s{sT}, s{sQ0}
s_mul_i32 s{sBg}, s{sT}, {BSTRIDE}
s_mul_i32 s{sT}, s{sSp}, {14*1024}
s_add_u32 s{sT}, s{sT}, {128*1024}
s_add_u32 s{sBg}, s{sBg}, s{sT}
s_lshl_b32 s{sT}, s{sHead}, 12
s_add_u32 s{sBo}, s{sBo}, s{sT}
s_mul_i32 s{sGk[0]}, s{sTc}, {4096*rot}
s_mul_i32 s{sHp[0]}, s{sTc}, {8192*rot}
s_lshl_b32 s{sT2}, s{sHp[0]}, 5
s_xor_b32 s{sWOo}, s{sWOo}, s{sT2}
"""
    for i in range(1, 7): sc += f"s_add_u32 s{sGk[i]}, s{sGk[i-1]}, 2048\ns_cmp_eq_u32 s{sGk[i]}, {7*2048}\ns_cselect_b32 s{sGk[i]}, 0, s{sGk[i]}\n"
    for i in range(1, 4): sc += f"s_xor_b32 s{sHp[i]}, s{sHp[0]}, {8192*i}\n"
    sc += f"""s_lshr_b32 s{sT}, s{sWave}, 1
s_mul_i32 s{sT}, s{sT}, {BSTRIDE}
s_and_b32 s3, s{sWave}, 1
s_lshl_b32 s3, s3, 12
s_add_u32 s3, s3, s{sT}
s_lshl_b32 s{sT}, s{sSp}, 15
s_add_u32 s3, s3, s{sT}
"""
    for lam in (3, 2, 1, 0):
        sc += f"s_xor_b32 s{sT}, s{sSp}, {lam}\ns_and_b32 s{sT2}, s{sT}, 2\ns_add_u32 s{sT}, s{sT}, s{sT2}\ns_lshl_b32 s{sT}, s{sT}, 1\ns_add_u32 s{sT}, s{sT}, s{sQ0}\ns_mul_i32 s{sBs[lam]}, s{sT}, {BSTRIDE}\ns_add_u32 s{sBs[lam]}, s{sBs[lam]}, s3\n"
    sc += f"""s_lshl_b32 s{sOo}, s{sT}, 14
s_lshl_b32 s{sT}, s{sTc}, 8
s_add_u32 s{sOo}, s{sOo}, s{sT}
s_lshl_b32 s{sT}, s{sWave}, 6
s_add_u32 s{sOo}, s{sOo}, s{sT}
s_add_u32 s{sXW}, s{sOo}, 16384
"""
    if OPT.get("noBg"): sc += f"s_mov_b32 s{sBg}, 0x40000000\n"
    if OPT.get("noOS"): sc += f"s_mov_b32 s{sBo}, 0x40000000\n"
    left = tl.sched(start[-1], nxt[-1] - 1, l0items + II(sc), look=200)
    print("first phase: left over", len(left), file=sys.stderr)
    tl.g[nxt[-1] - 1].vec += left
    T = vT
    for x in range(16):
        s_ = x & 7; b0, nb = xb[x], xb[x + 1]
        for h_ in range(2):
            t = (x >> 3) * 2 + h_; sr = vS + 4 * (2 * (s_ & 1) + h_); pd = P(1, s_ >> 1, t) + 2 * (s_ & 1); o = (nb if x >= 8 else b0 + 16) if h_ else b0 + 8
            for r in range(4): tl.vec_at(o + 2 * r, Ins(f"v_exp_f32 v{sr+r}, v{sr+r}"))
            for h in range(2): tl.vec_at(o + 3 + 4 * h, Ins(f"v_cvt_pk_bf16_f32 v{pd+h}, v{sr+2*h}, v{sr+2*h+1}"))
    for x in range(16):
        tl.scal_at(xb[x] + 7, W(lgkm=f"V{x}"))
        if x < 15: tl.scal_at(xb[x + 1] - 1, W(lgkm=f"K{x+1}"))
    for x in range(16, 24, 2): tl.scal_at(xb[x] - 1, W(lgkm=f"V{x}"))
    tl.scal_at(xb[4] + 8, W(vm="E1")); tl.scal_at(xb[4] + 9, Ins("s_barrier"))
    tl.scal_at(xb[7] + 8, W(vm=["DV", "E3"], lgkm="R")); tl.scal_at(xb[7] + 9, Ins("s_barrier"))
    tl.scal_at(xb[15] + 8, W(lgkm="R")); tl.scal_at(xb[15] + 9, Ins("s_barrier"))
    ld1 = f"buffer_load_dword v{vPoll}, v23, {SR(sWS)}, 0 offen sc1"
    chk1 = poll_check("h", vPoll, ld1, f"v_cmp_gt_u32 vcc, v31, v{vPoll}\ns_nop 0\ns_cmp_eq_u64 vcc, 0")
    def put(grps, slots):
        slots = list(slots); prev = slots[0] - 5
        for g in grps:
            for x in g[1]:
                gi = slots.pop(0)
                if x is g[1][0] and g[0]:
                    free = [q for q in range(max(prev + 1, gi - 5), gi) if not tl.g[q].scal][-len(g[0]):]
                    free = sorted(free + [gi - 1] * (len(g[0]) - len(free)))
                    for y, q in zip(g[0], free): tl.g[q].scal.append(y)
                tl.vec_at(gi, x); x.grp = g; x.role = "vec"; prev = gi
            for y in g[2]: tl.scal_at(gi + 1, y)
    assert [UNITS[u][0] for u in range(7)] == ["Ag", "Bg", "Ag", "Bg", "As", "As", "Ag"]
    sl = [xb[x] + o for x in range(8) for o in (1, 5, 13, 21)]
    put([dma_V(0, 1, "DV"), udma(("As", 0)), udma(("As", 1)), dma_V(1, 1, "DV"), udma(("As", 2)), udma(("As", 3)), ([], [Ins(ld1, tag="C1")], [])], sl[1:])
    gp = tl.g[xb[9] + 4]; gp.vec += [W(vm="C1")] + chk1; gp.load += 1
    put([udma(0), udma(6), udma(1)], [xb[7] + 13, xb[7] + 17, xb[7] + 21, xb[8] + 1, xb[8] + 5, xb[8] + 9, xb[8] + 13, xb[9] + 1, xb[9] + 5, xb[9] + 9, xb[9] + 13, xb[10] + 1])
    EARLY[:] = [0, 1, 6] + [2, 3, 4, 5][:OPT.get("e3", 4)]
    put([udma(u) for u in EARLY[3:]], [xb[x] + 6 for x in range(16, 24)] if len(EARLY) <= 5 else [xb[x] + o for x in range(16, 24) for o in ((1, 5) if x == 16 else (0, 6))])
    su = II(f"""v_bfe_u32 v{T}, v0, 4, 2
v_mul_u32_u24 v{T}, 768, v{T}
v_add_u32 v{vDA}, v{vDV}, v{T}
v_add_u32 v{vDA+1}, v{vDV+1}, v{T}
v_add_u32 v{vDA+1}, 3072, v{vDA+1}
v_add_u32 v{vDA+2}, 6144, v{vDA}
v_add_u32 v{vDA+3}, 6144, v{vDA+1}
v_add_u32 v{vB1}, {BSTRIDE-2048}, v{vL16}""")
    su2 = II(f"""s_lshl_b32 s{sT}, s{sWave}, 6
s_or_b32 s{sT}, s{sT}, {L_V}
v_xor_b32 v25, s{sT}, v{vVA}
v_xor_b32 v26, s{sT}, v{vVA+1}
v_add_u32 v27, 0x10000, v25
v_add_u32 v28, 0x10000, v26""")
    for n in range(16):
        i, t = FR[n]
        OSTORES.append((II(f"s_add_u32 s{sCnt}, s{sBo}, {t*BSTRIDE}"),
                        [Ins(f"buffer_store_dwordx4 {V(ost(n),4)}, v{vL16}, {SR(sB)}, s{sCnt} offen offset:{1024*i} sc1", tag="OS")], []))
    ospos = {}
    for n in range(13):
        ospos[n] = xb[11 + n] + (9 if n < 5 else (9, 3, 2)[min(n - 5, 2)]); put([OSTORES.pop(0)], [ospos[n]])
    for x in range(15):
        nx = x + 1; b0, nb = xb[x], xb[nx]
        if x < 8:
            kr = kreads(nx & 7, 1, nx & 1, f"K{nx}"); vr = vreads(nx & 7, nx >> 3, nx & 1, f"V{nx}")
            if x == 0: tl.vec_in(b0 + 3, nb - 5, kr); tl.vec_in(b0 + 9, nb + 2, vr)
            elif x < 7: tl.vec_in(b0 + 3, nb - 2, kr + vr)
            else: tl.vec_in(b0, b0 + 7, kr); tl.vec_in(b0 + 11, nb + 3, vr)
        else:
            tl.vec_in(b0 + 3, b0 + 11, kreads(nx & 7, 1, nx & 1, f"K{nx}"))
            tl.vec_in(b0 + 8, nb + 2, vreads(nx & 7, 1, nx & 1, f"V{nx}"))
    for i in range(4):
        r = vreads(2 * i, 1, v3(2 * i), f"V{16+2*i}") + vreads(2 * i + 1, 1, v3(2 * i + 1), f"V{16+2*i}")
        tl.vec_in(xb[15] + 3 if i == 0 else xb[14 + 2 * i], xb[16 + 2 * i] - 3, r)
    left = tl.stream(xb[0], xb[1] + 4, su, cap=3); assert not left
    left = tl.stream(xb[2], xb[4], su2); assert not left
    tl.vec_in(xb[4] + 10, xb[7] + 1, ureads(("As", 0), 25) + ureads(("As", 1), 25))
    vRL = vNM
    def lr(t): return II(f"v_accvgpr_read_b32 v{vRL+4+t}, a{aL+4*t}\nv_accvgpr_read_b32 v{vRL+t}, a{aL+4*t+1}\nv_add_f32 v{vRL+4+t}, v{vRL+4+t}, v{vRL+t}\nv_rcp_f32 v{vRL+t}, v{vRL+4+t}")
    left = tl.stream(xb[9] + 4, xb[10] - 1, lr(0) + lr(1), cap=4); assert not left
    where = lambda y: max(q for q, gp in enumerate(tl.g) if any(x is y for x in gp.vec))
    lo = xb[10]; tail_ = []
    for n in range(16):
        i, t = FR[n]; o = ost(n); tb = 64 + 8 * (n & 1)
        ar = [(k, O(2 * i + (k >> 2), t) + (k & 3)) for k in range(8)]
        if t == 3: ar = ar[4:] + ar[:4]
        items = (lr(t) if n in (8, 9) else []) + II("\n".join(f"v_accvgpr_read_b32 v{tb+k}, a{a_}" for k, a_ in ar))
        items += II("\n".join(f"v_mul_f32 v{tb+k}, v{tb+k}, v{vRL+t}" for k, a_ in ar))
        items += II("\n".join(f"v_cvt_pk_bf16_f32 v{o+k}, v{tb+2*k}, v{tb+2*k+1}" for k in range(4)))
        lo = max(lo, cdone[n] + 2)
        if tail_ or lo >= end: tail_ += items; continue
        hi = min(ospos.get(n, end), chkpos.get(n, end + 1) - 1) - 1
        hi2 = min(hi, lo + (OPT.get("epspan", 17) if n < 6 else OPT.get("epspan3", 7)))
        for cap in (2, 3, 4, 5, 6, 7, 8):
            room = sum(max(0, cap - tl.g[q].load) for q in range(lo, hi2 + 1) if not any(x.is_vmem for x in tl.g[q].vec))
            if room >= len(items) + 2: break
        blocked = [q for q in range(lo, hi + 1) if any(x.is_vmem for x in tl.g[q].vec)]
        for q in blocked: tl.g[q].load += 10
        left = tl.stream(lo, hi, items, cap=cap)
        for q in blocked: tl.g[q].load -= 10
        if left: assert n >= 13, n; tail_ += left
        else: lo = where(items[-1])
        if n in (1, 3):
            q = where(items[7]) + 1; assert q + 12 < xb[15] + 2
            tl.vec_in(q, min(q + 24, xb[15] + 2), ureads(("As", 2 + n // 2), 25))
    print("ending: VALU left over", len(tail_), file=sys.stderr)
    blk = {p: tl.emit(start[p], nxt[p], f"att{p}") for p in phases}
    tx = lambda b: [(i.text, str(i.waitfor), i.tag) for i in b.ins]
    assert tx(blk[0]) == tx(blk[2]) and tx(blk[1]) == tx(blk[3])
    last = blk[15]
    for nm, x in (("x2", 8), ("x3", 16)):
        k_ = next(q for q, y in enumerate(last.ins) if y is tl.g[xb[x]].m); last.ins[k_:k_] = stamp_ins(STAMPS.get(nm))
    last.ins += tail_[:-12] + [mk(12)] + tail_[-12:-8] + [mk(13)] + tail_[-8:-4] + [mk(14)] + tail_[-4:]
    last.tailchk = mk(15)
    return blk[-1], blk[0], blk[1], last

PARTS = [("G", 0), ("Q", 0), ("G", 1), ("Q", 1), ("G", 2), ("G", 3), ("Q", 2), ("Q", 3)]
SLOT = lambda i: (L_V + 32768, L_SP, L_V)[i % 3]
vNMU, vAQ, vAE, vIR = 32, 36, 40, 44
def XB(c, t, ks): return (c & 1) * 64 + (t * 4 + ks) * 4
def WF(fb, ks): return 212 + fb * 16 + ks * 4
def pacc(kind, u, t):
    if kind == "G": return V(128 + (u & 1) * 64 + ((u >> 1) * 4 + t) * 4, 4)
    ds, hf = u >> 1, u & 1
    return V(Q(t, ds), 4) if hf == 0 else A(128 + (t * 4 + ds) * 4, 4)
def wdma(i):
    kind, c = PARTS[i]; base = SLOT(i); g = []
    if kind == "Q":
        for half in range(2):
            g.append((II(f"s_add_u32 m0, s{sW8k}, {base + half*4096}\ns_add_u32 s{sT}, s{sWQo}, {(c*128+16*half)*8192}"),
                      [Ins(f"buffer_load_dwordx4 v{vDQ+p}, {SR(sWQ)}, s{sT} offen offset:{p*1024} lds", tag=f"DW{i}") for p in range(4)], []))
    else:
        for k, sr in enumerate((sW1, sW3)):
            g.append((II(f"s_add_u32 m0, s{sW4k}, {base + k*16384}\ns_add_u32 s{sT}, s{sW13o}, {c*128*3584}"),
                      [Ins(f"buffer_load_dwordx4 v{vD13+p}, {SR(sr)}, s{sT} offen offset:{p*1024} lds", tag=f"DW{i}") for p in range(4)], []))
    return g
def xdma(c):
    return [(II(f"s_xor_b32 m0, s100, {t*4096}\ns_xor_b32 s{sT}, s101, {t*16384 + c*256}"),
             [Ins(f"buffer_load_dwordx4 v{vDX+p}, {SR(sX)}, s{sT} offen offset:{p*1024} lds", tag=f"DX{c}") for p in range(4)], []) for t in range(4)]
def xreads(c):
    return [Ins(f"ds_read_b128 {A(XB(c,t,ks),4)}, v{vXA+ks} offset:{t*4096}", tag=f"X{c}") for t in range(4) for ks in range(4)]

def gen_proj(stats, var):
    S_ = var == "S"
    O_ = lambda k, d: OPT.get(k + var, OPT.get(k, d))
    tiles = lambda i: [0, 1, 4, 5, 2, 3] if (S_ and PARTS[i][0] == "G") else list(range(8))
    base = {"G": L_V, "Q": L_SP}
    def wreads(i, u, tag):
        kind, c = PARTS[i]; off0 = SLOT(i) - base[kind]; assert 0 <= off0 <= 32768
        r = []
        for ks in range(4):
            for kh in range(2):
                if kind == "Q": ad, off = vWQA + (u >> 1), ks * 8192 + kh * 1024 + 8 * (u & 1)
                else: ad, off = vW13A + (u >> 1), ks * 4096 + kh * 512 + 16384 * (u & 1)
                r.append(Ins(f"ds_read_b64_tr_b16 {A(WF(u&1,ks)+2*kh,2)}, v{ad} offset:{off0+off}", tag=tag))
        return r
    first_reads = wreads(0, 0, "W0")
    tl = TL(); tb = {}
    for i, (kind, c) in enumerate(PARTS):
        for pos_, u in enumerate(tiles(i)):
            tb[i, pos_] = len(tl.g)
            for t in range(4):
                d = pacc(kind, u, t)
                for n, ks in enumerate(snake(t)):
                    tl.add(MF(d, A(WF(u & 1, ks), 4), A(XB(c, t, ks), 4), "0" if (c == 0 and n == 0) else d))
            if u < 2 or (S_ and kind == "G" and u >= 4):
                d = A(aL + (8 if kind == "Q" else 0) + 4 * u, 4) if u < 2 else V(176 + 4 * (u - 4), 4)
                for kp in range(2): tl.add(Ins(f"v_smfmac_f32_16x16x64_bf16 {d}, {A(aONES,4)}, {A(WF(u&1,2*kp),8)}, v{vIDX}"))
    end = len(tl.g)
    tb[8, 0] = end
    LAST = lambda i: tb[i, len(tiles(i)) - 1]
    extra_vm = {1: ["ST"], 7: ["DK0"]}
    for i, (kind, c) in enumerate(PARTS):
        for u in range(len(tiles(i))):
            b0 = tb[i, u]; nb = tb.get((i, u + 1), tb[i + 1, 0])
            if b0 != LAST(i):
                r = wreads(i, tiles(i)[u + 1], f"W{u+1}")
                for k, x in enumerate(r): tl.vec_at(b0 + (0, 1, 2, 4, 5, 6, 8, 9)[k], x)
                tl.scal_at(nb - 1, W(lgkm=f"W{u+1}"), later=False)
            else:
                vm = ([f"DW{i+1}"] if i < 7 else []) + extra_vm.get(i, [])
                tl.scal_at(b0, W(vm=vm, lgkm={4: ["X3"], 5: ["CS"], 7: ["CS"]}.get(i)))
                tl.scal_at(b0 + 1, Ins("s_barrier"))
                if i < 7:
                    nk = PARTS[i + 1][0]
                    if not 0 <= SLOT(i + 1) - base[nk] <= 32768:
                        dlt = SLOT(i + 1) - base[nk]; base[nk] += dlt
                        ad = vWQA if nk == "Q" else vW13A
                        for k in range(4): tl.vec_at(b0 + k // 2, Ins(f"v_add_u32 v{ad+k}, {dlt & 0xffffffff}, v{ad+k}"))
                    tl.vec_in(b0 + 2, b0 + 9, wreads(i + 1, 0, "W0"))
                    tl.scal_at(nb - 1, W(lgkm="W0"), later=False)
                else:
                    tl.vec_in(b0 + 2, b0 + 9, kreads(0, 0, 0, "K0"))
    P_ = lambda i, f: tb[i, 0] + int(f * (tb[i + 1, 0] - tb[i, 0]))
    def xout(c, lo, hi):
        j = tl.scal_at(lo, W(vm=f"DX{c}"))
        cc = tl.vec_in(j, hi, xreads(c))
        return cc[-1]
    def tch(dst, ad, sr, so): return Ins(f"buffer_load_dword a252, v{ad}, {SR(sr)}, {so} offen")
    TQ = lambda c: [(II(f"s_mov_b32 s{sT}, {c*128*8192}"), [tch(55, 22, sWQ, f"s{sT}")], [])]
    TG = lambda c: [(II(f"s_mov_b32 s{sT}, {c*128*3584}"), [tch(55, 23, sW1, f"s{sT}"), tch(55, 23, sW3, f"s{sT}")], [])]
    TK = [([], [tch(55, 53, sK, 0)], [])]; TV = [([], [tch(55, 53, sV, 0)], [])]
    kv = OPT.get("kvp", (9, 9, 9))
    at = lambda p: (TK if kv[0] == p else []) + (TV if kv[1] == p else []) + (TK2 if kv[2] == p else [])
    TK2 = [(II(f"s_mov_b32 s{sT}, 65536"), [tch(55, 53, sK, f"s{sT}")], [])]
    x1, x2, x3 = xdma(1), xdma(2), xdma(3)
    prev = [0]
    def sp(lo, hi, grps):
        lo = max(lo, prev[0] + 4); prev[0] = tl.spread(lo, max(hi, lo + 1), grps); return prev[0]
    SRL = [(II(f"s_lshl_b32 s{sT}, s{sCnt}, 11"), [Ins(f"buffer_load_dwordx4 {V(72+4*r,4)}, v58, {SR(sX)}, s{sT} offen offset:{512*r}", tag="SR") for r in range(2)], [])]
    CP = [([], II("global_load_dword a252, v[60:61], off"), [])]
    item = lambda n: {"W": lambda: wdma(int(n[1])), "Q": lambda: TQ(int(n[1])), "G": lambda: TG(int(n[1])), "S": lambda: SRL, "C": lambda: CP,
                      "A": lambda: [([], [Ins(f"buffer_atomic_add v49, v48, {SR(sDBG)}, 0 offen", tag="AT")], [])],
                      "r": lambda: (x1, x2, x3)[int(n[1]) - 1][:1], "x": lambda: (x1, x2, x3)[int(n[1]) - 1][1:]}[n[0]]()
    PP = lambda f: P_(int(f), f - int(f))
    for ent in O_("sch", None):
        if ent[0] == "o":
            l = xout(ent[1], PP(ent[2]), min(PP(ent[3]), LAST((0, 1, 3, 4)[ent[1]]) - 6))
            assert PP(ent[2]) >= tb[(0, 0, 2, 4)[ent[1]], 0]
            if ent[1] < 3: prev[0] = max(prev[0], tl.scal_at(l + 5, W(lgkm=f"X{ent[1]}")))
        else:
            g_ = [g for n in ent[1].split() for g in item(n)]
            lo = max(PP(ent[0]), prev[0] + 4)
            sp(lo, lo + int((ent[2] if len(ent) > 2 else 4.4) * (sum(len(g[1]) for g in g_) - 1)), g_)
    w7 = O_("w7", 0)
    if not w7: sp(P_(5, .03), P_(5, .3), wdma(7))
    ld0 = f"buffer_load_dword v50, v51, {SR(sDBG)}, 0 offen sc1"
    ck0 = O_("ck0", .33)
    g = tl.g[P_(5, ck0)]
    g.vec += [W(vm="C0")] + poll_check("st" + var, 50, ld0, f"v_cmp_gt_u32 vcc, 32, v50\ns_nop 0\ns_cmp_eq_u64 vcc, 0"); g.load += 2
    sp(P_(5, ck0) + 3, P_(5, ck0 + .1), [([], [Ins(f"buffer_load_dwordx2 {V(56+2*t,2)}, v52, {SR(sWS)}, 0 offen offset:{128*t} sc1", tag="SL") for t in range(4)], [])])
    if w7:
        l = sp(P_(5, w7), P_(5, w7) + 30, wdma(7)); assert l < P_(5, min(O_("slpos", .8), 1))
    sp(0, P_(5, O_("k0e", .97)), [dma_K(0, 0, "DK0"), dma_K(1, 0, "DK0")])
    sp(P_(6, O_("v0a", .3)), P_(6, O_("v0b", .9)), [dma_V(0, 0, "DV"), dma_V(1, 0, "DV")])
    sp(P_(7, O_("v0a", .3)), P_(7, O_("v0b", .9)), [dma_K(0, 1, "DK"), dma_K(1, 1, "DK")])
    def span(tag):
        ps = [q for q, gp in enumerate(tl.g) for x in gp.vec if x.tag == tag]; return min(ps), max(ps)
    for i in range(1, 8):
        assert span(f"DW{i}")[1] < LAST(i - 1) and (i < 3 or span(f"DW{i}")[0] > LAST(i - 3) + 1), i
    for c in (1, 2, 3): assert span(f"DX{c}")[1] < span(f"X{c}")[0] and (c == 1 or span(f"DX{c}")[0] > span(f"X{c-1}")[1] + 5), c
    if not any("A" in e_[1].split() for e_ in O_("sch", None) if e_[0] != "o"): tl.vec_in(LAST(1) + 10, LAST(1) + 14, item("A")[0][1])
    assert span("AT")[0] > LAST(1) + 1
    left = tl.sched(P_(0, O_("stpos", .3)), P_(1, O_('sthi', 0)) - 1, stats); assert not left and P_(1, O_('sthi', 0)) <= tb[1, 4], len(left)
    tl.vec_in(PP(4 + O_("c0pos", .9)), PP(4 + O_("c0pos", .9)) + 6, [Ins(ld0, tag="C0")])
    for i, off in ((5, 0), (7, 1)):
        a0 = aL + 8 * off; it_ = []
        for u in range(2):
            it_ += II(f"v_accvgpr_read_b32 v22, a{a0+4*u}\nv_accvgpr_read_b32 v23, a{a0+4*u+1}\nv_add_f32 v22, v22, v23")
            it_ += [Ins(f"ds_write_b32 v21, v22 offset:{64*u}", tag="CS")]
        left = tl.stream(tb[i, 3], tb[i, 4] - 1, it_); assert not left
        if i == 5:
            it_ = []
            if S_:
                for u in range(2): it_ += II(f"v_add_f32 v{176+4*u}, v{176+4*u}, v{177+4*u}") + [Ins(f"ds_write_b32 v21, v{176+4*u} offset:{512+64*u}", tag="CS")]
            left = tl.stream(tb[i, 4] + 6, tb[i, 5] - 1, it_ + II(f"v_add_u32 v21, {L_V - L_K}, v21")); assert not left
    it = [W(vm="SL")]
    for t in range(4): it += II(f"v_rsq_f32 v{vAQ+t}, v{57+2*t}")
    for t in range(4): it += II(f"v_sub_f32 v{vNMU+t}, 0, v{56+2*t}\nv_mov_b32 v{vIR+t}, v{57+2*t}")
    for t in range(4): it += II(f"v_mul_f32 v{vAE+t}, {f32(-LOG2E)}, v{vAQ+t}\nv_mul_f32 v{vAQ+t}, {f32(LOG2E * 128 ** -0.5)}, v{vAQ+t}")
    h0 = tb[6, 0] + 2
    if O_("slpos", .8) < 1:
        left = tl.stream(P_(5, O_("slpos", .8)), tb[6, 0] - 1, it); assert not left, len(left)
        it = []
    else: it[0].guards = {f"v{56+k}" for k in range(8)}; h0 = P_(6, O_("slpos", .8) - 1) + 2
    NV = 3 if S_ else 4
    for v in range(NV): it += II(f"v_xor_b32 v{28+v}, {512 if (S_ and v == 2) else 128*v}, v54")
    def csread(v): return [Ins(f"ds_read_b128 {V(48+8*(v&1)+4*m,4)}, v{28+v} offset:{64*m}", tag=f"CG{v}") for m in range(2)]
    it += csread(0)
    for v in range(NV):
        if v < NV - 1: it += csread(v + 1)
        it += [W(lgkm=f"CG{v}")]
        for m in range(2):
            for t in range(4):
                d = 128 + m * 64 + (v * 4 + t) * 4
                for r in range(4): it += II(f"v_fmac_f32 v{d+r}, v{48+8*(v&1)+4*m+r}, v{vNMU+t}")
    mv30 = Ins(f"v_add_u32 v30, {L_V - L_K}, v28"); it.append(mv30)
    it += II(f"s_add_u32 s{sCnt}, s{sFs}, s{sBo}")
    if not S_: it += II(f"s_and_b32 s{sT2}, s{sWave}, 2\ns_lshl_b32 s{sT2}, s{sT2}, 9\nv_add_u32 v28, s{sT2}, v{vL16}\nv_xor_b32 v29, 0x400, v28")
    else:
        it += II(f"s_and_b32 s{sT2}, s{sHead}, 1\ns_lshl_b32 s{sT2}, s{sT2}, 11\nv_add_u32 v28, s{sT2}, v{vL16}\ns_xor_b32 s{sT2}, s{sHead}, s{sWave}\ns_and_b32 s{sT2}, s{sT2}, 1\ns_lshl_b32 s{sT2}, s{sT2}, 3\ns_add_u32 s{sT2}, s{sT2}, 1024\nv_add_u32 v29, s{sT2}, v{vL16}")
    rest = []
    for n in range(8):
        t, i = n >> 1, n & 1
        N = 4 if (S_ and i == 1) else 8
        gr = [128 + ((2 * i + hf) * 4 + t) * 4 + r for hf in range(2) for r in range(4)][:N]
        ur = [x + 64 for x in gr]; q = []
        if n < O_("nh", 0):
            for k in range(N): q += II(f"v_mul_f32 v{ur[k]}, v{ur[k]}, v{gr[k]}\nv_mul_f32 v{gr[k]}, v{vAE+t}, v{gr[k]}")
            for k in range(N): q += II(f"v_exp_f32 v{gr[k]}, v{gr[k]}") + (II(f"v_fma_f32 v{gr[k-2]}, v{gr[k-2]}, v{vIR+t}, v{vIR+t}") if k >= 2 else [])
            for k in range(N): q += II(f"v_rcp_f32 v{gr[k]}, v{gr[k]}") + II(f"v_fma_f32 v{gr[k+N-2]}, v{gr[k+N-2]}, v{vIR+t}, v{vIR+t}" if k < 2 else f"v_mul_f32 v{gr[k-2]}, v{gr[k-2]}, v{ur[k-2]}")
            for k in (N - 2, N - 1): q += II(f"v_mul_f32 v{gr[k]}, v{gr[k]}, v{ur[k]}")
        else:
            o = t & 1; ae, ir = V(vAE + t - o, 2), V(vIR + t - o, 2)
            for k in range(0, N, 2): q += II(f"v_pk_mul_f32 {V(ur[k],2)}, {V(ur[k],2)}, {V(gr[k],2)}\nv_pk_mul_f32 {V(gr[k],2)}, {V(gr[k],2)}, {ae} op_sel:[0,{o}] op_sel_hi:[1,{o}]")
            for k in range(N): q += II(f"v_exp_f32 v{gr[k]}, v{gr[k]}")
            for k in range(0, N, 2): q += II(f"v_pk_fma_f32 {V(gr[k],2)}, {V(gr[k],2)}, {ir}, {ir} op_sel:[0,{o},{o}] op_sel_hi:[1,{o},{o}]")
            for k in range(N): q += II(f"v_rcp_f32 v{gr[k]}, v{gr[k]}")
            for k in range(0, N, 2): q += II(f"v_pk_mul_f32 {V(gr[k],2)}, {V(gr[k],2)}, {V(ur[k],2)}")
        for k in range(N // 2): q += II(f"v_cvt_pk_bf16_f32 v{gr[0]+k}, v{gr[2*k]}, v{gr[2*k+1]}")
        q += II(f"buffer_store_dwordx{N//2} {V(gr[0],N//2)}, v{28+i}, {SR(sB)}, s{sCnt} offen sc1")
        if i == 1 and t < 3: q += II(f"s_add_u32 s{sCnt}, s{sCnt}, {BSTRIDE}")
        if n < O_("nh", 0): it += q
        else: rest += q
    lastcs = [x for x in it if x.tag == f"CG{NV-1}"][-1]
    left = tl.sched(h0, end - 1, it, look=O_("look", 70))
    assert len(left) <= 54 * O_("nh", 0) and not any(x is mv30 for x in left)
    pos = [k for k, gp in enumerate(tl.g) if any(x is lastcs for x in gp.vec)]
    assert pos and pos[0] < tb[6, 6], (pos, tb[6, 6])

    for nm, i in [(f"p{i}", i) for i in range(1, 8)]:
        tl.g[tb[i, 0]].scal = stamp_ins(STAMPS.get(nm)) + tl.g[tb[i, 0]].scal
    body = tl.emit(0, end, "proj" + var)
    print("h epilogue leftover", len(left), "of", len(it), file=sys.stderr)
    return first_reads, body, left + rest

def gen_kernel():
    b = Block(); b.name = "setup"
    b.e(f"s_cmp_ge_u32 s2, 256\ns_cbranch_scc1 L_end\ns_mov_b32 s{sFB}, 0")
    if OPT.get("shuffle"): b.e("s_and_b32 s3, s2, 7\ns_lshl_b32 s3, s3, 5\ns_lshr_b32 s2, s2, 3\ns_or_b32 s2, s2, s3")
    if OPT.get("delay"): b.e(f"s_mov_b32 s3, {OPT['delay']}\nL_dly:\ns_sub_u32 s3, s3, 1\ns_cmp_lg_u32 s3, 0\ns_cbranch_scc1 L_dly")
    if OPT["stamp"]:
        for i in range(20): b.e(f"s_mov_b32 s{72+i}, 0")
        stamp(b, "start")
    b2 = Block(); b2.name = "setup1"; b_ = b; b = b2
    b.e("L_restart:")
    for sr, off in ((sX, 0), (sW1, 48), (sW3, 56), (sWQ, 24)): b.e(f"s_load_dwordx2 s[{sr}:{sr+1}], s[0:1], {off}")
    T0, T1, T2, T3, T4 = 56, 57, 58, 59, 60
    vl, vc, vg, vi2, vi3 = 61, 62, 63, 22, 23
    b.e("s_getpc_b64 s[100:101]\nL_pc:")
    b.e(f"s_lshr_b32 s{sT}, s2, 3\ns_mul_i32 s{sT2}, s{sT}, 2560\nv_mul_u32_u24 v108, 10, v0\nv_add_u32 v108, s{sT2}, v108\nv_and_b32 v108, 0xffffff80, v108\nv_min_u32 v108, L_code_end-L_pc, v108\nv_mov_b32 v109, s101")
    b.e(f"v_add_co_u32 v108, vcc, s100, v108\nv_lshrrev_b32 v{T0}, 6, v0\nv_and_b32 v{vc}, 15, v0\nv_addc_co_u32 v109, vcc, 0, v109, vcc\nglobal_load_dword v107, v[108:109], off")
    b.e(f"v_readfirstlane_b32 s{sWave}, v{T0}\nv_bfe_u32 v{vg}, v0, 4, 2\ns_and_b32 s{sT}, s{sT}, 3\ns_lshr_b32 s{sQb}, s2, 5")
    b.e(f"s_lshl_b32 s{sW16k}, s{sWave}, 14\ns_lshl_b32 s{sXb}, s{sQb}, 18\ns_lshl_b32 s{sT2}, s{sWave}, 16\ns_add_u32 s{sXb}, s{sXb}, s{sT2}")
    b.e(f"s_lshl_b32 s100, s{sT}, 12\ns_add_u32 s100, s100, s{sW16k}\ns_lshl_b32 s101, s{sT}, 14\ns_add_u32 s101, s101, s{sXb}")
    b.e(f"s_and_b32 s{sHead}, s2, 7\ns_lshl_b32 s{sHead}, s{sHead}, 2\ns_add_u32 s{sHead}, s{sHead}, s{sT}")
    b.e(f"v_xor_b32 v{T0}, v{vg}, v{vc}\nv_lshlrev_b32 v{T0}, 4, v{T0}\nv_lshl_add_u32 v{vDX}, v{vg}, 10, v{T0}")
    for p in range(1, 4): b.e(f"v_xor_b32 v{T2}, {64*p}, v{vDX}\nv_add_u32 v{vDX+p}, {p*3072}, v{T2}")
    b.e(f"s_mov_b32 s{sX+2}, 0x200000\ns_mov_b32 s{sX+3}, 0x20000\ns_waitcnt lgkmcnt(0)")
    stamp(b, "karg")
    b.e(f"s_and_b32 s{sX+1}, s{sX+1}, 0xffff")
    xg = xdma(0); wg = wdma(0)
    emit_grp(b, xg[0])
    for sr, off in ((sK, 8), (sV, 16), (sB, 88), (sH, 88), (sWS, 88), (sDBG, 80), (sWO, 32), (sW2, 64), (sOut, 72)):
        b.e(f"s_load_dwordx2 s[{sr}:{sr+1}], s[0:1], {off}")
    b.e(f"s_and_b32 s{sT2}, s{sHead}, 3\ns_lshr_b32 s3, s{sT2}, 1\ns_add_u32 s{sT}, s3, 8\ns_mul_i32 s3, s3, 3\ns_add_u32 s3, s3, 8\ns_lshl_b32 s{sFs}, s{sT2}, 1\ns_bitcmp1_b32 s2, 0")
    b.e(f"s_cselect_b32 s{sT}, s{sT}, s{sT2}\ns_cselect_b32 s{sFs}, s3, s{sFs}\ns_add_u32 s{sT}, s{sT}, s{sT2}\ns_lshr_b32 s3, s{sHead}, 3\ns_mul_i32 s3, s3, 14\ns_add_u32 s{sT}, s{sT}, s3\ns_lshl_b32 s{sT}, s{sT}, 6")
    ptr_add(b, sW1, f"s{sT}"); ptr_add(b, sW3, f"s{sT}")
    b.e(f"s_sub_u32 s{sT2}, {512*3584}, s{sT}\ns_add_u32 s{sFs}, s{sFs}, s3\ns_add_u32 s{sFs}, s{sFs}, 128\ns_lshl_b32 s{sFs}, s{sFs}, 10")
    srd_fin(b, sW1, f"s{sT2}"); srd_fin(b, sW3, f"s{sT2}")
    b.e(f"s_lshr_b32 s{sBo}, s{sXb}, 14\nv_and_b32 v{vl}, 63, v0")
    b.e(f"v_lshrrev_b32 v{T0}, 2, v{vl}\nv_and_b32 v{T1}, 3, v0\nv_lshl_add_u32 v{T1}, v{T0}, 7, v{T1}\nv_add_u32 v{T1}, s{sBo}, v{T1}\nv_mul_u32_u24 v101, 3584, v{T1}\nv_lshl_add_u32 v103, v{T0}, 26, v101")
    if not OPT.get("noptouch"): b.e(f"buffer_load_dword v105, v103, {SR(sW1)}, 0 offen\nbuffer_load_dword v106, v103, {SR(sW3)}, 0 offen")
    b.e(f"s_lshl_b32 s{sCnt}, s{sQb}, 7\ns_lshl_b32 s{sT2}, s{sHead}, 2\ns_add_u32 s{sCnt}, s{sCnt}, s{sT2}\ns_add_u32 s{sCnt}, s{sCnt}, s{sWave}\nv_lshlrev_b32 v{vL16}, 4, v{vl}")
    for g in (xg[1], xg[2], xg[3])[:OPT.get("nx", 1)]: emit_grp(b, g)
    b.e(f"s_lshl_b32 s{sT}, s{sHead}, 8"); ptr_add(b, sWQ, f"s{sT}"); b.e(f"s_sub_u32 s{sT2}, 0x400000, s{sT}")
    srd_fin(b, sWQ, f"s{sT2}")
    b.e(f"v_lshrrev_b32 v{T0}, 3, v{vl}\nv_bfe_u32 v{T1}, v0, 1, 2\nv_lshl_add_u32 v{T1}, v{T0}, 7, v{T1}\nv_add_u32 v{T1}, s{sBo}, v{T1}\nv_and_b32 v{T2}, 1, v0\nv_lshlrev_b32 v{T2}, 7, v{T2}\nv_lshl_add_u32 v100, v{T1}, 13, v{T2}\nv_lshl_add_u32 v102, v{T0}, 26, v100")
    b.e(f"s_bfe_u32 s{sSp}, s2, 0x20001\ns_lshr_b32 s{sTc}, s2, 6\ns_bfe_u32 s{sTr}, s2, 0x30003\ns_and_b32 s{sT}, s2, 1\ns_lshl_b32 s{sT}, s{sT}, 3\ns_add_u32 s{sTr}, s{sTr}, s{sT}")
    b.e(f"s_lshl_b32 s{sW8k}, s{sWave}, 13\ns_lshl_b32 s{sW4k}, s{sWave}, 12\ns_mul_i32 s{sBo}, s{sBo}, {BSTRIDE}")
    b.e(f"s_lshl_b32 s{sWQo}, s{sWave}, 18\ns_mul_i32 s{sW13o}, s{sWave}, {32*3584}\ns_mov_b32 s{sKo}, s{sW8k}\ns_mov_b32 s{sVo}, s{sW8k}")
    b.e(f"v_mul_u32_u24 v{T0}, 3584, v{T0}\nv_and_b32 v{T1}, 7, v0\nv_and_b32 v{T2}, 1, v{vg}\nv_lshlrev_b32 v{T2}, 1, v{T2}\nv_xor_b32 v{T1}, v{T1}, v{T2}")
    for p in range(4): b.e(f"v_xor_b32 v{T2}, {4*(p&1)}, v{T1}\nv_lshl_add_u32 v{T2}, v{T2}, 4, v{T0}\nv_add_u32 v{vD13+p}, {p*27648}, v{T2}")
    b.e(f"v_lshlrev_b32 v{T0}, 2, v{vg}\nv_xor_b32 v{T0}, v{vc}, v{T0}\nv_lshlrev_b32 v{T0}, 4, v{T0}\nv_lshl_add_u32 v{vDQ}, v{vg}, 13, v{T0}")
    for p in range(1, 4): b.e(f"v_add_u32 v{vDQ+p}, {p*31744}, v{vDQ}")
    b.e("s_waitcnt lgkmcnt(0)")
    late = [xg[1], xg[2], xg[3], wg[0], wg[1]][OPT.get("nx", 1):]
    stamp(b, "a1")
    c = Block(); c.name = "setup2"
    c.e(f"s_lshl_b32 s{sT}, s{sHead}, 19"); ptr_add(c, sK, f"s{sT}"); ptr_add(c, sV, f"s{sT}")
    srd_fin(c, sK, 0x80000); srd_fin(c, sV, 0x80000)
    wso = OPT.get("wsoff", 0) << 20
    if wso: ptr_add(c, sWS, wso)
    ptr_add(c, sB, WS_B + wso); ptr_add(c, sH, WS_B + wso); srd_fin(c, sB, 128 * BSTRIDE)
    srd_fin(c, sH, 0)
    srd_fin(c, sWS, 0x28000); srd_fin(c, sDBG, 256); srd_fin(c, sOut, 0x200000)
    srd_fin(c, sWO, 0 if OPT.get("noA") else 4096 * 1024); srd_fin(c, sW2, 0 if OPT.get("noA") else 1792 * 1024)
    c.e(f"v_bfe_u32 v{vi2}, v0, 2, 2\nv_and_b32 v{vi3}, 3, v0")
    c.e(f"v_lshl_add_u32 v{T0}, v{vg}, 3, v{vi2}\nv_lshlrev_b32 v{T1}, 8, v{T0}\nv_lshl_add_u32 v{T1}, v{vi3}, 4, v{T1}\nv_add_u32 v{T1}, {L_SP}, v{T1}\nv_xor_b32 v{T3}, s{sWave}, v{vi2}")
    for i in range(4): c.e(f"v_xor_b32 v{T2}, {i}, v{T3}\nv_lshl_add_u32 v{vWQA+i}, v{T2}, 6, v{T1}")
    c.e(f"v_lshlrev_b32 v{T1}, 7, v{T0}\nv_lshl_add_u32 v{T1}, v{vi3}, 3, v{T1}\nv_add_u32 v{T1}, {L_V}, v{T1}")
    c.e(f"v_and_b32 v{T3}, 1, v{vg}\nv_lshlrev_b32 v{T3}, 1, v{T3}\nv_lshrrev_b32 v{T4}, 1, v{vi2}\nv_or_b32 v{T3}, v{T3}, v{T4}")
    c.e(f"s_and_b32 s3, s{sHead}, 1\ns_sub_u32 s{sT2}, 2, s3\ns_lshl_b32 s3, s3, 1\ns_and_b32 s{sT}, s{sWave}, 1\ns_or_b32 s{sT}, s{sT}, s3\ns_xor_b32 s3, s{sWave}, 2\ns_bitcmp1_b32 s2, 0\ns_cselect_b32 s{sT}, s{sT}, s{sWave}\ns_cselect_b32 s{sT2}, s{sT2}, s3")
    for i in (0, 2): c.e(f"v_xor_b32 v{T2}, s{sT2 if i else sT}, v{T3}\nv_lshl_add_u32 v{vW13A+i}, v{T2}, 5, v{T1}\nv_xor_b32 v{vW13A+i+1}, 32, v{vW13A+i}")
    for r in range(8): c.e(f"v_mov_b32 v{176+r}, 0")
    for r in range(4): c.e(f"v_accvgpr_write_b32 a{aCHK+r}, -1")
    c.e(f"v_xor_b32 v{T0}, v{vg}, v{vc}\nv_lshlrev_b32 v{T1}, 8, v{vc}\nv_add_u32 v{T3}, s{sW16k}, v{T1}\ns_lshl_b32 s{sT}, s{sWave}, 2")
    for i in range(4): c.e(f"v_xor_b32 v{T2}, {4*i}, v{T0}\nv_lshl_add_u32 v{vXA+i}, v{T2}, 4, v{T3}\nv_xor_b32 v{T2}, s{sT}, v{T2}\nv_lshl_add_u32 v{vKA+i}, v{T2}, 4, v{T1}")
    c.e(f"v_lshl_add_u32 v{T0}, v{vg}, 2, v{vi2}\nv_lshlrev_b32 v{T1}, 8, v{T0}\nv_lshl_add_u32 v{T1}, v{vi3}, 3, v{T1}\nv_add_u32 v{T1}, {L_V}, v{T1}\nv_and_b32 v{T0}, 7, v{T0}")
    for dt in range(8): c.e(f"v_xor_b32 v{T2}, {dt}, v{T0}\nv_lshl_add_u32 v{vVA+dt}, v{T2}, 5, v{T1}")
    c.e(f"v_lshlrev_b32 v{T1}, 8, v{vg}\nv_xor_b32 v{T0}, v{vg}, v{vc}")
    for p in range(4): c.e(f"v_xor_b32 v{T2}, {4*p}, v{T0}\nv_lshl_add_u32 v{vDK+p}, v{T2}, 4, v{T1}")
    c.e(f"v_lshlrev_b32 v{T0}, 1, v{vg}\nv_xor_b32 v{T0}, v{T0}, v{vc}")
    for p in range(2): c.e(f"v_xor_b32 v{T2}, {8*p}, v{T0}\nv_lshl_add_u32 v{vDV+p}, v{T2}, 4, v{T1}")
    c.e(f"v_mov_b32 v{T0}, 0x3f803f80")
    for i in range(4): c.e(f"v_accvgpr_write_b32 a{aONES+i}, v{T0}")
    c.e(f"s_lshl_b32 s{sT}, s{sQb}, 5\nv_and_b32 v51, 7, v0\nv_lshlrev_b32 v51, 5, v51\ns_cmp_eq_u32 s{sFB}, 0\ns_cselect_b32 s{sT}, s{sT}, {OOB}")
    c.e(f"v_mov_b32 v{T0}, {OOB}\nv_mov_b32 v{T1}, s{sT}\nv_cmp_eq_u32 vcc, 0, v0\nv_mov_b32 v49, 1\nv_cndmask_b32 v48, v{T0}, v{T1}, vcc")
    c.e(f"s_lshl_b32 s{sT}, s{sQb}, 5\ns_add_u32 s{sT}, s{sT}, s{sHead}\ns_lshl_b32 s{sT}, s{sT}, 7\ns_add_u32 s{sT}, s{sT}, {WS_FH}\ns_cmp_eq_u32 s{sFB}, 0\ns_cselect_b32 s{sT}, s{sT}, {OOB >> 1}")
    c.e(f"s_and_b32 s{sT2}, s{sHead}, 7\ns_mul_i32 s{sT2}, s{sT2}, 124\ns_sub_u32 s{sT2}, {WS_FO-WS_FH}, s{sT2}\nv_mov_b32 v{T2}, s{sT}\nv_mad_u32_u24 v{T1}, v0, s{sT2}, v{T2}\nv_cmp_gt_u32 vcc, 2, v0\nv_mov_b32 v{T2}, 0\nv_cndmask_b32 v{T1}, v{T0}, v{T1}, vcc")
    c.e(f"buffer_store_dword v{T2}, v{T1}, {SR(sWS)}, 0 offen sc1")
    c.e(f"s_lshr_b32 s{sT}, s{sXb}, 7\nv_lshlrev_b32 v52, 3, v{vc}\nv_add_u32 v52, s{sT}, v52")
    c.e(f"s_lshl_b32 s{sT}, s{sWave}, 7\nv_lshlrev_b32 v54, 4, v{vg}\nv_add_u32 v54, s{sT}, v54\nv_add_u32 v54, {L_K+32768}, v54\ns_add_u32 s{sT}, s{sT}, {L_K+32768}\nv_lshl_add_u32 v21, v{vc}, 2, s{sT}")
    for i in range(4): c.e(f"v_accvgpr_write_b32 a{aZ+i}, 0")
    c.e(f"v_and_b32 v{vIDX}, 1, v0\nv_mul_u32_u24 v{vIDX}, 0xaaaa, v{vIDX}\nv_add_u32 v{vIDX}, 0x4444, v{vIDX}")
    c.e(f"v_mfma_f32_32x32x16_bf16 {A(aL,16)}, {A(aZ,4)}, {A(aZ,4)}, 0")
    c.e(f"s_lshl_b32 s{sT}, s{sQb}, 2\ns_add_u32 s{sT}, s{sT}, s{sWave}\ns_lshl_b32 s{sT}, s{sT}, 11\nv_lshlrev_b32 v53, 29, v{vg}\nv_lshl_add_u32 v53, v{vc}, 7, v53\nv_add_u32 v53, s{sT}, v53")
    stamp(c, "a2")
    c.e(f"s_lshl_b32 s{sT2}, s{sCnt}, 4\nv_lshrrev_b32 v{T2}, 5, v{vl}\nv_lshl_add_u32 v{T1}, v{T2}, 3, s{sT2}\nv_lshl_add_u32 v{T2}, v{T2}, 9, v{vL16}\nv_and_b32 v{T3}, 31, v0\nv_cmp_eq_u32 vcc, 0, v{T3}\nv_cndmask_b32 v{T1}, v{T0}, v{T1}, vcc")
    c.e("v_mov_b32 v22, v102\nv_mov_b32 v23, v103\nv_accvgpr_write_b32 a254, v108\nv_accvgpr_write_b32 a255, v109")
    for g in late: emit_grp(c, g)
    c.e("v_mov_b32 v60, v108\nv_mov_b32 v61, v109")
    for n in OPT["pre"].split():
        if n == "Q0": c.e(f"buffer_load_dword a252, v22, {SR(sWQ)}, 0 offen")
        if n == "G1": c.e(f"s_mov_b32 s{sT}, {128*3584}\nbuffer_load_dword a252, v23, {SR(sW1)}, s{sT} offen\nbuffer_load_dword a252, v23, {SR(sW3)}, s{sT} offen")
        if n == "S":
            c.e(f"s_lshl_b32 s{sT}, s{sCnt}, 11")
            for r in range(2): c.e(f"buffer_load_dwordx4 {V(72+4*r,4)}, v{T2}, {SR(sX)}, s{sT} offen offset:{512*r}", tag="SR")
    stamp(c, "a4")
    c_ = c; c = Block(); c.wait(vm="SR")
    X = lambda k: 88 + k + (8 if k >= 8 else 0)
    for k in range(8): c.e(f"v_lshlrev_b32 v{X(2*k)}, 16, v{72+k}\nv_and_b32 v{X(2*k+1)}, 0xffff0000, v{72+k}")
    def wred(d):
        c.e("v_add_f32 v120, v120, v121")
        for sh in (8, 4, 2, 1): c.e(f"v_add_f32_dpp v120, v120, v120 row_ror:{sh} row_mask:0xf bank_mask:0xf")
        c.e(f"v_mov_b32 v121, v120\nv_permlane16_swap_b32 v121, v120\nv_add_f32 v120, v120, v121\nv_mul_f32 v{d}, {f32(1/512)}, v120")
    for k in range(7):
        for r in range(2): c.e(f"v_add_f32 v{120+r}, v{X(8*r+k+1)}, v{X(8*r) if k == 0 else (120+r)}")
    wred(122)
    for k in range(16): c.e(f"v_sub_f32 v{X(k)}, v{X(k)}, v122")
    for k in range(8):
        for r in range(2): c.e(f"v_mul_f32 v{120+r}, v{X(8*r)}, v{X(8*r)}" if k == 0 else f"v_fmac_f32 v{120+r}, v{X(8*r+k)}, v{X(8*r+k)}")
    wred(123)
    def rnd(r): c.e(f"v_cvt_pk_bf16_f32 v{r}, v{r}, v{r}\nv_and_b32 v{r}, 0xffff0000, v{r}")
    rnd(122); rnd(123); c.e(f"v_add_f32 v123, {f32(1e-5)}, v123"); rnd(123); c.e("v_sqrt_f32 v123, v123"); rnd(123); c.e("v_mul_f32 v123, v123, v123")
    c.e(f"buffer_store_dwordx2 v[122:123], v{T1}, {SR(sWS)}, 0 offen sc1", tag="ST")
    st_ = [x for x in c.ins if x.kind != "nop"]; c = c_
    def stats():
        w_ = W(vm="SR"); w_.guards = {f"v{72+k}" for k in range(8)}
        return [w_] + [Ins(x.text, tag=x.tag) for x in st_[1:]]
    PJ = {}
    for var in "FS":
      first_reads, proj, hleft = gen_proj(stats(), var)
      e = Block(); e.name = "projepi"
      stamp(e, "projend")
      for i in range(4): e.e(f"v_xor_b32 v{24+i}, {128*i}, v30")
      def cq(i): return [Ins(f"ds_read_b128 {V(48+8*(i&1)+4*hf,4)}, v{24+i} offset:{64*hf}", tag=f"CQ{i}") for hf in range(2)]
      e.ext(cq(0) + cq(1))
      nfirst = [k for k, x in enumerate(hleft) if x.kind == "vstore"][0] + 1
      e.ext(hleft[:nfirst]); hleft = hleft[nfirst:]
      H = 192
      for ds in range(4):
          e.wait(lgkm=f"CQ{ds}")
          for t in range(4):
              d = Q(t, ds); h = H + 16 * (t & 1); o = t & 1; nm, aq = V(vNMU + t - o, 2), V(vAQ + t - o, 2); CS = 48 + 8 * (ds & 1)
              for k in range(4): e.e(f"v_accvgpr_read_b32 v{h+k}, a{128+(t*4+ds)*4+k}")
              prs = [(d, CS), (d + 2, CS + 2), (h, CS + 4), (h + 2, CS + 6)]
              for x, cs in prs: e.e(f"v_pk_fma_f32 {V(x,2)}, {V(cs,2)}, {nm}, {V(x,2)} op_sel:[0,{o},0] op_sel_hi:[1,{o},1]")
              for x, cs in prs: e.e(f"v_pk_mul_f32 {V(x,2)}, {V(x,2)}, {aq} op_sel:[0,{o}] op_sel_hi:[1,{o}]")
              for k, (x, cs) in enumerate(prs): e.e(f"v_cvt_pk_bf16_f32 v{d+k}, v{x}, v{x+1}")
          if ds < 2: e.ext(cq(ds + 2))
      PM = 48
      ch = [MF(V(PM + 4 * t, 4), A(KF(0, ds), 4), V(Q(t, ds), 4), "0" if n == 0 else V(PM + 4 * t, 4)) for t in range(4) for n, ds in enumerate(snake(t))]
      run = 0
      for k, x in enumerate(hleft):
          run = run + 1 if x.kind == "trans" else 0
          if ch and x.kind == "trans" and 3 <= run <= 5: e.add(ch.pop(0))
          e.add(x)
      e.ext(ch)
      h_ = Block(); h_.name = "projhead"
      if var == "F": h_.e("L_proj_F:")
      h_.wait(vm="DX0"); h_.ext(xreads(0)); h_.wait(vm="DW0"); stamp(h_, "a6"); h_.e("s_barrier"); h_.ext(first_reads); h_.wait(lgkm="W0"); stamp(h_, "p0")
      e.e("s_cmp_eq_u32 0, 0")
      if var == "F": e.e("s_branch L_proj_join")
      PJ[var] = [h_, proj, e]
    stamp(c, "a5")
    c.e("s_bitcmp1_b32 s2, 0\ns_cbranch_scc0 " + ("L_proj_join" if OPT.get("warm", 1) else "L_proj_F"))
    e = Block(); e.name = "join"; e.e("L_proj_join:\ns_cbranch_scc0 L_proj_F")
    e.e(f"s_cmp_lg_u32 s{sFB}, 0\ns_cbranch_scc1 L_truemax")
    e2 = Block(); e2.name = "premax"
    def rowmax_finish(blk, src):
        for sw in ("32", "16"):
            for t in range(4): blk.e(f"v_mov_b32 v{vT+t}, v{src(t)}")
            for t in range(4): blk.e(f"v_permlane{sw}_swap_b32 v{vT+t}, v{src(t)}")
            for t in range(4): blk.e(f"v_max_f32 v{src(t) if sw == '32' else vT+t}, v{src(t)}, v{vT+t}")
        for t in range(4):
            for r in range(4): blk.e(f"v_sub_f32 v{vNM+4*t+r}, 0, v{vT+t}")
    for t in range(4):
        s0 = PM + 4 * t
        e2.e(f"v_max3_f32 v{s0}, v{s0}, v{s0+1}, v{s0+2}\nv_max_f32 v{s0}, v{s0}, v{s0+3}")
    rowmax_finish(e2, lambda t: PM + 4 * t)
    a_, b_2, c_2, d_, e_2, f_ = sBs[0], sBs[1], sBs[2], sBs[3], sHp[2], sHp[3]
    li = II(f"""s_lshl_b32 s{c_2}, s{sQb}, 13
s_add_u32 s{c_2}, s{c_2}, 32768
s_sub_u32 s{c_2}, s{c_2}, s{sW8k}
s_lshr_b32 s{a_}, s2, 3
s_mul_i32 s{b_2}, s{a_}, {14*1024}
s_lshl_b32 s{a_}, s{a_}, 15
s_lshl_b32 s3, s{sSp}, 20
s_add_u32 s{a_}, s{a_}, s3
s_mul_i32 s3, s{sSp}, {448*1024}
s_add_u32 s{b_2}, s{b_2}, s3
s_lshl_b32 s{d_}, s{sQb}, 5
s_add_u32 s{d_}, s{d_}, s{sHead}
s_lshl_b32 s{d_}, s{d_}, 7
s_add_u32 s{d_}, s{d_}, {WS_FH}
s_lshr_b32 s{e_2}, s{sTr}, 1
s_lshl_b32 s{e_2}, s{e_2}, 2
s_add_u32 s{e_2}, s{e_2}, s{sSp}
s_lshl_b32 s{e_2}, s{e_2}, 10
s_add_u32 s{e_2}, s{e_2}, {WS_FH}
s_mul_i32 s{f_}, s{sTc}, 3584
v_and_b32 v28, 15, v0
v_lshrrev_b32 v29, 6, v0
v_lshl_add_u32 v28, v29, 4, v28
v_bfe_u32 v29, v0, 4, 2
v_lshlrev_b32 v29, 29, v29
v_lshl_add_u32 v29, v28, 7, v29
v_add_u32 v28, s{c_2}, v29
buffer_load_dword a252, v28, {SR(sV)}, s{sVo} offen
v_bfe_u32 v30, v0, 4, 1
v_mul_u32_u24 v30, 0xffff, v30
v_lshlrev_b32 v30, 13, v30
v_sub_u32 v30, v29, v30
v_add_u32 v30, s{a_}, v30
v_add_u32 v29, s{b_2}, v29
v_lshl_add_u32 v21, v0, 18, s{d_}
v_mov_b32 v22, 1
v_and_b32 v23, 7, v0
v_lshl_add_u32 v23, v23, 7, s{e_2}
v_and_b32 v24, 8, v0
v_cmp_eq_u32 vcc, 0, v24
v_and_b32 v24, 3, v0
v_lshlrev_b32 v24, 10, v24
v_xor_b32 v24, s{d_}, v24
v_cndmask_b32 v23, v24, v23, vcc
v_cndmask_b32 v31, 7, v22, vcc
v_and_b32 v27, 31, v0
v_min_u32 v27, 27, v27
v_lshl_add_u32 v27, v27, 7, s{f_}
v_bfe_u32 v26, v0, 5, 1
v_mul_u32_u24 v26, {BSTRIDE}, v26
v_add_u32 v27, v27, v26
v_accvgpr_read_b32 v24, a254
v_accvgpr_read_b32 v25, a255
s_mov_b32 s{sCnt}, 7
s_mov_b32 s{sTW}, 0
s_mov_b32 s{sT2W}, 0""")
    first, even, odd, last = gen_attention(li)
    l0 = Block(); l0.e("L_att_start:")
    stamp(l0, "att0")
    l1 = Block(); stamp(l1, "loop")
    l1b = Block(); l1b.e(".p2align 6\nL_att_loop:")
    l4 = Block(); l4.e("L_att_last:"); stamp(l4, "last")
    if OPT.get("loopstamp"):
        l1b.e(f"s_memtime s[96:97]\ns_mov_b32 m0, s{sCnt}\ns_waitcnt lgkmcnt(0)\nv_writelane_b32 v31, s96, m0")
        for i in range(8): l4.e(f"v_readlane_b32 s{74+2*i}, v31, {7-i}\nv_readlane_b32 s{75+2*i}, v31, {7-i}")
    f = Block(); f.name = "check"
    stamp(f, "attend")
    vRL = vNM
    for _ in range(min(OPT.get("osf", 2), len(OSTORES))): emit_grp(f, OSTORES.pop(0))
    f.add(last.tailchk)
    f.e(f"s_mov_b32 s{sT}, {f32(2.0**100)}")
    f.e(f"v_max3_f32 v{vT}, v{vRL+4}, v{vRL+5}, v{vRL+6}\nv_max_f32 v{vT}, v{vT}, v{vRL+7}\nv_accvgpr_read_b32 v{vT+1}, a{aCHK}")
    f.e(f"v_add_f32 v{vT}, v{vT}, v{vT+1}\nv_cmp_nlt_f32 vcc, v{vT}, s{sT}")
    f.e(f"s_cmp_lg_u64 vcc, 0\ns_cselect_b32 s{sT}, 1, 0")
    f.e(f"v_mov_b32 v{vT}, s{sT}\nv_and_b32 v{vT+1}, 3, v0\nv_lshlrev_b32 v{vT+1}, 12, v{vT+1}\ns_add_u32 s{sT}, s{sWave}, {7*4096}\ns_lshl_b32 s{sT}, s{sT}, 2\nv_add_u32 v{vT+1}, s{sT}, v{vT+1}")
    f.e(f"ds_write_b32 v{vT+1}, v{vT}", tag="VW"); f.e(f"s_add_u32 s{sT}, s{sM}, {7*16384}\nv_mov_b32 v{vT+1}, s{sT}")
    if OSTORES: emit_grp(f, OSTORES.pop(0))
    f.e(f"s_lshl_b32 s{sT}, s{sWave}, 6\ns_or_b32 s{sT}, s{sT}, {L_V}\ns_and_b32 s{sT2}, s{sTr}, 1\ns_lshl_b32 s{sT2}, s{sT2}, 12")
    for v in range(2): f.e(f"v_xor_b32 v{vRAs+v}, s{sT}, v{vVA+v}")
    for st in (1, 2):
        for v in range(2): f.e(f"v_add_u32 v{vRAs+2*st+v}, {st*65536}, v{vRAs+v}")
    for st in range(3):
        for v in range(2): f.e(f"v_xor_b32 v{vRAg+4*st+v}, s{sT2}, v{vRAs+2*st+v}\nv_xor_b32 v{vRAg+4*st+2+v}, 0x1000, v{vRAg+4*st+v}")
        f.e(f"v_add_u32 v{vRB[st]}, {st*65536}, v{vL16}")
    while OSTORES: emit_grp(f, OSTORES.pop(0))
    f.wait(lgkm="VW", vm=[f"U{u}" for u in RD[-1]]); f.e("s_barrier")
    f.e(f"ds_read_b128 v[2:5], v{vT+1}", tag="FL")
    for u in RD[-1]: f.ext(ureads(u))
    f.wait(lgkm="FL")
    f.e(f"v_or_b32 v2, v2, v3\nv_or3_b32 v2, v2, v4, v5\nv_readfirstlane_b32 s{sT}, v2")
    f.e(f"s_andn2_b32 s{sT}, s{sT}, s{sFB}\ns_cmp_lg_u32 s{sT}, 0\n" + ("" if OPT.get("nofb") else "s_cbranch_scc1 L_fallback"))
    k = Block(); k.name = "tail"
    stamp(k, "tail0")
    su = II(f"""s_and_b32 s{sT}, s{sHead}, 7
s_mul_i32 s{sT}, s{sT}, 124
s_sub_u32 s{sT}, {WS_FO-WS_FH}, s{sT}
v_add_u32 v26, s{sT}, v21
v_mov_b32 v25, 1
v_and_b32 v{vPA}, 7, v0
s_lshr_b32 s{sT}, s{sTr}, 1
s_lshl_b32 s{sT}, s{sT}, 2
s_add_u32 s{sT}, s{sT}, s{sSp}
s_lshl_b32 s{sT}, s{sT}, 10
s_add_u32 s{sT}, s{sT}, {WS_FO}
v_lshl_add_u32 v{vPA}, v{vPA}, 2, s{sT}
s_add_u32 s100, s{sWS}, s{sT}
s_addc_u32 s101, s{sWS+1}, 0
v_and_b32 v27, 3, v0
v_lshlrev_b32 v27, 4, v27
v_bfe_u32 v24, v0, 2, 4
v_lshl_add_u32 v27, v24, 10, v27""")
    nU = 10
    for n in range(10):
        if n not in EARLY: emit_grp(k, udma(n))
    k.ext(su)
    k.wait(lgkm="R")
    ldf = f"buffer_load_dword v{vPoll}, v{vPA}, {SR(sWS)}, 0 offen sc1"
    allset = f"v_cmp_eq_u32 vcc, 0, v{vPoll}\ns_nop 0\ns_cmp_eq_u64 vcc, 0"
    polled = False
    def take(n):
        nonlocal nU
        if n > 21: return []
        limit = min(RD[max(m for m in range(n + 1) if m - 7 not in OPT.get("nobs", ()))][0] + 10, len(UNITS))
        r = []
        while nU < limit:
            kd, a_ = UNITS[nU]
            if kd == "Bs" and not (polled and (a_ < 4 or n - 7 >= OPT["bsat"][a_])): break
            r.append(udma(nU)); nU += 1
        return r
    def pack(src, dst): return II("\n".join(f"v_cvt_pk_bf16_f32 v{dst+r}, v{src+2*r}, v{src+2*r+1}" for r in range(8)) + "\n" + "\n".join(f"v_min_u32 v{dst+r}, -2, v{dst+r}" for r in range(8)))
    def xst(which, lam, reg):
        return (II(f"s_xor_b32 s{sCnt}, s{sXR}, {lam*65536 + (which*4+lam)*8192}"),
                [Ins(f"buffer_store_dwordx4 {V(reg+4*m,4)}, v{vL16}, {SR(sXP)}, s{sCnt} offen offset:{m*1024} sc1") for m in range(2)], [])
    def xld(which, lam, tag, so=sCnt):
        if OPT.get("xdummy") == 2: return (II(f"s_mov_b32 s{so}, 0x40000000"), [Ins(f"buffer_load_dwordx4 {V(IN(which,lam)+4*m,4)}, v{vL16}, {SR(sXP)}, s{so} offen offset:{m*1024} sc1", tag=tag) for m in range(2)], [])
        if OPT.get("xdummy") == 1: return (II(f"s_add_u32 s{so}, s{sBo}, {(which*4+lam-1)*2048 % 4096 + ((which*4+lam-1)//2)*BSTRIDE}"), [Ins(f"buffer_load_dwordx4 {V(IN(which,lam)+4*m,4)}, v{vL16}, {SR(sB)}, s{so} offen offset:{m*1024} sc1", tag=tag) for m in range(2)], [])
        return (II(f"s_add_u32 s{so}, s{sXR}, {(which*4+lam)*8192}"),
                [Ins(f"buffer_load_dwordx4 {V(IN(which,lam)+4*m,4)}, v{vL16}, {SR(sXP)}, s{so} offen offset:{m*1024} sc1", tag=tag) for m in range(2)], [])
    IN = lambda which, lam: ACG(2 * lam, 0) + (0 if which else 8)
    def arrived(name, parts):
        regs = [IN(w_, l_) + r for w_, l_ in parts for r in range(8)]
        t = f"v_max3_u32 v28, v{regs[0]}, v{regs[1]}, v{regs[2]}\nv_max3_u32 v29, v{regs[3]}, v{regs[4]}, v{regs[5]}\n"
        for m in range(6, len(regs), 2): t += f"v_max3_u32 v{28+(m>>1)%2}, v{28+(m>>1)%2}, v{regs[m]}, v{regs[m+1]}\n"
        t += "v_max_u32 v28, v28, v29\nv_cmp_eq_u32 vcc, -1, v28\ns_nop 0\ns_cmp_eq_u64 vcc, 0"
        ld = "\n".join(x.text for w_, l_ in parts for g in [xld(w_, l_, None, sT)] for x in g[0] + g[1])
        r = poll_check(name, 0, ld, t)
        return r[:-5], r[-5:]
    G0, S0 = ACG(0, 0), ACS(2, 0)
    def unp(src, dst): return II("\n".join(f"v_lshlrev_b32 v{dst(2*r)}, 16, v{src+r}\nv_and_b32 v{dst(2*r+1)}, 0xffff0000, v{src+r}" for r in range(8)))
    gm = []
    for lam in (1, 2, 3):
        for h_ in range(2):
            for r in range(4): gm += II(f"v_lshlrev_b32 v{2+2*r}, 16, v{IN(1,lam)+4*h_+r}\nv_and_b32 v{3+2*r}, 0xffff0000, v{IN(1,lam)+4*h_+r}")
            for r in range(8): gm += II(f"v_add_f32 v{G0+8*h_+r}, v{G0+8*h_+r}, v{2+r}")
    nsum = len(gm)
    for h_ in range(2):
        g_ = lambda r: G0 + 8 * h_ + r
        for r in range(8): gm += II(f"v_mul_f32 v{2+r}, {f32(-LOG2E)}, v{g_(r)}")
        for r in range(8): gm += II(f"v_exp_f32 v{2+r}, v{2+r}") + (II(f"v_add_f32 v{r}, 1.0, v{r}") if r >= 2 else [])
        for r in range(8): gm += II(f"v_rcp_f32 v{2+r}, v{2+r}") + II(f"v_add_f32 v{8+r}, 1.0, v{8+r}" if r < 2 else f"v_mul_f32 v{g_(r-2)}, v{g_(r-2)}, v{r}")
        for r in (6, 7): gm += II(f"v_mul_f32 v{g_(r)}, v{g_(r)}, v{2+r}")
    nrest = len(gm) - nsum
    ta = II(f"""v_and_b32 v10, 15, v0
v_bfe_u32 v11, v0, 4, 2
v_and_b32 v18, 7, v0
v_xor_b32 v11, v11, v18
v_lshlrev_b32 v10, 7, v10
v_lshl_add_u32 v10, v11, 4, v10
v_add_u32 v10, s{sM}, v10
v_xor_b32 v11, 64, v10
v_and_b32 v18, 3, v0
v_lshlrev_b32 v18, 1, v18
v_bfe_u32 v19, v0, 2, 3
v_xor_b32 v18, v18, v19
v_bfe_u32 v19, v0, 2, 4
v_lshlrev_b32 v19, 7, v19
v_lshl_add_u32 v18, v18, 4, v19
v_add_u32 v18, s{sM}, v18
v_xor_b32 v19, 16, v18""")
    XR = IN(1, 1)
    at = lambda tl, y: max(q for q, gp in enumerate(tl.g) if any(x is y for x in gp.vec))
    for n in range(23):
        i = n - 7
        stamp(k, f"g{n}" if n < 7 else f"s{i}")
        tl = TL()
        if n < 7:
            for c_, j in enumerate((2, 3, 4, 5, 6, 7, 0, 1) if n == 6 else range(8)):
                for v in ((0, 1) if c_ % 2 == 0 else (1, 0)):
                    d = V(ACG(j, v), 4)
                    for m, ks in enumerate((0, 1) if v == (c_ & 1) else (1, 0)):
                        tl.add(MF(d, R(*AG(n, v, ks), 4), V(BF(n, j * 2 + ks), 4), "0" if (n == 0 and m == 0) else d))
        else:
            for e_ in range(2):
                for v in ((0, 1) if e_ == 0 else (1, 0)):
                    d = V(ACS(2 * ((i >> 2) & 1) + e_, v), 4)
                    for m, ks in enumerate(range(8) if v == e_ else range(7, -1, -1)):
                        tl.add(MF(d, A(AS(v, (i & 3) * 8 + ks), 4), V(BF(n, e_ * 8 + ks), 4), "0" if (i in (0, 4, 8) and m == 0) else d))
        bar = bool(RD[n]) and i not in OPT.get("nobs", ())
        need = []
        if bar:
            m = n
            while True:
                need += RD[m]; m += 1
                if m > 21 or m - 7 not in OPT.get("nobs", ()): break
        grp = []; vm = [f"U{u}" for u in need]
        assert all(u < nU for u in need), n
        if n == OPT["flagstage"]: vm.append("OS"); grp.append(([], II(f"buffer_store_dword v25, v26, {SR(sWS)}, 0 offen sc1"), []))
        ck = None
        if i == OPT["gck"]: vm.append("IG"); ck = arrived("g", [(1, 1), (1, 2), (1, 3)])
        if i == 11: vm.append("I1"); ck = arrived("s1", [(0, 1)])
        if i == 15: vm.append("I2"); ck = arrived("s2", [(0, 2)])
        if vm: tl.scal_at(0, W(vm=vm))
        span = n == OPT["pollstage"] and OPT["polld"] == 2
        if bar: tl.scal_at(1, Ins("s_barrier"))
        if RD[n]: tl.scal_at(31, W(lgkm="R") if not span else Ins("s_waitcnt lgkmcnt(2)"))
        lo = 3
        if n == OPT["pollstage"]: tl.scal_at(OPT.get("pollgap", 2), Ins(f"s_load_dwordx8 s[{sK}:{sK+7}], s[100:101], 0 glc", tag="R"))
        if n == OPT["pollstage"] + OPT["polld"]:
            pc = poll_check("o", vPoll, ldf, allset)
            g = tl.g[2]; g.load += 2; polled = True; lo = 5
            g.vec += II(f"s_and_b64 s[{sK}:{sK+1}], s[{sK}:{sK+1}], s[{sK+2}:{sK+3}]\ns_and_b64 s[{sK+4}:{sK+5}], s[{sK+4}:{sK+5}], s[{sK+6}:{sK+7}]\ns_and_b64 s[{sK}:{sK+1}], s[{sK}:{sK+1}], s[{sK+4}:{sK+5}]\ns_and_b32 s{sK}, s{sK}, s{sK+1}") + pc[-2:]
        pk = []
        pw = OPT.get("pw2", 1)
        if n == 6: pk = [(11, 21, pack(ACG(2, 0), ACG(2, 0)))] if not pw else [(11, 31, pack(ACG(2, 0), ACG(2, 0)) + pack(ACG(4, 0), ACG(4, 0))[:8])]
        gst = OPT.get("gst", 0)
        if i == 0 and gst == 0: pk = [(0, 14, pack(ACG(4, 0), ACG(4, 0))), (8, 24, pack(ACG(6, 0), ACG(6, 0)))] if not pw else [(0, 25, pack(ACG(4, 0), ACG(4, 0))[8:] + pack(ACG(6, 0), ACG(6, 0)))]
        if i == 0 and gst > 0: pk = [(0, 31, pack(ACG(4, 0), ACG(4, 0)) + pack(ACG(6, 0), ACG(6, 0)))]
        if i in (4, 8, 12): pk = [(4 if not pw else 2, 14 if (i == 12 or not pw) else 24, pack(ACS(2 * ((i // 4 + 1) & 1), 0), IN(0, i // 4)))]
        grp += take(n)
        if i == OPT["gld"]: grp += [xld(1, lam, "IG") for lam in (1, 2, 3)]
        if i == 8: grp.append(xld(0, 1, "I1"))
        g1 = OPT.get("g1early", 0)
        if i == gst: grp += [xst(1, lam, IN(1, lam)) for lam in (1, 2, 3) if lam > g1]
        if n == 6 and g1: late_ = [xst(1, lam, IN(1, lam)) for lam in range(1, g1 + 1)]
        else: late_ = []
        if i in (4, 8, 12): grp.append(xst(0, i // 4, IN(0, i // 4)))
        if i == 12:
            lo = 16
            grp += [([], II(f"buffer_load_dwordx4 {V(XR,4)}, v27, {SR(sX)}, s{sOo} offen\nbuffer_load_dwordx4 {V(XR+4,4)}, v27, {SR(sX)}, s{sXW} offen"), []), xld(0, 2, "I2")]
            assert not any({f"v{XR+r}" for r in range(8)} & y.reads for y in gm)
        if i == 15: lo = OPT["i3gap"]; grp.append(xld(0, 3, "I3"))
        if i == 0 and gst == 0 and g1 and len(grp) == 3 - g1: lo = 17
        spill = []
        while sum(len(g[1]) + len(g[0]) // 2 for g in grp) > 22: spill.insert(0, grp.pop())
        nv = sum(len(g[1]) for g in grp)
        if grp and n < 7 and OPT.get("gfront"):
            q = lo - 1
            for g in grp:
                gp = tl.g[q]; gp.vec += g[0] + g[1]; gp.load += 6; q += OPT["gfront"]
            for g in spill: tl.g[q].vec += g[0] + g[1]; tl.g[q].load += 6; q += OPT["gfront"]
            spill = []
        elif grp: tl.spread(lo, min(29, lo + 4 * nv - 4) if i > 0 else (29 if not late_ else 18), grp)
        if late_: tl.spread(24, 29, late_); grp += late_
        rd = [x for u in RD[n] for x in ureads(u)]
        if span: rd += II(f"ds_read_b32 v28, v{vL16}\nds_read_b32 v28, v{vL16}")
        if len(rd) > 26: tl.vec_in(2, OPT.get("grh", 25), rd)
        elif rd:
            rh = OPT.get("rh", 20)
            while rh < 27 and sum(tl.g[q].load == 0 for q in range(2, rh + 1)) < len(rd): rh += 1
            free = [q for q in range(2, rh + 1) if tl.g[q].load == 0]
            drop = len(free) - len(rd)
            if drop < 0: tl.vec_in(2, 27, rd)
            else:
                for m in range(drop): free[(2 * m + 1) * len(free) // (2 * drop)] = None
                for x, q in zip(rd, [q for q in free if q is not None]): tl.vec_at(q, x)
        for lo_, hi_, its in pk:
            room = sum(max(0, 2 - tl.g[q].load) for q in range(lo_, hi_ + 1))
            left = tl.stream(lo_, hi_, its, cap=2 if room >= len(its) else 3); assert not left, (n, len(left))
            for y in its:
                for q, gp in enumerate(tl.g): assert not (gp.m.writes & y.reads) or at(tl, y) >= q, n
                for g in grp:
                    for x in g[1]: assert not (y.writes & x.reads) or at(tl, x) > at(tl, y), n
        q0 = 0
        if ck:
            left = tl.stream(0, 20, ck[0]); assert not left
            q0 = at(tl, ck[0][-1]) + 1; tl.g[q0].vec += ck[1]; tl.g[q0].load += 2; q0 += 1
        if i == 5: left = tl.stream(0, 31, ta); assert not left
        if i == 11: left = tl.stream(q0, 29, unp(IN(0, 1), lambda r: S0 + r)); assert not left
        if i == 15: left = tl.stream(q0, 31, unp(IN(0, 2), lambda r: 144 + r) + unp(XR, lambda r: 128 + r)); assert not left
        if i >= OPT["gck"] and gm: gm = (tl.sched if OPT.get("gsched", 1) else tl.stream)(q0 if i == OPT["gck"] else 0, 31, gm)
        k.ext(tl.emit(0, 32, "x").ins)
        for g in spill: emit_grp(k, g)
    assert nU == len(UNITS)
    stamp(k, "send")
    print("g math left over", len(gm), file=sys.stderr)
    k.ext(gm)
    def padd(acc, tmp):
        for r in range(0, 16, 2): k.e(f"v_pk_add_f32 {V(acc+r,2)}, {V(acc+r,2)}, {V(tmp+r,2)}")
    k.wait(vm="I3")
    ck = arrived("s3", [(0, 3)]); k.ext(ck[0] + ck[1])
    stamp(k, "spolled")
    k.ext(unp(IN(0, 3), lambda r: 160 + r)); padd(144, 160); padd(S0, 144)
    for r in range(0, 16, 2): k.e(f"v_pk_mul_f32 {V(S0+r,2)}, {V(S0+r,2)}, {V(G0+r,2)}")
    for e_ in range(2):
        for v in range(2): k.e(f"ds_write_b128 v{10+v}, {V(S0+(e_*2+v)*4,4)} offset:{e_*2048}")
    for e_ in range(2):
        for m in range(2): k.e(f"ds_read_b128 {V(160+e_*8+m*4,4)}, v{18+m} offset:{e_*2048}", tag=f"T{e_}")
    for e_ in range(2):
        k.wait(lgkm=f"T{e_}")
        for r in range(0, 8, 2): k.e(f"v_pk_add_f32 {V(128+8*e_+r,2)}, {V(128+8*e_+r,2)}, {V(160+8*e_+r,2)}")
        for r in range(4): k.e(f"v_cvt_pk_bf16_f32 v{176+4*e_+r}, v{128+8*e_+2*r}, v{129+8*e_+2*r}")
        k.e(f"buffer_store_dwordx4 {V(176+4*e_,4)}, v27, {SR(sOut)}, s{sXW if e_ else sOo} offen {OPT.get('outf', '')}")
    z = Block(); z.name = "end"
    if OPT.get("encode") is not None:
        z.e("s_waitcnt vmcnt(0) lgkmcnt(0)"); stamp(z, "end")
        i0, i1 = (STAMPS[x] for x in OPT["encode"])
        fld = 72 if OPT.get("enccyc") else 73
        z.e(f"s_sub_u32 s92, s{fld+2*i1}, s{fld+2*i0}")
        if OPT.get("encx") is not None: z.e(f"s_and_b32 s3, s2, {OPT.get('encm', 7)}\ns_cmp_eq_u32 s3, {OPT['encx']}\ns_cselect_b32 s92, s92, 0")
        z.e("s_lshr_b32 s92, s92, 2" if OPT.get("enccyc") else "s_lshl_b32 s92, s92, 2")
        z.e(f"s_add_u32 s92, s92, 20000\nL_enc:\ns_sleep 1\ns_memrealtime s[98:99]\ns_waitcnt lgkmcnt(0)\ns_sub_u32 s98, s98, s73\ns_cmp_lt_u32 s98, s92\ns_cbranch_scc1 L_enc")
    elif OPT["stamp"]:
        z.e("s_waitcnt vmcnt(0) lgkmcnt(0)"); stamp(z, "end")
        z.e(f"s_load_dwordx2 s[96:97], s[0:1], 88\ns_waitcnt lgkmcnt(0)"); ptr_add(z, 96, 0x8000000 + 0x40000); srd_fin(z, 96, 0x40000)
        for i in range(20): z.e(f"v_mov_b32 v{36+i}, s{72+i}")
        z.e(f"s_lshl_b32 s92, s2, 2\ns_add_u32 s92, s92, s{sWave}\ns_lshl_b32 s92, s92, 7\nv_mov_b32 v2, s92\ns_mov_b64 exec, 1")
        for i in range(5): z.e(f"buffer_store_dwordx4 {V(36+4*i,4)}, v2, s[96:99], 0 offen offset:{16*i}")
    z.e("L_end:\ns_endpgm")
    fb = Block(); fb.name = "fb"
    fb.e(f"L_fallback:\ns_mov_b32 s{sFB}, 1\ns_waitcnt vmcnt(0) lgkmcnt(0)\ns_barrier\ns_branch L_restart")
    m0 = Block(); m0.name = "tm0"
    m0.e(f"L_truemax:\ns_mov_b32 s{sKo}, s{sW8k}\ns_mov_b32 s{sCnt}, 16")
    for t in range(4): m0.e(f"v_mov_b32 v{vNM+4*t}, 0xff800000")
    m0.e("s_waitcnt vmcnt(0) lgkmcnt(0)")
    m1 = Block(); m1.name = "tm1"
    m1.e("L_tm_loop:\ns_barrier")
    emit_grp(m1, dma_K(0, 0, "DK")); emit_grp(m1, dma_K(1, 0, "DK"))
    m1.e("s_waitcnt vmcnt(0)\ns_barrier")
    for g in range(8):
        m1.ext(kreads(g, 0, 0, "K0")); m1.e("s_waitcnt lgkmcnt(0)")
        for t in range(4): m1.ext(qk_chain(t, 0, "0"))
        for t in range(4):
            s0 = vS + 4 * t
            m1.e(f"v_max3_f32 v{vNM+4*t}, v{vNM+4*t}, v{s0}, v{s0+1}\nv_max3_f32 v{vNM+4*t}, v{vNM+4*t}, v{s0+2}, v{s0+3}")
    m1.e(f"s_sub_u32 s{sCnt}, s{sCnt}, 1\ns_cmp_lg_u32 s{sCnt}, 0\ns_cbranch_scc1 L_tm_loop")
    m2 = Block(); m2.name = "tm2"
    rowmax_finish(m2, lambda t: vNM + 4 * t)
    m2.e(f"s_mov_b32 s{sKo}, s{sW8k}\ns_barrier")
    emit_grp(m2, dma_K(0, 0, "DK")); emit_grp(m2, dma_K(1, 0, "DK"))
    m2.e(f"s_add_u32 s{sKo}, s{sKo}, 32768\ns_waitcnt vmcnt(0)\ns_barrier")
    m2.ext(kreads(0, 0, 0, "K0")); m2.e("s_waitcnt lgkmcnt(0)\ns_branch L_att_start")
    att = [l0, first, l1, l1b, even, odd, l1b, even, odd, l4, last, f]
    front = [b2, c] + PJ['F'] + [e]; frontS = [b2, c] + PJ['S'] + [e]
    vb = []
    finalize([[b_] + front + [e2] + att + [k, z], [b_] + frontS + [e2] + att + [fb] + frontS + [m0, m1, m1, m2] + att + [k, z], [b_] + front + [m0, m1]] + [[s] for s in SLOW], vb)
    for fr in (front, frontS): check_groups([x for bb in [b_] + fr + [e2] + att + [k, z] for x in bb.ins])
    for x in vb:
        if x[0].startswith("att") or x[0] in ("projF", "projS"): print("nop:", x, file=sys.stderr)
    cend = Block(); cend.e('L_code_end:')
    layout = [b_, b2, c] + PJ['S'] + [e, e2, l0, first, l1, l1b, even, odd, l4, last, f, k, z] + PJ['F'] + [cend, fb, m0, m1, m2] + SLOW
    note = {id(b2): "set-up, first loads", id(c): "set-up under the first loads", id(PJ['S'][0]): "projection, odd ids (48 FFN columns)", id(PJ['F'][0]): "projection, even ids (64 FFN columns)",
            id(PJ['S'][2]): "Q and the rest of h; scores of the first 16 keys", id(PJ['F'][2]): "Q and the rest of h; scores of the first 16 keys", id(e2): "stand-in row maximum",
            id(first): "tile 0: scores and exponentials only", id(even): "tile pair: QK of the next tile beside PV of this one", id(last): "tiles 14 and 15, normalisation and O stores",
            id(f): "check of the stand-in maximum", id(k): "tail: g stages, then the four row strips", id(fb): "stand-in was unsafe: start again", id(m0): "true row maximum over all keys", id(SLOW[0]): "bounded waits"}
    return kernel_head(KN) + "\n".join((f"; ---- {note[id(x)]}\n" if id(x) in note else "") + x.text() for x in layout) + "\n" + kernel_desc(KN, 512, 256)


DOC = """
;
; Workgroup (q block of 256 rows, head); each wave owns 64 rows.  All products use v_mfma_f32_16x16x32_bf16, transposed (D = [columns x rows]),
;  2. attention over 16 tiles of 128 keys, K/V staged by LDS-DMA.  exp2(s - m) uses as m the maximum over the row's first 16 keys (it enters as
; partial tiles are recognised by the absence of an all-ones mark written earlier in the launch.  Every wait loop is bounded.
"""
def build():
    head = open("cdna_kernels/" + NAME + ".s.ref").read().split("; Override launch")[0]
    s = head + "; @launch grid=(256,1,1) block=(256,1,1) lds=163840\n" + '.amdgcn_target "amdgcn-amd-amdhsa--gfx950"\n' + DOC.lstrip("\n")
    plan_units()
    return s + gen_kernel()

if __name__ == "__main__":
    out = sys.argv[1] if len(sys.argv) > 1 else "cdna_kernels/" + NAME + ".s"
    for a in sys.argv[2:]:
        k, v = a.split("="); OPT[k] = eval(v)
    names = OPT.get("stamps", "p0,p4,projend,att0,loop,last,tail0,gend").split(",")
    STAMPS.update({n: i + 1 for i, n in enumerate(names)}); STAMPS["start"] = 0; STAMPS["end"] = 9
    open(out, "w").write(build())
```

```python
import sys, math, struct, re
sys.path.insert(0, "gen")
from asmgen import *

NAME = "recurrent_scan__mha_block_cached__glu_gated_swiglu__prompt"
KN = NAME + "_kernel"
WS_ST, WS_FH, WS_FO, WS_FG, WS_FS = 0, 0x8000, 0x10000, 0x18000, 0x20000
WS_B, WS_X = 0x200000, 0x2000000
BSTRIDE = 184 * 1024
LOG2E = 1.4426950408889634
OOB = 0x7ffffff0
def f32(x): return "0x%08x" % struct.unpack("<I", struct.pack("<f", x))[0]
OPT = dict(stamp=False, early=7, pollstage=3, polld=1, htrip=2, flagstage=0, osr=1, osg=4, fgstage=5, fsstage=11, lead=5, ramp=0, i3st=14, i3gap=3, s3lo=12, fin2=(20, 10), tq0=0, pa=.1, pb=.75, pc=.4, x2o=.15, x3a=.92, nh=3, nhS=4, sthiS=.45, pre="Q0 S", sthi=.2,
    sch=[(.05,'W1 r1 G1 Q1'),(.75,'x1 W2'),('o',1,1.45,1.65),(0,'r2 G2 W3 A'),(2.25,'x2 W4 G3 Q2'),('o',2,3.05,3.25),(0,'r3 Q3 C'),(3.7,'x3 W5'),(4.5,'W6'),('o',3,4.6,4.9)], clrpos=(7, 5), asat=(-9, -9, -9, -9, 0, 0, 1, 1, 2, 2, 3, 3, 4, 4, 6, 5), bsat=(0, 0, 0, 0, 0, 2, 2, 3, 4, 6, 6, 7, 8, 10, 10, 11), gld=4, gck=7)

L_K, L_SP, L_V = 0, 65536, 98304
sX, sWQ, sW1, sW3, sK, sV, sB, sH, sWS, sDBG, sWO, sW2, sOut = range(4, 56, 4)
sHead, sQb, sWave, sW8k, sW4k, sXb, sKo, sVo, sCnt, sT, sT2, sWQo, sW13o, sBo, sFB, sW16k = range(56, 72)
sTr, sTc, sSp = 93, 94, 95
sTW, sT2W = 100, 101
sFs, sFv = 92, sOut + 2
vL16, vKA, vVA, vDK, vDV, vIDX, vT = 1, 2, 6, 14, 18, 20, 24
vS, vNM = 32, 48
def Q(t, ds): return 64 + (t * 4 + ds) * 4
def P(pb, kk, t): return 128 + pb * 64 + (t * 4 + kk) * 4
def O(dt, t): return (dt * 4 + t) * 4
def VF(b, kk): return (128 + b * 16 if b < 4 else 148 + b * 16) + kk * 4
aL, aONES = 192, 208
def KF(b, ds): return 212 + b * 16 + ds * 4
aCHK, aZ = 244, 248
vWQA, vW13A, vDQ, vD13, vXA, vDX = 24, 28, 32, 36, 40, 44

def SR(s): return f"s[{s}:{s+3}]"
def MF(d, a, bb, c): return Ins(f"v_mfma_f32_16x16x32_bf16 {d}, {a}, {bb}, {c}")
def II(txt, tag=None): return [Ins(x, tag=tag) for x in txt.split("\n") if x.strip()]
def srd_fin(b, d, nrec):
    b.e(f"s_and_b32 s{d+1}, s{d+1}, 0xffff\ns_mov_b32 s{d+2}, {nrec}\ns_mov_b32 s{d+3}, 0x20000")
def ptr_add(b, d, off): b.e(f"s_add_u32 s{d}, s{d}, {off}\ns_addc_u32 s{d+1}, s{d+1}, 0")

def stamp_ins(i):
    if not OPT["stamp"] or i is None: return []
    return II(f"s_waitcnt lgkmcnt(0)\ns_memtime s[96:97]\ns_memrealtime s[98:99]\ns_waitcnt lgkmcnt(0)\ns_mov_b32 s{72+2*i}, s96\ns_mov_b32 s{73+2*i}, s98")
_jit = [0]
def jitter(b, wave=False):
    if not OPT.get("jit"): return
    _jit[0] += 1; n = _jit[0]
    b.e(f"s_waitcnt lgkmcnt(0)\ns_memtime s[96:97]\ns_waitcnt lgkmcnt(0)\ns_lshr_b32 s96, s96, {4 if wave else 14}\ns_add_u32 s96, s96, s2\ns_mul_i32 s96, s96, 0x9e3779b1\ns_lshr_b32 s96, s96, 16\ns_mul_i32 s96, s96, {OPT['jit'] // (8 if wave else 1)}\ns_lshr_b32 s96, s96, 16\ns_add_u32 s96, s96, 1")
    b.e(f"L_jit{n}:\ns_sleep 1\ns_sub_u32 s96, s96, 1\ns_cmp_lg_u32 s96, 0\ns_cbranch_scc1 L_jit{n}")
STAMPS = {}
def stamp(b, name):
    b.ext(stamp_ins(STAMPS.get(name)))
    if name in ("karg", "projend", "last", "tail0", "s0", "s6", "s13"): jitter(b)
    if name in ("p0", "att0", "loop", "attend", "send") or re.fullmatch(r"[gs]\d+", name): jitter(b, True)

class Gap:
    def __init__(self, m): self.m = m; self.scal = []; self.vec = []; self.load = 0
def cost_of(ins): return 2 if (ins.kind == "trans" or ins.is_vmem) else (0 if ins.kind in ("salu", "wait", "sctl", "label") else 1)
def is_ds(x): return x.kind in ("dsread", "dswrite")
def dep(a, b): return bool(a.writes & (b.reads | b.writes)) or bool(a.reads & b.writes)
class TL:
    def __init__(self): self.g = []
    def add(self, m):
        gp = Gap(m); self.g.append(gp)
        if m.op.startswith("v_smfmac"): gp.load = 1
        if "32x32" in m.op: gp.load = -4
        return len(self.g) - 1
    def pen(self, i, ins):
        gp = self.g[i]; l = gp.load + cost_of(ins)
        if is_ds(ins) and any(x.is_vmem for x in gp.vec): l += OPT.get("vmpen", .5)
        if is_ds(ins):
            if any(is_ds(x) for x in gp.vec): l += 1
            if any(x.is_valu and dep(x, ins) for x in gp.vec): l += 2
        return l
    def vec_at(self, i, ins):
        gp = self.g[i]; k = len(gp.vec)
        if is_ds(ins) or ins.is_vmem:
            while k > 0 and gp.vec[k - 1].is_valu and not dep(gp.vec[k - 1], ins): k -= 1
        gp.vec.insert(k, ins); gp.load += cost_of(ins)
    def vec_in(self, lo, hi, items):
        extra = {i: 0 for i in range(lo, hi + 1)}
        cand = []
        for it in items:
            i = min(extra, key=lambda k: (max(self.pen(k, it) + extra[k], 2), self.pen(k, it) + extra[k] if not OPT.get("pack") else 0, k)); cand.append(i); extra[i] += 2
        cand.sort()
        for i, it in zip(cand, items): self.vec_at(i, it)
        return cand
    def scal_at(self, i, ins, later=True):
        while self.g[i].scal: i += 1 if later else -1
        self.g[i].scal.append(ins); return i
    def spread(self, lo, hi, groups):
        n = sum(len(g[1]) for g in groups); k = 0; prev = lo - 3
        for grp in groups:
            sc, ve, post = grp
            for x in ve: x.grp = grp; x.role = "vec"
            first = True
            for it in ve:
                tgt = lo + (hi - lo) * k // max(n - 1, 1); k += 1
                mn = prev + 1
                if first:
                    i = max(prev + 1, tgt - len(sc) - 1)
                    for x in sc: i = self.scal_at(i, x) + 1
                    mn = max(mn, i); first = False
                cands = [j for j in range(max(mn, tgt - 1), max(mn, tgt - 1) + 4) if j < len(self.g)]
                j = min(cands, key=lambda z: (self.g[z].load, abs(z - tgt)))
                self.vec_at(j, it); prev = j
            for x in post: prev = self.scal_at(prev + 1, x)
        return prev
    def stream(self, lo, hi, items, cap=2):
        i = lo; items = list(items)
        while items and i <= hi:
            it = items[0]; c = cost_of(it)
            if c == 0:
                i += 1
                while i <= hi and self.g[i].scal: i += 1
                if i > hi: break
                self.g[i].scal.append(it); items.pop(0); continue
            if self.pen(i, it) <= cap: self.vec_at(i, it); items.pop(0)
            else: i += 1
        return items
    def sched(self, lo, hi, items, look=70, lat=6):
        items = list(items); rw = {}; pos = {}
        for x in items:
            r, w = set(x.reads), set(x.writes)
            if x.waitfor is not None:
                for y in items:
                    if y.tag is not None and any(y.tag in t for t in x.waitfor.values()): r |= y.writes; w |= y.writes
                r |= getattr(x, "guards", set()); w |= getattr(x, "guards", set())
            if x.is_vmem: r.add("vm"); w.add("vm")
            if x.kind == "salu": r.add("scc"); w.add("scc")
            rw[id(x)] = (r, w)
        dp = lambda a, b: bool(rw[id(a)][1] & (rw[id(b)][0] | rw[id(b)][1])) or bool(rw[id(a)][0] & rw[id(b)][1])
        placed = []
        def ready(k, i):
            x = items[k]
            if any(dp(y, x) for y in items[:k]): return False
            for y in placed[-40:]:
                if not dp(y, x): continue
                d = 0
                if cost_of(x) == 0 or is_ds(x) or x.is_vmem: d = 1 if cost_of(y) > 0 or cost_of(x) == 0 else 0
                if x.waitfor is not None and is_ds(y): d = lat
                if (getattr(x, "dpp", False) or getattr(x, "permlane", False)) and y.is_valu: d = 2
                if i < pos[id(y)] + d: return False
            return True
        for i in range(lo, hi + 1):
            for want in (0, 2, 1, 1, 1, 1, 1, 1):
                for k in range(min(look, len(items))):
                    x = items[k]
                    if cost_of(x) != want: continue
                    if (self.g[i].scal if want == 0 else self.pen(i, x) > 2) or not ready(k, i): continue
                    if want == 0: self.g[i].scal.append(x)
                    else: self.vec_at(i, x)
                    pos[id(x)] = i; placed.append(x); items.pop(k); break
        return items
    def emit(self, lo, hi, name):
        b = Block(); b.name = name
        for gp in self.g[lo:hi]:
            if gp.m is not None: b.add(gp.m)
            b.ext(gp.scal); b.ext(gp.vec)
        return b

SLOW = []
def poll_check(name, vreg, load_txt, ready_cmp):
    inl = II(ready_cmp) + II(f"s_cbranch_scc0 L_spin_{name}\nL_back_{name}:")
    sl = Block(); sl.name = "spin" + name
    sl.e(f"L_spin_{name}:\ns_mov_b32 s3, 0x40000\nL_spin2_{name}:\ns_sleep {OPT.get('slp', 2)}\n{load_txt}\ns_waitcnt vmcnt(0)\ns_sub_u32 s3, s3, 1\ns_cmp_eq_u32 s3, 0\ns_cbranch_scc1 L_back_{name}")
    sl.e(ready_cmp); sl.e(f"s_cbranch_scc0 L_spin2_{name}\ns_branch L_back_{name}")
    SLOW.append(sl)
    return inl

def dma_K(half, buf, tag):
    return (II(f"s_add_u32 m0, s{sW8k}, {L_K + buf*32768 + half*4096}"),
            [Ins(f"buffer_load_dwordx4 v{vDK+p}, {SR(sK)}, s{sKo} offen offset:{p*1024} lds", tag=tag) for p in range(4)],
            II(f"s_add_u32 s{sKo}, s{sKo}, {4096 if half == 0 else 28672}"))
def dma_V(half, buf, tag):
    return (II(f"s_add_u32 m0, s{sW8k}, {L_V + buf*32768 + half*4096}"),
            [Ins(f"buffer_load_dwordx4 v{vDV+(p&1)}, {SR(sV)}, s{sVo} offen offset:{p*1024} lds", tag=tag) for p in range(4)],
            II(f"s_add_u32 s{sVo}, s{sVo}, {4096 if half == 0 else 28672}"))
def emit_grp(b, d): b.ext(d[0]); b.ext(d[1]); b.ext(d[2])
def check_groups(trace):
    last = {}; cnt = {}
    for x in trace:
        g = getattr(x, "grp", None)
        if g is not None and x.role == "vec":
            for r in x.reads:
                ws_ = [sc for sc in g[0] if r in sc.writes]
                if ws_: assert last.get(r) is ws_[-1], ("group scalar clobbered", x.text, last.get(r))
            for sc in g[2]:
                for r in sc.writes & x.reads:
                    key = (id(g), r)
                    if x is g[1][0]: cnt[key] = last.get(r)
                    assert last.get(r) is cnt[key] and (len(g[1]) == 1 or last.get(r) is not sc), ("post scalar order", x.text)
        for r in x.writes:
            if r[0] == "s" or r == "m0": last[r] = x
def kreads(g, buf, fb, tag):
    return [Ins(f"ds_read_b128 {A(KF(fb,ds),4)}, v{vKA+ds} offset:{buf*32768+g*4096}", tag=tag) for ds in range(4)]
def vreads(dt, buf, fb, tag):
    return [Ins(f"ds_read_b64_tr_b16 {A(VF(fb,kk)+2*kh,2)}, v{vVA+dt} offset:{buf*32768+(32*kk+16*kh)*256}", tag=tag) for kk in range(4) for kh in range(2)]
def snake(t): return range(4) if t % 2 == 0 else range(3, -1, -1)
def qk_chain(t, fb, c0):
    d = V(vS + 4 * t, 4)
    return [MF(d, A(KF(fb, ds), 4), V(Q(t, ds), 4), c0 if n == 0 else d) for n, ds in enumerate(snake(t))]
def pv_chain(dt, t, fb, pb):
    d = A(O(dt, t), 4)
    return [MF(d, A(VF(fb, kk), 4), V(P(pb, kk, t), 4), d) for kk in snake(t)]
def rs(t, kp, pb): return Ins(f"v_smfmac_f32_16x16x64_bf16 {A(aL+4*t,4)}, {A(aONES,4)}, {V(P(pb,2*kp,t),8)}, v{vIDX}")

vDA, vB1, vPoll, vPA = 14, 30, 29, 23
vRAs, vRB, vRAg = 6, (12, 13, 20), 48
sM, sAo, sWOo, sW2o = sW4k, sT2, sWQo, sW13o
sBg, sQ0, sBt = sXb, sW1 + 3, sKo
sBs = [sDBG, sDBG + 1, sDBG + 2, sDBG + 3]
sXP = sH
sXW, sXR, sOo, sFl2 = sW16k, 92, sQ0, 99
sGk = list(range(sWQ, sWQ + 7))
sHp = list(range(sW3, sW3 + 4))
UNITS = []; USEQ = {}; RD = {}
def plan_units():
    for n in range(-1, 22):
        r = [("Ag", n + 1), ("Bg", n + 1)] if n < 6 else [("Bs", n - 6)]
        r = [("As", a) for a in range(16) if OPT["asat"][a] == n] + r if n == 6 else r + [("As", a) for a in range(16) if OPT["asat"][a] == n]
        RD[n] = list(range(len(UNITS), len(UNITS) + len(r))); UNITS.extend(r)
    RD[22] = []
    USEQ.update({u: n for n, u in enumerate(UNITS)})
    for a in range(16): assert OPT["asat"][a] <= 6 + a // 4
    assert OPT["asat"][14] >= 6 and max(OPT["asat"]) <= 9
def udma(n):
    kind, i = UNITS[n] if isinstance(n, int) else n
    m0 = f"s_add_u32 m0, s{sM}, {uslot((kind, i))*16384}\n"; tag = f"U{n}" if isinstance(n, int) else f"E{i}"
    rot = OPT.get("rot", 1)
    if kind[0] == "A":
        sr, so = (sW2, sW2o) if kind == "Ag" else (sWO, sWOo)
        if kind == "As": ad = f"s_xor_b32 s{sAo}, s{so}, {i*65536}"
        else: ad = f"s_lshl_b32 s{sAo}, s{sGk[i]}, 5\ns_add_u32 s{sAo}, s{sAo}, s{so}"
        return (II(m0 + ad),
                [Ins(f"buffer_load_dwordx4 v{vDA+p}, {SR(sr)}, s{sAo} offen offset:{p*1024} lds", tag=tag) for p in range(4)], [])
    if kind == "Bg":
        return (II(m0 + f"s_add_u32 s{sBt}, s{sBg}, s{sGk[i]}"),
                [Ins(f"buffer_load_dwordx4 v{vL16 if p < 2 else vB1}, {SR(sB)}, s{sBt} offen offset:{p*1024} sc1 lds", tag=tag) for p in range(4)], [])
    bs, hp = sBs[(1, 2, 3, 0)[i >> 2]], sHp[i & 3]
    return (II(m0 + f"s_add_u32 s{sBt}, s{bs}, s{hp}"),
            [Ins(f"buffer_load_dwordx4 v{vL16}, {SR(sB)}, s{sBt} offen offset:{p*1024} sc1 lds", tag=tag) for p in range(4)], [])
XSLOT = {("As", 0): 0, ("As", 1): 1, ("As", 2): 4, ("As", 3): 5}
def uslot(u): return XSLOT[u] if u not in USEQ else USEQ[u] % 10
def uloc(u): sl = uslot(u); return sl // 4, (sl % 4) * 16384
_first = list(range(160, 192, 4)) + [0, 4, 16, 20, 32, 36, 48, 52]
ASREG = _first + [r for r in range(0, 256, 4) if r not in _first]
assert ASREG[56:60] == [224, 228, 232, 236]
def AS(v, ks): return ASREG[ks * 2 + v]
def AG(i, v, ks): return ("v", 32 + (v * 2 + ks) * 4) if i % 2 == 0 else ("a", 224 + (v * 2 + ks) * 4)
def BF(n, m): return 64 + (n & 1) * 64 + m * 4
def ACG(j, v): return 192 + (j * 2 + v) * 4
def ACS(q, v): return 32 + (q * 2 + v) * 4
def ureads(u, vRAs=vRAs):
    kind, i = UNITS[u] if isinstance(u, int) else u
    st, o = uloc((kind, i))
    if kind == "As":
        return [Ins(f"ds_read_b64_tr_b16 {A(AS(v,2*i+ks)+2*kh,2)}, v{vRAs+2*st+v} offset:{o+ks*8192+kh*4096}", tag="R") for ks in range(2) for v in range(2) for kh in range(2)]
    if kind == "Ag":
        return [Ins(f"ds_read_b64_tr_b16 {R(AG(i,v,ks)[0], AG(i,v,ks)[1]+2*kh, 2)}, v{vRAg+4*st+2*kh+v} offset:{o+ks*8192}", tag="R") for v in range(2) for ks in range(2) for kh in range(2)]
    n = i if kind == "Bg" else 7 + i
    return [Ins(f"ds_read_b128 {V(BF(n,m),4)}, v{vRB[st]} offset:{o+m*1024}", tag="R") for m in range(16)]
OSTORES = []
EARLY = []

def gen_attention(l0items):
    tl = TL()
    phases = [-1, 0, 1, 2, 3, 15]
    VPOS = OPT.get("vmpos", (5, 13, 21, 29))
    start = {}; stepb = {}
    for p in phases:
        start[p] = len(tl.g)
        if p == 15:
            def qk(t, s):
                d = V(vS + 4 * (2 * (s & 1) + (t & 1)), 4)
                for n, ds in enumerate(snake(t)): tl.add(MF(d, A(KF(s & 1, ds), 4), V(Q(t, ds), 4), V(vNM + 4 * t, 4) if n == 0 else d))
            def pv(dt, t, vs, pb, fwd):
                d = A(O(dt, t), 4)
                for kk in (range(4) if fwd else range(3, -1, -1)): tl.add(MF(d, A(VF(vs, kk), 4), V(P(pb, kk, t), 4), d))
            FR = [(i, t) for h_ in (0, 2) for i in range(4) for t in (h_, h_ + 1)]
            ost = lambda n: 128 + (FR[n][1] * 4 + FR[n][0]) * 4
            mk = lambda n: MF(A(aCHK, 4), A(aZ, 4), V(ost(n), 4), "0" if n == 0 else A(aCHK, 4))
            xb = {}; cdone = {}; chkpos = {}
            def chk(n): chkpos[n] = tl.add(mk(n))
            v3 = lambda dt: (0, 4, 1, 5)[dt & 3]
            for s in range(8):
                xb[s] = len(tl.g); qk(0, s); qk(1, s)
                for t in range(4): pv(s, t, s & 1, 0, 1 - (t & 1))
                tl.add(rs(s >> 1, s & 1, 0))
            for s in range(8):
                xb[8 + s] = len(tl.g); qk(2, s); qk(3, s)
                pv(s, 0, s & 1, 1, 1)
                if s & 1: cdone[s - 1] = len(tl.g) - 1
                pv(s, 1, s & 1, 1, 0)
                if s & 1: cdone[s] = len(tl.g) - 1
                if s == 0:
                    for t in (0, 1): tl.add(rs(t, 0, 1)); tl.add(rs(t, 1, 1))
                if s >= 4: chk(s - 4)
            for n in range(8, 16):
                i, t = FR[n]; xb[8 + n] = len(tl.g)
                if i == 0: tl.add(rs(t, 0, 1)); tl.add(rs(t, 1, 1))
                a_, b_ = (2 * i, 2 * i + 1) if t == 2 else (2 * i + 1, 2 * i)
                pv(a_, t, v3(a_), 1, 1); pv(b_, t, v3(b_), 1, 0); cdone[n] = len(tl.g) - 1
                chk(n - 4)
            xb[24] = len(tl.g)
            continue
        for s in range(8):
            stepb[p, s] = len(tl.g)
            if p != 15:
                for t in range(4):
                    for m in qk_chain(t, s & 1, V(vNM + 4 * t, 4)): tl.add(m)
            if p == -1:
                tl.add(Ins(f"v_mfma_f32_32x32x16_bf16 {A(16*s,16)}, {A(aZ,4)}, {A(aZ,4)}, 0"))
                if s == 0: tl.add(Ins(f"v_mfma_f32_32x32x16_bf16 {A(aL,16)}, {A(aZ,4)}, {A(aZ,4)}, 0"))
            else:
                for t in range(4):
                    for m in pv_chain(s, t, s & 1, p & 1): tl.add(m)
                if p != 15:
                    tl.add(rs(s >> 1, s & 1, p & 1))
    end = len(tl.g)
    nxt = {p: (start[phases[i + 1]] if i + 1 < len(phases) else end) for i, p in enumerate(phases)}
    for p in phases:
        if p == 15: continue
        pb = (p + 1) & 1
        for s in range(8):
            b0 = stepb[p, s]; nb = stepb[p, s + 1] if s < 7 else nxt[p]
            for t in range(4):
                sr = vS + 4 * t
                ex = [Ins(f"v_exp_f32 v{sr+r}, v{sr+r}") for r in range(4)]
                pd = P(pb, s >> 1, t) + 2 * (s & 1)
                cv = [Ins(f"v_cvt_pk_bf16_f32 v{pd+h}, v{sr+2*h}, v{sr+2*h+1}") for h in range(2)]
                if p >= 0:
                    o = b0 + 8 * t + (1 if t == 3 else 0)
                    pe = [o + 8 + 2 * r for r in range(4)]; pc = [o + 11, o + 15]
                else:
                    pe = [b0 + 4 * t + 8 + r for r in range(4)]; pc = [b0 + 4 * t + 10, b0 + 4 * t + 12]
                    if s == 7:
                        pe = [min(x, nb - 1) for x in pe]; pc = [min(x, nb - 1) for x in pc]
                        if t == 3: pe = [nb + 0, nb + 2, nb + 4, nb + 6]; pc = [nb + 3, nb + 7]
                seq = sorted([(pe[0],0,ex[0]),(pe[1],1,ex[1]),(pc[0],3 if p < 0 else 2,cv[0]),(pe[2],2.5,ex[2]),(pe[3],4,ex[3]),(pc[1],5,cv[1])], key=lambda z: (z[0], z[1]))
                for pos, _, ins in seq: tl.vec_at(pos, ins)
    for p in phases:
        if p == 15: continue
        if 0 <= p < 15:
            grps = [dma_K(0, p & 1, "DK"), dma_K(1, p & 1, "DK"), dma_V(0, (p + 1) & 1, "DV"), dma_V(1, (p + 1) & 1, "DV")]
            for s in range(8):
                tl.scal_at(stepb[p, s] + 15, W(lgkm=f"V{s}"), later=False)
                tl.scal_at(stepb[p, s] + 31, W(lgkm=f"K{(s+1)&7}"), later=False)
            if OPT.get("kvtouch", 1): grps.append(([], II(f"buffer_load_dword a252, v28, {SR(sK if p % 2 == 0 else sV)}, s{sKo if p % 2 == 0 else sVo} offen"), []))
            so, sr = (sTW, sWO) if p % 2 == 0 else (sT2W, sW2)
            grps.append((II(f"s_cmp_le_u32 s{sCnt}, {OPT.get('wtrip', 2)}\ns_cselect_b32 s{sT}, s{so}, 0x40000000"), II(f"buffer_load_dword a252, v{30 if p % 2 == 0 else 29}, {SR(sr)}, s{sT} offen"),
                         II(f"s_add_u32 s{so}, s{so}, {0x4000 if (p % 2 == 0 and OPT.get('wo2', 1)) else 0x2000}\ns_and_b32 s{so}, s{so}, {0x7fff if p % 2 == 0 else 0x3fff}")))
            if p % 2 == 0 and OPT.get("cpl", 1): grps.append(([], II("global_load_dword a252, v[24:25], off"), []))
            if p % 2 == 1:
                grps.append(([], II(f"buffer_store_dword v22, v21, {SR(sWS)}, 0 offen sc1"), []))
                tl.vec_at(stepb[p, 7] + 3, Ins("v_add_u32 v22, 1, v22"))
            clr = II(f"buffer_store_dwordx4 {A(aCHK,4)}, v{vL16}, {SR(sXP)}, s{sT2} offen offset:{1024*(p&1)} sc1")
            if OPT.get("clrpos") is not None: tl.vec_at(stepb[p, OPT["clrpos"][0]] + OPT["clrpos"][1], clr[0])
            elif not OPT.get("noclr"): grps.append(([], clr, []))
            if p % 2 == 0:
                q = stepb[p, 0] + 6
                for x in II(f"s_cmp_lt_u32 s{sCnt}, 5\ns_subb_u32 s3, s{sCnt}, 0\ns_and_b32 s{sT2}, s3, 3\ns_lshl_b32 s{sT2}, s{sT2}, 3\ns_or_b32 s{sT2}, s{sT2}, s3\ns_lshl_b32 s{sT2}, s{sT2}, 13\ns_xor_b32 s{sT2}, s{sT2}, s{sXR}\ns_cmp_gt_u32 s{sCnt}, 1\ns_cselect_b32 s{sT2}, s{sT2}, 0x40000000"):
                    q2 = tl.scal_at(q, x); assert q2 == q; q += 1
            if p % 2 == 0 and OPT.get("otouch"):
                grps.append((II(f"s_sub_u32 s3, s{sCnt}, {OPT['otouch']}\ns_mul_i32 s{sT}, s3, {BSTRIDE}\ns_add_u32 s{sT}, s{sT}, s{sBo}\ns_cmp_lt_u32 s3, 4\ns_cselect_b32 s{sT}, s{sT}, 0x40000000"), II(f"buffer_load_dword a252, v26, {SR(sB)}, s{sT} offen"), []))
            if p % 2 == 1 and OPT.get("htouch", 1):
                grps.append((II(f"s_cmp_eq_u32 s{sCnt}, {OPT.get('htrip', 1)}\ns_cselect_b32 s{sT}, s{sBg}, 0x40000000"), II(f"buffer_load_dword a252, v27, {SR(sB)}, s{sT} offen"), []))
            k = 0
            for grp in grps:
                for j, x in enumerate(grp[1]):
                    gi = stepb[p, k // len(VPOS)] + VPOS[k % len(VPOS)]; k += 1
                    if j == 0:
                        q = gi
                        for y in reversed(grp[0]):
                            q2 = tl.scal_at(q - 1, y, later=False); assert len(grp[0]) == 1 or q2 == q - 1; q = q2
                    tl.vec_at(gi, x); x.grp = grp; x.role = "vec"
                for x in grp[2]: gi = tl.scal_at(gi + 1, x)
            assert gi < stepb[p, 7]
            e_ = stepb[p, 7]
            if p % 2 == 1:
                tl.scal_at(e_ + 29, Ins(f"s_sub_u32 s{sCnt}, s{sCnt}, 1")); tl.scal_at(e_ + 30, Ins(f"s_cmp_lg_u32 s{sCnt}, 0")); tl.scal_at(e_ + 32, Ins("s_cbranch_scc1 L_att_loop"))
        for s in range(8):
            b0 = stepb[p, s]; nb = stepb[p, s + 1] if s < 7 else nxt[p]
            ns, npz = (s + 1) & 7, (p + 1 if s == 7 else p)
            if s == 7:
                i = tl.scal_at(b0 + (5 if p >= 0 else 4), W(lgkm=["V7", "K7"], vm=["DK", "DV"]))
                if not (OPT.get("nobar") and p >= 0): tl.scal_at(i + 1, Ins("s_barrier"))
            if p >= 0:
                kr = kreads(ns, (npz + 1) & 1, ns & 1, f"K{ns}"); vr = vreads(ns, npz & 1, ns & 1, f"V{ns}")
                free = [o for o in range(7 if s == 7 else 1, 32, 2) if not any(x.is_vmem for x in tl.g[b0 + o].vec)]
                assert len(free) >= 12
                for x, o in zip(kr + vr, free): tl.vec_at(b0 + o, x)
            else:
                tl.vec_in(b0 + 6, b0 + 10, kreads(ns, (npz + 1) & 1, ns & 1, f"K{ns}"))
                if s == 7: tl.vec_in(b0 + 10, nb - 1, vreads(0, 0, 0, "V0"))
                tl.scal_at(nb - 1, W(lgkm=f"K{ns}"), later=False)
    rot = OPT.get("rot", 1)
    sc = f"""s_add_u32 s{sXP}, s{sWS}, {WS_X}
s_addc_u32 s{sXP+1}, s{sWS+1}, 0
s_mov_b32 s{sXP+2}, 0x1000000
s_lshl_b32 s{sT}, s{sTr}, 2
s_add_u32 s{sT}, s{sT}, s{sTc}
s_lshl_b32 s{sT}, s{sT}, 2
s_add_u32 s{sT}, s{sT}, s{sSp}
s_lshl_b32 s{sT}, s{sT}, 16
s_lshl_b32 s{sXR}, s{sWave}, 11
s_add_u32 s{sXR}, s{sXR}, s{sT}
"""
    sc += f"""s_lshl_b32 s{sT}, s{sTc}, 8
s_lshl_b32 s{sWOo}, s{sWave}, 14
s_add_u32 s{sWOo}, s{sWOo}, s{sT}
s_mul_i32 s{sW2o}, s{sSp}, {448*1024}
s_add_u32 s{sW2o}, s{sW2o}, s{sWOo}
s_lshl_b32 s{sT}, s{sSp}, 20
s_add_u32 s{sWOo}, s{sWOo}, s{sT}
s_lshr_b32 s{sQ0}, s{sTr}, 1
s_lshl_b32 s{sQ0}, s{sQ0}, 2
s_and_b32 s{sT}, s{sTr}, 1
s_add_u32 s{sQ0}, s{sQ0}, s{sT}
s_lshl_b32 s{sQ0}, s{sQ0}, 2
s_xor_b32 s{sT}, s{sWave}, s{sSp}
s_and_b32 s{sT2}, s{sT}, 2
s_add_u32 s{sT}, s{sT}, s{sT2}
s_lshl_b32 s{sT}, s{sT}, 1
s_add_u32 s{sT}, s{sT}, s{sQ0}
s_mul_i32 s{sBg}, s{sT}, {BSTRIDE}
s_mul_i32 s{sT}, s{sSp}, {14*1024}
s_add_u32 s{sT}, s{sT}, {128*1024}
s_add_u32 s{sBg}, s{sBg}, s{sT}
s_lshl_b32 s{sT}, s{sHead}, 12
s_add_u32 s{sBo}, s{sBo}, s{sT}
s_mul_i32 s{sGk[0]}, s{sTc}, {4096*rot}
s_mul_i32 s{sHp[0]}, s{sTc}, {8192*rot}
s_lshl_b32 s{sT2}, s{sHp[0]}, 5
s_xor_b32 s{sWOo}, s{sWOo}, s{sT2}
"""
    for i in range(1, 7): sc += f"s_add_u32 s{sGk[i]}, s{sGk[i-1]}, 2048\ns_cmp_eq_u32 s{sGk[i]}, {7*2048}\ns_cselect_b32 s{sGk[i]}, 0, s{sGk[i]}\n"
    for i in range(1, 4): sc += f"s_xor_b32 s{sHp[i]}, s{sHp[0]}, {8192*i}\n"
    sc += f"""s_lshr_b32 s{sT}, s{sWave}, 1
s_mul_i32 s{sT}, s{sT}, {BSTRIDE}
s_and_b32 s3, s{sWave}, 1
s_lshl_b32 s3, s3, 12
s_add_u32 s3, s3, s{sT}
s_lshl_b32 s{sT}, s{sSp}, 15
s_add_u32 s3, s3, s{sT}
"""
    for lam in (3, 2, 1, 0):
        sc += f"s_xor_b32 s{sT}, s{sSp}, {lam}\ns_and_b32 s{sT2}, s{sT}, 2\ns_add_u32 s{sT}, s{sT}, s{sT2}\ns_lshl_b32 s{sT}, s{sT}, 1\ns_add_u32 s{sT}, s{sT}, s{sQ0}\ns_mul_i32 s{sBs[lam]}, s{sT}, {BSTRIDE}\ns_add_u32 s{sBs[lam]}, s{sBs[lam]}, s3\n"
    sc += f"""s_lshl_b32 s{sOo}, s{sT}, 14
s_lshl_b32 s{sT}, s{sTc}, 8
s_add_u32 s{sOo}, s{sOo}, s{sT}
s_lshl_b32 s{sT}, s{sWave}, 6
s_add_u32 s{sOo}, s{sOo}, s{sT}
s_add_u32 s{sXW}, s{sOo}, 16384
"""
    if OPT.get("noBg"): sc += f"s_mov_b32 s{sBg}, 0x40000000\n"
    if OPT.get("noOS"): sc += f"s_mov_b32 s{sBo}, 0x40000000\n"
    left = tl.sched(start[-1], nxt[-1] - 1, l0items + II(sc), look=200)
    print("first phase: left over", len(left), file=sys.stderr)
    tl.g[nxt[-1] - 1].vec += left
    T = vT
    for x in range(16):
        s_ = x & 7; b0, nb = xb[x], xb[x + 1]
        for h_ in range(2):
            t = (x >> 3) * 2 + h_; sr = vS + 4 * (2 * (s_ & 1) + h_); pd = P(1, s_ >> 1, t) + 2 * (s_ & 1); o = (nb if x >= 8 else b0 + 16) if h_ else b0 + 8
            for r in range(4): tl.vec_at(o + 2 * r, Ins(f"v_exp_f32 v{sr+r}, v{sr+r}"))
            for h in range(2): tl.vec_at(o + 3 + 4 * h, Ins(f"v_cvt_pk_bf16_f32 v{pd+h}, v{sr+2*h}, v{sr+2*h+1}"))
    for x in range(16):
        tl.scal_at(xb[x] + 7, W(lgkm=f"V{x}"))
        if x < 15: tl.scal_at(xb[x + 1] - 1, W(lgkm=f"K{x+1}"))
    for x in range(16, 24, 2): tl.scal_at(xb[x] - 1, W(lgkm=f"V{x}"))
    tl.scal_at(xb[4] + 8, W(vm="E1")); tl.scal_at(xb[4] + 9, Ins("s_barrier"))
    tl.scal_at(xb[7] + 8, W(vm=["DV", "E3"], lgkm="R")); tl.scal_at(xb[7] + 9, Ins("s_barrier"))
    tl.scal_at(xb[15] + 8, W(lgkm="R")); tl.scal_at(xb[15] + 9, Ins("s_barrier"))
    ld1 = f"buffer_load_dword v{vPoll}, v23, {SR(sWS)}, 0 offen sc1"
    chk1 = poll_check("h", vPoll, ld1, f"v_cmp_gt_u32 vcc, v31, v{vPoll}\ns_nop 0\ns_cmp_eq_u64 vcc, 0")
    def put(grps, slots):
        slots = list(slots); prev = slots[0] - 5
        for g in grps:
            for x in g[1]:
                gi = slots.pop(0)
                if x is g[1][0] and g[0]:
                    free = [q for q in range(max(prev + 1, gi - 5), gi) if not tl.g[q].scal][-len(g[0]):]
                    free = sorted(free + [gi - 1] * (len(g[0]) - len(free)))
                    for y, q in zip(g[0], free): tl.g[q].scal.append(y)
                tl.vec_at(gi, x); x.grp = g; x.role = "vec"; prev = gi
            for y in g[2]: tl.scal_at(gi + 1, y)
    assert [UNITS[u][0] for u in range(7)] == ["Ag", "Bg", "Ag", "Bg", "As", "As", "Ag"]
    sl = [xb[x] + o for x in range(8) for o in (1, 5, 13, 21)]
    put([dma_V(0, 1, "DV"), udma(("As", 0)), udma(("As", 1)), dma_V(1, 1, "DV"), udma(("As", 2)), udma(("As", 3)), ([], [Ins(ld1, tag="C1")], [])], sl[1:])
    gp = tl.g[xb[9] + 4]; gp.vec += [W(vm="C1")] + chk1; gp.load += 1
    put([udma(0), udma(6), udma(1)], [xb[7] + 13, xb[7] + 17, xb[7] + 21, xb[8] + 1, xb[8] + 5, xb[8] + 9, xb[8] + 13, xb[9] + 1, xb[9] + 5, xb[9] + 9, xb[9] + 13, xb[10] + 1])
    EARLY[:] = [0, 1, 6] + [2, 3, 4, 5][:OPT.get("e3", 4)]
    put([udma(u) for u in EARLY[3:]], [xb[x] + 6 for x in range(16, 24)] if len(EARLY) <= 5 else [xb[x] + o for x in range(16, 24) for o in ((1, 5) if x == 16 else (0, 6))])
    su = II(f"""v_bfe_u32 v{T}, v0, 4, 2
v_mul_u32_u24 v{T}, 768, v{T}
v_add_u32 v{vDA}, v{vDV}, v{T}
v_add_u32 v{vDA+1}, v{vDV+1}, v{T}
v_add_u32 v{vDA+1}, 3072, v{vDA+1}
v_add_u32 v{vDA+2}, 6144, v{vDA}
v_add_u32 v{vDA+3}, 6144, v{vDA+1}
v_add_u32 v{vB1}, {BSTRIDE-2048}, v{vL16}""")
    su2 = II(f"""s_lshl_b32 s{sT}, s{sWave}, 6
s_or_b32 s{sT}, s{sT}, {L_V}
v_xor_b32 v25, s{sT}, v{vVA}
v_xor_b32 v26, s{sT}, v{vVA+1}
v_add_u32 v27, 0x10000, v25
v_add_u32 v28, 0x10000, v26""")
    for n in range(16):
        i, t = FR[n]
        OSTORES.append((II(f"s_add_u32 s{sCnt}, s{sBo}, {t*BSTRIDE}"),
                        [Ins(f"buffer_store_dwordx4 {V(ost(n),4)}, v{vL16}, {SR(sB)}, s{sCnt} offen offset:{1024*i} sc1", tag="OS")], []))
    ospos = {}
    for n in range(13):
        ospos[n] = xb[11 + n] + (OPT.get("os2", 9) if n < 5 else (9, 3, 2)[min(n - 5, 2)]); put([OSTORES.pop(0)], [ospos[n]])
    for x in range(15):
        nx = x + 1; b0, nb = xb[x], xb[nx]
        if x < 8:
            kr = kreads(nx & 7, 1, nx & 1, f"K{nx}"); vr = vreads(nx & 7, nx >> 3, nx & 1, f"V{nx}")
            if x == 0: tl.vec_in(b0 + 3, nb - 5, kr); tl.vec_in(b0 + 9, nb + 2, vr)
            elif x < 7: tl.vec_in(b0 + 3, nb - 2, kr + vr)
            else: tl.vec_in(b0, b0 + 7, kr); tl.vec_in(b0 + 11, nb + 3, vr)
        else:
            tl.vec_in(b0 + 3, b0 + 11, kreads(nx & 7, 1, nx & 1, f"K{nx}"))
            tl.vec_in(b0 + 8, nb + 2, vreads(nx & 7, 1, nx & 1, f"V{nx}"))
    for i in range(4):
        r = vreads(2 * i, 1, v3(2 * i), f"V{16+2*i}") + vreads(2 * i + 1, 1, v3(2 * i + 1), f"V{16+2*i}")
        tl.vec_in(xb[15] + 3 if i == 0 else xb[14 + 2 * i], xb[16 + 2 * i] - 3, r)
    left = tl.stream(xb[0], xb[1] + 4, su, cap=3); assert not left
    left = tl.stream(xb[2], xb[4], su2); assert not left
    tl.vec_in(xb[4] + 10, xb[7] + 1, ureads(("As", 0), 25) + ureads(("As", 1), 25))
    vRL = vNM
    def lr(t): return II(f"v_accvgpr_read_b32 v{vRL+4+t}, a{aL+4*t}\nv_accvgpr_read_b32 v{vRL+t}, a{aL+4*t+1}\nv_add_f32 v{vRL+4+t}, v{vRL+4+t}, v{vRL+t}\nv_rcp_f32 v{vRL+t}, v{vRL+4+t}")
    left = tl.stream(xb[9] + 4, xb[10] - 1, lr(0) + lr(1), cap=4); assert not left
    where = lambda y: max(q for q, gp in enumerate(tl.g) if any(x is y for x in gp.vec))
    lo = xb[10]; tail_ = []
    for n in range(16):
        i, t = FR[n]; o = ost(n); tb = 64 + 8 * (n & 1)
        ar = [(k, O(2 * i + (k >> 2), t) + (k & 3)) for k in range(8)]
        if t == 3: ar = ar[4:] + ar[:4]
        items = (lr(t) if n in (8, 9) else []) + II("\n".join(f"v_accvgpr_read_b32 v{tb+k}, a{a_}" for k, a_ in ar))
        items += II("\n".join(f"v_mul_f32 v{tb+k}, v{tb+k}, v{vRL+t}" for k, a_ in ar))
        items += II("\n".join(f"v_cvt_pk_bf16_f32 v{o+k}, v{tb+2*k}, v{tb+2*k+1}" for k in range(4)))
        lo = max(lo, cdone[n] + 2)
        if tail_ or lo >= end: tail_ += items; continue
        hi = min(ospos.get(n, end), chkpos.get(n, end + 1) - 1) - 1
        hi2 = min(hi, lo + (OPT.get("epspan", 17) if n < 6 else OPT.get("epspan3", 7)))
        for cap in (2, 3, 4, 5, 6, 7, 8):
            room = sum(max(0, cap - tl.g[q].load) for q in range(lo, hi2 + 1) if not any(x.is_vmem for x in tl.g[q].vec))
            if room >= len(items) + 2: break
        blocked = [q for q in range(lo, hi + 1) if any(x.is_vmem for x in tl.g[q].vec)]
        for q in blocked: tl.g[q].load += 10
        left = tl.stream(lo, hi, items, cap=cap)
        for q in blocked: tl.g[q].load -= 10
        if left: assert n >= 13, n; tail_ += left
        else: lo = where(items[-1])
        if n in (1, 3):
            q = where(items[7]) + 1; assert q + 12 < xb[15] + 2
            tl.vec_in(q, min(q + 24, xb[15] + 2), ureads(("As", 2 + n // 2), 25))
    print("ending: VALU left over", len(tail_), file=sys.stderr)
    blk = {p: tl.emit(start[p], nxt[p], f"att{p}") for p in phases}
    tx = lambda b: [(i.text, str(i.waitfor), i.tag) for i in b.ins]
    assert tx(blk[0]) == tx(blk[2]) and tx(blk[1]) == tx(blk[3])
    last = blk[15]
    for nm, x in (("x2", 8), ("x3", 16)):
        k_ = next(q for q, y in enumerate(last.ins) if y is tl.g[xb[x]].m); last.ins[k_:k_] = stamp_ins(STAMPS.get(nm))
    if OPT.get("osl"):
        assert len(tail_) == 20
        o13, o14 = OSTORES.pop(0), OSTORES.pop(0)
        last.ins += o13[0] + o13[1] + tail_[:8] + [mk(12)] + o14[0] + tail_[8:12] + o14[1] + [mk(13)] + tail_[12:16] + [mk(14)] + tail_[16:]
    else: last.ins += tail_[:-12] + [mk(12)] + tail_[-12:-8] + [mk(13)] + tail_[-8:-4] + [mk(14)] + tail_[-4:]
    last.tailchk = mk(15)
    return blk[-1], blk[0], blk[1], last

PARTS = [("G", 0), ("Q", 0), ("G", 1), ("Q", 1), ("G", 2), ("G", 3), ("Q", 2), ("Q", 3)]
SLOT = lambda i: (L_V + 32768, L_SP, L_V)[i % 3]
vNMU, vAQ, vAE, vIR = 32, 36, 40, 44
def XB(c, t, ks): return (c & 1) * 64 + (t * 4 + ks) * 4
def WF(fb, ks): return 212 + fb * 16 + ks * 4
def pacc(kind, u, t):
    if kind == "G": return V(128 + (u & 1) * 64 + ((u >> 1) * 4 + t) * 4, 4)
    ds, hf = u >> 1, u & 1
    return V(Q(t, ds), 4) if hf == 0 else A(128 + (t * 4 + ds) * 4, 4)
def wdma(i):
    kind, c = PARTS[i]; base = SLOT(i); g = []
    if kind == "Q":
        for half in range(2):
            g.append((II(f"s_add_u32 m0, s{sW8k}, {base + half*4096}\ns_add_u32 s{sT}, s{sWQo}, {(c*128+16*half)*8192}"),
                      [Ins(f"buffer_load_dwordx4 v{vDQ+p}, {SR(sWQ)}, s{sT} offen offset:{p*1024} lds", tag=f"DW{i}") for p in range(4)], []))
    else:
        for k, sr in enumerate((sW1, sW3)):
            g.append((II(f"s_add_u32 m0, s{sW4k}, {base + k*16384}\ns_add_u32 s{sT}, s{sW13o}, {c*128*3584}"),
                      [Ins(f"buffer_load_dwordx4 v{vD13+p}, {SR(sr)}, s{sT} offen offset:{p*1024} lds", tag=f"DW{i}") for p in range(4)], []))
    return g
def xdma(c):
    return [(II(f"s_xor_b32 m0, s100, {t*4096}\ns_xor_b32 s{sT}, s101, {t*16384 + c*256}"),
             [Ins(f"buffer_load_dwordx4 v{vDX+p}, {SR(sX)}, s{sT} offen offset:{p*1024} lds", tag=f"DX{c}") for p in range(4)], []) for t in range(4)]
def xreads(c):
    return [Ins(f"ds_read_b128 {A(XB(c,t,ks),4)}, v{vXA+ks} offset:{t*4096}", tag=f"X{c}") for t in range(4) for ks in range(4)]

def gen_proj(stats, var):
    S_ = var == "S"
    O_ = lambda k, d: OPT.get(k + var, OPT.get(k, d))
    tiles = lambda i: [0, 1, 4, 5, 2, 3] if (S_ and PARTS[i][0] == "G") else list(range(8))
    base = {"G": L_V, "Q": L_SP}
    def wreads(i, u, tag):
        kind, c = PARTS[i]; off0 = SLOT(i) - base[kind]; assert 0 <= off0 <= 32768
        r = []
        for ks in range(4):
            for kh in range(2):
                if kind == "Q": ad, off = vWQA + (u >> 1), ks * 8192 + kh * 1024 + 8 * (u & 1)
                else: ad, off = vW13A + (u >> 1), ks * 4096 + kh * 512 + 16384 * (u & 1)
                r.append(Ins(f"ds_read_b64_tr_b16 {A(WF(u&1,ks)+2*kh,2)}, v{ad} offset:{off0+off}", tag=tag))
        return r
    first_reads = wreads(0, 0, "W0")
    tl = TL(); tb = {}
    for i, (kind, c) in enumerate(PARTS):
        for pos_, u in enumerate(tiles(i)):
            tb[i, pos_] = len(tl.g)
            for t in range(4):
                d = pacc(kind, u, t)
                for n, ks in enumerate(snake(t)):
                    tl.add(MF(d, A(WF(u & 1, ks), 4), A(XB(c, t, ks), 4), "0" if (c == 0 and n == 0) else d))
            if u < 2 or (S_ and kind == "G" and u >= 4):
                d = A(aL + (8 if kind == "Q" else 0) + 4 * u, 4) if u < 2 else V(176 + 4 * (u - 4), 4)
                for kp in range(2): tl.add(Ins(f"v_smfmac_f32_16x16x64_bf16 {d}, {A(aONES,4)}, {A(WF(u&1,2*kp),8)}, v{vIDX}"))
    end = len(tl.g)
    tb[8, 0] = end
    LAST = lambda i: tb[i, len(tiles(i)) - 1]
    extra_vm = {1: ["ST"], 7: ["DK0"]}
    for i, (kind, c) in enumerate(PARTS):
        for u in range(len(tiles(i))):
            b0 = tb[i, u]; nb = tb.get((i, u + 1), tb[i + 1, 0])
            if b0 != LAST(i):
                r = wreads(i, tiles(i)[u + 1], f"W{u+1}")
                for k, x in enumerate(r): tl.vec_at(b0 + O_('wpos', (0, 1, 2, 4, 5, 6, 8, 9))[k], x)
                tl.scal_at(nb - 1, W(lgkm=f"W{u+1}"), later=False)
            else:
                vm = ([f"DW{i+1}"] if i < 7 else []) + extra_vm.get(i, [])
                tl.scal_at(b0, W(vm=vm, lgkm={4: ["X3"], 5: ["CS"], 7: ["CS"]}.get(i)))
                tl.scal_at(b0 + 1, Ins("s_barrier"))
                if i < 7:
                    nk = PARTS[i + 1][0]
                    if not 0 <= SLOT(i + 1) - base[nk] <= 32768:
                        dlt = SLOT(i + 1) - base[nk]; base[nk] += dlt
                        ad = vWQA if nk == "Q" else vW13A
                        for k in range(4): tl.vec_at(b0 + k // 2, Ins(f"v_add_u32 v{ad+k}, {dlt & 0xffffffff}, v{ad+k}"))
                    tl.vec_in(b0 + 2, b0 + 9, wreads(i + 1, 0, "W0"))
                    tl.scal_at(nb - 1, W(lgkm="W0"), later=False)
                else:
                    tl.vec_in(b0 + 2, b0 + 9, kreads(0, 0, 0, "K0"))
    P_ = lambda i, f: tb[i, 0] + int(f * (tb[i + 1, 0] - tb[i, 0]))
    def xout(c, lo, hi):
        j = tl.scal_at(lo, W(vm=f"DX{c}"))
        cc = tl.vec_in(j, hi, xreads(c))
        return cc[-1]
    def tch(dst, ad, sr, so): return Ins(f"buffer_load_dword a252, v{ad}, {SR(sr)}, {so} offen")
    TQ = lambda c: [(II(f"s_mov_b32 s{sT}, {c*128*8192}"), [tch(55, 22, sWQ, f"s{sT}")], [])]
    TG = lambda c: [(II(f"s_mov_b32 s{sT}, {c*128*3584}"), [tch(55, 23, sW1, f"s{sT}"), tch(55, 23, sW3, f"s{sT}")], [])]
    TK = [([], [tch(55, 53, sK, 0)], [])]; TV = [([], [tch(55, 53, sV, 0)], [])]
    kv = OPT.get("kvp", (9, 9, 9))
    at = lambda p: (TK if kv[0] == p else []) + (TV if kv[1] == p else []) + (TK2 if kv[2] == p else [])
    TK2 = [(II(f"s_mov_b32 s{sT}, 65536"), [tch(55, 53, sK, f"s{sT}")], [])]
    x1, x2, x3 = xdma(1), xdma(2), xdma(3)
    prev = [0]
    def sp(lo, hi, grps):
        lo = max(lo, prev[0] + 4); prev[0] = tl.spread(lo, max(hi, lo + 1), grps); return prev[0]
    SRL = [(II(f"s_lshl_b32 s{sT}, s{sCnt}, 11"), [Ins(f"buffer_load_dwordx4 {V(72+4*r,4)}, v58, {SR(sX)}, s{sT} offen offset:{512*r}", tag="SR") for r in range(2)], [])]
    CP = [([], II("global_load_dword a252, v[60:61], off"), [])]
    item = lambda n: {"W": lambda: wdma(int(n[1])), "Q": lambda: TQ(int(n[1])), "G": lambda: TG(int(n[1])), "S": lambda: SRL, "C": lambda: CP,
                      "A": lambda: [([], [Ins(f"buffer_atomic_add v49, v48, {SR(sDBG)}, 0 offen", tag="AT")], [])],
                      "r": lambda: (x1, x2, x3)[int(n[1]) - 1][:1], "x": lambda: (x1, x2, x3)[int(n[1]) - 1][1:]}[n[0]]()
    PP = lambda f: P_(int(f), f - int(f))
    for ent in O_("sch", None):
        if ent[0] == "o":
            l = xout(ent[1], PP(ent[2]), min(PP(ent[3]), LAST((0, 1, 3, 4)[ent[1]]) - 6))
            assert PP(ent[2]) >= tb[(0, 0, 2, 4)[ent[1]], 0]
            if ent[1] < 3: prev[0] = max(prev[0], tl.scal_at(l + 5, W(lgkm=f"X{ent[1]}")))
        else:
            g_ = [g for n in ent[1].split() for g in item(n)]
            lo = max(PP(ent[0]), prev[0] + 4)
            sp(lo, lo + int((ent[2] if len(ent) > 2 else O_('dsp', 4.4)) * (sum(len(g[1]) for g in g_) - 1)), g_)
    w7 = O_("w7", 0)
    if not w7: sp(P_(5, .03), P_(5, .3), wdma(7))
    ld0 = f"buffer_load_dword v50, v51, {SR(sDBG)}, 0 offen sc1"
    ck0 = O_("ck0", .33)
    g = tl.g[P_(5, ck0)]
    g.vec += [W(vm="C0")] + poll_check("st" + var, 50, ld0, f"v_cmp_gt_u32 vcc, 32, v50\ns_nop 0\ns_cmp_eq_u64 vcc, 0"); g.load += 2
    sp(P_(5, ck0) + 3, P_(5, ck0 + .1), [([], [Ins(f"buffer_load_dwordx2 {V(56+2*t,2)}, v52, {SR(sWS)}, 0 offen offset:{128*t} sc1", tag="SL") for t in range(4)], [])])
    if w7:
        l = sp(P_(5, w7), P_(5, w7) + 30, wdma(7)); assert l < P_(5, min(O_("slpos", .8), 1))
    sp(0, P_(5, O_("k0e", .97)), [dma_K(0, 0, "DK0"), dma_K(1, 0, "DK0")])
    sp(P_(6, O_("v0a", .3)), P_(6, O_("v0b", .9)), [dma_V(0, 0, "DV"), dma_V(1, 0, "DV")])
    sp(P_(7, O_("v0a", .3)), P_(7, O_("v0b", .9)), [dma_K(0, 1, "DK"), dma_K(1, 1, "DK")])
    def span(tag):
        ps = [q for q, gp in enumerate(tl.g) for x in gp.vec if x.tag == tag]; return min(ps), max(ps)
    for i in range(1, 8):
        assert span(f"DW{i}")[1] < LAST(i - 1) and (i < 3 or span(f"DW{i}")[0] > LAST(i - 3) + 1), i
    for c in (1, 2, 3): assert span(f"DX{c}")[1] < span(f"X{c}")[0] and (c == 1 or span(f"DX{c}")[0] > span(f"X{c-1}")[1] + 5), c
    if not any("A" in e_[1].split() for e_ in O_("sch", None) if e_[0] != "o"): tl.vec_in(LAST(1) + 10, LAST(1) + 14, item("A")[0][1])
    assert span("AT")[0] > LAST(1) + 1
    left = tl.sched(P_(0, O_("stpos", .3)), P_(1, O_('sthi', 0)) - 1, stats); assert not left and P_(1, O_('sthi', 0)) <= tb[1, 4], len(left)
    tl.vec_in(PP(4 + O_("c0pos", .9)), PP(4 + O_("c0pos", .9)) + 6, [Ins(ld0, tag="C0")])
    for i, off in ((5, 0), (7, 1)):
        a0 = aL + 8 * off; it_ = []
        for u in range(2):
            it_ += II(f"v_accvgpr_read_b32 v22, a{a0+4*u}\nv_accvgpr_read_b32 v23, a{a0+4*u+1}\nv_add_f32 v22, v22, v23")
            it_ += [Ins(f"ds_write_b32 v21, v22 offset:{64*u}", tag="CS")]
        left = tl.stream(tb[i, 3], tb[i, 4] - 1, it_); assert not left
        if i == 5:
            it_ = []
            if S_:
                for u in range(2): it_ += II(f"v_add_f32 v{176+4*u}, v{176+4*u}, v{177+4*u}") + [Ins(f"ds_write_b32 v21, v{176+4*u} offset:{512+64*u}", tag="CS")]
            left = tl.stream(tb[i, 4] + 6, tb[i, 5] - 1, it_ + II(f"v_add_u32 v21, {L_V - L_K}, v21")); assert not left
    it = [W(vm="SL")]
    for t in range(4): it += II(f"v_rsq_f32 v{vAQ+t}, v{57+2*t}")
    for t in range(4): it += II(f"v_sub_f32 v{vNMU+t}, 0, v{56+2*t}\nv_mov_b32 v{vIR+t}, v{57+2*t}")
    for t in range(4): it += II(f"v_mul_f32 v{vAE+t}, {f32(-LOG2E)}, v{vAQ+t}\nv_mul_f32 v{vAQ+t}, {f32(LOG2E * 128 ** -0.5)}, v{vAQ+t}")
    h0 = tb[6, 0] + 2
    if O_("slpos", .8) < 1:
        left = tl.stream(P_(5, O_("slpos", .8)), tb[6, 0] - 1, it); assert not left, len(left)
        it = []
    else: it[0].guards = {f"v{56+k}" for k in range(8)}; h0 = P_(6, O_("slpos", .8) - 1) + 2
    NV = 3 if S_ else 4
    for v in range(NV): it += II(f"v_xor_b32 v{28+v}, {512 if (S_ and v == 2) else 128*v}, v54")
    def csread(v): return [Ins(f"ds_read_b128 {V(48+8*(v&1)+4*m,4)}, v{28+v} offset:{64*m}", tag=f"CG{v}") for m in range(2)]
    it += csread(0)
    for v in range(NV):
        if v < NV - 1: it += csread(v + 1)
        it += [W(lgkm=f"CG{v}")]
        for m in range(2):
            for t in range(4):
                d = 128 + m * 64 + (v * 4 + t) * 4
                for r in range(4): it += II(f"v_fmac_f32 v{d+r}, v{48+8*(v&1)+4*m+r}, v{vNMU+t}")
    mv30 = Ins(f"v_add_u32 v30, {L_V - L_K}, v28"); it.append(mv30)
    it += II(f"s_add_u32 s{sCnt}, s{sFs}, s{sBo}")
    if not S_: it += II(f"s_and_b32 s{sT2}, s{sWave}, 2\ns_lshl_b32 s{sT2}, s{sT2}, 9\nv_add_u32 v28, s{sT2}, v{vL16}\nv_xor_b32 v29, 0x400, v28")
    else:
        it += II(f"s_and_b32 s{sT2}, s{sHead}, 1\ns_lshl_b32 s{sT2}, s{sT2}, 11\nv_add_u32 v28, s{sT2}, v{vL16}\ns_xor_b32 s{sT2}, s{sHead}, s{sWave}\ns_and_b32 s{sT2}, s{sT2}, 1\ns_lshl_b32 s{sT2}, s{sT2}, 3\ns_add_u32 s{sT2}, s{sT2}, 1024\nv_add_u32 v29, s{sT2}, v{vL16}")
    rest = []
    for n in range(8):
        t, i = n >> 1, n & 1
        N = 4 if (S_ and i == 1) else 8
        gr = [128 + ((2 * i + hf) * 4 + t) * 4 + r for hf in range(2) for r in range(4)][:N]
        ur = [x + 64 for x in gr]; q = []
        if n < O_("nh", 0):
            for k in range(N): q += II(f"v_mul_f32 v{ur[k]}, v{ur[k]}, v{gr[k]}\nv_mul_f32 v{gr[k]}, v{vAE+t}, v{gr[k]}")
            for k in range(N): q += II(f"v_exp_f32 v{gr[k]}, v{gr[k]}") + (II(f"v_fma_f32 v{gr[k-2]}, v{gr[k-2]}, v{vIR+t}, v{vIR+t}") if k >= 2 else [])
            for k in range(N): q += II(f"v_rcp_f32 v{gr[k]}, v{gr[k]}") + II(f"v_fma_f32 v{gr[k+N-2]}, v{gr[k+N-2]}, v{vIR+t}, v{vIR+t}" if k < 2 else f"v_mul_f32 v{gr[k-2]}, v{gr[k-2]}, v{ur[k-2]}")
            for k in (N - 2, N - 1): q += II(f"v_mul_f32 v{gr[k]}, v{gr[k]}, v{ur[k]}")
        else:
            o = t & 1; ae, ir = V(vAE + t - o, 2), V(vIR + t - o, 2)
            for k in range(0, N, 2): q += II(f"v_pk_mul_f32 {V(ur[k],2)}, {V(ur[k],2)}, {V(gr[k],2)}\nv_pk_mul_f32 {V(gr[k],2)}, {V(gr[k],2)}, {ae} op_sel:[0,{o}] op_sel_hi:[1,{o}]")
            for k in range(N): q += II(f"v_exp_f32 v{gr[k]}, v{gr[k]}")
            for k in range(0, N, 2): q += II(f"v_pk_fma_f32 {V(gr[k],2)}, {V(gr[k],2)}, {ir}, {ir} op_sel:[0,{o},{o}] op_sel_hi:[1,{o},{o}]")
            for k in range(N): q += II(f"v_rcp_f32 v{gr[k]}, v{gr[k]}")
            for k in range(0, N, 2): q += II(f"v_pk_mul_f32 {V(gr[k],2)}, {V(gr[k],2)}, {V(ur[k],2)}")
        for k in range(N // 2): q += II(f"v_cvt_pk_bf16_f32 v{gr[0]+k}, v{gr[2*k]}, v{gr[2*k+1]}")
        q += II(f"buffer_store_dwordx{N//2} {V(gr[0],N//2)}, v{28+i}, {SR(sB)}, s{sCnt} offen sc1")
        if i == 1 and t < 3: q += II(f"s_add_u32 s{sCnt}, s{sCnt}, {BSTRIDE}")
        if n < O_("nh", 0): it += q
        else: rest += q
    lastcs = [x for x in it if x.tag == f"CG{NV-1}"][-1]
    left = tl.sched(h0, end - 1, it, look=O_("look", 70))
    assert len(left) <= 54 * O_("nh", 0) and not any(x is mv30 for x in left)
    pos = [k for k, gp in enumerate(tl.g) if any(x is lastcs for x in gp.vec)]
    assert pos and pos[0] < tb[6, 6], (pos, tb[6, 6])

    for nm, i in [(f"p{i}", i) for i in range(1, 8)]:
        tl.g[tb[i, 0]].scal = stamp_ins(STAMPS.get(nm)) + tl.g[tb[i, 0]].scal
    body = tl.emit(0, end, "proj" + var)
    print("h epilogue leftover", len(left), "of", len(it), file=sys.stderr)
    return first_reads, body, left + rest

def gen_kernel():
    b = Block(); b.name = "setup"
    b.e(f"s_cmp_ge_u32 s2, 256\ns_cbranch_scc1 L_end\ns_mov_b32 s{sFB}, 0")
    if OPT.get("shuffle"): b.e("s_and_b32 s3, s2, 7\ns_lshl_b32 s3, s3, 5\ns_lshr_b32 s2, s2, 3\ns_or_b32 s2, s2, s3")
    if OPT.get("delay"): b.e(f"s_mov_b32 s3, {OPT['delay']}\nL_dly:\ns_sub_u32 s3, s3, 1\ns_cmp_lg_u32 s3, 0\ns_cbranch_scc1 L_dly")
    if OPT["stamp"]:
        for i in range(20): b.e(f"s_mov_b32 s{72+i}, 0")
        stamp(b, "start")
    b2 = Block(); b2.name = "setup1"; b_ = b; b = b2
    b.e("L_restart:")
    for sr, off in ((sX, 0), (sW1, 48), (sW3, 56), (sWQ, 24)): b.e(f"s_load_dwordx2 s[{sr}:{sr+1}], s[0:1], {off}")
    T0, T1, T2, T3, T4 = 56, 57, 58, 59, 60
    vl, vc, vg, vi2, vi3 = 61, 62, 63, 22, 23
    b.e("s_getpc_b64 s[100:101]\nL_pc:")
    b.e(f"s_lshr_b32 s{sT}, s2, 3\ns_mul_i32 s{sT2}, s{sT}, 2560\nv_mul_u32_u24 v108, 10, v0\nv_add_u32 v108, s{sT2}, v108\nv_and_b32 v108, 0xffffff80, v108\nv_min_u32 v108, L_code_end-L_pc, v108\nv_mov_b32 v109, s101")
    b.e(f"v_add_co_u32 v108, vcc, s100, v108\nv_lshrrev_b32 v{T0}, 6, v0\nv_and_b32 v{vc}, 15, v0\nv_addc_co_u32 v109, vcc, 0, v109, vcc\nglobal_load_dword v107, v[108:109], off")
    b.e(f"v_readfirstlane_b32 s{sWave}, v{T0}\nv_bfe_u32 v{vg}, v0, 4, 2\ns_and_b32 s{sT}, s{sT}, 3\ns_lshr_b32 s{sQb}, s2, 5")
    b.e(f"s_lshl_b32 s{sW16k}, s{sWave}, 14\ns_lshl_b32 s{sXb}, s{sQb}, 18\ns_lshl_b32 s{sT2}, s{sWave}, 16\ns_add_u32 s{sXb}, s{sXb}, s{sT2}")
    b.e(f"s_lshl_b32 s100, s{sT}, 12\ns_add_u32 s100, s100, s{sW16k}\ns_lshl_b32 s101, s{sT}, 14\ns_add_u32 s101, s101, s{sXb}")
    b.e(f"s_and_b32 s{sHead}, s2, 7\ns_lshl_b32 s{sHead}, s{sHead}, 2\ns_add_u32 s{sHead}, s{sHead}, s{sT}")
    b.e(f"v_xor_b32 v{T0}, v{vg}, v{vc}\nv_lshlrev_b32 v{T0}, 4, v{T0}\nv_lshl_add_u32 v{vDX}, v{vg}, 10, v{T0}")
    for p in range(1, 4): b.e(f"v_xor_b32 v{T2}, {64*p}, v{vDX}\nv_add_u32 v{vDX+p}, {p*3072}, v{T2}")
    b.e(f"s_mov_b32 s{sX+2}, 0x200000\ns_mov_b32 s{sX+3}, 0x20000\ns_waitcnt lgkmcnt(0)")
    stamp(b, "karg")
    b.e(f"s_and_b32 s{sX+1}, s{sX+1}, 0xffff")
    xg = xdma(0); wg = wdma(0)
    emit_grp(b, xg[0])
    for sr, off in ((sK, 8), (sV, 16), (sB, 88), (sH, 88), (sWS, 88), (sDBG, 80), (sWO, 32), (sW2, 64), (sOut, 72)):
        b.e(f"s_load_dwordx2 s[{sr}:{sr+1}], s[0:1], {off}")
    b.e(f"s_and_b32 s{sT2}, s{sHead}, 3\ns_lshr_b32 s3, s{sT2}, 1\ns_add_u32 s{sT}, s3, 8\ns_mul_i32 s3, s3, 3\ns_add_u32 s3, s3, 8\ns_lshl_b32 s{sFs}, s{sT2}, 1\ns_bitcmp1_b32 s2, 0")
    b.e(f"s_cselect_b32 s{sT}, s{sT}, s{sT2}\ns_cselect_b32 s{sFs}, s3, s{sFs}\ns_add_u32 s{sT}, s{sT}, s{sT2}\ns_lshr_b32 s3, s{sHead}, 3\ns_mul_i32 s3, s3, 14\ns_add_u32 s{sT}, s{sT}, s3\ns_lshl_b32 s{sT}, s{sT}, 6")
    ptr_add(b, sW1, f"s{sT}"); ptr_add(b, sW3, f"s{sT}")
    b.e(f"s_sub_u32 s{sT2}, {512*3584}, s{sT}\ns_add_u32 s{sFs}, s{sFs}, s3\ns_add_u32 s{sFs}, s{sFs}, 128\ns_lshl_b32 s{sFs}, s{sFs}, 10")
    srd_fin(b, sW1, f"s{sT2}"); srd_fin(b, sW3, f"s{sT2}")
    b.e(f"s_lshr_b32 s{sBo}, s{sXb}, 14\nv_and_b32 v{vl}, 63, v0")
    b.e(f"v_lshrrev_b32 v{T0}, 2, v{vl}\nv_and_b32 v{T1}, 3, v0\nv_lshl_add_u32 v{T1}, v{T0}, 7, v{T1}\nv_add_u32 v{T1}, s{sBo}, v{T1}\nv_mul_u32_u24 v101, 3584, v{T1}\nv_lshl_add_u32 v103, v{T0}, 26, v101")
    if not OPT.get("noptouch"): b.e(f"buffer_load_dword v105, v103, {SR(sW1)}, 0 offen\nbuffer_load_dword v106, v103, {SR(sW3)}, 0 offen")
    b.e(f"s_lshl_b32 s{sCnt}, s{sQb}, 7\ns_lshl_b32 s{sT2}, s{sHead}, 2\ns_add_u32 s{sCnt}, s{sCnt}, s{sT2}\ns_add_u32 s{sCnt}, s{sCnt}, s{sWave}\nv_lshlrev_b32 v{vL16}, 4, v{vl}")
    for g in (xg[1], xg[2], xg[3])[:OPT.get("nx", 1)]: emit_grp(b, g)
    b.e(f"s_lshl_b32 s{sT}, s{sHead}, 8"); ptr_add(b, sWQ, f"s{sT}"); b.e(f"s_sub_u32 s{sT2}, 0x400000, s{sT}")
    srd_fin(b, sWQ, f"s{sT2}")
    b.e(f"v_lshrrev_b32 v{T0}, 3, v{vl}\nv_bfe_u32 v{T1}, v0, 1, 2\nv_lshl_add_u32 v{T1}, v{T0}, 7, v{T1}\nv_add_u32 v{T1}, s{sBo}, v{T1}\nv_and_b32 v{T2}, 1, v0\nv_lshlrev_b32 v{T2}, 7, v{T2}\nv_lshl_add_u32 v100, v{T1}, 13, v{T2}\nv_lshl_add_u32 v102, v{T0}, 26, v100")
    b.e(f"s_bfe_u32 s{sSp}, s2, 0x20001\ns_lshr_b32 s{sTc}, s2, 6\ns_bfe_u32 s{sTr}, s2, 0x30003\ns_and_b32 s{sT}, s2, 1\ns_lshl_b32 s{sT}, s{sT}, 3\ns_add_u32 s{sTr}, s{sTr}, s{sT}")
    b.e(f"s_lshl_b32 s{sW8k}, s{sWave}, 13\ns_lshl_b32 s{sW4k}, s{sWave}, 12\ns_mul_i32 s{sBo}, s{sBo}, {BSTRIDE}")
    b.e(f"s_lshl_b32 s{sWQo}, s{sWave}, 18\ns_mul_i32 s{sW13o}, s{sWave}, {32*3584}\ns_mov_b32 s{sKo}, s{sW8k}\ns_mov_b32 s{sVo}, s{sW8k}")
    b.e(f"v_mul_u32_u24 v{T0}, 3584, v{T0}\nv_and_b32 v{T1}, 7, v0\nv_and_b32 v{T2}, 1, v{vg}\nv_lshlrev_b32 v{T2}, 1, v{T2}\nv_xor_b32 v{T1}, v{T1}, v{T2}")
    for p in range(4): b.e(f"v_xor_b32 v{T2}, {4*(p&1)}, v{T1}\nv_lshl_add_u32 v{T2}, v{T2}, 4, v{T0}\nv_add_u32 v{vD13+p}, {p*27648}, v{T2}")
    b.e(f"v_lshlrev_b32 v{T0}, 2, v{vg}\nv_xor_b32 v{T0}, v{vc}, v{T0}\nv_lshlrev_b32 v{T0}, 4, v{T0}\nv_lshl_add_u32 v{vDQ}, v{vg}, 13, v{T0}")
    for p in range(1, 4): b.e(f"v_add_u32 v{vDQ+p}, {p*31744}, v{vDQ}")
    b.e("s_waitcnt lgkmcnt(0)")
    late = [xg[1], xg[2], xg[3], wg[0], wg[1]][OPT.get("nx", 1):]
    stamp(b, "a1")
    c = Block(); c.name = "setup2"
    c.e(f"s_lshl_b32 s{sT}, s{sHead}, 19"); ptr_add(c, sK, f"s{sT}"); ptr_add(c, sV, f"s{sT}")
    srd_fin(c, sK, 0x80000); srd_fin(c, sV, 0x80000)
    wso = OPT.get("wsoff", 0) << 20
    if wso: ptr_add(c, sWS, wso)
    ptr_add(c, sB, WS_B + wso); ptr_add(c, sH, WS_B + wso); srd_fin(c, sB, 128 * BSTRIDE)
    srd_fin(c, sH, 0)
    srd_fin(c, sWS, 0x28000); srd_fin(c, sDBG, 256); srd_fin(c, sOut, 0x200000)
    srd_fin(c, sWO, 0 if OPT.get("noA") else 4096 * 1024); srd_fin(c, sW2, 0 if OPT.get("noA") else 1792 * 1024)
    c.e(f"v_bfe_u32 v{vi2}, v0, 2, 2\nv_and_b32 v{vi3}, 3, v0")
    c.e(f"v_lshl_add_u32 v{T0}, v{vg}, 3, v{vi2}\nv_lshlrev_b32 v{T1}, 8, v{T0}\nv_lshl_add_u32 v{T1}, v{vi3}, 4, v{T1}\nv_add_u32 v{T1}, {L_SP}, v{T1}\nv_xor_b32 v{T3}, s{sWave}, v{vi2}")
    for i in range(4): c.e(f"v_xor_b32 v{T2}, {i}, v{T3}\nv_lshl_add_u32 v{vWQA+i}, v{T2}, 6, v{T1}")
    c.e(f"v_lshlrev_b32 v{T1}, 7, v{T0}\nv_lshl_add_u32 v{T1}, v{vi3}, 3, v{T1}\nv_add_u32 v{T1}, {L_V}, v{T1}")
    c.e(f"v_and_b32 v{T3}, 1, v{vg}\nv_lshlrev_b32 v{T3}, 1, v{T3}\nv_lshrrev_b32 v{T4}, 1, v{vi2}\nv_or_b32 v{T3}, v{T3}, v{T4}")
    c.e(f"s_and_b32 s3, s{sHead}, 1\ns_sub_u32 s{sT2}, 2, s3\ns_lshl_b32 s3, s3, 1\ns_and_b32 s{sT}, s{sWave}, 1\ns_or_b32 s{sT}, s{sT}, s3\ns_xor_b32 s3, s{sWave}, 2\ns_bitcmp1_b32 s2, 0\ns_cselect_b32 s{sT}, s{sT}, s{sWave}\ns_cselect_b32 s{sT2}, s{sT2}, s3")
    for i in (0, 2): c.e(f"v_xor_b32 v{T2}, s{sT2 if i else sT}, v{T3}\nv_lshl_add_u32 v{vW13A+i}, v{T2}, 5, v{T1}\nv_xor_b32 v{vW13A+i+1}, 32, v{vW13A+i}")
    for r in range(8): c.e(f"v_mov_b32 v{176+r}, 0")
    for r in range(4): c.e(f"v_accvgpr_write_b32 a{aCHK+r}, -1")
    c.e(f"v_xor_b32 v{T0}, v{vg}, v{vc}\nv_lshlrev_b32 v{T1}, 8, v{vc}\nv_add_u32 v{T3}, s{sW16k}, v{T1}\ns_lshl_b32 s{sT}, s{sWave}, 2")
    for i in range(4): c.e(f"v_xor_b32 v{T2}, {4*i}, v{T0}\nv_lshl_add_u32 v{vXA+i}, v{T2}, 4, v{T3}\nv_xor_b32 v{T2}, s{sT}, v{T2}\nv_lshl_add_u32 v{vKA+i}, v{T2}, 4, v{T1}")
    c.e(f"v_lshl_add_u32 v{T0}, v{vg}, 2, v{vi2}\nv_lshlrev_b32 v{T1}, 8, v{T0}\nv_lshl_add_u32 v{T1}, v{vi3}, 3, v{T1}\nv_add_u32 v{T1}, {L_V}, v{T1}\nv_and_b32 v{T0}, 7, v{T0}")
    for dt in range(8): c.e(f"v_xor_b32 v{T2}, {dt}, v{T0}\nv_lshl_add_u32 v{vVA+dt}, v{T2}, 5, v{T1}")
    c.e(f"v_lshlrev_b32 v{T1}, 8, v{vg}\nv_xor_b32 v{T0}, v{vg}, v{vc}")
    for p in range(4): c.e(f"v_xor_b32 v{T2}, {4*p}, v{T0}\nv_lshl_add_u32 v{vDK+p}, v{T2}, 4, v{T1}")
    c.e(f"v_lshlrev_b32 v{T0}, 1, v{vg}\nv_xor_b32 v{T0}, v{T0}, v{vc}")
    for p in range(2): c.e(f"v_xor_b32 v{T2}, {8*p}, v{T0}\nv_lshl_add_u32 v{vDV+p}, v{T2}, 4, v{T1}")
    c.e(f"v_mov_b32 v{T0}, 0x3f803f80")
    for i in range(4): c.e(f"v_accvgpr_write_b32 a{aONES+i}, v{T0}")
    c.e(f"s_lshl_b32 s{sT}, s{sQb}, 5\nv_and_b32 v51, 7, v0\nv_lshlrev_b32 v51, 5, v51\ns_cmp_eq_u32 s{sFB}, 0\ns_cselect_b32 s{sT}, s{sT}, {OOB}")
    c.e(f"v_mov_b32 v{T0}, {OOB}\nv_mov_b32 v{T1}, s{sT}\nv_cmp_eq_u32 vcc, 0, v0\nv_mov_b32 v49, 1\nv_cndmask_b32 v48, v{T0}, v{T1}, vcc")
    c.e(f"s_lshl_b32 s{sT}, s{sQb}, 5\ns_add_u32 s{sT}, s{sT}, s{sHead}\ns_lshl_b32 s{sT}, s{sT}, 7\ns_add_u32 s{sT}, s{sT}, {WS_FH}\ns_cmp_eq_u32 s{sFB}, 0\ns_cselect_b32 s{sT}, s{sT}, {OOB >> 1}")
    c.e(f"s_and_b32 s{sT2}, s{sHead}, 7\ns_mul_i32 s{sT2}, s{sT2}, 124\ns_sub_u32 s{sT2}, {WS_FO-WS_FH}, s{sT2}\nv_mov_b32 v{T2}, s{sT}\nv_mad_u32_u24 v{T1}, v0, s{sT2}, v{T2}\nv_cmp_gt_u32 vcc, 2, v0\nv_mov_b32 v{T2}, 0\nv_cndmask_b32 v{T1}, v{T0}, v{T1}, vcc")
    c.e(f"buffer_store_dword v{T2}, v{T1}, {SR(sWS)}, 0 offen sc1")
    c.e(f"s_lshr_b32 s{sT}, s{sXb}, 7\nv_lshlrev_b32 v52, 3, v{vc}\nv_add_u32 v52, s{sT}, v52")
    c.e(f"s_lshl_b32 s{sT}, s{sWave}, 7\nv_lshlrev_b32 v54, 4, v{vg}\nv_add_u32 v54, s{sT}, v54\nv_add_u32 v54, {L_K+32768}, v54\ns_add_u32 s{sT}, s{sT}, {L_K+32768}\nv_lshl_add_u32 v21, v{vc}, 2, s{sT}")
    for i in range(4): c.e(f"v_accvgpr_write_b32 a{aZ+i}, 0")
    c.e(f"v_and_b32 v{vIDX}, 1, v0\nv_mul_u32_u24 v{vIDX}, 0xaaaa, v{vIDX}\nv_add_u32 v{vIDX}, 0x4444, v{vIDX}")
    c.e(f"v_mfma_f32_32x32x16_bf16 {A(aL,16)}, {A(aZ,4)}, {A(aZ,4)}, 0")
    c.e(f"s_lshl_b32 s{sT}, s{sQb}, 2\ns_add_u32 s{sT}, s{sT}, s{sWave}\ns_lshl_b32 s{sT}, s{sT}, 11\nv_lshlrev_b32 v53, 29, v{vg}\nv_lshl_add_u32 v53, v{vc}, 7, v53\nv_add_u32 v53, s{sT}, v53")
    stamp(c, "a2")
    c.e(f"s_lshl_b32 s{sT2}, s{sCnt}, 4\nv_lshrrev_b32 v{T2}, 5, v{vl}\nv_lshl_add_u32 v{T1}, v{T2}, 3, s{sT2}\nv_lshl_add_u32 v{T2}, v{T2}, 9, v{vL16}\nv_and_b32 v{T3}, 31, v0\nv_cmp_eq_u32 vcc, 0, v{T3}\nv_cndmask_b32 v{T1}, v{T0}, v{T1}, vcc")
    c.e("v_mov_b32 v22, v102\nv_mov_b32 v23, v103\nv_accvgpr_write_b32 a254, v108\nv_accvgpr_write_b32 a255, v109")
    for g in late: emit_grp(c, g)
    c.e("v_mov_b32 v60, v108\nv_mov_b32 v61, v109")
    for n in OPT["pre"].split():
        if n == "Q0": c.e(f"buffer_load_dword a252, v22, {SR(sWQ)}, 0 offen")
        if n == "G1": c.e(f"s_mov_b32 s{sT}, {128*3584}\nbuffer_load_dword a252, v23, {SR(sW1)}, s{sT} offen\nbuffer_load_dword a252, v23, {SR(sW3)}, s{sT} offen")
        if n == "S":
            c.e(f"s_lshl_b32 s{sT}, s{sCnt}, 11")
            for r in range(2): c.e(f"buffer_load_dwordx4 {V(72+4*r,4)}, v{T2}, {SR(sX)}, s{sT} offen offset:{512*r}", tag="SR")
    stamp(c, "a4")
    c_ = c; c = Block(); c.wait(vm="SR")
    X = lambda k: 88 + k + (8 if k >= 8 else 0)
    for k in range(8): c.e(f"v_lshlrev_b32 v{X(2*k)}, 16, v{72+k}\nv_and_b32 v{X(2*k+1)}, 0xffff0000, v{72+k}")
    def wred(d):
        c.e("v_add_f32 v120, v120, v121")
        for sh in (8, 4, 2, 1): c.e(f"v_add_f32_dpp v120, v120, v120 row_ror:{sh} row_mask:0xf bank_mask:0xf")
        c.e(f"v_mov_b32 v121, v120\nv_permlane16_swap_b32 v121, v120\nv_add_f32 v120, v120, v121\nv_mul_f32 v{d}, {f32(1/512)}, v120")
    for k in range(7):
        for r in range(2): c.e(f"v_add_f32 v{120+r}, v{X(8*r+k+1)}, v{X(8*r) if k == 0 else (120+r)}")
    wred(122)
    for k in range(16): c.e(f"v_sub_f32 v{X(k)}, v{X(k)}, v122")
    for k in range(8):
        for r in range(2): c.e(f"v_mul_f32 v{120+r}, v{X(8*r)}, v{X(8*r)}" if k == 0 else f"v_fmac_f32 v{120+r}, v{X(8*r+k)}, v{X(8*r+k)}")
    wred(123)
    def rnd(r): c.e(f"v_cvt_pk_bf16_f32 v{r}, v{r}, v{r}\nv_and_b32 v{r}, 0xffff0000, v{r}")
    rnd(122); rnd(123); c.e(f"v_add_f32 v123, {f32(1e-5)}, v123"); rnd(123); c.e("v_sqrt_f32 v123, v123"); rnd(123); c.e("v_mul_f32 v123, v123, v123")
    c.e(f"buffer_store_dwordx2 v[122:123], v{T1}, {SR(sWS)}, 0 offen sc1", tag="ST")
    st_ = [x for x in c.ins if x.kind != "nop"]; c = c_
    def stats():
        w_ = W(vm="SR"); w_.guards = {f"v{72+k}" for k in range(8)}
        return [w_] + [Ins(x.text, tag=x.tag) for x in st_[1:]]
    PJ = {}
    for var in "FS":
      first_reads, proj, hleft = gen_proj(stats(), var)
      e = Block(); e.name = "projepi"
      stamp(e, "projend")
      for i in range(4): e.e(f"v_xor_b32 v{24+i}, {128*i}, v30")
      def cq(i): return [Ins(f"ds_read_b128 {V(48+8*(i&1)+4*hf,4)}, v{24+i} offset:{64*hf}", tag=f"CQ{i}") for hf in range(2)]
      e.ext(cq(0) + cq(1))
      nfirst = [k for k, x in enumerate(hleft) if x.kind == "vstore"][0] + 1
      e.ext(hleft[:nfirst]); hleft = hleft[nfirst:]
      H = 192
      for ds in range(4):
          e.wait(lgkm=f"CQ{ds}")
          for t in range(4):
              d = Q(t, ds); h = H + 16 * (t & 1); o = t & 1; nm, aq = V(vNMU + t - o, 2), V(vAQ + t - o, 2); CS = 48 + 8 * (ds & 1)
              for k in range(4): e.e(f"v_accvgpr_read_b32 v{h+k}, a{128+(t*4+ds)*4+k}")
              prs = [(d, CS), (d + 2, CS + 2), (h, CS + 4), (h + 2, CS + 6)]
              for x, cs in prs: e.e(f"v_pk_fma_f32 {V(x,2)}, {V(cs,2)}, {nm}, {V(x,2)} op_sel:[0,{o},0] op_sel_hi:[1,{o},1]")
              for x, cs in prs: e.e(f"v_pk_mul_f32 {V(x,2)}, {V(x,2)}, {aq} op_sel:[0,{o}] op_sel_hi:[1,{o}]")
              for k, (x, cs) in enumerate(prs): e.e(f"v_cvt_pk_bf16_f32 v{d+k}, v{x}, v{x+1}")
          if ds < 2: e.ext(cq(ds + 2))
      PM = 48
      ch = [MF(V(PM + 4 * t, 4), A(KF(0, ds), 4), V(Q(t, ds), 4), "0" if n == 0 else V(PM + 4 * t, 4)) for t in range(4) for n, ds in enumerate(snake(t))]
      run = 0
      for k, x in enumerate(hleft):
          run = run + 1 if x.kind == "trans" else 0
          if ch and x.kind == "trans" and 3 <= run <= 5: e.add(ch.pop(0))
          e.add(x)
      e.ext(ch)
      h_ = Block(); h_.name = "projhead"
      if var == "F": h_.e("L_proj_F:")
      h_.wait(vm="DX0"); h_.ext(xreads(0)); h_.wait(vm="DW0"); stamp(h_, "a6"); h_.e("s_barrier"); h_.ext(first_reads); h_.wait(lgkm="W0"); stamp(h_, "p0")
      e.e("s_cmp_eq_u32 0, 0")
      if var == "F": e.e("s_branch L_proj_join")
      PJ[var] = [h_, proj, e]
    stamp(c, "a5")
    for _ in range(OPT.get("pad1", 0)): c.e("s_nop 0")
    c.e("s_bitcmp1_b32 s2, 0\ns_cbranch_scc0 " + ("L_proj_join" if OPT.get("warm", 1) else "L_proj_F"))
    e = Block(); e.name = "join"; e.e("L_proj_join:\ns_cbranch_scc0 L_proj_F")
    e.e(f"s_cmp_lg_u32 s{sFB}, 0\ns_cbranch_scc1 L_truemax")
    e2 = Block(); e2.name = "premax"
    def rowmax_finish(blk, src):
        for sw in ("32", "16"):
            for t in range(4): blk.e(f"v_mov_b32 v{vT+t}, v{src(t)}")
            for t in range(4): blk.e(f"v_permlane{sw}_swap_b32 v{vT+t}, v{src(t)}")
            for t in range(4): blk.e(f"v_max_f32 v{src(t) if sw == '32' else vT+t}, v{src(t)}, v{vT+t}")
        for t in range(4):
            for r in range(4): blk.e(f"v_sub_f32 v{vNM+4*t+r}, 0, v{vT+t}")
    for t in range(4):
        s0 = PM + 4 * t
        e2.e(f"v_max3_f32 v{s0}, v{s0}, v{s0+1}, v{s0+2}\nv_max_f32 v{s0}, v{s0}, v{s0+3}")
    rowmax_finish(e2, lambda t: PM + 4 * t)
    a_, b_2, c_2, d_, e_2, f_ = sBs[0], sBs[1], sBs[2], sBs[3], sHp[2], sHp[3]
    li = II(f"""s_lshl_b32 s{c_2}, s{sQb}, 13
s_add_u32 s{c_2}, s{c_2}, 32768
s_sub_u32 s{c_2}, s{c_2}, s{sW8k}
s_lshr_b32 s{a_}, s2, 3
s_mul_i32 s{b_2}, s{a_}, {14*1024}
s_lshl_b32 s{a_}, s{a_}, 15
s_lshl_b32 s3, s{sSp}, 20
s_add_u32 s{a_}, s{a_}, s3
s_mul_i32 s3, s{sSp}, {448*1024}
s_add_u32 s{b_2}, s{b_2}, s3
s_lshl_b32 s{d_}, s{sQb}, 5
s_add_u32 s{d_}, s{d_}, s{sHead}
s_lshl_b32 s{d_}, s{d_}, 7
s_add_u32 s{d_}, s{d_}, {WS_FH}
s_lshr_b32 s{e_2}, s{sTr}, 1
s_lshl_b32 s{e_2}, s{e_2}, 2
s_add_u32 s{e_2}, s{e_2}, s{sSp}
s_lshl_b32 s{e_2}, s{e_2}, 10
s_add_u32 s{e_2}, s{e_2}, {WS_FH}
s_mul_i32 s{f_}, s{sTc}, 3584
v_and_b32 v28, 15, v0
v_lshrrev_b32 v29, 6, v0
v_lshl_add_u32 v28, v29, 4, v28
v_bfe_u32 v29, v0, 4, 2
v_lshlrev_b32 v29, 29, v29
v_lshl_add_u32 v29, v28, 7, v29
v_add_u32 v28, s{c_2}, v29
buffer_load_dword a252, v28, {SR(sV)}, s{sVo} offen
v_bfe_u32 v30, v0, 4, 1
v_mul_u32_u24 v30, 0xffff, v30
v_lshlrev_b32 v30, 13, v30
v_sub_u32 v30, v29, v30
v_add_u32 v30, s{a_}, v30
v_add_u32 v29, s{b_2}, v29
v_lshl_add_u32 v21, v0, 18, s{d_}
v_mov_b32 v22, 1
v_and_b32 v23, 7, v0
v_lshl_add_u32 v23, v23, 7, s{e_2}
v_and_b32 v24, 8, v0
v_cmp_eq_u32 vcc, 0, v24
v_and_b32 v24, 3, v0
v_lshlrev_b32 v24, 10, v24
v_xor_b32 v24, s{d_}, v24
v_cndmask_b32 v23, v24, v23, vcc
v_cndmask_b32 v31, 7, v22, vcc
v_and_b32 v27, 31, v0
v_min_u32 v27, 27, v27
v_lshl_add_u32 v27, v27, 7, s{f_}
v_bfe_u32 v26, v0, 5, 1
v_mul_u32_u24 v26, {BSTRIDE}, v26
v_add_u32 v27, v27, v26
v_accvgpr_read_b32 v24, a254
v_accvgpr_read_b32 v25, a255
s_mov_b32 s{sCnt}, 7
s_mov_b32 s{sTW}, 0
s_mov_b32 s{sT2W}, 0""")
    first, even, odd, last = gen_attention(li)
    l0 = Block(); l0.e("L_att_start:")
    stamp(l0, "att0")
    l1 = Block(); stamp(l1, "loop")
    l1b = Block(); l1b.e(".p2align 6\n" + "s_nop 0\n" * OPT.get("pad3", 0) + "L_att_loop:")
    l4 = Block(); l4.e("L_att_last:"); stamp(l4, "last")
    for _ in range(OPT.get("pad2", 0)): l4.e("s_nop 0")
    if OPT.get("loopstamp"):
        l1b.e(f"s_memtime s[96:97]\ns_mov_b32 m0, s{sCnt}\ns_waitcnt lgkmcnt(0)\nv_writelane_b32 v31, s96, m0")
        for i in range(8): l4.e(f"v_readlane_b32 s{74+2*i}, v31, {7-i}\nv_readlane_b32 s{75+2*i}, v31, {7-i}")
    f = Block(); f.name = "check"
    stamp(f, "attend")
    vRL = vNM
    for _ in range(min(OPT.get("osf", 2), len(OSTORES))): emit_grp(f, OSTORES.pop(0))
    f.add(last.tailchk)
    f.e(f"s_mov_b32 s{sT}, {f32(2.0**100)}")
    f.e(f"v_max3_f32 v{vT}, v{vRL+4}, v{vRL+5}, v{vRL+6}\nv_max_f32 v{vT}, v{vT}, v{vRL+7}\nv_accvgpr_read_b32 v{vT+1}, a{aCHK}")
    f.e(f"v_add_f32 v{vT}, v{vT}, v{vT+1}\nv_cmp_nlt_f32 vcc, v{vT}, s{sT}")
    f.e(f"s_cmp_lg_u64 vcc, 0\ns_cselect_b32 s{sT}, 1, 0")
    f.e(f"v_mov_b32 v{vT}, s{sT}\nv_and_b32 v{vT+1}, 3, v0\nv_lshlrev_b32 v{vT+1}, 12, v{vT+1}\ns_add_u32 s{sT}, s{sWave}, {7*4096}\ns_lshl_b32 s{sT}, s{sT}, 2\nv_add_u32 v{vT+1}, s{sT}, v{vT+1}")
    f.e(f"ds_write_b32 v{vT+1}, v{vT}", tag="VW"); f.e(f"s_add_u32 s{sT}, s{sM}, {7*16384}\nv_mov_b32 v{vT+1}, s{sT}")
    if OSTORES: emit_grp(f, OSTORES.pop(0))
    f.e(f"s_lshl_b32 s{sT}, s{sWave}, 6\ns_or_b32 s{sT}, s{sT}, {L_V}\ns_and_b32 s{sT2}, s{sTr}, 1\ns_lshl_b32 s{sT2}, s{sT2}, 12")
    for v in range(2): f.e(f"v_xor_b32 v{vRAs+v}, s{sT}, v{vVA+v}")
    for st in (1, 2):
        for v in range(2): f.e(f"v_add_u32 v{vRAs+2*st+v}, {st*65536}, v{vRAs+v}")
    for st in range(3):
        for v in range(2): f.e(f"v_xor_b32 v{vRAg+4*st+v}, s{sT2}, v{vRAs+2*st+v}\nv_xor_b32 v{vRAg+4*st+2+v}, 0x1000, v{vRAg+4*st+v}")
        f.e(f"v_add_u32 v{vRB[st]}, {st*65536}, v{vL16}")
    while OSTORES: emit_grp(f, OSTORES.pop(0))
    f.wait(lgkm="VW", vm=[f"U{u}" for u in RD[-1]]); f.e("s_barrier")
    f.e(f"ds_read_b128 v[2:5], v{vT+1}", tag="FL")
    for u in RD[-1]: f.ext(ureads(u))
    f.wait(lgkm="FL")
    f.e(f"v_or_b32 v2, v2, v3\nv_or3_b32 v2, v2, v4, v5\nv_readfirstlane_b32 s{sT}, v2")
    f.e(f"s_andn2_b32 s{sT}, s{sT}, s{sFB}\ns_cmp_lg_u32 s{sT}, 0\n" + ("" if OPT.get("nofb") else "s_cbranch_scc1 L_fallback"))
    k = Block(); k.name = "tail"
    stamp(k, "tail0")
    su = II(f"""s_and_b32 s{sT}, s{sHead}, 7
s_mul_i32 s{sT}, s{sT}, 124
s_sub_u32 s{sT}, {WS_FO-WS_FH}, s{sT}
v_add_u32 v26, s{sT}, v21
v_mov_b32 v25, 1
v_and_b32 v{vPA}, 7, v0
s_lshr_b32 s{sT}, s{sTr}, 1
s_lshl_b32 s{sT}, s{sT}, 2
s_add_u32 s{sT}, s{sT}, s{sSp}
s_lshl_b32 s{sT}, s{sT}, 10
s_add_u32 s{sT}, s{sT}, {WS_FO}
v_lshl_add_u32 v{vPA}, v{vPA}, 2, s{sT}
s_add_u32 s100, s{sWS}, s{sT}
s_addc_u32 s101, s{sWS+1}, 0
v_and_b32 v27, 3, v0
v_lshlrev_b32 v27, 4, v27
v_bfe_u32 v24, v0, 2, 4
v_lshl_add_u32 v27, v24, 10, v27""")
    nU = 10
    for n in range(10):
        if n not in EARLY: emit_grp(k, udma(n))
    k.ext(su)
    k.wait(lgkm="R")
    ldf = f"buffer_load_dword v{vPoll}, v{vPA}, {SR(sWS)}, 0 offen sc1"
    allset = f"v_cmp_eq_u32 vcc, 0, v{vPoll}\ns_nop 0\ns_cmp_eq_u64 vcc, 0"
    polled = False
    def take(n):
        nonlocal nU
        if n > 21: return []
        limit = min(RD[max(m for m in range(n + 1) if m - 7 not in OPT.get("nobs", ()))][0] + 10, len(UNITS))
        r = []
        while nU < limit:
            kd, a_ = UNITS[nU]
            if kd == "Bs" and not (polled and (a_ < 4 or n - 7 >= OPT["bsat"][a_])): break
            r.append(udma(nU)); nU += 1
        return r
    def pack(src, dst): return II("\n".join(f"v_cvt_pk_bf16_f32 v{dst+r}, v{src+2*r}, v{src+2*r+1}" for r in range(8)) + "\n" + "\n".join(f"v_min_u32 v{dst+r}, -2, v{dst+r}" for r in range(8)))
    def xst(which, lam, reg):
        return (II(f"s_xor_b32 s{sCnt}, s{sXR}, {lam*65536 + (which*4+lam)*8192}"),
                [Ins(f"buffer_store_dwordx4 {V(reg+4*m,4)}, v{vL16}, {SR(sXP)}, s{sCnt} offen offset:{m*1024} sc1") for m in range(2)], [])
    def xld(which, lam, tag, so=sCnt):
        if OPT.get("xdummy") == 2: return (II(f"s_mov_b32 s{so}, 0x40000000"), [Ins(f"buffer_load_dwordx4 {V(IN(which,lam)+4*m,4)}, v{vL16}, {SR(sXP)}, s{so} offen offset:{m*1024} sc1", tag=tag) for m in range(2)], [])
        if OPT.get("xdummy") == 1: return (II(f"s_add_u32 s{so}, s{sBo}, {(which*4+lam-1)*2048 % 4096 + ((which*4+lam-1)//2)*BSTRIDE}"), [Ins(f"buffer_load_dwordx4 {V(IN(which,lam)+4*m,4)}, v{vL16}, {SR(sB)}, s{so} offen offset:{m*1024} sc1", tag=tag) for m in range(2)], [])
        return (II(f"s_add_u32 s{so}, s{sXR}, {(which*4+lam)*8192}"),
                [Ins(f"buffer_load_dwordx4 {V(IN(which,lam)+4*m,4)}, v{vL16}, {SR(sXP)}, s{so} offen offset:{m*1024} sc1", tag=tag) for m in range(2)], [])
    IN = lambda which, lam: ACG(2 * lam, 0) + (0 if which else 8)
    def arrived(name, parts):
        regs = [IN(w_, l_) + r for w_, l_ in parts for r in range(8)]
        t = f"v_max3_u32 v28, v{regs[0]}, v{regs[1]}, v{regs[2]}\nv_max3_u32 v29, v{regs[3]}, v{regs[4]}, v{regs[5]}\n"
        for m in range(6, len(regs), 2): t += f"v_max3_u32 v{28+(m>>1)%2}, v{28+(m>>1)%2}, v{regs[m]}, v{regs[m+1]}\n"
        t += "v_max_u32 v28, v28, v29\nv_cmp_eq_u32 vcc, -1, v28\ns_nop 0\ns_cmp_eq_u64 vcc, 0"
        ld = "\n".join(x.text for w_, l_ in parts for g in [xld(w_, l_, None, sT)] for x in g[0] + g[1])
        r = poll_check(name, 0, ld, t)
        return r[:-5], r[-5:]
    G0, S0 = ACG(0, 0), ACS(2, 0)
    def unp(src, dst): return II("\n".join(f"v_lshlrev_b32 v{dst(2*r)}, 16, v{src+r}\nv_and_b32 v{dst(2*r+1)}, 0xffff0000, v{src+r}" for r in range(8)))
    gm = []
    for lam in (1, 2, 3):
        for h_ in range(2):
            for r in range(4): gm += II(f"v_lshlrev_b32 v{2+2*r}, 16, v{IN(1,lam)+4*h_+r}\nv_and_b32 v{3+2*r}, 0xffff0000, v{IN(1,lam)+4*h_+r}")
            for r in range(8): gm += II(f"v_add_f32 v{G0+8*h_+r}, v{G0+8*h_+r}, v{2+r}")
    nsum = len(gm)
    for h_ in range(2):
        g_ = lambda r: G0 + 8 * h_ + r
        for r in range(8): gm += II(f"v_mul_f32 v{2+r}, {f32(-LOG2E)}, v{g_(r)}")
        for r in range(8): gm += II(f"v_exp_f32 v{2+r}, v{2+r}") + (II(f"v_add_f32 v{r}, 1.0, v{r}") if r >= 2 else [])
        for r in range(8): gm += II(f"v_rcp_f32 v{2+r}, v{2+r}") + II(f"v_add_f32 v{8+r}, 1.0, v{8+r}" if r < 2 else f"v_mul_f32 v{g_(r-2)}, v{g_(r-2)}, v{r}")
        for r in (6, 7): gm += II(f"v_mul_f32 v{g_(r)}, v{g_(r)}, v{2+r}")
    nrest = len(gm) - nsum
    ta = II(f"""v_and_b32 v10, 15, v0
v_bfe_u32 v11, v0, 4, 2
v_and_b32 v18, 7, v0
v_xor_b32 v11, v11, v18
v_lshlrev_b32 v10, 7, v10
v_lshl_add_u32 v10, v11, 4, v10
v_add_u32 v10, s{sM}, v10
v_xor_b32 v11, 64, v10
v_and_b32 v18, 3, v0
v_lshlrev_b32 v18, 1, v18
v_bfe_u32 v19, v0, 2, 3
v_xor_b32 v18, v18, v19
v_bfe_u32 v19, v0, 2, 4
v_lshlrev_b32 v19, 7, v19
v_lshl_add_u32 v18, v18, 4, v19
v_add_u32 v18, s{sM}, v18
v_xor_b32 v19, 16, v18""")
    XR = IN(1, 1)
    at = lambda tl, y: max(q for q, gp in enumerate(tl.g) if any(x is y for x in gp.vec))
    for n in range(23):
        i = n - 7
        stamp(k, f"g{n}" if n < 7 else f"s{i}")
        tl = TL()
        if n < 7:
            for c_, j in enumerate((2, 3, 4, 5, 6, 7, 0, 1) if n == 6 else range(8)):
                for v in ((0, 1) if c_ % 2 == 0 else (1, 0)):
                    d = V(ACG(j, v), 4)
                    for m, ks in enumerate((0, 1) if v == (c_ & 1) else (1, 0)):
                        tl.add(MF(d, R(*AG(n, v, ks), 4), V(BF(n, j * 2 + ks), 4), "0" if (n == 0 and m == 0) else d))
        else:
            for e_ in range(2):
                for v in ((0, 1) if e_ == 0 else (1, 0)):
                    d = V(ACS(2 * ((i >> 2) & 1) + e_, v), 4)
                    for m, ks in enumerate(range(8) if v == e_ else range(7, -1, -1)):
                        tl.add(MF(d, A(AS(v, (i & 3) * 8 + ks), 4), V(BF(n, e_ * 8 + ks), 4), "0" if (i in (0, 4, 8) and m == 0) else d))
        bar = bool(RD[n]) and i not in OPT.get("nobs", ())
        need = []
        if bar:
            m = n
            while True:
                need += RD[m]; m += 1
                if m > 21 or m - 7 not in OPT.get("nobs", ()): break
        grp = []; vm = [f"U{u}" for u in need]
        assert all(u < nU for u in need), n
        if n == OPT["flagstage"]: vm.append("OS"); grp.append(([], II(f"buffer_store_dword v25, v26, {SR(sWS)}, 0 offen sc1"), []))
        ck = None
        if i == OPT["gck"]: vm.append("IG"); ck = arrived("g", [(1, 1), (1, 2), (1, 3)])
        if i == 11: vm.append("I1"); ck = arrived("s1", [(0, 1)])
        f2 = OPT.get("fin2")
        if i == 15 and not f2: vm.append("I2"); ck = arrived("s2", [(0, 2)])
        if vm: tl.scal_at(0, W(vm=vm))
        span = n == OPT["pollstage"] and OPT["polld"] == 2
        if bar: tl.scal_at(1, Ins("s_barrier"))
        if RD[n]: tl.scal_at(31, W(lgkm="R") if not span else Ins("s_waitcnt lgkmcnt(2)"))
        lo = 3
        if n == OPT["pollstage"]: tl.scal_at(OPT.get("pollgap", 2), Ins(f"s_load_dwordx8 s[{sK}:{sK+7}], s[100:101], 0 glc", tag="R"))
        if n == OPT["pollstage"] + OPT["polld"]:
            pc = poll_check("o", vPoll, ldf, allset)
            g = tl.g[2]; g.load += 2; polled = True; lo = 5
            g.vec += II(f"s_and_b64 s[{sK}:{sK+1}], s[{sK}:{sK+1}], s[{sK+2}:{sK+3}]\ns_and_b64 s[{sK+4}:{sK+5}], s[{sK+4}:{sK+5}], s[{sK+6}:{sK+7}]\ns_and_b64 s[{sK}:{sK+1}], s[{sK}:{sK+1}], s[{sK+4}:{sK+5}]\ns_and_b32 s{sK}, s{sK}, s{sK+1}") + pc[-2:]
        pk = []
        pw = OPT.get("pw2", 1)
        if n == 6: pk = [(11, 21, pack(ACG(2, 0), ACG(2, 0)))] if not pw else [(11, 31, pack(ACG(2, 0), ACG(2, 0)) + pack(ACG(4, 0), ACG(4, 0))[:8])]
        gst = OPT.get("gst", 0)
        if i == 0 and gst == 0: pk = [(0, 14, pack(ACG(4, 0), ACG(4, 0))), (8, 24, pack(ACG(6, 0), ACG(6, 0)))] if not pw else [(0, 25, pack(ACG(4, 0), ACG(4, 0))[8:] + pack(ACG(6, 0), ACG(6, 0)))]
        if i == 0 and gst > 0: pk = [(0, 31, pack(ACG(4, 0), ACG(4, 0))[8 if pw else 0:] + pack(ACG(6, 0), ACG(6, 0)))]
        if i in (4, 8, 12): pk = [(4 if not pw else 2, (OPT.get("s3lo", 16) - 2) if (i == 12 or not pw) else 24, pack(ACS(2 * ((i // 4 + 1) & 1), 0), IN(0, i // 4)))]
        grp += take(n)
        if i == OPT["gld"]: grp += [xld(1, lam, "IG") for lam in (1, 2, 3)]
        if i == 8: grp.append(xld(0, 1, "I1"))
        g1 = OPT.get("g1early", 0)
        if i == gst: grp += [xst(1, lam, IN(1, lam)) for lam in (1, 2, 3) if lam > g1]
        if n == 6 and g1: late_ = [xst(1, lam, IN(1, lam)) for lam in range(1, g1 + 1)]
        else: late_ = []
        if i in (4, 8, 12): grp.append(xst(0, i // 4, IN(0, i // 4)))
        if i == 12:
            lo = OPT.get("s3lo", 16)
            grp += [([], II(f"buffer_load_dwordx4 {V(XR,4)}, v27, {SR(sX)}, s{sOo} offen\nbuffer_load_dwordx4 {V(XR+4,4)}, v27, {SR(sX)}, s{sXW} offen"), []), xld(0, 2, "I2")]
            assert not any({f"v{XR+r}" for r in range(8)} & y.reads for y in gm)
        if i == OPT.get("i3st", 15): lo = OPT["i3gap"]; grp.append(xld(0, 3, "I3"))
        if i == 0 and gst == 0 and g1 and len(grp) == 3 - g1: lo = 17
        spill = []
        while sum(len(g[1]) + len(g[0]) // 2 for g in grp) > 22: spill.insert(0, grp.pop())
        nv = sum(len(g[1]) for g in grp)
        if grp and n < 7 and OPT.get("gfront"):
            q = lo - 1
            for g in grp:
                gp = tl.g[q]; gp.vec += g[0] + g[1]; gp.load += 6; q += OPT["gfront"]
            for g in spill: tl.g[q].vec += g[0] + g[1]; tl.g[q].load += 6; q += OPT["gfront"]
            spill = []
        elif grp: tl.spread(lo, min(29, lo + 4 * nv - 4) if i > 0 else (29 if not late_ else 18), grp)
        if late_: tl.spread(24, 29, late_); grp += late_
        rd = [x for u in RD[n] for x in ureads(u)]
        if span: rd += II(f"ds_read_b32 v28, v{vL16}\nds_read_b32 v28, v{vL16}")
        if len(rd) > 26: tl.vec_in(2, OPT.get("grh", 25), rd)
        elif rd:
            rh = OPT.get("rh", 20)
            while rh < 27 and sum(tl.g[q].load == 0 for q in range(2, rh + 1)) < len(rd): rh += 1
            free = [q for q in range(2, rh + 1) if tl.g[q].load == 0]
            drop = len(free) - len(rd)
            if drop < 0: tl.vec_in(2, 27, rd)
            else:
                for m in range(drop): free[(2 * m + 1) * len(free) // (2 * drop)] = None
                for x, q in zip(rd, [q for q in free if q is not None]): tl.vec_at(q, x)
        for lo_, hi_, its in pk:
            room = sum(max(0, 2 - tl.g[q].load) for q in range(lo_, hi_ + 1))
            left = tl.stream(lo_, hi_, its, cap=2 if room >= len(its) else 3); assert not left, (n, len(left))
            for y in its:
                for q, gp in enumerate(tl.g): assert not (gp.m.writes & y.reads) or at(tl, y) >= q, n
                for g in grp:
                    for x in g[1]: assert not (y.writes & x.reads) or at(tl, x) > at(tl, y), n
        q0 = 0
        if ck:
            left = tl.stream(0, 29, ck[0]); assert not left
            q0 = at(tl, ck[0][-1]) + 1; tl.g[q0].vec += ck[1]; tl.g[q0].load += 2; q0 += 1
        if i == 5: left = tl.stream(0, 31, ta); assert not left
        if i == 11: left = tl.stream(q0, 29, unp(IN(0, 1), lambda r: S0 + r)); assert not left
        if f2 and i == 14:
            TT = lambda r: IN(1, 2) + r if r < 8 else IN(1, 3) + r - 8
            assert not gm or not any({f"v{TT(r)}" for r in range(16)} & y.reads for y in gm)
            gm = tl.sched(0, f2[0] - 2, gm); assert not gm
            c2 = arrived("s2", [(0, 2)])
            left = tl.stream(f2[0] - 1, 28, [W(vm="I2")] + c2[0]); assert not left
            q2 = at(tl, c2[0][-1]) + 1; tl.g[q2].vec += c2[1]; tl.g[q2].load += 2
            l14 = tl.stream(q2 + 1, 31, unp(IN(0, 2), TT))
        if f2 and i == 15:
            xu = unp(XR, lambda r: 128 + r)
            left = tl.stream(0, f2[1] - 1, l14 + xu[:8]); assert len(left) <= 8
            c3 = arrived("s3", [(0, 3)])
            l_ = tl.stream(f2[1] - 1, 28, [W(vm="I3")] + c3[0]); assert not l_
            q3 = at(tl, c3[0][-1]) + 1; tl.g[q3].vec += c3[1]; tl.g[q3].load += 2
            u3 = unp(IN(0, 3), lambda r: 160 + r)
            def half(e_): return u3[8*e_:8*e_+8] + II("\n".join(f"v_add_f32 v{TT(r)}, v{TT(r)}, v{160+r}" for r in range(8*e_, 8*e_+8)))
            fin0 = II("\n".join(f"v_add_f32 v{S0+r}, v{S0+r}, v{TT(r)}" for r in range(8)) + "\n" + "\n".join(f"v_mul_f32 v{S0+r}, v{S0+r}, v{G0+r}" for r in range(8)))
            fin0 += II("\n".join(f"ds_write_b128 v{10+v}, {V(S0+v*4,4)}" for v in range(2))) + II("\n".join(f"ds_read_b128 {V(144+m*4,4)}, v{18+m}" for m in range(2)), tag="T0")
            l_ = tl.stream(q3 + 1, 19, half(0) + left + half(1))
            finl = tl.stream(20, 31, l_[:max(0, len(l_) - 16)] + fin0 + l_[max(0, len(l_) - 16):])
            print("final: left over", len(finl), file=sys.stderr)
        if i == 15 and not OPT.get("fin") and not f2: left = tl.stream(q0, 31, unp(IN(0, 2), lambda r: 144 + r) + unp(XR, lambda r: 128 + r)); assert not left
        if i == 15 and OPT.get("fin"):
            left = tl.stream(q0, OPT["fin"] - 1, unp(IN(0, 2), lambda r: 144 + r)); assert not left
            c3 = arrived("s3", [(0, 3)])
            left = tl.stream(OPT["fin"] - 1, 28, [W(vm="I3")] + c3[0]); assert not left
            q3 = at(tl, c3[0][-1]) + 1; tl.g[q3].vec += c3[1]; tl.g[q3].load += 2
            finl = tl.stream(q3 + 1, 31, unp(IN(0, 3), lambda r: 160 + r) + unp(XR, lambda r: 128 + r))
        if i >= OPT["gck"] and gm: gm = (tl.sched if OPT.get("gsched", 1) else tl.stream)(q0 if i == OPT["gck"] else 0, 31, gm)
        k.ext(tl.emit(0, 32, "x").ins)
        for g in spill: emit_grp(k, g)
    assert nU == len(UNITS)
    stamp(k, "send")
    print("g math left over", len(gm), file=sys.stderr)
    k.ext(gm)
    def padd(acc, tmp):
        for r in range(0, 16, 2): k.e(f"v_pk_add_f32 {V(acc+r,2)}, {V(acc+r,2)}, {V(tmp+r,2)}")
    if OPT.get("fin2"):
        k.ext(finl)
        for r in range(8, 16, 2): k.e(f"v_pk_add_f32 {V(S0+r,2)}, {V(S0+r,2)}, {V(TT(r),2)}")
        for r in range(8, 16, 2): k.e(f"v_pk_mul_f32 {V(S0+r,2)}, {V(S0+r,2)}, {V(G0+r,2)}")
        for v in range(2): k.e(f"ds_write_b128 v{10+v}, {V(S0+8+v*4,4)} offset:2048")
        for m in range(2): k.e(f"ds_read_b128 {V(152+m*4,4)}, v{18+m} offset:2048", tag="T1")
        for e_ in range(2):
            if e_: k.ext(xu[8:])
            k.wait(lgkm=f"T{e_}")
            for r in range(0, 8, 2): k.e(f"v_pk_add_f32 {V(128+8*e_+r,2)}, {V(128+8*e_+r,2)}, {V(144+8*e_+r,2)}")
            for r in range(4): k.e(f"v_cvt_pk_bf16_f32 v{176+4*e_+r}, v{128+8*e_+2*r}, v{129+8*e_+2*r}")
            k.e(f"buffer_store_dwordx4 {V(176+4*e_,4)}, v27, {SR(sOut)}, s{sXW if e_ else sOo} offen")
    else:
        if not OPT.get("fin"):
            k.wait(vm="I3")
            ck = arrived("s3", [(0, 3)]); k.ext(ck[0] + ck[1])
            stamp(k, "spolled")
            k.ext(unp(IN(0, 3), lambda r: 160 + r)); finx = []
        else:
            finx = [x for x in finl if int(list(x.writes)[0][1:]) < 144]; k.ext([x for x in finl if x not in finx])
        padd(144, 160); padd(S0, 144)
        for r in range(0, 16, 2): k.e(f"v_pk_mul_f32 {V(S0+r,2)}, {V(S0+r,2)}, {V(G0+r,2)}")
        for e_ in range(2):
            for v in range(2): k.e(f"ds_write_b128 v{10+v}, {V(S0+(e_*2+v)*4,4)} offset:{e_*2048}")
        for e_ in range(2):
            for m in range(2): k.e(f"ds_read_b128 {V(160+e_*8+m*4,4)}, v{18+m} offset:{e_*2048}", tag=f"T{e_}")
        k.ext(finx)
        for e_ in range(2):
            k.wait(lgkm=f"T{e_}")
            for r in range(0, 8, 2): k.e(f"v_pk_add_f32 {V(128+8*e_+r,2)}, {V(128+8*e_+r,2)}, {V(160+8*e_+r,2)}")
            for r in range(4): k.e(f"v_cvt_pk_bf16_f32 v{176+4*e_+r}, v{128+8*e_+2*r}, v{129+8*e_+2*r}")
            k.e(f"buffer_store_dwordx4 {V(176+4*e_,4)}, v27, {SR(sOut)}, s{sXW if e_ else sOo} offen {OPT.get('outf', '')}")
    z = Block(); z.name = "end"
    if OPT.get("encode") is not None:
        z.e("s_waitcnt vmcnt(0) lgkmcnt(0)"); stamp(z, "end")
        i0, i1 = (STAMPS[x] for x in OPT["encode"])
        fld = 72 if OPT.get("enccyc") else 73
        z.e(f"s_sub_u32 s92, s{fld+2*i1}, s{fld+2*i0}")
        if OPT.get("encx") is not None: z.e(f"s_and_b32 s3, s2, {OPT.get('encm', 7)}\ns_cmp_eq_u32 s3, {OPT['encx']}\ns_cselect_b32 s92, s92, 0")
        z.e("s_lshr_b32 s92, s92, 2" if OPT.get("enccyc") else "s_lshl_b32 s92, s92, 2")
        z.e(f"s_add_u32 s92, s92, 20000\nL_enc:\ns_sleep 1\ns_memrealtime s[98:99]\ns_waitcnt lgkmcnt(0)\ns_sub_u32 s98, s98, s73\ns_cmp_lt_u32 s98, s92\ns_cbranch_scc1 L_enc")
    elif OPT["stamp"]:
        z.e("s_waitcnt vmcnt(0) lgkmcnt(0)"); stamp(z, "end")
        z.e(f"s_load_dwordx2 s[96:97], s[0:1], 88\ns_waitcnt lgkmcnt(0)"); ptr_add(z, 96, 0x8000000 + 0x40000); srd_fin(z, 96, 0x40000)
        for i in range(20): z.e(f"v_mov_b32 v{36+i}, s{72+i}")
        z.e(f"s_lshl_b32 s92, s2, 2\ns_add_u32 s92, s92, s{sWave}\ns_lshl_b32 s92, s92, 7\nv_mov_b32 v2, s92\ns_mov_b64 exec, 1")
        for i in range(5): z.e(f"buffer_store_dwordx4 {V(36+4*i,4)}, v2, s[96:99], 0 offen offset:{16*i}")
    z.e("L_end:\ns_endpgm")
    fb = Block(); fb.name = "fb"
    fb.e(f"L_fallback:\ns_mov_b32 s{sFB}, 1\ns_waitcnt vmcnt(0) lgkmcnt(0)\ns_barrier\ns_branch L_restart")
    m0 = Block(); m0.name = "tm0"
    m0.e(f"L_truemax:\ns_mov_b32 s{sKo}, s{sW8k}\ns_mov_b32 s{sCnt}, 16")
    for t in range(4): m0.e(f"v_mov_b32 v{vNM+4*t}, 0xff800000")
    m0.e("s_waitcnt vmcnt(0) lgkmcnt(0)")
    m1 = Block(); m1.name = "tm1"
    m1.e("L_tm_loop:\ns_barrier")
    emit_grp(m1, dma_K(0, 0, "DK")); emit_grp(m1, dma_K(1, 0, "DK"))
    m1.e("s_waitcnt vmcnt(0)\ns_barrier")
    for g in range(8):
        m1.ext(kreads(g, 0, 0, "K0")); m1.e("s_waitcnt lgkmcnt(0)")
        for t in range(4): m1.ext(qk_chain(t, 0, "0"))
        for t in range(4):
            s0 = vS + 4 * t
            m1.e(f"v_max3_f32 v{vNM+4*t}, v{vNM+4*t}, v{s0}, v{s0+1}\nv_max3_f32 v{vNM+4*t}, v{vNM+4*t}, v{s0+2}, v{s0+3}")
    m1.e(f"s_sub_u32 s{sCnt}, s{sCnt}, 1\ns_cmp_lg_u32 s{sCnt}, 0\ns_cbranch_scc1 L_tm_loop")
    m2 = Block(); m2.name = "tm2"
    rowmax_finish(m2, lambda t: vNM + 4 * t)
    m2.e(f"s_mov_b32 s{sKo}, s{sW8k}\ns_barrier")
    emit_grp(m2, dma_K(0, 0, "DK")); emit_grp(m2, dma_K(1, 0, "DK"))
    m2.e(f"s_add_u32 s{sKo}, s{sKo}, 32768\ns_waitcnt vmcnt(0)\ns_barrier")
    m2.ext(kreads(0, 0, 0, "K0")); m2.e("s_waitcnt lgkmcnt(0)\ns_branch L_att_start")
    att = [l0, first, l1, l1b, even, odd, l1b, even, odd, l4, last, f]
    front = [b2, c] + PJ['F'] + [e]; frontS = [b2, c] + PJ['S'] + [e]
    vb = []
    finalize([[b_] + front + [e2] + att + [k, z], [b_] + frontS + [e2] + att + [fb] + frontS + [m0, m1, m1, m2] + att + [k, z], [b_] + front + [m0, m1]] + [[s] for s in SLOW], vb)
    for fr in (front, frontS): check_groups([x for bb in [b_] + fr + [e2] + att + [k, z] for x in bb.ins])
    for x in vb:
        if x[0].startswith("att") or x[0] in ("projF", "projS"): print("nop:", x, file=sys.stderr)
    cend = Block(); cend.e('L_code_end:')
    layout = [b_, b2, c] + PJ['S'] + [e, e2, l0, first, l1, l1b, even, odd, l4, last, f, k, z] + (SLOW[::-1] if OPT.get('slownear', 1) else []) + PJ['F'] + [cend, fb, m0, m1, m2] + ([] if OPT.get('slownear', 1) else SLOW)
    note = {id(b2): "set-up, first loads", id(c): "set-up under the first loads", id(PJ['S'][0]): "projection, odd ids (48 FFN columns)", id(PJ['F'][0]): "projection, even ids (64 FFN columns)",
            id(PJ['S'][2]): "Q and the rest of h; scores of the first 16 keys", id(PJ['F'][2]): "Q and the rest of h; scores of the first 16 keys", id(e2): "stand-in row maximum",
            id(first): "tile 0: scores and exponentials only", id(even): "tile pair: QK of the next tile beside PV of this one", id(last): "tiles 14 and 15, normalisation and O stores",
            id(f): "check of the stand-in maximum", id(k): "tail: g stages, then the four row strips", id(fb): "stand-in was unsafe: start again", id(m0): "true row maximum over all keys", id(SLOW[-1]): "bounded waits"}
    return kernel_head(KN) + "\n".join((f"; ---- {note[id(x)]}\n" if id(x) in note else "") + x.text() for x in layout) + "\n" + kernel_desc(KN, 512, 256)


DOC = """
;
; Workgroup (q block of 256 rows, head); each wave owns 64 rows.  All products use v_mfma_f32_16x16x32_bf16, transposed (D = [columns x rows]),
;  2. attention over 16 tiles of 128 keys, K/V staged by LDS-DMA.  exp2(s - m) uses as m the maximum over the row's first 16 keys (it enters as
; partial tiles are recognised by the absence of an all-ones mark written earlier in the launch.  Every wait loop is bounded.
"""
def build():
    head = open("cdna_kernels/" + NAME + ".s.ref").read().split("; Override launch")[0]
    s = head + "; @launch grid=(256,1,1) block=(256,1,1) lds=163840\n" + '.amdgcn_target "amdgcn-amd-amdhsa--gfx950"\n' + DOC.lstrip("\n")
    plan_units()
    return s + gen_kernel()

if __name__ == "__main__":
    out = sys.argv[1] if len(sys.argv) > 1 else "cdna_kernels/" + NAME + ".s"
    for a in sys.argv[2:]:
        k, v = a.split("="); OPT[k] = eval(v)
    names = OPT.get("stamps", "p0,p4,projend,att0,loop,last,tail0,gend").split(",")
    STAMPS.update({n: i + 1 for i, n in enumerate(names)}); STAMPS["start"] = 0; STAMPS["end"] = 9
    open(out, "w").write(build())
```

```python
import sys, math, struct, re
sys.path.insert(0, "gen")
from asmgen import *

NAME = "recurrent_scan__mha_block_cached__glu_gated_swiglu__prompt"
KN = NAME + "_kernel"
WS_ST, WS_FH, WS_FO, WS_FG, WS_FS = 0, 0x8000, 0x10000, 0x18000, 0x20000
WS_B, WS_X = 0x200000, 0x2000000
BSTRIDE = 184 * 1024
LOG2E = 1.4426950408889634
OOB = 0x7ffffff0
def f32(x): return "0x%08x" % struct.unpack("<I", struct.pack("<f", x))[0]
OPT = dict(stamp=False, early=7, pollstage=3, polld=1, htrip=2, flagstage=0, osr=1, osg=4, fgstage=5, fsstage=11, lead=5, ramp=0, dl=-32, lmax=120, i3st=14, i3gap=3, s3lo=12, fin2=(20, 10), tq0=0, pa=.1, pb=.75, pc=.4, x2o=.15, x3a=.92, nh=3, nhS=4, sthiS=.45, pre="Q0 S", sthi=.2,
    sch=[(.05,'W1 r1 G1 Q1'),(.75,'x1 W2'),('o',1,1.45,1.65),(0,'r2 G2 W3 A'),(2.25,'x2 W4 G3 Q2'),('o',2,3.05,3.25),(0,'r3 Q3 C'),(3.7,'x3 W5'),(4.5,'W6'),('o',3,4.6,4.9)], clrpos=(7, 5), asat=(-9, -9, -9, -9, 0, 0, 1, 1, 2, 2, 3, 3, 4, 4, 6, 5), bsat=(0, 0, 0, 0, 0, 2, 2, 3, 4, 6, 6, 7, 8, 10, 10, 11), gld=4, gck=7)

L_K, L_SP, L_V = 0, 65536, 98304
sX, sWQ, sW1, sW3, sK, sV, sB, sH, sWS, sDBG, sWO, sW2, sOut = range(4, 56, 4)
sHead, sQb, sWave, sW8k, sW4k, sXb, sKo, sVo, sCnt, sT, sT2, sWQo, sW13o, sBo, sFB, sW16k = range(56, 72)
sTr, sTc, sSp = 93, 94, 95
sTW, sT2W = 100, 101
sFs, sFv = 92, sOut + 2
vL16, vKA, vVA, vDK, vDV, vIDX, vT = 1, 2, 6, 14, 18, 20, 24
vS, vNM = 32, 48
def Q(t, ds): return 64 + (t * 4 + ds) * 4
def P(pb, kk, t): return 128 + pb * 64 + (t * 4 + kk) * 4
def O(dt, t): return (dt * 4 + t) * 4
def VF(b, kk): return (128 + b * 16 if b < 4 else 148 + b * 16) + kk * 4
aL, aONES = 192, 208
def KF(b, ds): return 212 + b * 16 + ds * 4
aCHK, aZ = 244, 248
vWQA, vW13A, vDQ, vD13, vXA, vDX = 24, 28, 32, 36, 40, 44

def SR(s): return f"s[{s}:{s+3}]"
def MF(d, a, bb, c): return Ins(f"v_mfma_f32_16x16x32_bf16 {d}, {a}, {bb}, {c}")
def II(txt, tag=None): return [Ins(x, tag=tag) for x in txt.split("\n") if x.strip()]
def srd_fin(b, d, nrec):
    b.e(f"s_and_b32 s{d+1}, s{d+1}, 0xffff\ns_mov_b32 s{d+2}, {nrec}\ns_mov_b32 s{d+3}, 0x20000")
def ptr_add(b, d, off): b.e(f"s_add_u32 s{d}, s{d}, {off}\ns_addc_u32 s{d+1}, s{d+1}, 0")

def stamp_ins(i):
    if not OPT["stamp"] or i is None: return []
    return II(f"s_waitcnt lgkmcnt(0)\ns_memtime s[96:97]\ns_memrealtime s[98:99]\ns_waitcnt lgkmcnt(0)\ns_mov_b32 s{72+2*i}, s96\ns_mov_b32 s{73+2*i}, s98")
_jit = [0]
def jitter(b, wave=False):
    if not OPT.get("jit"): return
    _jit[0] += 1; n = _jit[0]
    b.e(f"s_waitcnt lgkmcnt(0)\ns_memtime s[96:97]\ns_waitcnt lgkmcnt(0)\ns_lshr_b32 s96, s96, {4 if wave else 14}\ns_add_u32 s96, s96, s2\ns_mul_i32 s96, s96, 0x9e3779b1\ns_lshr_b32 s96, s96, 16\ns_mul_i32 s96, s96, {OPT['jit'] // (8 if wave else 1)}\ns_lshr_b32 s96, s96, 16\ns_add_u32 s96, s96, 1")
    b.e(f"L_jit{n}:\ns_sleep 1\ns_sub_u32 s96, s96, 1\ns_cmp_lg_u32 s96, 0\ns_cbranch_scc1 L_jit{n}")
STAMPS = {}
def stamp(b, name):
    b.ext(stamp_ins(STAMPS.get(name)))
    if name in ("karg", "projend", "last", "tail0", "s0", "s6", "s13"): jitter(b)
    if name in ("p0", "att0", "loop", "attend", "send") or re.fullmatch(r"[gs]\d+", name): jitter(b, True)

class Gap:
    def __init__(self, m): self.m = m; self.scal = []; self.vec = []; self.load = 0
def cost_of(ins): return 2 if (ins.kind == "trans" or ins.is_vmem) else (0 if ins.kind in ("salu", "wait", "sctl", "label") else 1)
def is_ds(x): return x.kind in ("dsread", "dswrite")
def dep(a, b): return bool(a.writes & (b.reads | b.writes)) or bool(a.reads & b.writes)
class TL:
    def __init__(self): self.g = []
    def add(self, m):
        gp = Gap(m); self.g.append(gp)
        if m.op.startswith("v_smfmac"): gp.load = 1
        if "32x32" in m.op: gp.load = -4
        return len(self.g) - 1
    def pen(self, i, ins):
        gp = self.g[i]; l = gp.load + cost_of(ins)
        if is_ds(ins) and any(x.is_vmem for x in gp.vec): l += OPT.get("vmpen", .5)
        if is_ds(ins):
            if any(is_ds(x) for x in gp.vec): l += 1
            if any(x.is_valu and dep(x, ins) for x in gp.vec): l += 2
        return l
    def vec_at(self, i, ins):
        gp = self.g[i]; k = len(gp.vec)
        if is_ds(ins) or ins.is_vmem:
            while k > 0 and gp.vec[k - 1].is_valu and not dep(gp.vec[k - 1], ins): k -= 1
        gp.vec.insert(k, ins); gp.load += cost_of(ins)
    def vec_in(self, lo, hi, items):
        extra = {i: 0 for i in range(lo, hi + 1)}
        cand = []
        for it in items:
            i = min(extra, key=lambda k: (max(self.pen(k, it) + extra[k], 2), self.pen(k, it) + extra[k] if not OPT.get("pack") else 0, k)); cand.append(i); extra[i] += 2
        cand.sort()
        for i, it in zip(cand, items): self.vec_at(i, it)
        return cand
    def scal_at(self, i, ins, later=True):
        while self.g[i].scal: i += 1 if later else -1
        self.g[i].scal.append(ins); return i
    def spread(self, lo, hi, groups):
        n = sum(len(g[1]) for g in groups); k = 0; prev = lo - 3
        for grp in groups:
            sc, ve, post = grp
            for x in ve: x.grp = grp; x.role = "vec"
            first = True
            for it in ve:
                tgt = lo + (hi - lo) * k // max(n - 1, 1); k += 1
                mn = prev + 1
                if first:
                    i = max(prev + 1, tgt - len(sc) - 1)
                    for x in sc: i = self.scal_at(i, x) + 1
                    mn = max(mn, i); first = False
                cands = [j for j in range(max(mn, tgt - 1), max(mn, tgt - 1) + 4) if j < len(self.g)]
                j = min(cands, key=lambda z: (self.g[z].load, abs(z - tgt)))
                self.vec_at(j, it); prev = j
            for x in post: prev = self.scal_at(prev + 1, x)
        return prev
    def stream(self, lo, hi, items, cap=2):
        i = lo; items = list(items)
        while items and i <= hi:
            it = items[0]; c = cost_of(it)
            if c == 0:
                i += 1
                while i <= hi and self.g[i].scal: i += 1
                if i > hi: break
                self.g[i].scal.append(it); items.pop(0); continue
            if self.pen(i, it) <= cap: self.vec_at(i, it); items.pop(0)
            else: i += 1
        return items
    def sched(self, lo, hi, items, look=70, lat=6):
        items = list(items); rw = {}; pos = {}
        for x in items:
            r, w = set(x.reads), set(x.writes)
            if x.waitfor is not None:
                for y in items:
                    if y.tag is not None and any(y.tag in t for t in x.waitfor.values()): r |= y.writes; w |= y.writes
                r |= getattr(x, "guards", set()); w |= getattr(x, "guards", set())
            if x.is_vmem: r.add("vm"); w.add("vm")
            if x.kind == "salu": r.add("scc"); w.add("scc")
            rw[id(x)] = (r, w)
        dp = lambda a, b: bool(rw[id(a)][1] & (rw[id(b)][0] | rw[id(b)][1])) or bool(rw[id(a)][0] & rw[id(b)][1])
        placed = []
        def ready(k, i):
            x = items[k]
            if any(dp(y, x) for y in items[:k]): return False
            for y in placed[-40:]:
                if not dp(y, x): continue
                d = 0
                if cost_of(x) == 0 or is_ds(x) or x.is_vmem: d = 1 if cost_of(y) > 0 or cost_of(x) == 0 else 0
                if x.waitfor is not None and is_ds(y): d = lat
                if (getattr(x, "dpp", False) or getattr(x, "permlane", False)) and y.is_valu: d = 2
                if i < pos[id(y)] + d: return False
            return True
        for i in range(lo, hi + 1):
            for want in (0, 2, 1, 1, 1, 1, 1, 1):
                for k in range(min(look, len(items))):
                    x = items[k]
                    if cost_of(x) != want: continue
                    if (self.g[i].scal if want == 0 else self.pen(i, x) > 2) or not ready(k, i): continue
                    if want == 0: self.g[i].scal.append(x)
                    else: self.vec_at(i, x)
                    pos[id(x)] = i; placed.append(x); items.pop(k); break
        return items
    def emit(self, lo, hi, name):
        b = Block(); b.name = name
        for gp in self.g[lo:hi]:
            if gp.m is not None: b.add(gp.m)
            b.ext(gp.scal); b.ext(gp.vec)
        return b

SLOW = []
def poll_check(name, vreg, load_txt, ready_cmp):
    inl = II(ready_cmp) + II(f"s_cbranch_scc0 L_spin_{name}\nL_back_{name}:")
    sl = Block(); sl.name = "spin" + name
    sl.e(f"L_spin_{name}:\ns_mov_b32 s3, 0x40000\nL_spin2_{name}:\ns_sleep {OPT.get('slp', 2)}\n{load_txt}\ns_waitcnt vmcnt(0)\ns_sub_u32 s3, s3, 1\ns_cmp_eq_u32 s3, 0\ns_cbranch_scc1 L_back_{name}")
    sl.e(ready_cmp); sl.e(f"s_cbranch_scc0 L_spin2_{name}\ns_branch L_back_{name}")
    SLOW.append(sl)
    return inl

def dma_K(half, buf, tag):
    return (II(f"s_add_u32 m0, s{sW8k}, {L_K + buf*32768 + half*4096}"),
            [Ins(f"buffer_load_dwordx4 v{vDK+p}, {SR(sK)}, s{sKo} offen offset:{p*1024} lds", tag=tag) for p in range(4)],
            II(f"s_add_u32 s{sKo}, s{sKo}, {4096 if half == 0 else 28672}"))
def dma_V(half, buf, tag):
    return (II(f"s_add_u32 m0, s{sW8k}, {L_V + buf*32768 + half*4096}"),
            [Ins(f"buffer_load_dwordx4 v{vDV+(p&1)}, {SR(sV)}, s{sVo} offen offset:{p*1024} lds", tag=tag) for p in range(4)],
            II(f"s_add_u32 s{sVo}, s{sVo}, {4096 if half == 0 else 28672}"))
def emit_grp(b, d): b.ext(d[0]); b.ext(d[1]); b.ext(d[2])
def check_groups(trace):
    last = {}; cnt = {}
    for x in trace:
        g = getattr(x, "grp", None)
        if g is not None and x.role == "vec":
            for r in x.reads:
                ws_ = [sc for sc in g[0] if r in sc.writes]
                if ws_: assert last.get(r) is ws_[-1], ("group scalar clobbered", x.text, last.get(r))
            for sc in g[2]:
                for r in sc.writes & x.reads:
                    key = (id(g), r)
                    if x is g[1][0]: cnt[key] = last.get(r)
                    assert last.get(r) is cnt[key] and (len(g[1]) == 1 or last.get(r) is not sc), ("post scalar order", x.text)
        for r in x.writes:
            if r[0] == "s" or r == "m0": last[r] = x
def kreads(g, buf, fb, tag):
    return [Ins(f"ds_read_b128 {A(KF(fb,ds),4)}, v{vKA+ds} offset:{buf*32768+g*4096}", tag=tag) for ds in range(4)]
def vreads(dt, buf, fb, tag):
    return [Ins(f"ds_read_b64_tr_b16 {A(VF(fb,kk)+2*kh,2)}, v{vVA+dt} offset:{buf*32768+(32*kk+16*kh)*256}", tag=tag) for kk in range(4) for kh in range(2)]
def snake(t): return range(4) if (t % 2 == 0 or OPT.get("nosnake")) else range(3, -1, -1)
def qk_chain(t, fb, c0):
    d = V(vS + 4 * t, 4)
    return [MF(d, A(KF(fb, ds), 4), V(Q(t, ds), 4), c0 if n == 0 else d) for n, ds in enumerate(snake(t))]
def pv_chain(dt, t, fb, pb):
    d = A(O(dt, t), 4)
    return [MF(d, A(VF(fb, kk), 4), V(P(pb, kk, t), 4), d) for kk in snake(t)]
def rs(t, kp, pb): return Ins(f"v_smfmac_f32_16x16x64_bf16 {A(aL+4*t,4)}, {A(aONES,4)}, {V(P(pb,2*kp,t),8)}, v{vIDX}")

vDA, vB1, vPoll, vPA = 14, 30, 29, 23
vRAs, vRB, vRAg = 6, (12, 13, 20), 48
sM, sAo, sWOo, sW2o = sW4k, sT2, sWQo, sW13o
sBg, sQ0, sBt = sXb, sW1 + 3, sKo
sBs = [sDBG, sDBG + 1, sDBG + 2, sDBG + 3]
sXP = sH
sXW, sXR, sOo, sFl2 = sW16k, 92, sQ0, 99
sGk = list(range(sWQ, sWQ + 7))
sHp = list(range(sW3, sW3 + 4))
UNITS = []; USEQ = {}; RD = {}
def plan_units():
    for n in range(-1, 22):
        r = [("Ag", n + 1), ("Bg", n + 1)] if n < 6 else [("Bs", n - 6)]
        r = [("As", a) for a in range(16) if OPT["asat"][a] == n] + r if n == 6 else r + [("As", a) for a in range(16) if OPT["asat"][a] == n]
        RD[n] = list(range(len(UNITS), len(UNITS) + len(r))); UNITS.extend(r)
    RD[22] = []
    USEQ.update({u: n for n, u in enumerate(UNITS)})
    for a in range(16): assert OPT["asat"][a] <= 6 + a // 4
    assert OPT["asat"][14] >= 6 and max(OPT["asat"]) <= 9
def udma(n):
    kind, i = UNITS[n] if isinstance(n, int) else n
    m0 = f"s_add_u32 m0, s{sM}, {uslot((kind, i))*16384}\n"; tag = f"U{n}" if isinstance(n, int) else f"E{i}"
    rot = OPT.get("rot", 1)
    if kind[0] == "A":
        sr, so = (sW2, sW2o) if kind == "Ag" else (sWO, sWOo)
        if kind == "As": ad = f"s_xor_b32 s{sAo}, s{so}, {i*65536}"
        else: ad = f"s_lshl_b32 s{sAo}, s{sGk[i]}, 5\ns_add_u32 s{sAo}, s{sAo}, s{so}"
        return (II(m0 + ad),
                [Ins(f"buffer_load_dwordx4 v{vDA+p}, {SR(sr)}, s{sAo} offen offset:{p*1024} lds", tag=tag) for p in range(4)], [])
    if kind == "Bg":
        return (II(m0 + f"s_add_u32 s{sBt}, s{sBg}, s{sGk[i]}"),
                [Ins(f"buffer_load_dwordx4 v{vL16 if p < 2 else vB1}, {SR(sB)}, s{sBt} offen offset:{p*1024} sc1 lds", tag=tag) for p in range(4)], [])
    bs, hp = sBs[(1, 2, 3, 0)[i >> 2]], sHp[i & 3]
    return (II(m0 + f"s_add_u32 s{sBt}, s{bs}, s{hp}"),
            [Ins(f"buffer_load_dwordx4 v{vL16}, {SR(sB)}, s{sBt} offen offset:{p*1024} sc1 lds", tag=tag) for p in range(4)], [])
XSLOT = {("As", 0): 0, ("As", 1): 1, ("As", 2): 4, ("As", 3): 5}
def uslot(u): return XSLOT[u] if u not in USEQ else USEQ[u] % 10
def uloc(u): sl = uslot(u); return sl // 4, (sl % 4) * 16384
_first = list(range(160, 192, 4)) + [0, 4, 16, 20, 32, 36, 48, 52]
ASREG = _first + [r for r in range(0, 256, 4) if r not in _first]
assert ASREG[56:60] == [224, 228, 232, 236]
def AS(v, ks): return ASREG[ks * 2 + v]
def AG(i, v, ks): return ("v", 32 + (v * 2 + ks) * 4) if i % 2 == 0 else ("a", 224 + (v * 2 + ks) * 4)
def BF(n, m): return 64 + (n & 1) * 64 + m * 4
def ACG(j, v): return 192 + (j * 2 + v) * 4
def ACS(q, v): return 32 + (q * 2 + v) * 4
def ureads(u, vRAs=vRAs):
    kind, i = UNITS[u] if isinstance(u, int) else u
    st, o = uloc((kind, i))
    if kind == "As":
        return [Ins(f"ds_read_b64_tr_b16 {A(AS(v,2*i+ks)+2*kh,2)}, v{vRAs+2*st+v} offset:{o+ks*8192+kh*4096}", tag="R") for ks in range(2) for v in range(2) for kh in range(2)]
    if kind == "Ag":
        return [Ins(f"ds_read_b64_tr_b16 {R(AG(i,v,ks)[0], AG(i,v,ks)[1]+2*kh, 2)}, v{vRAg+4*st+2*kh+v} offset:{o+ks*8192}", tag="R") for v in range(2) for ks in range(2) for kh in range(2)]
    n = i if kind == "Bg" else 7 + i
    return [Ins(f"ds_read_b128 {V(BF(n,m),4)}, v{vRB[st]} offset:{o+m*1024}", tag="R") for m in range(16)]
OSTORES = []
EARLY = []

def gen_attention(l0items):
    tl = TL()
    phases = [-1, 0, 1, 2, 3, 15]
    VPOS = OPT.get("vmpos", (5, 13, 21, 29))
    start = {}; stepb = {}
    for p in phases:
        start[p] = len(tl.g)
        if p == 15:
            def qk(t, s):
                d = V(vS + 4 * (2 * (s & 1) + (t & 1)), 4)
                for n, ds in enumerate(snake(t)): tl.add(MF(d, A(KF(s & 1, ds), 4), V(Q(t, ds), 4), (V(vNM + 4 * t, 4) if not OPT.get("nm0") else "0") if n == 0 else d))
            def pv(dt, t, vs, pb, fwd):
                d = A(O(dt, t), 4)
                for kk in (range(4) if fwd else range(3, -1, -1)): tl.add(MF(d, A(VF(vs, kk), 4), V(P(pb, kk, t), 4), d))
            FR = [(i, t) for h_ in (0, 2) for i in range(4) for t in (h_, h_ + 1)]
            ost = lambda n: 128 + (FR[n][1] * 4 + FR[n][0]) * 4
            mk = lambda n: MF(A(aCHK, 4), A(aZ, 4), V(ost(n), 4), "0" if n == 0 else A(aCHK, 4))
            xb = {}; cdone = {}; chkpos = {}
            def chk(n): chkpos[n] = tl.add(mk(n))
            v3 = lambda dt: (0, 4, 1, 5)[dt & 3]
            for s in range(8):
                xb[s] = len(tl.g); qk(0, s); qk(1, s)
                for t in range(4): pv(s, t, s & 1, 0, 1 - (t & 1))
                tl.add(rs(s >> 1, s & 1, 0))
            for s in range(8):
                xb[8 + s] = len(tl.g); qk(2, s); qk(3, s)
                pv(s, 0, s & 1, 1, 1)
                if s & 1: cdone[s - 1] = len(tl.g) - 1
                pv(s, 1, s & 1, 1, 0)
                if s & 1: cdone[s] = len(tl.g) - 1
                if s == 0:
                    for t in (0, 1): tl.add(rs(t, 0, 1)); tl.add(rs(t, 1, 1))
                if s >= 4: chk(s - 4)
            for n in range(8, 16):
                i, t = FR[n]; xb[8 + n] = len(tl.g)
                if i == 0: tl.add(rs(t, 0, 1)); tl.add(rs(t, 1, 1))
                a_, b_ = (2 * i, 2 * i + 1) if t == 2 else (2 * i + 1, 2 * i)
                pv(a_, t, v3(a_), 1, 1); pv(b_, t, v3(b_), 1, 0); cdone[n] = len(tl.g) - 1
                chk(n - 4)
            xb[24] = len(tl.g)
            continue
        for s in range(8):
            stepb[p, s] = len(tl.g)
            if p != 15:
                for t in range(4):
                    for m in qk_chain(t, s & 1, V(vNM + 4 * t, 4) if not OPT.get("nm0") else "0"): tl.add(m)
            if p == -1:
                if OPT.get("bO"): tl.add(Ins(f"v_mfma_f32_32x32x16_bf16 {A(16*s,16)}, {A(aONES,4)}, v[252:255], 0"))
                else: tl.add(Ins(f"v_mfma_f32_32x32x16_bf16 {A(16*s,16)}, {A(aZ,4)}, {A(aZ,4)}, 0"))
                if s == 0: tl.add(Ins(f"v_mfma_f32_32x32x16_bf16 {A(aL,16)}, {A(aZ,4)}, {A(aZ,4)}, 0"))
            else:
                if OPT.get("rsadj"):
                    tl_ = s >> 1; order = [t for t in range(4) if t != tl_] + [tl_]
                    for n_, t in enumerate(order):
                        d = A(O(s, t), 4); fwd = (n_ + s) % 2 == 0
                        for kk in (range(4) if fwd else range(3, -1, -1)): tl.add(MF(d, A(VF(s & 1, kk), 4), V(P(p & 1, kk, t), 4), d))
                else:
                    for t in range(4):
                        for m in pv_chain(s, t, s & 1, p & 1): tl.add(m)
                if p != 15:
                    tl.add(rs(s >> 1, s & 1, p & 1))
    end = len(tl.g)
    nxt = {p: (start[phases[i + 1]] if i + 1 < len(phases) else end) for i, p in enumerate(phases)}
    for p in phases:
        if p == 15: continue
        pb = (p + 1) & 1
        for s in range(8):
            b0 = stepb[p, s]; nb = stepb[p, s + 1] if s < 7 else nxt[p]
            for t in range(4):
                sr = vS + 4 * t
                ex = [Ins(f"v_exp_f32 v{sr+r}, v{sr+r}") for r in range(4)]
                pd = P(pb, s >> 1, t) + 2 * (s & 1)
                cv = [Ins(f"v_cvt_pk_bf16_f32 v{pd+h}, v{sr+2*h}, v{sr+2*h+1}") for h in range(2)]
                if p >= 0:
                    o = b0 + 8 * t + (1 if t == 3 else 0)
                    pe = [o + 8 + 2 * r for r in range(4)]; pc = [o + 11, o + 15]
                else:
                    pe = [b0 + 4 * t + 8 + r for r in range(4)]; pc = [b0 + 4 * t + 10, b0 + 4 * t + 12]
                    if s == 7:
                        pe = [min(x, nb - 1) for x in pe]; pc = [min(x, nb - 1) for x in pc]
                        if t == 3: pe = [nb + 0, nb + 2, nb + 4, nb + 6]; pc = [nb + 3, nb + 7]
                seq = sorted([(pe[0],0,ex[0]),(pe[1],1,ex[1]),(pc[0],3 if p < 0 else 2,cv[0]),(pe[2],2.5,ex[2]),(pe[3],4,ex[3]),(pc[1],5,cv[1])], key=lambda z: (z[0], z[1]))
                for pos, _, ins in seq: tl.vec_at(pos, ins)
    for p in phases:
        if p == 15: continue
        if 0 <= p < 15:
            grps = [dma_K(0, p & 1, "DK"), dma_K(1, p & 1, "DK"), dma_V(0, (p + 1) & 1, "DV"), dma_V(1, (p + 1) & 1, "DV")]
            for s in range(8):
                tl.scal_at(stepb[p, s] + 15, W(lgkm=f"V{s}"), later=False)
                tl.scal_at(stepb[p, s] + 31, W(lgkm=f"K{(s+1)&7}"), later=False)
            if OPT.get("kvtouch", 1): grps.append(([], II(f"buffer_load_dword a252, v28, {SR(sK if p % 2 == 0 else sV)}, s{sKo if p % 2 == 0 else sVo} offen"), []))
            so, sr = (sTW, sWO) if p % 2 == 0 else (sT2W, sW2)
            grps.append((II(f"s_cmp_le_u32 s{sCnt}, {OPT.get('wtrip', 2)}\ns_cselect_b32 s{sT}, s{so}, 0x40000000"), II(f"buffer_load_dword a252, v{30 if p % 2 == 0 else 29}, {SR(sr)}, s{sT} offen"),
                         II(f"s_add_u32 s{so}, s{so}, {0x4000 if (p % 2 == 0 and OPT.get('wo2', 1)) else 0x2000}\ns_and_b32 s{so}, s{so}, {0x7fff if p % 2 == 0 else 0x3fff}")))
            if p % 2 == 0 and OPT.get("cpl", 1): grps.append(([], II("global_load_dword a252, v[24:25], off"), []))
            if p % 2 == 1:
                grps.append(([], II(f"buffer_store_dword v22, v21, {SR(sWS)}, 0 offen sc1"), []))
                tl.vec_at(stepb[p, 7] + 3, Ins("v_add_u32 v22, 1, v22"))
            clr = II(f"buffer_store_dwordx4 {A(aCHK,4)}, v{vL16}, {SR(sXP)}, s{sT2} offen offset:{1024*(p&1)} sc1")
            if OPT.get("clrpos") is not None: tl.vec_at(stepb[p, OPT["clrpos"][0]] + OPT["clrpos"][1], clr[0])
            elif not OPT.get("noclr"): grps.append(([], clr, []))
            if p % 2 == 0:
                q = stepb[p, 0] + 6
                for x in II(f"s_cmp_lt_u32 s{sCnt}, 5\ns_subb_u32 s3, s{sCnt}, 0\ns_and_b32 s{sT2}, s3, 3\ns_lshl_b32 s{sT2}, s{sT2}, 3\ns_or_b32 s{sT2}, s{sT2}, s3\ns_lshl_b32 s{sT2}, s{sT2}, 13\ns_xor_b32 s{sT2}, s{sT2}, s{sXR}\ns_cmp_gt_u32 s{sCnt}, 1\ns_cselect_b32 s{sT2}, s{sT2}, 0x40000000"):
                    q2 = tl.scal_at(q, x); assert q2 == q; q += 1
            if p % 2 == 0 and OPT.get("otouch"):
                grps.append((II(f"s_sub_u32 s3, s{sCnt}, {OPT['otouch']}\ns_mul_i32 s{sT}, s3, {BSTRIDE}\ns_add_u32 s{sT}, s{sT}, s{sBo}\ns_cmp_lt_u32 s3, 4\ns_cselect_b32 s{sT}, s{sT}, 0x40000000"), II(f"buffer_load_dword a252, v26, {SR(sB)}, s{sT} offen"), []))
            if p % 2 == 1 and OPT.get("htouch", 1):
                grps.append((II(f"s_cmp_eq_u32 s{sCnt}, {OPT.get('htrip', 1)}\ns_cselect_b32 s{sT}, s{sBg}, 0x40000000"), II(f"buffer_load_dword a252, v27, {SR(sB)}, s{sT} offen"), []))
            k = 0
            for grp in grps:
                for j, x in enumerate(grp[1]):
                    gi = stepb[p, k // len(VPOS)] + VPOS[k % len(VPOS)]; k += 1
                    if j == 0:
                        q = gi
                        for y in reversed(grp[0]):
                            q2 = tl.scal_at(q - 1, y, later=False); assert len(grp[0]) == 1 or q2 == q - 1; q = q2
                    tl.vec_at(gi, x); x.grp = grp; x.role = "vec"
                for x in grp[2]: gi = tl.scal_at(gi + 1, x)
            assert gi < stepb[p, 7]
            e_ = stepb[p, 7]
            if p % 2 == 1:
                tl.scal_at(e_ + 29, Ins(f"s_sub_u32 s{sCnt}, s{sCnt}, 1")); tl.scal_at(e_ + 30, Ins(f"s_cmp_lg_u32 s{sCnt}, 0")); tl.scal_at(e_ + 32, Ins("s_cbranch_scc1 L_att_loop"))
        for s in range(8):
            b0 = stepb[p, s]; nb = stepb[p, s + 1] if s < 7 else nxt[p]
            ns, npz = (s + 1) & 7, (p + 1 if s == 7 else p)
            if s == 7:
                i = tl.scal_at(b0 + (5 if p >= 0 else 4), W(lgkm=["V7", "K7"], vm=["DK", "DV"]))
                if not (OPT.get("nobar") and p >= 0): tl.scal_at(i + 1, Ins("s_barrier"))
            if p >= 0:
                kr = kreads(ns, (npz + 1) & 1, ns & 1, f"K{ns}"); vr = vreads(ns, npz & 1, ns & 1, f"V{ns}")
                free = [o for o in range(7 if s == 7 else 1, 32, 2) if not any(x.is_vmem for x in tl.g[b0 + o].vec)]
                assert len(free) >= 12
                for x, o in zip(kr + vr, free): tl.vec_at(b0 + o, x)
            else:
                tl.vec_in(b0 + 6, b0 + 10, kreads(ns, (npz + 1) & 1, ns & 1, f"K{ns}"))
                if s == 7: tl.vec_in(b0 + 10, nb - 1, vreads(0, 0, 0, "V0"))
                tl.scal_at(nb - 1, W(lgkm=f"K{ns}"), later=False)
    rot = OPT.get("rot", 1)
    sc = f"""s_add_u32 s{sXP}, s{sWS}, {WS_X}
s_addc_u32 s{sXP+1}, s{sWS+1}, 0
s_mov_b32 s{sXP+2}, 0x1000000
s_lshl_b32 s{sT}, s{sTr}, 2
s_add_u32 s{sT}, s{sT}, s{sTc}
s_lshl_b32 s{sT}, s{sT}, 2
s_add_u32 s{sT}, s{sT}, s{sSp}
s_lshl_b32 s{sT}, s{sT}, 16
s_lshl_b32 s{sXR}, s{sWave}, 11
s_add_u32 s{sXR}, s{sXR}, s{sT}
"""
    sc += f"""s_lshl_b32 s{sT}, s{sTc}, 8
s_lshl_b32 s{sWOo}, s{sWave}, 14
s_add_u32 s{sWOo}, s{sWOo}, s{sT}
s_mul_i32 s{sW2o}, s{sSp}, {448*1024}
s_add_u32 s{sW2o}, s{sW2o}, s{sWOo}
s_lshl_b32 s{sT}, s{sSp}, 20
s_add_u32 s{sWOo}, s{sWOo}, s{sT}
s_lshr_b32 s{sQ0}, s{sTr}, 1
s_lshl_b32 s{sQ0}, s{sQ0}, 2
s_and_b32 s{sT}, s{sTr}, 1
s_add_u32 s{sQ0}, s{sQ0}, s{sT}
s_lshl_b32 s{sQ0}, s{sQ0}, 2
s_xor_b32 s{sT}, s{sWave}, s{sSp}
s_and_b32 s{sT2}, s{sT}, 2
s_add_u32 s{sT}, s{sT}, s{sT2}
s_lshl_b32 s{sT}, s{sT}, 1
s_add_u32 s{sT}, s{sT}, s{sQ0}
s_mul_i32 s{sBg}, s{sT}, {BSTRIDE}
s_mul_i32 s{sT}, s{sSp}, {14*1024}
s_add_u32 s{sT}, s{sT}, {128*1024}
s_add_u32 s{sBg}, s{sBg}, s{sT}
s_lshl_b32 s{sT}, s{sHead}, 12
s_add_u32 s{sBo}, s{sBo}, s{sT}
s_mul_i32 s{sGk[0]}, s{sTc}, {4096*rot}
s_mul_i32 s{sHp[0]}, s{sTc}, {8192*rot}
s_lshl_b32 s{sT2}, s{sHp[0]}, 5
s_xor_b32 s{sWOo}, s{sWOo}, s{sT2}
"""
    for i in range(1, 7): sc += f"s_add_u32 s{sGk[i]}, s{sGk[i-1]}, 2048\ns_cmp_eq_u32 s{sGk[i]}, {7*2048}\ns_cselect_b32 s{sGk[i]}, 0, s{sGk[i]}\n"
    for i in range(1, 4): sc += f"s_xor_b32 s{sHp[i]}, s{sHp[0]}, {8192*i}\n"
    sc += f"""s_lshr_b32 s{sT}, s{sWave}, 1
s_mul_i32 s{sT}, s{sT}, {BSTRIDE}
s_and_b32 s3, s{sWave}, 1
s_lshl_b32 s3, s3, 12
s_add_u32 s3, s3, s{sT}
s_lshl_b32 s{sT}, s{sSp}, 15
s_add_u32 s3, s3, s{sT}
"""
    for lam in (3, 2, 1, 0):
        sc += f"s_xor_b32 s{sT}, s{sSp}, {lam}\ns_and_b32 s{sT2}, s{sT}, 2\ns_add_u32 s{sT}, s{sT}, s{sT2}\ns_lshl_b32 s{sT}, s{sT}, 1\ns_add_u32 s{sT}, s{sT}, s{sQ0}\ns_mul_i32 s{sBs[lam]}, s{sT}, {BSTRIDE}\ns_add_u32 s{sBs[lam]}, s{sBs[lam]}, s3\n"
    sc += f"""s_lshl_b32 s{sOo}, s{sT}, 14
s_lshl_b32 s{sT}, s{sTc}, 8
s_add_u32 s{sOo}, s{sOo}, s{sT}
s_lshl_b32 s{sT}, s{sWave}, 6
s_add_u32 s{sOo}, s{sOo}, s{sT}
s_add_u32 s{sXW}, s{sOo}, 16384
"""
    if OPT.get("noBg"): sc += f"s_mov_b32 s{sBg}, 0x40000000\n"
    if OPT.get("noOS"): sc += f"s_mov_b32 s{sBo}, 0x40000000\n"
    left = tl.sched(start[-1], nxt[-1] - 1, l0items + II(sc), look=200)
    print("first phase: left over", len(left), file=sys.stderr)
    tl.g[nxt[-1] - 1].vec += left
    T = vT
    for x in range(16):
        s_ = x & 7; b0, nb = xb[x], xb[x + 1]
        for h_ in range(2):
            t = (x >> 3) * 2 + h_; sr = vS + 4 * (2 * (s_ & 1) + h_); pd = P(1, s_ >> 1, t) + 2 * (s_ & 1); o = (nb if x >= 8 else b0 + 16) if h_ else b0 + 8
            for r in range(4): tl.vec_at(o + 2 * r, Ins(f"v_exp_f32 v{sr+r}, v{sr+r}"))
            for h in range(2): tl.vec_at(o + 3 + 4 * h, Ins(f"v_cvt_pk_bf16_f32 v{pd+h}, v{sr+2*h}, v{sr+2*h+1}"))
    for x in range(16):
        tl.scal_at(xb[x] + 7, W(lgkm=f"V{x}"))
        if x < 15: tl.scal_at(xb[x + 1] - 1, W(lgkm=f"K{x+1}"))
    for x in range(16, 24, 2): tl.scal_at(xb[x] - 1, W(lgkm=f"V{x}"))
    tl.scal_at(xb[4] + 8, W(vm="E1")); tl.scal_at(xb[4] + 9, Ins("s_barrier"))
    tl.scal_at(xb[7] + 8, W(vm=["DV", "E3"], lgkm="R")); tl.scal_at(xb[7] + 9, Ins("s_barrier"))
    tl.scal_at(xb[15] + 8, W(lgkm="R")); tl.scal_at(xb[15] + 9, Ins("s_barrier"))
    ld1 = f"buffer_load_dword v{vPoll}, v23, {SR(sWS)}, 0 offen sc1"
    chk1 = poll_check("h", vPoll, ld1, f"v_cmp_gt_u32 vcc, v31, v{vPoll}\ns_nop 0\ns_cmp_eq_u64 vcc, 0")
    def put(grps, slots):
        slots = list(slots); prev = slots[0] - 5
        for g in grps:
            for x in g[1]:
                gi = slots.pop(0)
                if x is g[1][0] and g[0]:
                    free = [q for q in range(max(prev + 1, gi - 5), gi) if not tl.g[q].scal][-len(g[0]):]
                    free = sorted(free + [gi - 1] * (len(g[0]) - len(free)))
                    for y, q in zip(g[0], free): tl.g[q].scal.append(y)
                tl.vec_at(gi, x); x.grp = g; x.role = "vec"; prev = gi
            for y in g[2]: tl.scal_at(gi + 1, y)
    assert [UNITS[u][0] for u in range(7)] == ["Ag", "Bg", "Ag", "Bg", "As", "As", "Ag"]
    sl = [xb[x] + o for x in range(8) for o in (1, 5, 13, 21)]
    put([dma_V(0, 1, "DV"), udma(("As", 0)), udma(("As", 1)), dma_V(1, 1, "DV"), udma(("As", 2)), udma(("As", 3)), ([], [Ins(ld1, tag="C1")], [])], sl[1:])
    gp = tl.g[xb[9] + 4]; gp.vec += [W(vm="C1")] + chk1; gp.load += 1
    put([udma(0), udma(6), udma(1)], [xb[7] + 13, xb[7] + 17, xb[7] + 21, xb[8] + 1, xb[8] + 5, xb[8] + 9, xb[8] + 13, xb[9] + 1, xb[9] + 5, xb[9] + 9, xb[9] + 13, xb[10] + 1])
    EARLY[:] = [0, 1, 6] + [2, 3, 4, 5][:OPT.get("e3", 4)]
    put([udma(u) for u in EARLY[3:]], [xb[x] + 6 for x in range(16, 24)] if len(EARLY) <= 5 else [xb[x] + o for x in range(16, 24) for o in ((1, 5) if x == 16 else (0, 6))])
    su = II(f"""v_bfe_u32 v{T}, v0, 4, 2
v_mul_u32_u24 v{T}, 768, v{T}
v_add_u32 v{vDA}, v{vDV}, v{T}
v_add_u32 v{vDA+1}, v{vDV+1}, v{T}
v_add_u32 v{vDA+1}, 3072, v{vDA+1}
v_add_u32 v{vDA+2}, 6144, v{vDA}
v_add_u32 v{vDA+3}, 6144, v{vDA+1}
v_add_u32 v{vB1}, {BSTRIDE-2048}, v{vL16}""")
    su2 = II(f"""s_lshl_b32 s{sT}, s{sWave}, 6
s_or_b32 s{sT}, s{sT}, {L_V}
v_xor_b32 v25, s{sT}, v{vVA}
v_xor_b32 v26, s{sT}, v{vVA+1}
v_add_u32 v27, 0x10000, v25
v_add_u32 v28, 0x10000, v26""")
    for n in range(16):
        i, t = FR[n]
        OSTORES.append((II(f"s_add_u32 s{sCnt}, s{sBo}, {t*BSTRIDE}"),
                        [Ins(f"buffer_store_dwordx4 {V(ost(n),4)}, v{vL16}, {SR(sB)}, s{sCnt} offen offset:{1024*i} sc1", tag="OS")], []))
    ospos = {}
    for n in range(13):
        ospos[n] = xb[11 + n] + (OPT.get("os2", 9) if n < 5 else (9, 3, 2)[min(n - 5, 2)]); put([OSTORES.pop(0)], [ospos[n]])
    for x in range(15):
        nx = x + 1; b0, nb = xb[x], xb[nx]
        if x < 8:
            kr = kreads(nx & 7, 1, nx & 1, f"K{nx}"); vr = vreads(nx & 7, nx >> 3, nx & 1, f"V{nx}")
            if x == 0: tl.vec_in(b0 + 3, nb - 5, kr); tl.vec_in(b0 + 9, nb + 2, vr)
            elif x < 7: tl.vec_in(b0 + 3, nb - 2, kr + vr)
            else: tl.vec_in(b0, b0 + 7, kr); tl.vec_in(b0 + 11, nb + 3, vr)
        else:
            tl.vec_in(b0 + 3, b0 + 11, kreads(nx & 7, 1, nx & 1, f"K{nx}"))
            tl.vec_in(b0 + 8, nb + 2, vreads(nx & 7, 1, nx & 1, f"V{nx}"))
    for i in range(4):
        r = vreads(2 * i, 1, v3(2 * i), f"V{16+2*i}") + vreads(2 * i + 1, 1, v3(2 * i + 1), f"V{16+2*i}")
        tl.vec_in(xb[15] + 3 if i == 0 else xb[14 + 2 * i], xb[16 + 2 * i] - 3, r)
    left = tl.stream(xb[0], xb[1] + 4, su, cap=3); assert not left
    left = tl.stream(xb[2], xb[4], su2); assert not left
    tl.vec_in(xb[4] + 10, xb[7] + 1, ureads(("As", 0), 25) + ureads(("As", 1), 25))
    vRL = vNM
    def lr(t): return II(f"v_accvgpr_read_b32 v{vRL+4+t}, a{aL+4*t}\nv_accvgpr_read_b32 v{vRL+t}, a{aL+4*t+1}\nv_add_f32 v{vRL+4+t}, v{vRL+4+t}, v{vRL+t}\nv_rcp_f32 v{vRL+t}, v{vRL+4+t}" + (f"\nv_mul_f32 v{80+t}, {f32(-1.5 * 2.0 ** OPT['bO'])}, v{vRL+t}" if OPT.get("bO") else ""))
    left = tl.stream(xb[9] + 4, xb[10] - 1, lr(0) + lr(1), cap=4); assert not left
    where = lambda y: max(q for q, gp in enumerate(tl.g) if any(x is y for x in gp.vec))
    lo = xb[10]; tail_ = []
    for n in range(16):
        i, t = FR[n]; o = ost(n); tb = 64 + 8 * (n & 1)
        ar = [(k, O(2 * i + (k >> 2), t) + (k & 3)) for k in range(8)]
        if t == 3: ar = ar[4:] + ar[:4]
        items = (lr(t) if n in (8, 9) else []) + II("\n".join(f"v_accvgpr_read_b32 v{tb+k}, a{a_}" for k, a_ in ar))
        items += II("\n".join((f"v_fma_f32 v{tb+k}, v{tb+k}, v{vRL+t}, v{80+t}" if OPT.get("bO") else f"v_mul_f32 v{tb+k}, v{tb+k}, v{vRL+t}") for k, a_ in ar))
        items += II("\n".join(f"v_cvt_pk_bf16_f32 v{o+k}, v{tb+2*k}, v{tb+2*k+1}" for k in range(4)))
        lo = max(lo, cdone[n] + 2)
        if tail_ or lo >= end: tail_ += items; continue
        hi = min(ospos.get(n, end), chkpos.get(n, end + 1) - 1) - 1
        hi2 = min(hi, lo + (OPT.get("epspan", 17) if n < 6 else OPT.get("epspan3", 7)))
        for cap in (2, 3, 4, 5, 6, 7, 8):
            room = sum(max(0, cap - tl.g[q].load) for q in range(lo, hi2 + 1) if not any(x.is_vmem for x in tl.g[q].vec))
            if room >= len(items) + 2: break
        blocked = [q for q in range(lo, hi + 1) if any(x.is_vmem for x in tl.g[q].vec)]
        for q in blocked: tl.g[q].load += 10
        left = tl.stream(lo, hi, items, cap=cap)
        for q in blocked: tl.g[q].load -= 10
        if left: assert n >= 13, n; tail_ += left
        else: lo = where(items[-1])
        if n in (1, 3):
            q = where(items[7]) + 1; assert q + 12 < xb[15] + 2
            tl.vec_in(q, min(q + 24, xb[15] + 2), ureads(("As", 2 + n // 2), 25))
    print("ending: VALU left over", len(tail_), file=sys.stderr)
    blk = {p: tl.emit(start[p], nxt[p], f"att{p}") for p in phases}
    tx = lambda b: [(i.text, str(i.waitfor), i.tag) for i in b.ins]
    assert tx(blk[0]) == tx(blk[2]) and tx(blk[1]) == tx(blk[3])
    last = blk[15]
    for nm, x in (("x2", 8), ("x3", 16)):
        k_ = next(q for q, y in enumerate(last.ins) if y is tl.g[xb[x]].m); last.ins[k_:k_] = stamp_ins(STAMPS.get(nm))
    if OPT.get("osl"):
        assert len(tail_) == 20
        o13, o14 = OSTORES.pop(0), OSTORES.pop(0)
        last.ins += o13[0] + o13[1] + tail_[:8] + [mk(12)] + o14[0] + tail_[8:12] + o14[1] + [mk(13)] + tail_[12:16] + [mk(14)] + tail_[16:]
    else: last.ins += tail_[:-12] + [mk(12)] + tail_[-12:-8] + [mk(13)] + tail_[-8:-4] + [mk(14)] + tail_[-4:]
    last.tailchk = mk(15)
    return blk[-1], blk[0], blk[1], last

PARTS = [("G", 0), ("Q", 0), ("G", 1), ("Q", 1), ("G", 2), ("G", 3), ("Q", 2), ("Q", 3)]
SLOT = lambda i: (L_V + 32768, L_SP, L_V)[i % 3]
vNMU, vAQ, vAE, vIR = 32, 36, 40, 44
def XB(c, t, ks): return (c & 1) * 64 + (t * 4 + ks) * 4
def WF(fb, ks): return 212 + fb * 16 + ks * 4
def pacc(kind, u, t):
    if kind == "G": return V(128 + (u & 1) * 64 + ((u >> 1) * 4 + t) * 4, 4)
    ds, hf = u >> 1, u & 1
    return V(Q(t, ds), 4) if hf == 0 else A(128 + (t * 4 + ds) * 4, 4)
def wdma(i):
    kind, c = PARTS[i]; base = SLOT(i); g = []
    if kind == "Q":
        for half in range(2):
            g.append((II(f"s_add_u32 m0, s{sW8k}, {base + half*4096}\ns_add_u32 s{sT}, s{sWQo}, {(c*128+16*half)*8192}"),
                      [Ins(f"buffer_load_dwordx4 v{vDQ+p}, {SR(sWQ)}, s{sT} offen offset:{p*1024} lds", tag=f"DW{i}") for p in range(4)], []))
    else:
        for k, sr in enumerate((sW1, sW3)):
            g.append((II(f"s_add_u32 m0, s{sW4k}, {base + k*16384}\ns_add_u32 s{sT}, s{sW13o}, {c*128*3584}"),
                      [Ins(f"buffer_load_dwordx4 v{vD13+p}, {SR(sr)}, s{sT} offen offset:{p*1024} lds", tag=f"DW{i}") for p in range(4)], []))
    return g
def xdma(c):
    return [(II(f"s_xor_b32 m0, s100, {t*4096}\ns_xor_b32 s{sT}, s101, {t*16384 + c*256}"),
             [Ins(f"buffer_load_dwordx4 v{vDX+p}, {SR(sX)}, s{sT} offen offset:{p*1024} lds", tag=f"DX{c}") for p in range(4)], []) for t in range(4)]
def xreads(c):
    return [Ins(f"ds_read_b128 {A(XB(c,t,ks),4)}, v{vXA+ks} offset:{t*4096}", tag=f"X{c}") for t in range(4) for ks in range(4)]

def gen_proj(stats, var):
    S_ = var == "S"
    O_ = lambda k, d: OPT.get(k + var, OPT.get(k, d))
    tiles = lambda i: [0, 1, 4, 5, 2, 3] if (S_ and PARTS[i][0] == "G") else list(range(8))
    base = {"G": L_V, "Q": L_SP}
    def wreads(i, u, tag):
        kind, c = PARTS[i]; off0 = SLOT(i) - base[kind]; assert 0 <= off0 <= 32768
        r = []
        for ks in range(4):
            for kh in range(2):
                if kind == "Q": ad, off = vWQA + (u >> 1), ks * 8192 + kh * 1024 + 8 * (u & 1)
                else: ad, off = vW13A + (u >> 1), ks * 4096 + kh * 512 + 16384 * (u & 1)
                r.append(Ins(f"ds_read_b64_tr_b16 {A(WF(u&1,ks)+2*kh,2)}, v{ad} offset:{off0+off}", tag=tag))
        return r
    first_reads = wreads(0, 0, "W0")
    tl = TL(); tb = {}
    for i, (kind, c) in enumerate(PARTS):
        for pos_, u in enumerate(tiles(i)):
            tb[i, pos_] = len(tl.g)
            for t in range(4):
                d = pacc(kind, u, t)
                for n, ks in enumerate(snake(t)):
                    tl.add(MF(d, A(WF(u & 1, ks), 4), A(XB(c, t, ks), 4), OPT.get("b" + kind, "0") if (c == 0 and n == 0) else d))
            if u < 2 or (S_ and kind == "G" and u >= 4):
                d = A(aL + (8 if kind == "Q" else 0) + 4 * u, 4) if u < 2 else V(176 + 4 * (u - 4), 4)
                for kp in range(2): tl.add(Ins(f"v_smfmac_f32_16x16x64_bf16 {d}, {A(aONES,4)}, {A(WF(u&1,2*kp),8)}, v{vIDX}"))
    end = len(tl.g)
    tb[8, 0] = end
    LAST = lambda i: tb[i, len(tiles(i)) - 1]
    extra_vm = {1: ["ST"], 7: ["DK0"]}
    for i, (kind, c) in enumerate(PARTS):
        for u in range(len(tiles(i))):
            b0 = tb[i, u]; nb = tb.get((i, u + 1), tb[i + 1, 0])
            if b0 != LAST(i):
                r = wreads(i, tiles(i)[u + 1], f"W{u+1}")
                for k, x in enumerate(r): tl.vec_at(b0 + O_('wpos', (0, 1, 2, 4, 5, 6, 8, 9))[k], x)
                tl.scal_at(nb - 1, W(lgkm=f"W{u+1}"), later=False)
            else:
                vm = ([f"DW{i+1}"] if i < 7 else []) + extra_vm.get(i, [])
                tl.scal_at(b0, W(vm=vm, lgkm={4: ["X3"], 5: ["CS"], 7: ["CS"]}.get(i)))
                tl.scal_at(b0 + 1, Ins("s_barrier"))
                if i < 7:
                    nk = PARTS[i + 1][0]
                    if not 0 <= SLOT(i + 1) - base[nk] <= 32768:
                        dlt = SLOT(i + 1) - base[nk]; base[nk] += dlt
                        ad = vWQA if nk == "Q" else vW13A
                        for k in range(4): tl.vec_at(b0 + k // 2, Ins(f"v_add_u32 v{ad+k}, {dlt & 0xffffffff}, v{ad+k}"))
                    tl.vec_in(b0 + 2, b0 + 9, wreads(i + 1, 0, "W0"))
                    tl.scal_at(nb - 1, W(lgkm="W0"), later=False)
                else:
                    tl.vec_in(b0 + 2, b0 + 9, kreads(0, 0, 0, "K0"))
    P_ = lambda i, f: tb[i, 0] + int(f * (tb[i + 1, 0] - tb[i, 0]))
    def xout(c, lo, hi):
        j = tl.scal_at(lo, W(vm=f"DX{c}"))
        cc = tl.vec_in(j, hi, xreads(c))
        return cc[-1]
    def tch(dst, ad, sr, so): return Ins(f"buffer_load_dword a252, v{ad}, {SR(sr)}, {so} offen")
    TQ = lambda c: [(II(f"s_mov_b32 s{sT}, {c*128*8192}"), [tch(55, 22, sWQ, f"s{sT}")], [])]
    TG = lambda c: [(II(f"s_mov_b32 s{sT}, {c*128*3584}"), [tch(55, 23, sW1, f"s{sT}"), tch(55, 23, sW3, f"s{sT}")], [])]
    TK = [([], [tch(55, 53, sK, 0)], [])]; TV = [([], [tch(55, 53, sV, 0)], [])]
    kv = OPT.get("kvp", (9, 9, 9))
    at = lambda p: (TK if kv[0] == p else []) + (TV if kv[1] == p else []) + (TK2 if kv[2] == p else [])
    TK2 = [(II(f"s_mov_b32 s{sT}, 65536"), [tch(55, 53, sK, f"s{sT}")], [])]
    x1, x2, x3 = xdma(1), xdma(2), xdma(3)
    prev = [0]
    def sp(lo, hi, grps):
        lo = max(lo, prev[0] + 4); prev[0] = tl.spread(lo, max(hi, lo + 1), grps); return prev[0]
    SRL = [(II(f"s_lshl_b32 s{sT}, s{sCnt}, 11"), [Ins(f"buffer_load_dwordx4 {V(72+4*r,4)}, v58, {SR(sX)}, s{sT} offen offset:{512*r}", tag="SR") for r in range(2)], [])]
    CP = [([], II("global_load_dword a252, v[60:61], off"), [])]
    item = lambda n: {"W": lambda: wdma(int(n[1])), "Q": lambda: TQ(int(n[1])), "G": lambda: TG(int(n[1])), "S": lambda: SRL, "C": lambda: CP,
                      "A": lambda: [([], [Ins(f"buffer_atomic_add v49, v48, {SR(sDBG)}, 0 offen", tag="AT")], [])],
                      "r": lambda: (x1, x2, x3)[int(n[1]) - 1][:1], "x": lambda: (x1, x2, x3)[int(n[1]) - 1][1:]}[n[0]]()
    PP = lambda f: P_(int(f), f - int(f))
    for ent in O_("sch", None):
        if ent[0] == "o":
            l = xout(ent[1], PP(ent[2]), min(PP(ent[3]), LAST((0, 1, 3, 4)[ent[1]]) - 6))
            assert PP(ent[2]) >= tb[(0, 0, 2, 4)[ent[1]], 0]
            if ent[1] < 3: prev[0] = max(prev[0], tl.scal_at(l + 5, W(lgkm=f"X{ent[1]}")))
        else:
            g_ = [g for n in ent[1].split() for g in item(n)]
            lo = max(PP(ent[0]), prev[0] + 4)
            sp(lo, lo + int((ent[2] if len(ent) > 2 else O_('dsp', 4.4)) * (sum(len(g[1]) for g in g_) - 1)), g_)
    w7 = O_("w7", 0)
    if not w7: sp(P_(5, .03), P_(5, .3), wdma(7))
    ld0 = f"buffer_load_dword v50, v51, {SR(sDBG)}, 0 offen sc1"
    ck0 = O_("ck0", .33)
    g = tl.g[P_(5, ck0)]
    g.vec += [W(vm="C0")] + poll_check("st" + var, 50, ld0, f"v_cmp_gt_u32 vcc, 32, v50\ns_nop 0\ns_cmp_eq_u64 vcc, 0"); g.load += 2
    sp(P_(5, ck0) + 3, P_(5, ck0 + .1), [([], [Ins(f"buffer_load_dwordx2 {V(56+2*t,2)}, v52, {SR(sWS)}, 0 offen offset:{128*t} sc1", tag="SL") for t in range(4)], [])])
    if w7:
        l = sp(P_(5, w7), P_(5, w7) + 30, wdma(7)); assert l < P_(5, min(O_("slpos", .8), 1))
    sp(0, P_(5, O_("k0e", .97)), [dma_K(0, 0, "DK0"), dma_K(1, 0, "DK0")])
    sp(P_(6, O_("v0a", .3)), P_(6, O_("v0b", .9)), [dma_V(0, 0, "DV"), dma_V(1, 0, "DV")])
    sp(P_(7, O_("v0a", .3)), P_(7, O_("v0b", .9)), [dma_K(0, 1, "DK"), dma_K(1, 1, "DK")])
    def span(tag):
        ps = [q for q, gp in enumerate(tl.g) for x in gp.vec if x.tag == tag]; return min(ps), max(ps)
    for i in range(1, 8):
        assert span(f"DW{i}")[1] < LAST(i - 1) and (i < 3 or span(f"DW{i}")[0] > LAST(i - 3) + 1), i
    for c in (1, 2, 3): assert span(f"DX{c}")[1] < span(f"X{c}")[0] and (c == 1 or span(f"DX{c}")[0] > span(f"X{c-1}")[1] + 5), c
    if not any("A" in e_[1].split() for e_ in O_("sch", None) if e_[0] != "o"): tl.vec_in(LAST(1) + 10, LAST(1) + 14, item("A")[0][1])
    assert span("AT")[0] > LAST(1) + 1
    left = tl.sched(P_(0, O_("stpos", .3)), P_(1, O_('sthi', 0)) - 1, stats); assert not left and P_(1, O_('sthi', 0)) <= tb[1, 4], len(left)
    tl.vec_in(PP(4 + O_("c0pos", .9)), PP(4 + O_("c0pos", .9)) + 6, [Ins(ld0, tag="C0")])
    for i, off in ((5, 0), (7, 1)):
        a0 = aL + 8 * off; it_ = []
        for u in range(2):
            it_ += II(f"v_accvgpr_read_b32 v22, a{a0+4*u}\nv_accvgpr_read_b32 v23, a{a0+4*u+1}\nv_add_f32 v22, v22, v23")
            it_ += [Ins(f"ds_write_b32 v21, v22 offset:{64*u}", tag="CS")]
        left = tl.stream(tb[i, 3], tb[i, 4] - 1, it_); assert not left
        if i == 5:
            it_ = []
            if S_:
                for u in range(2): it_ += II(f"v_add_f32 v{176+4*u}, v{176+4*u}, v{177+4*u}") + [Ins(f"ds_write_b32 v21, v{176+4*u} offset:{512+64*u}", tag="CS")]
            left = tl.stream(tb[i, 4] + 6, tb[i, 5] - 1, it_ + II(f"v_add_u32 v21, {L_V - L_K}, v21")); assert not left
    it = [W(vm="SL")]
    for t in range(4): it += II(f"v_rsq_f32 v{vAQ+t}, v{57+2*t}")
    for t in range(4): it += II(f"v_sub_f32 v{vNMU+t}, 0, v{56+2*t}\nv_mov_b32 v{vIR+t}, v{57+2*t}")
    for t in range(4): it += II(f"v_mul_f32 v{vAE+t}, {f32(-LOG2E)}, v{vAQ+t}\nv_mul_f32 v{vAQ+t}, {f32(LOG2E * 128 ** -0.5)}, v{vAQ+t}")
    h0 = tb[6, 0] + 2
    if O_("slpos", .8) < 1:
        left = tl.stream(P_(5, O_("slpos", .8)), tb[6, 0] - 1, it); assert not left, len(left)
        it = []
    else: it[0].guards = {f"v{56+k}" for k in range(8)}; h0 = P_(6, O_("slpos", .8) - 1) + 2
    NV = 3 if S_ else 4
    for v in range(NV): it += II(f"v_xor_b32 v{28+v}, {512 if (S_ and v == 2) else 128*v}, v54")
    def csread(v): return [Ins(f"ds_read_b128 {V(48+8*(v&1)+4*m,4)}, v{28+v} offset:{64*m}", tag=f"CG{v}") for m in range(2)]
    it += csread(0)
    for v in range(NV):
        if v < NV - 1: it += csread(v + 1)
        it += [W(lgkm=f"CG{v}")]
        for m in range(2):
            for t in range(4):
                d = 128 + m * 64 + (v * 4 + t) * 4
                for r in range(4): it += II(f"v_fmac_f32 v{d+r}, v{48+8*(v&1)+4*m+r}, v{vNMU+t}")
    mv30 = Ins(f"v_add_u32 v30, {L_V - L_K}, v28"); it.append(mv30)
    it += II(f"s_add_u32 s{sCnt}, s{sFs}, s{sBo}")
    if not S_: it += II(f"s_and_b32 s{sT2}, s{sWave}, 2\ns_lshl_b32 s{sT2}, s{sT2}, 9\nv_add_u32 v28, s{sT2}, v{vL16}\nv_xor_b32 v29, 0x400, v28")
    else:
        it += II(f"s_and_b32 s{sT2}, s{sHead}, 1\ns_lshl_b32 s{sT2}, s{sT2}, 11\nv_add_u32 v28, s{sT2}, v{vL16}\ns_xor_b32 s{sT2}, s{sHead}, s{sWave}\ns_and_b32 s{sT2}, s{sT2}, 1\ns_lshl_b32 s{sT2}, s{sT2}, 3\ns_add_u32 s{sT2}, s{sT2}, 1024\nv_add_u32 v29, s{sT2}, v{vL16}")
    rest = []
    for n in range(8):
        t, i = n >> 1, n & 1
        N = 4 if (S_ and i == 1) else 8
        gr = [128 + ((2 * i + hf) * 4 + t) * 4 + r for hf in range(2) for r in range(4)][:N]
        ur = [x + 64 for x in gr]; q = []
        if n < O_("nh", 0):
            for k in range(N): q += II(f"v_mul_f32 v{ur[k]}, v{ur[k]}, v{gr[k]}\nv_mul_f32 v{gr[k]}, v{vAE+t}, v{gr[k]}")
            for k in range(N): q += II(f"v_exp_f32 v{gr[k]}, v{gr[k]}") + (II(f"v_fma_f32 v{gr[k-2]}, v{gr[k-2]}, v{vIR+t}, v{vIR+t}") if k >= 2 else [])
            for k in range(N): q += II(f"v_rcp_f32 v{gr[k]}, v{gr[k]}") + II(f"v_fma_f32 v{gr[k+N-2]}, v{gr[k+N-2]}, v{vIR+t}, v{vIR+t}" if k < 2 else f"v_mul_f32 v{gr[k-2]}, v{gr[k-2]}, v{ur[k-2]}")
            for k in (N - 2, N - 1): q += II(f"v_mul_f32 v{gr[k]}, v{gr[k]}, v{ur[k]}")
        else:
            o = t & 1; ae, ir = V(vAE + t - o, 2), V(vIR + t - o, 2)
            for k in range(0, N, 2): q += II(f"v_pk_mul_f32 {V(ur[k],2)}, {V(ur[k],2)}, {V(gr[k],2)}\nv_pk_mul_f32 {V(gr[k],2)}, {V(gr[k],2)}, {ae} op_sel:[0,{o}] op_sel_hi:[1,{o}]")
            for k in range(N): q += II(f"v_exp_f32 v{gr[k]}, v{gr[k]}")
            for k in range(0, N, 2): q += II(f"v_pk_fma_f32 {V(gr[k],2)}, {V(gr[k],2)}, {ir}, {ir} op_sel:[0,{o},{o}] op_sel_hi:[1,{o},{o}]")
            for k in range(N): q += II(f"v_rcp_f32 v{gr[k]}, v{gr[k]}")
            for k in range(0, N, 2): q += II(f"v_pk_mul_f32 {V(gr[k],2)}, {V(gr[k],2)}, {V(ur[k],2)}")
        for k in range(N // 2): q += II(f"v_cvt_pk_bf16_f32 v{gr[0]+k}, v{gr[2*k]}, v{gr[2*k+1]}")
        q += II(f"buffer_store_dwordx{N//2} {V(gr[0],N//2)}, v{28+i}, {SR(sB)}, s{sCnt} offen sc1")
        if i == 1 and t < 3: q += II(f"s_add_u32 s{sCnt}, s{sCnt}, {BSTRIDE}")
        if n < O_("nh", 0): it += q
        else: rest += q
    lastcs = [x for x in it if x.tag == f"CG{NV-1}"][-1]
    left = tl.sched(h0, end - 1, it, look=O_("look", 70))
    assert len(left) <= 54 * O_("nh", 0) and not any(x is mv30 for x in left)
    pos = [k for k, gp in enumerate(tl.g) if any(x is lastcs for x in gp.vec)]
    assert pos and pos[0] < tb[6, 6], (pos, tb[6, 6])

    for nm, i in [(f"p{i}", i) for i in range(1, 8)]:
        tl.g[tb[i, 0]].scal = stamp_ins(STAMPS.get(nm)) + tl.g[tb[i, 0]].scal
    body = tl.emit(0, end, "proj" + var)
    print("h epilogue leftover", len(left), "of", len(it), file=sys.stderr)
    return first_reads, body, left + rest

def gen_kernel():
    b = Block(); b.name = "setup"
    b.e(f"s_cmp_ge_u32 s2, 256\ns_cbranch_scc1 L_end\ns_mov_b32 s{sFB}, 0")
    if OPT.get("shuffle"): b.e("s_and_b32 s3, s2, 7\ns_lshl_b32 s3, s3, 5\ns_lshr_b32 s2, s2, 3\ns_or_b32 s2, s2, s3")
    if OPT.get("delay"): b.e(f"s_mov_b32 s3, {OPT['delay']}\nL_dly:\ns_sub_u32 s3, s3, 1\ns_cmp_lg_u32 s3, 0\ns_cbranch_scc1 L_dly")
    if OPT["stamp"]:
        for i in range(20): b.e(f"s_mov_b32 s{72+i}, 0")
        stamp(b, "start")
    b2 = Block(); b2.name = "setup1"; b_ = b; b = b2
    b.e("L_restart:")
    for sr, off in ((sX, 0), (sW1, 48), (sW3, 56), (sWQ, 24)): b.e(f"s_load_dwordx2 s[{sr}:{sr+1}], s[0:1], {off}")
    T0, T1, T2, T3, T4 = 56, 57, 58, 59, 60
    vl, vc, vg, vi2, vi3 = 61, 62, 63, 22, 23
    b.e("s_getpc_b64 s[100:101]\nL_pc:")
    b.e(f"s_lshr_b32 s{sT}, s2, 3\ns_mul_i32 s{sT2}, s{sT}, 2560\nv_mul_u32_u24 v108, 10, v0\nv_add_u32 v108, s{sT2}, v108\nv_and_b32 v108, 0xffffff80, v108\nv_min_u32 v108, L_code_end-L_pc, v108\nv_mov_b32 v109, s101")
    b.e(f"v_add_co_u32 v108, vcc, s100, v108\nv_lshrrev_b32 v{T0}, 6, v0\nv_and_b32 v{vc}, 15, v0\nv_addc_co_u32 v109, vcc, 0, v109, vcc\nglobal_load_dword v107, v[108:109], off")
    b.e(f"v_readfirstlane_b32 s{sWave}, v{T0}\nv_bfe_u32 v{vg}, v0, 4, 2\ns_and_b32 s{sT}, s{sT}, 3\ns_lshr_b32 s{sQb}, s2, 5")
    b.e(f"s_lshl_b32 s{sW16k}, s{sWave}, 14\ns_lshl_b32 s{sXb}, s{sQb}, 18\ns_lshl_b32 s{sT2}, s{sWave}, 16\ns_add_u32 s{sXb}, s{sXb}, s{sT2}")
    b.e(f"s_lshl_b32 s100, s{sT}, 12\ns_add_u32 s100, s100, s{sW16k}\ns_lshl_b32 s101, s{sT}, 14\ns_add_u32 s101, s101, s{sXb}")
    b.e(f"s_and_b32 s{sHead}, s2, 7\ns_lshl_b32 s{sHead}, s{sHead}, 2\ns_add_u32 s{sHead}, s{sHead}, s{sT}")
    b.e(f"v_xor_b32 v{T0}, v{vg}, v{vc}\nv_lshlrev_b32 v{T0}, 4, v{T0}\nv_lshl_add_u32 v{vDX}, v{vg}, 10, v{T0}")
    for p in range(1, 4): b.e(f"v_xor_b32 v{T2}, {64*p}, v{vDX}\nv_add_u32 v{vDX+p}, {p*3072}, v{T2}")
    b.e(f"s_mov_b32 s{sX+2}, 0x200000\ns_mov_b32 s{sX+3}, 0x20000\ns_waitcnt lgkmcnt(0)")
    stamp(b, "karg")
    b.e(f"s_and_b32 s{sX+1}, s{sX+1}, 0xffff")
    xg = xdma(0); wg = wdma(0)
    emit_grp(b, xg[0])
    for sr, off in ((sK, 8), (sV, 16), (sB, 88), (sH, 88), (sWS, 88), (sDBG, 80), (sWO, 32), (sW2, 64), (sOut, 72)):
        b.e(f"s_load_dwordx2 s[{sr}:{sr+1}], s[0:1], {off}")
    b.e(f"s_and_b32 s{sT2}, s{sHead}, 3\ns_lshr_b32 s3, s{sT2}, 1\ns_add_u32 s{sT}, s3, 8\ns_mul_i32 s3, s3, 3\ns_add_u32 s3, s3, 8\ns_lshl_b32 s{sFs}, s{sT2}, 1\ns_bitcmp1_b32 s2, 0")
    b.e(f"s_cselect_b32 s{sT}, s{sT}, s{sT2}\ns_cselect_b32 s{sFs}, s3, s{sFs}\ns_add_u32 s{sT}, s{sT}, s{sT2}\ns_lshr_b32 s3, s{sHead}, 3\ns_mul_i32 s3, s3, 14\ns_add_u32 s{sT}, s{sT}, s3\ns_lshl_b32 s{sT}, s{sT}, 6")
    ptr_add(b, sW1, f"s{sT}"); ptr_add(b, sW3, f"s{sT}")
    b.e(f"s_sub_u32 s{sT2}, {512*3584}, s{sT}\ns_add_u32 s{sFs}, s{sFs}, s3\ns_add_u32 s{sFs}, s{sFs}, 128\ns_lshl_b32 s{sFs}, s{sFs}, 10")
    srd_fin(b, sW1, f"s{sT2}"); srd_fin(b, sW3, f"s{sT2}")
    b.e(f"s_lshr_b32 s{sBo}, s{sXb}, 14\nv_and_b32 v{vl}, 63, v0")
    b.e(f"v_lshrrev_b32 v{T0}, 2, v{vl}\nv_and_b32 v{T1}, 3, v0\nv_lshl_add_u32 v{T1}, v{T0}, 7, v{T1}\nv_add_u32 v{T1}, s{sBo}, v{T1}\nv_mul_u32_u24 v101, 3584, v{T1}\nv_lshl_add_u32 v103, v{T0}, 26, v101")
    if not OPT.get("noptouch"): b.e(f"buffer_load_dword v105, v103, {SR(sW1)}, 0 offen\nbuffer_load_dword v106, v103, {SR(sW3)}, 0 offen")
    b.e(f"s_lshl_b32 s{sCnt}, s{sQb}, 7\ns_lshl_b32 s{sT2}, s{sHead}, 2\ns_add_u32 s{sCnt}, s{sCnt}, s{sT2}\ns_add_u32 s{sCnt}, s{sCnt}, s{sWave}\nv_lshlrev_b32 v{vL16}, 4, v{vl}")
    for g in (xg[1], xg[2], xg[3])[:OPT.get("nx", 1)]: emit_grp(b, g)
    b.e(f"s_lshl_b32 s{sT}, s{sHead}, 8"); ptr_add(b, sWQ, f"s{sT}"); b.e(f"s_sub_u32 s{sT2}, 0x400000, s{sT}")
    srd_fin(b, sWQ, f"s{sT2}")
    b.e(f"v_lshrrev_b32 v{T0}, 3, v{vl}\nv_bfe_u32 v{T1}, v0, 1, 2\nv_lshl_add_u32 v{T1}, v{T0}, 7, v{T1}\nv_add_u32 v{T1}, s{sBo}, v{T1}\nv_and_b32 v{T2}, 1, v0\nv_lshlrev_b32 v{T2}, 7, v{T2}\nv_lshl_add_u32 v100, v{T1}, 13, v{T2}\nv_lshl_add_u32 v102, v{T0}, 26, v100")
    b.e(f"s_bfe_u32 s{sSp}, s2, 0x20001\ns_lshr_b32 s{sTc}, s2, 6\ns_bfe_u32 s{sTr}, s2, 0x30003\ns_and_b32 s{sT}, s2, 1\ns_lshl_b32 s{sT}, s{sT}, 3\ns_add_u32 s{sTr}, s{sTr}, s{sT}")
    b.e(f"s_lshl_b32 s{sW8k}, s{sWave}, 13\ns_lshl_b32 s{sW4k}, s{sWave}, 12\ns_mul_i32 s{sBo}, s{sBo}, {BSTRIDE}")
    b.e(f"s_lshl_b32 s{sWQo}, s{sWave}, 18\ns_mul_i32 s{sW13o}, s{sWave}, {32*3584}\ns_mov_b32 s{sKo}, s{sW8k}\ns_mov_b32 s{sVo}, s{sW8k}")
    b.e(f"v_mul_u32_u24 v{T0}, 3584, v{T0}\nv_and_b32 v{T1}, 7, v0\nv_and_b32 v{T2}, 1, v{vg}\nv_lshlrev_b32 v{T2}, 1, v{T2}\nv_xor_b32 v{T1}, v{T1}, v{T2}")
    for p in range(4): b.e(f"v_xor_b32 v{T2}, {4*(p&1)}, v{T1}\nv_lshl_add_u32 v{T2}, v{T2}, 4, v{T0}\nv_add_u32 v{vD13+p}, {p*27648}, v{T2}")
    b.e(f"v_lshlrev_b32 v{T0}, 2, v{vg}\nv_xor_b32 v{T0}, v{vc}, v{T0}\nv_lshlrev_b32 v{T0}, 4, v{T0}\nv_lshl_add_u32 v{vDQ}, v{vg}, 13, v{T0}")
    for p in range(1, 4): b.e(f"v_add_u32 v{vDQ+p}, {p*31744}, v{vDQ}")
    b.e("s_waitcnt lgkmcnt(0)")
    late = [xg[1], xg[2], xg[3], wg[0], wg[1]][OPT.get("nx", 1):]
    stamp(b, "a1")
    c = Block(); c.name = "setup2"
    c.e(f"s_lshl_b32 s{sT}, s{sHead}, 19"); ptr_add(c, sK, f"s{sT}"); ptr_add(c, sV, f"s{sT}")
    srd_fin(c, sK, 0x80000); srd_fin(c, sV, 0x80000)
    wso = OPT.get("wsoff", 0) << 20
    if wso: ptr_add(c, sWS, wso)
    ptr_add(c, sB, WS_B + wso); ptr_add(c, sH, WS_B + wso); srd_fin(c, sB, 128 * BSTRIDE)
    srd_fin(c, sH, 0)
    srd_fin(c, sWS, 0x28000); srd_fin(c, sDBG, 256); srd_fin(c, sOut, 0x200000)
    srd_fin(c, sWO, 0 if OPT.get("noA") else 4096 * 1024); srd_fin(c, sW2, 0 if OPT.get("noA") else 1792 * 1024)
    c.e(f"v_bfe_u32 v{vi2}, v0, 2, 2\nv_and_b32 v{vi3}, 3, v0")
    c.e(f"v_lshl_add_u32 v{T0}, v{vg}, 3, v{vi2}\nv_lshlrev_b32 v{T1}, 8, v{T0}\nv_lshl_add_u32 v{T1}, v{vi3}, 4, v{T1}\nv_add_u32 v{T1}, {L_SP}, v{T1}\nv_xor_b32 v{T3}, s{sWave}, v{vi2}")
    for i in range(4): c.e(f"v_xor_b32 v{T2}, {i}, v{T3}\nv_lshl_add_u32 v{vWQA+i}, v{T2}, 6, v{T1}")
    c.e(f"v_lshlrev_b32 v{T1}, 7, v{T0}\nv_lshl_add_u32 v{T1}, v{vi3}, 3, v{T1}\nv_add_u32 v{T1}, {L_V}, v{T1}")
    c.e(f"v_and_b32 v{T3}, 1, v{vg}\nv_lshlrev_b32 v{T3}, 1, v{T3}\nv_lshrrev_b32 v{T4}, 1, v{vi2}\nv_or_b32 v{T3}, v{T3}, v{T4}")
    c.e(f"s_and_b32 s3, s{sHead}, 1\ns_sub_u32 s{sT2}, 2, s3\ns_lshl_b32 s3, s3, 1\ns_and_b32 s{sT}, s{sWave}, 1\ns_or_b32 s{sT}, s{sT}, s3\ns_xor_b32 s3, s{sWave}, 2\ns_bitcmp1_b32 s2, 0\ns_cselect_b32 s{sT}, s{sT}, s{sWave}\ns_cselect_b32 s{sT2}, s{sT2}, s3")
    for i in (0, 2): c.e(f"v_xor_b32 v{T2}, s{sT2 if i else sT}, v{T3}\nv_lshl_add_u32 v{vW13A+i}, v{T2}, 5, v{T1}\nv_xor_b32 v{vW13A+i+1}, 32, v{vW13A+i}")
    for r in range(8): c.e(f"v_mov_b32 v{176+r}, 0")
    for r in range(4): c.e(f"v_accvgpr_write_b32 a{aCHK+r}, -1")
    c.e(f"v_xor_b32 v{T0}, v{vg}, v{vc}\nv_lshlrev_b32 v{T1}, 8, v{vc}\nv_add_u32 v{T3}, s{sW16k}, v{T1}\ns_lshl_b32 s{sT}, s{sWave}, 2")
    for i in range(4): c.e(f"v_xor_b32 v{T2}, {4*i}, v{T0}\nv_lshl_add_u32 v{vXA+i}, v{T2}, 4, v{T3}\nv_xor_b32 v{T2}, s{sT}, v{T2}\nv_lshl_add_u32 v{vKA+i}, v{T2}, 4, v{T1}")
    c.e(f"v_lshl_add_u32 v{T0}, v{vg}, 2, v{vi2}\nv_lshlrev_b32 v{T1}, 8, v{T0}\nv_lshl_add_u32 v{T1}, v{vi3}, 3, v{T1}\nv_add_u32 v{T1}, {L_V}, v{T1}\nv_and_b32 v{T0}, 7, v{T0}")
    for dt in range(8): c.e(f"v_xor_b32 v{T2}, {dt}, v{T0}\nv_lshl_add_u32 v{vVA+dt}, v{T2}, 5, v{T1}")
    c.e(f"v_lshlrev_b32 v{T1}, 8, v{vg}\nv_xor_b32 v{T0}, v{vg}, v{vc}")
    for p in range(4): c.e(f"v_xor_b32 v{T2}, {4*p}, v{T0}\nv_lshl_add_u32 v{vDK+p}, v{T2}, 4, v{T1}")
    c.e(f"v_lshlrev_b32 v{T0}, 1, v{vg}\nv_xor_b32 v{T0}, v{T0}, v{vc}")
    for p in range(2): c.e(f"v_xor_b32 v{T2}, {8*p}, v{T0}\nv_lshl_add_u32 v{vDV+p}, v{T2}, 4, v{T1}")
    if OPT.get("half1"): c.e(f"v_bfe_u32 v{T0}, v0, 1, 1\nv_add_u32 v{T0}, -1, v{T0}\nv_and_b32 v{T0}, 0x3f803f80, v{T0}")
    else: c.e(f"v_mov_b32 v{T0}, 0x3f803f80")
    for i in range(4): c.e(f"v_accvgpr_write_b32 a{aONES+i}, v{T0}")
    c.e(f"s_lshl_b32 s{sT}, s{sQb}, 5\nv_and_b32 v51, 7, v0\nv_lshlrev_b32 v51, 5, v51\ns_cmp_eq_u32 s{sFB}, 0\ns_cselect_b32 s{sT}, s{sT}, {OOB}")
    c.e(f"v_mov_b32 v{T0}, {OOB}\nv_mov_b32 v{T1}, s{sT}\nv_cmp_eq_u32 vcc, 0, v0\nv_mov_b32 v49, 1\nv_cndmask_b32 v48, v{T0}, v{T1}, vcc")
    c.e(f"s_lshl_b32 s{sT}, s{sQb}, 5\ns_add_u32 s{sT}, s{sT}, s{sHead}\ns_lshl_b32 s{sT}, s{sT}, 7\ns_add_u32 s{sT}, s{sT}, {WS_FH}\ns_cmp_eq_u32 s{sFB}, 0\ns_cselect_b32 s{sT}, s{sT}, {OOB >> 1}")
    c.e(f"s_and_b32 s{sT2}, s{sHead}, 7\ns_mul_i32 s{sT2}, s{sT2}, 124\ns_sub_u32 s{sT2}, {WS_FO-WS_FH}, s{sT2}\nv_mov_b32 v{T2}, s{sT}\nv_mad_u32_u24 v{T1}, v0, s{sT2}, v{T2}\nv_cmp_gt_u32 vcc, 2, v0\nv_mov_b32 v{T2}, 0\nv_cndmask_b32 v{T1}, v{T0}, v{T1}, vcc")
    c.e(f"buffer_store_dword v{T2}, v{T1}, {SR(sWS)}, 0 offen sc1")
    c.e(f"s_lshr_b32 s{sT}, s{sXb}, 7\nv_lshlrev_b32 v52, 3, v{vc}\nv_add_u32 v52, s{sT}, v52")
    c.e(f"s_lshl_b32 s{sT}, s{sWave}, 7\nv_lshlrev_b32 v54, 4, v{vg}\nv_add_u32 v54, s{sT}, v54\nv_add_u32 v54, {L_K+32768}, v54\ns_add_u32 s{sT}, s{sT}, {L_K+32768}\nv_lshl_add_u32 v21, v{vc}, 2, s{sT}")
    for i in range(4): c.e(f"v_accvgpr_write_b32 a{aZ+i}, 0")
    c.e(f"v_and_b32 v{vIDX}, 1, v0\nv_mul_u32_u24 v{vIDX}, 0xaaaa, v{vIDX}\nv_add_u32 v{vIDX}, 0x4444, v{vIDX}")
    c.e(f"v_mfma_f32_32x32x16_bf16 {A(aL,16)}, {A(aZ,4)}, {A(aZ,4)}, 0")
    c.e(f"s_lshl_b32 s{sT}, s{sQb}, 2\ns_add_u32 s{sT}, s{sT}, s{sWave}\ns_lshl_b32 s{sT}, s{sT}, 11\nv_lshlrev_b32 v53, 29, v{vg}\nv_lshl_add_u32 v53, v{vc}, 7, v53\nv_add_u32 v53, s{sT}, v53")
    stamp(c, "a2")
    c.e(f"s_lshl_b32 s{sT2}, s{sCnt}, 4\nv_lshrrev_b32 v{T2}, 5, v{vl}\nv_lshl_add_u32 v{T1}, v{T2}, 3, s{sT2}\nv_lshl_add_u32 v{T2}, v{T2}, 9, v{vL16}\nv_and_b32 v{T3}, 31, v0\nv_cmp_eq_u32 vcc, 0, v{T3}\nv_cndmask_b32 v{T1}, v{T0}, v{T1}, vcc")
    c.e("v_mov_b32 v22, v102\nv_mov_b32 v23, v103\nv_accvgpr_write_b32 a254, v108\nv_accvgpr_write_b32 a255, v109")
    for g in late: emit_grp(c, g)
    c.e("v_mov_b32 v60, v108\nv_mov_b32 v61, v109")
    for n in OPT["pre"].split():
        if n == "Q0": c.e(f"buffer_load_dword a252, v22, {SR(sWQ)}, 0 offen")
        if n == "G1": c.e(f"s_mov_b32 s{sT}, {128*3584}\nbuffer_load_dword a252, v23, {SR(sW1)}, s{sT} offen\nbuffer_load_dword a252, v23, {SR(sW3)}, s{sT} offen")
        if n == "S":
            c.e(f"s_lshl_b32 s{sT}, s{sCnt}, 11")
            for r in range(2): c.e(f"buffer_load_dwordx4 {V(72+4*r,4)}, v{T2}, {SR(sX)}, s{sT} offen offset:{512*r}", tag="SR")
    stamp(c, "a4")
    c_ = c; c = Block(); c.wait(vm="SR")
    X = lambda k: 88 + k + (8 if k >= 8 else 0)
    for k in range(8): c.e(f"v_lshlrev_b32 v{X(2*k)}, 16, v{72+k}\nv_and_b32 v{X(2*k+1)}, 0xffff0000, v{72+k}")
    def wred(d):
        c.e("v_add_f32 v120, v120, v121")
        for sh in (8, 4, 2, 1): c.e(f"v_add_f32_dpp v120, v120, v120 row_ror:{sh} row_mask:0xf bank_mask:0xf")
        c.e(f"v_mov_b32 v121, v120\nv_permlane16_swap_b32 v121, v120\nv_add_f32 v120, v120, v121\nv_mul_f32 v{d}, {f32(1/512)}, v120")
    for k in range(7):
        for r in range(2): c.e(f"v_add_f32 v{120+r}, v{X(8*r+k+1)}, v{X(8*r) if k == 0 else (120+r)}")
    wred(122)
    for k in range(16): c.e(f"v_sub_f32 v{X(k)}, v{X(k)}, v122")
    for k in range(8):
        for r in range(2): c.e(f"v_mul_f32 v{120+r}, v{X(8*r)}, v{X(8*r)}" if k == 0 else f"v_fmac_f32 v{120+r}, v{X(8*r+k)}, v{X(8*r+k)}")
    wred(123)
    def rnd(r): c.e(f"v_cvt_pk_bf16_f32 v{r}, v{r}, v{r}\nv_and_b32 v{r}, 0xffff0000, v{r}")
    rnd(122); rnd(123); c.e(f"v_add_f32 v123, {f32(1e-5)}, v123"); rnd(123); c.e("v_sqrt_f32 v123, v123"); rnd(123); c.e("v_mul_f32 v123, v123, v123")
    c.e(f"buffer_store_dwordx2 v[122:123], v{T1}, {SR(sWS)}, 0 offen sc1", tag="ST")
    st_ = [x for x in c.ins if x.kind != "nop"]; c = c_
    def stats():
        w_ = W(vm="SR"); w_.guards = {f"v{72+k}" for k in range(8)}
        return [w_] + [Ins(x.text, tag=x.tag) for x in st_[1:]]
    PJ = {}
    for var in "FS":
      first_reads, proj, hleft = gen_proj(stats(), var)
      e = Block(); e.name = "projepi"
      stamp(e, "projend")
      for i in range(4): e.e(f"v_xor_b32 v{24+i}, {128*i}, v30")
      def cq(i): return [Ins(f"ds_read_b128 {V(48+8*(i&1)+4*hf,4)}, v{24+i} offset:{64*hf}", tag=f"CQ{i}") for hf in range(2)]
      e.ext(cq(0) + cq(1))
      nfirst = [k for k, x in enumerate(hleft) if x.kind == "vstore"][0] + 1
      e.ext(hleft[:nfirst]); hleft = hleft[nfirst:]
      H = 192
      for ds in range(4):
          e.wait(lgkm=f"CQ{ds}")
          for t in range(4):
              d = Q(t, ds); h = H + 16 * (t & 1); o = t & 1; nm, aq = V(vNMU + t - o, 2), V(vAQ + t - o, 2); CS = 48 + 8 * (ds & 1)
              for k in range(4): e.e(f"v_accvgpr_read_b32 v{h+k}, a{128+(t*4+ds)*4+k}")
              prs = [(d, CS), (d + 2, CS + 2), (h, CS + 4), (h + 2, CS + 6)]
              for x, cs in prs: e.e(f"v_pk_fma_f32 {V(x,2)}, {V(cs,2)}, {nm}, {V(x,2)} op_sel:[0,{o},0] op_sel_hi:[1,{o},1]")
              for x, cs in prs:
                if OPT.get("bQ"): e.e(f"v_pk_fma_f32 {V(x,2)}, {V(x,2)}, {aq}, {aq} op_sel:[0,{o},{o}] op_sel_hi:[1,{o},{o}] neg_lo:[0,0,1] neg_hi:[0,0,1]")
                else: e.e(f"v_pk_mul_f32 {V(x,2)}, {V(x,2)}, {aq} op_sel:[0,{o}] op_sel_hi:[1,{o}]")
              for k, (x, cs) in enumerate(prs): e.e(f"v_cvt_pk_bf16_f32 v{d+k}, v{x}, v{x+1}")
          if ds < 2: e.ext(cq(ds + 2))
      PM = 48
      ch = [MF(V(PM + 4 * t, 4), A(KF(0, ds), 4), V(Q(t, ds), 4), "0" if n == 0 else V(PM + 4 * t, 4)) for t in range(4) for n, ds in enumerate(snake(t))]
      run = 0
      for k, x in enumerate(hleft):
          run = run + 1 if x.kind == "trans" else 0
          if ch and x.kind == "trans" and 3 <= run <= 5: e.add(ch.pop(0))
          e.add(x)
      e.ext(ch)
      h_ = Block(); h_.name = "projhead"
      if var == "F": h_.e("L_proj_F:")
      h_.wait(vm="DX0"); h_.ext(xreads(0)); h_.wait(vm="DW0"); stamp(h_, "a6"); h_.e("s_barrier"); h_.ext(first_reads); h_.wait(lgkm="W0"); stamp(h_, "p0")
      e.e("s_cmp_eq_u32 0, 0")
      if var == "F": e.e("s_branch L_proj_join")
      PJ[var] = [h_, proj, e]
    stamp(c, "a5")
    for _ in range(OPT.get("pad1", 0)): c.e("s_nop 0")
    c.e("s_bitcmp1_b32 s2, 0\ns_cbranch_scc0 " + ("L_proj_join" if OPT.get("warm", 1) else "L_proj_F"))
    e = Block(); e.name = "join"; e.e("L_proj_join:\ns_cbranch_scc0 L_proj_F")
    e.e(f"s_cmp_lg_u32 s{sFB}, 0\ns_cbranch_scc1 L_truemax")
    e2 = Block(); e2.name = "premax"
    def rowmax_finish(blk, src, dl=0):
        for sw in ("32", "16"):
            for t in range(4): blk.e(f"v_mov_b32 v{vT+t}, v{src(t)}")
            for t in range(4): blk.e(f"v_permlane{sw}_swap_b32 v{vT+t}, v{src(t)}")
            for t in range(4): blk.e(f"v_max_f32 v{src(t) if sw == '32' else vT+t}, v{src(t)}, v{vT+t}")
        for t in range(4):
            for r in range(4): blk.e(f"v_sub_f32 v{vNM+4*t+r}, {f32(-dl) if dl else 0}, v{vT+t}")
    for t in range(4):
        s0 = PM + 4 * t
        e2.e(f"v_max3_f32 v{s0}, v{s0}, v{s0+1}, v{s0+2}\nv_max_f32 v{s0}, v{s0}, v{s0+3}")
    rowmax_finish(e2, lambda t: PM + 4 * t, OPT.get('dl', 0))
    if OPT.get("nmc") is not None:
        e2.ins = e2.ins[:-16] + II("\n".join(f"v_mov_b32 v{vNM+r}, {f32(OPT['nmc'])}" for r in range(16)))
    a_, b_2, c_2, d_, e_2, f_ = sBs[0], sBs[1], sBs[2], sBs[3], sHp[2], sHp[3]
    li = II(f"""s_lshl_b32 s{c_2}, s{sQb}, 13
s_add_u32 s{c_2}, s{c_2}, 32768
s_sub_u32 s{c_2}, s{c_2}, s{sW8k}
s_lshr_b32 s{a_}, s2, 3
s_mul_i32 s{b_2}, s{a_}, {14*1024}
s_lshl_b32 s{a_}, s{a_}, 15
s_lshl_b32 s3, s{sSp}, 20
s_add_u32 s{a_}, s{a_}, s3
s_mul_i32 s3, s{sSp}, {448*1024}
s_add_u32 s{b_2}, s{b_2}, s3
s_lshl_b32 s{d_}, s{sQb}, 5
s_add_u32 s{d_}, s{d_}, s{sHead}
s_lshl_b32 s{d_}, s{d_}, 7
s_add_u32 s{d_}, s{d_}, {WS_FH}
s_lshr_b32 s{e_2}, s{sTr}, 1
s_lshl_b32 s{e_2}, s{e_2}, 2
s_add_u32 s{e_2}, s{e_2}, s{sSp}
s_lshl_b32 s{e_2}, s{e_2}, 10
s_add_u32 s{e_2}, s{e_2}, {WS_FH}
s_mul_i32 s{f_}, s{sTc}, 3584
v_and_b32 v28, 15, v0
v_lshrrev_b32 v29, 6, v0
v_lshl_add_u32 v28, v29, 4, v28
v_bfe_u32 v29, v0, 4, 2
v_lshlrev_b32 v29, 29, v29
v_lshl_add_u32 v29, v28, 7, v29
v_add_u32 v28, s{c_2}, v29
buffer_load_dword a252, v28, {SR(sV)}, s{sVo} offen
v_bfe_u32 v30, v0, 4, 1
v_mul_u32_u24 v30, 0xffff, v30
v_lshlrev_b32 v30, 13, v30
v_sub_u32 v30, v29, v30
v_add_u32 v30, s{a_}, v30
v_add_u32 v29, s{b_2}, v29
v_lshl_add_u32 v21, v0, 18, s{d_}
v_mov_b32 v22, 1
v_and_b32 v23, 7, v0
v_lshl_add_u32 v23, v23, 7, s{e_2}
v_and_b32 v24, 8, v0
v_cmp_eq_u32 vcc, 0, v24
v_and_b32 v24, 3, v0
v_lshlrev_b32 v24, 10, v24
v_xor_b32 v24, s{d_}, v24
v_cndmask_b32 v23, v24, v23, vcc
v_cndmask_b32 v31, 7, v22, vcc
v_and_b32 v27, 31, v0
v_min_u32 v27, 27, v27
v_lshl_add_u32 v27, v27, 7, s{f_}
v_bfe_u32 v26, v0, 5, 1
v_mul_u32_u24 v26, {BSTRIDE}, v26
v_add_u32 v27, v27, v26
v_accvgpr_read_b32 v24, a254
v_accvgpr_read_b32 v25, a255
s_mov_b32 s{sCnt}, 7
s_mov_b32 s{sTW}, 0
s_mov_b32 s{sT2W}, 0""")
    first, even, odd, last = gen_attention(li)
    l0 = Block(); l0.e("L_att_start:")
    if OPT.get("bO"):
        hx = int(f32(1.5 * 2.0 ** (OPT["bO"] - 4)), 16) >> 16
        for r in range(4): l0.e(f"v_mov_b32 v{252+r}, {hex(hx * 0x10001)}")
    stamp(l0, "att0")
    l1 = Block(); stamp(l1, "loop")
    l1b = Block(); l1b.e(".p2align 6\n" + "s_nop 0\n" * OPT.get("pad3", 0) + "L_att_loop:")
    l4 = Block(); l4.e("L_att_last:"); stamp(l4, "last")
    for _ in range(OPT.get("pad2", 0)): l4.e("s_nop 0")
    if OPT.get("loopstamp"):
        l1b.e(f"s_memtime s[96:97]\ns_mov_b32 m0, s{sCnt}\ns_waitcnt lgkmcnt(0)\nv_writelane_b32 v31, s96, m0")
        for i in range(8): l4.e(f"v_readlane_b32 s{74+2*i}, v31, {7-i}\nv_readlane_b32 s{75+2*i}, v31, {7-i}")
    f = Block(); f.name = "check"
    stamp(f, "attend")
    vRL = vNM
    for _ in range(min(OPT.get("osf", 2), len(OSTORES))): emit_grp(f, OSTORES.pop(0))
    f.add(last.tailchk)
    f.e(f"s_mov_b32 s{sT}, {f32(2.0**OPT.get('lmax', 100))}")
    f.e(f"v_max3_f32 v{vT}, v{vRL+4}, v{vRL+5}, v{vRL+6}\nv_max_f32 v{vT}, v{vT}, v{vRL+7}\nv_accvgpr_read_b32 v{vT+1}, a{aCHK}")
    f.e(f"v_add_f32 v{vT}, v{vT}, v{vT+1}\nv_cmp_nlt_f32 vcc, v{vT}, s{sT}")
    f.e(f"s_cmp_lg_u64 vcc, 0\ns_cselect_b32 s{sT}, 1, 0")
    f.e(f"v_mov_b32 v{vT}, s{sT}\nv_and_b32 v{vT+1}, 3, v0\nv_lshlrev_b32 v{vT+1}, 12, v{vT+1}\ns_add_u32 s{sT}, s{sWave}, {7*4096}\ns_lshl_b32 s{sT}, s{sT}, 2\nv_add_u32 v{vT+1}, s{sT}, v{vT+1}")
    f.e(f"ds_write_b32 v{vT+1}, v{vT}", tag="VW"); f.e(f"s_add_u32 s{sT}, s{sM}, {7*16384}\nv_mov_b32 v{vT+1}, s{sT}")
    if OSTORES: emit_grp(f, OSTORES.pop(0))
    f.e(f"s_lshl_b32 s{sT}, s{sWave}, 6\ns_or_b32 s{sT}, s{sT}, {L_V}\ns_and_b32 s{sT2}, s{sTr}, 1\ns_lshl_b32 s{sT2}, s{sT2}, 12")
    for v in range(2): f.e(f"v_xor_b32 v{vRAs+v}, s{sT}, v{vVA+v}")
    for st in (1, 2):
        for v in range(2): f.e(f"v_add_u32 v{vRAs+2*st+v}, {st*65536}, v{vRAs+v}")
    for st in range(3):
        for v in range(2): f.e(f"v_xor_b32 v{vRAg+4*st+v}, s{sT2}, v{vRAs+2*st+v}\nv_xor_b32 v{vRAg+4*st+2+v}, 0x1000, v{vRAg+4*st+v}")
        f.e(f"v_add_u32 v{vRB[st]}, {st*65536}, v{vL16}")
    while OSTORES: emit_grp(f, OSTORES.pop(0))
    f.wait(lgkm="VW", vm=[f"U{u}" for u in RD[-1]]); f.e("s_barrier")
    f.e(f"ds_read_b128 v[2:5], v{vT+1}", tag="FL")
    for u in RD[-1]: f.ext(ureads(u))
    f.wait(lgkm="FL")
    f.e(f"v_or_b32 v2, v2, v3\nv_or3_b32 v2, v2, v4, v5\nv_readfirstlane_b32 s{sT}, v2")
    f.e(f"s_andn2_b32 s{sT}, s{sT}, s{sFB}\ns_cmp_lg_u32 s{sT}, 0\n" + ("" if OPT.get("nofb") else "s_cbranch_scc1 L_fallback"))
    k = Block(); k.name = "tail"
    stamp(k, "tail0")
    su = II(f"""s_and_b32 s{sT}, s{sHead}, 7
s_mul_i32 s{sT}, s{sT}, 124
s_sub_u32 s{sT}, {WS_FO-WS_FH}, s{sT}
v_add_u32 v26, s{sT}, v21
v_mov_b32 v25, 1
v_and_b32 v{vPA}, 7, v0
s_lshr_b32 s{sT}, s{sTr}, 1
s_lshl_b32 s{sT}, s{sT}, 2
s_add_u32 s{sT}, s{sT}, s{sSp}
s_lshl_b32 s{sT}, s{sT}, 10
s_add_u32 s{sT}, s{sT}, {WS_FO}
v_lshl_add_u32 v{vPA}, v{vPA}, 2, s{sT}
s_add_u32 s100, s{sWS}, s{sT}
s_addc_u32 s101, s{sWS+1}, 0
v_and_b32 v27, 3, v0
v_lshlrev_b32 v27, 4, v27
v_bfe_u32 v24, v0, 2, 4
v_lshl_add_u32 v27, v24, 10, v27""")
    nU = 10
    for n in range(10):
        if n not in EARLY: emit_grp(k, udma(n))
    k.ext(su)
    k.wait(lgkm="R")
    ldf = f"buffer_load_dword v{vPoll}, v{vPA}, {SR(sWS)}, 0 offen sc1"
    allset = f"v_cmp_eq_u32 vcc, 0, v{vPoll}\ns_nop 0\ns_cmp_eq_u64 vcc, 0"
    polled = False
    def take(n):
        nonlocal nU
        if n > 21: return []
        limit = min(RD[max(m for m in range(n + 1) if m - 7 not in OPT.get("nobs", ()))][0] + 10, len(UNITS))
        r = []
        while nU < limit:
            kd, a_ = UNITS[nU]
            if kd == "Bs" and not (polled and (a_ < 4 or n - 7 >= OPT["bsat"][a_])): break
            r.append(udma(nU)); nU += 1
        return r
    def pack(src, dst): return II("\n".join(f"v_cvt_pk_bf16_f32 v{dst+r}, v{src+2*r}, v{src+2*r+1}" for r in range(8)) + "\n" + "\n".join(f"v_min_u32 v{dst+r}, -2, v{dst+r}" for r in range(8)))
    def xst(which, lam, reg):
        return (II(f"s_xor_b32 s{sCnt}, s{sXR}, {lam*65536 + (which*4+lam)*8192}"),
                [Ins(f"buffer_store_dwordx4 {V(reg+4*m,4)}, v{vL16}, {SR(sXP)}, s{sCnt} offen offset:{m*1024} sc1") for m in range(2)], [])
    def xld(which, lam, tag, so=sCnt):
        if OPT.get("xdummy") == 2: return (II(f"s_mov_b32 s{so}, 0x40000000"), [Ins(f"buffer_load_dwordx4 {V(IN(which,lam)+4*m,4)}, v{vL16}, {SR(sXP)}, s{so} offen offset:{m*1024} sc1", tag=tag) for m in range(2)], [])
        if OPT.get("xdummy") == 1: return (II(f"s_add_u32 s{so}, s{sBo}, {(which*4+lam-1)*2048 % 4096 + ((which*4+lam-1)//2)*BSTRIDE}"), [Ins(f"buffer_load_dwordx4 {V(IN(which,lam)+4*m,4)}, v{vL16}, {SR(sB)}, s{so} offen offset:{m*1024} sc1", tag=tag) for m in range(2)], [])
        return (II(f"s_add_u32 s{so}, s{sXR}, {(which*4+lam)*8192}"),
                [Ins(f"buffer_load_dwordx4 {V(IN(which,lam)+4*m,4)}, v{vL16}, {SR(sXP)}, s{so} offen offset:{m*1024} sc1", tag=tag) for m in range(2)], [])
    IN = lambda which, lam: ACG(2 * lam, 0) + (0 if which else 8)
    def arrived(name, parts):
        regs = [IN(w_, l_) + r for w_, l_ in parts for r in range(8)]
        t = f"v_max3_u32 v28, v{regs[0]}, v{regs[1]}, v{regs[2]}\nv_max3_u32 v29, v{regs[3]}, v{regs[4]}, v{regs[5]}\n"
        for m in range(6, len(regs), 2): t += f"v_max3_u32 v{28+(m>>1)%2}, v{28+(m>>1)%2}, v{regs[m]}, v{regs[m+1]}\n"
        t += "v_max_u32 v28, v28, v29\nv_cmp_eq_u32 vcc, -1, v28\ns_nop 0\ns_cmp_eq_u64 vcc, 0"
        ld = "\n".join(x.text for w_, l_ in parts for g in [xld(w_, l_, None, sT)] for x in g[0] + g[1])
        r = poll_check(name, 0, ld, t)
        return r[:-5], r[-5:]
    G0, S0 = ACG(0, 0), ACS(2, 0)
    def unp(src, dst): return II("\n".join(f"v_lshlrev_b32 v{dst(2*r)}, 16, v{src+r}\nv_and_b32 v{dst(2*r+1)}, 0xffff0000, v{src+r}" for r in range(8)))
    gm = []
    for lam in (1, 2, 3):
        for h_ in range(2):
            for r in range(4): gm += II(f"v_lshlrev_b32 v{2+2*r}, 16, v{IN(1,lam)+4*h_+r}\nv_and_b32 v{3+2*r}, 0xffff0000, v{IN(1,lam)+4*h_+r}")
            for r in range(8): gm += II(f"v_add_f32 v{G0+8*h_+r}, v{G0+8*h_+r}, v{2+r}")
    nsum = len(gm)
    for h_ in range(2):
        g_ = lambda r: G0 + 8 * h_ + r
        for r in range(8): gm += II(f"v_mul_f32 v{2+r}, {f32(-LOG2E)}, v{g_(r)}")
        for r in range(8): gm += II(f"v_exp_f32 v{2+r}, v{2+r}") + (II(f"v_add_f32 v{r}, 1.0, v{r}") if r >= 2 else [])
        for r in range(8): gm += II(f"v_rcp_f32 v{2+r}, v{2+r}") + II(f"v_add_f32 v{8+r}, 1.0, v{8+r}" if r < 2 else f"v_mul_f32 v{g_(r-2)}, v{g_(r-2)}, v{r}")
        for r in (6, 7): gm += II(f"v_mul_f32 v{g_(r)}, v{g_(r)}, v{2+r}")
    nrest = len(gm) - nsum
    ta = II(f"""v_and_b32 v10, 15, v0
v_bfe_u32 v11, v0, 4, 2
v_and_b32 v18, 7, v0
v_xor_b32 v11, v11, v18
v_lshlrev_b32 v10, 7, v10
v_lshl_add_u32 v10, v11, 4, v10
v_add_u32 v10, s{sM}, v10
v_xor_b32 v11, 64, v10
v_and_b32 v18, 3, v0
v_lshlrev_b32 v18, 1, v18
v_bfe_u32 v19, v0, 2, 3
v_xor_b32 v18, v18, v19
v_bfe_u32 v19, v0, 2, 4
v_lshlrev_b32 v19, 7, v19
v_lshl_add_u32 v18, v18, 4, v19
v_add_u32 v18, s{sM}, v18
v_xor_b32 v19, 16, v18""")
    XR = IN(1, 1)
    at = lambda tl, y: max(q for q, gp in enumerate(tl.g) if any(x is y for x in gp.vec))
    for n in range(23):
        i = n - 7
        stamp(k, f"g{n}" if n < 7 else f"s{i}")
        tl = TL()
        if n < 7:
            for c_, j in enumerate((2, 3, 4, 5, 6, 7, 0, 1) if n == 6 else range(8)):
                for v in ((0, 1) if c_ % 2 == 0 else (1, 0)):
                    d = V(ACG(j, v), 4)
                    for m, ks in enumerate((0, 1) if v == (c_ & 1) else (1, 0)):
                        tl.add(MF(d, R(*AG(n, v, ks), 4), V(BF(n, j * 2 + ks), 4), OPT.get("bg", "0") if (n == 0 and m == 0) else d))
        else:
            for e_ in range(2):
                for v in ((0, 1) if e_ == 0 else (1, 0)):
                    d = V(ACS(2 * ((i >> 2) & 1) + e_, v), 4)
                    for m, ks in enumerate(range(8) if v == e_ else range(7, -1, -1)):
                        tl.add(MF(d, A(AS(v, (i & 3) * 8 + ks), 4), V(BF(n, e_ * 8 + ks), 4), OPT.get("bs", "0") if (i in (0, 4, 8) and m == 0) else d))
        bar = bool(RD[n]) and i not in OPT.get("nobs", ())
        need = []
        if bar:
            m = n
            while True:
                need += RD[m]; m += 1
                if m > 21 or m - 7 not in OPT.get("nobs", ()): break
        grp = []; vm = [f"U{u}" for u in need]
        assert all(u < nU for u in need), n
        if n == OPT["flagstage"]: vm.append("OS"); grp.append(([], II(f"buffer_store_dword v25, v26, {SR(sWS)}, 0 offen sc1"), []))
        ck = None
        if i == OPT["gck"]: vm.append("IG"); ck = arrived("g", [(1, 1), (1, 2), (1, 3)])
        if i == 11: vm.append("I1"); ck = arrived("s1", [(0, 1)])
        f2 = OPT.get("fin2")
        if i == 15 and not f2: vm.append("I2"); ck = arrived("s2", [(0, 2)])
        if vm: tl.scal_at(0, W(vm=vm))
        span = n == OPT["pollstage"] and OPT["polld"] == 2
        if bar: tl.scal_at(1, Ins("s_barrier"))
        if RD[n]: tl.scal_at(31, W(lgkm="R") if not span else Ins("s_waitcnt lgkmcnt(2)"))
        lo = 3
        if n == OPT["pollstage"]: tl.scal_at(OPT.get("pollgap", 2), Ins(f"s_load_dwordx8 s[{sK}:{sK+7}], s[100:101], 0 glc", tag="R"))
        if n == OPT["pollstage"] + OPT["polld"]:
            pc = poll_check("o", vPoll, ldf, allset)
            g = tl.g[2]; g.load += 2; polled = True; lo = 5
            g.vec += II(f"s_and_b64 s[{sK}:{sK+1}], s[{sK}:{sK+1}], s[{sK+2}:{sK+3}]\ns_and_b64 s[{sK+4}:{sK+5}], s[{sK+4}:{sK+5}], s[{sK+6}:{sK+7}]\ns_and_b64 s[{sK}:{sK+1}], s[{sK}:{sK+1}], s[{sK+4}:{sK+5}]\ns_and_b32 s{sK}, s{sK}, s{sK+1}") + pc[-2:]
        pk = []
        pw = OPT.get("pw2", 1)
        if n == 6: pk = [(11, 21, pack(ACG(2, 0), ACG(2, 0)))] if not pw else [(11, 31, pack(ACG(2, 0), ACG(2, 0)) + pack(ACG(4, 0), ACG(4, 0))[:8])]
        gst = OPT.get("gst", 0)
        if i == 0 and gst == 0: pk = [(0, 14, pack(ACG(4, 0), ACG(4, 0))), (8, 24, pack(ACG(6, 0), ACG(6, 0)))] if not pw else [(0, 25, pack(ACG(4, 0), ACG(4, 0))[8:] + pack(ACG(6, 0), ACG(6, 0)))]
        if i == 0 and gst > 0: pk = [(0, 31, pack(ACG(4, 0), ACG(4, 0))[8 if pw else 0:] + pack(ACG(6, 0), ACG(6, 0)))]
        if i in (4, 8, 12): pk = [(4 if not pw else 2, (OPT.get("s3lo", 16) - 2) if (i == 12 or not pw) else 24, pack(ACS(2 * ((i // 4 + 1) & 1), 0), IN(0, i // 4)))]
        grp += take(n)
        if i == OPT["gld"]: grp += [xld(1, lam, "IG") for lam in (1, 2, 3)]
        if i == 8: grp.append(xld(0, 1, "I1"))
        g1 = OPT.get("g1early", 0)
        if i == gst: grp += [xst(1, lam, IN(1, lam)) for lam in (1, 2, 3) if lam > g1]
        if n == 6 and g1: late_ = [xst(1, lam, IN(1, lam)) for lam in range(1, g1 + 1)]
        else: late_ = []
        if i in (4, 8, 12): grp.append(xst(0, i // 4, IN(0, i // 4)))
        if i == 12:
            lo = OPT.get("s3lo", 16)
            grp += [([], II(f"buffer_load_dwordx4 {V(XR,4)}, v27, {SR(sX)}, s{sOo} offen\nbuffer_load_dwordx4 {V(XR+4,4)}, v27, {SR(sX)}, s{sXW} offen"), []), xld(0, 2, "I2")]
            assert not any({f"v{XR+r}" for r in range(8)} & y.reads for y in gm)
        if i == OPT.get("i3st", 15): lo = OPT["i3gap"]; grp.append(xld(0, 3, "I3"))
        if i == 0 and gst == 0 and g1 and len(grp) == 3 - g1: lo = 17
        spill = []
        while sum(len(g[1]) + len(g[0]) // 2 for g in grp) > 22: spill.insert(0, grp.pop())
        nv = sum(len(g[1]) for g in grp)
        if grp and n < 7 and OPT.get("gfront"):
            q = lo - 1
            for g in grp:
                gp = tl.g[q]; gp.vec += g[0] + g[1]; gp.load += 6; q += OPT["gfront"]
            for g in spill: tl.g[q].vec += g[0] + g[1]; tl.g[q].load += 6; q += OPT["gfront"]
            spill = []
        elif grp: tl.spread(lo, min(29, lo + 4 * nv - 4) if i > 0 else (29 if not late_ else 18), grp)
        if late_: tl.spread(24, 29, late_); grp += late_
        rd = [x for u in RD[n] for x in ureads(u)]
        if span: rd += II(f"ds_read_b32 v28, v{vL16}\nds_read_b32 v28, v{vL16}")
        if len(rd) > 26: tl.vec_in(2, OPT.get("grh", 25), rd)
        elif rd:
            rh = OPT.get("rh", 20)
            while rh < 27 and sum(tl.g[q].load == 0 for q in range(2, rh + 1)) < len(rd): rh += 1
            free = [q for q in range(2, rh + 1) if tl.g[q].load == 0]
            drop = len(free) - len(rd)
            if drop < 0: tl.vec_in(2, 27, rd)
            else:
                for m in range(drop): free[(2 * m + 1) * len(free) // (2 * drop)] = None
                for x, q in zip(rd, [q for q in free if q is not None]): tl.vec_at(q, x)
        for lo_, hi_, its in pk:
            room = sum(max(0, 2 - tl.g[q].load) for q in range(lo_, hi_ + 1))
            left = tl.stream(lo_, hi_, its, cap=2 if room >= len(its) else 3); assert not left, (n, len(left))
            for y in its:
                for q, gp in enumerate(tl.g): assert not (gp.m.writes & y.reads) or at(tl, y) >= q, n
                for g in grp:
                    for x in g[1]: assert not (y.writes & x.reads) or at(tl, x) > at(tl, y), n
        q0 = 0
        if ck:
            left = tl.stream(0, 29, ck[0]); assert not left
            q0 = at(tl, ck[0][-1]) + 1; tl.g[q0].vec += ck[1]; tl.g[q0].load += 2; q0 += 1
        if i == 5: left = tl.stream(0, 31, ta); assert not left
        if i == 11: left = tl.stream(q0, 29, unp(IN(0, 1), lambda r: S0 + r)); assert not left
        if f2 and i == 14:
            TT = lambda r: IN(1, 2) + r if r < 8 else IN(1, 3) + r - 8
            assert not gm or not any({f"v{TT(r)}" for r in range(16)} & y.reads for y in gm)
            gm = tl.sched(0, f2[0] - 2, gm); assert not gm
            c2 = arrived("s2", [(0, 2)])
            left = tl.stream(f2[0] - 1, 28, [W(vm="I2")] + c2[0]); assert not left
            q2 = at(tl, c2[0][-1]) + 1; tl.g[q2].vec += c2[1]; tl.g[q2].load += 2
            l14 = tl.stream(q2 + 1, 31, unp(IN(0, 2), TT))
        if f2 and i == 15:
            xu = unp(XR, lambda r: 128 + r)
            left = tl.stream(0, f2[1] - 1, l14 + xu[:8]); assert len(left) <= 8
            c3 = arrived("s3", [(0, 3)])
            l_ = tl.stream(f2[1] - 1, 28, [W(vm="I3")] + c3[0]); assert not l_
            q3 = at(tl, c3[0][-1]) + 1; tl.g[q3].vec += c3[1]; tl.g[q3].load += 2
            u3 = unp(IN(0, 3), lambda r: 160 + r)
            def half(e_): return u3[8*e_:8*e_+8] + II("\n".join(f"v_add_f32 v{TT(r)}, v{TT(r)}, v{160+r}" for r in range(8*e_, 8*e_+8)))
            fin0 = II("\n".join(f"v_add_f32 v{S0+r}, v{S0+r}, v{TT(r)}" for r in range(8)) + "\n" + "\n".join(f"v_mul_f32 v{S0+r}, v{S0+r}, v{G0+r}" for r in range(8)))
            fin0 += II("\n".join(f"ds_write_b128 v{10+v}, {V(S0+v*4,4)}" for v in range(2))) + II("\n".join(f"ds_read_b128 {V(144+m*4,4)}, v{18+m}" for m in range(2)), tag="T0")
            l_ = tl.stream(q3 + 1, 19, half(0) + left + half(1))
            finl = tl.stream(20, 31, l_[:max(0, len(l_) - 16)] + fin0 + l_[max(0, len(l_) - 16):])
            print("final: left over", len(finl), file=sys.stderr)
        if i == 15 and not OPT.get("fin") and not f2: left = tl.stream(q0, 31, unp(IN(0, 2), lambda r: 144 + r) + unp(XR, lambda r: 128 + r)); assert not left
        if i == 15 and OPT.get("fin"):
            left = tl.stream(q0, OPT["fin"] - 1, unp(IN(0, 2), lambda r: 144 + r)); assert not left
            c3 = arrived("s3", [(0, 3)])
            left = tl.stream(OPT["fin"] - 1, 28, [W(vm="I3")] + c3[0]); assert not left
            q3 = at(tl, c3[0][-1]) + 1; tl.g[q3].vec += c3[1]; tl.g[q3].load += 2
            finl = tl.stream(q3 + 1, 31, unp(IN(0, 3), lambda r: 160 + r) + unp(XR, lambda r: 128 + r))
        if i >= OPT["gck"] and gm: gm = (tl.sched if OPT.get("gsched", 1) else tl.stream)(q0 if i == OPT["gck"] else 0, 31, gm)
        k.ext(tl.emit(0, 32, "x").ins)
        for g in spill: emit_grp(k, g)
    assert nU == len(UNITS)
    stamp(k, "send")
    print("g math left over", len(gm), file=sys.stderr)
    k.ext(gm)
    def padd(acc, tmp):
        for r in range(0, 16, 2): k.e(f"v_pk_add_f32 {V(acc+r,2)}, {V(acc+r,2)}, {V(tmp+r,2)}")
    if OPT.get("fin2"):
        k.ext(finl)
        for r in range(8, 16, 2): k.e(f"v_pk_add_f32 {V(S0+r,2)}, {V(S0+r,2)}, {V(TT(r),2)}")
        for r in range(8, 16, 2): k.e(f"v_pk_mul_f32 {V(S0+r,2)}, {V(S0+r,2)}, {V(G0+r,2)}")
        for v in range(2): k.e(f"ds_write_b128 v{10+v}, {V(S0+8+v*4,4)} offset:2048")
        for m in range(2): k.e(f"ds_read_b128 {V(152+m*4,4)}, v{18+m} offset:2048", tag="T1")
        for e_ in range(2):
            if e_: k.ext(xu[8:])
            k.wait(lgkm=f"T{e_}")
            for r in range(0, 8, 2): k.e(f"v_pk_add_f32 {V(128+8*e_+r,2)}, {V(128+8*e_+r,2)}, {V(144+8*e_+r,2)}")
            for r in range(4): k.e(f"v_cvt_pk_bf16_f32 v{176+4*e_+r}, v{128+8*e_+2*r}, v{129+8*e_+2*r}")
            k.e(f"buffer_store_dwordx4 {V(176+4*e_,4)}, v27, {SR(sOut)}, s{sXW if e_ else sOo} offen")
    else:
        if not OPT.get("fin"):
            k.wait(vm="I3")
            ck = arrived("s3", [(0, 3)]); k.ext(ck[0] + ck[1])
            stamp(k, "spolled")
            k.ext(unp(IN(0, 3), lambda r: 160 + r)); finx = []
        else:
            finx = [x for x in finl if int(list(x.writes)[0][1:]) < 144]; k.ext([x for x in finl if x not in finx])
        padd(144, 160); padd(S0, 144)
        for r in range(0, 16, 2): k.e(f"v_pk_mul_f32 {V(S0+r,2)}, {V(S0+r,2)}, {V(G0+r,2)}")
        for e_ in range(2):
            for v in range(2): k.e(f"ds_write_b128 v{10+v}, {V(S0+(e_*2+v)*4,4)} offset:{e_*2048}")
        for e_ in range(2):
            for m in range(2): k.e(f"ds_read_b128 {V(160+e_*8+m*4,4)}, v{18+m} offset:{e_*2048}", tag=f"T{e_}")
        k.ext(finx)
        for e_ in range(2):
            k.wait(lgkm=f"T{e_}")
            for r in range(0, 8, 2): k.e(f"v_pk_add_f32 {V(128+8*e_+r,2)}, {V(128+8*e_+r,2)}, {V(160+8*e_+r,2)}")
            for r in range(4): k.e(f"v_cvt_pk_bf16_f32 v{176+4*e_+r}, v{128+8*e_+2*r}, v{129+8*e_+2*r}")
            k.e(f"buffer_store_dwordx4 {V(176+4*e_,4)}, v27, {SR(sOut)}, s{sXW if e_ else sOo} offen {OPT.get('outf', '')}")
    z = Block(); z.name = "end"
    if OPT.get("encode") is not None:
        z.e("s_waitcnt vmcnt(0) lgkmcnt(0)"); stamp(z, "end")
        i0, i1 = (STAMPS[x] for x in OPT["encode"])
        fld = 72 if OPT.get("enccyc") else 73
        z.e(f"s_sub_u32 s92, s{fld+2*i1}, s{fld+2*i0}")
        if OPT.get("encx") is not None: z.e(f"s_and_b32 s3, s2, {OPT.get('encm', 7)}\ns_cmp_eq_u32 s3, {OPT['encx']}\ns_cselect_b32 s92, s92, 0")
        z.e("s_lshr_b32 s92, s92, 2" if OPT.get("enccyc") else "s_lshl_b32 s92, s92, 2")
        z.e(f"s_add_u32 s92, s92, 20000\nL_enc:\ns_sleep 1\ns_memrealtime s[98:99]\ns_waitcnt lgkmcnt(0)\ns_sub_u32 s98, s98, s73\ns_cmp_lt_u32 s98, s92\ns_cbranch_scc1 L_enc")
    elif OPT["stamp"]:
        z.e("s_waitcnt vmcnt(0) lgkmcnt(0)"); stamp(z, "end")
        z.e(f"s_load_dwordx2 s[96:97], s[0:1], 88\ns_waitcnt lgkmcnt(0)"); ptr_add(z, 96, 0x8000000 + 0x40000); srd_fin(z, 96, 0x40000)
        for i in range(20): z.e(f"v_mov_b32 v{36+i}, s{72+i}")
        z.e(f"s_lshl_b32 s92, s2, 2\ns_add_u32 s92, s92, s{sWave}\ns_lshl_b32 s92, s92, 7\nv_mov_b32 v2, s92\ns_mov_b64 exec, 1")
        for i in range(5): z.e(f"buffer_store_dwordx4 {V(36+4*i,4)}, v2, s[96:99], 0 offen offset:{16*i}")
    z.e("L_end:\ns_endpgm")
    fb = Block(); fb.name = "fb"
    fb.e(f"L_fallback:\ns_mov_b32 s{sFB}, 1\ns_waitcnt vmcnt(0) lgkmcnt(0)\ns_barrier\ns_branch L_restart")
    m0 = Block(); m0.name = "tm0"
    m0.e(f"L_truemax:\ns_mov_b32 s{sKo}, s{sW8k}\ns_mov_b32 s{sCnt}, 16")
    for t in range(4): m0.e(f"v_mov_b32 v{vNM+4*t}, 0xff800000")
    m0.e("s_waitcnt vmcnt(0) lgkmcnt(0)")
    m1 = Block(); m1.name = "tm1"
    m1.e("L_tm_loop:\ns_barrier")
    emit_grp(m1, dma_K(0, 0, "DK")); emit_grp(m1, dma_K(1, 0, "DK"))
    m1.e("s_waitcnt vmcnt(0)\ns_barrier")
    for g in range(8):
        m1.ext(kreads(g, 0, 0, "K0")); m1.e("s_waitcnt lgkmcnt(0)")
        for t in range(4): m1.ext(qk_chain(t, 0, "0"))
        for t in range(4):
            s0 = vS + 4 * t
            m1.e(f"v_max3_f32 v{vNM+4*t}, v{vNM+4*t}, v{s0}, v{s0+1}\nv_max3_f32 v{vNM+4*t}, v{vNM+4*t}, v{s0+2}, v{s0+3}")
    m1.e(f"s_sub_u32 s{sCnt}, s{sCnt}, 1\ns_cmp_lg_u32 s{sCnt}, 0\ns_cbranch_scc1 L_tm_loop")
    m2 = Block(); m2.name = "tm2"
    rowmax_finish(m2, lambda t: vNM + 4 * t)
    m2.e(f"s_mov_b32 s{sKo}, s{sW8k}\ns_barrier")
    emit_grp(m2, dma_K(0, 0, "DK")); emit_grp(m2, dma_K(1, 0, "DK"))
    m2.e(f"s_add_u32 s{sKo}, s{sKo}, 32768\ns_waitcnt vmcnt(0)\ns_barrier")
    m2.ext(kreads(0, 0, 0, "K0")); m2.e("s_waitcnt lgkmcnt(0)\ns_branch L_att_start")
    att = [l0, first, l1, l1b, even, odd, l1b, even, odd, l4, last, f]
    front = [b2, c] + PJ['F'] + [e]; frontS = [b2, c] + PJ['S'] + [e]
    vb = []
    finalize([[b_] + front + [e2] + att + [k, z], [b_] + frontS + [e2] + att + [fb] + frontS + [m0, m1, m1, m2] + att + [k, z], [b_] + front + [m0, m1]] + [[s] for s in SLOW], vb)
    for fr in (front, frontS): check_groups([x for bb in [b_] + fr + [e2] + att + [k, z] for x in bb.ins])
    for x in vb:
        if x[0].startswith("att") or x[0] in ("projF", "projS"): print("nop:", x, file=sys.stderr)
    cend = Block(); cend.e('L_code_end:')
    layout = [b_, b2, c] + PJ['S'] + [e, e2, l0, first, l1, l1b, even, odd, l4, last, f, k, z] + (SLOW[::-1] if OPT.get('slownear', 1) else []) + PJ['F'] + [cend, fb, m0, m1, m2] + ([] if OPT.get('slownear', 1) else SLOW)
    note = {id(b2): "set-up, first loads", id(c): "set-up under the first loads", id(PJ['S'][0]): "projection, odd ids (48 FFN columns)", id(PJ['F'][0]): "projection, even ids (64 FFN columns)",
            id(PJ['S'][2]): "Q and the rest of h; scores of the first 16 keys", id(PJ['F'][2]): "Q and the rest of h; scores of the first 16 keys", id(e2): "stand-in row maximum",
            id(first): "tile 0: scores and exponentials only", id(even): "tile pair: QK of the next tile beside PV of this one", id(last): "tiles 14 and 15, normalisation and O stores",
            id(f): "check of the stand-in maximum", id(k): "tail: g stages, then the four row strips", id(fb): "stand-in was unsafe: start again", id(m0): "true row maximum over all keys", id(SLOW[-1]): "bounded waits"}
    return kernel_head(KN) + "\n".join((f"; ---- {note[id(x)]}\n" if id(x) in note else "") + x.text() for x in layout) + "\n" + kernel_desc(KN, 512, 256)


DOC = """
;
; Workgroup (q block of 256 rows, head); each wave owns 64 rows.  All products use v_mfma_f32_16x16x32_bf16, transposed (D = [columns x rows]),
;  2. attention over 16 tiles of 128 keys, K/V staged by LDS-DMA.  exp2(s - m) uses as m the maximum over the row's first 16 keys, less 32
; partial tiles are recognised by the absence of an all-ones mark written earlier in the launch.  Every wait loop is bounded.
"""
def build():
    head = open("cdna_kernels/" + NAME + ".s.ref").read().split("; Override launch")[0]
    s = head + "; @launch grid=(256,1,1) block=(256,1,1) lds=163840\n" + '.amdgcn_target "amdgcn-amd-amdhsa--gfx950"\n' + DOC.lstrip("\n")
    plan_units()
    return s + gen_kernel()

if __name__ == "__main__":
    out = sys.argv[1] if len(sys.argv) > 1 else "cdna_kernels/" + NAME + ".s"
    for a in sys.argv[2:]:
        k, v = a.split("="); OPT[k] = eval(v)
    names = OPT.get("stamps", "p0,p4,projend,att0,loop,last,tail0,gend").split(",")
    STAMPS.update({n: i + 1 for i, n in enumerate(names)}); STAMPS["start"] = 0; STAMPS["end"] = 9
    open(out, "w").write(build())
```

```python
import sys, math, struct, re
sys.path.insert(0, "gen")
from asmgen import *

NAME = "recurrent_scan__mha_block_cached__glu_gated_swiglu__prompt"
KN = NAME + "_kernel"
WS_ST, WS_FH, WS_FO, WS_FG, WS_FS = 0, 0x8000, 0x10000, 0x18000, 0x20000
WS_B, WS_X = 0x200000, 0x2000000
BSTRIDE = 184 * 1024
LOG2E = 1.4426950408889634
OOB = 0x7ffffff0
def f32(x): return "0x%08x" % struct.unpack("<I", struct.pack("<f", x))[0]
OPT = dict(stamp=False, early=7, pollstage=3, polld=1, htrip=2, flagstage=0, osr=1, osg=4, fgstage=5, fsstage=11, lead=5, ramp=0, dl=-32, lmax=120, i3st=14, i3gap=3, s3lo=12, fin2=(20, 10), tq0=0, pa=.1, pb=.75, pc=.4, x2o=.15, x3a=.92, nh=3, nhS=4, sthiS=.45, pre="Q0 S G1", sthi=.2,
    sch=[(.05,'W1 r1'),(.6,'x1 W2 Q1'),('o',1,1.4,1.6),(0,'r2 G2'),(1.93,'A W3'),(2.25,'x2 W4 G3 Q2'),('o',2,3.05,3.25),(0,'r3 Q3 C'),(3.7,'x3 W5'),(4.5,'W6'),('o',3,4.6,4.9)], clrpos=(7, 5), asat=(-9, -9, -9, -9, 0, 0, 1, 1, 2, 2, 3, 3, 4, 4, 6, 5), bsat=(0, 0, 0, 0, 0, 2, 2, 3, 4, 6, 6, 7, 8, 10, 10, 11), gld=4, gck=7)

L_K, L_SP, L_V = 0, 65536, 98304
sX, sWQ, sW1, sW3, sK, sV, sB, sH, sWS, sDBG, sWO, sW2, sOut = range(4, 56, 4)
sHead, sQb, sWave, sW8k, sW4k, sXb, sKo, sVo, sCnt, sT, sT2, sWQo, sW13o, sBo, sFB, sW16k = range(56, 72)
sTr, sTc, sSp = 93, 94, 95
sTW, sT2W = 100, 101
sFs, sFv = 92, sOut + 2
vL16, vKA, vVA, vDK, vDV, vIDX, vT = 1, 2, 6, 14, 18, 20, 24
vS, vNM = 32, 48
def Q(t, ds): return 64 + (t * 4 + ds) * 4
def P(pb, kk, t): return 128 + pb * 64 + (t * 4 + kk) * 4
def O(dt, t): return (dt * 4 + t) * 4
def VF(b, kk): return (128 + b * 16 if b < 4 else 148 + b * 16) + kk * 4
aL, aONES = 192, 208
def KF(b, ds): return 212 + b * 16 + ds * 4
aCHK, aZ = 244, 248
vWQA, vW13A, vDQ, vD13, vXA, vDX = 24, 28, 32, 36, 40, 44

def SR(s): return f"s[{s}:{s+3}]"
def MF(d, a, bb, c): return Ins(f"v_mfma_f32_16x16x32_bf16 {d}, {a}, {bb}, {c}")
def II(txt, tag=None): return [Ins(x, tag=tag) for x in txt.split("\n") if x.strip()]
def srd_fin(b, d, nrec):
    b.e(f"s_and_b32 s{d+1}, s{d+1}, 0xffff\ns_mov_b32 s{d+2}, {nrec}\ns_mov_b32 s{d+3}, 0x20000")
def ptr_add(b, d, off): b.e(f"s_add_u32 s{d}, s{d}, {off}\ns_addc_u32 s{d+1}, s{d+1}, 0")

def stamp_ins(i):
    if not OPT["stamp"] or i is None: return []
    return II(f"s_waitcnt lgkmcnt(0)\ns_memtime s[96:97]\ns_memrealtime s[98:99]\ns_waitcnt lgkmcnt(0)\ns_mov_b32 s{72+2*i}, s96\ns_mov_b32 s{73+2*i}, s98")
_jit = [0]
def jitter(b, wave=False):
    if not OPT.get("jit"): return
    _jit[0] += 1; n = _jit[0]
    b.e(f"s_waitcnt lgkmcnt(0)\ns_memtime s[96:97]\ns_waitcnt lgkmcnt(0)\ns_lshr_b32 s96, s96, {4 if wave else 14}\ns_add_u32 s96, s96, s2\ns_mul_i32 s96, s96, 0x9e3779b1\ns_lshr_b32 s96, s96, 16\ns_mul_i32 s96, s96, {OPT['jit'] // (8 if wave else 1)}\ns_lshr_b32 s96, s96, 16\ns_add_u32 s96, s96, 1")
    b.e(f"L_jit{n}:\ns_sleep 1\ns_sub_u32 s96, s96, 1\ns_cmp_lg_u32 s96, 0\ns_cbranch_scc1 L_jit{n}")
STAMPS = {}
def stamp(b, name):
    b.ext(stamp_ins(STAMPS.get(name)))
    if name in ("karg", "projend", "last", "tail0", "s0", "s6", "s13"): jitter(b)
    if name in ("p0", "att0", "loop", "attend", "send") or re.fullmatch(r"[gs]\d+", name): jitter(b, True)

class Gap:
    def __init__(self, m): self.m = m; self.scal = []; self.vec = []; self.load = 0
def cost_of(ins): return 2 if (ins.kind == "trans" or ins.is_vmem) else (0 if ins.kind in ("salu", "wait", "sctl", "label") else 1)
def is_ds(x): return x.kind in ("dsread", "dswrite")
def dep(a, b): return bool(a.writes & (b.reads | b.writes)) or bool(a.reads & b.writes)
class TL:
    def __init__(self): self.g = []
    def add(self, m):
        gp = Gap(m); self.g.append(gp)
        if m.op.startswith("v_smfmac"): gp.load = 1
        if "32x32" in m.op: gp.load = -4
        return len(self.g) - 1
    def pen(self, i, ins):
        gp = self.g[i]; l = gp.load + cost_of(ins)
        if is_ds(ins) and any(x.is_vmem for x in gp.vec): l += OPT.get("vmpen", .5)
        if is_ds(ins):
            if any(is_ds(x) for x in gp.vec): l += 1
            if any(x.is_valu and dep(x, ins) for x in gp.vec): l += 2
        return l
    def vec_at(self, i, ins):
        gp = self.g[i]; k = len(gp.vec)
        if is_ds(ins) or ins.is_vmem:
            while k > 0 and gp.vec[k - 1].is_valu and not dep(gp.vec[k - 1], ins): k -= 1
        gp.vec.insert(k, ins); gp.load += cost_of(ins)
    def vec_in(self, lo, hi, items):
        extra = {i: 0 for i in range(lo, hi + 1)}
        cand = []
        for it in items:
            i = min(extra, key=lambda k: (max(self.pen(k, it) + extra[k], 2), self.pen(k, it) + extra[k] if not OPT.get("pack") else 0, k)); cand.append(i); extra[i] += 2
        cand.sort()
        for i, it in zip(cand, items): self.vec_at(i, it)
        return cand
    def scal_at(self, i, ins, later=True):
        while self.g[i].scal: i += 1 if later else -1
        self.g[i].scal.append(ins); return i
    def spread(self, lo, hi, groups):
        n = sum(len(g[1]) for g in groups); k = 0; prev = lo - 3
        for grp in groups:
            sc, ve, post = grp
            for x in ve: x.grp = grp; x.role = "vec"
            first = True
            for it in ve:
                tgt = lo + (hi - lo) * k // max(n - 1, 1); k += 1
                mn = prev + 1
                if first:
                    i = max(prev + 1, tgt - len(sc) - 1)
                    for x in sc: i = self.scal_at(i, x) + 1
                    mn = max(mn, i); first = False
                cands = [j for j in range(max(mn, tgt - 1), max(mn, tgt - 1) + 4) if j < len(self.g)]
                j = min(cands, key=lambda z: (self.g[z].load, abs(z - tgt)))
                self.vec_at(j, it); prev = j
            for x in post: prev = self.scal_at(prev + 1, x)
        return prev
    def stream(self, lo, hi, items, cap=2):
        i = lo; items = list(items)
        while items and i <= hi:
            it = items[0]; c = cost_of(it)
            if c == 0:
                i += 1
                while i <= hi and self.g[i].scal: i += 1
                if i > hi: break
                self.g[i].scal.append(it); items.pop(0); continue
            if self.pen(i, it) <= cap: self.vec_at(i, it); items.pop(0)
            else: i += 1
        return items
    def sched(self, lo, hi, items, look=70, lat=6):
        items = list(items); rw = {}; pos = {}
        for x in items:
            r, w = set(x.reads), set(x.writes)
            if x.waitfor is not None:
                for y in items:
                    if y.tag is not None and any(y.tag in t for t in x.waitfor.values()): r |= y.writes; w |= y.writes
                r |= getattr(x, "guards", set()); w |= getattr(x, "guards", set())
            if x.is_vmem: r.add("vm"); w.add("vm")
            if x.kind == "salu": r.add("scc"); w.add("scc")
            rw[id(x)] = (r, w)
        dp = lambda a, b: bool(rw[id(a)][1] & (rw[id(b)][0] | rw[id(b)][1])) or bool(rw[id(a)][0] & rw[id(b)][1])
        placed = []
        def ready(k, i):
            x = items[k]
            if any(dp(y, x) for y in items[:k]): return False
            for y in placed[-40:]:
                if not dp(y, x): continue
                d = 0
                if cost_of(x) == 0 or is_ds(x) or x.is_vmem: d = 1 if cost_of(y) > 0 or cost_of(x) == 0 else 0
                if x.waitfor is not None and is_ds(y): d = lat
                if (getattr(x, "dpp", False) or getattr(x, "permlane", False)) and y.is_valu: d = 2
                if i < pos[id(y)] + d: return False
            return True
        for i in range(lo, hi + 1):
            for want in (0, 2, 1, 1, 1, 1, 1, 1):
                for k in range(min(look, len(items))):
                    x = items[k]
                    if cost_of(x) != want: continue
                    if (self.g[i].scal if want == 0 else self.pen(i, x) > 2) or not ready(k, i): continue
                    if want == 0: self.g[i].scal.append(x)
                    else: self.vec_at(i, x)
                    pos[id(x)] = i; placed.append(x); items.pop(k); break
        return items
    def emit(self, lo, hi, name):
        b = Block(); b.name = name
        for gp in self.g[lo:hi]:
            if gp.m is not None: b.add(gp.m)
            b.ext(gp.scal); b.ext(gp.vec)
        return b

SLOW = []
def poll_check(name, vreg, load_txt, ready_cmp):
    inl = II(ready_cmp) + II(f"s_cbranch_scc0 L_spin_{name}\nL_back_{name}:")
    sl = Block(); sl.name = "spin" + name
    sl.e(f"L_spin_{name}:\ns_mov_b32 s3, 0x40000\nL_spin2_{name}:\ns_sleep {OPT.get('slp', 2)}\n{load_txt}\ns_waitcnt vmcnt(0)\ns_sub_u32 s3, s3, 1\ns_cmp_eq_u32 s3, 0\ns_cbranch_scc1 L_back_{name}")
    sl.e(ready_cmp); sl.e(f"s_cbranch_scc0 L_spin2_{name}\ns_branch L_back_{name}")
    SLOW.append(sl)
    return inl

def dma_K(half, buf, tag):
    return (II(f"s_add_u32 m0, s{sW8k}, {L_K + buf*32768 + half*4096}"),
            [Ins(f"buffer_load_dwordx4 v{vDK+p}, {SR(sK)}, s{sKo} offen offset:{p*1024} lds", tag=tag) for p in range(4)],
            II(f"s_add_u32 s{sKo}, s{sKo}, {4096 if half == 0 else 28672}"))
def dma_V(half, buf, tag):
    return (II(f"s_add_u32 m0, s{sW8k}, {L_V + buf*32768 + half*4096}"),
            [Ins(f"buffer_load_dwordx4 v{vDV+(p&1)}, {SR(sV)}, s{sVo} offen offset:{p*1024} lds", tag=tag) for p in range(4)],
            II(f"s_add_u32 s{sVo}, s{sVo}, {4096 if half == 0 else 28672}"))
def emit_grp(b, d): b.ext(d[0]); b.ext(d[1]); b.ext(d[2])
def check_groups(trace):
    last = {}; cnt = {}
    for x in trace:
        g = getattr(x, "grp", None)
        if g is not None and x.role == "vec":
            for r in x.reads:
                ws_ = [sc for sc in g[0] if r in sc.writes]
                if ws_: assert last.get(r) is ws_[-1], ("group scalar clobbered", x.text, last.get(r))
            for sc in g[2]:
                for r in sc.writes & x.reads:
                    key = (id(g), r)
                    if x is g[1][0]: cnt[key] = last.get(r)
                    assert last.get(r) is cnt[key] and (len(g[1]) == 1 or last.get(r) is not sc), ("post scalar order", x.text)
        for r in x.writes:
            if r[0] == "s" or r == "m0": last[r] = x
def kreads(g, buf, fb, tag):
    return [Ins(f"ds_read_b128 {A(KF(fb,ds),4)}, v{vKA+ds} offset:{buf*32768+g*4096}", tag=tag) for ds in range(4)]
def vreads(dt, buf, fb, tag):
    return [Ins(f"ds_read_b64_tr_b16 {A(VF(fb,kk)+2*kh,2)}, v{vVA+dt} offset:{buf*32768+(32*kk+16*kh)*256}", tag=tag) for kk in range(4) for kh in range(2)]
def snake(t): return range(4) if (t % 2 == 0 or OPT.get("nosnake")) else range(3, -1, -1)
def qk_chain(t, fb, c0):
    d = V(vS + 4 * t, 4)
    return [MF(d, A(KF(fb, ds), 4), V(Q(t, ds), 4), c0 if n == 0 else d) for n, ds in enumerate(snake(t))]
def pv_chain(dt, t, fb, pb):
    d = A(O(dt, t), 4)
    return [MF(d, A(VF(fb, kk), 4), V(P(pb, kk, t), 4), d) for kk in snake(t)]
def rs(t, kp, pb): return Ins(f"v_smfmac_f32_16x16x64_bf16 {A(aL+4*t,4)}, {A(aONES,4)}, {V(P(pb,2*kp,t),8)}, v{vIDX}")

vDA, vB1, vPoll, vPA = 14, 30, 29, 23
vRAs, vRB, vRAg = 6, (12, 13, 20), 48
sM, sAo, sWOo, sW2o = sW4k, sT2, sWQo, sW13o
sBg, sQ0, sBt = sXb, sW1 + 3, sKo
sBs = [sDBG, sDBG + 1, sDBG + 2, sDBG + 3]
sXP = sH
sXW, sXR, sOo, sFl2 = sW16k, 92, sQ0, 99
sGk = list(range(sWQ, sWQ + 7))
sHp = list(range(sW3, sW3 + 4))
UNITS = []; USEQ = {}; RD = {}
def plan_units():
    for n in range(-1, 22):
        r = [("Ag", n + 1), ("Bg", n + 1)] if n < 6 else [("Bs", n - 6)]
        r = [("As", a) for a in range(16) if OPT["asat"][a] == n] + r if n == 6 else r + [("As", a) for a in range(16) if OPT["asat"][a] == n]
        RD[n] = list(range(len(UNITS), len(UNITS) + len(r))); UNITS.extend(r)
    RD[22] = []
    USEQ.update({u: n for n, u in enumerate(UNITS)})
    for a in range(16): assert OPT["asat"][a] <= 6 + a // 4
    assert OPT["asat"][14] >= 6 and max(OPT["asat"]) <= 9
def udma(n):
    kind, i = UNITS[n] if isinstance(n, int) else n
    m0 = f"s_add_u32 m0, s{sM}, {uslot((kind, i))*16384}\n"; tag = f"U{n}" if isinstance(n, int) else f"E{i}"
    rot = OPT.get("rot", 1)
    if kind[0] == "A":
        sr, so = (sW2, sW2o) if kind == "Ag" else (sWO, sWOo)
        if kind == "As": ad = f"s_xor_b32 s{sAo}, s{so}, {i*65536}"
        else: ad = f"s_lshl_b32 s{sAo}, s{sGk[i]}, 5\ns_add_u32 s{sAo}, s{sAo}, s{so}"
        return (II(m0 + ad),
                [Ins(f"buffer_load_dwordx4 v{vDA+p}, {SR(sr)}, s{sAo} offen offset:{p*1024} lds", tag=tag) for p in range(4)], [])
    if kind == "Bg":
        return (II(m0 + f"s_add_u32 s{sBt}, s{sBg}, s{sGk[i]}"),
                [Ins(f"buffer_load_dwordx4 v{vL16 if p < 2 else vB1}, {SR(sB)}, s{sBt} offen offset:{p*1024} sc1 lds", tag=tag) for p in range(4)], [])
    bs, hp = sBs[(1, 2, 3, 0)[i >> 2]], sHp[i & 3]
    return (II(m0 + f"s_add_u32 s{sBt}, s{bs}, s{hp}"),
            [Ins(f"buffer_load_dwordx4 v{vL16}, {SR(sB)}, s{sBt} offen offset:{p*1024} sc1 lds", tag=tag) for p in range(4)], [])
XSLOT = {("As", 0): 0, ("As", 1): 1, ("As", 2): 4, ("As", 3): 5}
def uslot(u): return XSLOT[u] if u not in USEQ else USEQ[u] % 10
def uloc(u): sl = uslot(u); return sl // 4, (sl % 4) * 16384
_first = list(range(160, 192, 4)) + [0, 4, 16, 20, 32, 36, 48, 52]
ASREG = _first + [r for r in range(0, 256, 4) if r not in _first]
assert ASREG[56:60] == [224, 228, 232, 236]
def AS(v, ks): return ASREG[ks * 2 + v]
def AG(i, v, ks): return ("v", 32 + (v * 2 + ks) * 4) if i % 2 == 0 else ("a", 224 + (v * 2 + ks) * 4)
def BF(n, m): return 64 + (n & 1) * 64 + m * 4
def ACG(j, v): return 192 + (j * 2 + v) * 4
def ACS(q, v): return 32 + (q * 2 + v) * 4
def ureads(u, vRAs=vRAs):
    kind, i = UNITS[u] if isinstance(u, int) else u
    st, o = uloc((kind, i))
    if kind == "As":
        return [Ins(f"ds_read_b64_tr_b16 {A(AS(v,2*i+ks)+2*kh,2)}, v{vRAs+2*st+v} offset:{o+ks*8192+kh*4096}", tag="R") for ks in range(2) for v in range(2) for kh in range(2)]
    if kind == "Ag":
        return [Ins(f"ds_read_b64_tr_b16 {R(AG(i,v,ks)[0], AG(i,v,ks)[1]+2*kh, 2)}, v{vRAg+4*st+2*kh+v} offset:{o+ks*8192}", tag="R") for v in range(2) for ks in range(2) for kh in range(2)]
    n = i if kind == "Bg" else 7 + i
    return [Ins(f"ds_read_b128 {V(BF(n,m),4)}, v{vRB[st]} offset:{o+m*1024}", tag="R") for m in range(16)]
OSTORES = []
EARLY = []

def gen_attention(l0items):
    tl = TL()
    phases = [-1, 0, 1, 2, 3, 15]
    VPOS = OPT.get("vmpos", (5, 13, 21, 29))
    start = {}; stepb = {}
    for p in phases:
        start[p] = len(tl.g)
        if p == 15:
            def qk(t, s):
                d = V(vS + 4 * (2 * (s & 1) + (t & 1)), 4)
                for n, ds in enumerate(snake(t)): tl.add(MF(d, A(KF(s & 1, ds), 4), V(Q(t, ds), 4), (V(vNM + 4 * t, 4) if not OPT.get("nm0") else "0") if n == 0 else d))
            def pv(dt, t, vs, pb, fwd):
                d = A(O(dt, t), 4)
                for kk in (range(4) if fwd else range(3, -1, -1)): tl.add(MF(d, A(VF(vs, kk), 4), V(P(pb, kk, t), 4), d))
            FR = [(i, t) for h_ in (0, 2) for i in range(4) for t in (h_, h_ + 1)]
            ost = lambda n: 128 + (FR[n][1] * 4 + FR[n][0]) * 4
            mk = lambda n: MF(A(aCHK, 4), A(aZ, 4), V(ost(n), 4), "0" if n == 0 else A(aCHK, 4))
            xb = {}; cdone = {}; chkpos = {}
            def chk(n): chkpos[n] = tl.add(mk(n))
            v3 = lambda dt: (0, 4, 1, 5)[dt & 3]
            for s in range(8):
                xb[s] = len(tl.g); qk(0, s); qk(1, s)
                for t in range(4): pv(s, t, s & 1, 0, 1 - (t & 1))
                tl.add(rs(s >> 1, s & 1, 0))
            for s in range(8):
                xb[8 + s] = len(tl.g); qk(2, s); qk(3, s)
                pv(s, 0, s & 1, 1, 1)
                if s & 1: cdone[s - 1] = len(tl.g) - 1
                pv(s, 1, s & 1, 1, 0)
                if s & 1: cdone[s] = len(tl.g) - 1
                if s == 0:
                    for t in (0, 1): tl.add(rs(t, 0, 1)); tl.add(rs(t, 1, 1))
                if s >= 4: chk(s - 4)
            for n in range(8, 16):
                i, t = FR[n]; xb[8 + n] = len(tl.g)
                if i == 0: tl.add(rs(t, 0, 1)); tl.add(rs(t, 1, 1))
                a_, b_ = (2 * i, 2 * i + 1) if t == 2 else (2 * i + 1, 2 * i)
                pv(a_, t, v3(a_), 1, 1); pv(b_, t, v3(b_), 1, 0); cdone[n] = len(tl.g) - 1
                chk(n - 4)
            xb[24] = len(tl.g)
            continue
        for s in range(8):
            stepb[p, s] = len(tl.g)
            if p != 15:
                for t in range(4):
                    for m in qk_chain(t, s & 1, V(vNM + 4 * t, 4) if not OPT.get("nm0") else "0"): tl.add(m)
            if p == -1:
                if OPT.get("bO"): tl.add(Ins(f"v_mfma_f32_32x32x16_bf16 {A(16*s,16)}, {A(aONES,4)}, v[252:255], 0"))
                else: tl.add(Ins(f"v_mfma_f32_32x32x16_bf16 {A(16*s,16)}, {A(aZ,4)}, {A(aZ,4)}, 0"))
                if s == 0: tl.add(Ins(f"v_mfma_f32_32x32x16_bf16 {A(aL,16)}, {A(aZ,4)}, {A(aZ,4)}, 0"))
            else:
                if OPT.get("rsadj"):
                    tl_ = s >> 1; order = [t for t in range(4) if t != tl_] + [tl_]
                    for n_, t in enumerate(order):
                        d = A(O(s, t), 4); fwd = (n_ + s) % 2 == 0
                        for kk in (range(4) if fwd else range(3, -1, -1)): tl.add(MF(d, A(VF(s & 1, kk), 4), V(P(p & 1, kk, t), 4), d))
                else:
                    for t in range(4):
                        for m in pv_chain(s, t, s & 1, p & 1): tl.add(m)
                if p != 15:
                    tl.add(rs(s >> 1, s & 1, p & 1))
    end = len(tl.g)
    nxt = {p: (start[phases[i + 1]] if i + 1 < len(phases) else end) for i, p in enumerate(phases)}
    for p in phases:
        if p == 15: continue
        pb = (p + 1) & 1
        for s in range(8):
            b0 = stepb[p, s]; nb = stepb[p, s + 1] if s < 7 else nxt[p]
            for t in range(4):
                sr = vS + 4 * t
                ex = [Ins(f"v_exp_f32 v{sr+r}, v{sr+r}") for r in range(4)]
                pd = P(pb, s >> 1, t) + 2 * (s & 1)
                cv = [Ins(f"v_cvt_pk_bf16_f32 v{pd+h}, v{sr+2*h}, v{sr+2*h+1}") for h in range(2)]
                if p >= 0:
                    o = b0 + 8 * t + (1 if t == 3 else 0)
                    pe = [o + 8 + 2 * r for r in range(4)]; pc = [o + 11, o + 15]
                else:
                    pe = [b0 + 4 * t + 8 + r for r in range(4)]; pc = [b0 + 4 * t + 10, b0 + 4 * t + 12]
                    if s == 7:
                        pe = [min(x, nb - 1) for x in pe]; pc = [min(x, nb - 1) for x in pc]
                        if t == 3: pe = [nb + 0, nb + 2, nb + 4, nb + 6]; pc = [nb + 3, nb + 7]
                seq = sorted([(pe[0],0,ex[0]),(pe[1],1,ex[1]),(pc[0],3 if p < 0 else 2,cv[0]),(pe[2],2.5,ex[2]),(pe[3],4,ex[3]),(pc[1],5,cv[1])], key=lambda z: (z[0], z[1]))
                for pos, _, ins in seq: tl.vec_at(pos, ins)
    for p in phases:
        if p == 15: continue
        if 0 <= p < 15:
            grps = [dma_K(0, p & 1, "DK"), dma_K(1, p & 1, "DK"), dma_V(0, (p + 1) & 1, "DV"), dma_V(1, (p + 1) & 1, "DV")]
            for s in range(8):
                tl.scal_at(stepb[p, s] + 15, W(lgkm=f"V{s}"), later=False)
                tl.scal_at(stepb[p, s] + 31, W(lgkm=f"K{(s+1)&7}"), later=False)
            if OPT.get("kvtouch", 1): grps.append(([], II(f"buffer_load_dword a252, v28, {SR(sK if p % 2 == 0 else sV)}, s{sKo if p % 2 == 0 else sVo} offen"), []))
            so, sr = (sTW, sWO) if p % 2 == 0 else (sT2W, sW2)
            grps.append((II(f"s_cmp_le_u32 s{sCnt}, {OPT.get('wtrip', 2)}\ns_cselect_b32 s{sT}, s{so}, 0x40000000"), II(f"buffer_load_dword a252, v{30 if p % 2 == 0 else 29}, {SR(sr)}, s{sT} offen"),
                         II(f"s_add_u32 s{so}, s{so}, {0x4000 if (p % 2 == 0 and OPT.get('wo2', 1)) else 0x2000}\ns_and_b32 s{so}, s{so}, {0x7fff if p % 2 == 0 else 0x3fff}")))
            if p % 2 == 0 and OPT.get("cpl", 1): grps.append(([], II("global_load_dword a252, v[24:25], off"), []))
            if p % 2 == 1:
                grps.append(([], II(f"buffer_store_dword v22, v21, {SR(sWS)}, 0 offen sc1"), []))
                tl.vec_at(stepb[p, 7] + 3, Ins("v_add_u32 v22, 1, v22"))
            clr = II(f"buffer_store_dwordx4 {A(aCHK,4)}, v{vL16}, {SR(sXP)}, s{sT2} offen offset:{1024*(p&1)} sc1")
            if OPT.get("clrpos") is not None: tl.vec_at(stepb[p, OPT["clrpos"][0]] + OPT["clrpos"][1], clr[0])
            elif not OPT.get("noclr"): grps.append(([], clr, []))
            if p % 2 == 0:
                q = stepb[p, 0] + 6
                for x in II(f"s_cmp_lt_u32 s{sCnt}, 5\ns_subb_u32 s3, s{sCnt}, 0\ns_and_b32 s{sT2}, s3, 3\ns_lshl_b32 s{sT2}, s{sT2}, 3\ns_or_b32 s{sT2}, s{sT2}, s3\ns_lshl_b32 s{sT2}, s{sT2}, 13\ns_xor_b32 s{sT2}, s{sT2}, s{sXR}\ns_cmp_gt_u32 s{sCnt}, 1\ns_cselect_b32 s{sT2}, s{sT2}, 0x40000000"):
                    q2 = tl.scal_at(q, x); assert q2 == q; q += 1
            if p % 2 == 0 and OPT.get("otouch"):
                grps.append((II(f"s_sub_u32 s3, s{sCnt}, {OPT['otouch']}\ns_mul_i32 s{sT}, s3, {BSTRIDE}\ns_add_u32 s{sT}, s{sT}, s{sBo}\ns_cmp_lt_u32 s3, 4\ns_cselect_b32 s{sT}, s{sT}, 0x40000000"), II(f"buffer_load_dword a252, v26, {SR(sB)}, s{sT} offen"), []))
            if p % 2 == 1 and OPT.get("htouch", 1):
                grps.append((II(f"s_cmp_eq_u32 s{sCnt}, {OPT.get('htrip', 1)}\ns_cselect_b32 s{sT}, s{sBg}, 0x40000000"), II(f"buffer_load_dword a252, v27, {SR(sB)}, s{sT} offen"), []))
            k = 0
            for grp in grps:
                for j, x in enumerate(grp[1]):
                    gi = stepb[p, k // len(VPOS)] + VPOS[k % len(VPOS)]; k += 1
                    if j == 0:
                        q = gi
                        for y in reversed(grp[0]):
                            q2 = tl.scal_at(q - 1, y, later=False); assert len(grp[0]) == 1 or q2 == q - 1; q = q2
                    tl.vec_at(gi, x); x.grp = grp; x.role = "vec"
                for x in grp[2]: gi = tl.scal_at(gi + 1, x)
            assert gi < stepb[p, 7]
            e_ = stepb[p, 7]
            if p % 2 == 1:
                tl.scal_at(e_ + 29, Ins(f"s_sub_u32 s{sCnt}, s{sCnt}, 1")); tl.scal_at(e_ + 30, Ins(f"s_cmp_lg_u32 s{sCnt}, 0")); tl.scal_at(e_ + 32, Ins("s_cbranch_scc1 L_att_loop"))
        for s in range(8):
            b0 = stepb[p, s]; nb = stepb[p, s + 1] if s < 7 else nxt[p]
            ns, npz = (s + 1) & 7, (p + 1 if s == 7 else p)
            if s == 7:
                i = tl.scal_at(b0 + (5 if p >= 0 else 4), W(lgkm=["V7", "K7"], vm=["DK", "DV"]))
                if not (OPT.get("nobar") and p >= 0): tl.scal_at(i + 1, Ins("s_barrier"))
            if p >= 0:
                kr = kreads(ns, (npz + 1) & 1, ns & 1, f"K{ns}"); vr = vreads(ns, npz & 1, ns & 1, f"V{ns}")
                free = [o for o in range(7 if s == 7 else 1, 32, 2) if not any(x.is_vmem for x in tl.g[b0 + o].vec)]
                assert len(free) >= 12
                for x, o in zip(kr + vr, free): tl.vec_at(b0 + o, x)
            else:
                tl.vec_in(b0 + 6, b0 + 10, kreads(ns, (npz + 1) & 1, ns & 1, f"K{ns}"))
                if s == 7: tl.vec_in(b0 + 10, nb - 1, vreads(0, 0, 0, "V0"))
                tl.scal_at(nb - 1, W(lgkm=f"K{ns}"), later=False)
    rot = OPT.get("rot", 1)
    sc = f"""s_add_u32 s{sXP}, s{sWS}, {WS_X}
s_addc_u32 s{sXP+1}, s{sWS+1}, 0
s_mov_b32 s{sXP+2}, 0x1000000
s_lshl_b32 s{sT}, s{sTr}, 2
s_add_u32 s{sT}, s{sT}, s{sTc}
s_lshl_b32 s{sT}, s{sT}, 2
s_add_u32 s{sT}, s{sT}, s{sSp}
s_lshl_b32 s{sT}, s{sT}, 16
s_lshl_b32 s{sXR}, s{sWave}, 11
s_add_u32 s{sXR}, s{sXR}, s{sT}
"""
    sc += f"""s_lshl_b32 s{sT}, s{sTc}, 8
s_lshl_b32 s{sWOo}, s{sWave}, 14
s_add_u32 s{sWOo}, s{sWOo}, s{sT}
s_mul_i32 s{sW2o}, s{sSp}, {448*1024}
s_add_u32 s{sW2o}, s{sW2o}, s{sWOo}
s_lshl_b32 s{sT}, s{sSp}, 20
s_add_u32 s{sWOo}, s{sWOo}, s{sT}
s_lshr_b32 s{sQ0}, s{sTr}, 1
s_lshl_b32 s{sQ0}, s{sQ0}, 2
s_and_b32 s{sT}, s{sTr}, 1
s_add_u32 s{sQ0}, s{sQ0}, s{sT}
s_lshl_b32 s{sQ0}, s{sQ0}, 2
s_xor_b32 s{sT}, s{sWave}, s{sSp}
s_and_b32 s{sT2}, s{sT}, 2
s_add_u32 s{sT}, s{sT}, s{sT2}
s_lshl_b32 s{sT}, s{sT}, 1
s_add_u32 s{sT}, s{sT}, s{sQ0}
s_mul_i32 s{sBg}, s{sT}, {BSTRIDE}
s_mul_i32 s{sT}, s{sSp}, {14*1024}
s_add_u32 s{sT}, s{sT}, {128*1024}
s_add_u32 s{sBg}, s{sBg}, s{sT}
s_lshl_b32 s{sT}, s{sHead}, 12
s_add_u32 s{sBo}, s{sBo}, s{sT}
s_mul_i32 s{sGk[0]}, s{sTc}, {4096*rot}
s_mul_i32 s{sHp[0]}, s{sTc}, {8192*rot}
s_lshl_b32 s{sT2}, s{sHp[0]}, 5
s_xor_b32 s{sWOo}, s{sWOo}, s{sT2}
"""
    for i in range(1, 7): sc += f"s_add_u32 s{sGk[i]}, s{sGk[i-1]}, 2048\ns_cmp_eq_u32 s{sGk[i]}, {7*2048}\ns_cselect_b32 s{sGk[i]}, 0, s{sGk[i]}\n"
    for i in range(1, 4): sc += f"s_xor_b32 s{sHp[i]}, s{sHp[0]}, {8192*i}\n"
    sc += f"""s_lshr_b32 s{sT}, s{sWave}, 1
s_mul_i32 s{sT}, s{sT}, {BSTRIDE}
s_and_b32 s3, s{sWave}, 1
s_lshl_b32 s3, s3, 12
s_add_u32 s3, s3, s{sT}
s_lshl_b32 s{sT}, s{sSp}, 15
s_add_u32 s3, s3, s{sT}
"""
    for lam in (3, 2, 1, 0):
        sc += f"s_xor_b32 s{sT}, s{sSp}, {lam}\ns_and_b32 s{sT2}, s{sT}, 2\ns_add_u32 s{sT}, s{sT}, s{sT2}\ns_lshl_b32 s{sT}, s{sT}, 1\ns_add_u32 s{sT}, s{sT}, s{sQ0}\ns_mul_i32 s{sBs[lam]}, s{sT}, {BSTRIDE}\ns_add_u32 s{sBs[lam]}, s{sBs[lam]}, s3\n"
    sc += f"""s_lshl_b32 s{sOo}, s{sT}, 14
s_lshl_b32 s{sT}, s{sTc}, 8
s_add_u32 s{sOo}, s{sOo}, s{sT}
s_lshl_b32 s{sT}, s{sWave}, 6
s_add_u32 s{sOo}, s{sOo}, s{sT}
s_add_u32 s{sXW}, s{sOo}, 16384
"""
    if OPT.get("noBg"): sc += f"s_mov_b32 s{sBg}, 0x40000000\n"
    if OPT.get("noOS"): sc += f"s_mov_b32 s{sBo}, 0x40000000\n"
    left = tl.sched(start[-1], nxt[-1] - 1, l0items + II(sc), look=200)
    print("first phase: left over", len(left), file=sys.stderr)
    tl.g[nxt[-1] - 1].vec += left
    T = vT
    for x in range(16):
        s_ = x & 7; b0, nb = xb[x], xb[x + 1]
        for h_ in range(2):
            t = (x >> 3) * 2 + h_; sr = vS + 4 * (2 * (s_ & 1) + h_); pd = P(1, s_ >> 1, t) + 2 * (s_ & 1); o = (nb if x >= 8 else b0 + 16) if h_ else b0 + 8
            for r in range(4): tl.vec_at(o + 2 * r, Ins(f"v_exp_f32 v{sr+r}, v{sr+r}"))
            for h in range(2): tl.vec_at(o + 3 + 4 * h, Ins(f"v_cvt_pk_bf16_f32 v{pd+h}, v{sr+2*h}, v{sr+2*h+1}"))
    for x in range(16):
        tl.scal_at(xb[x] + 7, W(lgkm=f"V{x}"))
        if x < 15: tl.scal_at(xb[x + 1] - 1, W(lgkm=f"K{x+1}"))
    for x in range(16, 24, 2): tl.scal_at(xb[x] - 1, W(lgkm=f"V{x}"))
    tl.scal_at(xb[4] + 8, W(vm="E1")); tl.scal_at(xb[4] + 9, Ins("s_barrier"))
    tl.scal_at(xb[7] + 8, W(vm=["DV", "E3"], lgkm="R")); tl.scal_at(xb[7] + 9, Ins("s_barrier"))
    tl.scal_at(xb[15] + 8, W(lgkm="R")); tl.scal_at(xb[15] + 9, Ins("s_barrier"))
    ld1 = f"buffer_load_dword v{vPoll}, v23, {SR(sWS)}, 0 offen sc1"
    chk1 = poll_check("h", vPoll, ld1, f"v_cmp_gt_u32 vcc, v31, v{vPoll}\ns_nop 0\ns_cmp_eq_u64 vcc, 0")
    def put(grps, slots):
        slots = list(slots); prev = slots[0] - 5
        for g in grps:
            for x in g[1]:
                gi = slots.pop(0)
                if x is g[1][0] and g[0]:
                    free = [q for q in range(max(prev + 1, gi - 5), gi) if not tl.g[q].scal][-len(g[0]):]
                    free = sorted(free + [gi - 1] * (len(g[0]) - len(free)))
                    for y, q in zip(g[0], free): tl.g[q].scal.append(y)
                tl.vec_at(gi, x); x.grp = g; x.role = "vec"; prev = gi
            for y in g[2]: tl.scal_at(gi + 1, y)
    assert [UNITS[u][0] for u in range(7)] == ["Ag", "Bg", "Ag", "Bg", "As", "As", "Ag"]
    sl = [xb[x] + o for x in range(8) for o in (1, 5, 13, 21)]
    put([dma_V(0, 1, "DV"), udma(("As", 0)), udma(("As", 1)), dma_V(1, 1, "DV"), udma(("As", 2)), udma(("As", 3)), ([], [Ins(ld1, tag="C1")], [])], sl[1:])
    gp = tl.g[xb[9] + 4]; gp.vec += [W(vm="C1")] + chk1; gp.load += 1
    put([udma(0), udma(6), udma(1)], [xb[7] + 13, xb[7] + 17, xb[7] + 21, xb[8] + 1, xb[8] + 5, xb[8] + 9, xb[8] + 13, xb[9] + 1, xb[9] + 5, xb[9] + 9, xb[9] + 13, xb[10] + 1])
    EARLY[:] = [0, 1, 6] + [2, 3, 4, 5][:OPT.get("e3", 4)]
    put([udma(u) for u in EARLY[3:]], [xb[x] + 6 for x in range(16, 24)] if len(EARLY) <= 5 else [xb[x] + o for x in range(16, 24) for o in ((1, 5) if x == 16 else (0, 6))])
    su = II(f"""v_bfe_u32 v{T}, v0, 4, 2
v_mul_u32_u24 v{T}, 768, v{T}
v_add_u32 v{vDA}, v{vDV}, v{T}
v_add_u32 v{vDA+1}, v{vDV+1}, v{T}
v_add_u32 v{vDA+1}, 3072, v{vDA+1}
v_add_u32 v{vDA+2}, 6144, v{vDA}
v_add_u32 v{vDA+3}, 6144, v{vDA+1}
v_add_u32 v{vB1}, {BSTRIDE-2048}, v{vL16}""")
    su2 = II(f"""s_lshl_b32 s{sT}, s{sWave}, 6
s_or_b32 s{sT}, s{sT}, {L_V}
v_xor_b32 v25, s{sT}, v{vVA}
v_xor_b32 v26, s{sT}, v{vVA+1}
v_add_u32 v27, 0x10000, v25
v_add_u32 v28, 0x10000, v26""")
    for n in range(16):
        i, t = FR[n]
        OSTORES.append((II(f"s_add_u32 s{sCnt}, s{sBo}, {t*BSTRIDE}"),
                        [Ins(f"buffer_store_dwordx4 {V(ost(n),4)}, v{vL16}, {SR(sB)}, s{sCnt} offen offset:{1024*i} sc1", tag="OS")], []))
    ospos = {}
    for n in range(13):
        ospos[n] = xb[11 + n] + (OPT.get("os2", 9) if n < 5 else (9, 3, 2)[min(n - 5, 2)]); put([OSTORES.pop(0)], [ospos[n]])
    for x in range(15):
        nx = x + 1; b0, nb = xb[x], xb[nx]
        if x < 8:
            kr = kreads(nx & 7, 1, nx & 1, f"K{nx}"); vr = vreads(nx & 7, nx >> 3, nx & 1, f"V{nx}")
            if x == 0: tl.vec_in(b0 + 3, nb - 5, kr); tl.vec_in(b0 + 9, nb + 2, vr)
            elif x < 7: tl.vec_in(b0 + 3, nb - 2, kr + vr)
            else: tl.vec_in(b0, b0 + 7, kr); tl.vec_in(b0 + 11, nb + 3, vr)
        else:
            tl.vec_in(b0 + 3, b0 + 11, kreads(nx & 7, 1, nx & 1, f"K{nx}"))
            tl.vec_in(b0 + 8, nb + 2, vreads(nx & 7, 1, nx & 1, f"V{nx}"))
    for i in range(4):
        r = vreads(2 * i, 1, v3(2 * i), f"V{16+2*i}") + vreads(2 * i + 1, 1, v3(2 * i + 1), f"V{16+2*i}")
        tl.vec_in(xb[15] + 3 if i == 0 else xb[14 + 2 * i], xb[16 + 2 * i] - 3, r)
    left = tl.stream(xb[0], xb[1] + 4, su, cap=3); assert not left
    left = tl.stream(xb[2], xb[4], su2); assert not left
    tl.vec_in(xb[4] + 10, xb[7] + 1, ureads(("As", 0), 25) + ureads(("As", 1), 25))
    vRL = vNM
    def lr(t): return II(f"v_accvgpr_read_b32 v{vRL+4+t}, a{aL+4*t}\nv_accvgpr_read_b32 v{vRL+t}, a{aL+4*t+1}\nv_add_f32 v{vRL+4+t}, v{vRL+4+t}, v{vRL+t}\nv_rcp_f32 v{vRL+t}, v{vRL+4+t}" + (f"\nv_mul_f32 v{80+t}, {f32(-1.5 * 2.0 ** OPT['bO'])}, v{vRL+t}" if OPT.get("bO") else ""))
    left = tl.stream(xb[9] + 4, xb[10] - 1, lr(0) + lr(1), cap=4); assert not left
    where = lambda y: max(q for q, gp in enumerate(tl.g) if any(x is y for x in gp.vec))
    lo = xb[10]; tail_ = []
    for n in range(16):
        i, t = FR[n]; o = ost(n); tb = 64 + 8 * (n & 1)
        ar = [(k, O(2 * i + (k >> 2), t) + (k & 3)) for k in range(8)]
        if t == 3: ar = ar[4:] + ar[:4]
        items = (lr(t) if n in (8, 9) else []) + II("\n".join(f"v_accvgpr_read_b32 v{tb+k}, a{a_}" for k, a_ in ar))
        items += II("\n".join((f"v_fma_f32 v{tb+k}, v{tb+k}, v{vRL+t}, v{80+t}" if OPT.get("bO") else f"v_mul_f32 v{tb+k}, v{tb+k}, v{vRL+t}") for k, a_ in ar))
        items += II("\n".join(f"v_cvt_pk_bf16_f32 v{o+k}, v{tb+2*k}, v{tb+2*k+1}" for k in range(4)))
        lo = max(lo, cdone[n] + 2)
        if tail_ or lo >= end: tail_ += items; continue
        hi = min(ospos.get(n, end), chkpos.get(n, end + 1) - 1) - 1
        hi2 = min(hi, lo + (OPT.get("epspan", 17) if n < 6 else OPT.get("epspan3", 7)))
        for cap in (2, 3, 4, 5, 6, 7, 8):
            room = sum(max(0, cap - tl.g[q].load) for q in range(lo, hi2 + 1) if not any(x.is_vmem for x in tl.g[q].vec))
            if room >= len(items) + 2: break
        blocked = [q for q in range(lo, hi + 1) if any(x.is_vmem for x in tl.g[q].vec)]
        for q in blocked: tl.g[q].load += 10
        left = tl.stream(lo, hi, items, cap=cap)
        for q in blocked: tl.g[q].load -= 10
        if left: assert n >= 13, n; tail_ += left
        else: lo = where(items[-1])
        if n in (1, 3):
            q = where(items[7]) + 1; assert q + 12 < xb[15] + 2
            tl.vec_in(q, min(q + 24, xb[15] + 2), ureads(("As", 2 + n // 2), 25))
    print("ending: VALU left over", len(tail_), file=sys.stderr)
    blk = {p: tl.emit(start[p], nxt[p], f"att{p}") for p in phases}
    tx = lambda b: [(i.text, str(i.waitfor), i.tag) for i in b.ins]
    assert tx(blk[0]) == tx(blk[2]) and tx(blk[1]) == tx(blk[3])
    last = blk[15]
    for nm, x in (("x2", 8), ("x3", 16)):
        k_ = next(q for q, y in enumerate(last.ins) if y is tl.g[xb[x]].m); last.ins[k_:k_] = stamp_ins(STAMPS.get(nm))
    if OPT.get("osl"):
        assert len(tail_) == 20
        o13, o14 = OSTORES.pop(0), OSTORES.pop(0)
        last.ins += o13[0] + o13[1] + tail_[:8] + [mk(12)] + o14[0] + tail_[8:12] + o14[1] + [mk(13)] + tail_[12:16] + [mk(14)] + tail_[16:]
    else: last.ins += tail_[:-12] + [mk(12)] + tail_[-12:-8] + [mk(13)] + tail_[-8:-4] + [mk(14)] + tail_[-4:]
    last.tailchk = mk(15)
    return blk[-1], blk[0], blk[1], last

PARTS = [("G", 0), ("Q", 0), ("G", 1), ("Q", 1), ("G", 2), ("G", 3), ("Q", 2), ("Q", 3)]
SLOT = lambda i: (L_V + 32768, L_SP, L_V)[i % 3]
vNMU, vAQ, vAE, vIR = 32, 36, 40, 44
def XB(c, t, ks): return (c & 1) * 64 + (t * 4 + ks) * 4
def WF(fb, ks): return 212 + fb * 16 + ks * 4
def pacc(kind, u, t):
    if kind == "G": return V(128 + (u & 1) * 64 + ((u >> 1) * 4 + t) * 4, 4)
    ds, hf = u >> 1, u & 1
    return V(Q(t, ds), 4) if hf == 0 else A(128 + (t * 4 + ds) * 4, 4)
def wdma(i):
    kind, c = PARTS[i]; base = SLOT(i); g = []
    if kind == "Q":
        for half in range(2):
            g.append((II(f"s_add_u32 m0, s{sW8k}, {base + half*4096}\ns_add_u32 s{sT}, s{sWQo}, {(c*128+16*half)*8192}"),
                      [Ins(f"buffer_load_dwordx4 v{vDQ+p}, {SR(sWQ)}, s{sT} offen offset:{p*1024} lds", tag=f"DW{i}") for p in range(4)], []))
    else:
        for k, sr in enumerate((sW1, sW3)):
            g.append((II(f"s_add_u32 m0, s{sW4k}, {base + k*16384}\ns_add_u32 s{sT}, s{sW13o}, {c*128*3584}"),
                      [Ins(f"buffer_load_dwordx4 v{vD13+p}, {SR(sr)}, s{sT} offen offset:{p*1024} lds", tag=f"DW{i}") for p in range(4)], []))
    return g
def xdma(c):
    return [(II(f"s_xor_b32 m0, s100, {t*4096}\ns_xor_b32 s{sT}, s101, {t*16384 + c*256}"),
             [Ins(f"buffer_load_dwordx4 v{vDX+p}, {SR(sX)}, s{sT} offen offset:{p*1024} lds", tag=f"DX{c}") for p in range(4)], []) for t in range(4)]
def xreads(c):
    return [Ins(f"ds_read_b128 {A(XB(c,t,ks),4)}, v{vXA+ks} offset:{t*4096}", tag=f"X{c}") for t in range(4) for ks in range(4)]

def gen_proj(stats, var):
    S_ = var == "S"
    O_ = lambda k, d: OPT.get(k + var, OPT.get(k, d))
    tiles = lambda i: [0, 1, 4, 5, 2, 3] if (S_ and PARTS[i][0] == "G") else list(range(8))
    base = {"G": L_V, "Q": L_SP}
    def wreads(i, u, tag):
        kind, c = PARTS[i]; off0 = SLOT(i) - base[kind]; assert 0 <= off0 <= 32768
        r = []
        for ks in range(4):
            for kh in range(2):
                if kind == "Q": ad, off = vWQA + (u >> 1), ks * 8192 + kh * 1024 + 8 * (u & 1)
                else: ad, off = vW13A + (u >> 1), ks * 4096 + kh * 512 + 16384 * (u & 1)
                r.append(Ins(f"ds_read_b64_tr_b16 {A(WF(u&1,ks)+2*kh,2)}, v{ad} offset:{off0+off}", tag=tag))
        return r
    first_reads = wreads(0, 0, "W0")
    tl = TL(); tb = {}
    for i, (kind, c) in enumerate(PARTS):
        for pos_, u in enumerate(tiles(i)):
            tb[i, pos_] = len(tl.g)
            for t in range(4):
                d = pacc(kind, u, t)
                for n, ks in enumerate(snake(t)):
                    tl.add(MF(d, A(WF(u & 1, ks), 4), A(XB(c, t, ks), 4), OPT.get("b" + kind, "0") if (c == 0 and n == 0) else d))
            if u < 2 or (S_ and kind == "G" and u >= 4):
                d = A(aL + (8 if kind == "Q" else 0) + 4 * u, 4) if u < 2 else V(176 + 4 * (u - 4), 4)
                for kp in range(2): tl.add(Ins(f"v_smfmac_f32_16x16x64_bf16 {d}, {A(aONES,4)}, {A(WF(u&1,2*kp),8)}, v{vIDX}"))
    end = len(tl.g)
    tb[8, 0] = end
    LAST = lambda i: tb[i, len(tiles(i)) - 1]
    extra_vm = {1: ["ST"], 7: ["DK0"]}
    for i, (kind, c) in enumerate(PARTS):
        for u in range(len(tiles(i))):
            b0 = tb[i, u]; nb = tb.get((i, u + 1), tb[i + 1, 0])
            if b0 != LAST(i):
                r = wreads(i, tiles(i)[u + 1], f"W{u+1}")
                for k, x in enumerate(r): tl.vec_at(b0 + O_('wpos', (0, 1, 2, 4, 5, 6, 8, 9))[k], x)
                tl.scal_at(nb - 1, W(lgkm=f"W{u+1}"), later=False)
            else:
                vm = ([f"DW{i+1}"] if i < 7 else []) + extra_vm.get(i, [])
                tl.scal_at(b0, W(vm=vm, lgkm={4: ["X3"], 5: ["CS"], 7: ["CS"]}.get(i)))
                tl.scal_at(b0 + 1, Ins("s_barrier"))
                if i < 7:
                    nk = PARTS[i + 1][0]
                    if not 0 <= SLOT(i + 1) - base[nk] <= 32768:
                        dlt = SLOT(i + 1) - base[nk]; base[nk] += dlt
                        ad = vWQA if nk == "Q" else vW13A
                        for k in range(4): tl.vec_at(b0 + k // 2, Ins(f"v_add_u32 v{ad+k}, {dlt & 0xffffffff}, v{ad+k}"))
                    tl.vec_in(b0 + 2, b0 + 9, wreads(i + 1, 0, "W0"))
                    tl.scal_at(nb - 1, W(lgkm="W0"), later=False)
                else:
                    tl.vec_in(b0 + 2, b0 + 9, kreads(0, 0, 0, "K0"))
    P_ = lambda i, f: tb[i, 0] + int(f * (tb[i + 1, 0] - tb[i, 0]))
    def xout(c, lo, hi):
        j = tl.scal_at(lo, W(vm=f"DX{c}"))
        cc = tl.vec_in(j, hi, xreads(c))
        return cc[-1]
    def tch(dst, ad, sr, so): return Ins(f"buffer_load_dword a252, v{ad}, {SR(sr)}, {so} offen")
    TQ = lambda c: [(II(f"s_mov_b32 s{sT}, {c*128*8192}"), [tch(55, 22, sWQ, f"s{sT}")], [])]
    TG = lambda c: [(II(f"s_mov_b32 s{sT}, {c*128*3584}"), [tch(55, 23, sW1, f"s{sT}"), tch(55, 23, sW3, f"s{sT}")], [])]
    TK = [([], [tch(55, 53, sK, 0)], [])]; TV = [([], [tch(55, 53, sV, 0)], [])]
    kv = OPT.get("kvp", (9, 9, 9))
    at = lambda p: (TK if kv[0] == p else []) + (TV if kv[1] == p else []) + (TK2 if kv[2] == p else [])
    TK2 = [(II(f"s_mov_b32 s{sT}, 65536"), [tch(55, 53, sK, f"s{sT}")], [])]
    x1, x2, x3 = xdma(1), xdma(2), xdma(3)
    prev = [0]
    def sp(lo, hi, grps):
        lo = max(lo, prev[0] + 4); prev[0] = tl.spread(lo, max(hi, lo + 1), grps); return prev[0]
    SRL = [(II(f"s_lshl_b32 s{sT}, s{sCnt}, 11"), [Ins(f"buffer_load_dwordx4 {V(72+4*r,4)}, v58, {SR(sX)}, s{sT} offen offset:{512*r}", tag="SR") for r in range(2)], [])]
    CP = [([], II("global_load_dword a252, v[60:61], off"), [])]
    item = lambda n: {"W": lambda: wdma(int(n[1])), "Q": lambda: TQ(int(n[1])), "G": lambda: TG(int(n[1])), "S": lambda: SRL, "C": lambda: CP,
                      "A": lambda: [([], [Ins(f"buffer_atomic_add v49, v48, {SR(sDBG)}, 0 offen", tag="AT")], [])],
                      "r": lambda: (x1, x2, x3)[int(n[1]) - 1][:1], "x": lambda: (x1, x2, x3)[int(n[1]) - 1][1:]}[n[0]]()
    PP = lambda f: P_(int(f), f - int(f))
    for ent in O_("sch", None):
        if ent[0] == "o":
            l = xout(ent[1], PP(ent[2]), min(PP(ent[3]), LAST((0, 1, 3, 4)[ent[1]]) - 6))
            assert PP(ent[2]) >= tb[(0, 0, 2, 4)[ent[1]], 0]
            if ent[1] < 3: prev[0] = max(prev[0], tl.scal_at(l + 5, W(lgkm=f"X{ent[1]}")))
        else:
            g_ = [g for n in ent[1].split() for g in item(n)]
            lo = max(PP(ent[0]), prev[0] + 4)
            sp(lo, lo + int((ent[2] if len(ent) > 2 else O_('dsp', 4.4)) * (sum(len(g[1]) for g in g_) - 1)), g_)
    w7 = O_("w7", 0)
    if not w7: sp(P_(5, .03), P_(5, .3), wdma(7))
    ld0 = f"buffer_load_dword v50, v51, {SR(sDBG)}, 0 offen sc1"
    ck0 = O_("ck0", .33)
    g = tl.g[P_(5, ck0)]
    g.vec += [W(vm="C0")] + poll_check("st" + var, 50, ld0, f"v_cmp_gt_u32 vcc, 32, v50\ns_nop 0\ns_cmp_eq_u64 vcc, 0"); g.load += 2
    sp(P_(5, ck0) + 3, P_(5, ck0 + .1), [([], [Ins(f"buffer_load_dwordx2 {V(56+2*t,2)}, v52, {SR(sWS)}, 0 offen offset:{128*t} sc1", tag="SL") for t in range(4)], [])])
    if w7:
        l = sp(P_(5, w7), P_(5, w7) + 30, wdma(7)); assert l < P_(5, min(O_("slpos", .8), 1))
    sp(0, P_(5, O_("k0e", .97)), [dma_K(0, 0, "DK0"), dma_K(1, 0, "DK0")])
    sp(P_(6, O_("v0a", .3)), P_(6, O_("v0b", .9)), [dma_V(0, 0, "DV"), dma_V(1, 0, "DV")])
    sp(P_(7, O_("v0a", .3)), P_(7, O_("v0b", .9)), [dma_K(0, 1, "DK"), dma_K(1, 1, "DK")])
    def span(tag):
        ps = [q for q, gp in enumerate(tl.g) for x in gp.vec if x.tag == tag]; return min(ps), max(ps)
    for i in range(1, 8):
        assert span(f"DW{i}")[1] < LAST(i - 1) and (i < 3 or span(f"DW{i}")[0] > LAST(i - 3) + 1), i
    for c in (1, 2, 3): assert span(f"DX{c}")[1] < span(f"X{c}")[0] and (c == 1 or span(f"DX{c}")[0] > span(f"X{c-1}")[1] + 5), c
    if not any("A" in e_[1].split() for e_ in O_("sch", None) if e_[0] != "o"): tl.vec_in(LAST(1) + 10, LAST(1) + 14, item("A")[0][1])
    assert span("AT")[0] > LAST(1) + 1
    left = tl.sched(P_(0, O_("stpos", .3)), P_(1, O_('sthi', 0)) - 1, stats); assert not left and P_(1, O_('sthi', 0)) <= tb[1, 4], len(left)
    tl.vec_in(PP(4 + O_("c0pos", .9)), PP(4 + O_("c0pos", .9)) + 6, [Ins(ld0, tag="C0")])
    for i, off in ((5, 0), (7, 1)):
        a0 = aL + 8 * off; it_ = []
        for u in range(2):
            it_ += II(f"v_accvgpr_read_b32 v22, a{a0+4*u}\nv_accvgpr_read_b32 v23, a{a0+4*u+1}\nv_add_f32 v22, v22, v23")
            it_ += [Ins(f"ds_write_b32 v21, v22 offset:{64*u}", tag="CS")]
        left = tl.stream(tb[i, 3], tb[i, 4] - 1, it_); assert not left
        if i == 5:
            it_ = []
            if S_:
                for u in range(2): it_ += II(f"v_add_f32 v{176+4*u}, v{176+4*u}, v{177+4*u}") + [Ins(f"ds_write_b32 v21, v{176+4*u} offset:{512+64*u}", tag="CS")]
            left = tl.stream(tb[i, 4] + 6, tb[i, 5] - 1, it_ + II(f"v_add_u32 v21, {L_V - L_K}, v21")); assert not left
    it = [W(vm="SL")]
    for t in range(4): it += II(f"v_rsq_f32 v{vAQ+t}, v{57+2*t}")
    for t in range(4): it += II(f"v_sub_f32 v{vNMU+t}, 0, v{56+2*t}\nv_mov_b32 v{vIR+t}, v{57+2*t}")
    for t in range(4): it += II(f"v_mul_f32 v{vAE+t}, {f32(-LOG2E)}, v{vAQ+t}\nv_mul_f32 v{vAQ+t}, {f32(LOG2E * 128 ** -0.5)}, v{vAQ+t}")
    h0 = tb[6, 0] + 2
    if O_("slpos", .8) < 1:
        left = tl.stream(P_(5, O_("slpos", .8)), tb[6, 0] - 1, it); assert not left, len(left)
        it = []
    else: it[0].guards = {f"v{56+k}" for k in range(8)}; h0 = P_(6, O_("slpos", .8) - 1) + 2
    NV = 3 if S_ else 4
    for v in range(NV): it += II(f"v_xor_b32 v{28+v}, {512 if (S_ and v == 2) else 128*v}, v54")
    def csread(v): return [Ins(f"ds_read_b128 {V(48+8*(v&1)+4*m,4)}, v{28+v} offset:{64*m}", tag=f"CG{v}") for m in range(2)]
    it += csread(0)
    for v in range(NV):
        if v < NV - 1: it += csread(v + 1)
        it += [W(lgkm=f"CG{v}")]
        for m in range(2):
            for t in range(4):
                d = 128 + m * 64 + (v * 4 + t) * 4
                for r in range(4): it += II(f"v_fmac_f32 v{d+r}, v{48+8*(v&1)+4*m+r}, v{vNMU+t}")
    mv30 = Ins(f"v_add_u32 v30, {L_V - L_K}, v28"); it.append(mv30)
    it += II(f"s_add_u32 s{sCnt}, s{sFs}, s{sBo}")
    if not S_: it += II(f"s_and_b32 s{sT2}, s{sWave}, 2\ns_lshl_b32 s{sT2}, s{sT2}, 9\nv_add_u32 v28, s{sT2}, v{vL16}\nv_xor_b32 v29, 0x400, v28")
    else:
        it += II(f"s_and_b32 s{sT2}, s{sHead}, 1\ns_lshl_b32 s{sT2}, s{sT2}, 11\nv_add_u32 v28, s{sT2}, v{vL16}\ns_xor_b32 s{sT2}, s{sHead}, s{sWave}\ns_and_b32 s{sT2}, s{sT2}, 1\ns_lshl_b32 s{sT2}, s{sT2}, 3\ns_add_u32 s{sT2}, s{sT2}, 1024\nv_add_u32 v29, s{sT2}, v{vL16}")
    rest = []
    for n in range(8):
        t, i = n >> 1, n & 1
        N = 4 if (S_ and i == 1) else 8
        gr = [128 + ((2 * i + hf) * 4 + t) * 4 + r for hf in range(2) for r in range(4)][:N]
        ur = [x + 64 for x in gr]; q = []
        if n < O_("nh", 0):
            for k in range(N): q += II(f"v_mul_f32 v{ur[k]}, v{ur[k]}, v{gr[k]}\nv_mul_f32 v{gr[k]}, v{vAE+t}, v{gr[k]}")
            for k in range(N): q += II(f"v_exp_f32 v{gr[k]}, v{gr[k]}") + (II(f"v_fma_f32 v{gr[k-2]}, v{gr[k-2]}, v{vIR+t}, v{vIR+t}") if k >= 2 else [])
            for k in range(N): q += II(f"v_rcp_f32 v{gr[k]}, v{gr[k]}") + II(f"v_fma_f32 v{gr[k+N-2]}, v{gr[k+N-2]}, v{vIR+t}, v{vIR+t}" if k < 2 else f"v_mul_f32 v{gr[k-2]}, v{gr[k-2]}, v{ur[k-2]}")
            for k in (N - 2, N - 1): q += II(f"v_mul_f32 v{gr[k]}, v{gr[k]}, v{ur[k]}")
        else:
            o = t & 1; ae, ir = V(vAE + t - o, 2), V(vIR + t - o, 2)
            for k in range(0, N, 2): q += II(f"v_pk_mul_f32 {V(ur[k],2)}, {V(ur[k],2)}, {V(gr[k],2)}\nv_pk_mul_f32 {V(gr[k],2)}, {V(gr[k],2)}, {ae} op_sel:[0,{o}] op_sel_hi:[1,{o}]")
            for k in range(N): q += II(f"v_exp_f32 v{gr[k]}, v{gr[k]}")
            for k in range(0, N, 2): q += II(f"v_pk_fma_f32 {V(gr[k],2)}, {V(gr[k],2)}, {ir}, {ir} op_sel:[0,{o},{o}] op_sel_hi:[1,{o},{o}]")
            for k in range(N): q += II(f"v_rcp_f32 v{gr[k]}, v{gr[k]}")
            for k in range(0, N, 2): q += II(f"v_pk_mul_f32 {V(gr[k],2)}, {V(gr[k],2)}, {V(ur[k],2)}")
        for k in range(N // 2): q += II(f"v_cvt_pk_bf16_f32 v{gr[0]+k}, v{gr[2*k]}, v{gr[2*k+1]}")
        q += II(f"buffer_store_dwordx{N//2} {V(gr[0],N//2)}, v{28+i}, {SR(sB)}, s{sCnt} offen sc1")
        if i == 1 and t < 3: q += II(f"s_add_u32 s{sCnt}, s{sCnt}, {BSTRIDE}")
        if n < O_("nh", 0): it += q
        else: rest += q
    lastcs = [x for x in it if x.tag == f"CG{NV-1}"][-1]
    left = tl.sched(h0, end - 1, it, look=O_("look", 70))
    assert len(left) <= 54 * O_("nh", 0) and not any(x is mv30 for x in left)
    pos = [k for k, gp in enumerate(tl.g) if any(x is lastcs for x in gp.vec)]
    assert pos and pos[0] < tb[6, 6], (pos, tb[6, 6])

    for nm, i in [(f"p{i}", i) for i in range(1, 8)]:
        tl.g[tb[i, 0]].scal = stamp_ins(STAMPS.get(nm)) + tl.g[tb[i, 0]].scal
    body = tl.emit(0, end, "proj" + var)
    print("h epilogue leftover", len(left), "of", len(it), file=sys.stderr)
    return first_reads, body, left + rest

def gen_kernel():
    b = Block(); b.name = "setup"
    b.e(f"s_cmp_ge_u32 s2, 256\ns_cbranch_scc1 L_end\ns_mov_b32 s{sFB}, 0")
    if OPT.get("shuffle"): b.e("s_and_b32 s3, s2, 7\ns_lshl_b32 s3, s3, 5\ns_lshr_b32 s2, s2, 3\ns_or_b32 s2, s2, s3")
    if OPT.get("delay"): b.e(f"s_mov_b32 s3, {OPT['delay']}\nL_dly:\ns_sub_u32 s3, s3, 1\ns_cmp_lg_u32 s3, 0\ns_cbranch_scc1 L_dly")
    if OPT["stamp"]:
        for i in range(20): b.e(f"s_mov_b32 s{72+i}, 0")
        stamp(b, "start")
    b2 = Block(); b2.name = "setup1"; b_ = b; b = b2
    b.e("L_restart:")
    for sr, off in ((sX, 0), (sW1, 48), (sW3, 56), (sWQ, 24)): b.e(f"s_load_dwordx2 s[{sr}:{sr+1}], s[0:1], {off}")
    T0, T1, T2, T3, T4 = 56, 57, 58, 59, 60
    vl, vc, vg, vi2, vi3 = 61, 62, 63, 22, 23
    b.e("s_getpc_b64 s[100:101]\nL_pc:")
    b.e(f"s_lshr_b32 s{sT}, s2, 3\ns_mul_i32 s{sT2}, s{sT}, 2560\nv_mul_u32_u24 v108, 10, v0\nv_add_u32 v108, s{sT2}, v108\nv_and_b32 v108, 0xffffff80, v108\nv_min_u32 v108, L_code_end-L_pc, v108\nv_mov_b32 v109, s101")
    b.e(f"v_add_co_u32 v108, vcc, s100, v108\nv_lshrrev_b32 v{T0}, 6, v0\nv_and_b32 v{vc}, 15, v0\nv_addc_co_u32 v109, vcc, 0, v109, vcc\nglobal_load_dword v107, v[108:109], off")
    b.e(f"v_readfirstlane_b32 s{sWave}, v{T0}\nv_bfe_u32 v{vg}, v0, 4, 2\ns_and_b32 s{sT}, s{sT}, 3\ns_lshr_b32 s{sQb}, s2, 5")
    b.e(f"s_lshl_b32 s{sW16k}, s{sWave}, 14\ns_lshl_b32 s{sXb}, s{sQb}, 18\ns_lshl_b32 s{sT2}, s{sWave}, 16\ns_add_u32 s{sXb}, s{sXb}, s{sT2}")
    b.e(f"s_lshl_b32 s100, s{sT}, 12\ns_add_u32 s100, s100, s{sW16k}\ns_lshl_b32 s101, s{sT}, 14\ns_add_u32 s101, s101, s{sXb}")
    b.e(f"s_and_b32 s{sHead}, s2, 7\ns_lshl_b32 s{sHead}, s{sHead}, 2\ns_add_u32 s{sHead}, s{sHead}, s{sT}")
    b.e(f"v_xor_b32 v{T0}, v{vg}, v{vc}\nv_lshlrev_b32 v{T0}, 4, v{T0}\nv_lshl_add_u32 v{vDX}, v{vg}, 10, v{T0}")
    for p in range(1, 4): b.e(f"v_xor_b32 v{T2}, {64*p}, v{vDX}\nv_add_u32 v{vDX+p}, {p*3072}, v{T2}")
    b.e(f"s_mov_b32 s{sX+2}, 0x200000\ns_mov_b32 s{sX+3}, 0x20000\ns_waitcnt lgkmcnt(0)")
    stamp(b, "karg")
    b.e(f"s_and_b32 s{sX+1}, s{sX+1}, 0xffff")
    xg = xdma(0); wg = wdma(0)
    emit_grp(b, xg[0])
    for sr, off in ((sK, 8), (sV, 16), (sB, 88), (sH, 88), (sWS, 88), (sDBG, 80), (sWO, 32), (sW2, 64), (sOut, 72)):
        b.e(f"s_load_dwordx2 s[{sr}:{sr+1}], s[0:1], {off}")
    b.e(f"s_and_b32 s{sT2}, s{sHead}, 3\ns_lshr_b32 s3, s{sT2}, 1\ns_add_u32 s{sT}, s3, 8\ns_mul_i32 s3, s3, 3\ns_add_u32 s3, s3, 8\ns_lshl_b32 s{sFs}, s{sT2}, 1\ns_bitcmp1_b32 s2, 0")
    b.e(f"s_cselect_b32 s{sT}, s{sT}, s{sT2}\ns_cselect_b32 s{sFs}, s3, s{sFs}\ns_add_u32 s{sT}, s{sT}, s{sT2}\ns_lshr_b32 s3, s{sHead}, 3\ns_mul_i32 s3, s3, 14\ns_add_u32 s{sT}, s{sT}, s3\ns_lshl_b32 s{sT}, s{sT}, 6")
    ptr_add(b, sW1, f"s{sT}"); ptr_add(b, sW3, f"s{sT}")
    b.e(f"s_sub_u32 s{sT2}, {512*3584}, s{sT}\ns_add_u32 s{sFs}, s{sFs}, s3\ns_add_u32 s{sFs}, s{sFs}, 128\ns_lshl_b32 s{sFs}, s{sFs}, 10")
    srd_fin(b, sW1, f"s{sT2}"); srd_fin(b, sW3, f"s{sT2}")
    b.e(f"s_lshr_b32 s{sBo}, s{sXb}, 14\nv_and_b32 v{vl}, 63, v0")
    b.e(f"v_lshrrev_b32 v{T0}, 2, v{vl}\nv_and_b32 v{T1}, 3, v0\nv_lshl_add_u32 v{T1}, v{T0}, 7, v{T1}\nv_add_u32 v{T1}, s{sBo}, v{T1}\nv_mul_u32_u24 v101, 3584, v{T1}\nv_lshl_add_u32 v103, v{T0}, 26, v101")
    if not OPT.get("noptouch"): b.e(f"buffer_load_dword v105, v103, {SR(sW1)}, 0 offen\nbuffer_load_dword v106, v103, {SR(sW3)}, 0 offen")
    b.e(f"s_lshl_b32 s{sCnt}, s{sQb}, 7\ns_lshl_b32 s{sT2}, s{sHead}, 2\ns_add_u32 s{sCnt}, s{sCnt}, s{sT2}\ns_add_u32 s{sCnt}, s{sCnt}, s{sWave}\nv_lshlrev_b32 v{vL16}, 4, v{vl}")
    for g in (xg[1], xg[2], xg[3])[:OPT.get("nx", 1)]: emit_grp(b, g)
    b.e(f"s_lshl_b32 s{sT}, s{sHead}, 8"); ptr_add(b, sWQ, f"s{sT}"); b.e(f"s_sub_u32 s{sT2}, 0x400000, s{sT}")
    srd_fin(b, sWQ, f"s{sT2}")
    b.e(f"v_lshrrev_b32 v{T0}, 3, v{vl}\nv_bfe_u32 v{T1}, v0, 1, 2\nv_lshl_add_u32 v{T1}, v{T0}, 7, v{T1}\nv_add_u32 v{T1}, s{sBo}, v{T1}\nv_and_b32 v{T2}, 1, v0\nv_lshlrev_b32 v{T2}, 7, v{T2}\nv_lshl_add_u32 v100, v{T1}, 13, v{T2}\nv_lshl_add_u32 v102, v{T0}, 26, v100")
    b.e(f"s_bfe_u32 s{sSp}, s2, 0x20001\ns_lshr_b32 s{sTc}, s2, 6\ns_bfe_u32 s{sTr}, s2, 0x30003\ns_and_b32 s{sT}, s2, 1\ns_lshl_b32 s{sT}, s{sT}, 3\ns_add_u32 s{sTr}, s{sTr}, s{sT}")
    b.e(f"s_lshl_b32 s{sW8k}, s{sWave}, 13\ns_lshl_b32 s{sW4k}, s{sWave}, 12\ns_mul_i32 s{sBo}, s{sBo}, {BSTRIDE}")
    b.e(f"s_lshl_b32 s{sWQo}, s{sWave}, 18\ns_mul_i32 s{sW13o}, s{sWave}, {32*3584}\ns_mov_b32 s{sKo}, s{sW8k}\ns_mov_b32 s{sVo}, s{sW8k}")
    b.e(f"v_mul_u32_u24 v{T0}, 3584, v{T0}\nv_and_b32 v{T1}, 7, v0\nv_and_b32 v{T2}, 1, v{vg}\nv_lshlrev_b32 v{T2}, 1, v{T2}\nv_xor_b32 v{T1}, v{T1}, v{T2}")
    for p in range(4): b.e(f"v_xor_b32 v{T2}, {4*(p&1)}, v{T1}\nv_lshl_add_u32 v{T2}, v{T2}, 4, v{T0}\nv_add_u32 v{vD13+p}, {p*27648}, v{T2}")
    b.e(f"v_lshlrev_b32 v{T0}, 2, v{vg}\nv_xor_b32 v{T0}, v{vc}, v{T0}\nv_lshlrev_b32 v{T0}, 4, v{T0}\nv_lshl_add_u32 v{vDQ}, v{vg}, 13, v{T0}")
    for p in range(1, 4): b.e(f"v_add_u32 v{vDQ+p}, {p*31744}, v{vDQ}")
    b.e("s_waitcnt lgkmcnt(0)")
    late = [xg[1], xg[2], xg[3], wg[0], wg[1]][OPT.get("nx", 1):]
    stamp(b, "a1")
    c = Block(); c.name = "setup2"
    c.e(f"s_lshl_b32 s{sT}, s{sHead}, 19"); ptr_add(c, sK, f"s{sT}"); ptr_add(c, sV, f"s{sT}")
    srd_fin(c, sK, 0x80000); srd_fin(c, sV, 0x80000)
    wso = OPT.get("wsoff", 0) << 20
    if wso: ptr_add(c, sWS, wso)
    ptr_add(c, sB, WS_B + wso); ptr_add(c, sH, WS_B + wso); srd_fin(c, sB, 128 * BSTRIDE)
    srd_fin(c, sH, 0)
    srd_fin(c, sWS, 0x28000); srd_fin(c, sDBG, 256); srd_fin(c, sOut, 0x200000)
    srd_fin(c, sWO, 0 if OPT.get("noA") else 4096 * 1024); srd_fin(c, sW2, 0 if OPT.get("noA") else 1792 * 1024)
    c.e(f"v_bfe_u32 v{vi2}, v0, 2, 2\nv_and_b32 v{vi3}, 3, v0")
    c.e(f"v_lshl_add_u32 v{T0}, v{vg}, 3, v{vi2}\nv_lshlrev_b32 v{T1}, 8, v{T0}\nv_lshl_add_u32 v{T1}, v{vi3}, 4, v{T1}\nv_add_u32 v{T1}, {L_SP}, v{T1}\nv_xor_b32 v{T3}, s{sWave}, v{vi2}")
    for i in range(4): c.e(f"v_xor_b32 v{T2}, {i}, v{T3}\nv_lshl_add_u32 v{vWQA+i}, v{T2}, 6, v{T1}")
    c.e(f"v_lshlrev_b32 v{T1}, 7, v{T0}\nv_lshl_add_u32 v{T1}, v{vi3}, 3, v{T1}\nv_add_u32 v{T1}, {L_V}, v{T1}")
    c.e(f"v_and_b32 v{T3}, 1, v{vg}\nv_lshlrev_b32 v{T3}, 1, v{T3}\nv_lshrrev_b32 v{T4}, 1, v{vi2}\nv_or_b32 v{T3}, v{T3}, v{T4}")
    c.e(f"s_and_b32 s3, s{sHead}, 1\ns_sub_u32 s{sT2}, 2, s3\ns_lshl_b32 s3, s3, 1\ns_and_b32 s{sT}, s{sWave}, 1\ns_or_b32 s{sT}, s{sT}, s3\ns_xor_b32 s3, s{sWave}, 2\ns_bitcmp1_b32 s2, 0\ns_cselect_b32 s{sT}, s{sT}, s{sWave}\ns_cselect_b32 s{sT2}, s{sT2}, s3")
    for i in (0, 2): c.e(f"v_xor_b32 v{T2}, s{sT2 if i else sT}, v{T3}\nv_lshl_add_u32 v{vW13A+i}, v{T2}, 5, v{T1}\nv_xor_b32 v{vW13A+i+1}, 32, v{vW13A+i}")
    for r in range(8): c.e(f"v_mov_b32 v{176+r}, 0")
    for r in range(4): c.e(f"v_accvgpr_write_b32 a{aCHK+r}, -1")
    c.e(f"v_xor_b32 v{T0}, v{vg}, v{vc}\nv_lshlrev_b32 v{T1}, 8, v{vc}\nv_add_u32 v{T3}, s{sW16k}, v{T1}\ns_lshl_b32 s{sT}, s{sWave}, 2")
    for i in range(4): c.e(f"v_xor_b32 v{T2}, {4*i}, v{T0}\nv_lshl_add_u32 v{vXA+i}, v{T2}, 4, v{T3}\nv_xor_b32 v{T2}, s{sT}, v{T2}\nv_lshl_add_u32 v{vKA+i}, v{T2}, 4, v{T1}")
    c.e(f"v_lshl_add_u32 v{T0}, v{vg}, 2, v{vi2}\nv_lshlrev_b32 v{T1}, 8, v{T0}\nv_lshl_add_u32 v{T1}, v{vi3}, 3, v{T1}\nv_add_u32 v{T1}, {L_V}, v{T1}\nv_and_b32 v{T0}, 7, v{T0}")
    for dt in range(8): c.e(f"v_xor_b32 v{T2}, {dt}, v{T0}\nv_lshl_add_u32 v{vVA+dt}, v{T2}, 5, v{T1}")
    c.e(f"v_lshlrev_b32 v{T1}, 8, v{vg}\nv_xor_b32 v{T0}, v{vg}, v{vc}")
    for p in range(4): c.e(f"v_xor_b32 v{T2}, {4*p}, v{T0}\nv_lshl_add_u32 v{vDK+p}, v{T2}, 4, v{T1}")
    c.e(f"v_lshlrev_b32 v{T0}, 1, v{vg}\nv_xor_b32 v{T0}, v{T0}, v{vc}")
    for p in range(2): c.e(f"v_xor_b32 v{T2}, {8*p}, v{T0}\nv_lshl_add_u32 v{vDV+p}, v{T2}, 4, v{T1}")
    if OPT.get("half1"): c.e(f"v_bfe_u32 v{T0}, v0, 1, 1\nv_add_u32 v{T0}, -1, v{T0}\nv_and_b32 v{T0}, 0x3f803f80, v{T0}")
    else: c.e(f"v_mov_b32 v{T0}, 0x3f803f80")
    for i in range(4): c.e(f"v_accvgpr_write_b32 a{aONES+i}, v{T0}")
    c.e(f"s_lshl_b32 s{sT}, s{sQb}, 5\nv_and_b32 v51, 7, v0\nv_lshlrev_b32 v51, 5, v51\ns_cmp_eq_u32 s{sFB}, 0\ns_cselect_b32 s{sT}, s{sT}, {OOB}")
    c.e(f"v_mov_b32 v{T0}, {OOB}\nv_mov_b32 v{T1}, s{sT}\nv_cmp_eq_u32 vcc, 0, v0\nv_mov_b32 v49, 1\nv_cndmask_b32 v48, v{T0}, v{T1}, vcc")
    c.e(f"s_lshl_b32 s{sT}, s{sQb}, 5\ns_add_u32 s{sT}, s{sT}, s{sHead}\ns_lshl_b32 s{sT}, s{sT}, 7\ns_add_u32 s{sT}, s{sT}, {WS_FH}\ns_cmp_eq_u32 s{sFB}, 0\ns_cselect_b32 s{sT}, s{sT}, {OOB >> 1}")
    c.e(f"s_and_b32 s{sT2}, s{sHead}, 7\ns_mul_i32 s{sT2}, s{sT2}, 124\ns_sub_u32 s{sT2}, {WS_FO-WS_FH}, s{sT2}\nv_mov_b32 v{T2}, s{sT}\nv_mad_u32_u24 v{T1}, v0, s{sT2}, v{T2}\nv_cmp_gt_u32 vcc, 2, v0\nv_mov_b32 v{T2}, 0\nv_cndmask_b32 v{T1}, v{T0}, v{T1}, vcc")
    c.e(f"buffer_store_dword v{T2}, v{T1}, {SR(sWS)}, 0 offen sc1")
    c.e(f"s_lshr_b32 s{sT}, s{sXb}, 7\nv_lshlrev_b32 v52, 3, v{vc}\nv_add_u32 v52, s{sT}, v52")
    c.e(f"s_lshl_b32 s{sT}, s{sWave}, 7\nv_lshlrev_b32 v54, 4, v{vg}\nv_add_u32 v54, s{sT}, v54\nv_add_u32 v54, {L_K+32768}, v54\ns_add_u32 s{sT}, s{sT}, {L_K+32768}\nv_lshl_add_u32 v21, v{vc}, 2, s{sT}")
    for i in range(4): c.e(f"v_accvgpr_write_b32 a{aZ+i}, 0")
    c.e(f"v_and_b32 v{vIDX}, 1, v0\nv_mul_u32_u24 v{vIDX}, 0xaaaa, v{vIDX}\nv_add_u32 v{vIDX}, 0x4444, v{vIDX}")
    c.e(f"v_mfma_f32_32x32x16_bf16 {A(aL,16)}, {A(aZ,4)}, {A(aZ,4)}, 0")
    c.e(f"s_lshl_b32 s{sT}, s{sQb}, 2\ns_add_u32 s{sT}, s{sT}, s{sWave}\ns_lshl_b32 s{sT}, s{sT}, 11\nv_lshlrev_b32 v53, 29, v{vg}\nv_lshl_add_u32 v53, v{vc}, 7, v53\nv_add_u32 v53, s{sT}, v53")
    stamp(c, "a2")
    c.e(f"s_lshl_b32 s{sT2}, s{sCnt}, 4\nv_lshrrev_b32 v{T2}, 5, v{vl}\nv_lshl_add_u32 v{T1}, v{T2}, 3, s{sT2}\nv_lshl_add_u32 v{T2}, v{T2}, 9, v{vL16}\nv_and_b32 v{T3}, 31, v0\nv_cmp_eq_u32 vcc, 0, v{T3}\nv_cndmask_b32 v{T1}, v{T0}, v{T1}, vcc")
    c.e("v_mov_b32 v22, v102\nv_mov_b32 v23, v103\nv_accvgpr_write_b32 a254, v108\nv_accvgpr_write_b32 a255, v109")
    for g in late: emit_grp(c, g)
    c.e("v_mov_b32 v60, v108\nv_mov_b32 v61, v109")
    for n in OPT["pre"].split():
        if n == "Q0": c.e(f"buffer_load_dword a252, v22, {SR(sWQ)}, 0 offen")
        if n == "G1": c.e(f"s_mov_b32 s{sT}, {128*3584}\nbuffer_load_dword a252, v23, {SR(sW1)}, s{sT} offen\nbuffer_load_dword a252, v23, {SR(sW3)}, s{sT} offen")
        if n == "S":
            c.e(f"s_lshl_b32 s{sT}, s{sCnt}, 11")
            for r in range(2): c.e(f"buffer_load_dwordx4 {V(72+4*r,4)}, v{T2}, {SR(sX)}, s{sT} offen offset:{512*r}", tag="SR")
    stamp(c, "a4")
    c_ = c; c = Block(); c.wait(vm="SR")
    X = lambda k: 88 + k + (8 if k >= 8 else 0)
    for k in range(8): c.e(f"v_lshlrev_b32 v{X(2*k)}, 16, v{72+k}\nv_and_b32 v{X(2*k+1)}, 0xffff0000, v{72+k}")
    def wred(d):
        c.e("v_add_f32 v120, v120, v121")
        for sh in (8, 4, 2, 1): c.e(f"v_add_f32_dpp v120, v120, v120 row_ror:{sh} row_mask:0xf bank_mask:0xf")
        c.e(f"v_mov_b32 v121, v120\nv_permlane16_swap_b32 v121, v120\nv_add_f32 v120, v120, v121\nv_mul_f32 v{d}, {f32(1/512)}, v120")
    for k in range(7):
        for r in range(2): c.e(f"v_add_f32 v{120+r}, v{X(8*r+k+1)}, v{X(8*r) if k == 0 else (120+r)}")
    wred(122)
    for k in range(16): c.e(f"v_sub_f32 v{X(k)}, v{X(k)}, v122")
    for k in range(8):
        for r in range(2): c.e(f"v_mul_f32 v{120+r}, v{X(8*r)}, v{X(8*r)}" if k == 0 else f"v_fmac_f32 v{120+r}, v{X(8*r+k)}, v{X(8*r+k)}")
    wred(123)
    def rnd(r): c.e(f"v_cvt_pk_bf16_f32 v{r}, v{r}, v{r}\nv_and_b32 v{r}, 0xffff0000, v{r}")
    rnd(122); rnd(123); c.e(f"v_add_f32 v123, {f32(1e-5)}, v123"); rnd(123); c.e("v_sqrt_f32 v123, v123"); rnd(123); c.e("v_mul_f32 v123, v123, v123")
    c.e(f"buffer_store_dwordx2 v[122:123], v{T1}, {SR(sWS)}, 0 offen sc1", tag="ST")
    st_ = [x for x in c.ins if x.kind != "nop"]; c = c_
    def stats():
        w_ = W(vm="SR"); w_.guards = {f"v{72+k}" for k in range(8)}
        return [w_] + [Ins(x.text, tag=x.tag) for x in st_[1:]]
    PJ = {}
    for var in "FS":
      first_reads, proj, hleft = gen_proj(stats(), var)
      e = Block(); e.name = "projepi"
      stamp(e, "projend")
      for i in range(4): e.e(f"v_xor_b32 v{24+i}, {128*i}, v30")
      def cq(i): return [Ins(f"ds_read_b128 {V(48+8*(i&1)+4*hf,4)}, v{24+i} offset:{64*hf}", tag=f"CQ{i}") for hf in range(2)]
      e.ext(cq(0) + cq(1))
      nfirst = [k for k, x in enumerate(hleft) if x.kind == "vstore"][0] + 1
      e.ext(hleft[:nfirst]); hleft = hleft[nfirst:]
      H = 192
      for ds in range(4):
          e.wait(lgkm=f"CQ{ds}")
          for t in range(4):
              d = Q(t, ds); h = H + 16 * (t & 1); o = t & 1; nm, aq = V(vNMU + t - o, 2), V(vAQ + t - o, 2); CS = 48 + 8 * (ds & 1)
              for k in range(4): e.e(f"v_accvgpr_read_b32 v{h+k}, a{128+(t*4+ds)*4+k}")
              prs = [(d, CS), (d + 2, CS + 2), (h, CS + 4), (h + 2, CS + 6)]
              for x, cs in prs: e.e(f"v_pk_fma_f32 {V(x,2)}, {V(cs,2)}, {nm}, {V(x,2)} op_sel:[0,{o},0] op_sel_hi:[1,{o},1]")
              for x, cs in prs:
                if OPT.get("bQ"): e.e(f"v_pk_fma_f32 {V(x,2)}, {V(x,2)}, {aq}, {aq} op_sel:[0,{o},{o}] op_sel_hi:[1,{o},{o}] neg_lo:[0,0,1] neg_hi:[0,0,1]")
                else: e.e(f"v_pk_mul_f32 {V(x,2)}, {V(x,2)}, {aq} op_sel:[0,{o}] op_sel_hi:[1,{o}]")
              for k, (x, cs) in enumerate(prs): e.e(f"v_cvt_pk_bf16_f32 v{d+k}, v{x}, v{x+1}")
          if ds < 2: e.ext(cq(ds + 2))
      PM = 48
      ch = [MF(V(PM + 4 * t, 4), A(KF(0, ds), 4), V(Q(t, ds), 4), "0" if n == 0 else V(PM + 4 * t, 4)) for t in range(4) for n, ds in enumerate(snake(t))]
      run = 0
      for k, x in enumerate(hleft):
          run = run + 1 if x.kind == "trans" else 0
          if ch and x.kind == "trans" and 3 <= run <= 5: e.add(ch.pop(0))
          e.add(x)
      e.ext(ch)
      h_ = Block(); h_.name = "projhead"
      if var == "F": h_.e("L_proj_F:")
      h_.wait(vm="DX0"); h_.ext(xreads(0)); h_.wait(vm="DW0"); stamp(h_, "a6"); h_.e("s_barrier"); h_.ext(first_reads); h_.wait(lgkm="W0"); stamp(h_, "p0")
      e.e("s_cmp_eq_u32 0, 0")
      if var == "F": e.e("s_branch L_proj_join")
      PJ[var] = [h_, proj, e]
    stamp(c, "a5")
    for _ in range(OPT.get("pad1", 0)): c.e("s_nop 0")
    c.e("s_bitcmp1_b32 s2, 0\ns_cbranch_scc0 " + ("L_proj_join" if OPT.get("warm", 1) else "L_proj_F"))
    e = Block(); e.name = "join"; e.e("L_proj_join:\ns_cbranch_scc0 L_proj_F")
    e.e(f"s_cmp_lg_u32 s{sFB}, 0\ns_cbranch_scc1 L_truemax")
    e2 = Block(); e2.name = "premax"
    def rowmax_finish(blk, src, dl=0):
        for sw in ("32", "16"):
            for t in range(4): blk.e(f"v_mov_b32 v{vT+t}, v{src(t)}")
            for t in range(4): blk.e(f"v_permlane{sw}_swap_b32 v{vT+t}, v{src(t)}")
            for t in range(4): blk.e(f"v_max_f32 v{src(t) if sw == '32' else vT+t}, v{src(t)}, v{vT+t}")
        for t in range(4):
            for r in range(4): blk.e(f"v_sub_f32 v{vNM+4*t+r}, {f32(-dl) if dl else 0}, v{vT+t}")
    for t in range(4):
        s0 = PM + 4 * t
        e2.e(f"v_max3_f32 v{s0}, v{s0}, v{s0+1}, v{s0+2}\nv_max_f32 v{s0}, v{s0}, v{s0+3}")
    rowmax_finish(e2, lambda t: PM + 4 * t, OPT.get('dl', 0))
    if OPT.get("nmc") is not None:
        e2.ins = e2.ins[:-16] + II("\n".join(f"v_mov_b32 v{vNM+r}, {f32(OPT['nmc'])}" for r in range(16)))
    a_, b_2, c_2, d_, e_2, f_ = sBs[0], sBs[1], sBs[2], sBs[3], sHp[2], sHp[3]
    li = II(f"""s_lshl_b32 s{c_2}, s{sQb}, 13
s_add_u32 s{c_2}, s{c_2}, 32768
s_sub_u32 s{c_2}, s{c_2}, s{sW8k}
s_lshr_b32 s{a_}, s2, 3
s_mul_i32 s{b_2}, s{a_}, {14*1024}
s_lshl_b32 s{a_}, s{a_}, 15
s_lshl_b32 s3, s{sSp}, 20
s_add_u32 s{a_}, s{a_}, s3
s_mul_i32 s3, s{sSp}, {448*1024}
s_add_u32 s{b_2}, s{b_2}, s3
s_lshl_b32 s{d_}, s{sQb}, 5
s_add_u32 s{d_}, s{d_}, s{sHead}
s_lshl_b32 s{d_}, s{d_}, 7
s_add_u32 s{d_}, s{d_}, {WS_FH}
s_lshr_b32 s{e_2}, s{sTr}, 1
s_lshl_b32 s{e_2}, s{e_2}, 2
s_add_u32 s{e_2}, s{e_2}, s{sSp}
s_lshl_b32 s{e_2}, s{e_2}, 10
s_add_u32 s{e_2}, s{e_2}, {WS_FH}
s_mul_i32 s{f_}, s{sTc}, 3584
v_and_b32 v28, 15, v0
v_lshrrev_b32 v29, 6, v0
v_lshl_add_u32 v28, v29, 4, v28
v_bfe_u32 v29, v0, 4, 2
v_lshlrev_b32 v29, 29, v29
v_lshl_add_u32 v29, v28, 7, v29
v_add_u32 v28, s{c_2}, v29
buffer_load_dword a252, v28, {SR(sV)}, s{sVo} offen
v_bfe_u32 v30, v0, 4, 1
v_mul_u32_u24 v30, 0xffff, v30
v_lshlrev_b32 v30, 13, v30
v_sub_u32 v30, v29, v30
v_add_u32 v30, s{a_}, v30
v_add_u32 v29, s{b_2}, v29
v_lshl_add_u32 v21, v0, 18, s{d_}
v_mov_b32 v22, 1
v_and_b32 v23, 7, v0
v_lshl_add_u32 v23, v23, 7, s{e_2}
v_and_b32 v24, 8, v0
v_cmp_eq_u32 vcc, 0, v24
v_and_b32 v24, 3, v0
v_lshlrev_b32 v24, 10, v24
v_xor_b32 v24, s{d_}, v24
v_cndmask_b32 v23, v24, v23, vcc
v_cndmask_b32 v31, 7, v22, vcc
v_and_b32 v27, 31, v0
v_min_u32 v27, 27, v27
v_lshl_add_u32 v27, v27, 7, s{f_}
v_bfe_u32 v26, v0, 5, 1
v_mul_u32_u24 v26, {BSTRIDE}, v26
v_add_u32 v27, v27, v26
v_accvgpr_read_b32 v24, a254
v_accvgpr_read_b32 v25, a255
s_mov_b32 s{sCnt}, 7
s_mov_b32 s{sTW}, 0
s_mov_b32 s{sT2W}, 0""")
    first, even, odd, last = gen_attention(li)
    l0 = Block(); l0.e("L_att_start:")
    if OPT.get("bO"):
        hx = int(f32(1.5 * 2.0 ** (OPT["bO"] - 4)), 16) >> 16
        for r in range(4): l0.e(f"v_mov_b32 v{252+r}, {hex(hx * 0x10001)}")
    stamp(l0, "att0")
    l1 = Block(); stamp(l1, "loop")
    l1b = Block(); l1b.e(".p2align 6\n" + "s_nop 0\n" * OPT.get("pad3", 0) + "L_att_loop:")
    l4 = Block(); l4.e("L_att_last:"); stamp(l4, "last")
    for _ in range(OPT.get("pad2", 0)): l4.e("s_nop 0")
    if OPT.get("loopstamp"):
        l1b.e(f"s_memtime s[96:97]\ns_mov_b32 m0, s{sCnt}\ns_waitcnt lgkmcnt(0)\nv_writelane_b32 v31, s96, m0")
        for i in range(8): l4.e(f"v_readlane_b32 s{74+2*i}, v31, {7-i}\nv_readlane_b32 s{75+2*i}, v31, {7-i}")
    f = Block(); f.name = "check"
    stamp(f, "attend")
    vRL = vNM
    for _ in range(min(OPT.get("osf", 2), len(OSTORES))): emit_grp(f, OSTORES.pop(0))
    f.add(last.tailchk)
    f.e(f"s_mov_b32 s{sT}, {f32(2.0**OPT.get('lmax', 100))}")
    f.e(f"v_max3_f32 v{vT}, v{vRL+4}, v{vRL+5}, v{vRL+6}\nv_max_f32 v{vT}, v{vT}, v{vRL+7}\nv_accvgpr_read_b32 v{vT+1}, a{aCHK}")
    f.e(f"v_add_f32 v{vT}, v{vT}, v{vT+1}\nv_cmp_nlt_f32 vcc, v{vT}, s{sT}")
    f.e(f"s_cmp_lg_u64 vcc, 0\ns_cselect_b32 s{sT}, 1, 0")
    f.e(f"v_mov_b32 v{vT}, s{sT}\nv_and_b32 v{vT+1}, 3, v0\nv_lshlrev_b32 v{vT+1}, 12, v{vT+1}\ns_add_u32 s{sT}, s{sWave}, {7*4096}\ns_lshl_b32 s{sT}, s{sT}, 2\nv_add_u32 v{vT+1}, s{sT}, v{vT+1}")
    f.e(f"ds_write_b32 v{vT+1}, v{vT}", tag="VW"); f.e(f"s_add_u32 s{sT}, s{sM}, {7*16384}\nv_mov_b32 v{vT+1}, s{sT}")
    if OSTORES: emit_grp(f, OSTORES.pop(0))
    f.e(f"s_lshl_b32 s{sT}, s{sWave}, 6\ns_or_b32 s{sT}, s{sT}, {L_V}\ns_and_b32 s{sT2}, s{sTr}, 1\ns_lshl_b32 s{sT2}, s{sT2}, 12")
    for v in range(2): f.e(f"v_xor_b32 v{vRAs+v}, s{sT}, v{vVA+v}")
    for st in (1, 2):
        for v in range(2): f.e(f"v_add_u32 v{vRAs+2*st+v}, {st*65536}, v{vRAs+v}")
    for st in range(3):
        for v in range(2): f.e(f"v_xor_b32 v{vRAg+4*st+v}, s{sT2}, v{vRAs+2*st+v}\nv_xor_b32 v{vRAg+4*st+2+v}, 0x1000, v{vRAg+4*st+v}")
        f.e(f"v_add_u32 v{vRB[st]}, {st*65536}, v{vL16}")
    while OSTORES: emit_grp(f, OSTORES.pop(0))
    f.wait(lgkm="VW", vm=[f"U{u}" for u in RD[-1]]); f.e("s_barrier")
    f.e(f"ds_read_b128 v[2:5], v{vT+1}", tag="FL")
    for u in RD[-1]: f.ext(ureads(u))
    f.wait(lgkm="FL")
    f.e(f"v_or_b32 v2, v2, v3\nv_or3_b32 v2, v2, v4, v5\nv_readfirstlane_b32 s{sT}, v2")
    f.e(f"s_andn2_b32 s{sT}, s{sT}, s{sFB}\ns_cmp_lg_u32 s{sT}, 0\n" + ("" if OPT.get("nofb") else "s_cbranch_scc1 L_fallback"))
    k = Block(); k.name = "tail"
    stamp(k, "tail0")
    su = II(f"""s_and_b32 s{sT}, s{sHead}, 7
s_mul_i32 s{sT}, s{sT}, 124
s_sub_u32 s{sT}, {WS_FO-WS_FH}, s{sT}
v_add_u32 v26, s{sT}, v21
v_mov_b32 v25, 1
v_and_b32 v{vPA}, 7, v0
s_lshr_b32 s{sT}, s{sTr}, 1
s_lshl_b32 s{sT}, s{sT}, 2
s_add_u32 s{sT}, s{sT}, s{sSp}
s_lshl_b32 s{sT}, s{sT}, 10
s_add_u32 s{sT}, s{sT}, {WS_FO}
v_lshl_add_u32 v{vPA}, v{vPA}, 2, s{sT}
s_add_u32 s100, s{sWS}, s{sT}
s_addc_u32 s101, s{sWS+1}, 0
v_and_b32 v27, 3, v0
v_lshlrev_b32 v27, 4, v27
v_bfe_u32 v24, v0, 2, 4
v_lshl_add_u32 v27, v24, 10, v27""")
    nU = 10
    for n in range(10):
        if n not in EARLY: emit_grp(k, udma(n))
    k.ext(su)
    k.wait(lgkm="R")
    ldf = f"buffer_load_dword v{vPoll}, v{vPA}, {SR(sWS)}, 0 offen sc1"
    allset = f"v_cmp_eq_u32 vcc, 0, v{vPoll}\ns_nop 0\ns_cmp_eq_u64 vcc, 0"
    polled = False
    def take(n):
        nonlocal nU
        if n > 21: return []
        limit = min(RD[max(m for m in range(n + 1) if m - 7 not in OPT.get("nobs", ()))][0] + 10, len(UNITS))
        r = []
        while nU < limit:
            kd, a_ = UNITS[nU]
            if kd == "Bs" and not (polled and (a_ < 4 or n - 7 >= OPT["bsat"][a_])): break
            r.append(udma(nU)); nU += 1
        return r
    def pack(src, dst): return II("\n".join(f"v_cvt_pk_bf16_f32 v{dst+r}, v{src+2*r}, v{src+2*r+1}" for r in range(8)) + "\n" + "\n".join(f"v_min_u32 v{dst+r}, -2, v{dst+r}" for r in range(8)))
    def xst(which, lam, reg):
        return (II(f"s_xor_b32 s{sCnt}, s{sXR}, {lam*65536 + (which*4+lam)*8192}"),
                [Ins(f"buffer_store_dwordx4 {V(reg+4*m,4)}, v{vL16}, {SR(sXP)}, s{sCnt} offen offset:{m*1024} sc1") for m in range(2)], [])
    def xld(which, lam, tag, so=sCnt):
        if OPT.get("xdummy") == 2: return (II(f"s_mov_b32 s{so}, 0x40000000"), [Ins(f"buffer_load_dwordx4 {V(IN(which,lam)+4*m,4)}, v{vL16}, {SR(sXP)}, s{so} offen offset:{m*1024} sc1", tag=tag) for m in range(2)], [])
        if OPT.get("xdummy") == 1: return (II(f"s_add_u32 s{so}, s{sBo}, {(which*4+lam-1)*2048 % 4096 + ((which*4+lam-1)//2)*BSTRIDE}"), [Ins(f"buffer_load_dwordx4 {V(IN(which,lam)+4*m,4)}, v{vL16}, {SR(sB)}, s{so} offen offset:{m*1024} sc1", tag=tag) for m in range(2)], [])
        return (II(f"s_add_u32 s{so}, s{sXR}, {(which*4+lam)*8192}"),
                [Ins(f"buffer_load_dwordx4 {V(IN(which,lam)+4*m,4)}, v{vL16}, {SR(sXP)}, s{so} offen offset:{m*1024} sc1", tag=tag) for m in range(2)], [])
    IN = lambda which, lam: ACG(2 * lam, 0) + (0 if which else 8)
    def arrived(name, parts):
        regs = [IN(w_, l_) + r for w_, l_ in parts for r in range(8)]
        t = f"v_max3_u32 v28, v{regs[0]}, v{regs[1]}, v{regs[2]}\nv_max3_u32 v29, v{regs[3]}, v{regs[4]}, v{regs[5]}\n"
        for m in range(6, len(regs), 2): t += f"v_max3_u32 v{28+(m>>1)%2}, v{28+(m>>1)%2}, v{regs[m]}, v{regs[m+1]}\n"
        t += "v_max_u32 v28, v28, v29\nv_cmp_eq_u32 vcc, -1, v28\ns_nop 0\ns_cmp_eq_u64 vcc, 0"
        ld = "\n".join(x.text for w_, l_ in parts for g in [xld(w_, l_, None, sT)] for x in g[0] + g[1])
        r = poll_check(name, 0, ld, t)
        return r[:-5], r[-5:]
    G0, S0 = ACG(0, 0), ACS(2, 0)
    def unp(src, dst): return II("\n".join(f"v_lshlrev_b32 v{dst(2*r)}, 16, v{src+r}\nv_and_b32 v{dst(2*r+1)}, 0xffff0000, v{src+r}" for r in range(8)))
    gm = []
    for lam in (1, 2, 3):
        for h_ in range(2):
            for r in range(4): gm += II(f"v_lshlrev_b32 v{2+2*r}, 16, v{IN(1,lam)+4*h_+r}\nv_and_b32 v{3+2*r}, 0xffff0000, v{IN(1,lam)+4*h_+r}")
            for r in range(8): gm += II(f"v_add_f32 v{G0+8*h_+r}, v{G0+8*h_+r}, v{2+r}")
    nsum = len(gm)
    for h_ in range(2):
        g_ = lambda r: G0 + 8 * h_ + r
        for r in range(8): gm += II(f"v_mul_f32 v{2+r}, {f32(-LOG2E)}, v{g_(r)}")
        for r in range(8): gm += II(f"v_exp_f32 v{2+r}, v{2+r}") + (II(f"v_add_f32 v{r}, 1.0, v{r}") if r >= 2 else [])
        for r in range(8): gm += II(f"v_rcp_f32 v{2+r}, v{2+r}") + II(f"v_add_f32 v{8+r}, 1.0, v{8+r}" if r < 2 else f"v_mul_f32 v{g_(r-2)}, v{g_(r-2)}, v{r}")
        for r in (6, 7): gm += II(f"v_mul_f32 v{g_(r)}, v{g_(r)}, v{2+r}")
    nrest = len(gm) - nsum
    ta = II(f"""v_and_b32 v10, 15, v0
v_bfe_u32 v11, v0, 4, 2
v_and_b32 v18, 7, v0
v_xor_b32 v11, v11, v18
v_lshlrev_b32 v10, 7, v10
v_lshl_add_u32 v10, v11, 4, v10
v_add_u32 v10, s{sM}, v10
v_xor_b32 v11, 64, v10
v_and_b32 v18, 3, v0
v_lshlrev_b32 v18, 1, v18
v_bfe_u32 v19, v0, 2, 3
v_xor_b32 v18, v18, v19
v_bfe_u32 v19, v0, 2, 4
v_lshlrev_b32 v19, 7, v19
v_lshl_add_u32 v18, v18, 4, v19
v_add_u32 v18, s{sM}, v18
v_xor_b32 v19, 16, v18""")
    XR = IN(1, 1)
    at = lambda tl, y: max(q for q, gp in enumerate(tl.g) if any(x is y for x in gp.vec))
    for n in range(23):
        i = n - 7
        stamp(k, f"g{n}" if n < 7 else f"s{i}")
        tl = TL()
        if n < 7:
            for c_, j in enumerate((2, 3, 4, 5, 6, 7, 0, 1) if n == 6 else range(8)):
                for v in ((0, 1) if c_ % 2 == 0 else (1, 0)):
                    d = V(ACG(j, v), 4)
                    for m, ks in enumerate((0, 1) if v == (c_ & 1) else (1, 0)):
                        tl.add(MF(d, R(*AG(n, v, ks), 4), V(BF(n, j * 2 + ks), 4), OPT.get("bg", "0") if (n == 0 and m == 0) else d))
        else:
            for e_ in range(2):
                for v in ((0, 1) if e_ == 0 else (1, 0)):
                    d = V(ACS(2 * ((i >> 2) & 1) + e_, v), 4)
                    for m, ks in enumerate(range(8) if v == e_ else range(7, -1, -1)):
                        tl.add(MF(d, A(AS(v, (i & 3) * 8 + ks), 4), V(BF(n, e_ * 8 + ks), 4), OPT.get("bs", "0") if (i in (0, 4, 8) and m == 0) else d))
        bar = bool(RD[n]) and i not in OPT.get("nobs", ())
        need = []
        if bar:
            m = n
            while True:
                need += RD[m]; m += 1
                if m > 21 or m - 7 not in OPT.get("nobs", ()): break
        grp = []; vm = [f"U{u}" for u in need]
        assert all(u < nU for u in need), n
        if n == OPT["flagstage"]: vm.append("OS"); grp.append(([], II(f"buffer_store_dword v25, v26, {SR(sWS)}, 0 offen sc1"), []))
        ck = None
        if i == OPT["gck"]: vm.append("IG"); ck = arrived("g", [(1, 1), (1, 2), (1, 3)])
        if i == 11: vm.append("I1"); ck = arrived("s1", [(0, 1)])
        f2 = OPT.get("fin2")
        if i == 15 and not f2: vm.append("I2"); ck = arrived("s2", [(0, 2)])
        if vm: tl.scal_at(0, W(vm=vm))
        span = n == OPT["pollstage"] and OPT["polld"] == 2
        if bar: tl.scal_at(1, Ins("s_barrier"))
        if RD[n]: tl.scal_at(31, W(lgkm="R") if not span else Ins("s_waitcnt lgkmcnt(2)"))
        lo = 3
        if n == OPT["pollstage"]: tl.scal_at(OPT.get("pollgap", 2), Ins(f"s_load_dwordx8 s[{sK}:{sK+7}], s[100:101], 0 glc", tag="R"))
        if n == OPT["pollstage"] + OPT["polld"]:
            pc = poll_check("o", vPoll, ldf, allset)
            g = tl.g[2]; g.load += 2; polled = True; lo = 5
            g.vec += II(f"s_and_b64 s[{sK}:{sK+1}], s[{sK}:{sK+1}], s[{sK+2}:{sK+3}]\ns_and_b64 s[{sK+4}:{sK+5}], s[{sK+4}:{sK+5}], s[{sK+6}:{sK+7}]\ns_and_b64 s[{sK}:{sK+1}], s[{sK}:{sK+1}], s[{sK+4}:{sK+5}]\ns_and_b32 s{sK}, s{sK}, s{sK+1}") + pc[-2:]
        pk = []
        pw = OPT.get("pw2", 1)
        if n == 6: pk = [(11, 21, pack(ACG(2, 0), ACG(2, 0)))] if not pw else [(11, 31, pack(ACG(2, 0), ACG(2, 0)) + pack(ACG(4, 0), ACG(4, 0))[:8])]
        gst = OPT.get("gst", 0)
        if i == 0 and gst == 0: pk = [(0, 14, pack(ACG(4, 0), ACG(4, 0))), (8, 24, pack(ACG(6, 0), ACG(6, 0)))] if not pw else [(0, 25, pack(ACG(4, 0), ACG(4, 0))[8:] + pack(ACG(6, 0), ACG(6, 0)))]
        if i == 0 and gst > 0: pk = [(0, 31, pack(ACG(4, 0), ACG(4, 0))[8 if pw else 0:] + pack(ACG(6, 0), ACG(6, 0)))]
        if i in (4, 8, 12): pk = [(4 if not pw else 2, (OPT.get("s3lo", 16) - 2) if (i == 12 or not pw) else 24, pack(ACS(2 * ((i // 4 + 1) & 1), 0), IN(0, i // 4)))]
        grp += take(n)
        if i == OPT["gld"]: grp += [xld(1, lam, "IG") for lam in (1, 2, 3)]
        if i == 8: grp.append(xld(0, 1, "I1"))
        g1 = OPT.get("g1early", 0)
        if i == gst: grp += [xst(1, lam, IN(1, lam)) for lam in (1, 2, 3) if lam > g1]
        if n == 6 and g1: late_ = [xst(1, lam, IN(1, lam)) for lam in range(1, g1 + 1)]
        else: late_ = []
        if i in (4, 8, 12): grp.append(xst(0, i // 4, IN(0, i // 4)))
        if i == 12:
            lo = OPT.get("s3lo", 16)
            grp += [([], II(f"buffer_load_dwordx4 {V(XR,4)}, v27, {SR(sX)}, s{sOo} offen\nbuffer_load_dwordx4 {V(XR+4,4)}, v27, {SR(sX)}, s{sXW} offen"), []), xld(0, 2, "I2")]
            assert not any({f"v{XR+r}" for r in range(8)} & y.reads for y in gm)
        if i == OPT.get("i3st", 15): lo = OPT["i3gap"]; grp.append(xld(0, 3, "I3"))
        if i == 0 and gst == 0 and g1 and len(grp) == 3 - g1: lo = 17
        spill = []
        while sum(len(g[1]) + len(g[0]) // 2 for g in grp) > 22: spill.insert(0, grp.pop())
        nv = sum(len(g[1]) for g in grp)
        if grp and n < 7 and OPT.get("gfront"):
            q = lo - 1
            for g in grp:
                gp = tl.g[q]; gp.vec += g[0] + g[1]; gp.load += 6; q += OPT["gfront"]
            for g in spill: tl.g[q].vec += g[0] + g[1]; tl.g[q].load += 6; q += OPT["gfront"]
            spill = []
        elif grp: tl.spread(lo, min(29, lo + 4 * nv - 4) if i > 0 else (29 if not late_ else 18), grp)
        if late_: tl.spread(24, 29, late_); grp += late_
        rd = [x for u in RD[n] for x in ureads(u)]
        if span: rd += II(f"ds_read_b32 v28, v{vL16}\nds_read_b32 v28, v{vL16}")
        if len(rd) > 26: tl.vec_in(2, OPT.get("grh", 25), rd)
        elif rd:
            rh = OPT.get("rh", 20)
            while rh < 27 and sum(tl.g[q].load == 0 for q in range(2, rh + 1)) < len(rd): rh += 1
            free = [q for q in range(2, rh + 1) if tl.g[q].load == 0]
            drop = len(free) - len(rd)
            if drop < 0: tl.vec_in(2, 27, rd)
            else:
                for m in range(drop): free[(2 * m + 1) * len(free) // (2 * drop)] = None
                for x, q in zip(rd, [q for q in free if q is not None]): tl.vec_at(q, x)
        for lo_, hi_, its in pk:
            room = sum(max(0, 2 - tl.g[q].load) for q in range(lo_, hi_ + 1))
            left = tl.stream(lo_, hi_, its, cap=2 if room >= len(its) else 3); assert not left, (n, len(left))
            for y in its:
                for q, gp in enumerate(tl.g): assert not (gp.m.writes & y.reads) or at(tl, y) >= q, n
                for g in grp:
                    for x in g[1]: assert not (y.writes & x.reads) or at(tl, x) > at(tl, y), n
        q0 = 0
        if ck:
            left = tl.stream(0, 29, ck[0]); assert not left
            q0 = at(tl, ck[0][-1]) + 1; tl.g[q0].vec += ck[1]; tl.g[q0].load += 2; q0 += 1
        if i == 5: left = tl.stream(0, 31, ta); assert not left
        if i == 11: left = tl.stream(q0, 29, unp(IN(0, 1), lambda r: S0 + r)); assert not left
        if f2 and i == 14:
            TT = lambda r: IN(1, 2) + r if r < 8 else IN(1, 3) + r - 8
            assert not gm or not any({f"v{TT(r)}" for r in range(16)} & y.reads for y in gm)
            gm = tl.sched(0, f2[0] - 2, gm); assert not gm
            c2 = arrived("s2", [(0, 2)])
            left = tl.stream(f2[0] - 1, 28, [W(vm="I2")] + c2[0]); assert not left
            q2 = at(tl, c2[0][-1]) + 1; tl.g[q2].vec += c2[1]; tl.g[q2].load += 2
            l14 = tl.stream(q2 + 1, 31, unp(IN(0, 2), TT))
        if f2 and i == 15:
            xu = unp(XR, lambda r: 128 + r)
            left = tl.stream(0, f2[1] - 1, l14 + xu[:8]); assert len(left) <= 8
            c3 = arrived("s3", [(0, 3)])
            l_ = tl.stream(f2[1] - 1, 28, [W(vm="I3")] + c3[0]); assert not l_
            q3 = at(tl, c3[0][-1]) + 1; tl.g[q3].vec += c3[1]; tl.g[q3].load += 2
            u3 = unp(IN(0, 3), lambda r: 160 + r)
            def half(e_): return u3[8*e_:8*e_+8] + II("\n".join(f"v_add_f32 v{TT(r)}, v{TT(r)}, v{160+r}" for r in range(8*e_, 8*e_+8)))
            fin0 = II("\n".join(f"v_add_f32 v{S0+r}, v{S0+r}, v{TT(r)}" for r in range(8)) + "\n" + "\n".join(f"v_mul_f32 v{S0+r}, v{S0+r}, v{G0+r}" for r in range(8)))
            fin0 += II("\n".join(f"ds_write_b128 v{10+v}, {V(S0+v*4,4)}" for v in range(2))) + II("\n".join(f"ds_read_b128 {V(144+m*4,4)}, v{18+m}" for m in range(2)), tag="T0")
            l_ = tl.stream(q3 + 1, 19, half(0) + left + half(1))
            finl = tl.stream(20, 31, l_[:max(0, len(l_) - 16)] + fin0 + l_[max(0, len(l_) - 16):])
            print("final: left over", len(finl), file=sys.stderr)
        if i == 15 and not OPT.get("fin") and not f2: left = tl.stream(q0, 31, unp(IN(0, 2), lambda r: 144 + r) + unp(XR, lambda r: 128 + r)); assert not left
        if i == 15 and OPT.get("fin"):
            left = tl.stream(q0, OPT["fin"] - 1, unp(IN(0, 2), lambda r: 144 + r)); assert not left
            c3 = arrived("s3", [(0, 3)])
            left = tl.stream(OPT["fin"] - 1, 28, [W(vm="I3")] + c3[0]); assert not left
            q3 = at(tl, c3[0][-1]) + 1; tl.g[q3].vec += c3[1]; tl.g[q3].load += 2
            finl = tl.stream(q3 + 1, 31, unp(IN(0, 3), lambda r: 160 + r) + unp(XR, lambda r: 128 + r))
        if i >= OPT["gck"] and gm: gm = (tl.sched if OPT.get("gsched", 1) else tl.stream)(q0 if i == OPT["gck"] else 0, 31, gm)
        k.ext(tl.emit(0, 32, "x").ins)
        for g in spill: emit_grp(k, g)
    assert nU == len(UNITS)
    stamp(k, "send")
    print("g math left over", len(gm), file=sys.stderr)
    k.ext(gm)
    def padd(acc, tmp):
        for r in range(0, 16, 2): k.e(f"v_pk_add_f32 {V(acc+r,2)}, {V(acc+r,2)}, {V(tmp+r,2)}")
    if OPT.get("fin2"):
        k.ext(finl)
        for r in range(8, 16, 2): k.e(f"v_pk_add_f32 {V(S0+r,2)}, {V(S0+r,2)}, {V(TT(r),2)}")
        for r in range(8, 16, 2): k.e(f"v_pk_mul_f32 {V(S0+r,2)}, {V(S0+r,2)}, {V(G0+r,2)}")
        for v in range(2): k.e(f"ds_write_b128 v{10+v}, {V(S0+8+v*4,4)} offset:2048")
        for m in range(2): k.e(f"ds_read_b128 {V(152+m*4,4)}, v{18+m} offset:2048", tag="T1")
        for e_ in range(2):
            if e_: k.ext(xu[8:])
            k.wait(lgkm=f"T{e_}")
            for r in range(0, 8, 2): k.e(f"v_pk_add_f32 {V(128+8*e_+r,2)}, {V(128+8*e_+r,2)}, {V(144+8*e_+r,2)}")
            for r in range(4): k.e(f"v_cvt_pk_bf16_f32 v{176+4*e_+r}, v{128+8*e_+2*r}, v{129+8*e_+2*r}")
            k.e(f"buffer_store_dwordx4 {V(176+4*e_,4)}, v27, {SR(sOut)}, s{sXW if e_ else sOo} offen")
    else:
        if not OPT.get("fin"):
            k.wait(vm="I3")
            ck = arrived("s3", [(0, 3)]); k.ext(ck[0] + ck[1])
            stamp(k, "spolled")
            k.ext(unp(IN(0, 3), lambda r: 160 + r)); finx = []
        else:
            finx = [x for x in finl if int(list(x.writes)[0][1:]) < 144]; k.ext([x for x in finl if x not in finx])
        padd(144, 160); padd(S0, 144)
        for r in range(0, 16, 2): k.e(f"v_pk_mul_f32 {V(S0+r,2)}, {V(S0+r,2)}, {V(G0+r,2)}")
        for e_ in range(2):
            for v in range(2): k.e(f"ds_write_b128 v{10+v}, {V(S0+(e_*2+v)*4,4)} offset:{e_*2048}")
        for e_ in range(2):
            for m in range(2): k.e(f"ds_read_b128 {V(160+e_*8+m*4,4)}, v{18+m} offset:{e_*2048}", tag=f"T{e_}")
        k.ext(finx)
        for e_ in range(2):
            k.wait(lgkm=f"T{e_}")
            for r in range(0, 8, 2): k.e(f"v_pk_add_f32 {V(128+8*e_+r,2)}, {V(128+8*e_+r,2)}, {V(160+8*e_+r,2)}")
            for r in range(4): k.e(f"v_cvt_pk_bf16_f32 v{176+4*e_+r}, v{128+8*e_+2*r}, v{129+8*e_+2*r}")
            k.e(f"buffer_store_dwordx4 {V(176+4*e_,4)}, v27, {SR(sOut)}, s{sXW if e_ else sOo} offen {OPT.get('outf', '')}")
    z = Block(); z.name = "end"
    if OPT.get("encode") is not None:
        z.e("s_waitcnt vmcnt(0) lgkmcnt(0)"); stamp(z, "end")
        i0, i1 = (STAMPS[x] for x in OPT["encode"])
        fld = 72 if OPT.get("enccyc") else 73
        z.e(f"s_sub_u32 s92, s{fld+2*i1}, s{fld+2*i0}")
        if OPT.get("encx") is not None: z.e(f"s_and_b32 s3, s2, {OPT.get('encm', 7)}\ns_cmp_eq_u32 s3, {OPT['encx']}\ns_cselect_b32 s92, s92, 0")
        z.e("s_lshr_b32 s92, s92, 2" if OPT.get("enccyc") else "s_lshl_b32 s92, s92, 2")
        z.e(f"s_add_u32 s92, s92, 20000\nL_enc:\ns_sleep 1\ns_memrealtime s[98:99]\ns_waitcnt lgkmcnt(0)\ns_sub_u32 s98, s98, s73\ns_cmp_lt_u32 s98, s92\ns_cbranch_scc1 L_enc")
    elif OPT["stamp"]:
        z.e("s_waitcnt vmcnt(0) lgkmcnt(0)"); stamp(z, "end")
        z.e(f"s_load_dwordx2 s[96:97], s[0:1], 88\ns_waitcnt lgkmcnt(0)"); ptr_add(z, 96, 0x8000000 + 0x40000); srd_fin(z, 96, 0x40000)
        for i in range(20): z.e(f"v_mov_b32 v{36+i}, s{72+i}")
        z.e(f"s_lshl_b32 s92, s2, 2\ns_add_u32 s92, s92, s{sWave}\ns_lshl_b32 s92, s92, 7\nv_mov_b32 v2, s92\ns_mov_b64 exec, 1")
        for i in range(5): z.e(f"buffer_store_dwordx4 {V(36+4*i,4)}, v2, s[96:99], 0 offen offset:{16*i}")
    z.e("L_end:\ns_endpgm")
    fb = Block(); fb.name = "fb"
    fb.e(f"L_fallback:\ns_mov_b32 s{sFB}, 1\ns_waitcnt vmcnt(0) lgkmcnt(0)\ns_barrier\ns_branch L_restart")
    m0 = Block(); m0.name = "tm0"
    m0.e(f"L_truemax:\ns_mov_b32 s{sKo}, s{sW8k}\ns_mov_b32 s{sCnt}, 16")
    for t in range(4): m0.e(f"v_mov_b32 v{vNM+4*t}, 0xff800000")
    m0.e("s_waitcnt vmcnt(0) lgkmcnt(0)")
    m1 = Block(); m1.name = "tm1"
    m1.e("L_tm_loop:\ns_barrier")
    emit_grp(m1, dma_K(0, 0, "DK")); emit_grp(m1, dma_K(1, 0, "DK"))
    m1.e("s_waitcnt vmcnt(0)\ns_barrier")
    for g in range(8):
        m1.ext(kreads(g, 0, 0, "K0")); m1.e("s_waitcnt lgkmcnt(0)")
        for t in range(4): m1.ext(qk_chain(t, 0, "0"))
        for t in range(4):
            s0 = vS + 4 * t
            m1.e(f"v_max3_f32 v{vNM+4*t}, v{vNM+4*t}, v{s0}, v{s0+1}\nv_max3_f32 v{vNM+4*t}, v{vNM+4*t}, v{s0+2}, v{s0+3}")
    m1.e(f"s_sub_u32 s{sCnt}, s{sCnt}, 1\ns_cmp_lg_u32 s{sCnt}, 0\ns_cbranch_scc1 L_tm_loop")
    m2 = Block(); m2.name = "tm2"
    rowmax_finish(m2, lambda t: vNM + 4 * t)
    m2.e(f"s_mov_b32 s{sKo}, s{sW8k}\ns_barrier")
    emit_grp(m2, dma_K(0, 0, "DK")); emit_grp(m2, dma_K(1, 0, "DK"))
    m2.e(f"s_add_u32 s{sKo}, s{sKo}, 32768\ns_waitcnt vmcnt(0)\ns_barrier")
    m2.ext(kreads(0, 0, 0, "K0")); m2.e("s_waitcnt lgkmcnt(0)\ns_branch L_att_start")
    att = [l0, first, l1, l1b, even, odd, l1b, even, odd, l4, last, f]
    front = [b2, c] + PJ['F'] + [e]; frontS = [b2, c] + PJ['S'] + [e]
    vb = []
    finalize([[b_] + front + [e2] + att + [k, z], [b_] + frontS + [e2] + att + [fb] + frontS + [m0, m1, m1, m2] + att + [k, z], [b_] + front + [m0, m1]] + [[s] for s in SLOW], vb)
    for fr in (front, frontS): check_groups([x for bb in [b_] + fr + [e2] + att + [k, z] for x in bb.ins])
    for x in vb:
        if x[0].startswith("att") or x[0] in ("projF", "projS"): print("nop:", x, file=sys.stderr)
    cend = Block(); cend.e('L_code_end:')
    layout = [b_, b2, c] + PJ['S'] + [e, e2, l0, first, l1, l1b, even, odd, l4, last, f, k, z] + (SLOW[::-1] if OPT.get('slownear', 1) else []) + PJ['F'] + [cend, fb, m0, m1, m2] + ([] if OPT.get('slownear', 1) else SLOW)
    note = {id(b2): "set-up, first loads", id(c): "set-up under the first loads", id(PJ['S'][0]): "projection, odd ids (48 FFN columns)", id(PJ['F'][0]): "projection, even ids (64 FFN columns)",
            id(PJ['S'][2]): "Q and the rest of h; scores of the first 16 keys", id(PJ['F'][2]): "Q and the rest of h; scores of the first 16 keys", id(e2): "stand-in row maximum",
            id(first): "tile 0: scores and exponentials only", id(even): "tile pair: QK of the next tile beside PV of this one", id(last): "tiles 14 and 15, normalisation and O stores",
            id(f): "check of the stand-in maximum", id(k): "tail: g stages, then the four row strips", id(fb): "stand-in was unsafe: start again", id(m0): "true row maximum over all keys", id(SLOW[-1]): "bounded waits"}
    return kernel_head(KN) + "\n".join((f"; ---- {note[id(x)]}\n" if id(x) in note else "") + x.text() for x in layout) + "\n" + kernel_desc(KN, 512, 256)


DOC = """
;
; Workgroup (q block of 256 rows, head); each wave owns 64 rows.  All products use v_mfma_f32_16x16x32_bf16, transposed (D = [columns x rows]),
;     Row statistics are computed once (8 rows per workgroup) and handed round through d_ws; a counter in d_debug says when.
;     h = silu(gate) * up goes to d_ws in fragment order.  Even ids take 64 FFN columns, odd ids 48 (two variants of the code).
;  2. attention over 16 tiles of 128 keys, K/V staged by LDS-DMA.  exp2(s - m) uses as m the maximum over the row's first 16 keys, less 32
;     (it enters as the C operand), so m never exceeds the true maximum and nothing underflows earlier than with it.  Overflow, the one way this
; Hand-offs: write-through (sc1) stores, then vmcnt + barrier, then a flag in d_ws that this launch cleared before its counter was complete;
; partial tiles are recognised by the absence of an all-ones mark written earlier in the launch.  Every wait loop is bounded.
"""
def build():
    head = open("cdna_kernels/" + NAME + ".s.ref").read().split("; Override launch")[0]
    s = head + "; @launch grid=(256,1,1) block=(256,1,1) lds=163840\n" + '.amdgcn_target "amdgcn-amd-amdhsa--gfx950"\n' + DOC.lstrip("\n")
    plan_units()
    return s + gen_kernel()

if __name__ == "__main__":
    out = sys.argv[1] if len(sys.argv) > 1 else "cdna_kernels/" + NAME + ".s"
    for a in sys.argv[2:]:
        k, v = a.split("="); OPT[k] = eval(v)
    names = OPT.get("stamps", "p0,p4,projend,att0,loop,last,tail0,gend").split(",")
    STAMPS.update({n: i + 1 for i, n in enumerate(names)}); STAMPS["start"] = 0; STAMPS["end"] = 9
    txt = build()
    def nt(pat):
        global txt
        txt = re.sub(pat, lambda m: m.group(0).replace(" lds", "") + " nt" + (" lds" if m.group(0).endswith(" lds") else ""), txt, flags=re.M)
    srs = {"w": r"s\[(8:11|12:15|16:19)\]", "k": r"s\[(20:23|24:27)\]", "t": r"s\[(44:47|48:51)\]", "x": r"s\[4:7\]"}
    for c in OPT.get("ntt", ""): nt(r"^    buffer_load_dword [av]\d+, v\d+, " + srs[c] + r".*offen$")
    for c in OPT.get("ntd", ""): nt(r"^    buffer_load_dwordx4 v\d+, " + srs[c] + r".* lds$")
    if OPT.get("ntsr"): nt(r"^    buffer_load_dwordx4 v\[7[26]:7[59]\], v58, s\[4:7\].*\d$")
    if OPT.get("ntx0"):
        parts = re.split(r"(?m)^(?=; ---- )", txt)
        for i_, p_ in enumerate(parts):
            if p_.startswith("; ---- set-up" + ("," if OPT["ntx0"] == 1 else "")):
                txt = p_; nt(r"^    buffer_load_dwordx4 v\d+, " + srs["x"] + r".* lds$"); parts[i_] = txt
        txt = "".join(parts)
    if OPT.get("ntc"): txt = txt.replace("global_load_dword v107, v[108:109], off", "global_load_dword v107, v[108:109], off nt")
    if OPT.get("ntk0"):
        parts = re.split(r"(?m)^(?=; ---- )", txt)
        for i_, p_ in enumerate(parts):
            if p_.startswith("; ---- projection"):
                txt = p_; nt(r"^    buffer_load_dwordx4 v\d+, " + srs["k"] + r".* lds$"); parts[i_] = txt
        txt = "".join(parts)
    open(out, "w").write(txt)
```

```python
import sys, math, struct, re
sys.path.insert(0, "gen")
from asmgen import *

NAME = "recurrent_scan__mha_block_cached__glu_gated_swiglu__prompt"
KN = NAME + "_kernel"
WS_ST, WS_FH, WS_FO, WS_FG, WS_FS = 0, 0x8000, 0x10000, 0x18000, 0x20000
WS_B, WS_X = 0x200000, 0x2000000
BSTRIDE = 184 * 1024
LOG2E = 1.4426950408889634
OOB = 0x7ffffff0
def f32(x): return "0x%08x" % struct.unpack("<I", struct.pack("<f", x))[0]
OPT = dict(stamp=False, early=7, pollstage=3, polld=1, htrip=2, flagstage=0, osr=1, osg=4, fgstage=5, fsstage=11, lead=5, ramp=0, dl=-32, lmax=120, htouch=0, i3st=14, i3gap=3, s3lo=12, fin2=(20, 10), tq0=0, pa=.1, pb=.75, pc=.4, x2o=.15, x3a=.92, nh=3, nhS=4, stpos=.55, sthi=.5, stposS=.52, sthiS=.51, il0=40, ilp=11, pre="Q0 S",
    sch=[(.1,'W1 r1 G1'),(.75,'x1 W2 Q1'),('o',1,1.45,1.65),(0,'r2 G2'),(1.93,'A W3'),(2.25,'x2 W4 G3 Q2'),('o',2,3.05,3.25),(0,'r3 Q3 C'),(3.7,'x3 W5'),(4.5,'W6'),('o',3,4.6,4.9)], clrpos=(7, 5), asat=(-9, -9, -9, -9, 0, 0, 1, 1, 2, 2, 3, 3, 4, 4, 6, 5), bsat=(0, 0, 0, 0, 0, 2, 2, 3, 4, 6, 6, 7, 8, 10, 10, 11), gld=4, gck=7)

L_K, L_SP, L_V = 0, 65536, 98304
sX, sWQ, sW1, sW3, sK, sV, sB, sH, sWS, sDBG, sWO, sW2, sOut = range(4, 56, 4)
sHead, sQb, sWave, sW8k, sW4k, sXb, sKo, sVo, sCnt, sT, sT2, sWQo, sW13o, sBo, sFB, sW16k = range(56, 72)
sTr, sTc, sSp = 93, 94, 95
sTW, sT2W = 100, 101
sFs, sFv = 92, sOut + 2
vL16, vKA, vVA, vDK, vDV, vIDX, vT = 1, 2, 6, 14, 18, 20, 24
vS, vNM = 32, 48
def Q(t, ds): return 64 + (t * 4 + ds) * 4
def P(pb, kk, t): return 128 + pb * 64 + (t * 4 + kk) * 4
def O(dt, t): return (dt * 4 + t) * 4
def VF(b, kk): return (128 + b * 16 if b < 4 else 148 + b * 16) + kk * 4
aL, aONES = 192, 208
def KF(b, ds): return 212 + b * 16 + ds * 4
aCHK, aZ = 244, 248
vWQA, vW13A, vDQ, vD13, vXA, vDX = 24, 28, 32, 36, 40, 44

def SR(s): return f"s[{s}:{s+3}]"
def MF(d, a, bb, c): return Ins(f"v_mfma_f32_16x16x32_bf16 {d}, {a}, {bb}, {c}")
def II(txt, tag=None): return [Ins(x, tag=tag) for x in txt.split("\n") if x.strip()]
def srd_fin(b, d, nrec):
    b.e(f"s_and_b32 s{d+1}, s{d+1}, 0xffff\ns_mov_b32 s{d+2}, {nrec}\ns_mov_b32 s{d+3}, 0x20000")
def ptr_add(b, d, off): b.e(f"s_add_u32 s{d}, s{d}, {off}\ns_addc_u32 s{d+1}, s{d+1}, 0")

def stamp_ins(i):
    if not OPT["stamp"] or i is None: return []
    return II(f"s_waitcnt lgkmcnt(0)\ns_memtime s[96:97]\ns_memrealtime s[98:99]\ns_waitcnt lgkmcnt(0)\ns_mov_b32 s{72+2*i}, s96\ns_mov_b32 s{73+2*i}, s98")
_jit = [0]
def jitter(b, wave=False):
    if not OPT.get("jit"): return
    _jit[0] += 1; n = _jit[0]
    b.e(f"s_waitcnt lgkmcnt(0)\ns_memtime s[96:97]\ns_waitcnt lgkmcnt(0)\ns_lshr_b32 s96, s96, {4 if wave else 14}\ns_add_u32 s96, s96, s2\ns_mul_i32 s96, s96, 0x9e3779b1\ns_lshr_b32 s96, s96, 16\ns_mul_i32 s96, s96, {OPT['jit'] // (8 if wave else 1)}\ns_lshr_b32 s96, s96, 16\ns_add_u32 s96, s96, 1")
    b.e(f"L_jit{n}:\ns_sleep 1\ns_sub_u32 s96, s96, 1\ns_cmp_lg_u32 s96, 0\ns_cbranch_scc1 L_jit{n}")
STAMPS = {}
def stamp(b, name):
    b.ext(stamp_ins(STAMPS.get(name)))
    if name in ("karg", "projend", "last", "tail0", "s0", "s6", "s13"): jitter(b)
    if name in ("p0", "att0", "loop", "attend", "send") or re.fullmatch(r"[gs]\d+", name): jitter(b, True)

class Gap:
    def __init__(self, m): self.m = m; self.scal = []; self.vec = []; self.load = 0
def cost_of(ins): return 2 if (ins.kind == "trans" or ins.is_vmem) else (0 if ins.kind in ("salu", "wait", "sctl", "label") else 1)
def is_ds(x): return x.kind in ("dsread", "dswrite")
def dep(a, b): return bool(a.writes & (b.reads | b.writes)) or bool(a.reads & b.writes)
class TL:
    def __init__(self): self.g = []
    def add(self, m):
        gp = Gap(m); self.g.append(gp)
        if m.op.startswith("v_smfmac"): gp.load = 1
        if "32x32" in m.op: gp.load = -4
        return len(self.g) - 1
    def pen(self, i, ins):
        gp = self.g[i]; l = gp.load + cost_of(ins)
        if is_ds(ins) and any(x.is_vmem for x in gp.vec): l += OPT.get("vmpen", .5)
        if is_ds(ins):
            if any(is_ds(x) for x in gp.vec): l += 1
            if any(x.is_valu and dep(x, ins) for x in gp.vec): l += 2
        return l
    def vec_at(self, i, ins):
        gp = self.g[i]; k = len(gp.vec)
        if is_ds(ins) or ins.is_vmem:
            while k > 0 and gp.vec[k - 1].is_valu and not dep(gp.vec[k - 1], ins): k -= 1
        gp.vec.insert(k, ins); gp.load += cost_of(ins)
    def vec_in(self, lo, hi, items):
        extra = {i: 0 for i in range(lo, hi + 1)}
        cand = []
        for it in items:
            i = min(extra, key=lambda k: (max(self.pen(k, it) + extra[k], 2), self.pen(k, it) + extra[k] if not OPT.get("pack") else 0, k)); cand.append(i); extra[i] += 2
        cand.sort()
        for i, it in zip(cand, items): self.vec_at(i, it)
        return cand
    def scal_at(self, i, ins, later=True):
        while self.g[i].scal: i += 1 if later else -1
        self.g[i].scal.append(ins); return i
    def spread(self, lo, hi, groups):
        n = sum(len(g[1]) for g in groups); k = 0; prev = lo - 3
        for grp in groups:
            sc, ve, post = grp
            for x in ve: x.grp = grp; x.role = "vec"
            first = True
            for it in ve:
                tgt = lo + (hi - lo) * k // max(n - 1, 1); k += 1
                mn = prev + 1
                if first:
                    i = max(prev + 1, tgt - len(sc) - 1)
                    for x in sc: i = self.scal_at(i, x) + 1
                    mn = max(mn, i); first = False
                cands = [j for j in range(max(mn, tgt - 1), max(mn, tgt - 1) + 4) if j < len(self.g)]
                j = min(cands, key=lambda z: (self.g[z].load, abs(z - tgt)))
                self.vec_at(j, it); prev = j
            for x in post: prev = self.scal_at(prev + 1, x)
        return prev
    def stream(self, lo, hi, items, cap=2):
        i = lo; items = list(items)
        while items and i <= hi:
            it = items[0]; c = cost_of(it)
            if c == 0:
                i += 1
                while i <= hi and self.g[i].scal: i += 1
                if i > hi: break
                self.g[i].scal.append(it); items.pop(0); continue
            if self.pen(i, it) <= cap: self.vec_at(i, it); items.pop(0)
            else: i += 1
        return items
    def sched(self, lo, hi, items, look=70, lat=6):
        items = list(items); rw = {}; pos = {}
        for x in items:
            r, w = set(x.reads), set(x.writes)
            if x.waitfor is not None:
                for y in items:
                    if y.tag is not None and any(y.tag in t for t in x.waitfor.values()): r |= y.writes; w |= y.writes
                r |= getattr(x, "guards", set()); w |= getattr(x, "guards", set())
            if x.is_vmem: r.add("vm"); w.add("vm")
            if x.kind == "salu": r.add("scc"); w.add("scc")
            rw[id(x)] = (r, w)
        dp = lambda a, b: bool(rw[id(a)][1] & (rw[id(b)][0] | rw[id(b)][1])) or bool(rw[id(a)][0] & rw[id(b)][1])
        placed = []
        def ready(k, i):
            x = items[k]
            if any(dp(y, x) for y in items[:k]): return False
            for y in placed[-40:]:
                if not dp(y, x): continue
                d = 0
                if cost_of(x) == 0 or is_ds(x) or x.is_vmem: d = 1 if cost_of(y) > 0 or cost_of(x) == 0 else 0
                if x.waitfor is not None and is_ds(y): d = lat
                if (getattr(x, "dpp", False) or getattr(x, "permlane", False)) and y.is_valu: d = 2
                if i < pos[id(y)] + d: return False
            return True
        for i in range(lo, hi + 1):
            for want in (0, 2, 1, 1, 1, 1, 1, 1):
                for k in range(min(look, len(items))):
                    x = items[k]
                    if cost_of(x) != want: continue
                    if (self.g[i].scal if want == 0 else self.pen(i, x) > 2) or not ready(k, i): continue
                    if want == 0: self.g[i].scal.append(x)
                    else: self.vec_at(i, x)
                    pos[id(x)] = i; placed.append(x); items.pop(k); break
        return items
    def emit(self, lo, hi, name):
        b = Block(); b.name = name
        for gp in self.g[lo:hi]:
            if gp.m is not None: b.add(gp.m)
            b.ext(gp.scal); b.ext(gp.vec)
        return b

SLOW = []
def poll_check(name, vreg, load_txt, ready_cmp):
    inl = II(ready_cmp) + II(f"s_cbranch_scc0 L_spin_{name}\nL_back_{name}:")
    sl = Block(); sl.name = "spin" + name
    sl.e(f"L_spin_{name}:\ns_mov_b32 s3, 0x40000\nL_spin2_{name}:\ns_sleep {OPT.get('slp', 2)}\n{load_txt}\ns_waitcnt vmcnt(0)\ns_sub_u32 s3, s3, 1\ns_cmp_eq_u32 s3, 0\ns_cbranch_scc1 L_back_{name}")
    sl.e(ready_cmp); sl.e(f"s_cbranch_scc0 L_spin2_{name}\ns_branch L_back_{name}")
    SLOW.append(sl)
    return inl

def dma_K(half, buf, tag):
    return (II(f"s_add_u32 m0, s{sW8k}, {L_K + buf*32768 + half*4096}"),
            [Ins(f"buffer_load_dwordx4 v{vDK+p}, {SR(sK)}, s{sKo} offen offset:{p*1024} lds", tag=tag) for p in range(4)],
            II(f"s_add_u32 s{sKo}, s{sKo}, {4096 if half == 0 else 28672}"))
def dma_V(half, buf, tag):
    return (II(f"s_add_u32 m0, s{sW8k}, {L_V + buf*32768 + half*4096}"),
            [Ins(f"buffer_load_dwordx4 v{vDV+(p&1)}, {SR(sV)}, s{sVo} offen offset:{p*1024} lds", tag=tag) for p in range(4)],
            II(f"s_add_u32 s{sVo}, s{sVo}, {4096 if half == 0 else 28672}"))
def emit_grp(b, d): b.ext(d[0]); b.ext(d[1]); b.ext(d[2])
def check_groups(trace):
    last = {}; cnt = {}
    for x in trace:
        g = getattr(x, "grp", None)
        if g is not None and x.role == "vec":
            for r in x.reads:
                ws_ = [sc for sc in g[0] if r in sc.writes]
                if ws_: assert last.get(r) is ws_[-1], ("group scalar clobbered", x.text, last.get(r))
            for sc in g[2]:
                for r in sc.writes & x.reads:
                    key = (id(g), r)
                    if x is g[1][0]: cnt[key] = last.get(r)
                    assert last.get(r) is cnt[key] and (len(g[1]) == 1 or last.get(r) is not sc), ("post scalar order", x.text)
        for r in x.writes:
            if r[0] == "s" or r == "m0": last[r] = x
def kreads(g, buf, fb, tag):
    return [Ins(f"ds_read_b128 {A(KF(fb,ds),4)}, v{vKA+ds} offset:{buf*32768+g*4096}", tag=tag) for ds in range(4)]
def vreads(dt, buf, fb, tag):
    return [Ins(f"ds_read_b64_tr_b16 {A(VF(fb,kk)+2*kh,2)}, v{vVA+dt} offset:{buf*32768+(32*kk+16*kh)*256}", tag=tag) for kk in range(4) for kh in range(2)]
def snake(t): return range(4) if (t % 2 == 0 or OPT.get("nosnake")) else range(3, -1, -1)
def qk_chain(t, fb, c0):
    d = V(vS + 4 * t, 4)
    return [MF(d, A(KF(fb, ds), 4), V(Q(t, ds), 4), c0 if n == 0 else d) for n, ds in enumerate(snake(t))]
def pv_chain(dt, t, fb, pb):
    d = A(O(dt, t), 4)
    return [MF(d, A(VF(fb, kk), 4), V(P(pb, kk, t), 4), d) for kk in snake(t)]
def rs(t, kp, pb): return Ins(f"v_smfmac_f32_16x16x64_bf16 {A(aL+4*t,4)}, {A(aONES,4)}, {V(P(pb,2*kp,t),8)}, v{vIDX}")

vDA, vB1, vPoll, vPA = 14, 30, 29, 23
vRAs, vRB, vRAg = 6, (12, 13, 20), 48
sM, sAo, sWOo, sW2o = sW4k, sT2, sWQo, sW13o
sBg, sQ0, sBt = sXb, sW1 + 3, sKo
sBs = [sDBG, sDBG + 1, sDBG + 2, sDBG + 3]
sXP = sH
sXW, sXR, sOo, sFl2 = sW16k, 92, sQ0, 99
sGk = list(range(sWQ, sWQ + 7))
sHp = list(range(sW3, sW3 + 4))
UNITS = []; USEQ = {}; RD = {}
def plan_units():
    for n in range(-1, 22):
        r = [("Ag", n + 1), ("Bg", n + 1)] if n < 6 else [("Bs", n - 6)]
        r = [("As", a) for a in range(16) if OPT["asat"][a] == n] + r if n == 6 else r + [("As", a) for a in range(16) if OPT["asat"][a] == n]
        RD[n] = list(range(len(UNITS), len(UNITS) + len(r))); UNITS.extend(r)
    RD[22] = []
    USEQ.update({u: n for n, u in enumerate(UNITS)})
    for a in range(16): assert OPT["asat"][a] <= 6 + a // 4
    assert OPT["asat"][14] >= 6 and max(OPT["asat"]) <= 9
def udma(n):
    kind, i = UNITS[n] if isinstance(n, int) else n
    m0 = f"s_add_u32 m0, s{sM}, {uslot((kind, i))*16384}\n"; tag = f"U{n}" if isinstance(n, int) else f"E{i}"
    rot = OPT.get("rot", 1)
    if kind[0] == "A":
        sr, so = (sW2, sW2o) if kind == "Ag" else (sWO, sWOo)
        if kind == "As": ad = f"s_xor_b32 s{sAo}, s{so}, {i*65536}"
        else: ad = f"s_lshl_b32 s{sAo}, s{sGk[i]}, 5\ns_add_u32 s{sAo}, s{sAo}, s{so}"
        return (II(m0 + ad),
                [Ins(f"buffer_load_dwordx4 v{vDA+p}, {SR(sr)}, s{sAo} offen offset:{p*1024} lds", tag=tag) for p in range(4)], [])
    if kind == "Bg":
        return (II(m0 + f"s_add_u32 s{sBt}, s{sBg}, s{sGk[i]}"),
                [Ins(f"buffer_load_dwordx4 v{vL16 if p < 2 else vB1}, {SR(sB)}, s{sBt} offen offset:{p*1024} sc1 lds", tag=tag) for p in range(4)], [])
    bs, hp = sBs[(1, 2, 3, 0)[i >> 2]], sHp[i & 3]
    return (II(m0 + f"s_add_u32 s{sBt}, s{bs}, s{hp}"),
            [Ins(f"buffer_load_dwordx4 v{vL16}, {SR(sB)}, s{sBt} offen offset:{p*1024} sc1 lds", tag=tag) for p in range(4)], [])
XSLOT = {("As", 0): 0, ("As", 1): 1, ("As", 2): 4, ("As", 3): 5}
def uslot(u): return XSLOT[u] if u not in USEQ else USEQ[u] % 10
def uloc(u): sl = uslot(u); return sl // 4, (sl % 4) * 16384
_first = list(range(160, 192, 4)) + [0, 4, 16, 20, 32, 36, 48, 52]
ASREG = _first + [r for r in range(0, 256, 4) if r not in _first]
assert ASREG[56:60] == [224, 228, 232, 236]
def AS(v, ks): return ASREG[ks * 2 + v]
def AG(i, v, ks): return ("v", 32 + (v * 2 + ks) * 4) if i % 2 == 0 else ("a", 224 + (v * 2 + ks) * 4)
def BF(n, m): return 64 + (n & 1) * 64 + m * 4
def ACG(j, v): return 192 + (j * 2 + v) * 4
def ACS(q, v): return 32 + (q * 2 + v) * 4
def ureads(u, vRAs=vRAs):
    kind, i = UNITS[u] if isinstance(u, int) else u
    st, o = uloc((kind, i))
    if kind == "As":
        return [Ins(f"ds_read_b64_tr_b16 {A(AS(v,2*i+ks)+2*kh,2)}, v{vRAs+2*st+v} offset:{o+ks*8192+kh*4096}", tag="R") for ks in range(2) for v in range(2) for kh in range(2)]
    if kind == "Ag":
        return [Ins(f"ds_read_b64_tr_b16 {R(AG(i,v,ks)[0], AG(i,v,ks)[1]+2*kh, 2)}, v{vRAg+4*st+2*kh+v} offset:{o+ks*8192}", tag="R") for v in range(2) for ks in range(2) for kh in range(2)]
    n = i if kind == "Bg" else 7 + i
    return [Ins(f"ds_read_b128 {V(BF(n,m),4)}, v{vRB[st]} offset:{o+m*1024}", tag="R") for m in range(16)]
OSTORES = []
EARLY = []

def gen_attention(l0items):
    tl = TL()
    phases = [-1, 0, 1, 2, 3, 15]
    VPOS = OPT.get("vmpos", (5, 13, 21, 29))
    start = {}; stepb = {}
    for p in phases:
        start[p] = len(tl.g)
        if p == 15:
            def qk(t, s):
                d = V(vS + 4 * (2 * (s & 1) + (t & 1)), 4)
                for n, ds in enumerate(snake(t)): tl.add(MF(d, A(KF(s & 1, ds), 4), V(Q(t, ds), 4), (V(vNM + 4 * t, 4) if not OPT.get("nm0") else "0") if n == 0 else d))
            def pv(dt, t, vs, pb, fwd):
                d = A(O(dt, t), 4)
                for kk in (range(4) if fwd else range(3, -1, -1)): tl.add(MF(d, A(VF(vs, kk), 4), V(P(pb, kk, t), 4), d))
            FR = [(i, t) for h_ in (0, 2) for i in range(4) for t in (h_, h_ + 1)]
            ost = lambda n: 128 + (FR[n][1] * 4 + FR[n][0]) * 4
            mk = lambda n: MF(A(aCHK, 4), A(aZ, 4), V(ost(n), 4), "0" if n == 0 else A(aCHK, 4))
            xb = {}; cdone = {}; chkpos = {}
            def chk(n): chkpos[n] = tl.add(mk(n))
            v3 = lambda dt: (0, 4, 1, 5)[dt & 3]
            for s in range(8):
                xb[s] = len(tl.g); qk(0, s); qk(1, s)
                for t in range(4): pv(s, t, s & 1, 0, 1 - (t & 1))
                tl.add(rs(s >> 1, s & 1, 0))
            for s in range(8):
                xb[8 + s] = len(tl.g); qk(2, s); qk(3, s)
                pv(s, 0, s & 1, 1, 1)
                if s & 1: cdone[s - 1] = len(tl.g) - 1
                pv(s, 1, s & 1, 1, 0)
                if s & 1: cdone[s] = len(tl.g) - 1
                if s == 0:
                    for t in (0, 1): tl.add(rs(t, 0, 1)); tl.add(rs(t, 1, 1))
                if s >= 4: chk(s - 4)
            for n in range(8, 16):
                i, t = FR[n]; xb[8 + n] = len(tl.g)
                if i == 0: tl.add(rs(t, 0, 1)); tl.add(rs(t, 1, 1))
                a_, b_ = (2 * i, 2 * i + 1) if t == 2 else (2 * i + 1, 2 * i)
                pv(a_, t, v3(a_), 1, 1); pv(b_, t, v3(b_), 1, 0); cdone[n] = len(tl.g) - 1
                chk(n - 4)
            xb[24] = len(tl.g)
            continue
        for s in range(8):
            stepb[p, s] = len(tl.g)
            if p != 15:
                for t in range(4):
                    for m in qk_chain(t, s & 1, V(vNM + 4 * t, 4) if not OPT.get("nm0") else "0"): tl.add(m)
            if p == -1:
                if OPT.get("bO"): tl.add(Ins(f"v_mfma_f32_32x32x16_bf16 {A(16*s,16)}, {A(aONES,4)}, v[252:255], 0"))
                else: tl.add(Ins(f"v_mfma_f32_32x32x16_bf16 {A(16*s,16)}, {A(aZ,4)}, {A(aZ,4)}, 0"))
                if s == 0: tl.add(Ins(f"v_mfma_f32_32x32x16_bf16 {A(aL,16)}, {A(aZ,4)}, {A(aZ,4)}, 0"))
            else:
                if OPT.get("rsadj"):
                    tl_ = s >> 1; order = [t for t in range(4) if t != tl_] + [tl_]
                    for n_, t in enumerate(order):
                        d = A(O(s, t), 4); fwd = (n_ + s) % 2 == 0
                        for kk in (range(4) if fwd else range(3, -1, -1)): tl.add(MF(d, A(VF(s & 1, kk), 4), V(P(p & 1, kk, t), 4), d))
                else:
                    for t in range(4):
                        for m in pv_chain(s, t, s & 1, p & 1): tl.add(m)
                if p != 15:
                    tl.add(rs(s >> 1, s & 1, p & 1))
    end = len(tl.g)
    nxt = {p: (start[phases[i + 1]] if i + 1 < len(phases) else end) for i, p in enumerate(phases)}
    for p in phases:
        if p == 15: continue
        pb = (p + 1) & 1
        for s in range(8):
            b0 = stepb[p, s]; nb = stepb[p, s + 1] if s < 7 else nxt[p]
            for t in range(4):
                sr = vS + 4 * t
                ex = [Ins(f"v_exp_f32 v{sr+r}, v{sr+r}") for r in range(4)]
                pd = P(pb, s >> 1, t) + 2 * (s & 1)
                cv = [Ins(f"v_cvt_pk_bf16_f32 v{pd+h}, v{sr+2*h}, v{sr+2*h+1}") for h in range(2)]
                if p >= 0:
                    o = b0 + 8 * t + (1 if t == 3 else 0)
                    pe = [o + 8 + 2 * r for r in range(4)]; pc = [o + 11, o + 15]
                else:
                    pe = [b0 + 4 * t + 8 + r for r in range(4)]; pc = [b0 + 4 * t + 10, b0 + 4 * t + 12]
                    if s == 7:
                        pe = [min(x, nb - 1) for x in pe]; pc = [min(x, nb - 1) for x in pc]
                        if t == 3: pe = [nb + 0, nb + 2, nb + 4, nb + 6]; pc = [nb + 3, nb + 7]
                seq = sorted([(pe[0],0,ex[0]),(pe[1],1,ex[1]),(pc[0],3 if p < 0 else 2,cv[0]),(pe[2],2.5,ex[2]),(pe[3],4,ex[3]),(pc[1],5,cv[1])], key=lambda z: (z[0], z[1]))
                for pos, _, ins in seq: tl.vec_at(pos, ins)
    for p in phases:
        if p == 15: continue
        if 0 <= p < 15:
            grps = [dma_K(0, p & 1, "DK"), dma_K(1, p & 1, "DK"), dma_V(0, (p + 1) & 1, "DV"), dma_V(1, (p + 1) & 1, "DV")]
            for s in range(8):
                tl.scal_at(stepb[p, s] + 15, W(lgkm=f"V{s}"), later=False)
                tl.scal_at(stepb[p, s] + 31, W(lgkm=f"K{(s+1)&7}"), later=False)
            if OPT.get("kvtouch", 1): grps.append(([], II(f"buffer_load_dword a252, v28, {SR(sK if p % 2 == 0 else sV)}, s{sKo if p % 2 == 0 else sVo} offen"), []))
            so, sr = (sTW, sWO) if p % 2 == 0 else (sT2W, sW2)
            grps.append((II(f"s_cmp_le_u32 s{sCnt}, {OPT.get('wtrip', 2)}\ns_cselect_b32 s{sT}, s{so}, 0x40000000"), II(f"buffer_load_dword a252, v{30 if p % 2 == 0 else 29}, {SR(sr)}, s{sT} offen"),
                         II(f"s_add_u32 s{so}, s{so}, {0x4000 if (p % 2 == 0 and OPT.get('wo2', 1)) else 0x2000}\ns_and_b32 s{so}, s{so}, {0x7fff if p % 2 == 0 else 0x3fff}")))
            if p % 2 == 0 and OPT.get("cpl", 1): grps.append(([], II("global_load_dword a252, v[24:25], off"), []))
            if p % 2 == 1:
                grps.append(([], II(f"buffer_store_dword v22, v21, {SR(sWS)}, 0 offen sc1"), []))
                tl.vec_at(stepb[p, 7] + 3, Ins("v_add_u32 v22, 1, v22"))
            clr = II(f"buffer_store_dwordx4 {A(aCHK,4)}, v{vL16}, {SR(sXP)}, s{sT2} offen offset:{1024*(p&1)} sc1")
            if OPT.get("clrpos") is not None: tl.vec_at(stepb[p, OPT["clrpos"][0]] + OPT["clrpos"][1], clr[0])
            elif not OPT.get("noclr"): grps.append(([], clr, []))
            if p % 2 == 0:
                q = stepb[p, 0] + 6
                for x in II(f"s_cmp_lt_u32 s{sCnt}, 5\ns_subb_u32 s3, s{sCnt}, 0\ns_and_b32 s{sT2}, s3, 3\ns_lshl_b32 s{sT2}, s{sT2}, 3\ns_or_b32 s{sT2}, s{sT2}, s3\ns_lshl_b32 s{sT2}, s{sT2}, 13\ns_xor_b32 s{sT2}, s{sT2}, s{sXR}\ns_cmp_gt_u32 s{sCnt}, 1\ns_cselect_b32 s{sT2}, s{sT2}, 0x40000000"):
                    q2 = tl.scal_at(q, x); assert q2 == q; q += 1
            if p % 2 == 0 and OPT.get("otouch"):
                grps.append((II(f"s_sub_u32 s3, s{sCnt}, {OPT['otouch']}\ns_mul_i32 s{sT}, s3, {BSTRIDE}\ns_add_u32 s{sT}, s{sT}, s{sBo}\ns_cmp_lt_u32 s3, 4\ns_cselect_b32 s{sT}, s{sT}, 0x40000000"), II(f"buffer_load_dword a252, v26, {SR(sB)}, s{sT} offen"), []))
            if p % 2 == 1 and OPT.get("htouch", 1):
                grps.append((II(f"s_cmp_eq_u32 s{sCnt}, {OPT.get('htrip', 1)}\ns_cselect_b32 s{sT}, s{sBg}, 0x40000000"), II(f"buffer_load_dword a252, v27, {SR(sB)}, s{sT} offen"), []))
            k = 0
            for grp in grps:
                for j, x in enumerate(grp[1]):
                    gi = stepb[p, k // len(VPOS)] + VPOS[k % len(VPOS)]; k += 1
                    if j == 0:
                        q = gi
                        for y in reversed(grp[0]):
                            q2 = tl.scal_at(q - 1, y, later=False); assert len(grp[0]) == 1 or q2 == q - 1; q = q2
                    tl.vec_at(gi, x); x.grp = grp; x.role = "vec"
                for x in grp[2]: gi = tl.scal_at(gi + 1, x)
            assert gi < stepb[p, 7]
            e_ = stepb[p, 7]
            if p % 2 == 1:
                tl.scal_at(e_ + 29, Ins(f"s_sub_u32 s{sCnt}, s{sCnt}, 1")); tl.scal_at(e_ + 30, Ins(f"s_cmp_lg_u32 s{sCnt}, 0")); tl.scal_at(e_ + 32, Ins("s_cbranch_scc1 L_att_loop"))
        for s in range(8):
            b0 = stepb[p, s]; nb = stepb[p, s + 1] if s < 7 else nxt[p]
            ns, npz = (s + 1) & 7, (p + 1 if s == 7 else p)
            if s == 7:
                i = tl.scal_at(b0 + (5 if p >= 0 else 4), W(lgkm=["V7", "K7"], vm=["DK", "DV"]))
                if not (OPT.get("nobar") and p >= 0): tl.scal_at(i + 1, Ins("s_barrier"))
            if p >= 0:
                kr = kreads(ns, (npz + 1) & 1, ns & 1, f"K{ns}"); vr = vreads(ns, npz & 1, ns & 1, f"V{ns}")
                free = [o for o in range(7 if s == 7 else 1, 32, 2) if not any(x.is_vmem for x in tl.g[b0 + o].vec)]
                assert len(free) >= 12
                for x, o in zip(kr + vr, free): tl.vec_at(b0 + o, x)
            else:
                tl.vec_in(b0 + 6, b0 + 10, kreads(ns, (npz + 1) & 1, ns & 1, f"K{ns}"))
                if s == 7: tl.vec_in(b0 + 10, nb - 1, vreads(0, 0, 0, "V0"))
                tl.scal_at(nb - 1, W(lgkm=f"K{ns}"), later=False)
    rot = OPT.get("rot", 1)
    sc = f"""s_add_u32 s{sXP}, s{sWS}, {WS_X}
s_addc_u32 s{sXP+1}, s{sWS+1}, 0
s_mov_b32 s{sXP+2}, 0x1000000
s_lshl_b32 s{sT}, s{sTr}, 2
s_add_u32 s{sT}, s{sT}, s{sTc}
s_lshl_b32 s{sT}, s{sT}, 2
s_add_u32 s{sT}, s{sT}, s{sSp}
s_lshl_b32 s{sT}, s{sT}, 16
s_lshl_b32 s{sXR}, s{sWave}, 11
s_add_u32 s{sXR}, s{sXR}, s{sT}
"""
    sc += f"""s_lshl_b32 s{sT}, s{sTc}, 8
s_lshl_b32 s{sWOo}, s{sWave}, 14
s_add_u32 s{sWOo}, s{sWOo}, s{sT}
s_mul_i32 s{sW2o}, s{sSp}, {448*1024}
s_add_u32 s{sW2o}, s{sW2o}, s{sWOo}
s_lshl_b32 s{sT}, s{sSp}, 20
s_add_u32 s{sWOo}, s{sWOo}, s{sT}
s_lshr_b32 s{sQ0}, s{sTr}, 1
s_lshl_b32 s{sQ0}, s{sQ0}, 2
s_and_b32 s{sT}, s{sTr}, 1
s_add_u32 s{sQ0}, s{sQ0}, s{sT}
s_lshl_b32 s{sQ0}, s{sQ0}, 2
s_xor_b32 s{sT}, s{sWave}, s{sSp}
s_and_b32 s{sT2}, s{sT}, 2
s_add_u32 s{sT}, s{sT}, s{sT2}
s_lshl_b32 s{sT}, s{sT}, 1
s_add_u32 s{sT}, s{sT}, s{sQ0}
s_mul_i32 s{sBg}, s{sT}, {BSTRIDE}
s_mul_i32 s{sT}, s{sSp}, {14*1024}
s_add_u32 s{sT}, s{sT}, {128*1024}
s_add_u32 s{sBg}, s{sBg}, s{sT}
s_lshl_b32 s{sT}, s{sHead}, 12
s_add_u32 s{sBo}, s{sBo}, s{sT}
s_mul_i32 s{sGk[0]}, s{sTc}, {4096*rot}
s_mul_i32 s{sHp[0]}, s{sTc}, {8192*rot}
s_lshl_b32 s{sT2}, s{sHp[0]}, 5
s_xor_b32 s{sWOo}, s{sWOo}, s{sT2}
"""
    for i in range(1, 7): sc += f"s_add_u32 s{sGk[i]}, s{sGk[i-1]}, 2048\ns_cmp_eq_u32 s{sGk[i]}, {7*2048}\ns_cselect_b32 s{sGk[i]}, 0, s{sGk[i]}\n"
    for i in range(1, 4): sc += f"s_xor_b32 s{sHp[i]}, s{sHp[0]}, {8192*i}\n"
    sc += f"""s_lshr_b32 s{sT}, s{sWave}, 1
s_mul_i32 s{sT}, s{sT}, {BSTRIDE}
s_and_b32 s3, s{sWave}, 1
s_lshl_b32 s3, s3, 12
s_add_u32 s3, s3, s{sT}
s_lshl_b32 s{sT}, s{sSp}, 15
s_add_u32 s3, s3, s{sT}
"""
    for lam in (3, 2, 1, 0):
        sc += f"s_xor_b32 s{sT}, s{sSp}, {lam}\ns_and_b32 s{sT2}, s{sT}, 2\ns_add_u32 s{sT}, s{sT}, s{sT2}\ns_lshl_b32 s{sT}, s{sT}, 1\ns_add_u32 s{sT}, s{sT}, s{sQ0}\ns_mul_i32 s{sBs[lam]}, s{sT}, {BSTRIDE}\ns_add_u32 s{sBs[lam]}, s{sBs[lam]}, s3\n"
    sc += f"""s_lshl_b32 s{sOo}, s{sT}, 14
s_lshl_b32 s{sT}, s{sTc}, 8
s_add_u32 s{sOo}, s{sOo}, s{sT}
s_lshl_b32 s{sT}, s{sWave}, 6
s_add_u32 s{sOo}, s{sOo}, s{sT}
s_add_u32 s{sXW}, s{sOo}, 16384
"""
    if OPT.get("noBg"): sc += f"s_mov_b32 s{sBg}, 0x40000000\n"
    if OPT.get("noOS"): sc += f"s_mov_b32 s{sBo}, 0x40000000\n"
    left = tl.sched(start[-1], nxt[-1] - 1, l0items + II(sc), look=200)
    print("first phase: left over", len(left), file=sys.stderr)
    tl.g[nxt[-1] - 1].vec += left
    T = vT
    for x in range(16):
        s_ = x & 7; b0, nb = xb[x], xb[x + 1]
        for h_ in range(2):
            t = (x >> 3) * 2 + h_; sr = vS + 4 * (2 * (s_ & 1) + h_); pd = P(1, s_ >> 1, t) + 2 * (s_ & 1); o = (nb if x >= 8 else b0 + 16) if h_ else b0 + 8
            for r in range(4): tl.vec_at(o + 2 * r, Ins(f"v_exp_f32 v{sr+r}, v{sr+r}"))
            for h in range(2): tl.vec_at(o + 3 + 4 * h, Ins(f"v_cvt_pk_bf16_f32 v{pd+h}, v{sr+2*h}, v{sr+2*h+1}"))
    for x in range(16):
        tl.scal_at(xb[x] + 7, W(lgkm=f"V{x}"))
        if x < 15: tl.scal_at(xb[x + 1] - 1, W(lgkm=f"K{x+1}"))
    for x in range(16, 24, 2): tl.scal_at(xb[x] - 1, W(lgkm=f"V{x}"))
    tl.scal_at(xb[4] + 8, W(vm="E1")); tl.scal_at(xb[4] + 9, Ins("s_barrier"))
    tl.scal_at(xb[7] + 8, W(vm=["DV", "E3"], lgkm="R")); tl.scal_at(xb[7] + 9, Ins("s_barrier"))
    tl.scal_at(xb[15] + 8, W(lgkm="R")); tl.scal_at(xb[15] + 9, Ins("s_barrier"))
    ld1 = f"buffer_load_dword v{vPoll}, v23, {SR(sWS)}, 0 offen sc1"
    chk1 = poll_check("h", vPoll, ld1, f"v_cmp_gt_u32 vcc, v31, v{vPoll}\ns_nop 0\ns_cmp_eq_u64 vcc, 0")
    def put(grps, slots):
        slots = list(slots); prev = slots[0] - 5
        for g in grps:
            for x in g[1]:
                gi = slots.pop(0)
                if x is g[1][0] and g[0]:
                    free = [q for q in range(max(prev + 1, gi - 5), gi) if not tl.g[q].scal][-len(g[0]):]
                    free = sorted(free + [gi - 1] * (len(g[0]) - len(free)))
                    for y, q in zip(g[0], free): tl.g[q].scal.append(y)
                tl.vec_at(gi, x); x.grp = g; x.role = "vec"; prev = gi
            for y in g[2]: tl.scal_at(gi + 1, y)
    assert [UNITS[u][0] for u in range(7)] == ["Ag", "Bg", "Ag", "Bg", "As", "As", "Ag"]
    sl = [xb[x] + o for x in range(8) for o in (1, 5, 13, 21)]
    put([dma_V(0, 1, "DV"), udma(("As", 0)), udma(("As", 1)), dma_V(1, 1, "DV"), udma(("As", 2)), udma(("As", 3)), ([], [Ins(ld1, tag="C1")], [])], sl[1:])
    gp = tl.g[xb[9] + 4]; gp.vec += [W(vm="C1")] + chk1; gp.load += 1
    put([udma(0), udma(6), udma(1)], [xb[7] + 13, xb[7] + 17, xb[7] + 21, xb[8] + 1, xb[8] + 5, xb[8] + 9, xb[8] + 13, xb[9] + 1, xb[9] + 5, xb[9] + 9, xb[9] + 13, xb[10] + 1])
    EARLY[:] = [0, 1, 6] + [2, 3, 4, 5][:OPT.get("e3", 4)]
    put([udma(u) for u in EARLY[3:]], [xb[x] + 6 for x in range(16, 24)] if len(EARLY) <= 5 else [xb[x] + o for x in range(16, 24) for o in ((1, 5) if x == 16 else (0, 6))])
    su = II(f"""v_bfe_u32 v{T}, v0, 4, 2
v_mul_u32_u24 v{T}, 768, v{T}
v_add_u32 v{vDA}, v{vDV}, v{T}
v_add_u32 v{vDA+1}, v{vDV+1}, v{T}
v_add_u32 v{vDA+1}, 3072, v{vDA+1}
v_add_u32 v{vDA+2}, 6144, v{vDA}
v_add_u32 v{vDA+3}, 6144, v{vDA+1}
v_add_u32 v{vB1}, {BSTRIDE-2048}, v{vL16}""")
    su2 = II(f"""s_lshl_b32 s{sT}, s{sWave}, 6
s_or_b32 s{sT}, s{sT}, {L_V}
v_xor_b32 v25, s{sT}, v{vVA}
v_xor_b32 v26, s{sT}, v{vVA+1}
v_add_u32 v27, 0x10000, v25
v_add_u32 v28, 0x10000, v26""")
    for n in range(16):
        i, t = FR[n]
        OSTORES.append((II(f"s_add_u32 s{sCnt}, s{sBo}, {t*BSTRIDE}"),
                        [Ins(f"buffer_store_dwordx4 {V(ost(n),4)}, v{vL16}, {SR(sB)}, s{sCnt} offen offset:{1024*i} sc1", tag="OS")], []))
    ospos = {}
    for n in range(13):
        ospos[n] = xb[11 + n] + (OPT.get("os2", 9) if n < 5 else (9, 3, 2)[min(n - 5, 2)]); put([OSTORES.pop(0)], [ospos[n]])
    for x in range(15):
        nx = x + 1; b0, nb = xb[x], xb[nx]
        if x < 8:
            kr = kreads(nx & 7, 1, nx & 1, f"K{nx}"); vr = vreads(nx & 7, nx >> 3, nx & 1, f"V{nx}")
            if x == 0: tl.vec_in(b0 + 3, nb - 5, kr); tl.vec_in(b0 + 9, nb + 2, vr)
            elif x < 7: tl.vec_in(b0 + 3, nb - 2, kr + vr)
            else: tl.vec_in(b0, b0 + 7, kr); tl.vec_in(b0 + 11, nb + 3, vr)
        else:
            tl.vec_in(b0 + 3, b0 + 11, kreads(nx & 7, 1, nx & 1, f"K{nx}"))
            tl.vec_in(b0 + 8, nb + 2, vreads(nx & 7, 1, nx & 1, f"V{nx}"))
    for i in range(4):
        r = vreads(2 * i, 1, v3(2 * i), f"V{16+2*i}") + vreads(2 * i + 1, 1, v3(2 * i + 1), f"V{16+2*i}")
        tl.vec_in(xb[15] + 3 if i == 0 else xb[14 + 2 * i], xb[16 + 2 * i] - 3, r)
    left = tl.stream(xb[0], xb[1] + 4, su, cap=3); assert not left
    left = tl.stream(xb[2], xb[4], su2); assert not left
    tl.vec_in(xb[4] + 10, xb[7] + 1, ureads(("As", 0), 25) + ureads(("As", 1), 25))
    vRL = vNM
    def lr(t): return II(f"v_accvgpr_read_b32 v{vRL+4+t}, a{aL+4*t}\nv_accvgpr_read_b32 v{vRL+t}, a{aL+4*t+1}\nv_add_f32 v{vRL+4+t}, v{vRL+4+t}, v{vRL+t}\nv_rcp_f32 v{vRL+t}, v{vRL+4+t}" + (f"\nv_mul_f32 v{80+t}, {f32(-1.5 * 2.0 ** OPT['bO'])}, v{vRL+t}" if OPT.get("bO") else ""))
    left = tl.stream(xb[9] + 4, xb[10] - 1, lr(0) + lr(1), cap=4); assert not left
    where = lambda y: max(q for q, gp in enumerate(tl.g) if any(x is y for x in gp.vec))
    lo = xb[10]; tail_ = []
    for n in range(16):
        i, t = FR[n]; o = ost(n); tb = 64 + 8 * (n & 1)
        ar = [(k, O(2 * i + (k >> 2), t) + (k & 3)) for k in range(8)]
        if t == 3: ar = ar[4:] + ar[:4]
        items = (lr(t) if n in (8, 9) else []) + II("\n".join(f"v_accvgpr_read_b32 v{tb+k}, a{a_}" for k, a_ in ar))
        items += II("\n".join((f"v_fma_f32 v{tb+k}, v{tb+k}, v{vRL+t}, v{80+t}" if OPT.get("bO") else f"v_mul_f32 v{tb+k}, v{tb+k}, v{vRL+t}") for k, a_ in ar))
        items += II("\n".join(f"v_cvt_pk_bf16_f32 v{o+k}, v{tb+2*k}, v{tb+2*k+1}" for k in range(4)))
        lo = max(lo, cdone[n] + 2)
        if tail_ or lo >= end: tail_ += items; continue
        hi = min(ospos.get(n, end), chkpos.get(n, end + 1) - 1) - 1
        hi2 = min(hi, lo + (OPT.get("epspan", 17) if n < 6 else OPT.get("epspan3", 7)))
        for cap in (2, 3, 4, 5, 6, 7, 8):
            room = sum(max(0, cap - tl.g[q].load) for q in range(lo, hi2 + 1) if not any(x.is_vmem for x in tl.g[q].vec))
            if room >= len(items) + 2: break
        blocked = [q for q in range(lo, hi + 1) if any(x.is_vmem for x in tl.g[q].vec)]
        for q in blocked: tl.g[q].load += 10
        left = tl.stream(lo, hi, items, cap=cap)
        for q in blocked: tl.g[q].load -= 10
        if left: assert n >= 13, n; tail_ += left
        else: lo = where(items[-1])
        if n in (1, 3):
            q = where(items[7]) + 1; assert q + 12 < xb[15] + 2
            tl.vec_in(q, min(q + 24, xb[15] + 2), ureads(("As", 2 + n // 2), 25))
    print("ending: VALU left over", len(tail_), file=sys.stderr)
    blk = {p: tl.emit(start[p], nxt[p], f"att{p}") for p in phases}
    tx = lambda b: [(i.text, str(i.waitfor), i.tag) for i in b.ins]
    assert tx(blk[0]) == tx(blk[2]) and tx(blk[1]) == tx(blk[3])
    last = blk[15]
    for nm, x in (("x2", 8), ("x3", 16)):
        k_ = next(q for q, y in enumerate(last.ins) if y is tl.g[xb[x]].m); last.ins[k_:k_] = stamp_ins(STAMPS.get(nm))
    if OPT.get("osl"):
        assert len(tail_) == 20
        o13, o14 = OSTORES.pop(0), OSTORES.pop(0)
        last.ins += o13[0] + o13[1] + tail_[:8] + [mk(12)] + o14[0] + tail_[8:12] + o14[1] + [mk(13)] + tail_[12:16] + [mk(14)] + tail_[16:]
    else: last.ins += tail_[:-12] + [mk(12)] + tail_[-12:-8] + [mk(13)] + tail_[-8:-4] + [mk(14)] + tail_[-4:]
    last.tailchk = mk(15)
    return blk[-1], blk[0], blk[1], last

PARTS = [("G", 0), ("Q", 0), ("G", 1), ("Q", 1), ("G", 2), ("G", 3), ("Q", 2), ("Q", 3)]
SLOT = lambda i: (L_V + 32768, L_SP, L_V)[i % 3]
vNMU, vAQ, vAE, vIR = 32, 36, 40, 44
def XB(c, t, ks): return (c & 1) * 64 + (t * 4 + ks) * 4
def WF(fb, ks): return 212 + fb * 16 + ks * 4
def pacc(kind, u, t):
    if kind == "G": return V(128 + (u & 1) * 64 + ((u >> 1) * 4 + t) * 4, 4)
    ds, hf = u >> 1, u & 1
    return V(Q(t, ds), 4) if hf == 0 else A(128 + (t * 4 + ds) * 4, 4)
def wdma(i):
    kind, c = PARTS[i]; base = SLOT(i); g = []
    if kind == "Q":
        for half in range(2):
            g.append((II(f"s_add_u32 m0, s{sW8k}, {base + half*4096}\ns_add_u32 s{sT}, s{sWQo}, {(c*128+16*half)*8192}"),
                      [Ins(f"buffer_load_dwordx4 v{vDQ+p}, {SR(sWQ)}, s{sT} offen offset:{p*1024} lds", tag=f"DW{i}") for p in range(4)], []))
    else:
        for k, sr in enumerate((sW1, sW3)):
            g.append((II(f"s_add_u32 m0, s{sW4k}, {base + k*16384}\ns_add_u32 s{sT}, s{sW13o}, {c*128*3584}"),
                      [Ins(f"buffer_load_dwordx4 v{vD13+p}, {SR(sr)}, s{sT} offen offset:{p*1024} lds", tag=f"DW{i}") for p in range(4)], []))
    return g
def xdma(c):
    return [(II(f"s_xor_b32 m0, s100, {t*4096}\ns_xor_b32 s{sT}, s101, {t*16384 + c*256}"),
             [Ins(f"buffer_load_dwordx4 v{vDX+p}, {SR(sX)}, s{sT} offen offset:{p*1024} lds", tag=f"DX{c}") for p in range(4)], []) for t in range(4)]
def xreads(c):
    return [Ins(f"ds_read_b128 {A(XB(c,t,ks),4)}, v{vXA+ks} offset:{t*4096}", tag=f"X{c}") for t in range(4) for ks in range(4)]

def gen_proj(stats, var):
    S_ = var == "S"
    O_ = lambda k, d: OPT.get(k + var, OPT.get(k, d))
    tiles = lambda i: [0, 1, 4, 5, 2, 3] if (S_ and PARTS[i][0] == "G") else list(range(8))
    base = {"G": L_V, "Q": L_SP}
    def wreads(i, u, tag):
        kind, c = PARTS[i]; off0 = SLOT(i) - base[kind]; assert 0 <= off0 <= 32768
        r = []
        for ks in range(4):
            for kh in range(2):
                if kind == "Q": ad, off = vWQA + (u >> 1), ks * 8192 + kh * 1024 + 8 * (u & 1)
                else: ad, off = vW13A + (u >> 1), ks * 4096 + kh * 512 + 16384 * (u & 1)
                r.append(Ins(f"ds_read_b64_tr_b16 {A(WF(u&1,ks)+2*kh,2)}, v{ad} offset:{off0+off}", tag=tag))
        return r
    first_reads = wreads(0, 0, "W0")
    tl = TL(); tb = {}
    for i, (kind, c) in enumerate(PARTS):
        for pos_, u in enumerate(tiles(i)):
            tb[i, pos_] = len(tl.g)
            for t in range(4):
                d = pacc(kind, u, t)
                for n, ks in enumerate(snake(t)):
                    tl.add(MF(d, A(WF(u & 1, ks), 4), A(XB(c, t, ks), 4), OPT.get("b" + kind, "0") if (c == 0 and n == 0) else d))
            if u < 2 or (S_ and kind == "G" and u >= 4):
                d = A(aL + (8 if kind == "Q" else 0) + 4 * u, 4) if u < 2 else V(176 + 4 * (u - 4), 4)
                for kp in range(2): tl.add(Ins(f"v_smfmac_f32_16x16x64_bf16 {d}, {A(aONES,4)}, {A(WF(u&1,2*kp),8)}, v{vIDX}"))
    end = len(tl.g)
    tb[8, 0] = end
    LAST = lambda i: tb[i, len(tiles(i)) - 1]
    extra_vm = {1: ["ST"], 7: ["DK0"]}
    for i, (kind, c) in enumerate(PARTS):
        for u in range(len(tiles(i))):
            b0 = tb[i, u]; nb = tb.get((i, u + 1), tb[i + 1, 0])
            if b0 != LAST(i):
                r = wreads(i, tiles(i)[u + 1], f"W{u+1}")
                for k, x in enumerate(r): tl.vec_at(b0 + O_('wpos', (0, 1, 2, 4, 5, 6, 8, 9))[k], x)
                tl.scal_at(nb - 1, W(lgkm=f"W{u+1}"), later=False)
            else:
                vm = ([f"DW{i+1}"] if i < 7 else []) + extra_vm.get(i, [])
                tl.scal_at(b0, W(vm=vm, lgkm={4: ["X3"], 5: ["CS"], 7: ["CS"]}.get(i)))
                tl.scal_at(b0 + 1, Ins("s_barrier"))
                if i < 7:
                    nk = PARTS[i + 1][0]
                    if not 0 <= SLOT(i + 1) - base[nk] <= 32768:
                        dlt = SLOT(i + 1) - base[nk]; base[nk] += dlt
                        ad = vWQA if nk == "Q" else vW13A
                        for k in range(4): tl.vec_at(b0 + k // 2, Ins(f"v_add_u32 v{ad+k}, {dlt & 0xffffffff}, v{ad+k}"))
                    tl.vec_in(b0 + 2, b0 + 9, wreads(i + 1, 0, "W0"))
                    tl.scal_at(nb - 1, W(lgkm="W0"), later=False)
                else:
                    tl.vec_in(b0 + 2, b0 + 9, kreads(0, 0, 0, "K0"))
    P_ = lambda i, f: tb[i, 0] + int(f * (tb[i + 1, 0] - tb[i, 0]))
    def xout(c, lo, hi):
        j = tl.scal_at(lo, W(vm=f"DX{c}"))
        cc = tl.vec_in(j, hi, xreads(c))
        return cc[-1]
    def tch(dst, ad, sr, so): return Ins(f"buffer_load_dword a252, v{ad}, {SR(sr)}, {so} offen")
    TQ = lambda c: [(II(f"s_mov_b32 s{sT}, {c*128*8192}"), [tch(55, 22, sWQ, f"s{sT}")], [])]
    TG = lambda c: [(II(f"s_mov_b32 s{sT}, {c*128*3584}"), [tch(55, 23, sW1, f"s{sT}"), tch(55, 23, sW3, f"s{sT}")], [])]
    TK = [([], [tch(55, 53, sK, 0)], [])]; TV = [([], [tch(55, 53, sV, 0)], [])]
    kv = OPT.get("kvp", (9, 9, 9))
    at = lambda p: (TK if kv[0] == p else []) + (TV if kv[1] == p else []) + (TK2 if kv[2] == p else [])
    TK2 = [(II(f"s_mov_b32 s{sT}, 65536"), [tch(55, 53, sK, f"s{sT}")], [])]
    x1, x2, x3 = xdma(1), xdma(2), xdma(3)
    prev = [0]
    def sp(lo, hi, grps):
        lo = max(lo, prev[0] + 4); prev[0] = tl.spread(lo, max(hi, lo + 1), grps); return prev[0]
    SRL = [(II(f"s_lshl_b32 s{sT}, s{sCnt}, 11"), [Ins(f"buffer_load_dwordx4 {V(72+4*r,4)}, v58, {SR(sX)}, s{sT} offen offset:{512*r}", tag="SR") for r in range(2)], [])]
    CP = [([], II("global_load_dword a252, v[60:61], off"), [])]
    item = lambda n: {"W": lambda: wdma(int(n[1])), "Q": lambda: TQ(int(n[1])), "G": lambda: TG(int(n[1])), "S": lambda: SRL, "C": lambda: CP, "K": lambda: TK, "V": lambda: TV, "k": lambda: TK2,
                      "A": lambda: [([], [Ins(f"buffer_atomic_add v49, v48, {SR(sDBG)}, 0 offen", tag="AT")], [])],
                      "r": lambda: (x1, x2, x3)[int(n[1]) - 1][:1], "x": lambda: (x1, x2, x3)[int(n[1]) - 1][1:]}[n[0]]()
    PP = lambda f: P_(int(f), f - int(f))
    for ent in O_("sch", None):
        if ent[0] == "o":
            l = xout(ent[1], PP(ent[2]), min(PP(ent[3]), LAST((0, 1, 3, 4)[ent[1]]) - 6))
            assert PP(ent[2]) >= tb[(0, 0, 2, 4)[ent[1]], 0]
            if ent[1] < 3: prev[0] = max(prev[0], tl.scal_at(l + 5, W(lgkm=f"X{ent[1]}")))
        else:
            g_ = [g for n in ent[1].split() for g in item(n)]
            lo = max(PP(ent[0]), prev[0] + 4)
            sp(lo, lo + int((ent[2] if len(ent) > 2 else O_('dsp', 4.4)) * (sum(len(g[1]) for g in g_) - 1)), g_)
    w7 = O_("w7", 0)
    if not w7: sp(P_(5, .03), P_(5, .3), wdma(7))
    ld0 = f"buffer_load_dword v50, v51, {SR(sDBG)}, 0 offen sc1"
    ck0 = O_("ck0", .33)
    g = tl.g[P_(5, ck0)]
    g.vec += [W(vm="C0")] + poll_check("st" + var, 50, ld0, f"v_cmp_gt_u32 vcc, 32, v50\ns_nop 0\ns_cmp_eq_u64 vcc, 0"); g.load += 2
    sp(P_(5, ck0) + 3, P_(5, ck0 + .1), [([], [Ins(f"buffer_load_dwordx2 {V(56+2*t,2)}, v52, {SR(sWS)}, 0 offen offset:{128*t} sc1", tag="SL") for t in range(4)], [])])
    if w7:
        l = sp(P_(5, w7), P_(5, w7) + 30, wdma(7)); assert l < P_(5, min(O_("slpos", .8), 1))
    sp(0, P_(5, O_("k0e", .97)), [dma_K(0, 0, "DK0"), dma_K(1, 0, "DK0")])
    sp(P_(6, O_("v0a", .3)), P_(6, O_("v0b", .9)), [dma_V(0, 0, "DV"), dma_V(1, 0, "DV")])
    sp(P_(7, O_("v0a", .3)), P_(7, O_("v0b", .9)), [dma_K(0, 1, "DK"), dma_K(1, 1, "DK")])
    def span(tag):
        ps = [q for q, gp in enumerate(tl.g) for x in gp.vec if x.tag == tag]; return min(ps), max(ps)
    for i in range(1, 8):
        assert span(f"DW{i}")[1] < LAST(i - 1) and (i < 3 or span(f"DW{i}")[0] > LAST(i - 3) + 1), i
    for c in (1, 2, 3): assert span(f"DX{c}")[1] < span(f"X{c}")[0] and (c == 1 or span(f"DX{c}")[0] > span(f"X{c-1}")[1] + 5), c
    if not any("A" in e_[1].split() for e_ in O_("sch", None) if e_[0] != "o"): tl.vec_in(LAST(1) + 10, LAST(1) + 14, item("A")[0][1])
    assert span("AT")[0] > LAST(1) + 1
    left = tl.sched(P_(0, O_("stpos", .3)), P_(1, O_('sthi', 0)) - 1, stats); assert not left and P_(1, O_('sthi', 0)) <= tb[1, 4], len(left)
    tl.vec_in(PP(4 + O_("c0pos", .9)), PP(4 + O_("c0pos", .9)) + 6, [Ins(ld0, tag="C0")])
    for i, off in ((5, 0), (7, 1)):
        a0 = aL + 8 * off; it_ = []
        for u in range(2):
            it_ += II(f"v_accvgpr_read_b32 v22, a{a0+4*u}\nv_accvgpr_read_b32 v23, a{a0+4*u+1}\nv_add_f32 v22, v22, v23")
            it_ += [Ins(f"ds_write_b32 v21, v22 offset:{64*u}", tag="CS")]
        left = tl.stream(tb[i, 3], tb[i, 4] - 1, it_); assert not left
        if i == 5:
            it_ = []
            if S_:
                for u in range(2): it_ += II(f"v_add_f32 v{176+4*u}, v{176+4*u}, v{177+4*u}") + [Ins(f"ds_write_b32 v21, v{176+4*u} offset:{512+64*u}", tag="CS")]
            left = tl.stream(tb[i, 4] + 6, tb[i, 5] - 1, it_ + II(f"v_add_u32 v21, {L_V - L_K}, v21")); assert not left
    it = [W(vm="SL")]
    for t in range(4): it += II(f"v_rsq_f32 v{vAQ+t}, v{57+2*t}")
    for t in range(4): it += II(f"v_sub_f32 v{vNMU+t}, 0, v{56+2*t}\nv_mov_b32 v{vIR+t}, v{57+2*t}")
    for t in range(4): it += II(f"v_mul_f32 v{vAE+t}, {f32(-LOG2E)}, v{vAQ+t}\nv_mul_f32 v{vAQ+t}, {f32(LOG2E * 128 ** -0.5)}, v{vAQ+t}")
    h0 = tb[6, 0] + 2
    if O_("slpos", .8) < 1:
        left = tl.stream(P_(5, O_("slpos", .8)), tb[6, 0] - 1, it); assert not left, len(left)
        it = []
    else: it[0].guards = {f"v{56+k}" for k in range(8)}; h0 = P_(6, O_("slpos", .8) - 1) + 2
    NV = 3 if S_ else 4
    for v in range(NV): it += II(f"v_xor_b32 v{28+v}, {512 if (S_ and v == 2) else 128*v}, v54")
    def csread(v): return [Ins(f"ds_read_b128 {V(48+8*(v&1)+4*m,4)}, v{28+v} offset:{64*m}", tag=f"CG{v}") for m in range(2)]
    it += csread(0)
    for v in range(NV):
        if v < NV - 1: it += csread(v + 1)
        it += [W(lgkm=f"CG{v}")]
        for m in range(2):
            for t in range(4):
                d = 128 + m * 64 + (v * 4 + t) * 4
                for r in range(4): it += II(f"v_fmac_f32 v{d+r}, v{48+8*(v&1)+4*m+r}, v{vNMU+t}")
    mv30 = Ins(f"v_add_u32 v30, {L_V - L_K}, v28"); it.append(mv30)
    it += II(f"s_add_u32 s{sCnt}, s{sFs}, s{sBo}")
    if not S_: it += II(f"s_and_b32 s{sT2}, s{sWave}, 2\ns_lshl_b32 s{sT2}, s{sT2}, 9\nv_add_u32 v28, s{sT2}, v{vL16}\nv_xor_b32 v29, 0x400, v28")
    else:
        it += II(f"s_and_b32 s{sT2}, s{sHead}, 1\ns_lshl_b32 s{sT2}, s{sT2}, 11\nv_add_u32 v28, s{sT2}, v{vL16}\ns_xor_b32 s{sT2}, s{sHead}, s{sWave}\ns_and_b32 s{sT2}, s{sT2}, 1\ns_lshl_b32 s{sT2}, s{sT2}, 3\ns_add_u32 s{sT2}, s{sT2}, 1024\nv_add_u32 v29, s{sT2}, v{vL16}")
    rest = []
    for n in range(8):
        t, i = n >> 1, n & 1
        N = 4 if (S_ and i == 1) else 8
        gr = [128 + ((2 * i + hf) * 4 + t) * 4 + r for hf in range(2) for r in range(4)][:N]
        ur = [x + 64 for x in gr]; q = []
        if n < O_("nh", 0):
            for k in range(N): q += II(f"v_mul_f32 v{ur[k]}, v{ur[k]}, v{gr[k]}\nv_mul_f32 v{gr[k]}, v{vAE+t}, v{gr[k]}")
            for k in range(N): q += II(f"v_exp_f32 v{gr[k]}, v{gr[k]}") + (II(f"v_fma_f32 v{gr[k-2]}, v{gr[k-2]}, v{vIR+t}, v{vIR+t}") if k >= 2 else [])
            for k in range(N): q += II(f"v_rcp_f32 v{gr[k]}, v{gr[k]}") + II(f"v_fma_f32 v{gr[k+N-2]}, v{gr[k+N-2]}, v{vIR+t}, v{vIR+t}" if k < 2 else f"v_mul_f32 v{gr[k-2]}, v{gr[k-2]}, v{ur[k-2]}")
            for k in (N - 2, N - 1): q += II(f"v_mul_f32 v{gr[k]}, v{gr[k]}, v{ur[k]}")
        else:
            o = t & 1; ae, ir = V(vAE + t - o, 2), V(vIR + t - o, 2)
            for k in range(0, N, 2): q += II(f"v_pk_mul_f32 {V(ur[k],2)}, {V(ur[k],2)}, {V(gr[k],2)}\nv_pk_mul_f32 {V(gr[k],2)}, {V(gr[k],2)}, {ae} op_sel:[0,{o}] op_sel_hi:[1,{o}]")
            for k in range(N): q += II(f"v_exp_f32 v{gr[k]}, v{gr[k]}")
            for k in range(0, N, 2): q += II(f"v_pk_fma_f32 {V(gr[k],2)}, {V(gr[k],2)}, {ir}, {ir} op_sel:[0,{o},{o}] op_sel_hi:[1,{o},{o}]")
            for k in range(N): q += II(f"v_rcp_f32 v{gr[k]}, v{gr[k]}")
            for k in range(0, N, 2): q += II(f"v_pk_mul_f32 {V(gr[k],2)}, {V(gr[k],2)}, {V(ur[k],2)}")
        for k in range(N // 2): q += II(f"v_cvt_pk_bf16_f32 v{gr[0]+k}, v{gr[2*k]}, v{gr[2*k+1]}")
        q += II(f"buffer_store_dwordx{N//2} {V(gr[0],N//2)}, v{28+i}, {SR(sB)}, s{sCnt} offen sc1")
        if i == 1 and t < 3: q += II(f"s_add_u32 s{sCnt}, s{sCnt}, {BSTRIDE}")
        if n < O_("nh", 0): it += q
        else: rest += q
    lastcs = [x for x in it if x.tag == f"CG{NV-1}"][-1]
    left = tl.sched(h0, end - 1, it, look=O_("look", 70))
    assert len(left) <= 54 * O_("nh", 0) and not any(x is mv30 for x in left)
    pos = [k for k, gp in enumerate(tl.g) if any(x is lastcs for x in gp.vec)]
    assert pos and pos[0] < tb[6, 6], (pos, tb[6, 6])

    for nm, i in [(f"p{i}", i) for i in range(1, 8)]:
        tl.g[tb[i, 0]].scal = stamp_ins(STAMPS.get(nm)) + tl.g[tb[i, 0]].scal
    body = tl.emit(0, end, "proj" + var)
    print("h epilogue leftover", len(left), "of", len(it), file=sys.stderr)
    return first_reads, body, left + rest

def gen_kernel():
    b = Block(); b.name = "setup"
    b.e(f"s_cmp_ge_u32 s2, 256\ns_cbranch_scc1 L_end\ns_mov_b32 s{sFB}, 0")
    if OPT.get("shuffle"): b.e("s_and_b32 s3, s2, 7\ns_lshl_b32 s3, s3, 5\ns_lshr_b32 s2, s2, 3\ns_or_b32 s2, s2, s3")
    if OPT.get("delay"): b.e(f"s_mov_b32 s3, {OPT['delay']}\nL_dly:\ns_sub_u32 s3, s3, 1\ns_cmp_lg_u32 s3, 0\ns_cbranch_scc1 L_dly")
    if OPT["stamp"]:
        for i in range(20): b.e(f"s_mov_b32 s{72+i}, 0")
        stamp(b, "start")
    b2 = Block(); b2.name = "setup1"; b_ = b; b = b2
    b.e("L_restart:")
    for sr, off in ((sX, 0), (sW1, 48), (sW3, 56), (sWQ, 24)): b.e(f"s_load_dwordx2 s[{sr}:{sr+1}], s[0:1], {off}")
    T0, T1, T2, T3, T4 = 56, 57, 58, 59, 60
    vl, vc, vg, vi2, vi3 = 61, 62, 63, 22, 23
    b.e("s_getpc_b64 s[100:101]\nL_pc:")
    b.e(f"s_lshr_b32 s{sT}, s2, 3\ns_mul_i32 s{sT2}, s{sT}, 2560\nv_mul_u32_u24 v108, 10, v0\nv_add_u32 v108, s{sT2}, v108\nv_and_b32 v108, 0xffffff80, v108\nv_min_u32 v108, L_code_end-L_pc, v108\nv_mov_b32 v109, s101")
    b.e(f"v_add_co_u32 v108, vcc, s100, v108\nv_lshrrev_b32 v{T0}, 6, v0\nv_and_b32 v{vc}, 15, v0\nv_addc_co_u32 v109, vcc, 0, v109, vcc\nglobal_load_dword v107, v[108:109], off")
    b.e(f"v_readfirstlane_b32 s{sWave}, v{T0}\nv_bfe_u32 v{vg}, v0, 4, 2\ns_and_b32 s{sT}, s{sT}, 3\ns_lshr_b32 s{sQb}, s2, 5")
    b.e(f"s_lshl_b32 s{sW16k}, s{sWave}, 14\ns_lshl_b32 s{sXb}, s{sQb}, 18\ns_lshl_b32 s{sT2}, s{sWave}, 16\ns_add_u32 s{sXb}, s{sXb}, s{sT2}")
    b.e(f"s_lshl_b32 s100, s{sT}, 12\ns_add_u32 s100, s100, s{sW16k}\ns_lshl_b32 s101, s{sT}, 14\ns_add_u32 s101, s101, s{sXb}")
    b.e(f"s_and_b32 s{sHead}, s2, 7\ns_lshl_b32 s{sHead}, s{sHead}, 2\ns_add_u32 s{sHead}, s{sHead}, s{sT}")
    b.e(f"v_xor_b32 v{T0}, v{vg}, v{vc}\nv_lshlrev_b32 v{T0}, 4, v{T0}\nv_lshl_add_u32 v{vDX}, v{vg}, 10, v{T0}")
    for p in range(1, 4): b.e(f"v_xor_b32 v{T2}, {64*p}, v{vDX}\nv_add_u32 v{vDX+p}, {p*3072}, v{T2}")
    b.e(f"s_mov_b32 s{sX+2}, 0x200000\ns_mov_b32 s{sX+3}, 0x20000\ns_waitcnt lgkmcnt(0)")
    stamp(b, "karg")
    b.e(f"s_and_b32 s{sX+1}, s{sX+1}, 0xffff")
    xg = xdma(0); wg = wdma(0)
    emit_grp(b, xg[0])
    for sr, off in ((sK, 8), (sV, 16), (sB, 88), (sH, 88), (sWS, 88), (sDBG, 80), (sWO, 32), (sW2, 64), (sOut, 72)):
        b.e(f"s_load_dwordx2 s[{sr}:{sr+1}], s[0:1], {off}")
    b.e(f"s_and_b32 s{sT2}, s{sHead}, 3\ns_lshr_b32 s3, s{sT2}, 1\ns_add_u32 s{sT}, s3, 8\ns_mul_i32 s3, s3, 3\ns_add_u32 s3, s3, 8\ns_lshl_b32 s{sFs}, s{sT2}, 1\ns_bitcmp1_b32 s2, 0")
    b.e(f"s_cselect_b32 s{sT}, s{sT}, s{sT2}\ns_cselect_b32 s{sFs}, s3, s{sFs}\ns_add_u32 s{sT}, s{sT}, s{sT2}\ns_lshr_b32 s3, s{sHead}, 3\ns_mul_i32 s3, s3, 14\ns_add_u32 s{sT}, s{sT}, s3\ns_lshl_b32 s{sT}, s{sT}, 6")
    ptr_add(b, sW1, f"s{sT}"); ptr_add(b, sW3, f"s{sT}")
    b.e(f"s_sub_u32 s{sT2}, {512*3584}, s{sT}\ns_add_u32 s{sFs}, s{sFs}, s3\ns_add_u32 s{sFs}, s{sFs}, 128\ns_lshl_b32 s{sFs}, s{sFs}, 10")
    srd_fin(b, sW1, f"s{sT2}"); srd_fin(b, sW3, f"s{sT2}")
    b.e(f"s_lshr_b32 s{sBo}, s{sXb}, 14\nv_and_b32 v{vl}, 63, v0")
    b.e(f"v_lshrrev_b32 v{T0}, 2, v{vl}\nv_and_b32 v{T1}, 3, v0\nv_lshl_add_u32 v{T1}, v{T0}, 7, v{T1}\nv_add_u32 v{T1}, s{sBo}, v{T1}\nv_mul_u32_u24 v101, 3584, v{T1}\nv_lshl_add_u32 v103, v{T0}, 26, v101")
    if not OPT.get("noptouch"): b.e(f"buffer_load_dword v105, v103, {SR(sW1)}, 0 offen\nbuffer_load_dword v106, v103, {SR(sW3)}, 0 offen")
    b.e(f"s_lshl_b32 s{sCnt}, s{sQb}, 7\ns_lshl_b32 s{sT2}, s{sHead}, 2\ns_add_u32 s{sCnt}, s{sCnt}, s{sT2}\ns_add_u32 s{sCnt}, s{sCnt}, s{sWave}\nv_lshlrev_b32 v{vL16}, 4, v{vl}")
    for g in (xg[1], xg[2], xg[3])[:OPT.get("nx", 1)]: emit_grp(b, g)
    b.e(f"s_lshl_b32 s{sT}, s{sHead}, 8"); ptr_add(b, sWQ, f"s{sT}"); b.e(f"s_sub_u32 s{sT2}, 0x400000, s{sT}")
    srd_fin(b, sWQ, f"s{sT2}")
    b.e(f"v_lshrrev_b32 v{T0}, 3, v{vl}\nv_bfe_u32 v{T1}, v0, 1, 2\nv_lshl_add_u32 v{T1}, v{T0}, 7, v{T1}\nv_add_u32 v{T1}, s{sBo}, v{T1}\nv_and_b32 v{T2}, 1, v0\nv_lshlrev_b32 v{T2}, 7, v{T2}\nv_lshl_add_u32 v100, v{T1}, 13, v{T2}\nv_lshl_add_u32 v102, v{T0}, 26, v100")
    b.e(f"s_bfe_u32 s{sSp}, s2, 0x20001\ns_lshr_b32 s{sTc}, s2, 6\ns_bfe_u32 s{sTr}, s2, 0x30003\ns_and_b32 s{sT}, s2, 1\ns_lshl_b32 s{sT}, s{sT}, 3\ns_add_u32 s{sTr}, s{sTr}, s{sT}")
    b.e(f"s_lshl_b32 s{sW8k}, s{sWave}, 13\ns_lshl_b32 s{sW4k}, s{sWave}, 12\ns_mul_i32 s{sBo}, s{sBo}, {BSTRIDE}")
    b.e(f"s_lshl_b32 s{sWQo}, s{sWave}, 18\ns_mul_i32 s{sW13o}, s{sWave}, {32*3584}\ns_mov_b32 s{sKo}, s{sW8k}\ns_mov_b32 s{sVo}, s{sW8k}")
    b.e(f"v_mul_u32_u24 v{T0}, 3584, v{T0}\nv_and_b32 v{T1}, 7, v0\nv_and_b32 v{T2}, 1, v{vg}\nv_lshlrev_b32 v{T2}, 1, v{T2}\nv_xor_b32 v{T1}, v{T1}, v{T2}")
    for p in range(4): b.e(f"v_xor_b32 v{T2}, {4*(p&1)}, v{T1}\nv_lshl_add_u32 v{T2}, v{T2}, 4, v{T0}\nv_add_u32 v{vD13+p}, {p*27648}, v{T2}")
    b.e(f"v_lshlrev_b32 v{T0}, 2, v{vg}\nv_xor_b32 v{T0}, v{vc}, v{T0}\nv_lshlrev_b32 v{T0}, 4, v{T0}\nv_lshl_add_u32 v{vDQ}, v{vg}, 13, v{T0}")
    for p in range(1, 4): b.e(f"v_add_u32 v{vDQ+p}, {p*31744}, v{vDQ}")
    b.e("s_waitcnt lgkmcnt(0)")
    late = [xg[1], xg[2], xg[3], wg[0], wg[1]][OPT.get("nx", 1):]
    stamp(b, "a1")
    c = Block(); c.name = "setup2"
    c.e(f"s_lshl_b32 s{sT}, s{sHead}, 19"); ptr_add(c, sK, f"s{sT}"); ptr_add(c, sV, f"s{sT}")
    srd_fin(c, sK, 0x80000); srd_fin(c, sV, 0x80000)
    wso = OPT.get("wsoff", 0) << 20
    if wso: ptr_add(c, sWS, wso)
    ptr_add(c, sB, WS_B + wso); ptr_add(c, sH, WS_B + wso); srd_fin(c, sB, 128 * BSTRIDE)
    srd_fin(c, sH, 0)
    srd_fin(c, sWS, 0x28000); srd_fin(c, sDBG, 256); srd_fin(c, sOut, 0x200000)
    srd_fin(c, sWO, 0 if OPT.get("noA") else 4096 * 1024); srd_fin(c, sW2, 0 if OPT.get("noA") else 1792 * 1024)
    c.e(f"v_bfe_u32 v{vi2}, v0, 2, 2\nv_and_b32 v{vi3}, 3, v0")
    c.e(f"v_lshl_add_u32 v{T0}, v{vg}, 3, v{vi2}\nv_lshlrev_b32 v{T1}, 8, v{T0}\nv_lshl_add_u32 v{T1}, v{vi3}, 4, v{T1}\nv_add_u32 v{T1}, {L_SP}, v{T1}\nv_xor_b32 v{T3}, s{sWave}, v{vi2}")
    for i in range(4): c.e(f"v_xor_b32 v{T2}, {i}, v{T3}\nv_lshl_add_u32 v{vWQA+i}, v{T2}, 6, v{T1}")
    c.e(f"v_lshlrev_b32 v{T1}, 7, v{T0}\nv_lshl_add_u32 v{T1}, v{vi3}, 3, v{T1}\nv_add_u32 v{T1}, {L_V}, v{T1}")
    c.e(f"v_and_b32 v{T3}, 1, v{vg}\nv_lshlrev_b32 v{T3}, 1, v{T3}\nv_lshrrev_b32 v{T4}, 1, v{vi2}\nv_or_b32 v{T3}, v{T3}, v{T4}")
    c.e(f"s_and_b32 s3, s{sHead}, 1\ns_sub_u32 s{sT2}, 2, s3\ns_lshl_b32 s3, s3, 1\ns_and_b32 s{sT}, s{sWave}, 1\ns_or_b32 s{sT}, s{sT}, s3\ns_xor_b32 s3, s{sWave}, 2\ns_bitcmp1_b32 s2, 0\ns_cselect_b32 s{sT}, s{sT}, s{sWave}\ns_cselect_b32 s{sT2}, s{sT2}, s3")
    for i in (0, 2): c.e(f"v_xor_b32 v{T2}, s{sT2 if i else sT}, v{T3}\nv_lshl_add_u32 v{vW13A+i}, v{T2}, 5, v{T1}\nv_xor_b32 v{vW13A+i+1}, 32, v{vW13A+i}")
    for r in range(8): c.e(f"v_mov_b32 v{176+r}, 0")
    for r in range(4): c.e(f"v_accvgpr_write_b32 a{aCHK+r}, -1")
    c.e(f"v_xor_b32 v{T0}, v{vg}, v{vc}\nv_lshlrev_b32 v{T1}, 8, v{vc}\nv_add_u32 v{T3}, s{sW16k}, v{T1}\ns_lshl_b32 s{sT}, s{sWave}, 2")
    for i in range(4): c.e(f"v_xor_b32 v{T2}, {4*i}, v{T0}\nv_lshl_add_u32 v{vXA+i}, v{T2}, 4, v{T3}\nv_xor_b32 v{T2}, s{sT}, v{T2}\nv_lshl_add_u32 v{vKA+i}, v{T2}, 4, v{T1}")
    c.e(f"v_lshl_add_u32 v{T0}, v{vg}, 2, v{vi2}\nv_lshlrev_b32 v{T1}, 8, v{T0}\nv_lshl_add_u32 v{T1}, v{vi3}, 3, v{T1}\nv_add_u32 v{T1}, {L_V}, v{T1}\nv_and_b32 v{T0}, 7, v{T0}")
    for dt in range(8): c.e(f"v_xor_b32 v{T2}, {dt}, v{T0}\nv_lshl_add_u32 v{vVA+dt}, v{T2}, 5, v{T1}")
    c.e(f"v_lshlrev_b32 v{T1}, 8, v{vg}\nv_xor_b32 v{T0}, v{vg}, v{vc}")
    for p in range(4): c.e(f"v_xor_b32 v{T2}, {4*p}, v{T0}\nv_lshl_add_u32 v{vDK+p}, v{T2}, 4, v{T1}")
    c.e(f"v_lshlrev_b32 v{T0}, 1, v{vg}\nv_xor_b32 v{T0}, v{T0}, v{vc}")
    for p in range(2): c.e(f"v_xor_b32 v{T2}, {8*p}, v{T0}\nv_lshl_add_u32 v{vDV+p}, v{T2}, 4, v{T1}")
    if OPT.get("half1"): c.e(f"v_bfe_u32 v{T0}, v0, 1, 1\nv_add_u32 v{T0}, -1, v{T0}\nv_and_b32 v{T0}, 0x3f803f80, v{T0}")
    else: c.e(f"v_mov_b32 v{T0}, 0x3f803f80")
    for i in range(4): c.e(f"v_accvgpr_write_b32 a{aONES+i}, v{T0}")
    c.e(f"s_lshl_b32 s{sT}, s{sQb}, 5\nv_and_b32 v51, 7, v0\nv_lshlrev_b32 v51, 5, v51\ns_cmp_eq_u32 s{sFB}, 0\ns_cselect_b32 s{sT}, s{sT}, {OOB}")
    c.e(f"v_mov_b32 v{T0}, {OOB}\nv_mov_b32 v{T1}, s{sT}\nv_cmp_eq_u32 vcc, 0, v0\nv_mov_b32 v49, 1\nv_cndmask_b32 v48, v{T0}, v{T1}, vcc")
    c.e(f"s_lshl_b32 s{sT}, s{sQb}, 5\ns_add_u32 s{sT}, s{sT}, s{sHead}\ns_lshl_b32 s{sT}, s{sT}, 7\ns_add_u32 s{sT}, s{sT}, {WS_FH}\ns_cmp_eq_u32 s{sFB}, 0\ns_cselect_b32 s{sT}, s{sT}, {OOB >> 1}")
    c.e(f"s_and_b32 s{sT2}, s{sHead}, 7\ns_mul_i32 s{sT2}, s{sT2}, 124\ns_sub_u32 s{sT2}, {WS_FO-WS_FH}, s{sT2}\nv_mov_b32 v{T2}, s{sT}\nv_mad_u32_u24 v{T1}, v0, s{sT2}, v{T2}\nv_cmp_gt_u32 vcc, 2, v0\nv_mov_b32 v55, 0\nv_cndmask_b32 v53, v{T0}, v{T1}, vcc")
    c.e(f"s_lshr_b32 s{sT}, s{sXb}, 7\nv_lshlrev_b32 v52, 3, v{vc}\nv_add_u32 v52, s{sT}, v52")
    c.e(f"s_lshl_b32 s{sT}, s{sWave}, 7\nv_lshlrev_b32 v54, 4, v{vg}\nv_add_u32 v54, s{sT}, v54\nv_add_u32 v54, {L_K+32768}, v54\ns_add_u32 s{sT}, s{sT}, {L_K+32768}\nv_lshl_add_u32 v21, v{vc}, 2, s{sT}")
    for i in range(4): c.e(f"v_accvgpr_write_b32 a{aZ+i}, 0")
    c.e(f"v_and_b32 v{vIDX}, 1, v0\nv_mul_u32_u24 v{vIDX}, 0xaaaa, v{vIDX}\nv_add_u32 v{vIDX}, 0x4444, v{vIDX}")
    c.e(f"v_mfma_f32_32x32x16_bf16 {A(aL,16)}, {A(aZ,4)}, {A(aZ,4)}, 0")
    stamp(c, "a2")
    c.e(f"s_lshl_b32 s{sT2}, s{sCnt}, 4\nv_lshrrev_b32 v{T2}, 5, v{vl}\nv_lshl_add_u32 v{T1}, v{T2}, 3, s{sT2}\nv_lshl_add_u32 v{T2}, v{T2}, 9, v{vL16}\nv_and_b32 v{T3}, 31, v0\nv_cmp_eq_u32 vcc, 0, v{T3}\nv_cndmask_b32 v{T1}, v{T0}, v{T1}, vcc")
    c.e("v_mov_b32 v22, v102\nv_mov_b32 v23, v103\nv_accvgpr_write_b32 a254, v108\nv_accvgpr_write_b32 a255, v109")
    c.e("v_mov_b32 v60, v108\nv_mov_b32 v61, v109")
    su_ = c.ins; c.ins = []
    rd_scc = lambda x: x.op.startswith(("s_addc", "s_subb", "s_cselect", "s_cbranch"))
    wr_scc = lambda x: x.kind == "salu" and not x.op.startswith(("s_mov", "s_mul", "s_cselect"))
    def scc_live(k):
        for x in su_[k:]:
            if rd_scc(x): return True
            if wr_scc(x): return False
        return False
    lq = [[Ins(y.text.replace(f"s{sT}", "s95" if False else f"s{sOut+2}"), tag=y.tag) for y in ([*g[0], x] if x is g[1][0] else [x])] for g in late for x in g[1]]
    nxt_ = OPT.get("il0", 60); per = OPT.get("ilp", 10)
    outfin = [x for x in su_ if f"s{sOut+2}" in x.writes]; su_ = [x for x in su_ if x not in outfin]
    for k_, x in enumerate(su_):
        if lq and k_ >= nxt_ and not (len(lq[0]) > 1 and scc_live(k_)): c.ext(lq.pop(0)); nxt_ = k_ + per
        c.add(x)
    for q in lq: c.ext(q)
    c.ext(outfin)
    def pre_items(blk):
        for n in OPT["pre"].split():
            if n == "Q0": blk.e(f"buffer_load_dword a252, v22, {SR(sWQ)}, 0 offen")
            if n == "G1": blk.e(f"s_mov_b32 s{sT}, {128*3584}\nbuffer_load_dword a252, v23, {SR(sW1)}, s{sT} offen\nbuffer_load_dword a252, v23, {SR(sW3)}, s{sT} offen")
            if n == "S":
                blk.e(f"s_lshl_b32 s{sT}, s{sCnt}, 11")
                for r in range(2): blk.e(f"buffer_load_dwordx4 {V(72+4*r,4)}, v{T2}, {SR(sX)}, s{sT} offen offset:{512*r}", tag="SR")
        blk.e(f"buffer_store_dword v55, v53, {SR(sWS)}, 0 offen sc1")
    if not OPT.get("prelate", 1): pre_items(c)
    stamp(c, "a4")
    c_ = c; c = Block(); c.wait(vm="SR")
    X = lambda k: 88 + k + (8 if k >= 8 else 0)
    for k in range(8): c.e(f"v_lshlrev_b32 v{X(2*k)}, 16, v{72+k}\nv_and_b32 v{X(2*k+1)}, 0xffff0000, v{72+k}")
    def wred(d):
        c.e("v_add_f32 v120, v120, v121")
        for sh in (8, 4, 2, 1): c.e(f"v_add_f32_dpp v120, v120, v120 row_ror:{sh} row_mask:0xf bank_mask:0xf")
        c.e(f"v_mov_b32 v121, v120\nv_permlane16_swap_b32 v121, v120\nv_add_f32 v120, v120, v121\nv_mul_f32 v{d}, {f32(1/512)}, v120")
    for k in range(7):
        for r in range(2): c.e(f"v_add_f32 v{120+r}, v{X(8*r+k+1)}, v{X(8*r) if k == 0 else (120+r)}")
    wred(122)
    for k in range(16): c.e(f"v_sub_f32 v{X(k)}, v{X(k)}, v122")
    for k in range(8):
        for r in range(2): c.e(f"v_mul_f32 v{120+r}, v{X(8*r)}, v{X(8*r)}" if k == 0 else f"v_fmac_f32 v{120+r}, v{X(8*r+k)}, v{X(8*r+k)}")
    wred(123)
    def rnd(r): c.e(f"v_cvt_pk_bf16_f32 v{r}, v{r}, v{r}\nv_and_b32 v{r}, 0xffff0000, v{r}")
    rnd(122); rnd(123); c.e(f"v_add_f32 v123, {f32(1e-5)}, v123"); rnd(123); c.e("v_sqrt_f32 v123, v123"); rnd(123); c.e("v_mul_f32 v123, v123, v123")
    c.e(f"buffer_store_dwordx2 v[122:123], v{T1}, {SR(sWS)}, 0 offen sc1", tag="ST")
    st_ = [x for x in c.ins if x.kind != "nop"]; c = c_
    def stats():
        w_ = W(vm="SR"); w_.guards = {f"v{72+k}" for k in range(8)}
        return [w_] + [Ins(x.text, tag=x.tag) for x in st_[1:]]
    PJ = {}
    for var in "FS":
      first_reads, proj, hleft = gen_proj(stats(), var)
      e = Block(); e.name = "projepi"
      stamp(e, "projend")
      for i in range(4): e.e(f"v_xor_b32 v{24+i}, {128*i}, v30")
      def cq(i): return [Ins(f"ds_read_b128 {V(48+8*(i&1)+4*hf,4)}, v{24+i} offset:{64*hf}", tag=f"CQ{i}") for hf in range(2)]
      e.ext(cq(0) + cq(1))
      nfirst = [k for k, x in enumerate(hleft) if x.kind == "vstore"][0] + 1
      e.ext(hleft[:nfirst]); hleft = hleft[nfirst:]
      H = 192
      for ds in range(4):
          e.wait(lgkm=f"CQ{ds}")
          for t in range(4):
              d = Q(t, ds); h = H + 16 * (t & 1); o = t & 1; nm, aq = V(vNMU + t - o, 2), V(vAQ + t - o, 2); CS = 48 + 8 * (ds & 1)
              for k in range(4): e.e(f"v_accvgpr_read_b32 v{h+k}, a{128+(t*4+ds)*4+k}")
              prs = [(d, CS), (d + 2, CS + 2), (h, CS + 4), (h + 2, CS + 6)]
              for x, cs in prs: e.e(f"v_pk_fma_f32 {V(x,2)}, {V(cs,2)}, {nm}, {V(x,2)} op_sel:[0,{o},0] op_sel_hi:[1,{o},1]")
              for x, cs in prs:
                if OPT.get("bQ"): e.e(f"v_pk_fma_f32 {V(x,2)}, {V(x,2)}, {aq}, {aq} op_sel:[0,{o},{o}] op_sel_hi:[1,{o},{o}] neg_lo:[0,0,1] neg_hi:[0,0,1]")
                else: e.e(f"v_pk_mul_f32 {V(x,2)}, {V(x,2)}, {aq} op_sel:[0,{o}] op_sel_hi:[1,{o}]")
              for k, (x, cs) in enumerate(prs): e.e(f"v_cvt_pk_bf16_f32 v{d+k}, v{x}, v{x+1}")
          if ds < 2: e.ext(cq(ds + 2))
      PM = 48
      ch = [MF(V(PM + 4 * t, 4), A(KF(0, ds), 4), V(Q(t, ds), 4), "0" if n == 0 else V(PM + 4 * t, 4)) for t in range(4) for n, ds in enumerate(snake(t))]
      run = 0
      for k, x in enumerate(hleft):
          run = run + 1 if x.kind == "trans" else 0
          if ch and x.kind == "trans" and 3 <= run <= 5: e.add(ch.pop(0))
          e.add(x)
      e.ext(ch)
      h_ = Block(); h_.name = "projhead"
      if var == "F": h_.e("L_proj_F:")
      h_.wait(vm="DX0"); h_.ext(xreads(0))
      if OPT.get("prelate", 1): pre_items(h_)
      h_.wait(vm="DW0"); stamp(h_, "a6"); h_.e("s_barrier"); h_.ext(first_reads); h_.wait(lgkm="W0"); stamp(h_, "p0")
      e.e("s_cmp_eq_u32 0, 0")
      if var == "F": e.e("s_branch L_proj_join")
      PJ[var] = [h_, proj, e]
    stamp(c, "a5")
    for _ in range(OPT.get("pad1", 0)): c.e("s_nop 0")
    c.e("s_bitcmp1_b32 s2, 0\ns_cbranch_scc0 " + ("L_proj_join" if OPT.get("warm", 1) else "L_proj_F"))
    e = Block(); e.name = "join"; e.e("L_proj_join:\ns_cbranch_scc0 L_proj_F")
    e.e(f"s_cmp_lg_u32 s{sFB}, 0\ns_cbranch_scc1 L_truemax")
    e2 = Block(); e2.name = "premax"
    def rowmax_finish(blk, src, dl=0):
        for sw in ("32", "16"):
            for t in range(4): blk.e(f"v_mov_b32 v{vT+t}, v{src(t)}")
            for t in range(4): blk.e(f"v_permlane{sw}_swap_b32 v{vT+t}, v{src(t)}")
            for t in range(4): blk.e(f"v_max_f32 v{src(t) if sw == '32' else vT+t}, v{src(t)}, v{vT+t}")
        for t in range(4):
            for r in range(4): blk.e(f"v_sub_f32 v{vNM+4*t+r}, {f32(-dl) if dl else 0}, v{vT+t}")
    for t in range(4):
        s0 = PM + 4 * t
        e2.e(f"v_max3_f32 v{s0}, v{s0}, v{s0+1}, v{s0+2}\nv_max_f32 v{s0}, v{s0}, v{s0+3}")
    rowmax_finish(e2, lambda t: PM + 4 * t, OPT.get('dl', 0))
    if OPT.get("nmc") is not None:
        e2.ins = e2.ins[:-16] + II("\n".join(f"v_mov_b32 v{vNM+r}, {f32(OPT['nmc'])}" for r in range(16)))
    a_, b_2, c_2, d_, e_2, f_ = sBs[0], sBs[1], sBs[2], sBs[3], sHp[2], sHp[3]
    li = II(f"""s_lshl_b32 s{c_2}, s{sQb}, 13
s_add_u32 s{c_2}, s{c_2}, 32768
s_sub_u32 s{c_2}, s{c_2}, s{sW8k}
s_lshr_b32 s{a_}, s2, 3
s_mul_i32 s{b_2}, s{a_}, {14*1024}
s_lshl_b32 s{a_}, s{a_}, 15
s_lshl_b32 s3, s{sSp}, 20
s_add_u32 s{a_}, s{a_}, s3
s_mul_i32 s3, s{sSp}, {448*1024}
s_add_u32 s{b_2}, s{b_2}, s3
s_lshl_b32 s{d_}, s{sQb}, 5
s_add_u32 s{d_}, s{d_}, s{sHead}
s_lshl_b32 s{d_}, s{d_}, 7
s_add_u32 s{d_}, s{d_}, {WS_FH}
s_lshr_b32 s{e_2}, s{sTr}, 1
s_lshl_b32 s{e_2}, s{e_2}, 2
s_add_u32 s{e_2}, s{e_2}, s{sSp}
s_lshl_b32 s{e_2}, s{e_2}, 10
s_add_u32 s{e_2}, s{e_2}, {WS_FH}
s_mul_i32 s{f_}, s{sTc}, 3584
v_and_b32 v28, 15, v0
v_lshrrev_b32 v29, 6, v0
v_lshl_add_u32 v28, v29, 4, v28
v_bfe_u32 v29, v0, 4, 2
v_lshlrev_b32 v29, 29, v29
v_lshl_add_u32 v29, v28, 7, v29
v_add_u32 v28, s{c_2}, v29
""" + (f"s_sub_u32 s{sT}, s{sKo}, 32768\nbuffer_load_dword a252, v28, {SR(sK)}, s{sT} offen\n" if OPT.get("l0t", 0) & 1 else "") + (f"buffer_load_dword a252, v28, {SR(sV)}, s{sW8k} offen\n" if OPT.get("l0t", 0) & 2 else "") + f"""buffer_load_dword a252, v28, {SR(sV)}, s{sVo} offen
v_bfe_u32 v30, v0, 4, 1
v_mul_u32_u24 v30, 0xffff, v30
v_lshlrev_b32 v30, 13, v30
v_sub_u32 v30, v29, v30
v_add_u32 v30, s{a_}, v30
v_add_u32 v29, s{b_2}, v29
v_lshl_add_u32 v21, v0, 18, s{d_}
v_mov_b32 v22, 1
v_and_b32 v23, 7, v0
v_lshl_add_u32 v23, v23, 7, s{e_2}
v_and_b32 v24, 8, v0
v_cmp_eq_u32 vcc, 0, v24
v_and_b32 v24, 3, v0
v_lshlrev_b32 v24, 10, v24
v_xor_b32 v24, s{d_}, v24
v_cndmask_b32 v23, v24, v23, vcc
v_cndmask_b32 v31, 7, v22, vcc
v_and_b32 v27, 31, v0
v_min_u32 v27, 27, v27
v_lshl_add_u32 v27, v27, 7, s{f_}
v_bfe_u32 v26, v0, 5, 1
v_mul_u32_u24 v26, {BSTRIDE}, v26
v_add_u32 v27, v27, v26
v_accvgpr_read_b32 v24, a254
v_accvgpr_read_b32 v25, a255
s_mov_b32 s{sCnt}, 7
s_mov_b32 s{sTW}, 0
s_mov_b32 s{sT2W}, 0""")
    first, even, odd, last = gen_attention(li)
    l0 = Block(); l0.e("L_att_start:")
    if OPT.get("bO"):
        hx = int(f32(1.5 * 2.0 ** (OPT["bO"] - 4)), 16) >> 16
        for r in range(4): l0.e(f"v_mov_b32 v{252+r}, {hex(hx * 0x10001)}")
    stamp(l0, "att0")
    l1 = Block(); stamp(l1, "loop")
    l1b = Block(); l1b.e(".p2align 6\n" + "s_nop 0\n" * OPT.get("pad3", 0) + "L_att_loop:")
    l4 = Block(); l4.e("L_att_last:"); stamp(l4, "last")
    for _ in range(OPT.get("pad2", 0)): l4.e("s_nop 0")
    if OPT.get("loopstamp"):
        l1b.e(f"s_memtime s[96:97]\ns_mov_b32 m0, s{sCnt}\ns_waitcnt lgkmcnt(0)\nv_writelane_b32 v31, s96, m0")
        for i in range(8): l4.e(f"v_readlane_b32 s{74+2*i}, v31, {7-i}\nv_readlane_b32 s{75+2*i}, v31, {7-i}")
    f = Block(); f.name = "check"
    stamp(f, "attend")
    vRL = vNM
    for _ in range(min(OPT.get("osf", 2), len(OSTORES))): emit_grp(f, OSTORES.pop(0))
    f.add(last.tailchk)
    f.e(f"s_mov_b32 s{sT}, {f32(2.0**OPT.get('lmax', 100))}")
    f.e(f"v_max3_f32 v{vT}, v{vRL+4}, v{vRL+5}, v{vRL+6}\nv_max_f32 v{vT}, v{vT}, v{vRL+7}\nv_accvgpr_read_b32 v{vT+1}, a{aCHK}")
    f.e(f"v_add_f32 v{vT}, v{vT}, v{vT+1}\nv_cmp_nlt_f32 vcc, v{vT}, s{sT}")
    f.e(f"s_cmp_lg_u64 vcc, 0\ns_cselect_b32 s{sT}, 1, 0")
    f.e(f"v_mov_b32 v{vT}, s{sT}\nv_and_b32 v{vT+1}, 3, v0\nv_lshlrev_b32 v{vT+1}, 12, v{vT+1}\ns_add_u32 s{sT}, s{sWave}, {7*4096}\ns_lshl_b32 s{sT}, s{sT}, 2\nv_add_u32 v{vT+1}, s{sT}, v{vT+1}")
    f.e(f"ds_write_b32 v{vT+1}, v{vT}", tag="VW"); f.e(f"s_add_u32 s{sT}, s{sM}, {7*16384}\nv_mov_b32 v{vT+1}, s{sT}")
    if OSTORES: emit_grp(f, OSTORES.pop(0))
    f.e(f"s_lshl_b32 s{sT}, s{sWave}, 6\ns_or_b32 s{sT}, s{sT}, {L_V}\ns_and_b32 s{sT2}, s{sTr}, 1\ns_lshl_b32 s{sT2}, s{sT2}, 12")
    for v in range(2): f.e(f"v_xor_b32 v{vRAs+v}, s{sT}, v{vVA+v}")
    for st in (1, 2):
        for v in range(2): f.e(f"v_add_u32 v{vRAs+2*st+v}, {st*65536}, v{vRAs+v}")
    for st in range(3):
        for v in range(2): f.e(f"v_xor_b32 v{vRAg+4*st+v}, s{sT2}, v{vRAs+2*st+v}\nv_xor_b32 v{vRAg+4*st+2+v}, 0x1000, v{vRAg+4*st+v}")
        f.e(f"v_add_u32 v{vRB[st]}, {st*65536}, v{vL16}")
    while OSTORES: emit_grp(f, OSTORES.pop(0))
    f.wait(lgkm="VW", vm=[f"U{u}" for u in RD[-1]]); f.e("s_barrier")
    f.e(f"ds_read_b128 v[2:5], v{vT+1}", tag="FL")
    for u in RD[-1]: f.ext(ureads(u))
    f.wait(lgkm="FL")
    f.e(f"v_or_b32 v2, v2, v3\nv_or3_b32 v2, v2, v4, v5\nv_readfirstlane_b32 s{sT}, v2")
    f.e(f"s_andn2_b32 s{sT}, s{sT}, s{sFB}\ns_cmp_lg_u32 s{sT}, 0\n" + ("" if OPT.get("nofb") else "s_cbranch_scc1 L_fallback"))
    k = Block(); k.name = "tail"
    stamp(k, "tail0")
    su = II(f"""s_and_b32 s{sT}, s{sHead}, 7
s_mul_i32 s{sT}, s{sT}, 124
s_sub_u32 s{sT}, {WS_FO-WS_FH}, s{sT}
v_add_u32 v26, s{sT}, v21
v_mov_b32 v25, 1
v_and_b32 v{vPA}, 7, v0
s_lshr_b32 s{sT}, s{sTr}, 1
s_lshl_b32 s{sT}, s{sT}, 2
s_add_u32 s{sT}, s{sT}, s{sSp}
s_lshl_b32 s{sT}, s{sT}, 10
s_add_u32 s{sT}, s{sT}, {WS_FO}
v_lshl_add_u32 v{vPA}, v{vPA}, 2, s{sT}
s_add_u32 s100, s{sWS}, s{sT}
s_addc_u32 s101, s{sWS+1}, 0
v_and_b32 v27, 3, v0
v_lshlrev_b32 v27, 4, v27
v_bfe_u32 v24, v0, 2, 4
v_lshl_add_u32 v27, v24, 10, v27""")
    nU = 10
    for n in range(10):
        if n not in EARLY: emit_grp(k, udma(n))
    k.ext(su)
    k.wait(lgkm="R")
    ldf = f"buffer_load_dword v{vPoll}, v{vPA}, {SR(sWS)}, 0 offen sc1"
    allset = f"v_cmp_eq_u32 vcc, 0, v{vPoll}\ns_nop 0\ns_cmp_eq_u64 vcc, 0"
    polled = False
    def take(n):
        nonlocal nU
        if n > 21: return []
        limit = min(RD[max(m for m in range(n + 1) if m - 7 not in OPT.get("nobs", ()))][0] + 10, len(UNITS))
        r = []
        while nU < limit:
            kd, a_ = UNITS[nU]
            if kd == "Bs" and not (polled and (a_ < 4 or n - 7 >= OPT["bsat"][a_])): break
            r.append(udma(nU)); nU += 1
        return r
    def pack(src, dst): return II("\n".join(f"v_cvt_pk_bf16_f32 v{dst+r}, v{src+2*r}, v{src+2*r+1}" for r in range(8)) + "\n" + "\n".join(f"v_min_u32 v{dst+r}, -2, v{dst+r}" for r in range(8)))
    def xst(which, lam, reg):
        return (II(f"s_xor_b32 s{sCnt}, s{sXR}, {lam*65536 + (which*4+lam)*8192}"),
                [Ins(f"buffer_store_dwordx4 {V(reg+4*m,4)}, v{vL16}, {SR(sXP)}, s{sCnt} offen offset:{m*1024} sc1") for m in range(2)], [])
    def xld(which, lam, tag, so=sCnt):
        if OPT.get("xdummy") == 2: return (II(f"s_mov_b32 s{so}, 0x40000000"), [Ins(f"buffer_load_dwordx4 {V(IN(which,lam)+4*m,4)}, v{vL16}, {SR(sXP)}, s{so} offen offset:{m*1024} sc1", tag=tag) for m in range(2)], [])
        if OPT.get("xdummy") == 1: return (II(f"s_add_u32 s{so}, s{sBo}, {(which*4+lam-1)*2048 % 4096 + ((which*4+lam-1)//2)*BSTRIDE}"), [Ins(f"buffer_load_dwordx4 {V(IN(which,lam)+4*m,4)}, v{vL16}, {SR(sB)}, s{so} offen offset:{m*1024} sc1", tag=tag) for m in range(2)], [])
        return (II(f"s_add_u32 s{so}, s{sXR}, {(which*4+lam)*8192}"),
                [Ins(f"buffer_load_dwordx4 {V(IN(which,lam)+4*m,4)}, v{vL16}, {SR(sXP)}, s{so} offen offset:{m*1024} sc1", tag=tag) for m in range(2)], [])
    IN = lambda which, lam: ACG(2 * lam, 0) + (0 if which else 8)
    def arrived(name, parts):
        regs = [IN(w_, l_) + r for w_, l_ in parts for r in range(8)]
        t = f"v_max3_u32 v28, v{regs[0]}, v{regs[1]}, v{regs[2]}\nv_max3_u32 v29, v{regs[3]}, v{regs[4]}, v{regs[5]}\n"
        for m in range(6, len(regs), 2): t += f"v_max3_u32 v{28+(m>>1)%2}, v{28+(m>>1)%2}, v{regs[m]}, v{regs[m+1]}\n"
        t += "v_max_u32 v28, v28, v29\nv_cmp_eq_u32 vcc, -1, v28\ns_nop 0\ns_cmp_eq_u64 vcc, 0"
        ld = "\n".join(x.text for w_, l_ in parts for g in [xld(w_, l_, None, sT)] for x in g[0] + g[1])
        r = poll_check(name, 0, ld, t)
        return r[:-5], r[-5:]
    G0, S0 = ACG(0, 0), ACS(2, 0)
    def unp(src, dst): return II("\n".join(f"v_lshlrev_b32 v{dst(2*r)}, 16, v{src+r}\nv_and_b32 v{dst(2*r+1)}, 0xffff0000, v{src+r}" for r in range(8)))
    gm = []
    for lam in (1, 2, 3):
        for h_ in range(2):
            for r in range(4): gm += II(f"v_lshlrev_b32 v{2+2*r}, 16, v{IN(1,lam)+4*h_+r}\nv_and_b32 v{3+2*r}, 0xffff0000, v{IN(1,lam)+4*h_+r}")
            for r in range(8): gm += II(f"v_add_f32 v{G0+8*h_+r}, v{G0+8*h_+r}, v{2+r}")
    nsum = len(gm)
    for h_ in range(2):
        g_ = lambda r: G0 + 8 * h_ + r
        for r in range(8): gm += II(f"v_mul_f32 v{2+r}, {f32(-LOG2E)}, v{g_(r)}")
        for r in range(8): gm += II(f"v_exp_f32 v{2+r}, v{2+r}") + (II(f"v_add_f32 v{r}, 1.0, v{r}") if r >= 2 else [])
        for r in range(8): gm += II(f"v_rcp_f32 v{2+r}, v{2+r}") + II(f"v_add_f32 v{8+r}, 1.0, v{8+r}" if r < 2 else f"v_mul_f32 v{g_(r-2)}, v{g_(r-2)}, v{r}")
        for r in (6, 7): gm += II(f"v_mul_f32 v{g_(r)}, v{g_(r)}, v{2+r}")
    nrest = len(gm) - nsum
    ta = II(f"""v_and_b32 v10, 15, v0
v_bfe_u32 v11, v0, 4, 2
v_and_b32 v18, 7, v0
v_xor_b32 v11, v11, v18
v_lshlrev_b32 v10, 7, v10
v_lshl_add_u32 v10, v11, 4, v10
v_add_u32 v10, s{sM}, v10
v_xor_b32 v11, 64, v10
v_and_b32 v18, 3, v0
v_lshlrev_b32 v18, 1, v18
v_bfe_u32 v19, v0, 2, 3
v_xor_b32 v18, v18, v19
v_bfe_u32 v19, v0, 2, 4
v_lshlrev_b32 v19, 7, v19
v_lshl_add_u32 v18, v18, 4, v19
v_add_u32 v18, s{sM}, v18
v_xor_b32 v19, 16, v18""")
    XR = IN(1, 1)
    at = lambda tl, y: max(q for q, gp in enumerate(tl.g) if any(x is y for x in gp.vec))
    for n in range(23):
        i = n - 7
        stamp(k, f"g{n}" if n < 7 else f"s{i}")
        tl = TL()
        if n < 7:
            for c_, j in enumerate((2, 3, 4, 5, 6, 7, 0, 1) if n == 6 else range(8)):
                for v in ((0, 1) if c_ % 2 == 0 else (1, 0)):
                    d = V(ACG(j, v), 4)
                    for m, ks in enumerate((0, 1) if v == (c_ & 1) else (1, 0)):
                        tl.add(MF(d, R(*AG(n, v, ks), 4), V(BF(n, j * 2 + ks), 4), OPT.get("bg", "0") if (n == 0 and m == 0) else d))
        else:
            for e_ in range(2):
                for v in ((0, 1) if e_ == 0 else (1, 0)):
                    d = V(ACS(2 * ((i >> 2) & 1) + e_, v), 4)
                    for m, ks in enumerate(range(8) if v == e_ else range(7, -1, -1)):
                        tl.add(MF(d, A(AS(v, (i & 3) * 8 + ks), 4), V(BF(n, e_ * 8 + ks), 4), OPT.get("bs", "0") if (i in (0, 4, 8) and m == 0) else d))
        bar = bool(RD[n]) and i not in OPT.get("nobs", ())
        need = []
        if bar:
            m = n
            while True:
                need += RD[m]; m += 1
                if m > 21 or m - 7 not in OPT.get("nobs", ()): break
        grp = []; vm = [f"U{u}" for u in need]
        assert all(u < nU for u in need), n
        if n == OPT["flagstage"]: vm.append("OS"); grp.append(([], II(f"buffer_store_dword v25, v26, {SR(sWS)}, 0 offen sc1"), []))
        ck = None
        if i == OPT["gck"]: vm.append("IG"); ck = arrived("g", [(1, 1), (1, 2), (1, 3)])
        if i == 11: vm.append("I1"); ck = arrived("s1", [(0, 1)])
        f2 = OPT.get("fin2")
        if i == 15 and not f2: vm.append("I2"); ck = arrived("s2", [(0, 2)])
        if vm: tl.scal_at(0, W(vm=vm))
        span = n == OPT["pollstage"] and OPT["polld"] == 2
        if bar: tl.scal_at(1, Ins("s_barrier"))
        if RD[n]: tl.scal_at(31, W(lgkm="R") if not span else Ins("s_waitcnt lgkmcnt(2)"))
        lo = 3
        if n == OPT["pollstage"]: tl.scal_at(OPT.get("pollgap", 2), Ins(f"s_load_dwordx8 s[{sK}:{sK+7}], s[100:101], 0 glc", tag="R"))
        if n == OPT["pollstage"] + OPT["polld"]:
            pc = poll_check("o", vPoll, ldf, allset)
            g = tl.g[2]; g.load += 2; polled = True; lo = 5
            g.vec += II(f"s_and_b64 s[{sK}:{sK+1}], s[{sK}:{sK+1}], s[{sK+2}:{sK+3}]\ns_and_b64 s[{sK+4}:{sK+5}], s[{sK+4}:{sK+5}], s[{sK+6}:{sK+7}]\ns_and_b64 s[{sK}:{sK+1}], s[{sK}:{sK+1}], s[{sK+4}:{sK+5}]\ns_and_b32 s{sK}, s{sK}, s{sK+1}") + pc[-2:]
        pk = []
        pw = OPT.get("pw2", 1)
        if n == 6: pk = [(11, 21, pack(ACG(2, 0), ACG(2, 0)))] if not pw else [(11, 31, pack(ACG(2, 0), ACG(2, 0)) + pack(ACG(4, 0), ACG(4, 0))[:8])]
        gst = OPT.get("gst", 0)
        if i == 0 and gst == 0: pk = [(0, 14, pack(ACG(4, 0), ACG(4, 0))), (8, 24, pack(ACG(6, 0), ACG(6, 0)))] if not pw else [(0, 25, pack(ACG(4, 0), ACG(4, 0))[8:] + pack(ACG(6, 0), ACG(6, 0)))]
        if i == 0 and gst > 0: pk = [(0, 31, pack(ACG(4, 0), ACG(4, 0))[8 if pw else 0:] + pack(ACG(6, 0), ACG(6, 0)))]
        if i in (4, 8, 12): pk = [(4 if not pw else 2, (OPT.get("s3lo", 16) - 2) if (i == 12 or not pw) else 24, pack(ACS(2 * ((i // 4 + 1) & 1), 0), IN(0, i // 4)))]
        grp += take(n)
        if i == OPT["gld"]: grp += [xld(1, lam, "IG") for lam in (1, 2, 3)]
        if i == 8: grp.append(xld(0, 1, "I1"))
        g1 = OPT.get("g1early", 0)
        if i == gst: grp += [xst(1, lam, IN(1, lam)) for lam in (1, 2, 3) if lam > g1]
        if n == 6 and g1: late_ = [xst(1, lam, IN(1, lam)) for lam in range(1, g1 + 1)]
        else: late_ = []
        if i in (4, 8, 12): grp.append(xst(0, i // 4, IN(0, i // 4)))
        if i == 12:
            lo = OPT.get("s3lo", 16)
            grp += [([], II(f"buffer_load_dwordx4 {V(XR,4)}, v27, {SR(sX)}, s{sOo} offen\nbuffer_load_dwordx4 {V(XR+4,4)}, v27, {SR(sX)}, s{sXW} offen"), []), xld(0, 2, "I2")]
            assert not any({f"v{XR+r}" for r in range(8)} & y.reads for y in gm)
        if i == OPT.get("i3st", 15): lo = OPT["i3gap"]; grp.append(xld(0, 3, "I3"))
        if i == 0 and gst == 0 and g1 and len(grp) == 3 - g1: lo = 17
        spill = []
        while sum(len(g[1]) + len(g[0]) // 2 for g in grp) > 22: spill.insert(0, grp.pop())
        nv = sum(len(g[1]) for g in grp)
        if grp and n < 7 and OPT.get("gfront"):
            q = lo - 1
            for g in grp:
                gp = tl.g[q]; gp.vec += g[0] + g[1]; gp.load += 6; q += OPT["gfront"]
            for g in spill: tl.g[q].vec += g[0] + g[1]; tl.g[q].load += 6; q += OPT["gfront"]
            spill = []
        elif grp: tl.spread(lo, min(29, lo + 4 * nv - 4) if i > 0 else (29 if not late_ else 18), grp)
        if late_: tl.spread(24, 29, late_); grp += late_
        rd = [x for u in RD[n] for x in ureads(u)]
        if span: rd += II(f"ds_read_b32 v28, v{vL16}\nds_read_b32 v28, v{vL16}")
        if len(rd) > 26: tl.vec_in(2, OPT.get("grh", 25), rd)
        elif rd:
            rh = OPT.get("rh", 20)
            while rh < 27 and sum(tl.g[q].load == 0 for q in range(2, rh + 1)) < len(rd): rh += 1
            free = [q for q in range(2, rh + 1) if tl.g[q].load == 0]
            drop = len(free) - len(rd)
            if drop < 0: tl.vec_in(2, 27, rd)
            else:
                for m in range(drop): free[(2 * m + 1) * len(free) // (2 * drop)] = None
                for x, q in zip(rd, [q for q in free if q is not None]): tl.vec_at(q, x)
        for lo_, hi_, its in pk:
            room = sum(max(0, 2 - tl.g[q].load) for q in range(lo_, hi_ + 1))
            left = tl.stream(lo_, hi_, its, cap=2 if room >= len(its) else 3); assert not left, (n, len(left))
            for y in its:
                for q, gp in enumerate(tl.g): assert not (gp.m.writes & y.reads) or at(tl, y) >= q, n
                for g in grp:
                    for x in g[1]: assert not (y.writes & x.reads) or at(tl, x) > at(tl, y), n
        q0 = 0
        if ck:
            left = tl.stream(0, 29, ck[0]); assert not left
            q0 = at(tl, ck[0][-1]) + 1; tl.g[q0].vec += ck[1]; tl.g[q0].load += 2; q0 += 1
        if i == 5: left = tl.stream(0, 31, ta); assert not left
        if i == 11: left = tl.stream(q0, 29, unp(IN(0, 1), lambda r: S0 + r)); assert not left
        if f2 and i == 14:
            TT = lambda r: IN(1, 2) + r if r < 8 else IN(1, 3) + r - 8
            assert not gm or not any({f"v{TT(r)}" for r in range(16)} & y.reads for y in gm)
            gm = tl.sched(0, f2[0] - 2, gm); assert not gm
            c2 = arrived("s2", [(0, 2)])
            left = tl.stream(f2[0] - 1, 28, [W(vm="I2")] + c2[0]); assert not left
            q2 = at(tl, c2[0][-1]) + 1; tl.g[q2].vec += c2[1]; tl.g[q2].load += 2
            l14 = tl.stream(q2 + 1, 31, unp(IN(0, 2), TT))
        if f2 and i == 15:
            xu = unp(XR, lambda r: 128 + r)
            left = tl.stream(0, f2[1] - 1, l14 + xu[:8]); assert len(left) <= 8
            c3 = arrived("s3", [(0, 3)])
            l_ = tl.stream(f2[1] - 1, 28, [W(vm="I3")] + c3[0]); assert not l_
            q3 = at(tl, c3[0][-1]) + 1; tl.g[q3].vec += c3[1]; tl.g[q3].load += 2
            u3 = unp(IN(0, 3), lambda r: 160 + r)
            def half(e_): return u3[8*e_:8*e_+8] + II("\n".join(f"v_add_f32 v{TT(r)}, v{TT(r)}, v{160+r}" for r in range(8*e_, 8*e_+8)))
            fin0 = II("\n".join(f"v_add_f32 v{S0+r}, v{S0+r}, v{TT(r)}" for r in range(8)) + "\n" + "\n".join(f"v_mul_f32 v{S0+r}, v{S0+r}, v{G0+r}" for r in range(8)))
            fin0 += II("\n".join(f"ds_write_b128 v{10+v}, {V(S0+v*4,4)}" for v in range(2))) + II("\n".join(f"ds_read_b128 {V(144+m*4,4)}, v{18+m}" for m in range(2)), tag="T0")
            l_ = tl.stream(q3 + 1, 19, half(0) + left + half(1))
            finl = tl.stream(20, 31, l_[:max(0, len(l_) - 16)] + fin0 + l_[max(0, len(l_) - 16):])
            print("final: left over", len(finl), file=sys.stderr)
        if i == 15 and not OPT.get("fin") and not f2: left = tl.stream(q0, 31, unp(IN(0, 2), lambda r: 144 + r) + unp(XR, lambda r: 128 + r)); assert not left
        if i == 15 and OPT.get("fin"):
            left = tl.stream(q0, OPT["fin"] - 1, unp(IN(0, 2), lambda r: 144 + r)); assert not left
            c3 = arrived("s3", [(0, 3)])
            left = tl.stream(OPT["fin"] - 1, 28, [W(vm="I3")] + c3[0]); assert not left
            q3 = at(tl, c3[0][-1]) + 1; tl.g[q3].vec += c3[1]; tl.g[q3].load += 2
            finl = tl.stream(q3 + 1, 31, unp(IN(0, 3), lambda r: 160 + r) + unp(XR, lambda r: 128 + r))
        if i >= OPT["gck"] and gm: gm = (tl.sched if OPT.get("gsched", 1) else tl.stream)(q0 if i == OPT["gck"] else 0, 31, gm)
        k.ext(tl.emit(0, 32, "x").ins)
        for g in spill: emit_grp(k, g)
    assert nU == len(UNITS)
    stamp(k, "send")
    print("g math left over", len(gm), file=sys.stderr)
    k.ext(gm)
    def padd(acc, tmp):
        for r in range(0, 16, 2): k.e(f"v_pk_add_f32 {V(acc+r,2)}, {V(acc+r,2)}, {V(tmp+r,2)}")
    if OPT.get("fin2"):
        k.ext(finl)
        for r in range(8, 16, 2): k.e(f"v_pk_add_f32 {V(S0+r,2)}, {V(S0+r,2)}, {V(TT(r),2)}")
        for r in range(8, 16, 2): k.e(f"v_pk_mul_f32 {V(S0+r,2)}, {V(S0+r,2)}, {V(G0+r,2)}")
        for v in range(2): k.e(f"ds_write_b128 v{10+v}, {V(S0+8+v*4,4)} offset:2048")
        for m in range(2): k.e(f"ds_read_b128 {V(152+m*4,4)}, v{18+m} offset:2048", tag="T1")
        for e_ in range(2):
            if e_: k.ext(xu[8:])
            k.wait(lgkm=f"T{e_}")
            for r in range(0, 8, 2): k.e(f"v_pk_add_f32 {V(128+8*e_+r,2)}, {V(128+8*e_+r,2)}, {V(144+8*e_+r,2)}")
            for r in range(4): k.e(f"v_cvt_pk_bf16_f32 v{176+4*e_+r}, v{128+8*e_+2*r}, v{129+8*e_+2*r}")
            k.e(f"buffer_store_dwordx4 {V(176+4*e_,4)}, v27, {SR(sOut)}, s{sXW if e_ else sOo} offen")
    else:
        if not OPT.get("fin"):
            k.wait(vm="I3")
            ck = arrived("s3", [(0, 3)]); k.ext(ck[0] + ck[1])
            stamp(k, "spolled")
            k.ext(unp(IN(0, 3), lambda r: 160 + r)); finx = []
        else:
            finx = [x for x in finl if int(list(x.writes)[0][1:]) < 144]; k.ext([x for x in finl if x not in finx])
        padd(144, 160); padd(S0, 144)
        for r in range(0, 16, 2): k.e(f"v_pk_mul_f32 {V(S0+r,2)}, {V(S0+r,2)}, {V(G0+r,2)}")
        for e_ in range(2):
            for v in range(2): k.e(f"ds_write_b128 v{10+v}, {V(S0+(e_*2+v)*4,4)} offset:{e_*2048}")
        for e_ in range(2):
            for m in range(2): k.e(f"ds_read_b128 {V(160+e_*8+m*4,4)}, v{18+m} offset:{e_*2048}", tag=f"T{e_}")
        k.ext(finx)
        for e_ in range(2):
            k.wait(lgkm=f"T{e_}")
            for r in range(0, 8, 2): k.e(f"v_pk_add_f32 {V(128+8*e_+r,2)}, {V(128+8*e_+r,2)}, {V(160+8*e_+r,2)}")
            for r in range(4): k.e(f"v_cvt_pk_bf16_f32 v{176+4*e_+r}, v{128+8*e_+2*r}, v{129+8*e_+2*r}")
            k.e(f"buffer_store_dwordx4 {V(176+4*e_,4)}, v27, {SR(sOut)}, s{sXW if e_ else sOo} offen {OPT.get('outf', '')}")
    z = Block(); z.name = "end"
    if OPT.get("encode") is not None:
        z.e("s_waitcnt vmcnt(0) lgkmcnt(0)"); stamp(z, "end")
        i0, i1 = (STAMPS[x] for x in OPT["encode"])
        fld = 72 if OPT.get("enccyc") else 73
        z.e(f"s_sub_u32 s92, s{fld+2*i1}, s{fld+2*i0}")
        if OPT.get("encx") is not None: z.e(f"s_and_b32 s3, s2, {OPT.get('encm', 7)}\ns_cmp_eq_u32 s3, {OPT['encx']}\ns_cselect_b32 s92, s92, 0")
        z.e("s_lshr_b32 s92, s92, 2" if OPT.get("enccyc") else "s_lshl_b32 s92, s92, 2")
        z.e(f"s_add_u32 s92, s92, 20000\nL_enc:\ns_sleep 1\ns_memrealtime s[98:99]\ns_waitcnt lgkmcnt(0)\ns_sub_u32 s98, s98, s73\ns_cmp_lt_u32 s98, s92\ns_cbranch_scc1 L_enc")
    elif OPT["stamp"]:
        z.e("s_waitcnt vmcnt(0) lgkmcnt(0)"); stamp(z, "end")
        z.e(f"s_load_dwordx2 s[96:97], s[0:1], 88\ns_waitcnt lgkmcnt(0)"); ptr_add(z, 96, 0x8000000 + 0x40000); srd_fin(z, 96, 0x40000)
        for i in range(20): z.e(f"v_mov_b32 v{36+i}, s{72+i}")
        z.e(f"s_lshl_b32 s92, s2, 2\ns_add_u32 s92, s92, s{sWave}\ns_lshl_b32 s92, s92, 7\nv_mov_b32 v2, s92\ns_mov_b64 exec, 1")
        for i in range(5): z.e(f"buffer_store_dwordx4 {V(36+4*i,4)}, v2, s[96:99], 0 offen offset:{16*i}")
    z.e("L_end:\ns_endpgm")
    fb = Block(); fb.name = "fb"
    fb.e(f"L_fallback:\ns_mov_b32 s{sFB}, 1\ns_waitcnt vmcnt(0) lgkmcnt(0)\ns_barrier\ns_branch L_restart")
    m0 = Block(); m0.name = "tm0"
    m0.e(f"L_truemax:\ns_mov_b32 s{sKo}, s{sW8k}\ns_mov_b32 s{sCnt}, 16")
    for t in range(4): m0.e(f"v_mov_b32 v{vNM+4*t}, 0xff800000")
    m0.e("s_waitcnt vmcnt(0) lgkmcnt(0)")
    m1 = Block(); m1.name = "tm1"
    m1.e("L_tm_loop:\ns_barrier")
    emit_grp(m1, dma_K(0, 0, "DK")); emit_grp(m1, dma_K(1, 0, "DK"))
    m1.e("s_waitcnt vmcnt(0)\ns_barrier")
    for g in range(8):
        m1.ext(kreads(g, 0, 0, "K0")); m1.e("s_waitcnt lgkmcnt(0)")
        for t in range(4): m1.ext(qk_chain(t, 0, "0"))
        for t in range(4):
            s0 = vS + 4 * t
            m1.e(f"v_max3_f32 v{vNM+4*t}, v{vNM+4*t}, v{s0}, v{s0+1}\nv_max3_f32 v{vNM+4*t}, v{vNM+4*t}, v{s0+2}, v{s0+3}")
    m1.e(f"s_sub_u32 s{sCnt}, s{sCnt}, 1\ns_cmp_lg_u32 s{sCnt}, 0\ns_cbranch_scc1 L_tm_loop")
    m2 = Block(); m2.name = "tm2"
    rowmax_finish(m2, lambda t: vNM + 4 * t)
    m2.e(f"s_mov_b32 s{sKo}, s{sW8k}\ns_barrier")
    emit_grp(m2, dma_K(0, 0, "DK")); emit_grp(m2, dma_K(1, 0, "DK"))
    m2.e(f"s_add_u32 s{sKo}, s{sKo}, 32768\ns_waitcnt vmcnt(0)\ns_barrier")
    m2.ext(kreads(0, 0, 0, "K0")); m2.e("s_waitcnt lgkmcnt(0)\ns_branch L_att_start")
    att = [l0, first, l1, l1b, even, odd, l1b, even, odd, l4, last, f]
    front = [b2, c] + PJ['F'] + [e]; frontS = [b2, c] + PJ['S'] + [e]
    vb = []
    finalize([[b_] + front + [e2] + att + [k, z], [b_] + frontS + [e2] + att + [fb] + frontS + [m0, m1, m1, m2] + att + [k, z], [b_] + front + [m0, m1]] + [[s] for s in SLOW], vb)
    for fr in (front, frontS): check_groups([x for bb in [b_] + fr + [e2] + att + [k, z] for x in bb.ins])
    for x in vb:
        if x[0].startswith("att") or x[0] in ("projF", "projS"): print("nop:", x, file=sys.stderr)
    cend = Block(); cend.e('L_code_end:')
    layout = [b_, b2, c] + PJ['S'] + [e, e2, l0, first, l1, l1b, even, odd, l4, last, f, k, z] + (SLOW[::-1] if OPT.get('slownear', 1) else []) + PJ['F'] + [cend, fb, m0, m1, m2] + ([] if OPT.get('slownear', 1) else SLOW)
    note = {id(b2): "set-up, first loads", id(c): "set-up under the first loads", id(PJ['S'][0]): "projection, odd ids (48 FFN columns)", id(PJ['F'][0]): "projection, even ids (64 FFN columns)",
            id(PJ['S'][2]): "Q and the rest of h; scores of the first 16 keys", id(PJ['F'][2]): "Q and the rest of h; scores of the first 16 keys", id(e2): "stand-in row maximum",
            id(first): "tile 0: scores and exponentials only", id(even): "tile pair: QK of the next tile beside PV of this one", id(last): "tiles 14 and 15, normalisation and O stores",
            id(f): "check of the stand-in maximum", id(k): "tail: g stages, then the four row strips", id(fb): "stand-in was unsafe: start again", id(m0): "true row maximum over all keys", id(SLOW[-1]): "bounded waits"}
    return kernel_head(KN) + "\n".join((f"; ---- {note[id(x)]}\n" if id(x) in note else "") + x.text() for x in layout) + "\n" + kernel_desc(KN, 512, 256)


DOC = """
;
; Workgroup (q block of 256 rows, head); each wave owns 64 rows.  All products use v_mfma_f32_16x16x32_bf16, transposed (D = [columns x rows]),
;     Row statistics are computed once (8 rows per workgroup) and handed round through d_ws; a counter in d_debug says when.
;     h = silu(gate) * up goes to d_ws in fragment order.  Even ids take 64 FFN columns, odd ids 48 (two variants of the code).
;  2. attention over 16 tiles of 128 keys, K/V staged by LDS-DMA.  exp2(s - m) uses as m the maximum over the row's first 16 keys, less 32
;     (it enters as the C operand), so m never exceeds the true maximum and nothing underflows earlier than with it.  Overflow, the one way this
; Hand-offs: write-through (sc1) stores, then vmcnt + barrier, then a flag in d_ws that this launch cleared before its counter was complete;
; partial tiles are recognised by the absence of an all-ones mark written earlier in the launch.  Every wait loop is bounded.
"""
def build():
    head = open("cdna_kernels/" + NAME + ".s.ref").read().split("; Override launch")[0]
    s = head + "; @launch grid=(256,1,1) block=(256,1,1) lds=163840\n" + '.amdgcn_target "amdgcn-amd-amdhsa--gfx950"\n' + DOC.lstrip("\n")
    plan_units()
    return s + gen_kernel()

if __name__ == "__main__":
    out = sys.argv[1] if len(sys.argv) > 1 else "cdna_kernels/" + NAME + ".s"
    for a in sys.argv[2:]:
        k, v = a.split("="); OPT[k] = eval(v)
    names = OPT.get("stamps", "p0,p4,projend,att0,loop,last,tail0,gend").split(",")
    STAMPS.update({n: i + 1 for i, n in enumerate(names)}); STAMPS["start"] = 0; STAMPS["end"] = 9
    txt = build()
    def nt(pat):
        global txt
        txt = re.sub(pat, lambda m: m.group(0).replace(" lds", "") + " nt" + (" lds" if m.group(0).endswith(" lds") else ""), txt, flags=re.M)
    srs = {"w": r"s\[(8:11|12:15|16:19)\]", "k": r"s\[(20:23|24:27)\]", "t": r"s\[(44:47|48:51)\]", "x": r"s\[4:7\]"}
    for c in OPT.get("ntt", ""): nt(r"^    buffer_load_dword [av]\d+, v\d+, " + srs[c] + r".*offen$")
    for c in OPT.get("ntd", ""): nt(r"^    buffer_load_dwordx4 v\d+, " + srs[c] + r".* lds$")
    if OPT.get("ntsr"): nt(r"^    buffer_load_dwordx4 v\[7[26]:7[59]\], v58, s\[4:7\].*\d$")
    if OPT.get("ntx0"):
        parts = re.split(r"(?m)^(?=; ---- )", txt)
        for i_, p_ in enumerate(parts):
            if p_.startswith("; ---- set-up" + ("," if OPT["ntx0"] == 1 else "")):
                txt = p_; nt(r"^    buffer_load_dwordx4 v\d+, " + srs["x"] + r".* lds$"); parts[i_] = txt
        txt = "".join(parts)
    if OPT.get("ntc"): txt = txt.replace("global_load_dword v107, v[108:109], off", "global_load_dword v107, v[108:109], off nt")
    if OPT.get("ntk0"):
        parts = re.split(r"(?m)^(?=; ---- )", txt)
        for i_, p_ in enumerate(parts):
            if p_.startswith("; ---- projection"):
                txt = p_; nt(r"^    buffer_load_dwordx4 v\d+, " + srs["k"] + r".* lds$"); parts[i_] = txt
        txt = "".join(parts)
    open(out, "w").write(txt)
```

```python
import sys, math, struct, re
sys.path.insert(0, "gen")
from asmgen import *

NAME = "recurrent_scan__mha_block_cached__glu_gated_swiglu__prompt"
KN = NAME + "_kernel"
WS_ST, WS_FH, WS_FO, WS_FG, WS_FS = 0, 0x8000, 0x10000, 0x18000, 0x20000
WS_B, WS_X = 0x200000, 0x2000000
BSTRIDE = 184 * 1024
LOG2E = 1.4426950408889634
OOB = 0x7ffffff0
def f32(x): return "0x%08x" % struct.unpack("<I", struct.pack("<f", x))[0]
OPT = dict(stamp=False, early=7, pollstage=3, polld=1, htrip=2, flagstage=0, osr=1, osg=4, fgstage=5, fsstage=11, lead=5, ramp=0, dl=-32, lmax=120, dd3=1, htouch=0, i3st=14, i3gap=3, s3lo=12, fin2=(20, 10), tq0=0, pa=.1, pb=.75, pc=.4, x2o=.15, x3a=.92, nh=3, nhS=4, stpos=.55, sthi=.5, stposS=.52, sthiS=.51, il0=40, ilp=11, pre="Q0 S",
    sch=[(.1,'W1 r1 G1'),(.75,'x1 W2 Q1'),('o',1,1.45,1.65),(0,'r2 G2'),(1.93,'A W3'),(2.25,'x2 W4 G3 Q2'),('o',2,3.05,3.25),(0,'r3 Q3 C'),(3.7,'x3 W5'),(4.5,'W6'),('o',3,4.6,4.9)], clrpos=(7, 5), asat=(-9, -9, -9, -9, 0, 0, 1, 1, 2, 2, 3, 3, 4, 4, 6, 5), bsat=(0, 0, 0, 0, 0, 2, 2, 3, 4, 6, 6, 7, 8, 10, 10, 11), gld=4, gck=7)

L_K, L_SP, L_V = 0, 65536, 98304
sX, sWQ, sW1, sW3, sK, sV, sB, sH, sWS, sDBG, sWO, sW2, sOut = range(4, 56, 4)
sHead, sQb, sWave, sW8k, sW4k, sXb, sKo, sVo, sCnt, sT, sT2, sWQo, sW13o, sBo, sFB, sW16k = range(56, 72)
sTr, sTc, sSp = 93, 94, 95
sTW, sT2W = 100, 101
sFs, sFv = 92, sOut + 2
vL16, vKA, vVA, vDK, vDV, vIDX, vT = 1, 2, 6, 14, 18, 20, 24
vS, vNM = 32, 48
def Q(t, ds): return 64 + (t * 4 + ds) * 4
def P(pb, kk, t): return 128 + pb * 64 + (t * 4 + kk) * 4
def O(dt, t): return (dt * 4 + t) * 4
def VF(b, kk): return (128 + b * 16 if b < 4 else 148 + b * 16) + kk * 4
aL, aONES = 192, 208
def KF(b, ds): return 212 + b * 16 + ds * 4
aCHK, aZ = 244, 248
vWQA, vW13A, vDQ, vD13, vXA, vDX = 24, 28, 32, 36, 40, 44

def SR(s): return f"s[{s}:{s+3}]"
def MF(d, a, bb, c): return Ins(f"v_mfma_f32_16x16x32_bf16 {d}, {a}, {bb}, {c}")
def II(txt, tag=None): return [Ins(x, tag=tag) for x in txt.split("\n") if x.strip()]
def srd_fin(b, d, nrec):
    b.e(f"s_and_b32 s{d+1}, s{d+1}, 0xffff\ns_mov_b32 s{d+2}, {nrec}\ns_mov_b32 s{d+3}, 0x20000")
def ptr_add(b, d, off): b.e(f"s_add_u32 s{d}, s{d}, {off}\ns_addc_u32 s{d+1}, s{d+1}, 0")

def stamp_ins(i):
    if not OPT["stamp"] or i is None: return []
    return II(f"s_waitcnt lgkmcnt(0)\ns_memtime s[96:97]\ns_memrealtime s[98:99]\ns_waitcnt lgkmcnt(0)\ns_mov_b32 s{72+2*i}, s96\ns_mov_b32 s{73+2*i}, s98")
_jit = [0]
def jitter(b, wave=False):
    if not OPT.get("jit"): return
    _jit[0] += 1; n = _jit[0]
    b.e(f"s_waitcnt lgkmcnt(0)\ns_memtime s[96:97]\ns_waitcnt lgkmcnt(0)\ns_lshr_b32 s96, s96, {4 if wave else 14}\ns_add_u32 s96, s96, s2\ns_mul_i32 s96, s96, 0x9e3779b1\ns_lshr_b32 s96, s96, 16\ns_mul_i32 s96, s96, {OPT['jit'] // (8 if wave else 1)}\ns_lshr_b32 s96, s96, 16\ns_add_u32 s96, s96, 1")
    b.e(f"L_jit{n}:\ns_sleep 1\ns_sub_u32 s96, s96, 1\ns_cmp_lg_u32 s96, 0\ns_cbranch_scc1 L_jit{n}")
STAMPS = {}
def stamp(b, name):
    b.ext(stamp_ins(STAMPS.get(name)))
    if name in ("karg", "projend", "last", "tail0", "s0", "s6", "s13"): jitter(b)
    if name in ("p0", "att0", "loop", "attend", "send") or re.fullmatch(r"[gs]\d+", name): jitter(b, True)

class Gap:
    def __init__(self, m): self.m = m; self.scal = []; self.vec = []; self.load = 0
def cost_of(ins): return 2 if (ins.kind == "trans" or ins.is_vmem) else (0 if ins.kind in ("salu", "wait", "sctl", "label") else 1)
def is_ds(x): return x.kind in ("dsread", "dswrite")
def dep(a, b): return bool(a.writes & (b.reads | b.writes)) or bool(a.reads & b.writes)
class TL:
    def __init__(self): self.g = []; self.ddpen = 1; self.vmpen = OPT.get("vmpen", .5)
    def add(self, m):
        gp = Gap(m); self.g.append(gp)
        if m.op.startswith("v_smfmac"): gp.load = 1
        if "32x32" in m.op: gp.load = -4
        return len(self.g) - 1
    def pen(self, i, ins):
        gp = self.g[i]; l = gp.load + cost_of(ins)
        if is_ds(ins) and any(x.is_vmem for x in gp.vec): l += self.vmpen
        if is_ds(ins):
            if any(is_ds(x) for x in gp.vec): l += self.ddpen
            if any(x.is_valu and dep(x, ins) for x in gp.vec): l += 2
        return l
    def vec_at(self, i, ins):
        gp = self.g[i]; k = len(gp.vec)
        if is_ds(ins) or ins.is_vmem:
            while k > 0 and gp.vec[k - 1].is_valu and not dep(gp.vec[k - 1], ins): k -= 1
        gp.vec.insert(k, ins); gp.load += cost_of(ins)
    def vec_in(self, lo, hi, items):
        extra = {i: 0 for i in range(lo, hi + 1)}
        cand = []
        for it in items:
            i = min(extra, key=lambda k: (max(self.pen(k, it) + extra[k], 2), self.pen(k, it) + extra[k] if not OPT.get("pack") else 0, k)); cand.append(i); extra[i] += 1 + self.ddpen
        cand.sort()
        for i, it in zip(cand, items): self.vec_at(i, it)
        return cand
    def scal_at(self, i, ins, later=True):
        while self.g[i].scal: i += 1 if later else -1
        self.g[i].scal.append(ins); return i
    def spread(self, lo, hi, groups):
        n = sum(len(g[1]) for g in groups); k = 0; prev = lo - 3
        for grp in groups:
            sc, ve, post = grp
            for x in ve: x.grp = grp; x.role = "vec"
            first = True
            for it in ve:
                tgt = lo + (hi - lo) * k // max(n - 1, 1); k += 1
                mn = prev + 1
                if first:
                    i = max(prev + 1, tgt - len(sc) - 1)
                    for x in sc: i = self.scal_at(i, x) + 1
                    mn = max(mn, i); first = False
                cands = [j for j in range(max(mn, tgt - 1), max(mn, tgt - 1) + 4) if j < len(self.g)]
                j = min(cands, key=lambda z: (self.g[z].load, abs(z - tgt)))
                self.vec_at(j, it); prev = j
            for x in post: prev = self.scal_at(prev + 1, x)
        return prev
    def stream(self, lo, hi, items, cap=2):
        i = lo; items = list(items)
        while items and i <= hi:
            it = items[0]; c = cost_of(it)
            if c == 0:
                i += 1
                while i <= hi and self.g[i].scal: i += 1
                if i > hi: break
                self.g[i].scal.append(it); items.pop(0); continue
            if self.pen(i, it) <= cap: self.vec_at(i, it); items.pop(0)
            else: i += 1
        return items
    def sched(self, lo, hi, items, look=70, lat=6):
        items = list(items); rw = {}; pos = {}
        for x in items:
            r, w = set(x.reads), set(x.writes)
            if x.waitfor is not None:
                for y in items:
                    if y.tag is not None and any(y.tag in t for t in x.waitfor.values()): r |= y.writes; w |= y.writes
                r |= getattr(x, "guards", set()); w |= getattr(x, "guards", set())
            if x.is_vmem: r.add("vm"); w.add("vm")
            if x.kind == "salu": r.add("scc"); w.add("scc")
            rw[id(x)] = (r, w)
        dp = lambda a, b: bool(rw[id(a)][1] & (rw[id(b)][0] | rw[id(b)][1])) or bool(rw[id(a)][0] & rw[id(b)][1])
        placed = []
        def ready(k, i):
            x = items[k]
            if any(dp(y, x) for y in items[:k]): return False
            for y in placed[-40:]:
                if not dp(y, x): continue
                d = 0
                if cost_of(x) == 0 or is_ds(x) or x.is_vmem: d = 1 if cost_of(y) > 0 or cost_of(x) == 0 else 0
                if x.waitfor is not None and is_ds(y): d = lat
                if (getattr(x, "dpp", False) or getattr(x, "permlane", False)) and y.is_valu: d = 2
                if i < pos[id(y)] + d: return False
            return True
        for i in range(lo, hi + 1):
            for want in (0, 2, 1, 1, 1, 1, 1, 1):
                for k in range(min(look, len(items))):
                    x = items[k]
                    if cost_of(x) != want: continue
                    if (self.g[i].scal if want == 0 else self.pen(i, x) > 2) or not ready(k, i): continue
                    if want == 0: self.g[i].scal.append(x)
                    else: self.vec_at(i, x)
                    pos[id(x)] = i; placed.append(x); items.pop(k); break
        return items
    def emit(self, lo, hi, name):
        b = Block(); b.name = name
        for gp in self.g[lo:hi]:
            if gp.m is not None: b.add(gp.m)
            b.ext(gp.scal); b.ext(gp.vec)
        return b

SLOW = []
def poll_check(name, vreg, load_txt, ready_cmp):
    inl = II(ready_cmp) + II(f"s_cbranch_scc0 L_spin_{name}\nL_back_{name}:")
    sl = Block(); sl.name = "spin" + name
    sl.e(f"L_spin_{name}:\ns_mov_b32 s3, 0x40000\nL_spin2_{name}:\ns_sleep {OPT.get('slp', 2)}\n{load_txt}\ns_waitcnt vmcnt(0)\ns_sub_u32 s3, s3, 1\ns_cmp_eq_u32 s3, 0\ns_cbranch_scc1 L_back_{name}")
    sl.e(ready_cmp); sl.e(f"s_cbranch_scc0 L_spin2_{name}\ns_branch L_back_{name}")
    SLOW.append(sl)
    return inl

def dma_K(half, buf, tag):
    return (II(f"s_add_u32 m0, s{sW8k}, {L_K + buf*32768 + half*4096}"),
            [Ins(f"buffer_load_dwordx4 v{vDK+p}, {SR(sK)}, s{sKo} offen offset:{p*1024} lds", tag=tag) for p in range(4)],
            II(f"s_add_u32 s{sKo}, s{sKo}, {4096 if half == 0 else 28672}"))
def dma_V(half, buf, tag):
    return (II(f"s_add_u32 m0, s{sW8k}, {L_V + buf*32768 + half*4096}"),
            [Ins(f"buffer_load_dwordx4 v{vDV+(p&1)}, {SR(sV)}, s{sVo} offen offset:{p*1024} lds", tag=tag) for p in range(4)],
            II(f"s_add_u32 s{sVo}, s{sVo}, {4096 if half == 0 else 28672}"))
def emit_grp(b, d): b.ext(d[0]); b.ext(d[1]); b.ext(d[2])
def check_groups(trace):
    last = {}; cnt = {}
    for x in trace:
        g = getattr(x, "grp", None)
        if g is not None and x.role == "vec":
            for r in x.reads:
                ws_ = [sc for sc in g[0] if r in sc.writes]
                if ws_: assert last.get(r) is ws_[-1], ("group scalar clobbered", x.text, last.get(r))
            for sc in g[2]:
                for r in sc.writes & x.reads:
                    key = (id(g), r)
                    if x is g[1][0]: cnt[key] = last.get(r)
                    assert last.get(r) is cnt[key] and (len(g[1]) == 1 or last.get(r) is not sc), ("post scalar order", x.text)
        for r in x.writes:
            if r[0] == "s" or r == "m0": last[r] = x
def kreads(g, buf, fb, tag):
    return [Ins(f"ds_read_b128 {A(KF(fb,ds),4)}, v{vKA+ds} offset:{buf*32768+g*4096}", tag=tag) for ds in range(4)]
def vreads(dt, buf, fb, tag):
    return [Ins(f"ds_read_b64_tr_b16 {A(VF(fb,kk)+2*kh,2)}, v{vVA+dt} offset:{buf*32768+(32*kk+16*kh)*256}", tag=tag) for kk in range(4) for kh in range(2)]
def snake(t): return range(4) if (t % 2 == 0 or OPT.get("nosnake")) else range(3, -1, -1)
def qk_chain(t, fb, c0):
    d = V(vS + 4 * t, 4)
    return [MF(d, A(KF(fb, ds), 4), V(Q(t, ds), 4), c0 if n == 0 else d) for n, ds in enumerate(snake(t))]
def pv_chain(dt, t, fb, pb):
    d = A(O(dt, t), 4)
    return [MF(d, A(VF(fb, kk), 4), V(P(pb, kk, t), 4), d) for kk in snake(t)]
def rs(t, kp, pb): return Ins(f"v_smfmac_f32_16x16x64_bf16 {A(aL+4*t,4)}, {A(aONES,4)}, {V(P(pb,2*kp,t),8)}, v{vIDX}")

vDA, vB1, vPoll, vPA = 14, 30, 29, 23
vRAs, vRB, vRAg = 6, (12, 13, 20), 48
sM, sAo, sWOo, sW2o = sW4k, sT2, sWQo, sW13o
sBg, sQ0, sBt = sXb, sW1 + 3, sKo
sBs = [sDBG, sDBG + 1, sDBG + 2, sDBG + 3]
sXP = sH
sXW, sXR, sOo, sFl2 = sW16k, 92, sQ0, 99
sGk = list(range(sWQ, sWQ + 7))
sHp = list(range(sW3, sW3 + 4))
UNITS = []; USEQ = {}; RD = {}
def plan_units():
    for n in range(-1, 22):
        r = [("Ag", n + 1), ("Bg", n + 1)] if n < 6 else [("Bs", n - 6)]
        r = [("As", a) for a in range(16) if OPT["asat"][a] == n] + r if n == 6 else r + [("As", a) for a in range(16) if OPT["asat"][a] == n]
        RD[n] = list(range(len(UNITS), len(UNITS) + len(r))); UNITS.extend(r)
    RD[22] = []
    USEQ.update({u: n for n, u in enumerate(UNITS)})
    for a in range(16): assert OPT["asat"][a] <= 6 + a // 4
    assert OPT["asat"][14] >= 6 and max(OPT["asat"]) <= 9
def udma(n):
    kind, i = UNITS[n] if isinstance(n, int) else n
    m0 = f"s_add_u32 m0, s{sM}, {uslot((kind, i))*16384}\n"; tag = f"U{n}" if isinstance(n, int) else f"E{i}"
    rot = OPT.get("rot", 1)
    if kind[0] == "A":
        sr, so = (sW2, sW2o) if kind == "Ag" else (sWO, sWOo)
        if kind == "As": ad = f"s_xor_b32 s{sAo}, s{so}, {i*65536}"
        else: ad = f"s_lshl_b32 s{sAo}, s{sGk[i]}, 5\ns_add_u32 s{sAo}, s{sAo}, s{so}"
        return (II(m0 + ad),
                [Ins(f"buffer_load_dwordx4 v{vDA+p}, {SR(sr)}, s{sAo} offen offset:{p*1024} lds", tag=tag) for p in range(4)], [])
    if kind == "Bg":
        return (II(m0 + f"s_add_u32 s{sBt}, s{sBg}, s{sGk[i]}"),
                [Ins(f"buffer_load_dwordx4 v{vL16 if p < 2 else vB1}, {SR(sB)}, s{sBt} offen offset:{p*1024} sc1 lds", tag=tag) for p in range(4)], [])
    bs, hp = sBs[(1, 2, 3, 0)[i >> 2]], sHp[i & 3]
    return (II(m0 + f"s_add_u32 s{sBt}, s{bs}, s{hp}"),
            [Ins(f"buffer_load_dwordx4 v{vL16}, {SR(sB)}, s{sBt} offen offset:{p*1024} sc1 lds", tag=tag) for p in range(4)], [])
XSLOT = {("As", 0): 0, ("As", 1): 1, ("As", 2): 4, ("As", 3): 5}
def uslot(u): return XSLOT[u] if u not in USEQ else USEQ[u] % 10
def uloc(u): sl = uslot(u); return sl // 4, (sl % 4) * 16384
_first = list(range(160, 192, 4)) + list(range(0, 32, 4))
ASREG = _first + [r for r in range(0, 256, 4) if r not in _first]
assert ASREG[56:60] == [224, 228, 232, 236]
def AS(v, ks): return ASREG[ks * 2 + v]
def AG(i, v, ks): return ("v", 32 + (v * 2 + ks) * 4) if i % 2 == 0 else ("a", 224 + (v * 2 + ks) * 4)
def BF(n, m): return 64 + (n & 1) * 64 + m * 4
def ACG(j, v): return 192 + (j * 2 + v) * 4
def ACS(q, v): return 32 + (q * 2 + v) * 4
def ureads(u, vRAs=vRAs):
    kind, i = UNITS[u] if isinstance(u, int) else u
    st, o = uloc((kind, i))
    if kind == "As":
        return [Ins(f"ds_read_b64_tr_b16 {A(AS(v,2*i+ks)+2*kh,2)}, v{vRAs+2*st+v} offset:{o+ks*8192+kh*4096}", tag="R") for ks in range(2) for v in range(2) for kh in range(2)]
    if kind == "Ag":
        return [Ins(f"ds_read_b64_tr_b16 {R(AG(i,v,ks)[0], AG(i,v,ks)[1]+2*kh, 2)}, v{vRAg+4*st+2*kh+v} offset:{o+ks*8192}", tag="R") for v in range(2) for ks in range(2) for kh in range(2)]
    n = i if kind == "Bg" else 7 + i
    return [Ins(f"ds_read_b128 {V(BF(n,m),4)}, v{vRB[st]} offset:{o+m*1024}", tag="R") for m in range(16)]
OSTORES = []
EARLY = []

def gen_attention(l0items):
    tl = TL()
    phases = [-1, 0, 1, 2, 3, 15]
    VPOS = OPT.get("vmpos", (5, 13, 21, 29))
    start = {}; stepb = {}
    for p in phases:
        start[p] = len(tl.g)
        if p == 15:
            def pv(dt, t, vs, pb, fwd):
                d = A(O(dt, t), 4)
                for kk in (range(4) if fwd else range(3, -1, -1)): tl.add(MF(d, A(VF(vs, kk), 4), V(P(pb, kk, t), 4), d))
            FR = [(i, t) for i in range(4) for t in range(4)]
            ost = lambda n: 64 + 4 * n
            mk = lambda n: MF(A(aCHK, 4), A(aZ, 4), V(ost(n), 4), "0" if n == 0 else A(aCHK, 4))
            xb = {}; yb = {}; cdone = {}; chkpos = {}
            def chk(n): chkpos[n] = tl.add(mk(n))
            for s in range(8):
                xb[s] = len(tl.g)
                for t in range(4):
                    for m in qk_chain(t, s & 1, V(vNM + 4 * t, 4)): tl.add(m)
                for t in (2 * (s & 1), 2 * (s & 1) + 1): pv(s >> 1, t, (s >> 1) & 1, 0, 1 - (t & 1))
                tl.add(rs(s >> 1, s & 1, 0))
            xb[8] = len(tl.g)
            wend = lambda n: 1 + (n + 1) * OPT.get("yw", 20) / 12 if n < 12 else n + 10
            nchk = 0
            for u in range(24):
                bl, t = u >> 2, u & 3; s0, s1 = (0, 4) if bl % 2 == 0 else (1, 5); yb[u] = len(tl.g)
                if bl == 0: tl.add(rs(t, 0, 1)); tl.add(rs(t, 1, 1))
                if bl < 2:
                    o_ = [(2 * bl, s0), (2 * bl + 1, s1)][::1 if t % 2 == 0 else -1]
                    pv(o_[0][0], t, o_[0][1], 1, 1); pv(o_[1][0], t, o_[1][1], 1, 0); cdone[u] = len(tl.g) - 1
                else:
                    dt = bl + 2
                    if t % 2 == 0: pv(dt, t, s0, 0, 1); pv(dt, t, s1, 1, 1)
                    else: pv(dt, t, s1, 1, 0); pv(dt, t, s0, 0, 0)
                    if dt & 1: cdone[2 * dt - 2 + t] = len(tl.g) - 1
                if nchk < 12 and wend(nchk) <= u + .5: chk(nchk); nchk += 1
            yb[24] = len(tl.g); assert nchk == 12
            continue
        for s in range(8):
            stepb[p, s] = len(tl.g)
            if p != 15:
                for t in range(4):
                    for m in qk_chain(t, s & 1, V(vNM + 4 * t, 4) if not OPT.get("nm0") else "0"): tl.add(m)
            if p == -1:
                if OPT.get("bO"): tl.add(Ins(f"v_mfma_f32_32x32x16_bf16 {A(16*s,16)}, {A(aONES,4)}, v[252:255], 0"))
                else: tl.add(Ins(f"v_mfma_f32_32x32x16_bf16 {A(16*s,16)}, {A(aZ,4)}, {A(aZ,4)}, 0"))
                if s == 0: tl.add(Ins(f"v_mfma_f32_32x32x16_bf16 {A(aL,16)}, {A(aZ,4)}, {A(aZ,4)}, 0"))
            else:
                if OPT.get("rsadj"):
                    tl_ = s >> 1; order = [t for t in range(4) if t != tl_] + [tl_]
                    for n_, t in enumerate(order):
                        d = A(O(s, t), 4); fwd = (n_ + s) % 2 == 0
                        for kk in (range(4) if fwd else range(3, -1, -1)): tl.add(MF(d, A(VF(s & 1, kk), 4), V(P(p & 1, kk, t), 4), d))
                else:
                    for t in range(4):
                        for m in pv_chain(s, t, s & 1, p & 1): tl.add(m)
                if p != 15:
                    tl.add(rs(s >> 1, s & 1, p & 1))
    end = len(tl.g)
    nxt = {p: (start[phases[i + 1]] if i + 1 < len(phases) else end) for i, p in enumerate(phases)}
    for p in phases:
        if p == 15: continue
        pb = (p + 1) & 1
        for s in range(8):
            b0 = stepb[p, s]; nb = stepb[p, s + 1] if s < 7 else nxt[p]
            for t in range(4):
                sr = vS + 4 * t
                ex = [Ins(f"v_exp_f32 v{sr+r}, v{sr+r}") for r in range(4)]
                pd = P(pb, s >> 1, t) + 2 * (s & 1)
                cv = [Ins(f"v_cvt_pk_bf16_f32 v{pd+h}, v{sr+2*h}, v{sr+2*h+1}") for h in range(2)]
                if p >= 0:
                    o = b0 + 8 * t + (1 if t == 3 else 0)
                    pe = [o + 8 + 2 * r for r in range(4)]; pc = [o + 11, o + 15]
                else:
                    pe = [b0 + 4 * t + 8 + r for r in range(4)]; pc = [b0 + 4 * t + 10, b0 + 4 * t + 12]
                    if s == 7:
                        pe = [min(x, nb - 1) for x in pe]; pc = [min(x, nb - 1) for x in pc]
                        if t == 3: pe = [nb + 0, nb + 2, nb + 4, nb + 6]; pc = [nb + 3, nb + 7]
                seq = sorted([(pe[0],0,ex[0]),(pe[1],1,ex[1]),(pc[0],3 if p < 0 else 2,cv[0]),(pe[2],2.5,ex[2]),(pe[3],4,ex[3]),(pc[1],5,cv[1])], key=lambda z: (z[0], z[1]))
                for pos, _, ins in seq: tl.vec_at(pos, ins)
    for p in phases:
        if p == 15: continue
        if 0 <= p < 15:
            grps = [dma_K(0, p & 1, "DK"), dma_K(1, p & 1, "DK"), dma_V(0, (p + 1) & 1, "DV"), dma_V(1, (p + 1) & 1, "DV")]
            for s in range(8):
                tl.scal_at(stepb[p, s] + 15, W(lgkm=f"V{s}"), later=False)
                tl.scal_at(stepb[p, s] + 31, W(lgkm=f"K{(s+1)&7}"), later=False)
            if OPT.get("kvtouch", 1): grps.append(([], II(f"buffer_load_dword a252, v28, {SR(sK if p % 2 == 0 else sV)}, s{sKo if p % 2 == 0 else sVo} offen"), []))
            so, sr = (sTW, sWO) if p % 2 == 0 else (sT2W, sW2)
            grps.append((II(f"s_cmp_le_u32 s{sCnt}, {OPT.get('wtrip', 2)}\ns_cselect_b32 s{sT}, s{so}, 0x40000000"), II(f"buffer_load_dword a252, v{30 if p % 2 == 0 else 29}, {SR(sr)}, s{sT} offen"),
                         II(f"s_add_u32 s{so}, s{so}, {0x4000 if (p % 2 == 0 and OPT.get('wo2', 1)) else 0x2000}\ns_and_b32 s{so}, s{so}, {0x7fff if p % 2 == 0 else 0x3fff}")))
            if p % 2 == 0 and OPT.get("cpl", 1): grps.append(([], II("global_load_dword a252, v[24:25], off"), []))
            if p % 2 == 1:
                grps.append(([], II(f"buffer_store_dword v22, v21, {SR(sWS)}, 0 offen sc1"), []))
                tl.vec_at(stepb[p, 7] + 3, Ins("v_add_u32 v22, 1, v22"))
            clr = II(f"buffer_store_dwordx4 {A(aCHK,4)}, v{vL16}, {SR(sXP)}, s{sT2} offen offset:{1024*(p&1)} sc1")
            if OPT.get("clrpos") is not None: tl.vec_at(stepb[p, OPT["clrpos"][0]] + OPT["clrpos"][1], clr[0])
            elif not OPT.get("noclr"): grps.append(([], clr, []))
            if p % 2 == 0:
                q = stepb[p, 0] + 6
                for x in II(f"s_cmp_lt_u32 s{sCnt}, 5\ns_subb_u32 s3, s{sCnt}, 0\ns_and_b32 s{sT2}, s3, 3\ns_lshl_b32 s{sT2}, s{sT2}, 3\ns_or_b32 s{sT2}, s{sT2}, s3\ns_lshl_b32 s{sT2}, s{sT2}, 13\ns_xor_b32 s{sT2}, s{sT2}, s{sXR}\ns_cmp_gt_u32 s{sCnt}, 1\ns_cselect_b32 s{sT2}, s{sT2}, 0x40000000"):
                    q2 = tl.scal_at(q, x); assert q2 == q; q += 1
            if p % 2 == 0 and OPT.get("otouch"):
                grps.append((II(f"s_sub_u32 s3, s{sCnt}, {OPT['otouch']}\ns_mul_i32 s{sT}, s3, {BSTRIDE}\ns_add_u32 s{sT}, s{sT}, s{sBo}\ns_cmp_lt_u32 s3, 4\ns_cselect_b32 s{sT}, s{sT}, 0x40000000"), II(f"buffer_load_dword a252, v26, {SR(sB)}, s{sT} offen"), []))
            if p % 2 == 1 and OPT.get("htouch", 1):
                grps.append((II(f"s_cmp_eq_u32 s{sCnt}, {OPT.get('htrip', 1)}\ns_cselect_b32 s{sT}, s{sBg}, 0x40000000"), II(f"buffer_load_dword a252, v27, {SR(sB)}, s{sT} offen"), []))
            k = 0
            for grp in grps:
                for j, x in enumerate(grp[1]):
                    gi = stepb[p, k // len(VPOS)] + VPOS[k % len(VPOS)]; k += 1
                    if j == 0:
                        q = gi
                        for y in reversed(grp[0]):
                            q2 = tl.scal_at(q - 1, y, later=False); assert len(grp[0]) == 1 or q2 == q - 1; q = q2
                    tl.vec_at(gi, x); x.grp = grp; x.role = "vec"
                for x in grp[2]: gi = tl.scal_at(gi + 1, x)
            assert gi < stepb[p, 7]
            e_ = stepb[p, 7]
            if p % 2 == 1:
                tl.scal_at(e_ + 29, Ins(f"s_sub_u32 s{sCnt}, s{sCnt}, 1")); tl.scal_at(e_ + 30, Ins(f"s_cmp_lg_u32 s{sCnt}, 0")); tl.scal_at(e_ + 32, Ins("s_cbranch_scc1 L_att_loop"))
        for s in range(8):
            b0 = stepb[p, s]; nb = stepb[p, s + 1] if s < 7 else nxt[p]
            ns, npz = (s + 1) & 7, (p + 1 if s == 7 else p)
            if s == 7:
                i = tl.scal_at(b0 + (5 if p >= 0 else 4), W(lgkm=["V7", "K7"], vm=["DK", "DV"]))
                if not (OPT.get("nobar") and p >= 0): tl.scal_at(i + 1, Ins("s_barrier"))
            if p >= 0:
                kr = kreads(ns, (npz + 1) & 1, ns & 1, f"K{ns}"); vr = vreads(ns, npz & 1, ns & 1, f"V{ns}")
                free = [o for o in range(7 if s == 7 else 1, 32, 2) if not any(x.is_vmem for x in tl.g[b0 + o].vec)]
                assert len(free) >= 12
                for x, o in zip(kr + vr, free): tl.vec_at(b0 + o, x)
            else:
                tl.vec_in(b0 + 6, b0 + 10, kreads(ns, (npz + 1) & 1, ns & 1, f"K{ns}"))
                if s == 7: tl.vec_in(b0 + 10, nb - 1, vreads(0, 0, 0, "V0"))
                tl.scal_at(nb - 1, W(lgkm=f"K{ns}"), later=False)
    rot = OPT.get("rot", 1)
    sc = f"""s_add_u32 s{sXP}, s{sWS}, {WS_X}
s_addc_u32 s{sXP+1}, s{sWS+1}, 0
s_mov_b32 s{sXP+2}, 0x1000000
s_lshl_b32 s{sT}, s{sTr}, 2
s_add_u32 s{sT}, s{sT}, s{sTc}
s_lshl_b32 s{sT}, s{sT}, 2
s_add_u32 s{sT}, s{sT}, s{sSp}
s_lshl_b32 s{sT}, s{sT}, 16
s_lshl_b32 s{sXR}, s{sWave}, 11
s_add_u32 s{sXR}, s{sXR}, s{sT}
"""
    sc += f"""s_lshl_b32 s{sT}, s{sTc}, 8
s_lshl_b32 s{sWOo}, s{sWave}, 14
s_add_u32 s{sWOo}, s{sWOo}, s{sT}
s_mul_i32 s{sW2o}, s{sSp}, {448*1024}
s_add_u32 s{sW2o}, s{sW2o}, s{sWOo}
s_lshl_b32 s{sT}, s{sSp}, 20
s_add_u32 s{sWOo}, s{sWOo}, s{sT}
s_lshr_b32 s{sQ0}, s{sTr}, 1
s_lshl_b32 s{sQ0}, s{sQ0}, 2
s_and_b32 s{sT}, s{sTr}, 1
s_add_u32 s{sQ0}, s{sQ0}, s{sT}
s_lshl_b32 s{sQ0}, s{sQ0}, 2
s_xor_b32 s{sT}, s{sWave}, s{sSp}
s_and_b32 s{sT2}, s{sT}, 2
s_add_u32 s{sT}, s{sT}, s{sT2}
s_lshl_b32 s{sT}, s{sT}, 1
s_add_u32 s{sT}, s{sT}, s{sQ0}
s_mul_i32 s{sBg}, s{sT}, {BSTRIDE}
s_mul_i32 s{sT}, s{sSp}, {14*1024}
s_add_u32 s{sT}, s{sT}, {128*1024}
s_add_u32 s{sBg}, s{sBg}, s{sT}
s_lshl_b32 s{sT}, s{sHead}, 12
s_add_u32 s{sBo}, s{sBo}, s{sT}
s_mul_i32 s{sGk[0]}, s{sTc}, {4096*rot}
s_mul_i32 s{sHp[0]}, s{sTc}, {8192*rot}
s_lshl_b32 s{sT2}, s{sHp[0]}, 5
s_xor_b32 s{sWOo}, s{sWOo}, s{sT2}
"""
    for i in range(1, 7): sc += f"s_add_u32 s{sGk[i]}, s{sGk[i-1]}, 2048\ns_cmp_eq_u32 s{sGk[i]}, {7*2048}\ns_cselect_b32 s{sGk[i]}, 0, s{sGk[i]}\n"
    for i in range(1, 4): sc += f"s_xor_b32 s{sHp[i]}, s{sHp[0]}, {8192*i}\n"
    sc += f"""s_lshr_b32 s{sT}, s{sWave}, 1
s_mul_i32 s{sT}, s{sT}, {BSTRIDE}
s_and_b32 s3, s{sWave}, 1
s_lshl_b32 s3, s3, 12
s_add_u32 s3, s3, s{sT}
s_lshl_b32 s{sT}, s{sSp}, 15
s_add_u32 s3, s3, s{sT}
"""
    for lam in (3, 2, 1, 0):
        sc += f"s_xor_b32 s{sT}, s{sSp}, {lam}\ns_and_b32 s{sT2}, s{sT}, 2\ns_add_u32 s{sT}, s{sT}, s{sT2}\ns_lshl_b32 s{sT}, s{sT}, 1\ns_add_u32 s{sT}, s{sT}, s{sQ0}\ns_mul_i32 s{sBs[lam]}, s{sT}, {BSTRIDE}\ns_add_u32 s{sBs[lam]}, s{sBs[lam]}, s3\n"
    sc += f"""s_lshl_b32 s{sOo}, s{sT}, 14
s_lshl_b32 s{sT}, s{sTc}, 8
s_add_u32 s{sOo}, s{sOo}, s{sT}
s_lshl_b32 s{sT}, s{sWave}, 6
s_add_u32 s{sOo}, s{sOo}, s{sT}
s_add_u32 s{sXW}, s{sOo}, 16384
"""
    if OPT.get("noBg"): sc += f"s_mov_b32 s{sBg}, 0x40000000\n"
    if OPT.get("noOS"): sc += f"s_mov_b32 s{sBo}, 0x40000000\n"
    left = tl.sched(start[-1], nxt[-1] - 1, l0items + II(sc), look=200)
    print("first phase: left over", len(left), file=sys.stderr)
    tl.g[nxt[-1] - 1].vec += left
    T = vT
    VM1 = OPT.get("y1vm", (10, 19, 24))
    for s_ in range(8):
        for t in range(4):
            sr = vS + 4 * t; pd = P(1, s_ >> 1, t) + 2 * (s_ & 1)
            ps = [o + (1 if o >= 24 else 0) for o in range(8 + 6 * t, 14 + 6 * t)]
            for r in range(4): tl.vec_at(xb[s_] + ps[(0, 1, 3, 4)[r]], Ins(f"v_exp_f32 v{sr+r}, v{sr+r}"))
            for h in range(2):
                q = ps[2 + 3 * h]
                if q % 25 in VM1: q += 1
                tl.vec_at(xb[s_] + q, Ins(f"v_cvt_pk_bf16_f32 v{pd+h}, v{sr+2*h}, v{sr+2*h+1}"))
    for x in range(8):
        if x % 2 == 0: tl.scal_at(xb[x] + 15, W(lgkm=f"V{x//2}"))
        if x < 7: tl.scal_at(xb[x + 1] - 1, W(lgkm=f"K{x+1}"))
    for bl in range(6): tl.scal_at(yb[4 * bl] + (1 if bl == 0 else -1), W(lgkm=f"Y{bl}"))
    mb = OPT.get("ymb", 5)
    tl.scal_at(xb[mb] + 20, W(vm=["DV", "E1"])); tl.scal_at(xb[mb] + 21, Ins("s_barrier"))
    tl.scal_at(yb[0] + 2, W(lgkm="R")); tl.scal_at(yb[0] + 3, Ins("s_barrier"))
    b2 = OPT.get("yb2", 5)
    tl.scal_at(yb[b2], W(vm="E3")); tl.scal_at(yb[b2] + 1, Ins("s_barrier"))
    b3 = OPT.get("yb3", 11)
    tl.scal_at(yb[b3], W(lgkm="R")); tl.scal_at(yb[b3] + 1, Ins("s_barrier"))
    tl.scal_at(yb[20], Ins("s_barrier"))
    ld1 = f"buffer_load_dword v{vPoll}, v23, {SR(sWS)}, 0 offen sc1"
    chk1 = poll_check("h", vPoll, ld1, f"v_cmp_gt_u32 vcc, v31, v{vPoll}\ns_nop 0\ns_cmp_eq_u64 vcc, 0")
    def put(grps, slots):
        slots = list(slots); prev = slots[0] - 5
        for g in grps:
            for x in g[1]:
                gi = slots.pop(0)
                if x is g[1][0] and g[0]:
                    free = [q for q in range(max(prev + 1, gi - 5), gi) if not tl.g[q].scal][-len(g[0]):]
                    free = sorted(free + [gi - 1] * (len(g[0]) - len(free)))
                    for y, q in zip(g[0], free): tl.g[q].scal.append(y)
                tl.vec_at(gi, x); x.grp = g; x.role = "vec"; prev = gi
            for y in g[2]: tl.scal_at(gi + 1, y)
    assert [UNITS[u][0] for u in range(7)] == ["Ag", "Bg", "Ag", "Bg", "As", "As", "Ag"]
    sl = [xb[0] + 1, xb[0] + 5] + [xb[x] + o for x in range(8) for o in VM1]
    put([([], [Ins(ld1, tag="C1")], [])], [sl[-1]])
    put([dma_V(0, 1, "DV"), dma_V(1, 1, "DV"), udma(("As", 0)), udma(("As", 1)), udma(("As", 2)), udma(("As", 3))], sl[1:-1])
    Y = lambda f: yb[int(f)] + int((f - int(f)) * (yb[min(int(f) + 1, 24)] - yb[int(f)]))
    for n in range(16):
        i, t = FR[n]
        OSTORES.append((II(f"s_add_u32 s{sCnt}, s{sBo}, {t*BSTRIDE}"),
                        [Ins(f"buffer_store_dwordx4 {V(ost(n),4)}, v{vL16}, {SR(sB)}, s{sCnt} offen offset:{1024*i} sc1", tag="OS")], []))
    ospos = {}
    for n in range(14): ospos[n] = Y(wend(n)) + 3; put([OSTORES.pop(0)], [ospos[n]])
    def slots(lo, n, d):
        r = []
        while len(r) < n:
            while tl.g[lo].load: lo += 1
            r.append(lo); lo += d
        return r
    d1 = OPT.get("yd1", 5)
    sa = slots(yb[0] + 9, 16, d1)
    gp = tl.g[sa[8] - 1]; gp.vec += [W(vm="C1")] + chk1; gp.load += 1
    put([udma(0), udma(2), udma(1), udma(3)], sa)
    put([udma(4), udma(5)], slots(max(yb[b3] + 4, sa[-1] + d1), 8, OPT.get("yd2", 8)))
    EARLY[:] = [0, 1, 2, 3, 4, 5] + [6, 8][:OPT.get("e3", 1)]
    if EARLY[6:]: put([udma(u) for u in EARLY[6:]], slots(yb[20] + 4, 4 * len(EARLY[6:]), 7 // len(EARLY[6:])))
    su = II(f"""v_bfe_u32 v{T}, v0, 4, 2
v_mul_u32_u24 v{T}, 768, v{T}
v_add_u32 v{vDA}, v{vDV}, v{T}
v_add_u32 v{vDA+1}, v{vDV+1}, v{T}
v_add_u32 v{vDA+1}, 3072, v{vDA+1}
v_add_u32 v{vDA+2}, 6144, v{vDA}
v_add_u32 v{vDA+3}, 6144, v{vDA+1}
v_add_u32 v{vB1}, {BSTRIDE-2048}, v{vL16}""")
    su2 = II(f"""s_lshl_b32 s{sT}, s{sWave}, 6
s_or_b32 s{sT}, s{sT}, {L_V}
v_xor_b32 v25, s{sT}, v{vVA}
v_xor_b32 v26, s{sT}, v{vVA+1}
v_add_u32 v27, 0x10000, v25
v_add_u32 v28, 0x10000, v26""")
    tl.ddpen = 3; tl.vmpen = 4
    for x in range(7): tl.vec_in(xb[x], xb[x] + 17, kreads(x + 1, 1, (x + 1) & 1, f"K{x+1}"))
    for dt in range(1, 4): tl.vec_in(xb[2 * dt - 2] + 10, xb[2 * dt] + 9, vreads(dt, 0, dt & 1, f"V{dt}"))
    tl.vec_in(xb[6], xb[7] + 10, vreads(0, 1, 0, "Y0")); tl.vec_in(xb[6] + 16, xb[8] - 4, vreads(1, 1, 4, "Y0"))
    assert mb <= 5
    tl.vec_in(xb[mb] + 22, xb[8] - 3, ureads(("As", 0), 25) + ureads(("As", 1), 25))
    for bl in range(1, 6):
        s0, s1 = (0, 4) if bl % 2 == 0 else (1, 5)
        r = vreads(2, 1, s0, "Y1") + vreads(3, 1, s1, "Y1") if bl == 1 else vreads(bl + 2, 0, s0, f"Y{bl}") + vreads(bl + 2, 1, s1, f"Y{bl}")
        tl.vec_in(yb[4 * bl - 4], yb[4 * bl] - 7, r)
    def even(lo, hi, items):
        qs = [q for q in range(lo, hi + 1) if not any(x.is_vmem for x in tl.g[q].vec)]
        add = {q: 0 for q in qs}
        for x in items:
            q = min(qs, key=lambda z: (tl.g[z].load + add[z], z)); add[q] += 1
        left = list(items)
        for q in qs:
            for _ in range(add[q]): tl.vec_at(q, left.pop(0))
    even(xb[0], xb[2], su)
    left = tl.stream(xb[2], xb[4], su2, cap=3); assert not left
    vRL = vNM
    def lr(t): return II(f"v_accvgpr_read_b32 v{vRL+4+t}, a{aL+4*t}\nv_accvgpr_read_b32 v{vRL+t}, a{aL+4*t+1}\nv_add_f32 v{vRL+4+t}, v{vRL+4+t}, v{vRL+t}\nv_rcp_f32 v{vRL+t}, v{vRL+4+t}")
    where = lambda y: max(q for q, gp in enumerate(tl.g) if any(x is y for x in gp.vec))
    lo = 0; tail_ = []
    for n in range(16):
        i, t = FR[n]; o = ost(n); tb = vS + 8 * (n & 1)
        ar = [(k, O(2 * i + (k >> 2), t) + (k & 3)) for k in range(8)]
        if t & 1 and n < 8: ar = ar[4:] + ar[:4]
        items = (lr(t) if n < 4 else []) + II("\n".join(f"v_accvgpr_read_b32 v{tb+k}, a{a_}" for k, a_ in ar))
        items += II("\n".join(f"v_mul_f32 v{tb+k}, v{tb+k}, v{vRL+t}" for k, a_ in ar))
        items += II("\n".join(f"v_cvt_pk_bf16_f32 v{o+k}, v{tb+2*k}, v{tb+2*k+1}" for k in range(4)))
        lo = max(lo, cdone[n] + 2)
        if n == 15: tail_ = items; continue
        w1 = min(Y(wend(n)) + 1, end - 1); assert w1 < min(ospos.get(n, end), chkpos.get(n, end + 1) - 1) and w1 - lo >= 4, n
        if n == 4:
            assert yb[b2] + 1 < lo < yb[b3] - 24
            tl.vec_in(lo, yb[b3] - 6, ureads(("As", 2), 25) + ureads(("As", 3), 25))
        even(lo, w1, items); lo = w1 + 1
    print("ending: VALU left over", len(tail_), file=sys.stderr)
    blk = {p: tl.emit(start[p], nxt[p], f"att{p}") for p in phases}
    tx = lambda b: [(i.text, str(i.waitfor), i.tag) for i in b.ins]
    assert tx(blk[0]) == tx(blk[2]) and tx(blk[1]) == tx(blk[3])
    last = blk[15]
    for nm, x in (("x2", 0), ("x3", 12)):
        k_ = next(q for q, y in enumerate(last.ins) if y is tl.g[yb[x]].m); last.ins[k_:k_] = stamp_ins(STAMPS.get(nm))
    if OPT.get("osl"):
        assert len(tail_) == 20
        o13, o14 = OSTORES.pop(0), OSTORES.pop(0)
        last.ins += o13[0] + o13[1] + tail_[:8] + [mk(12)] + o14[0] + tail_[8:12] + o14[1] + [mk(13)] + tail_[12:16] + [mk(14)] + tail_[16:]
    else: last.ins += tail_[:-12] + [mk(12)] + tail_[-12:-8] + [mk(13)] + tail_[-8:-4] + [mk(14)] + tail_[-4:]
    last.tailchk = mk(15)
    return blk[-1], blk[0], blk[1], last

PARTS = [("G", 0), ("Q", 0), ("G", 1), ("Q", 1), ("G", 2), ("G", 3), ("Q", 2), ("Q", 3)]
SLOT = lambda i: (L_V + 32768, L_SP, L_V)[i % 3]
vNMU, vAQ, vAE, vIR = 32, 36, 40, 44
def XB(c, t, ks): return (c & 1) * 64 + (t * 4 + ks) * 4
def WF(fb, ks): return 212 + fb * 16 + ks * 4
def pacc(kind, u, t):
    if kind == "G": return V(128 + (u & 1) * 64 + ((u >> 1) * 4 + t) * 4, 4)
    ds, hf = u >> 1, u & 1
    return V(Q(t, ds), 4) if hf == 0 else A(128 + (t * 4 + ds) * 4, 4)
def wdma(i):
    kind, c = PARTS[i]; base = SLOT(i); g = []
    if kind == "Q":
        for half in range(2):
            g.append((II(f"s_add_u32 m0, s{sW8k}, {base + half*4096}\ns_add_u32 s{sT}, s{sWQo}, {(c*128+16*half)*8192}"),
                      [Ins(f"buffer_load_dwordx4 v{vDQ+p}, {SR(sWQ)}, s{sT} offen offset:{p*1024} lds", tag=f"DW{i}") for p in range(4)], []))
    else:
        for k, sr in enumerate((sW1, sW3)):
            g.append((II(f"s_add_u32 m0, s{sW4k}, {base + k*16384}\ns_add_u32 s{sT}, s{sW13o}, {c*128*3584}"),
                      [Ins(f"buffer_load_dwordx4 v{vD13+p}, {SR(sr)}, s{sT} offen offset:{p*1024} lds", tag=f"DW{i}") for p in range(4)], []))
    return g
def xdma(c):
    return [(II(f"s_xor_b32 m0, s100, {t*4096}\ns_xor_b32 s{sT}, s101, {t*16384 + c*256}"),
             [Ins(f"buffer_load_dwordx4 v{vDX+p}, {SR(sX)}, s{sT} offen offset:{p*1024} lds", tag=f"DX{c}") for p in range(4)], []) for t in range(4)]
def xreads(c):
    return [Ins(f"ds_read_b128 {A(XB(c,t,ks),4)}, v{vXA+ks} offset:{t*4096}", tag=f"X{c}") for t in range(4) for ks in range(4)]

def gen_proj(stats, var):
    S_ = var == "S"
    O_ = lambda k, d: OPT.get(k + var, OPT.get(k, d))
    tiles = lambda i: [0, 1, 4, 5, 2, 3] if (S_ and PARTS[i][0] == "G") else list(range(8))
    base = {"G": L_V, "Q": L_SP}
    def wreads(i, u, tag):
        kind, c = PARTS[i]; off0 = SLOT(i) - base[kind]; assert 0 <= off0 <= 32768
        r = []
        for ks in range(4):
            for kh in range(2):
                if kind == "Q": ad, off = vWQA + (u >> 1), ks * 8192 + kh * 1024 + 8 * (u & 1)
                else: ad, off = vW13A + (u >> 1), ks * 4096 + kh * 512 + 16384 * (u & 1)
                r.append(Ins(f"ds_read_b64_tr_b16 {A(WF(u&1,ks)+2*kh,2)}, v{ad} offset:{off0+off}", tag=tag))
        return r
    first_reads = wreads(0, 0, "W0")
    tl = TL(); tb = {}
    for i, (kind, c) in enumerate(PARTS):
        for pos_, u in enumerate(tiles(i)):
            tb[i, pos_] = len(tl.g)
            for t in range(4):
                d = pacc(kind, u, t)
                for n, ks in enumerate(snake(t)):
                    tl.add(MF(d, A(WF(u & 1, ks), 4), A(XB(c, t, ks), 4), OPT.get("b" + kind, "0") if (c == 0 and n == 0) else d))
            if u < 2 or (S_ and kind == "G" and u >= 4):
                d = A(aL + (8 if kind == "Q" else 0) + 4 * u, 4) if u < 2 else V(176 + 4 * (u - 4), 4)
                for kp in range(2): tl.add(Ins(f"v_smfmac_f32_16x16x64_bf16 {d}, {A(aONES,4)}, {A(WF(u&1,2*kp),8)}, v{vIDX}"))
    end = len(tl.g)
    tb[8, 0] = end
    LAST = lambda i: tb[i, len(tiles(i)) - 1]
    extra_vm = {1: ["ST"], 7: ["DK0"]}
    for i, (kind, c) in enumerate(PARTS):
        for u in range(len(tiles(i))):
            b0 = tb[i, u]; nb = tb.get((i, u + 1), tb[i + 1, 0])
            if b0 != LAST(i):
                r = wreads(i, tiles(i)[u + 1], f"W{u+1}")
                for k, x in enumerate(r): tl.vec_at(b0 + O_('wpos', (0, 1, 2, 4, 5, 6, 8, 9))[k], x)
                tl.scal_at(nb - 1, W(lgkm=f"W{u+1}"), later=False)
            else:
                vm = ([f"DW{i+1}"] if i < 7 else []) + extra_vm.get(i, [])
                tl.scal_at(b0, W(vm=vm, lgkm={4: ["X3"], 5: ["CS"], 7: ["CS"]}.get(i)))
                tl.scal_at(b0 + 1, Ins("s_barrier"))
                if i < 7:
                    nk = PARTS[i + 1][0]
                    if not 0 <= SLOT(i + 1) - base[nk] <= 32768:
                        dlt = SLOT(i + 1) - base[nk]; base[nk] += dlt
                        ad = vWQA if nk == "Q" else vW13A
                        for k in range(4): tl.vec_at(b0 + k // 2, Ins(f"v_add_u32 v{ad+k}, {dlt & 0xffffffff}, v{ad+k}"))
                    tl.vec_in(b0 + 2, b0 + 9, wreads(i + 1, 0, "W0"))
                    tl.scal_at(nb - 1, W(lgkm="W0"), later=False)
                else:
                    tl.vec_in(b0 + 2, b0 + 9, kreads(0, 0, 0, "K0"))
    P_ = lambda i, f: tb[i, 0] + int(f * (tb[i + 1, 0] - tb[i, 0]))
    def xout(c, lo, hi):
        j = tl.scal_at(lo, W(vm=f"DX{c}"))
        cc = tl.vec_in(j, hi, xreads(c))
        return cc[-1]
    def tch(dst, ad, sr, so): return Ins(f"buffer_load_dword a252, v{ad}, {SR(sr)}, {so} offen")
    TQ = lambda c: [(II(f"s_mov_b32 s{sT}, {c*128*8192}"), [tch(55, 22, sWQ, f"s{sT}")], [])]
    TG = lambda c: [(II(f"s_mov_b32 s{sT}, {c*128*3584}"), [tch(55, 23, sW1, f"s{sT}"), tch(55, 23, sW3, f"s{sT}")], [])]
    TK = [([], [tch(55, 53, sK, 0)], [])]; TV = [([], [tch(55, 53, sV, 0)], [])]
    kv = OPT.get("kvp", (9, 9, 9))
    at = lambda p: (TK if kv[0] == p else []) + (TV if kv[1] == p else []) + (TK2 if kv[2] == p else [])
    TK2 = [(II(f"s_mov_b32 s{sT}, 65536"), [tch(55, 53, sK, f"s{sT}")], [])]
    x1, x2, x3 = xdma(1), xdma(2), xdma(3)
    prev = [0]
    def sp(lo, hi, grps):
        lo = max(lo, prev[0] + 4); prev[0] = tl.spread(lo, max(hi, lo + 1), grps); return prev[0]
    SRL = [(II(f"s_lshl_b32 s{sT}, s{sCnt}, 11"), [Ins(f"buffer_load_dwordx4 {V(72+4*r,4)}, v58, {SR(sX)}, s{sT} offen offset:{512*r}", tag="SR") for r in range(2)], [])]
    CP = [([], II("global_load_dword a252, v[60:61], off"), [])]
    item = lambda n: {"W": lambda: wdma(int(n[1])), "Q": lambda: TQ(int(n[1])), "G": lambda: TG(int(n[1])), "S": lambda: SRL, "C": lambda: CP, "K": lambda: TK, "V": lambda: TV, "k": lambda: TK2,
                      "A": lambda: [([], [Ins(f"buffer_atomic_add v49, v48, {SR(sDBG)}, 0 offen", tag="AT")], [])],
                      "r": lambda: (x1, x2, x3)[int(n[1]) - 1][:1], "x": lambda: (x1, x2, x3)[int(n[1]) - 1][1:]}[n[0]]()
    PP = lambda f: P_(int(f), f - int(f))
    for ent in O_("sch", None):
        if ent[0] == "o":
            l = xout(ent[1], PP(ent[2]), min(PP(ent[3]), LAST((0, 1, 3, 4)[ent[1]]) - 6))
            assert PP(ent[2]) >= tb[(0, 0, 2, 4)[ent[1]], 0]
            if ent[1] < 3: prev[0] = max(prev[0], tl.scal_at(l + 5, W(lgkm=f"X{ent[1]}")))
        else:
            g_ = [g for n in ent[1].split() for g in item(n)]
            lo = max(PP(ent[0]), prev[0] + 4)
            sp(lo, lo + int((ent[2] if len(ent) > 2 else O_('dsp', 4.4)) * (sum(len(g[1]) for g in g_) - 1)), g_)
    w7 = O_("w7", 0)
    if not w7: sp(P_(5, .03), P_(5, .3), wdma(7))
    ld0 = f"buffer_load_dword v50, v51, {SR(sDBG)}, 0 offen sc1"
    ck0 = O_("ck0", .33)
    g = tl.g[P_(5, ck0)]
    g.vec += [W(vm="C0")] + poll_check("st" + var, 50, ld0, f"v_cmp_gt_u32 vcc, 32, v50\ns_nop 0\ns_cmp_eq_u64 vcc, 0"); g.load += 2
    sp(P_(5, ck0) + 3, P_(5, ck0 + .1), [([], [Ins(f"buffer_load_dwordx2 {V(56+2*t,2)}, v52, {SR(sWS)}, 0 offen offset:{128*t} sc1", tag="SL") for t in range(4)], [])])
    if w7:
        l = sp(P_(5, w7), P_(5, w7) + 30, wdma(7)); assert l < P_(5, min(O_("slpos", .8), 1))
    sp(0, P_(5, O_("k0e", .97)), [dma_K(0, 0, "DK0"), dma_K(1, 0, "DK0")])
    sp(P_(6, O_("v0a", .3)), P_(6, O_("v0b", .9)), [dma_V(0, 0, "DV"), dma_V(1, 0, "DV")])
    sp(P_(7, O_("v0a", .3)), P_(7, O_("v0b", .9)), [dma_K(0, 1, "DK"), dma_K(1, 1, "DK")])
    def span(tag):
        ps = [q for q, gp in enumerate(tl.g) for x in gp.vec if x.tag == tag]; return min(ps), max(ps)
    for i in range(1, 8):
        assert span(f"DW{i}")[1] < LAST(i - 1) and (i < 3 or span(f"DW{i}")[0] > LAST(i - 3) + 1), i
    for c in (1, 2, 3): assert span(f"DX{c}")[1] < span(f"X{c}")[0] and (c == 1 or span(f"DX{c}")[0] > span(f"X{c-1}")[1] + 5), c
    if not any("A" in e_[1].split() for e_ in O_("sch", None) if e_[0] != "o"): tl.vec_in(LAST(1) + 10, LAST(1) + 14, item("A")[0][1])
    assert span("AT")[0] > LAST(1) + 1
    left = tl.sched(P_(0, O_("stpos", .3)), P_(1, O_('sthi', 0)) - 1, stats); assert not left and P_(1, O_('sthi', 0)) <= tb[1, 4], len(left)
    tl.vec_in(PP(4 + O_("c0pos", .9)), PP(4 + O_("c0pos", .9)) + 6, [Ins(ld0, tag="C0")])
    for i, off in ((5, 0), (7, 1)):
        a0 = aL + 8 * off; it_ = []
        for u in range(2):
            it_ += II(f"v_accvgpr_read_b32 v22, a{a0+4*u}\nv_accvgpr_read_b32 v23, a{a0+4*u+1}\nv_add_f32 v22, v22, v23")
            it_ += [Ins(f"ds_write_b32 v21, v22 offset:{64*u}", tag="CS")]
        left = tl.stream(tb[i, 3], tb[i, 4] - 1, it_); assert not left
        if i == 5:
            it_ = []
            if S_:
                for u in range(2): it_ += II(f"v_add_f32 v{176+4*u}, v{176+4*u}, v{177+4*u}") + [Ins(f"ds_write_b32 v21, v{176+4*u} offset:{512+64*u}", tag="CS")]
            left = tl.stream(tb[i, 4] + 6, tb[i, 5] - 1, it_ + II(f"v_add_u32 v21, {L_V - L_K}, v21")); assert not left
    it = [W(vm="SL")]
    for t in range(4): it += II(f"v_rsq_f32 v{vAQ+t}, v{57+2*t}")
    for t in range(4): it += II(f"v_sub_f32 v{vNMU+t}, 0, v{56+2*t}\nv_mov_b32 v{vIR+t}, v{57+2*t}")
    for t in range(4): it += II(f"v_mul_f32 v{vAE+t}, {f32(-LOG2E)}, v{vAQ+t}\nv_mul_f32 v{vAQ+t}, {f32(LOG2E * 128 ** -0.5)}, v{vAQ+t}")
    h0 = tb[6, 0] + 2
    if O_("slpos", .8) < 1:
        left = tl.stream(P_(5, O_("slpos", .8)), tb[6, 0] - 1, it); assert not left, len(left)
        it = []
    else: it[0].guards = {f"v{56+k}" for k in range(8)}; h0 = P_(6, O_("slpos", .8) - 1) + 2
    NV = 3 if S_ else 4
    for v in range(NV): it += II(f"v_xor_b32 v{28+v}, {512 if (S_ and v == 2) else 128*v}, v54")
    def csread(v): return [Ins(f"ds_read_b128 {V(48+8*(v&1)+4*m,4)}, v{28+v} offset:{64*m}", tag=f"CG{v}") for m in range(2)]
    it += csread(0)
    for v in range(NV):
        if v < NV - 1: it += csread(v + 1)
        it += [W(lgkm=f"CG{v}")]
        for m in range(2):
            for t in range(4):
                d = 128 + m * 64 + (v * 4 + t) * 4
                for r in range(4): it += II(f"v_fmac_f32 v{d+r}, v{48+8*(v&1)+4*m+r}, v{vNMU+t}")
    mv30 = Ins(f"v_add_u32 v30, {L_V - L_K}, v28"); it.append(mv30)
    it += II(f"s_add_u32 s{sCnt}, s{sFs}, s{sBo}")
    if not S_: it += II(f"s_and_b32 s{sT2}, s{sWave}, 2\ns_lshl_b32 s{sT2}, s{sT2}, 9\nv_add_u32 v28, s{sT2}, v{vL16}\nv_xor_b32 v29, 0x400, v28")
    else:
        it += II(f"s_and_b32 s{sT2}, s{sHead}, 1\ns_lshl_b32 s{sT2}, s{sT2}, 11\nv_add_u32 v28, s{sT2}, v{vL16}\ns_xor_b32 s{sT2}, s{sHead}, s{sWave}\ns_and_b32 s{sT2}, s{sT2}, 1\ns_lshl_b32 s{sT2}, s{sT2}, 3\ns_add_u32 s{sT2}, s{sT2}, 1024\nv_add_u32 v29, s{sT2}, v{vL16}")
    rest = []
    for n in range(8):
        t, i = n >> 1, n & 1
        N = 4 if (S_ and i == 1) else 8
        gr = [128 + ((2 * i + hf) * 4 + t) * 4 + r for hf in range(2) for r in range(4)][:N]
        ur = [x + 64 for x in gr]; q = []
        if n < O_("nh", 0):
            for k in range(N): q += II(f"v_mul_f32 v{ur[k]}, v{ur[k]}, v{gr[k]}\nv_mul_f32 v{gr[k]}, v{vAE+t}, v{gr[k]}")
            for k in range(N): q += II(f"v_exp_f32 v{gr[k]}, v{gr[k]}") + (II(f"v_fma_f32 v{gr[k-2]}, v{gr[k-2]}, v{vIR+t}, v{vIR+t}") if k >= 2 else [])
            for k in range(N): q += II(f"v_rcp_f32 v{gr[k]}, v{gr[k]}") + II(f"v_fma_f32 v{gr[k+N-2]}, v{gr[k+N-2]}, v{vIR+t}, v{vIR+t}" if k < 2 else f"v_mul_f32 v{gr[k-2]}, v{gr[k-2]}, v{ur[k-2]}")
            for k in (N - 2, N - 1): q += II(f"v_mul_f32 v{gr[k]}, v{gr[k]}, v{ur[k]}")
        else:
            o = t & 1; ae, ir = V(vAE + t - o, 2), V(vIR + t - o, 2)
            for k in range(0, N, 2): q += II(f"v_pk_mul_f32 {V(ur[k],2)}, {V(ur[k],2)}, {V(gr[k],2)}\nv_pk_mul_f32 {V(gr[k],2)}, {V(gr[k],2)}, {ae} op_sel:[0,{o}] op_sel_hi:[1,{o}]")
            for k in range(N): q += II(f"v_exp_f32 v{gr[k]}, v{gr[k]}")
            for k in range(0, N, 2): q += II(f"v_pk_fma_f32 {V(gr[k],2)}, {V(gr[k],2)}, {ir}, {ir} op_sel:[0,{o},{o}] op_sel_hi:[1,{o},{o}]")
            for k in range(N): q += II(f"v_rcp_f32 v{gr[k]}, v{gr[k]}")
            for k in range(0, N, 2): q += II(f"v_pk_mul_f32 {V(gr[k],2)}, {V(gr[k],2)}, {V(ur[k],2)}")
        for k in range(N // 2): q += II(f"v_cvt_pk_bf16_f32 v{gr[0]+k}, v{gr[2*k]}, v{gr[2*k+1]}")
        q += II(f"buffer_store_dwordx{N//2} {V(gr[0],N//2)}, v{28+i}, {SR(sB)}, s{sCnt} offen sc1")
        if i == 1 and t < 3: q += II(f"s_add_u32 s{sCnt}, s{sCnt}, {BSTRIDE}")
        if n < O_("nh", 0): it += q
        else: rest += q
    lastcs = [x for x in it if x.tag == f"CG{NV-1}"][-1]
    left = tl.sched(h0, end - 1, it, look=O_("look", 70))
    assert len(left) <= 54 * O_("nh", 0) and not any(x is mv30 for x in left)
    pos = [k for k, gp in enumerate(tl.g) if any(x is lastcs for x in gp.vec)]
    assert pos and pos[0] < tb[6, 6], (pos, tb[6, 6])

    for nm, i in [(f"p{i}", i) for i in range(1, 8)]:
        tl.g[tb[i, 0]].scal = stamp_ins(STAMPS.get(nm)) + tl.g[tb[i, 0]].scal
    body = tl.emit(0, end, "proj" + var)
    print("h epilogue leftover", len(left), "of", len(it), file=sys.stderr)
    return first_reads, body, left + rest

def gen_kernel():
    b = Block(); b.name = "setup"
    b.e(f"s_cmp_ge_u32 s2, 256\ns_cbranch_scc1 L_end\ns_mov_b32 s{sFB}, 0")
    if OPT.get("shuffle"): b.e("s_and_b32 s3, s2, 7\ns_lshl_b32 s3, s3, 5\ns_lshr_b32 s2, s2, 3\ns_or_b32 s2, s2, s3")
    if OPT.get("delay"): b.e(f"s_mov_b32 s3, {OPT['delay']}\nL_dly:\ns_sub_u32 s3, s3, 1\ns_cmp_lg_u32 s3, 0\ns_cbranch_scc1 L_dly")
    if OPT["stamp"]:
        for i in range(20): b.e(f"s_mov_b32 s{72+i}, 0")
        stamp(b, "start")
    b2 = Block(); b2.name = "setup1"; b_ = b; b = b2
    b.e("L_restart:")
    for sr, off in ((sX, 0), (sW1, 48), (sW3, 56), (sWQ, 24)): b.e(f"s_load_dwordx2 s[{sr}:{sr+1}], s[0:1], {off}")
    T0, T1, T2, T3, T4 = 56, 57, 58, 59, 60
    vl, vc, vg, vi2, vi3 = 61, 62, 63, 22, 23
    b.e("s_getpc_b64 s[100:101]\nL_pc:")
    b.e(f"s_lshr_b32 s{sT}, s2, 3\ns_mul_i32 s{sT2}, s{sT}, 2560\nv_mul_u32_u24 v108, 10, v0\nv_add_u32 v108, s{sT2}, v108\nv_and_b32 v108, 0xffffff80, v108\nv_min_u32 v108, L_code_end-L_pc, v108\nv_mov_b32 v109, s101")
    b.e(f"v_add_co_u32 v108, vcc, s100, v108\nv_lshrrev_b32 v{T0}, 6, v0\nv_and_b32 v{vc}, 15, v0\nv_addc_co_u32 v109, vcc, 0, v109, vcc\nglobal_load_dword v107, v[108:109], off")
    b.e(f"v_readfirstlane_b32 s{sWave}, v{T0}\nv_bfe_u32 v{vg}, v0, 4, 2\ns_and_b32 s{sT}, s{sT}, 3\ns_lshr_b32 s{sQb}, s2, 5")
    b.e(f"s_lshl_b32 s{sW16k}, s{sWave}, 14\ns_lshl_b32 s{sXb}, s{sQb}, 18\ns_lshl_b32 s{sT2}, s{sWave}, 16\ns_add_u32 s{sXb}, s{sXb}, s{sT2}")
    b.e(f"s_lshl_b32 s100, s{sT}, 12\ns_add_u32 s100, s100, s{sW16k}\ns_lshl_b32 s101, s{sT}, 14\ns_add_u32 s101, s101, s{sXb}")
    b.e(f"s_and_b32 s{sHead}, s2, 7\ns_lshl_b32 s{sHead}, s{sHead}, 2\ns_add_u32 s{sHead}, s{sHead}, s{sT}")
    b.e(f"v_xor_b32 v{T0}, v{vg}, v{vc}\nv_lshlrev_b32 v{T0}, 4, v{T0}\nv_lshl_add_u32 v{vDX}, v{vg}, 10, v{T0}")
    for p in range(1, 4): b.e(f"v_xor_b32 v{T2}, {64*p}, v{vDX}\nv_add_u32 v{vDX+p}, {p*3072}, v{T2}")
    b.e(f"s_mov_b32 s{sX+2}, 0x200000\ns_mov_b32 s{sX+3}, 0x20000\ns_waitcnt lgkmcnt(0)")
    stamp(b, "karg")
    b.e(f"s_and_b32 s{sX+1}, s{sX+1}, 0xffff")
    xg = xdma(0); wg = wdma(0)
    emit_grp(b, xg[0])
    for sr, off in ((sK, 8), (sV, 16), (sB, 88), (sH, 88), (sWS, 88), (sDBG, 80), (sWO, 32), (sW2, 64), (sOut, 72)):
        b.e(f"s_load_dwordx2 s[{sr}:{sr+1}], s[0:1], {off}")
    b.e(f"s_and_b32 s{sT2}, s{sHead}, 3\ns_lshr_b32 s3, s{sT2}, 1\ns_add_u32 s{sT}, s3, 8\ns_mul_i32 s3, s3, 3\ns_add_u32 s3, s3, 8\ns_lshl_b32 s{sFs}, s{sT2}, 1\ns_bitcmp1_b32 s2, 0")
    b.e(f"s_cselect_b32 s{sT}, s{sT}, s{sT2}\ns_cselect_b32 s{sFs}, s3, s{sFs}\ns_add_u32 s{sT}, s{sT}, s{sT2}\ns_lshr_b32 s3, s{sHead}, 3\ns_mul_i32 s3, s3, 14\ns_add_u32 s{sT}, s{sT}, s3\ns_lshl_b32 s{sT}, s{sT}, 6")
    ptr_add(b, sW1, f"s{sT}"); ptr_add(b, sW3, f"s{sT}")
    b.e(f"s_sub_u32 s{sT2}, {512*3584}, s{sT}\ns_add_u32 s{sFs}, s{sFs}, s3\ns_add_u32 s{sFs}, s{sFs}, 128\ns_lshl_b32 s{sFs}, s{sFs}, 10")
    srd_fin(b, sW1, f"s{sT2}"); srd_fin(b, sW3, f"s{sT2}")
    b.e(f"s_lshr_b32 s{sBo}, s{sXb}, 14\nv_and_b32 v{vl}, 63, v0")
    b.e(f"v_lshrrev_b32 v{T0}, 2, v{vl}\nv_and_b32 v{T1}, 3, v0\nv_lshl_add_u32 v{T1}, v{T0}, 7, v{T1}\nv_add_u32 v{T1}, s{sBo}, v{T1}\nv_mul_u32_u24 v101, 3584, v{T1}\nv_lshl_add_u32 v103, v{T0}, 26, v101")
    if not OPT.get("noptouch"): b.e(f"buffer_load_dword v105, v103, {SR(sW1)}, 0 offen\nbuffer_load_dword v106, v103, {SR(sW3)}, 0 offen")
    b.e(f"s_lshl_b32 s{sCnt}, s{sQb}, 7\ns_lshl_b32 s{sT2}, s{sHead}, 2\ns_add_u32 s{sCnt}, s{sCnt}, s{sT2}\ns_add_u32 s{sCnt}, s{sCnt}, s{sWave}\nv_lshlrev_b32 v{vL16}, 4, v{vl}")
    for g in (xg[1], xg[2], xg[3])[:OPT.get("nx", 1)]: emit_grp(b, g)
    b.e(f"s_lshl_b32 s{sT}, s{sHead}, 8"); ptr_add(b, sWQ, f"s{sT}"); b.e(f"s_sub_u32 s{sT2}, 0x400000, s{sT}")
    srd_fin(b, sWQ, f"s{sT2}")
    b.e(f"v_lshrrev_b32 v{T0}, 3, v{vl}\nv_bfe_u32 v{T1}, v0, 1, 2\nv_lshl_add_u32 v{T1}, v{T0}, 7, v{T1}\nv_add_u32 v{T1}, s{sBo}, v{T1}\nv_and_b32 v{T2}, 1, v0\nv_lshlrev_b32 v{T2}, 7, v{T2}\nv_lshl_add_u32 v100, v{T1}, 13, v{T2}\nv_lshl_add_u32 v102, v{T0}, 26, v100")
    if OPT.get("q0first"): b.e(f"buffer_load_dword a252, v102, {SR(sWQ)}, 0 offen")
    b.e(f"s_bfe_u32 s{sSp}, s2, 0x20001\ns_lshr_b32 s{sTc}, s2, 6\ns_bfe_u32 s{sTr}, s2, 0x30003\ns_and_b32 s{sT}, s2, 1\ns_lshl_b32 s{sT}, s{sT}, 3\ns_add_u32 s{sTr}, s{sTr}, s{sT}")
    b.e(f"s_lshl_b32 s{sW8k}, s{sWave}, 13\ns_lshl_b32 s{sW4k}, s{sWave}, 12\ns_mul_i32 s{sBo}, s{sBo}, {BSTRIDE}")
    b.e(f"s_lshl_b32 s{sWQo}, s{sWave}, 18\ns_mul_i32 s{sW13o}, s{sWave}, {32*3584}\ns_mov_b32 s{sKo}, s{sW8k}\ns_mov_b32 s{sVo}, s{sW8k}")
    b.e(f"v_mul_u32_u24 v{T0}, 3584, v{T0}\nv_and_b32 v{T1}, 7, v0\nv_and_b32 v{T2}, 1, v{vg}\nv_lshlrev_b32 v{T2}, 1, v{T2}\nv_xor_b32 v{T1}, v{T1}, v{T2}")
    for p in range(4): b.e(f"v_xor_b32 v{T2}, {4*(p&1)}, v{T1}\nv_lshl_add_u32 v{T2}, v{T2}, 4, v{T0}\nv_add_u32 v{vD13+p}, {p*27648}, v{T2}")
    b.e(f"v_lshlrev_b32 v{T0}, 2, v{vg}\nv_xor_b32 v{T0}, v{vc}, v{T0}\nv_lshlrev_b32 v{T0}, 4, v{T0}\nv_lshl_add_u32 v{vDQ}, v{vg}, 13, v{T0}")
    for p in range(1, 4): b.e(f"v_add_u32 v{vDQ+p}, {p*31744}, v{vDQ}")
    b.e("s_waitcnt lgkmcnt(0)")
    late = [xg[1], xg[2], xg[3], wg[0], wg[1]][OPT.get("nx", 1):]
    if OPT.get("wfirst"): late = late[-2:] + late[:-2]
    stamp(b, "a1")
    c = Block(); c.name = "setup2"
    c.e(f"s_lshl_b32 s{sT}, s{sHead}, 19"); ptr_add(c, sK, f"s{sT}"); ptr_add(c, sV, f"s{sT}")
    srd_fin(c, sK, 0x80000); srd_fin(c, sV, 0x80000)
    wso = OPT.get("wsoff", 0) << 20
    if wso: ptr_add(c, sWS, wso)
    ptr_add(c, sB, WS_B + wso); ptr_add(c, sH, WS_B + wso); srd_fin(c, sB, 128 * BSTRIDE)
    srd_fin(c, sH, 0)
    srd_fin(c, sWS, 0x28000); srd_fin(c, sDBG, 256); srd_fin(c, sOut, 0x200000)
    srd_fin(c, sWO, 0 if OPT.get("noA") else 4096 * 1024); srd_fin(c, sW2, 0 if OPT.get("noA") else 1792 * 1024)
    c.e(f"v_bfe_u32 v{vi2}, v0, 2, 2\nv_and_b32 v{vi3}, 3, v0")
    c.e(f"v_lshl_add_u32 v{T0}, v{vg}, 3, v{vi2}\nv_lshlrev_b32 v{T1}, 8, v{T0}\nv_lshl_add_u32 v{T1}, v{vi3}, 4, v{T1}\nv_add_u32 v{T1}, {L_SP}, v{T1}\nv_xor_b32 v{T3}, s{sWave}, v{vi2}")
    for i in range(4): c.e(f"v_xor_b32 v{T2}, {i}, v{T3}\nv_lshl_add_u32 v{vWQA+i}, v{T2}, 6, v{T1}")
    c.e(f"v_lshlrev_b32 v{T1}, 7, v{T0}\nv_lshl_add_u32 v{T1}, v{vi3}, 3, v{T1}\nv_add_u32 v{T1}, {L_V}, v{T1}")
    c.e(f"v_and_b32 v{T3}, 1, v{vg}\nv_lshlrev_b32 v{T3}, 1, v{T3}\nv_lshrrev_b32 v{T4}, 1, v{vi2}\nv_or_b32 v{T3}, v{T3}, v{T4}")
    c.e(f"s_and_b32 s3, s{sHead}, 1\ns_sub_u32 s{sT2}, 2, s3\ns_lshl_b32 s3, s3, 1\ns_and_b32 s{sT}, s{sWave}, 1\ns_or_b32 s{sT}, s{sT}, s3\ns_xor_b32 s3, s{sWave}, 2\ns_bitcmp1_b32 s2, 0\ns_cselect_b32 s{sT}, s{sT}, s{sWave}\ns_cselect_b32 s{sT2}, s{sT2}, s3")
    for i in (0, 2): c.e(f"v_xor_b32 v{T2}, s{sT2 if i else sT}, v{T3}\nv_lshl_add_u32 v{vW13A+i}, v{T2}, 5, v{T1}\nv_xor_b32 v{vW13A+i+1}, 32, v{vW13A+i}")
    for r in range(8): c.e(f"v_mov_b32 v{176+r}, 0")
    for r in range(4): c.e(f"v_accvgpr_write_b32 a{aCHK+r}, -1")
    c.e(f"v_xor_b32 v{T0}, v{vg}, v{vc}\nv_lshlrev_b32 v{T1}, 8, v{vc}\nv_add_u32 v{T3}, s{sW16k}, v{T1}\ns_lshl_b32 s{sT}, s{sWave}, 2")
    for i in range(4): c.e(f"v_xor_b32 v{T2}, {4*i}, v{T0}\nv_lshl_add_u32 v{vXA+i}, v{T2}, 4, v{T3}\nv_xor_b32 v{T2}, s{sT}, v{T2}\nv_lshl_add_u32 v{vKA+i}, v{T2}, 4, v{T1}")
    c.e(f"v_lshl_add_u32 v{T0}, v{vg}, 2, v{vi2}\nv_lshlrev_b32 v{T1}, 8, v{T0}\nv_lshl_add_u32 v{T1}, v{vi3}, 3, v{T1}\nv_add_u32 v{T1}, {L_V}, v{T1}\nv_and_b32 v{T0}, 7, v{T0}")
    for dt in range(8): c.e(f"v_xor_b32 v{T2}, {dt}, v{T0}\nv_lshl_add_u32 v{vVA+dt}, v{T2}, 5, v{T1}")
    c.e(f"v_lshlrev_b32 v{T1}, 8, v{vg}\nv_xor_b32 v{T0}, v{vg}, v{vc}")
    for p in range(4): c.e(f"v_xor_b32 v{T2}, {4*p}, v{T0}\nv_lshl_add_u32 v{vDK+p}, v{T2}, 4, v{T1}")
    c.e(f"v_lshlrev_b32 v{T0}, 1, v{vg}\nv_xor_b32 v{T0}, v{T0}, v{vc}")
    for p in range(2): c.e(f"v_xor_b32 v{T2}, {8*p}, v{T0}\nv_lshl_add_u32 v{vDV+p}, v{T2}, 4, v{T1}")
    if OPT.get("half1"): c.e(f"v_bfe_u32 v{T0}, v0, 1, 1\nv_add_u32 v{T0}, -1, v{T0}\nv_and_b32 v{T0}, 0x3f803f80, v{T0}")
    else: c.e(f"v_mov_b32 v{T0}, 0x3f803f80")
    for i in range(4): c.e(f"v_accvgpr_write_b32 a{aONES+i}, v{T0}")
    c.e(f"s_lshl_b32 s{sT}, s{sQb}, 5\nv_and_b32 v51, 7, v0\nv_lshlrev_b32 v51, 5, v51\ns_cmp_eq_u32 s{sFB}, 0\ns_cselect_b32 s{sT}, s{sT}, {OOB}")
    c.e(f"v_mov_b32 v{T0}, {OOB}\nv_mov_b32 v{T1}, s{sT}\nv_cmp_eq_u32 vcc, 0, v0\nv_mov_b32 v49, 1\nv_cndmask_b32 v48, v{T0}, v{T1}, vcc")
    c.e(f"s_lshl_b32 s{sT}, s{sQb}, 5\ns_add_u32 s{sT}, s{sT}, s{sHead}\ns_lshl_b32 s{sT}, s{sT}, 7\ns_add_u32 s{sT}, s{sT}, {WS_FH}\ns_cmp_eq_u32 s{sFB}, 0\ns_cselect_b32 s{sT}, s{sT}, {OOB >> 1}")
    c.e(f"s_and_b32 s{sT2}, s{sHead}, 7\ns_mul_i32 s{sT2}, s{sT2}, 124\ns_sub_u32 s{sT2}, {WS_FO-WS_FH}, s{sT2}\nv_mov_b32 v{T2}, s{sT}\nv_mad_u32_u24 v{T1}, v0, s{sT2}, v{T2}\nv_cmp_gt_u32 vcc, 2, v0\nv_mov_b32 v55, 0\nv_cndmask_b32 v53, v{T0}, v{T1}, vcc")
    c.e(f"s_lshr_b32 s{sT}, s{sXb}, 7\nv_lshlrev_b32 v52, 3, v{vc}\nv_add_u32 v52, s{sT}, v52")
    c.e(f"s_lshl_b32 s{sT}, s{sWave}, 7\nv_lshlrev_b32 v54, 4, v{vg}\nv_add_u32 v54, s{sT}, v54\nv_add_u32 v54, {L_K+32768}, v54\ns_add_u32 s{sT}, s{sT}, {L_K+32768}\nv_lshl_add_u32 v21, v{vc}, 2, s{sT}")
    for i in range(4): c.e(f"v_accvgpr_write_b32 a{aZ+i}, 0")
    c.e(f"v_and_b32 v{vIDX}, 1, v0\nv_mul_u32_u24 v{vIDX}, 0xaaaa, v{vIDX}\nv_add_u32 v{vIDX}, 0x4444, v{vIDX}")
    c.e(f"v_mfma_f32_32x32x16_bf16 {A(aL,16)}, {A(aZ,4)}, {A(aZ,4)}, 0")
    stamp(c, "a2")
    c.e(f"s_lshl_b32 s{sT2}, s{sCnt}, 4\nv_lshrrev_b32 v{T2}, 5, v{vl}\nv_lshl_add_u32 v{T1}, v{T2}, 3, s{sT2}\nv_lshl_add_u32 v{T2}, v{T2}, 9, v{vL16}\nv_and_b32 v{T3}, 31, v0\nv_cmp_eq_u32 vcc, 0, v{T3}\nv_cndmask_b32 v{T1}, v{T0}, v{T1}, vcc")
    c.e("v_mov_b32 v22, v102\nv_mov_b32 v23, v103\nv_accvgpr_write_b32 a254, v108\nv_accvgpr_write_b32 a255, v109")
    c.e("v_mov_b32 v60, v108\nv_mov_b32 v61, v109")
    su_ = c.ins; c.ins = []
    rd_scc = lambda x: x.op.startswith(("s_addc", "s_subb", "s_cselect", "s_cbranch"))
    wr_scc = lambda x: x.kind == "salu" and not x.op.startswith(("s_mov", "s_mul", "s_cselect"))
    def scc_live(k):
        for x in su_[k:]:
            if rd_scc(x): return True
            if wr_scc(x): return False
        return False
    lq = [[Ins(y.text.replace(f"s{sT}", "s95" if False else f"s{sOut+2}"), tag=y.tag) for y in ([*g[0], x] if x is g[1][0] else [x])] for g in late for x in g[1]]
    nxt_ = OPT.get("il0", 60); per = OPT.get("ilp", 10)
    outfin = [x for x in su_ if f"s{sOut+2}" in x.writes]; su_ = [x for x in su_ if x not in outfin]
    for k_, x in enumerate(su_):
        if lq and k_ >= nxt_ and not (len(lq[0]) > 1 and scc_live(k_)): c.ext(lq.pop(0)); nxt_ = k_ + per
        c.add(x)
    for q in lq: c.ext(q)
    c.ext(outfin)
    def pre_items(blk):
        for n in OPT["pre"].split():
            if n == "Q0": blk.e(f"buffer_load_dword a252, v22, {SR(sWQ)}, 0 offen")
            if n == "G1": blk.e(f"s_mov_b32 s{sT}, {128*3584}\nbuffer_load_dword a252, v23, {SR(sW1)}, s{sT} offen\nbuffer_load_dword a252, v23, {SR(sW3)}, s{sT} offen")
            if n == "S":
                blk.e(f"s_lshl_b32 s{sT}, s{sCnt}, 11")
                for r in range(2): blk.e(f"buffer_load_dwordx4 {V(72+4*r,4)}, v{T2}, {SR(sX)}, s{sT} offen offset:{512*r}", tag="SR")
        blk.e(f"buffer_store_dword v55, v53, {SR(sWS)}, 0 offen sc1")
    if not OPT.get("prelate", 1): pre_items(c)
    stamp(c, "a4")
    c_ = c; c = Block(); c.wait(vm="SR")
    X = lambda k: 88 + k + (8 if k >= 8 else 0)
    for k in range(8): c.e(f"v_lshlrev_b32 v{X(2*k)}, 16, v{72+k}\nv_and_b32 v{X(2*k+1)}, 0xffff0000, v{72+k}")
    def wred(d):
        c.e("v_add_f32 v120, v120, v121")
        for sh in (8, 4, 2, 1): c.e(f"v_add_f32_dpp v120, v120, v120 row_ror:{sh} row_mask:0xf bank_mask:0xf")
        c.e(f"v_mov_b32 v121, v120\nv_permlane16_swap_b32 v121, v120\nv_add_f32 v120, v120, v121\nv_mul_f32 v{d}, {f32(1/512)}, v120")
    for k in range(7):
        for r in range(2): c.e(f"v_add_f32 v{120+r}, v{X(8*r+k+1)}, v{X(8*r) if k == 0 else (120+r)}")
    wred(122)
    for k in range(16): c.e(f"v_sub_f32 v{X(k)}, v{X(k)}, v122")
    for k in range(8):
        for r in range(2): c.e(f"v_mul_f32 v{120+r}, v{X(8*r)}, v{X(8*r)}" if k == 0 else f"v_fmac_f32 v{120+r}, v{X(8*r+k)}, v{X(8*r+k)}")
    wred(123)
    def rnd(r): c.e(f"v_cvt_pk_bf16_f32 v{r}, v{r}, v{r}\nv_and_b32 v{r}, 0xffff0000, v{r}")
    rnd(122); rnd(123); c.e(f"v_add_f32 v123, {f32(1e-5)}, v123"); rnd(123); c.e("v_sqrt_f32 v123, v123"); rnd(123); c.e("v_mul_f32 v123, v123, v123")
    c.e(f"buffer_store_dwordx2 v[122:123], v{T1}, {SR(sWS)}, 0 offen sc1", tag="ST")
    st_ = [x for x in c.ins if x.kind != "nop"]; c = c_
    def stats():
        w_ = W(vm="SR"); w_.guards = {f"v{72+k}" for k in range(8)}
        return [w_] + [Ins(x.text, tag=x.tag) for x in st_[1:]]
    PJ = {}
    for var in "FS":
      first_reads, proj, hleft = gen_proj(stats(), var)
      e = Block(); e.name = "projepi"
      stamp(e, "projend")
      for i in range(4): e.e(f"v_xor_b32 v{24+i}, {128*i}, v30")
      def cq(i): return [Ins(f"ds_read_b128 {V(48+8*(i&1)+4*hf,4)}, v{24+i} offset:{64*hf}", tag=f"CQ{i}") for hf in range(2)]
      e.ext(cq(0) + cq(1))
      nfirst = [k for k, x in enumerate(hleft) if x.kind == "vstore"][0] + 1
      e.ext(hleft[:nfirst]); hleft = hleft[nfirst:]
      H = 192
      for ds in range(4):
          e.wait(lgkm=f"CQ{ds}")
          for t in range(4):
              d = Q(t, ds); h = H + 16 * (t & 1); o = t & 1; nm, aq = V(vNMU + t - o, 2), V(vAQ + t - o, 2); CS = 48 + 8 * (ds & 1)
              for k in range(4): e.e(f"v_accvgpr_read_b32 v{h+k}, a{128+(t*4+ds)*4+k}")
              prs = [(d, CS), (d + 2, CS + 2), (h, CS + 4), (h + 2, CS + 6)]
              for x, cs in prs: e.e(f"v_pk_fma_f32 {V(x,2)}, {V(cs,2)}, {nm}, {V(x,2)} op_sel:[0,{o},0] op_sel_hi:[1,{o},1]")
              for x, cs in prs:
                if OPT.get("bQ"): e.e(f"v_pk_fma_f32 {V(x,2)}, {V(x,2)}, {aq}, {aq} op_sel:[0,{o},{o}] op_sel_hi:[1,{o},{o}] neg_lo:[0,0,1] neg_hi:[0,0,1]")
                else: e.e(f"v_pk_mul_f32 {V(x,2)}, {V(x,2)}, {aq} op_sel:[0,{o}] op_sel_hi:[1,{o}]")
              for k, (x, cs) in enumerate(prs): e.e(f"v_cvt_pk_bf16_f32 v{d+k}, v{x}, v{x+1}")
          if ds < 2: e.ext(cq(ds + 2))
      PM = 48
      ch = [MF(V(PM + 4 * t, 4), A(KF(0, ds), 4), V(Q(t, ds), 4), "0" if n == 0 else V(PM + 4 * t, 4)) for t in range(4) for n, ds in enumerate(snake(t))]
      run = 0
      for k, x in enumerate(hleft):
          run = run + 1 if x.kind == "trans" else 0
          if ch and x.kind == "trans" and 3 <= run <= 5: e.add(ch.pop(0))
          e.add(x)
      e.ext(ch)
      h_ = Block(); h_.name = "projhead"
      if var == "F": h_.e("L_proj_F:")
      if not OPT.get("wfirst"): h_.wait(vm="DX0"); h_.ext(xreads(0))
      if OPT.get("prelate", 1) == 1: pre_items(h_)
      h_.wait(vm="DW0"); stamp(h_, "a6"); h_.e("s_barrier"); h_.ext(first_reads)
      if OPT.get("prelate", 1) == 2: pre_items(h_)
      if OPT.get("wfirst"): h_.wait(vm="DX0"); h_.ext(xreads(0))
      h_.wait(lgkm=["W0", "X0"]); stamp(h_, "p0")
      e.e("s_cmp_eq_u32 0, 0")
      if var == "F": e.e("s_branch L_proj_join")
      PJ[var] = [h_, proj, e]
    stamp(c, "a5")
    for _ in range(OPT.get("pad1", 0)): c.e("s_nop 0")
    c.e("s_bitcmp1_b32 s2, 0\ns_cbranch_scc0 " + ("L_proj_join" if OPT.get("warm", 1) else "L_proj_F"))
    e = Block(); e.name = "join"; e.e("L_proj_join:\ns_cbranch_scc0 L_proj_F")
    e.e(f"s_cmp_lg_u32 s{sFB}, 0\ns_cbranch_scc1 L_truemax")
    e2 = Block(); e2.name = "premax"
    def rowmax_finish(blk, src, dl=0):
        for sw in ("32", "16"):
            for t in range(4): blk.e(f"v_mov_b32 v{vT+t}, v{src(t)}")
            for t in range(4): blk.e(f"v_permlane{sw}_swap_b32 v{vT+t}, v{src(t)}")
            for t in range(4): blk.e(f"v_max_f32 v{src(t) if sw == '32' else vT+t}, v{src(t)}, v{vT+t}")
        for t in range(4):
            for r in range(4): blk.e(f"v_sub_f32 v{vNM+4*t+r}, {f32(-dl) if dl else 0}, v{vT+t}")
    for t in range(4):
        s0 = PM + 4 * t
        e2.e(f"v_max3_f32 v{s0}, v{s0}, v{s0+1}, v{s0+2}\nv_max_f32 v{s0}, v{s0}, v{s0+3}")
    rowmax_finish(e2, lambda t: PM + 4 * t, OPT.get('dl', 0))
    if OPT.get("nmc") is not None:
        e2.ins = e2.ins[:-16] + II("\n".join(f"v_mov_b32 v{vNM+r}, {f32(OPT['nmc'])}" for r in range(16)))
    a_, b_2, c_2, d_, e_2, f_ = sBs[0], sBs[1], sBs[2], sBs[3], sHp[2], sHp[3]
    li = II(f"""s_lshl_b32 s{c_2}, s{sQb}, 13
s_add_u32 s{c_2}, s{c_2}, 32768
s_sub_u32 s{c_2}, s{c_2}, s{sW8k}
s_lshr_b32 s{a_}, s2, 3
s_mul_i32 s{b_2}, s{a_}, {14*1024}
s_lshl_b32 s{a_}, s{a_}, 15
s_lshl_b32 s3, s{sSp}, 20
s_add_u32 s{a_}, s{a_}, s3
s_mul_i32 s3, s{sSp}, {448*1024}
s_add_u32 s{b_2}, s{b_2}, s3
s_lshl_b32 s{d_}, s{sQb}, 5
s_add_u32 s{d_}, s{d_}, s{sHead}
s_lshl_b32 s{d_}, s{d_}, 7
s_add_u32 s{d_}, s{d_}, {WS_FH}
s_lshr_b32 s{e_2}, s{sTr}, 1
s_lshl_b32 s{e_2}, s{e_2}, 2
s_add_u32 s{e_2}, s{e_2}, s{sSp}
s_lshl_b32 s{e_2}, s{e_2}, 10
s_add_u32 s{e_2}, s{e_2}, {WS_FH}
s_mul_i32 s{f_}, s{sTc}, 3584
v_and_b32 v28, 15, v0
v_lshrrev_b32 v29, 6, v0
v_lshl_add_u32 v28, v29, 4, v28
v_bfe_u32 v29, v0, 4, 2
v_lshlrev_b32 v29, 29, v29
v_lshl_add_u32 v29, v28, 7, v29
v_add_u32 v28, s{c_2}, v29
""" + (f"s_sub_u32 s{sT}, s{sKo}, 32768\nbuffer_load_dword a252, v28, {SR(sK)}, s{sT} offen\n" if OPT.get("l0t", 0) & 1 else "") + (f"buffer_load_dword a252, v28, {SR(sV)}, s{sW8k} offen\n" if OPT.get("l0t", 0) & 2 else "") + f"""buffer_load_dword a252, v28, {SR(sV)}, s{sVo} offen
v_bfe_u32 v30, v0, 4, 1
v_mul_u32_u24 v30, 0xffff, v30
v_lshlrev_b32 v30, 13, v30
v_sub_u32 v30, v29, v30
v_add_u32 v30, s{a_}, v30
v_add_u32 v29, s{b_2}, v29
v_lshl_add_u32 v21, v0, 18, s{d_}
v_mov_b32 v22, 1
v_and_b32 v23, 7, v0
v_lshl_add_u32 v23, v23, 7, s{e_2}
v_and_b32 v24, 8, v0
v_cmp_eq_u32 vcc, 0, v24
v_and_b32 v24, 3, v0
v_lshlrev_b32 v24, 10, v24
v_xor_b32 v24, s{d_}, v24
v_cndmask_b32 v23, v24, v23, vcc
v_cndmask_b32 v31, 7, v22, vcc
v_and_b32 v27, 31, v0
v_min_u32 v27, 27, v27
v_lshl_add_u32 v27, v27, 7, s{f_}
v_bfe_u32 v26, v0, 5, 1
v_mul_u32_u24 v26, {BSTRIDE}, v26
v_add_u32 v27, v27, v26
v_accvgpr_read_b32 v24, a254
v_accvgpr_read_b32 v25, a255
s_mov_b32 s{sCnt}, 7
s_mov_b32 s{sTW}, 0
s_mov_b32 s{sT2W}, 0""")
    first, even, odd, last = gen_attention(li)
    l0 = Block(); l0.e("L_att_start:")
    if OPT.get("bO"):
        hx = int(f32(1.5 * 2.0 ** (OPT["bO"] - 4)), 16) >> 16
        for r in range(4): l0.e(f"v_mov_b32 v{252+r}, {hex(hx * 0x10001)}")
    stamp(l0, "att0")
    l1 = Block(); stamp(l1, "loop")
    l1b = Block(); l1b.e(".p2align 6\n" + "s_nop 0\n" * OPT.get("pad3", 0) + "L_att_loop:")
    l4 = Block(); l4.e("L_att_last:"); stamp(l4, "last")
    for _ in range(OPT.get("pad2", 0)): l4.e("s_nop 0")
    if OPT.get("loopstamp"):
        l1b.e(f"s_memtime s[96:97]\ns_mov_b32 m0, s{sCnt}\ns_waitcnt lgkmcnt(0)\nv_writelane_b32 v31, s96, m0")
        for i in range(8): l4.e(f"v_readlane_b32 s{74+2*i}, v31, {7-i}\nv_readlane_b32 s{75+2*i}, v31, {7-i}")
    f = Block(); f.name = "check"
    stamp(f, "attend")
    vRL = vNM
    for _ in range(min(OPT.get("osf", 2), len(OSTORES))): emit_grp(f, OSTORES.pop(0))
    f.add(last.tailchk)
    f.e(f"s_mov_b32 s{sT}, {f32(2.0**OPT.get('lmax', 100))}")
    f.e(f"v_max3_f32 v{vT}, v{vRL+4}, v{vRL+5}, v{vRL+6}\nv_max_f32 v{vT}, v{vT}, v{vRL+7}\nv_accvgpr_read_b32 v{vT+1}, a{aCHK}")
    f.e(f"v_add_f32 v{vT}, v{vT}, v{vT+1}\nv_cmp_nlt_f32 vcc, v{vT}, s{sT}")
    f.e(f"s_cmp_lg_u64 vcc, 0\ns_cselect_b32 s{sT}, 1, 0")
    f.e(f"v_mov_b32 v{vT}, s{sT}\nv_and_b32 v{vT+1}, 3, v0\nv_lshlrev_b32 v{vT+1}, 12, v{vT+1}\ns_add_u32 s{sT}, s{sWave}, {7*4096}\ns_lshl_b32 s{sT}, s{sT}, 2\nv_add_u32 v{vT+1}, s{sT}, v{vT+1}")
    f.e(f"ds_write_b32 v{vT+1}, v{vT}", tag="VW"); f.e(f"s_add_u32 s{sT}, s{sM}, {7*16384}\nv_mov_b32 v{vT+1}, s{sT}")
    if OSTORES: emit_grp(f, OSTORES.pop(0))
    f.e(f"s_lshl_b32 s{sT}, s{sWave}, 6\ns_or_b32 s{sT}, s{sT}, {L_V}\ns_and_b32 s{sT2}, s{sTr}, 1\ns_lshl_b32 s{sT2}, s{sT2}, 12")
    for v in range(2): f.e(f"v_xor_b32 v{vRAs+v}, s{sT}, v{vVA+v}")
    for st in (1, 2):
        for v in range(2): f.e(f"v_add_u32 v{vRAs+2*st+v}, {st*65536}, v{vRAs+v}")
    for st in range(3):
        for v in range(2): f.e(f"v_xor_b32 v{vRAg+4*st+v}, s{sT2}, v{vRAs+2*st+v}\nv_xor_b32 v{vRAg+4*st+2+v}, 0x1000, v{vRAg+4*st+v}")
        f.e(f"v_add_u32 v{vRB[st]}, {st*65536}, v{vL16}")
    while OSTORES: emit_grp(f, OSTORES.pop(0))
    fpos = len(f.ins)
    f.wait(lgkm="VW", vm=[f"U{u}" for u in RD[-1]] + (["OS"] if OPT["flagstage"] < 0 else [])); f.e("s_barrier")
    f.e(f"ds_read_b128 v[2:5], v{vT+1}", tag="FL")
    for u in RD[-1]: f.ext(ureads(u))
    f.wait(lgkm="FL")
    f.e(f"v_or_b32 v2, v2, v3\nv_or3_b32 v2, v2, v4, v5\nv_readfirstlane_b32 s{sT}, v2")
    f.e(f"s_andn2_b32 s{sT}, s{sT}, s{sFB}\ns_cmp_lg_u32 s{sT}, 0\n" + ("" if OPT.get("nofb") else "s_cbranch_scc1 L_fallback"))
    k = Block(); k.name = "tail"
    stamp(k, "tail0")
    su = II(f"""s_and_b32 s{sT}, s{sHead}, 7
s_mul_i32 s{sT}, s{sT}, 124
s_sub_u32 s{sT}, {WS_FO-WS_FH}, s{sT}
v_add_u32 v26, s{sT}, v21
v_mov_b32 v25, 1
v_and_b32 v{vPA}, 7, v0
s_lshr_b32 s{sT}, s{sTr}, 1
s_lshl_b32 s{sT}, s{sT}, 2
s_add_u32 s{sT}, s{sT}, s{sSp}
s_lshl_b32 s{sT}, s{sT}, 10
s_add_u32 s{sT}, s{sT}, {WS_FO}
v_lshl_add_u32 v{vPA}, v{vPA}, 2, s{sT}
s_add_u32 s100, s{sWS}, s{sT}
s_addc_u32 s101, s{sWS+1}, 0
v_and_b32 v27, 3, v0
v_lshlrev_b32 v27, 4, v27
v_bfe_u32 v24, v0, 2, 4
v_lshl_add_u32 v27, v24, 10, v27""")
    nU = 10
    if OPT["flagstage"] < 0:
        su = [Ins(x.text.replace("v25", "v22").replace("v24", "v28")) for x in su]
        f.ins[fpos:fpos] = su; su = []
        k.e(f"buffer_store_dword v22, v26, {SR(sWS)}, 0 offen sc1")
    for n in range(10):
        if n not in EARLY: emit_grp(k, udma(n))
    k.ext(su)
    k.wait(lgkm="R")
    ldf = f"buffer_load_dword v{vPoll}, v{vPA}, {SR(sWS)}, 0 offen sc1"
    allset = f"v_cmp_eq_u32 vcc, 0, v{vPoll}\ns_nop 0\ns_cmp_eq_u64 vcc, 0"
    polled = False
    def take(n):
        nonlocal nU
        if n > 21: return []
        limit = min(RD[max(m for m in range(n + 1) if m - 7 not in OPT.get("nobs", ()))][0] + 10, len(UNITS))
        r = []
        while nU < limit:
            kd, a_ = UNITS[nU]
            if kd == "Bs" and not (polled and (a_ < 4 or n - 7 >= OPT["bsat"][a_])): break
            r.append(udma(nU)); nU += 1
        return r
    def pack(src, dst): return II("\n".join(f"v_cvt_pk_bf16_f32 v{dst+r}, v{src+2*r}, v{src+2*r+1}" for r in range(8)) + "\n" + "\n".join(f"v_min_u32 v{dst+r}, -2, v{dst+r}" for r in range(8)))
    def xst(which, lam, reg):
        return (II(f"s_xor_b32 s{sCnt}, s{sXR}, {lam*65536 + (which*4+lam)*8192}"),
                [Ins(f"buffer_store_dwordx4 {V(reg+4*m,4)}, v{vL16}, {SR(sXP)}, s{sCnt} offen offset:{m*1024} sc1") for m in range(2)], [])
    def xld(which, lam, tag, so=sCnt):
        if OPT.get("xdummy") == 2: return (II(f"s_mov_b32 s{so}, 0x40000000"), [Ins(f"buffer_load_dwordx4 {V(IN(which,lam)+4*m,4)}, v{vL16}, {SR(sXP)}, s{so} offen offset:{m*1024} sc1", tag=tag) for m in range(2)], [])
        if OPT.get("xdummy") == 1: return (II(f"s_add_u32 s{so}, s{sBo}, {(which*4+lam-1)*2048 % 4096 + ((which*4+lam-1)//2)*BSTRIDE}"), [Ins(f"buffer_load_dwordx4 {V(IN(which,lam)+4*m,4)}, v{vL16}, {SR(sB)}, s{so} offen offset:{m*1024} sc1", tag=tag) for m in range(2)], [])
        return (II(f"s_add_u32 s{so}, s{sXR}, {(which*4+lam)*8192}"),
                [Ins(f"buffer_load_dwordx4 {V(IN(which,lam)+4*m,4)}, v{vL16}, {SR(sXP)}, s{so} offen offset:{m*1024} sc1", tag=tag) for m in range(2)], [])
    IN = lambda which, lam: ACG(2 * lam, 0) + (0 if which else 8)
    def arrived(name, parts):
        regs = [IN(w_, l_) + r for w_, l_ in parts for r in range(8)]
        t = f"v_max3_u32 v28, v{regs[0]}, v{regs[1]}, v{regs[2]}\nv_max3_u32 v29, v{regs[3]}, v{regs[4]}, v{regs[5]}\n"
        for m in range(6, len(regs), 2): t += f"v_max3_u32 v{28+(m>>1)%2}, v{28+(m>>1)%2}, v{regs[m]}, v{regs[m+1]}\n"
        t += "v_max_u32 v28, v28, v29\nv_cmp_eq_u32 vcc, -1, v28\ns_nop 0\ns_cmp_eq_u64 vcc, 0"
        ld = "\n".join(x.text for w_, l_ in parts for g in [xld(w_, l_, None, sT)] for x in g[0] + g[1])
        r = poll_check(name, 0, ld, t)
        return r[:-5], r[-5:]
    G0, S0 = ACG(0, 0), ACS(2, 0)
    def unp(src, dst): return II("\n".join(f"v_lshlrev_b32 v{dst(2*r)}, 16, v{src+r}\nv_and_b32 v{dst(2*r+1)}, 0xffff0000, v{src+r}" for r in range(8)))
    gm = []
    for lam in (1, 2, 3):
        for h_ in range(2):
            for r in range(4): gm += II(f"v_lshlrev_b32 v{2+2*r}, 16, v{IN(1,lam)+4*h_+r}\nv_and_b32 v{3+2*r}, 0xffff0000, v{IN(1,lam)+4*h_+r}")
            for r in range(8): gm += II(f"v_add_f32 v{G0+8*h_+r}, v{G0+8*h_+r}, v{2+r}")
    nsum = len(gm)
    for h_ in range(2):
        g_ = lambda r: G0 + 8 * h_ + r
        for r in range(8): gm += II(f"v_mul_f32 v{2+r}, {f32(-LOG2E)}, v{g_(r)}")
        for r in range(8): gm += II(f"v_exp_f32 v{2+r}, v{2+r}") + (II(f"v_add_f32 v{r}, 1.0, v{r}") if r >= 2 else [])
        for r in range(8): gm += II(f"v_rcp_f32 v{2+r}, v{2+r}") + II(f"v_add_f32 v{8+r}, 1.0, v{8+r}" if r < 2 else f"v_mul_f32 v{g_(r-2)}, v{g_(r-2)}, v{r}")
        for r in (6, 7): gm += II(f"v_mul_f32 v{g_(r)}, v{g_(r)}, v{2+r}")
    nrest = len(gm) - nsum
    ta = II(f"""v_and_b32 v10, 15, v0
v_bfe_u32 v11, v0, 4, 2
v_and_b32 v18, 7, v0
v_xor_b32 v11, v11, v18
v_lshlrev_b32 v10, 7, v10
v_lshl_add_u32 v10, v11, 4, v10
v_add_u32 v10, s{sM}, v10
v_xor_b32 v11, 64, v10
v_and_b32 v18, 3, v0
v_lshlrev_b32 v18, 1, v18
v_bfe_u32 v19, v0, 2, 3
v_xor_b32 v18, v18, v19
v_bfe_u32 v19, v0, 2, 4
v_lshlrev_b32 v19, 7, v19
v_lshl_add_u32 v18, v18, 4, v19
v_add_u32 v18, s{sM}, v18
v_xor_b32 v19, 16, v18""")
    XR = IN(1, 1)
    at = lambda tl, y: max(q for q, gp in enumerate(tl.g) if any(x is y for x in gp.vec))
    for n in range(23):
        i = n - 7
        stamp(k, f"g{n}" if n < 7 else f"s{i}")
        tl = TL()
        if n < 7:
            for c_, j in enumerate((2, 3, 4, 5, 6, 7, 0, 1) if n == 6 else range(8)):
                for v in ((0, 1) if c_ % 2 == 0 else (1, 0)):
                    d = V(ACG(j, v), 4)
                    for m, ks in enumerate((0, 1) if v == (c_ & 1) else (1, 0)):
                        tl.add(MF(d, R(*AG(n, v, ks), 4), V(BF(n, j * 2 + ks), 4), OPT.get("bg", "0") if (n == 0 and m == 0) else d))
        else:
            for e_ in range(2):
                for v in ((0, 1) if e_ == 0 else (1, 0)):
                    d = V(ACS(2 * ((i >> 2) & 1) + e_, v), 4)
                    for m, ks in enumerate(range(8) if v == e_ else range(7, -1, -1)):
                        tl.add(MF(d, A(AS(v, (i & 3) * 8 + ks), 4), V(BF(n, e_ * 8 + ks), 4), OPT.get("bs", "0") if (i in (0, 4, 8) and m == 0) else d))
        bar = bool(RD[n]) and i not in OPT.get("nobs", ())
        need = []
        if bar:
            m = n
            while True:
                need += RD[m]; m += 1
                if m > 21 or m - 7 not in OPT.get("nobs", ()): break
        grp = []; vm = [f"U{u}" for u in need]
        assert all(u < nU for u in need), n
        if n == OPT["flagstage"]: vm.append("OS"); grp.append(([], II(f"buffer_store_dword v25, v26, {SR(sWS)}, 0 offen sc1"), []))
        ck = None
        if i == OPT["gck"]: vm.append("IG"); ck = arrived("g", [(1, 1), (1, 2), (1, 3)])
        if i == 11: vm.append("I1"); ck = arrived("s1", [(0, 1)])
        f2 = OPT.get("fin2")
        if i == 15 and not f2: vm.append("I2"); ck = arrived("s2", [(0, 2)])
        if vm: tl.scal_at(0, W(vm=vm))
        span = n == OPT["pollstage"] and OPT["polld"] == 2
        if bar: tl.scal_at(1, Ins("s_barrier"))
        if RD[n]: tl.scal_at(31, W(lgkm="R") if not span else Ins("s_waitcnt lgkmcnt(2)"))
        lo = 3
        if n == OPT["pollstage"]: tl.scal_at(OPT.get("pollgap", 2), Ins(f"s_load_dwordx8 s[{sK}:{sK+7}], s[100:101], 0 glc", tag="R"))
        if n == OPT["pollstage"] + OPT["polld"]:
            pc = poll_check("o", vPoll, ldf, allset)
            g = tl.g[2]; g.load += 2; polled = True; lo = 5
            g.vec += II(f"s_and_b64 s[{sK}:{sK+1}], s[{sK}:{sK+1}], s[{sK+2}:{sK+3}]\ns_and_b64 s[{sK+4}:{sK+5}], s[{sK+4}:{sK+5}], s[{sK+6}:{sK+7}]\ns_and_b64 s[{sK}:{sK+1}], s[{sK}:{sK+1}], s[{sK+4}:{sK+5}]\ns_and_b32 s{sK}, s{sK}, s{sK+1}") + pc[-2:]
        pk = []
        pw = OPT.get("pw2", 1)
        if n == 6: pk = [(11, 21, pack(ACG(2, 0), ACG(2, 0)))] if not pw else [(11, 31, pack(ACG(2, 0), ACG(2, 0)) + pack(ACG(4, 0), ACG(4, 0))[:8])]
        gst = OPT.get("gst", 0)
        if i == 0 and gst == 0: pk = [(0, 14, pack(ACG(4, 0), ACG(4, 0))), (8, 24, pack(ACG(6, 0), ACG(6, 0)))] if not pw else [(0, 25, pack(ACG(4, 0), ACG(4, 0))[8:] + pack(ACG(6, 0), ACG(6, 0)))]
        if i == 0 and gst > 0: pk = [(0, 31, pack(ACG(4, 0), ACG(4, 0))[8 if pw else 0:] + pack(ACG(6, 0), ACG(6, 0)))]
        if i in (4, 8, 12): pk = [(4 if not pw else 2, (OPT.get("s3lo", 16) - 2) if (i == 12 or not pw) else 24, pack(ACS(2 * ((i // 4 + 1) & 1), 0), IN(0, i // 4)))]
        grp += take(n)
        if i == OPT["gld"]: grp += [xld(1, lam, "IG") for lam in (1, 2, 3)]
        if i == 8: grp.append(xld(0, 1, "I1"))
        g1 = OPT.get("g1early", 0)
        if i == gst: grp += [xst(1, lam, IN(1, lam)) for lam in (1, 2, 3) if lam > g1]
        if n == 6 and g1: late_ = [xst(1, lam, IN(1, lam)) for lam in range(1, g1 + 1)]
        else: late_ = []
        if i in (4, 8, 12): grp.append(xst(0, i // 4, IN(0, i // 4)))
        if i == 12:
            lo = OPT.get("s3lo", 16)
            grp += [([], II(f"buffer_load_dwordx4 {V(XR,4)}, v27, {SR(sX)}, s{sOo} offen\nbuffer_load_dwordx4 {V(XR+4,4)}, v27, {SR(sX)}, s{sXW} offen"), []), xld(0, 2, "I2")]
            assert not any({f"v{XR+r}" for r in range(8)} & y.reads for y in gm)
        if i == OPT.get("i3st", 15): lo = OPT["i3gap"]; grp.append(xld(0, 3, "I3"))
        if i == 0 and gst == 0 and g1 and len(grp) == 3 - g1: lo = 17
        spill = []
        while sum(len(g[1]) + len(g[0]) // 2 for g in grp) > 22: spill.insert(0, grp.pop())
        nv = sum(len(g[1]) for g in grp)
        if grp and n < 7 and OPT.get("gfront"):
            q = lo - 1
            for g in grp:
                gp = tl.g[q]; gp.vec += g[0] + g[1]; gp.load += 6; q += OPT["gfront"]
            for g in spill: tl.g[q].vec += g[0] + g[1]; tl.g[q].load += 6; q += OPT["gfront"]
            spill = []
        elif grp: tl.spread(lo, min(29, lo + 4 * nv - 4) if i > 0 else (29 if not late_ else 18), grp)
        if late_: tl.spread(24, 29, late_); grp += late_
        rd = [x for u in RD[n] for x in ureads(u)]
        if span: rd += II(f"ds_read_b32 v28, v{vL16}\nds_read_b32 v28, v{vL16}")
        if len(rd) > 26: tl.vec_in(2, OPT.get("grh", 25), rd)
        elif rd:
            rh = OPT.get("rh", 20)
            while rh < 27 and sum(tl.g[q].load == 0 for q in range(2, rh + 1)) < len(rd): rh += 1
            free = [q for q in range(2, rh + 1) if tl.g[q].load == 0]
            drop = len(free) - len(rd)
            if drop < 0: tl.vec_in(2, 27, rd)
            else:
                for m in range(drop): free[(2 * m + 1) * len(free) // (2 * drop)] = None
                for x, q in zip(rd, [q for q in free if q is not None]): tl.vec_at(q, x)
        for lo_, hi_, its in pk:
            room = sum(max(0, 2 - tl.g[q].load) for q in range(lo_, hi_ + 1))
            left = tl.stream(lo_, hi_, its, cap=2 if room >= len(its) else 3); assert not left, (n, len(left))
            for y in its:
                for q, gp in enumerate(tl.g): assert not (gp.m.writes & y.reads) or at(tl, y) >= q, n
                for g in grp:
                    for x in g[1]: assert not (y.writes & x.reads) or at(tl, x) > at(tl, y), n
        q0 = 0
        if ck:
            left = tl.stream(0, 29, ck[0]); assert not left
            q0 = at(tl, ck[0][-1]) + 1; tl.g[q0].vec += ck[1]; tl.g[q0].load += 2; q0 += 1
        if i == 5: left = tl.stream(0, 31, ta); assert not left
        if i == 11: left = tl.stream(q0, 29, unp(IN(0, 1), lambda r: S0 + r)); assert not left
        if f2 and i == 14:
            TT = lambda r: IN(1, 2) + r if r < 8 else IN(1, 3) + r - 8
            assert not gm or not any({f"v{TT(r)}" for r in range(16)} & y.reads for y in gm)
            gm = tl.sched(0, f2[0] - 2, gm); assert not gm
            c2 = arrived("s2", [(0, 2)])
            left = tl.stream(f2[0] - 1, 28, [W(vm="I2")] + c2[0]); assert not left
            q2 = at(tl, c2[0][-1]) + 1; tl.g[q2].vec += c2[1]; tl.g[q2].load += 2
            l14 = tl.stream(q2 + 1, 31, unp(IN(0, 2), TT))
        if f2 and i == 15:
            xu = unp(XR, lambda r: 128 + r)
            left = tl.stream(0, f2[1] - 1, l14 + xu[:8]); assert len(left) <= 8
            c3 = arrived("s3", [(0, 3)])
            l_ = tl.stream(f2[1] - 1, 28, [W(vm="I3")] + c3[0]); assert not l_
            q3 = at(tl, c3[0][-1]) + 1; tl.g[q3].vec += c3[1]; tl.g[q3].load += 2
            u3 = unp(IN(0, 3), lambda r: 160 + r)
            def half(e_): return u3[8*e_:8*e_+8] + II("\n".join(f"v_add_f32 v{TT(r)}, v{TT(r)}, v{160+r}" for r in range(8*e_, 8*e_+8)))
            fin0 = II("\n".join(f"v_add_f32 v{S0+r}, v{S0+r}, v{TT(r)}" for r in range(8)) + "\n" + "\n".join(f"v_mul_f32 v{S0+r}, v{S0+r}, v{G0+r}" for r in range(8)))
            fin0 += II("\n".join(f"ds_write_b128 v{10+v}, {V(S0+v*4,4)}" for v in range(2))) + II("\n".join(f"ds_read_b128 {V(144+m*4,4)}, v{18+m}" for m in range(2)), tag="T0")
            l_ = tl.stream(q3 + 1, 19, half(0) + left + half(1))
            finl = tl.stream(20, 31, l_[:max(0, len(l_) - 16)] + fin0 + l_[max(0, len(l_) - 16):])
            print("final: left over", len(finl), file=sys.stderr)
        if i == 15 and not OPT.get("fin") and not f2: left = tl.stream(q0, 31, unp(IN(0, 2), lambda r: 144 + r) + unp(XR, lambda r: 128 + r)); assert not left
        if i == 15 and OPT.get("fin"):
            left = tl.stream(q0, OPT["fin"] - 1, unp(IN(0, 2), lambda r: 144 + r)); assert not left
            c3 = arrived("s3", [(0, 3)])
            left = tl.stream(OPT["fin"] - 1, 28, [W(vm="I3")] + c3[0]); assert not left
            q3 = at(tl, c3[0][-1]) + 1; tl.g[q3].vec += c3[1]; tl.g[q3].load += 2
            finl = tl.stream(q3 + 1, 31, unp(IN(0, 3), lambda r: 160 + r) + unp(XR, lambda r: 128 + r))
        if i >= OPT["gck"] and gm: gm = (tl.sched if OPT.get("gsched", 1) else tl.stream)(q0 if i == OPT["gck"] else 0, 31, gm)
        k.ext(tl.emit(0, 32, "x").ins)
        for g in spill: emit_grp(k, g)
    assert nU == len(UNITS)
    stamp(k, "send")
    print("g math left over", len(gm), file=sys.stderr)
    k.ext(gm)
    def padd(acc, tmp):
        for r in range(0, 16, 2): k.e(f"v_pk_add_f32 {V(acc+r,2)}, {V(acc+r,2)}, {V(tmp+r,2)}")
    if OPT.get("fin2"):
        k.ext(finl)
        for r in range(8, 16, 2): k.e(f"v_pk_add_f32 {V(S0+r,2)}, {V(S0+r,2)}, {V(TT(r),2)}")
        for r in range(8, 16, 2): k.e(f"v_pk_mul_f32 {V(S0+r,2)}, {V(S0+r,2)}, {V(G0+r,2)}")
        for v in range(2): k.e(f"ds_write_b128 v{10+v}, {V(S0+8+v*4,4)} offset:2048")
        for m in range(2): k.e(f"ds_read_b128 {V(152+m*4,4)}, v{18+m} offset:2048", tag="T1")
        for e_ in range(2):
            if e_: k.ext(xu[8:])
            k.wait(lgkm=f"T{e_}")
            for r in range(0, 8, 2): k.e(f"v_pk_add_f32 {V(128+8*e_+r,2)}, {V(128+8*e_+r,2)}, {V(144+8*e_+r,2)}")
            for r in range(4): k.e(f"v_cvt_pk_bf16_f32 v{176+4*e_+r}, v{128+8*e_+2*r}, v{129+8*e_+2*r}")
            k.e(f"buffer_store_dwordx4 {V(176+4*e_,4)}, v27, {SR(sOut)}, s{sXW if e_ else sOo} offen")
    else:
        if not OPT.get("fin"):
            k.wait(vm="I3")
            ck = arrived("s3", [(0, 3)]); k.ext(ck[0] + ck[1])
            stamp(k, "spolled")
            k.ext(unp(IN(0, 3), lambda r: 160 + r)); finx = []
        else:
            finx = [x for x in finl if int(list(x.writes)[0][1:]) < 144]; k.ext([x for x in finl if x not in finx])
        padd(144, 160); padd(S0, 144)
        for r in range(0, 16, 2): k.e(f"v_pk_mul_f32 {V(S0+r,2)}, {V(S0+r,2)}, {V(G0+r,2)}")
        for e_ in range(2):
            for v in range(2): k.e(f"ds_write_b128 v{10+v}, {V(S0+(e_*2+v)*4,4)} offset:{e_*2048}")
        for e_ in range(2):
            for m in range(2): k.e(f"ds_read_b128 {V(160+e_*8+m*4,4)}, v{18+m} offset:{e_*2048}", tag=f"T{e_}")
        k.ext(finx)
        for e_ in range(2):
            k.wait(lgkm=f"T{e_}")
            for r in range(0, 8, 2): k.e(f"v_pk_add_f32 {V(128+8*e_+r,2)}, {V(128+8*e_+r,2)}, {V(160+8*e_+r,2)}")
            for r in range(4): k.e(f"v_cvt_pk_bf16_f32 v{176+4*e_+r}, v{128+8*e_+2*r}, v{129+8*e_+2*r}")
            k.e(f"buffer_store_dwordx4 {V(176+4*e_,4)}, v27, {SR(sOut)}, s{sXW if e_ else sOo} offen {OPT.get('outf', '')}")
    z = Block(); z.name = "end"
    if OPT.get("encode") is not None:
        z.e("s_waitcnt vmcnt(0) lgkmcnt(0)"); stamp(z, "end")
        i0, i1 = (STAMPS[x] for x in OPT["encode"])
        fld = 72 if OPT.get("enccyc") else 73
        z.e(f"s_sub_u32 s92, s{fld+2*i1}, s{fld+2*i0}")
        if OPT.get("encx") is not None: z.e(f"s_and_b32 s3, s2, {OPT.get('encm', 7)}\ns_cmp_eq_u32 s3, {OPT['encx']}\ns_cselect_b32 s92, s92, 0")
        z.e("s_lshr_b32 s92, s92, 2" if OPT.get("enccyc") else "s_lshl_b32 s92, s92, 2")
        z.e(f"s_add_u32 s92, s92, 20000\nL_enc:\ns_sleep 1\ns_memrealtime s[98:99]\ns_waitcnt lgkmcnt(0)\ns_sub_u32 s98, s98, s73\ns_cmp_lt_u32 s98, s92\ns_cbranch_scc1 L_enc")
    elif OPT["stamp"]:
        z.e("s_waitcnt vmcnt(0) lgkmcnt(0)"); stamp(z, "end")
        z.e(f"s_load_dwordx2 s[96:97], s[0:1], 88\ns_waitcnt lgkmcnt(0)"); ptr_add(z, 96, 0x8000000 + 0x40000); srd_fin(z, 96, 0x40000)
        for i in range(20): z.e(f"v_mov_b32 v{36+i}, s{72+i}")
        z.e(f"s_lshl_b32 s92, s2, 2\ns_add_u32 s92, s92, s{sWave}\ns_lshl_b32 s92, s92, 7\nv_mov_b32 v2, s92\ns_mov_b64 exec, 1")
        for i in range(5): z.e(f"buffer_store_dwordx4 {V(36+4*i,4)}, v2, s[96:99], 0 offen offset:{16*i}")
    z.e("L_end:\ns_endpgm")
    fb = Block(); fb.name = "fb"
    fb.e(f"L_fallback:\ns_mov_b32 s{sFB}, 1\ns_waitcnt vmcnt(0) lgkmcnt(0)\ns_barrier\ns_branch L_restart")
    m0 = Block(); m0.name = "tm0"
    m0.e(f"L_truemax:\ns_mov_b32 s{sKo}, s{sW8k}\ns_mov_b32 s{sCnt}, 16")
    for t in range(4): m0.e(f"v_mov_b32 v{vNM+4*t}, 0xff800000")
    m0.e("s_waitcnt vmcnt(0) lgkmcnt(0)")
    m1 = Block(); m1.name = "tm1"
    m1.e("L_tm_loop:\ns_barrier")
    emit_grp(m1, dma_K(0, 0, "DK")); emit_grp(m1, dma_K(1, 0, "DK"))
    m1.e("s_waitcnt vmcnt(0)\ns_barrier")
    for g in range(8):
        m1.ext(kreads(g, 0, 0, "K0")); m1.e("s_waitcnt lgkmcnt(0)")
        for t in range(4): m1.ext(qk_chain(t, 0, "0"))
        for t in range(4):
            s0 = vS + 4 * t
            m1.e(f"v_max3_f32 v{vNM+4*t}, v{vNM+4*t}, v{s0}, v{s0+1}\nv_max3_f32 v{vNM+4*t}, v{vNM+4*t}, v{s0+2}, v{s0+3}")
    m1.e(f"s_sub_u32 s{sCnt}, s{sCnt}, 1\ns_cmp_lg_u32 s{sCnt}, 0\ns_cbranch_scc1 L_tm_loop")
    m2 = Block(); m2.name = "tm2"
    rowmax_finish(m2, lambda t: vNM + 4 * t)
    m2.e(f"s_mov_b32 s{sKo}, s{sW8k}\ns_barrier")
    emit_grp(m2, dma_K(0, 0, "DK")); emit_grp(m2, dma_K(1, 0, "DK"))
    m2.e(f"s_add_u32 s{sKo}, s{sKo}, 32768\ns_waitcnt vmcnt(0)\ns_barrier")
    m2.ext(kreads(0, 0, 0, "K0")); m2.e("s_waitcnt lgkmcnt(0)\ns_branch L_att_start")
    att = [l0, first, l1, l1b, even, odd, l1b, even, odd, l4, last, f]
    front = [b2, c] + PJ['F'] + [e]; frontS = [b2, c] + PJ['S'] + [e]
    vb = []
    finalize([[b_] + front + [e2] + att + [k, z], [b_] + frontS + [e2] + att + [fb] + frontS + [m0, m1, m1, m2] + att + [k, z], [b_] + front + [m0, m1]] + [[s] for s in SLOW], vb)
    for fr in (front, frontS): check_groups([x for bb in [b_] + fr + [e2] + att + [k, z] for x in bb.ins])
    for x in vb:
        if x[0].startswith("att") or x[0] in ("projF", "projS"): print("nop:", x, file=sys.stderr)
    cend = Block(); cend.e('L_code_end:')
    layout = [b_, b2, c] + PJ['S'] + [e, e2, l0, first, l1, l1b, even, odd, l4, last, f, k, z] + (SLOW[::-1] if OPT.get('slownear', 1) else []) + PJ['F'] + [cend, fb, m0, m1, m2] + ([] if OPT.get('slownear', 1) else SLOW)
    note = {id(b2): "set-up, first loads", id(c): "set-up under the first loads", id(PJ['S'][0]): "projection, odd ids (48 FFN columns)", id(PJ['F'][0]): "projection, even ids (64 FFN columns)",
            id(PJ['S'][2]): "Q and the rest of h; scores of the first 16 keys", id(PJ['F'][2]): "Q and the rest of h; scores of the first 16 keys", id(e2): "stand-in row maximum",
            id(first): "tile 0: scores and exponentials only", id(even): "tile pair: QK of the next tile beside PV of this one", id(last): "tiles 14 and 15, normalisation and O stores",
            id(f): "check of the stand-in maximum", id(k): "tail: g stages, then the four row strips", id(fb): "stand-in was unsafe: start again", id(m0): "true row maximum over all keys", id(SLOW[-1]): "bounded waits"}
    return kernel_head(KN) + "\n".join((f"; ---- {note[id(x)]}\n" if id(x) in note else "") + x.text() for x in layout) + "\n" + kernel_desc(KN, 512, 256)


DOC = """
;
; Workgroup (q block of 256 rows, head); each wave owns 64 rows.  All products use v_mfma_f32_16x16x32_bf16, transposed (D = [columns x rows]),
;     Row statistics are computed once (8 rows per workgroup) and handed round through d_ws; a counter in d_debug says when.
;     h = silu(gate) * up goes to d_ws in fragment order.  Even ids take 64 FFN columns, odd ids 48 (two variants of the code).
;  2. attention over 16 tiles of 128 keys, K/V staged by LDS-DMA.  exp2(s - m) uses as m the maximum over the row's first 16 keys, less 32
;     (it enters as the C operand), so m never exceeds the true maximum and nothing underflows earlier than with it.  Overflow, the one way this
; Hand-offs: write-through (sc1) stores, then vmcnt + barrier, then a flag in d_ws that this launch cleared before its counter was complete;
; partial tiles are recognised by the absence of an all-ones mark written earlier in the launch.  Every wait loop is bounded.
"""
def build():
    head = open("cdna_kernels/" + NAME + ".s.ref").read().split("; Override launch")[0]
    s = head + "; @launch grid=(256,1,1) block=(256,1,1) lds=163840\n" + '.amdgcn_target "amdgcn-amd-amdhsa--gfx950"\n' + DOC.lstrip("\n")
    plan_units()
    return s + gen_kernel()

if __name__ == "__main__":
    out = sys.argv[1] if len(sys.argv) > 1 else "cdna_kernels/" + NAME + ".s"
    for a in sys.argv[2:]:
        k, v = a.split("="); OPT[k] = eval(v)
    names = OPT.get("stamps", "p0,p4,projend,att0,loop,last,tail0,gend").split(",")
    STAMPS.update({n: i + 1 for i, n in enumerate(names)}); STAMPS["start"] = 0; STAMPS["end"] = 9
    txt = build()
    def nt(pat):
        global txt
        txt = re.sub(pat, lambda m: m.group(0).replace(" lds", "") + " nt" + (" lds" if m.group(0).endswith(" lds") else ""), txt, flags=re.M)
    srs = {"w": r"s\[(8:11|12:15|16:19)\]", "k": r"s\[(20:23|24:27)\]", "t": r"s\[(44:47|48:51)\]", "x": r"s\[4:7\]"}
    for c in OPT.get("ntt", ""): nt(r"^    buffer_load_dword [av]\d+, v\d+, " + srs[c] + r".*offen$")
    for c in OPT.get("ntd", ""): nt(r"^    buffer_load_dwordx4 v\d+, " + srs[c] + r".* lds$")
    if OPT.get("ntsr"): nt(r"^    buffer_load_dwordx4 v\[7[26]:7[59]\], v58, s\[4:7\].*\d$")
    if OPT.get("ntx0"):
        parts = re.split(r"(?m)^(?=; ---- )", txt)
        for i_, p_ in enumerate(parts):
            if p_.startswith("; ---- set-up" + ("," if OPT["ntx0"] == 1 else "")):
                txt = p_; nt(r"^    buffer_load_dwordx4 v\d+, " + srs["x"] + r".* lds$"); parts[i_] = txt
        txt = "".join(parts)
    if OPT.get("ntc"): txt = txt.replace("global_load_dword v107, v[108:109], off", "global_load_dword v107, v[108:109], off nt")
    if OPT.get("ntk0"):
        parts = re.split(r"(?m)^(?=; ---- )", txt)
        for i_, p_ in enumerate(parts):
            if p_.startswith("; ---- projection"):
                txt = p_; nt(r"^    buffer_load_dwordx4 v\d+, " + srs["k"] + r".* lds$"); parts[i_] = txt
        txt = "".join(parts)
    open(out, "w").write(txt)
```

```python
import sys, math, struct, re
sys.path.insert(0, "gen")
from asmgen import *

NAME = "recurrent_scan__mha_block_cached__glu_gated_swiglu__prompt"
KN = NAME + "_kernel"
WS_ST, WS_FH, WS_FO, WS_FG, WS_FS = 0, 0x8000, 0x10000, 0x18000, 0x20000
WS_B, WS_X = 0x200000, 0x2000000
BSTRIDE = 184 * 1024
LOG2E = 1.4426950408889634
OOB = 0x7ffffff0
def f32(x): return "0x%08x" % struct.unpack("<I", struct.pack("<f", x))[0]
OPT = dict(stamp=False, early=7, pollstage=3, polld=1, htrip=2, flagstage=0, osr=1, osg=4, fgstage=5, fsstage=11, lead=5, ramp=0, dl=-32, lmax=120, dd3=1, htouch=0, i3st=14, i3gap=3, s3lo=12, fin2=(20, 10), tq0=0, pa=.1, pb=.75, pc=.4, x2o=.15, x3a=.92, nh=3, nhS=4, stpos=.55, sthi=.5, stposS=.52, sthiS=.51, il0=40, ilp=11, pre="Q0 S",
    sch=[(.1,'W1 r1 G1'),(.75,'x1 W2 Q1'),('o',1,1.45,1.65),(0,'r2 G2'),(1.93,'A W3'),(2.25,'x2 W4 G3 Q2'),('o',2,3.05,3.25),(0,'r3 Q3 C'),(3.7,'x3 W5'),(4.5,'W6'),('o',3,4.6,4.9)], clrpos=(7, 5), asat=(-9, -9, -9, -9, 0, 0, 1, 1, 2, 2, 3, 3, 4, 4, 6, 5), bsat=(0, 0, 0, 0, 0, 2, 2, 3, 4, 6, 6, 7, 8, 10, 10, 11), gld=4, gck=7)

L_K, L_SP, L_V = 0, 65536, 98304
sX, sWQ, sW1, sW3, sK, sV, sB, sH, sWS, sDBG, sWO, sW2, sOut = range(4, 56, 4)
sHead, sQb, sWave, sW8k, sW4k, sXb, sKo, sVo, sCnt, sT, sT2, sWQo, sW13o, sBo, sFB, sW16k = range(56, 72)
sTr, sTc, sSp = 93, 94, 95
sTW, sT2W = 100, 101
sFs, sFv = 92, sOut + 2
vL16, vKA, vVA, vDK, vDV, vIDX, vT = 1, 2, 6, 14, 18, 20, 24
vS, vNM = 32, 48
def Q(t, ds): return 64 + (t * 4 + ds) * 4
def P(pb, kk, t): return 128 + pb * 64 + (t * 4 + kk) * 4
def O(dt, t): return (dt * 4 + t) * 4
def VF(b, kk): return (128 + b * 16 if b < 4 else 148 + b * 16) + kk * 4
aL, aONES = 192, 208
def KF(b, ds): return 212 + b * 16 + ds * 4
aCHK, aZ = 244, 248
vWQA, vW13A, vDQ, vD13, vXA, vDX = 24, 28, 32, 36, 40, 44

def SR(s): return f"s[{s}:{s+3}]"
def MF(d, a, bb, c): return Ins(f"v_mfma_f32_16x16x32_bf16 {d}, {a}, {bb}, {c}")
def II(txt, tag=None): return [Ins(x, tag=tag) for x in txt.split("\n") if x.strip()]
def srd_fin(b, d, nrec):
    b.e(f"s_and_b32 s{d+1}, s{d+1}, 0xffff\ns_mov_b32 s{d+2}, {nrec}\ns_mov_b32 s{d+3}, 0x20000")
def ptr_add(b, d, off): b.e(f"s_add_u32 s{d}, s{d}, {off}\ns_addc_u32 s{d+1}, s{d+1}, 0")

def stamp_ins(i):
    if not OPT["stamp"] or i is None: return []
    return II(f"s_waitcnt lgkmcnt(0)\ns_memtime s[96:97]\ns_memrealtime s[98:99]\ns_waitcnt lgkmcnt(0)\ns_mov_b32 s{72+2*i}, s96\ns_mov_b32 s{73+2*i}, s98")
_jit = [0]
def jitter(b, wave=False):
    if not OPT.get("jit"): return
    _jit[0] += 1; n = _jit[0]
    b.e(f"s_waitcnt lgkmcnt(0)\ns_memtime s[96:97]\ns_waitcnt lgkmcnt(0)\ns_lshr_b32 s96, s96, {4 if wave else 14}\ns_add_u32 s96, s96, s2\ns_mul_i32 s96, s96, 0x9e3779b1\ns_lshr_b32 s96, s96, 16\ns_mul_i32 s96, s96, {OPT['jit'] // (8 if wave else 1)}\ns_lshr_b32 s96, s96, 16\ns_add_u32 s96, s96, 1")
    b.e(f"L_jit{n}:\ns_sleep 1\ns_sub_u32 s96, s96, 1\ns_cmp_lg_u32 s96, 0\ns_cbranch_scc1 L_jit{n}")
STAMPS = {}
def stamp(b, name):
    b.ext(stamp_ins(STAMPS.get(name)))
    if name in ("karg", "projend", "last", "tail0", "s0", "s6", "s13"): jitter(b)
    if name in ("p0", "att0", "loop", "attend", "send") or re.fullmatch(r"[gs]\d+", name): jitter(b, True)

class Gap:
    def __init__(self, m): self.m = m; self.scal = []; self.vec = []; self.load = 0
def cost_of(ins): return 2 if (ins.kind == "trans" or ins.is_vmem) else (0 if ins.kind in ("salu", "wait", "sctl", "label") else 1)
def is_ds(x): return x.kind in ("dsread", "dswrite")
def dep(a, b): return bool(a.writes & (b.reads | b.writes)) or bool(a.reads & b.writes)
class TL:
    def __init__(self): self.g = []; self.ddpen = 1; self.vmpen = OPT.get("vmpen", .5)
    def add(self, m):
        gp = Gap(m); self.g.append(gp)
        if m.op.startswith("v_smfmac"): gp.load = 1
        if "32x32" in m.op: gp.load = -4
        return len(self.g) - 1
    def pen(self, i, ins):
        gp = self.g[i]; l = gp.load + cost_of(ins)
        if is_ds(ins) and any(x.is_vmem for x in gp.vec): l += self.vmpen
        if is_ds(ins):
            if any(is_ds(x) for x in gp.vec): l += self.ddpen
            if any(x.is_valu and dep(x, ins) for x in gp.vec): l += 2
        return l
    def vec_at(self, i, ins):
        gp = self.g[i]; k = len(gp.vec)
        if is_ds(ins) or ins.is_vmem:
            while k > 0 and gp.vec[k - 1].is_valu and not dep(gp.vec[k - 1], ins): k -= 1
        gp.vec.insert(k, ins); gp.load += cost_of(ins)
    def vec_in(self, lo, hi, items):
        extra = {i: 0 for i in range(lo, hi + 1)}
        cand = []
        for it in items:
            i = min(extra, key=lambda k: (max(self.pen(k, it) + extra[k], 2), self.pen(k, it) + extra[k] if not OPT.get("pack") else 0, k)); cand.append(i); extra[i] += 1 + self.ddpen
        cand.sort()
        for i, it in zip(cand, items): self.vec_at(i, it)
        return cand
    def scal_at(self, i, ins, later=True):
        while self.g[i].scal: i += 1 if later else -1
        self.g[i].scal.append(ins); return i
    def spread(self, lo, hi, groups):
        n = sum(len(g[1]) for g in groups); k = 0; prev = lo - 3
        for grp in groups:
            sc, ve, post = grp
            for x in ve: x.grp = grp; x.role = "vec"
            first = True
            for it in ve:
                tgt = lo + (hi - lo) * k // max(n - 1, 1); k += 1
                mn = prev + 1
                if first:
                    i = max(prev + 1, tgt - len(sc) - 1)
                    for x in sc: i = self.scal_at(i, x) + 1
                    mn = max(mn, i); first = False
                cands = [j for j in range(max(mn, tgt - 1), max(mn, tgt - 1) + 4) if j < len(self.g)]
                j = min(cands, key=lambda z: (self.g[z].load, abs(z - tgt)))
                self.vec_at(j, it); prev = j
            for x in post: prev = self.scal_at(prev + 1, x)
        return prev
    def stream(self, lo, hi, items, cap=2):
        i = lo; items = list(items)
        while items and i <= hi:
            it = items[0]; c = cost_of(it)
            if c == 0:
                i += 1
                while i <= hi and self.g[i].scal: i += 1
                if i > hi: break
                self.g[i].scal.append(it); items.pop(0); continue
            if self.pen(i, it) <= cap: self.vec_at(i, it); items.pop(0)
            else: i += 1
        return items
    def sched(self, lo, hi, items, look=70, lat=6):
        items = list(items); rw = {}; pos = {}
        for x in items:
            r, w = set(x.reads), set(x.writes)
            if x.waitfor is not None:
                for y in items:
                    if y.tag is not None and any(y.tag in t for t in x.waitfor.values()): r |= y.writes; w |= y.writes
                r |= getattr(x, "guards", set()); w |= getattr(x, "guards", set())
            if x.is_vmem: r.add("vm"); w.add("vm")
            if x.kind == "salu": r.add("scc"); w.add("scc")
            rw[id(x)] = (r, w)
        dp = lambda a, b: bool(rw[id(a)][1] & (rw[id(b)][0] | rw[id(b)][1])) or bool(rw[id(a)][0] & rw[id(b)][1])
        placed = []
        def ready(k, i):
            x = items[k]
            if any(dp(y, x) for y in items[:k]): return False
            for y in placed[-40:]:
                if not dp(y, x): continue
                d = 0
                if cost_of(x) == 0 or is_ds(x) or x.is_vmem: d = 1 if cost_of(y) > 0 or cost_of(x) == 0 else 0
                if x.waitfor is not None and is_ds(y): d = lat
                if (getattr(x, "dpp", False) or getattr(x, "permlane", False)) and y.is_valu: d = 2
                if i < pos[id(y)] + d: return False
            return True
        for i in range(lo, hi + 1):
            for want in (0, 2, 1, 1, 1, 1, 1, 1):
                for k in range(min(look, len(items))):
                    x = items[k]
                    if cost_of(x) != want: continue
                    if (self.g[i].scal if want == 0 else self.pen(i, x) > 2) or not ready(k, i): continue
                    if want == 0: self.g[i].scal.append(x)
                    else: self.vec_at(i, x)
                    pos[id(x)] = i; placed.append(x); items.pop(k); break
        return items
    def emit(self, lo, hi, name):
        b = Block(); b.name = name
        for gp in self.g[lo:hi]:
            if gp.m is not None: b.add(gp.m)
            b.ext(gp.scal); b.ext(gp.vec)
        return b

SLOW = []
def poll_check(name, vreg, load_txt, ready_cmp):
    inl = II(ready_cmp) + II(f"s_cbranch_scc0 L_spin_{name}\nL_back_{name}:")
    sl = Block(); sl.name = "spin" + name
    sl.e(f"L_spin_{name}:\ns_mov_b32 s3, 0x40000\nL_spin2_{name}:\ns_sleep {OPT.get('slp', 2)}\n{load_txt}\ns_waitcnt vmcnt(0)\ns_sub_u32 s3, s3, 1\ns_cmp_eq_u32 s3, 0\ns_cbranch_scc1 L_back_{name}")
    sl.e(ready_cmp); sl.e(f"s_cbranch_scc0 L_spin2_{name}\ns_branch L_back_{name}")
    SLOW.append(sl)
    return inl

def dma_K(half, buf, tag):
    return (II(f"s_add_u32 m0, s{sW8k}, {L_K + buf*32768 + half*4096}"),
            [Ins(f"buffer_load_dwordx4 v{vDK+p}, {SR(sK)}, s{sKo} offen offset:{p*1024} lds", tag=tag) for p in range(4)],
            II(f"s_add_u32 s{sKo}, s{sKo}, {4096 if half == 0 else 28672}"))
def dma_V(half, buf, tag):
    return (II(f"s_add_u32 m0, s{sW8k}, {L_V + buf*32768 + half*4096}"),
            [Ins(f"buffer_load_dwordx4 v{vDV+(p&1)}, {SR(sV)}, s{sVo} offen offset:{p*1024} lds", tag=tag) for p in range(4)],
            II(f"s_add_u32 s{sVo}, s{sVo}, {4096 if half == 0 else 28672}"))
def emit_grp(b, d): b.ext(d[0]); b.ext(d[1]); b.ext(d[2])
def check_groups(trace):
    last = {}; cnt = {}
    for x in trace:
        g = getattr(x, "grp", None)
        if g is not None and x.role == "vec":
            for r in x.reads:
                ws_ = [sc for sc in g[0] if r in sc.writes]
                if ws_: assert last.get(r) is ws_[-1], ("group scalar clobbered", x.text, last.get(r))
            for sc in g[2]:
                for r in sc.writes & x.reads:
                    key = (id(g), r)
                    if x is g[1][0]: cnt[key] = last.get(r)
                    assert last.get(r) is cnt[key] and (len(g[1]) == 1 or last.get(r) is not sc), ("post scalar order", x.text)
        for r in x.writes:
            if r[0] == "s" or r == "m0": last[r] = x
def kreads(g, buf, fb, tag):
    return [Ins(f"ds_read_b128 {A(KF(fb,ds),4)}, v{vKA+ds} offset:{buf*32768+g*4096}", tag=tag) for ds in range(4)]
def vreads(dt, buf, fb, tag):
    return [Ins(f"ds_read_b64_tr_b16 {A(VF(fb,kk)+2*kh,2)}, v{vVA+dt} offset:{buf*32768+(32*kk+16*kh)*256}", tag=tag) for kk in range(4) for kh in range(2)]
def snake(t): return range(4) if (t % 2 == 0 or OPT.get("nosnake")) else range(3, -1, -1)
def qk_chain(t, fb, c0):
    d = V(vS + 4 * t, 4)
    return [MF(d, A(KF(fb, ds), 4), V(Q(t, ds), 4), c0 if n == 0 else d) for n, ds in enumerate(snake(t))]
def pv_chain(dt, t, fb, pb):
    d = A(O(dt, t), 4)
    return [MF(d, A(VF(fb, kk), 4), V(P(pb, kk, t), 4), d) for kk in snake(t)]
def rs(t, kp, pb): return Ins(f"v_smfmac_f32_16x16x64_bf16 {A(aL+4*t,4)}, {A(aONES,4)}, {V(P(pb,2*kp,t),8)}, v{vIDX}")

vDA, vB1, vPoll, vPA = 14, 30, 29, 23
vRAs, vRB, vRAg = 6, (12, 13, 20), 48
sM, sAo, sWOo, sW2o = sW4k, sT2, sWQo, sW13o
sBg, sQ0, sBt = sXb, sW1 + 3, sKo
sBs = [sDBG, sDBG + 1, sDBG + 2, sDBG + 3]
sXP = sH
sXW, sXR, sOo, sFl2 = sW16k, 92, sQ0, 99
sGk = list(range(sWQ, sWQ + 7))
sHp = list(range(sW3, sW3 + 4))
UNITS = []; USEQ = {}; RD = {}
def plan_units():
    for n in range(-1, 22):
        r = [("Ag", n + 1), ("Bg", n + 1)] if n < 6 else [("Bs", n - 6)]
        r = [("As", a) for a in range(16) if OPT["asat"][a] == n] + r if n == 6 else r + [("As", a) for a in range(16) if OPT["asat"][a] == n]
        RD[n] = list(range(len(UNITS), len(UNITS) + len(r))); UNITS.extend(r)
    RD[22] = []
    USEQ.update({u: n for n, u in enumerate(UNITS)})
    for a in range(16): assert OPT["asat"][a] <= 6 + a // 4
    assert OPT["asat"][14] >= 6 and max(OPT["asat"]) <= 9
def udma(n):
    kind, i = UNITS[n] if isinstance(n, int) else n
    m0 = f"s_add_u32 m0, s{sM}, {uslot((kind, i))*16384}\n"; tag = f"U{n}" if isinstance(n, int) else f"E{i}"
    rot = OPT.get("rot", 1)
    if kind[0] == "A":
        sr, so = (sW2, sW2o) if kind == "Ag" else (sWO, sWOo)
        if kind == "As": ad = f"s_xor_b32 s{sAo}, s{so}, {i*65536}"
        else: ad = f"s_lshl_b32 s{sAo}, s{sGk[i]}, 5\ns_add_u32 s{sAo}, s{sAo}, s{so}"
        return (II(m0 + ad),
                [Ins(f"buffer_load_dwordx4 v{vDA+p}, {SR(sr)}, s{sAo} offen offset:{p*1024} lds", tag=tag) for p in range(4)], [])
    if kind == "Bg":
        return (II(m0 + f"s_add_u32 s{sBt}, s{sBg}, s{sGk[i]}"),
                [Ins(f"buffer_load_dwordx4 v{vL16 if p < 2 else vB1}, {SR(sB)}, s{sBt} offen offset:{p*1024} sc1 lds", tag=tag) for p in range(4)], [])
    bs, hp = sBs[(1, 2, 3, 0)[i >> 2]], sHp[i & 3]
    return (II(m0 + f"s_add_u32 s{sBt}, s{bs}, s{hp}"),
            [Ins(f"buffer_load_dwordx4 v{vL16}, {SR(sB)}, s{sBt} offen offset:{p*1024} sc1 lds", tag=tag) for p in range(4)], [])
XSLOT = {("As", 0): 0, ("As", 1): 1, ("As", 2): 4, ("As", 3): 5}
def uslot(u): return XSLOT[u] if u not in USEQ else USEQ[u] % 10
def uloc(u): sl = uslot(u); return sl // 4, (sl % 4) * 16384
_first = list(range(160, 192, 4)) + list(range(0, 32, 4))
ASREG = _first + [r for r in range(0, 256, 4) if r not in _first]
assert ASREG[56:60] == [224, 228, 232, 236]
def AS(v, ks): return ASREG[ks * 2 + v]
def AG(i, v, ks): return ("v", 32 + (v * 2 + ks) * 4) if i % 2 == 0 else ("a", 224 + (v * 2 + ks) * 4)
def BF(n, m): return 64 + (n & 1) * 64 + m * 4
def ACG(j, v): return 192 + (j * 2 + v) * 4
def ACS(q, v): return 32 + (q * 2 + v) * 4
def ureads(u, vRAs=vRAs):
    kind, i = UNITS[u] if isinstance(u, int) else u
    st, o = uloc((kind, i))
    if kind == "As":
        return [Ins(f"ds_read_b64_tr_b16 {A(AS(v,2*i+ks)+2*kh,2)}, v{vRAs+2*st+v} offset:{o+ks*8192+kh*4096}", tag="R") for ks in range(2) for v in range(2) for kh in range(2)]
    if kind == "Ag":
        return [Ins(f"ds_read_b64_tr_b16 {R(AG(i,v,ks)[0], AG(i,v,ks)[1]+2*kh, 2)}, v{vRAg+4*st+2*kh+v} offset:{o+ks*8192}", tag="R") for v in range(2) for ks in range(2) for kh in range(2)]
    n = i if kind == "Bg" else 7 + i
    return [Ins(f"ds_read_b128 {V(BF(n,m),4)}, v{vRB[st]} offset:{o+m*1024}", tag="R") for m in range(16)]
OSTORES = []
EARLY = []

def gen_attention(l0items):
    tl = TL()
    phases = [-1, 0, 1, 2, 3, 15]
    VPOS = OPT.get("vmpos", (5, 13, 21, 29))
    start = {}; stepb = {}
    for p in phases:
        start[p] = len(tl.g)
        if p == 15:
            def pv(dt, t, vs, pb, fwd):
                d = A(O(dt, t), 4)
                for kk in (range(4) if fwd else range(3, -1, -1)): tl.add(MF(d, A(VF(vs, kk), 4), V(P(pb, kk, t), 4), d))
            FR = [(i, t) for i in range(4) for t in range(4)]
            ost = lambda n: 64 + 4 * n
            mk = lambda n: MF(A(aCHK, 4), A(aZ, 4), V(ost(n), 4), "0" if n == 0 else A(aCHK, 4))
            xb = {}; yb = {}; cdone = {}; chkpos = {}
            def chk(n): chkpos[n] = tl.add(mk(n))
            for s in range(8):
                xb[s] = len(tl.g)
                for t in range(4):
                    for m in qk_chain(t, s & 1, V(vNM + 4 * t, 4)): tl.add(m)
                for t in (2 * (s & 1), 2 * (s & 1) + 1): pv(s >> 1, t, (s >> 1) & 1, 0, 1 - (t & 1))
                tl.add(rs(s >> 1, s & 1, 0))
            xb[8] = len(tl.g)
            wend = lambda n: 1 + (n + 1) * OPT.get("yw", 20) / 12 if n < 12 else n + 10
            nchk = 0
            for u in range(24):
                bl, t = u >> 2, u & 3; s0, s1 = (0, 4) if bl % 2 == 0 else (1, 5); yb[u] = len(tl.g)
                if bl == 0: tl.add(rs(t, 0, 1)); tl.add(rs(t, 1, 1))
                if bl < 2:
                    o_ = [(2 * bl, s0), (2 * bl + 1, s1)][::1 if t % 2 == 0 else -1]
                    pv(o_[0][0], t, o_[0][1], 1, 1); pv(o_[1][0], t, o_[1][1], 1, 0); cdone[u] = len(tl.g) - 1
                else:
                    dt = bl + 2
                    if t % 2 == 0: pv(dt, t, s0, 0, 1); pv(dt, t, s1, 1, 1)
                    else: pv(dt, t, s1, 1, 0); pv(dt, t, s0, 0, 0)
                    if dt & 1: cdone[2 * dt - 2 + t] = len(tl.g) - 1
                if nchk < 12 and wend(nchk) <= u + .5: chk(nchk); nchk += 1
            yb[24] = len(tl.g); assert nchk == 12
            continue
        for s in range(8):
            stepb[p, s] = len(tl.g)
            if p != 15:
                for t in range(4):
                    for m in qk_chain(t, s & 1, V(vNM + 4 * t, 4) if not OPT.get("nm0") else "0"): tl.add(m)
            if p == -1:
                if OPT.get("bO"): tl.add(Ins(f"v_mfma_f32_32x32x16_bf16 {A(16*s,16)}, {A(aONES,4)}, v[252:255], 0"))
                else: tl.add(Ins(f"v_mfma_f32_32x32x16_bf16 {A(16*s,16)}, {A(aZ,4)}, {A(aZ,4)}, 0"))
                if s == 0: tl.add(Ins(f"v_mfma_f32_32x32x16_bf16 {A(aL,16)}, {A(aZ,4)}, {A(aZ,4)}, 0"))
            else:
                if OPT.get("rsadj"):
                    tl_ = s >> 1; order = [t for t in range(4) if t != tl_] + [tl_]
                    for n_, t in enumerate(order):
                        d = A(O(s, t), 4); fwd = (n_ + s) % 2 == 0
                        for kk in (range(4) if fwd else range(3, -1, -1)): tl.add(MF(d, A(VF(s & 1, kk), 4), V(P(p & 1, kk, t), 4), d))
                else:
                    for t in range(4):
                        for m in pv_chain(s, t, s & 1, p & 1): tl.add(m)
                if p != 15:
                    tl.add(rs(s >> 1, s & 1, p & 1))
    end = len(tl.g)
    nxt = {p: (start[phases[i + 1]] if i + 1 < len(phases) else end) for i, p in enumerate(phases)}
    for p in phases:
        if p == 15: continue
        pb = (p + 1) & 1
        for s in range(8):
            b0 = stepb[p, s]; nb = stepb[p, s + 1] if s < 7 else nxt[p]
            for t in range(4):
                sr = vS + 4 * t
                ex = [Ins(f"v_exp_f32 v{sr+r}, v{sr+r}") for r in range(4)]
                pd = P(pb, s >> 1, t) + 2 * (s & 1)
                cv = [Ins(f"v_cvt_pk_bf16_f32 v{pd+h}, v{sr+2*h}, v{sr+2*h+1}") for h in range(2)]
                if p >= 0:
                    o = b0 + 8 * t + (1 if t == 3 else 0)
                    pe = [o + 8 + 2 * r for r in range(4)]; pc = [o + 11, o + 15]
                else:
                    pe = [b0 + 4 * t + 8 + r for r in range(4)]; pc = [b0 + 4 * t + 10, b0 + 4 * t + 12]
                    if s == 7:
                        pe = [min(x, nb - 1) for x in pe]; pc = [min(x, nb - 1) for x in pc]
                        if t == 3: pe = [nb + 0, nb + 2, nb + 4, nb + 6]; pc = [nb + 3, nb + 7]
                seq = sorted([(pe[0],0,ex[0]),(pe[1],1,ex[1]),(pc[0],3 if p < 0 else 2,cv[0]),(pe[2],2.5,ex[2]),(pe[3],4,ex[3]),(pc[1],5,cv[1])], key=lambda z: (z[0], z[1]))
                for pos, _, ins in seq: tl.vec_at(pos, ins)
    for p in phases:
        if p == 15: continue
        if 0 <= p < 15:
            grps = [dma_K(0, p & 1, "DK"), dma_K(1, p & 1, "DK"), dma_V(0, (p + 1) & 1, "DV"), dma_V(1, (p + 1) & 1, "DV")]
            for s in range(8):
                tl.scal_at(stepb[p, s] + 15, W(lgkm=f"V{s}"), later=False)
                tl.scal_at(stepb[p, s] + 31, W(lgkm=f"K{(s+1)&7}"), later=False)
            if OPT.get("kvtouch", 1): grps.append(([], II(f"buffer_load_dword a252, v28, {SR(sK if p % 2 == 0 else sV)}, s{sKo if p % 2 == 0 else sVo} offen"), []))
            so, sr = (sTW, sWO) if p % 2 == 0 else (sT2W, sW2)
            grps.append((II(f"s_cmp_le_u32 s{sCnt}, {OPT.get('wtrip', 2)}\ns_cselect_b32 s{sT}, s{so}, 0x40000000"), II(f"buffer_load_dword a252, v{30 if p % 2 == 0 else 29}, {SR(sr)}, s{sT} offen"),
                         II(f"s_add_u32 s{so}, s{so}, {0x4000 if (p % 2 == 0 and OPT.get('wo2', 1)) else 0x2000}\ns_and_b32 s{so}, s{so}, {0x7fff if p % 2 == 0 else 0x3fff}")))
            if p % 2 == 0 and OPT.get("cpl", 1): grps.append(([], II("global_load_dword a252, v[24:25], off"), []))
            if p % 2 == 1:
                grps.append(([], II(f"buffer_store_dword v22, v21, {SR(sWS)}, 0 offen sc1"), []))
                tl.vec_at(stepb[p, 7] + 3, Ins("v_add_u32 v22, 1, v22"))
            clr = II(f"buffer_store_dwordx4 {A(aCHK,4)}, v{vL16}, {SR(sXP)}, s{sT2} offen offset:{1024*(p&1)} sc1")
            if OPT.get("clrpos") is not None: tl.vec_at(stepb[p, OPT["clrpos"][0]] + OPT["clrpos"][1], clr[0])
            elif not OPT.get("noclr"): grps.append(([], clr, []))
            if p % 2 == 0:
                q = stepb[p, 0] + 6
                for x in II(f"s_cmp_lt_u32 s{sCnt}, 5\ns_subb_u32 s3, s{sCnt}, 0\ns_and_b32 s{sT2}, s3, 3\ns_lshl_b32 s{sT2}, s{sT2}, 3\ns_or_b32 s{sT2}, s{sT2}, s3\ns_lshl_b32 s{sT2}, s{sT2}, 13\ns_xor_b32 s{sT2}, s{sT2}, s{sXR}\ns_cmp_gt_u32 s{sCnt}, 1\ns_cselect_b32 s{sT2}, s{sT2}, 0x40000000"):
                    q2 = tl.scal_at(q, x); assert q2 == q; q += 1
            if p % 2 == 0 and OPT.get("otouch"):
                grps.append((II(f"s_sub_u32 s3, s{sCnt}, {OPT['otouch']}\ns_mul_i32 s{sT}, s3, {BSTRIDE}\ns_add_u32 s{sT}, s{sT}, s{sBo}\ns_cmp_lt_u32 s3, 4\ns_cselect_b32 s{sT}, s{sT}, 0x40000000"), II(f"buffer_load_dword a252, v26, {SR(sB)}, s{sT} offen"), []))
            if p % 2 == 1 and OPT.get("htouch", 1):
                grps.append((II(f"s_cmp_eq_u32 s{sCnt}, {OPT.get('htrip', 1)}\ns_cselect_b32 s{sT}, s{sBg}, 0x40000000"), II(f"buffer_load_dword a252, v27, {SR(sB)}, s{sT} offen"), []))
            k = 0
            for grp in grps:
                for j, x in enumerate(grp[1]):
                    gi = stepb[p, k // len(VPOS)] + VPOS[k % len(VPOS)]; k += 1
                    if j == 0:
                        q = gi
                        for y in reversed(grp[0]):
                            q2 = tl.scal_at(q - 1, y, later=False); assert len(grp[0]) == 1 or q2 == q - 1; q = q2
                    tl.vec_at(gi, x); x.grp = grp; x.role = "vec"
                for x in grp[2]: gi = tl.scal_at(gi + 1, x)
            assert gi < stepb[p, 7]
            e_ = stepb[p, 7]
            if p % 2 == 1:
                tl.scal_at(e_ + 29, Ins(f"s_sub_u32 s{sCnt}, s{sCnt}, 1")); tl.scal_at(e_ + 30, Ins(f"s_cmp_lg_u32 s{sCnt}, 0")); tl.scal_at(e_ + 32, Ins("s_cbranch_scc1 L_att_loop"))
        for s in range(8):
            b0 = stepb[p, s]; nb = stepb[p, s + 1] if s < 7 else nxt[p]
            ns, npz = (s + 1) & 7, (p + 1 if s == 7 else p)
            if s == 7:
                i = tl.scal_at(b0 + (5 if p >= 0 else 4), W(lgkm=["V7", "K7"], vm=["DK", "DV"]))
                if not (OPT.get("nobar") and p >= 0): tl.scal_at(i + 1, Ins("s_barrier"))
            if p >= 0:
                kr = kreads(ns, (npz + 1) & 1, ns & 1, f"K{ns}"); vr = vreads(ns, npz & 1, ns & 1, f"V{ns}")
                free = [o for o in range(7 if s == 7 else 1, 32, 2) if not any(x.is_vmem for x in tl.g[b0 + o].vec)]
                assert len(free) >= 12
                for x, o in zip(kr + vr, free): tl.vec_at(b0 + o, x)
            else:
                tl.vec_in(b0 + 6, b0 + 10, kreads(ns, (npz + 1) & 1, ns & 1, f"K{ns}"))
                if s == 7: tl.vec_in(b0 + 10, nb - 1, vreads(0, 0, 0, "V0"))
                tl.scal_at(nb - 1, W(lgkm=f"K{ns}"), later=False)
    rot = OPT.get("rot", 1)
    sc = f"""s_add_u32 s{sXP}, s{sWS}, {WS_X}
s_addc_u32 s{sXP+1}, s{sWS+1}, 0
s_mov_b32 s{sXP+2}, 0x1000000
s_lshl_b32 s{sT}, s{sTr}, 2
s_add_u32 s{sT}, s{sT}, s{sTc}
s_lshl_b32 s{sT}, s{sT}, 2
s_add_u32 s{sT}, s{sT}, s{sSp}
s_lshl_b32 s{sT}, s{sT}, 16
s_lshl_b32 s{sXR}, s{sWave}, 11
s_add_u32 s{sXR}, s{sXR}, s{sT}
"""
    sc += f"""s_lshl_b32 s{sT}, s{sTc}, 8
s_lshl_b32 s{sWOo}, s{sWave}, 14
s_add_u32 s{sWOo}, s{sWOo}, s{sT}
s_mul_i32 s{sW2o}, s{sSp}, {448*1024}
s_add_u32 s{sW2o}, s{sW2o}, s{sWOo}
s_lshl_b32 s{sT}, s{sSp}, 20
s_add_u32 s{sWOo}, s{sWOo}, s{sT}
s_lshr_b32 s{sQ0}, s{sTr}, 1
s_lshl_b32 s{sQ0}, s{sQ0}, 2
s_and_b32 s{sT}, s{sTr}, 1
s_add_u32 s{sQ0}, s{sQ0}, s{sT}
s_lshl_b32 s{sQ0}, s{sQ0}, 2
s_xor_b32 s{sT}, s{sWave}, s{sSp}
s_and_b32 s{sT2}, s{sT}, 2
s_add_u32 s{sT}, s{sT}, s{sT2}
s_lshl_b32 s{sT}, s{sT}, 1
s_add_u32 s{sT}, s{sT}, s{sQ0}
s_mul_i32 s{sBg}, s{sT}, {BSTRIDE}
s_mul_i32 s{sT}, s{sSp}, {14*1024}
s_add_u32 s{sT}, s{sT}, {128*1024}
s_add_u32 s{sBg}, s{sBg}, s{sT}
s_lshl_b32 s{sT}, s{sHead}, 12
s_add_u32 s{sBo}, s{sBo}, s{sT}
s_mul_i32 s{sGk[0]}, s{sTc}, {4096*rot}
s_mul_i32 s{sHp[0]}, s{sTc}, {8192*rot}
s_lshl_b32 s{sT2}, s{sHp[0]}, 5
s_xor_b32 s{sWOo}, s{sWOo}, s{sT2}
"""
    for i in range(1, 7): sc += f"s_add_u32 s{sGk[i]}, s{sGk[i-1]}, 2048\ns_cmp_eq_u32 s{sGk[i]}, {7*2048}\ns_cselect_b32 s{sGk[i]}, 0, s{sGk[i]}\n"
    for i in range(1, 4): sc += f"s_xor_b32 s{sHp[i]}, s{sHp[0]}, {8192*i}\n"
    sc += f"""s_lshr_b32 s{sT}, s{sWave}, 1
s_mul_i32 s{sT}, s{sT}, {BSTRIDE}
s_and_b32 s3, s{sWave}, 1
s_lshl_b32 s3, s3, 12
s_add_u32 s3, s3, s{sT}
s_lshl_b32 s{sT}, s{sSp}, 15
s_add_u32 s3, s3, s{sT}
"""
    for lam in (3, 2, 1, 0):
        sc += f"s_xor_b32 s{sT}, s{sSp}, {lam}\ns_and_b32 s{sT2}, s{sT}, 2\ns_add_u32 s{sT}, s{sT}, s{sT2}\ns_lshl_b32 s{sT}, s{sT}, 1\ns_add_u32 s{sT}, s{sT}, s{sQ0}\ns_mul_i32 s{sBs[lam]}, s{sT}, {BSTRIDE}\ns_add_u32 s{sBs[lam]}, s{sBs[lam]}, s3\n"
    sc += f"""s_lshl_b32 s{sOo}, s{sT}, 14
s_lshl_b32 s{sT}, s{sTc}, 8
s_add_u32 s{sOo}, s{sOo}, s{sT}
s_lshl_b32 s{sT}, s{sWave}, 6
s_add_u32 s{sOo}, s{sOo}, s{sT}
s_add_u32 s{sXW}, s{sOo}, 16384
"""
    if OPT.get("noBg"): sc += f"s_mov_b32 s{sBg}, 0x40000000\n"
    if OPT.get("noOS"): sc += f"s_mov_b32 s{sBo}, 0x40000000\n"
    left = tl.sched(start[-1], nxt[-1] - 1, l0items + II(sc), look=200)
    print("first phase: left over", len(left), file=sys.stderr)
    tl.g[nxt[-1] - 1].vec += left
    T = vT
    VM1 = OPT.get("y1vm", (10, 19, 24))
    for s_ in range(8):
        for t in range(4):
            sr = vS + 4 * t; pd = P(1, s_ >> 1, t) + 2 * (s_ & 1)
            ps = [o + (1 if o >= 24 else 0) for o in range(8 + 6 * t, 14 + 6 * t)]
            for r in range(4): tl.vec_at(xb[s_] + ps[(0, 1, 3, 4)[r]], Ins(f"v_exp_f32 v{sr+r}, v{sr+r}"))
            for h in range(2):
                q = ps[2 + 3 * h]
                if q % 25 in VM1: q += 1
                tl.vec_at(xb[s_] + q, Ins(f"v_cvt_pk_bf16_f32 v{pd+h}, v{sr+2*h}, v{sr+2*h+1}"))
    for x in range(8):
        if x % 2 == 0: tl.scal_at(xb[x] + 15, W(lgkm=f"V{x//2}"))
        if x < 7: tl.scal_at(xb[x + 1] - 1, W(lgkm=f"K{x+1}"))
    for bl in range(6): tl.scal_at(yb[4 * bl] + (1 if bl == 0 else -1), W(lgkm=f"Y{bl}"))
    mb = OPT.get("ymb", 5)
    tl.scal_at(xb[mb] + 20, W(vm=["DV", "E1"])); tl.scal_at(xb[mb] + 21, Ins("s_barrier"))
    tl.scal_at(yb[0] + 2, W(lgkm="R")); tl.scal_at(yb[0] + 3, Ins("s_barrier"))
    b2 = OPT.get("yb2", 5)
    tl.scal_at(yb[b2], W(vm="E3")); tl.scal_at(yb[b2] + 1, Ins("s_barrier"))
    b3 = OPT.get("yb3", 11)
    tl.scal_at(yb[b3], W(lgkm="R")); tl.scal_at(yb[b3] + 1, Ins("s_barrier"))
    tl.scal_at(yb[20], Ins("s_barrier"))
    ld1 = f"buffer_load_dword v{vPoll}, v23, {SR(sWS)}, 0 offen sc1"
    chk1 = poll_check("h", vPoll, ld1, f"v_cmp_gt_u32 vcc, v31, v{vPoll}\ns_nop 0\ns_cmp_eq_u64 vcc, 0")
    def put(grps, slots):
        slots = list(slots); prev = slots[0] - 5
        for g in grps:
            for x in g[1]:
                gi = slots.pop(0)
                if x is g[1][0] and g[0]:
                    free = [q for q in range(max(prev + 1, gi - 5), gi) if not tl.g[q].scal][-len(g[0]):]
                    free = sorted(free + [gi - 1] * (len(g[0]) - len(free)))
                    for y, q in zip(g[0], free): tl.g[q].scal.append(y)
                tl.vec_at(gi, x); x.grp = g; x.role = "vec"; prev = gi
            for y in g[2]: tl.scal_at(gi + 1, y)
    assert [UNITS[u][0] for u in range(7)] == ["Ag", "Bg", "Ag", "Bg", "As", "As", "Ag"]
    sl = [xb[0] + 1, xb[0] + 5] + [xb[x] + o for x in range(8) for o in VM1]
    put([([], [Ins(ld1, tag="C1")], [])], [sl[-1]])
    put([dma_V(0, 1, "DV"), dma_V(1, 1, "DV"), udma(("As", 0)), udma(("As", 1)), udma(("As", 2)), udma(("As", 3))], sl[1:-1])
    Y = lambda f: yb[int(f)] + int((f - int(f)) * (yb[min(int(f) + 1, 24)] - yb[int(f)]))
    for n in range(16):
        i, t = FR[n]
        OSTORES.append((II(f"s_add_u32 s{sCnt}, s{sBo}, {t*BSTRIDE}"),
                        [Ins(f"buffer_store_dwordx4 {V(ost(n),4)}, v{vL16}, {SR(sB)}, s{sCnt} offen offset:{1024*i} sc1", tag="OS")], []))
    ospos = {}
    for n in range(14): ospos[n] = Y(wend(n)) + 3; put([OSTORES.pop(0)], [ospos[n]])
    def slots(lo, n, d):
        r = []
        while len(r) < n:
            while tl.g[lo].load: lo += 1
            r.append(lo); lo += d
        return r
    d1 = OPT.get("yd1", 5)
    sa = slots(yb[0] + 9, 16, d1)
    gp = tl.g[sa[8] - 1]; gp.vec += [W(vm="C1")] + chk1; gp.load += 1
    put([udma(0), udma(2), udma(1), udma(3)], sa)
    put([udma(4), udma(5)], slots(max(yb[b3] + 4, sa[-1] + d1), 8, OPT.get("yd2", 8)))
    EARLY[:] = [0, 1, 2, 3, 4, 5] + [6, 8][:OPT.get("e3", 1)]
    if EARLY[6:]: put([udma(u) for u in EARLY[6:]], slots(yb[20] + 4, 4 * len(EARLY[6:]), 7 // len(EARLY[6:])))
    su = II(f"""v_bfe_u32 v{T}, v0, 4, 2
v_mul_u32_u24 v{T}, 768, v{T}
v_add_u32 v{vDA}, v{vDV}, v{T}
v_add_u32 v{vDA+1}, v{vDV+1}, v{T}
v_add_u32 v{vDA+1}, 3072, v{vDA+1}
v_add_u32 v{vDA+2}, 6144, v{vDA}
v_add_u32 v{vDA+3}, 6144, v{vDA+1}
v_add_u32 v{vB1}, {BSTRIDE-2048}, v{vL16}""")
    su2 = II(f"""s_lshl_b32 s{sT}, s{sWave}, 6
s_or_b32 s{sT}, s{sT}, {L_V}
v_xor_b32 v25, s{sT}, v{vVA}
v_xor_b32 v26, s{sT}, v{vVA+1}
v_add_u32 v27, 0x10000, v25
v_add_u32 v28, 0x10000, v26""")
    tl.ddpen = 3; tl.vmpen = 4
    for x in range(7): tl.vec_in(xb[x], xb[x] + 17, kreads(x + 1, 1, (x + 1) & 1, f"K{x+1}"))
    for dt in range(1, 4): tl.vec_in(xb[2 * dt - 2] + 10, xb[2 * dt] + 9, vreads(dt, 0, dt & 1, f"V{dt}"))
    tl.vec_in(xb[6], xb[7] + 10, vreads(0, 1, 0, "Y0")); tl.vec_in(xb[6] + 16, xb[8] - 4, vreads(1, 1, 4, "Y0"))
    assert mb <= 5
    tl.vec_in(xb[mb] + 22, xb[8] - 3, ureads(("As", 0), 25) + ureads(("As", 1), 25))
    for bl in range(1, 6):
        s0, s1 = (0, 4) if bl % 2 == 0 else (1, 5)
        r = vreads(2, 1, s0, "Y1") + vreads(3, 1, s1, "Y1") if bl == 1 else vreads(bl + 2, 0, s0, f"Y{bl}") + vreads(bl + 2, 1, s1, f"Y{bl}")
        tl.vec_in(yb[4 * bl - 4], yb[4 * bl] - 7, r)
    def even(lo, hi, items):
        qs = [q for q in range(lo, hi + 1) if not any(x.is_vmem for x in tl.g[q].vec)]
        add = {q: 0 for q in qs}
        for x in items:
            q = min(qs, key=lambda z: (tl.g[z].load + add[z], z)); add[q] += 1
        left = list(items)
        for q in qs:
            for _ in range(add[q]): tl.vec_at(q, left.pop(0))
    even(xb[0], xb[2], su)
    left = tl.stream(xb[2], xb[4], su2, cap=3); assert not left
    vRL = vNM
    def lr(t): return II(f"v_accvgpr_read_b32 v{vRL+4+t}, a{aL+4*t}\nv_accvgpr_read_b32 v{vRL+t}, a{aL+4*t+1}\nv_add_f32 v{vRL+4+t}, v{vRL+4+t}, v{vRL+t}\nv_rcp_f32 v{vRL+t}, v{vRL+4+t}")
    where = lambda y: max(q for q, gp in enumerate(tl.g) if any(x is y for x in gp.vec))
    lo = 0; tail_ = []
    for n in range(16):
        i, t = FR[n]; o = ost(n); tb = vS + 8 * (n & 1)
        ar = [(k, O(2 * i + (k >> 2), t) + (k & 3)) for k in range(8)]
        if t & 1 and n < 8: ar = ar[4:] + ar[:4]
        items = (lr(t) if n < 4 else []) + II("\n".join(f"v_accvgpr_read_b32 v{tb+k}, a{a_}" for k, a_ in ar))
        items += II("\n".join(f"v_mul_f32 v{tb+k}, v{tb+k}, v{vRL+t}" for k, a_ in ar))
        items += II("\n".join(f"v_cvt_pk_bf16_f32 v{o+k}, v{tb+2*k}, v{tb+2*k+1}" for k in range(4)))
        lo = max(lo, cdone[n] + 2)
        if n == 15: tail_ = items; continue
        w1 = min(Y(wend(n)) + 1, end - 1); assert w1 < min(ospos.get(n, end), chkpos.get(n, end + 1) - 1) and w1 - lo >= 4, n
        if n == 4:
            assert yb[b2] + 1 < lo < yb[b3] - 24
            tl.vec_in(lo, yb[b3] - 6, ureads(("As", 2), 25) + ureads(("As", 3), 25))
        even(lo, w1, items); lo = w1 + 1
    print("ending: VALU left over", len(tail_), file=sys.stderr)
    blk = {p: tl.emit(start[p], nxt[p], f"att{p}") for p in phases}
    tx = lambda b: [(i.text, str(i.waitfor), i.tag) for i in b.ins]
    assert tx(blk[0]) == tx(blk[2]) and tx(blk[1]) == tx(blk[3])
    last = blk[15]
    for nm, x in (("x2", 0), ("x3", 12)):
        k_ = next(q for q, y in enumerate(last.ins) if y is tl.g[yb[x]].m); last.ins[k_:k_] = stamp_ins(STAMPS.get(nm))
    if OPT.get("osl"):
        assert len(tail_) == 20
        o13, o14 = OSTORES.pop(0), OSTORES.pop(0)
        last.ins += o13[0] + o13[1] + tail_[:8] + [mk(12)] + o14[0] + tail_[8:12] + o14[1] + [mk(13)] + tail_[12:16] + [mk(14)] + tail_[16:]
    else: last.ins += tail_[:-12] + [mk(12)] + tail_[-12:-8] + [mk(13)] + tail_[-8:-4] + [mk(14)] + tail_[-4:]
    last.tailchk = mk(15)
    return blk[-1], blk[0], blk[1], last

PARTS = [("G", 0), ("Q", 0), ("G", 1), ("Q", 1), ("G", 2), ("G", 3), ("Q", 2), ("Q", 3)]
SLOT = lambda i: (L_V + 32768, L_SP, L_V)[i % 3]
vNMU, vAQ, vAE, vIR = 32, 36, 40, 44
def XB(c, t, ks): return (c & 1) * 64 + (t * 4 + ks) * 4
def WF(fb, ks): return 212 + fb * 16 + ks * 4
def pacc(kind, u, t):
    if kind == "G": return V(128 + (u & 1) * 64 + ((u >> 1) * 4 + t) * 4, 4)
    ds, hf = u >> 1, u & 1
    return V(Q(t, ds), 4) if hf == 0 else A(128 + (t * 4 + ds) * 4, 4)
def wdma(i):
    kind, c = PARTS[i]; base = SLOT(i); g = []
    if kind == "Q":
        for half in range(2):
            g.append((II(f"s_add_u32 m0, s{sW8k}, {base + half*4096}\ns_add_u32 s{sT}, s{sWQo}, {(c*128+16*half)*8192}"),
                      [Ins(f"buffer_load_dwordx4 v{vDQ+p}, {SR(sWQ)}, s{sT} offen offset:{p*1024} lds", tag=f"DW{i}") for p in range(4)], []))
    else:
        for k, sr in enumerate((sW1, sW3)):
            g.append((II(f"s_add_u32 m0, s{sW4k}, {base + k*16384}\ns_add_u32 s{sT}, s{sW13o}, {c*128*3584}"),
                      [Ins(f"buffer_load_dwordx4 v{vD13+p}, {SR(sr)}, s{sT} offen offset:{p*1024} lds", tag=f"DW{i}") for p in range(4)], []))
    return g
def xdma(c):
    return [(II(f"s_xor_b32 m0, s100, {t*4096}\ns_xor_b32 s{sT}, s101, {t*16384 + c*256}"),
             [Ins(f"buffer_load_dwordx4 v{vDX+p}, {SR(sX)}, s{sT} offen offset:{p*1024} lds", tag=f"DX{c}") for p in range(4)], []) for t in range(4)]
def xreads(c):
    return [Ins(f"ds_read_b128 {A(XB(c,t,ks),4)}, v{vXA+ks} offset:{t*4096}", tag=f"X{c}") for t in range(4) for ks in range(4)]

def gen_proj(stats, var):
    S_ = var == "S"
    O_ = lambda k, d: OPT.get(k + var, OPT.get(k, d))
    tiles = lambda i: [0, 1, 4, 5, 2, 3] if (S_ and PARTS[i][0] == "G") else list(range(8))
    base = {"G": L_V, "Q": L_SP}
    def wreads(i, u, tag):
        kind, c = PARTS[i]; off0 = SLOT(i) - base[kind]; assert 0 <= off0 <= 32768
        r = []
        for ks in range(4):
            for kh in range(2):
                if kind == "Q": ad, off = vWQA + (u >> 1), ks * 8192 + kh * 1024 + 8 * (u & 1)
                else: ad, off = vW13A + (u >> 1), ks * 4096 + kh * 512 + 16384 * (u & 1)
                r.append(Ins(f"ds_read_b64_tr_b16 {A(WF(u&1,ks)+2*kh,2)}, v{ad} offset:{off0+off}", tag=tag))
        return r
    first_reads = wreads(0, 0, "W0")
    tl = TL(); tb = {}
    for i, (kind, c) in enumerate(PARTS):
        for pos_, u in enumerate(tiles(i)):
            tb[i, pos_] = len(tl.g)
            for t in range(4):
                d = pacc(kind, u, t)
                for n, ks in enumerate(snake(t)):
                    tl.add(MF(d, A(WF(u & 1, ks), 4), A(XB(c, t, ks), 4), OPT.get("b" + kind, "0") if (c == 0 and n == 0) else d))
            if u < 2 or (S_ and kind == "G" and u >= 4):
                d = A(aL + (8 if kind == "Q" else 0) + 4 * u, 4) if u < 2 else V(176 + 4 * (u - 4), 4)
                for kp in range(2): tl.add(Ins(f"v_smfmac_f32_16x16x64_bf16 {d}, {A(aONES,4)}, {A(WF(u&1,2*kp),8)}, v{vIDX}"))
    end = len(tl.g)
    tb[8, 0] = end
    LAST = lambda i: tb[i, len(tiles(i)) - 1]
    extra_vm = {1: ["ST"], 7: ["DK0"]}
    for i, (kind, c) in enumerate(PARTS):
        for u in range(len(tiles(i))):
            b0 = tb[i, u]; nb = tb.get((i, u + 1), tb[i + 1, 0])
            if b0 != LAST(i):
                r = wreads(i, tiles(i)[u + 1], f"W{u+1}")
                for k, x in enumerate(r): tl.vec_at(b0 + O_('wpos', (0, 1, 2, 4, 5, 6, 8, 9))[k], x)
                tl.scal_at(nb - 1, W(lgkm=f"W{u+1}"), later=False)
            else:
                vm = ([f"DW{i+1}"] if i < 7 else []) + extra_vm.get(i, [])
                tl.scal_at(b0, W(vm=vm, lgkm={4: ["X3"], 5: ["CS"], 7: ["CS"]}.get(i)))
                tl.scal_at(b0 + 1, Ins("s_barrier"))
                if i < 7:
                    nk = PARTS[i + 1][0]
                    if not 0 <= SLOT(i + 1) - base[nk] <= 32768:
                        dlt = SLOT(i + 1) - base[nk]; base[nk] += dlt
                        ad = vWQA if nk == "Q" else vW13A
                        for k in range(4): tl.vec_at(b0 + k // 2, Ins(f"v_add_u32 v{ad+k}, {dlt & 0xffffffff}, v{ad+k}"))
                    tl.vec_in(b0 + 2, b0 + 9, wreads(i + 1, 0, "W0"))
                    tl.scal_at(nb - 1, W(lgkm="W0"), later=False)
                else:
                    tl.vec_in(b0 + 2, b0 + 9, kreads(0, 0, 0, "K0"))
    P_ = lambda i, f: tb[i, 0] + int(f * (tb[i + 1, 0] - tb[i, 0]))
    def xout(c, lo, hi):
        j = tl.scal_at(lo, W(vm=f"DX{c}"))
        cc = tl.vec_in(j, hi, xreads(c))
        return cc[-1]
    def tch(dst, ad, sr, so): return Ins(f"buffer_load_dword a252, v{ad}, {SR(sr)}, {so} offen")
    TQ = lambda c: [(II(f"s_mov_b32 s{sT}, {c*128*8192}"), [tch(55, 22, sWQ, f"s{sT}")], [])]
    TG = lambda c: [(II(f"s_mov_b32 s{sT}, {c*128*3584}"), [tch(55, 23, sW1, f"s{sT}"), tch(55, 23, sW3, f"s{sT}")], [])]
    TK = [([], [tch(55, 53, sK, 0)], [])]; TV = [([], [tch(55, 53, sV, 0)], [])]
    kv = OPT.get("kvp", (9, 9, 9))
    at = lambda p: (TK if kv[0] == p else []) + (TV if kv[1] == p else []) + (TK2 if kv[2] == p else [])
    TK2 = [(II(f"s_mov_b32 s{sT}, 65536"), [tch(55, 53, sK, f"s{sT}")], [])]
    x1, x2, x3 = xdma(1), xdma(2), xdma(3)
    prev = [0]
    def sp(lo, hi, grps):
        lo = max(lo, prev[0] + 4); prev[0] = tl.spread(lo, max(hi, lo + 1), grps); return prev[0]
    SRL = [(II(f"s_lshl_b32 s{sT}, s{sCnt}, 11"), [Ins(f"buffer_load_dwordx4 {V(72+4*r,4)}, v58, {SR(sX)}, s{sT} offen offset:{512*r}", tag="SR") for r in range(2)], [])]
    CP = [([], II("global_load_dword a252, v[60:61], off"), [])]
    item = lambda n: {"W": lambda: wdma(int(n[1])), "Q": lambda: TQ(int(n[1])), "G": lambda: TG(int(n[1])), "S": lambda: SRL, "C": lambda: CP, "K": lambda: TK, "V": lambda: TV, "k": lambda: TK2,
                      "A": lambda: [([], [Ins(f"buffer_atomic_add v49, v48, {SR(sDBG)}, 0 offen", tag="AT")], [])],
                      "r": lambda: (x1, x2, x3)[int(n[1]) - 1][:1], "x": lambda: (x1, x2, x3)[int(n[1]) - 1][1:]}[n[0]]()
    PP = lambda f: P_(int(f), f - int(f))
    for ent in O_("sch", None):
        if ent[0] == "o":
            l = xout(ent[1], PP(ent[2]), min(PP(ent[3]), LAST((0, 1, 3, 4)[ent[1]]) - 6))
            assert PP(ent[2]) >= tb[(0, 0, 2, 4)[ent[1]], 0]
            if ent[1] < 3: prev[0] = max(prev[0], tl.scal_at(l + 5, W(lgkm=f"X{ent[1]}")))
        else:
            g_ = [g for n in ent[1].split() for g in item(n)]
            lo = max(PP(ent[0]), prev[0] + 4)
            sp(lo, lo + int((ent[2] if len(ent) > 2 else O_('dsp', 4.4)) * (sum(len(g[1]) for g in g_) - 1)), g_)
    w7 = O_("w7", 0)
    if not w7: sp(P_(5, .03), P_(5, .3), wdma(7))
    ld0 = f"buffer_load_dword v50, v51, {SR(sDBG)}, 0 offen sc1"
    ck0 = O_("ck0", .33)
    g = tl.g[P_(5, ck0)]
    g.vec += [W(vm="C0")] + poll_check("st" + var, 50, ld0, f"v_cmp_gt_u32 vcc, 32, v50\ns_nop 0\ns_cmp_eq_u64 vcc, 0"); g.load += 2
    sp(P_(5, ck0) + 3, P_(5, ck0 + .1), [([], [Ins(f"buffer_load_dwordx2 {V(56+2*t,2)}, v52, {SR(sWS)}, 0 offen offset:{128*t} sc1", tag="SL") for t in range(4)], [])])
    if w7:
        l = sp(P_(5, w7), P_(5, w7) + 30, wdma(7)); assert l < P_(5, min(O_("slpos", .8), 1))
    sp(0, P_(5, O_("k0e", .97)), [dma_K(0, 0, "DK0"), dma_K(1, 0, "DK0")])
    sp(P_(6, O_("v0a", .3)), P_(6, O_("v0b", .9)), [dma_V(0, 0, "DV"), dma_V(1, 0, "DV")])
    sp(P_(7, O_("v0a", .3)), P_(7, O_("v0b", .9)), [dma_K(0, 1, "DK"), dma_K(1, 1, "DK")])
    def span(tag):
        ps = [q for q, gp in enumerate(tl.g) for x in gp.vec if x.tag == tag]; return min(ps), max(ps)
    for i in range(1, 8):
        assert span(f"DW{i}")[1] < LAST(i - 1) and (i < 3 or span(f"DW{i}")[0] > LAST(i - 3) + 1), i
    for c in (1, 2, 3): assert span(f"DX{c}")[1] < span(f"X{c}")[0] and (c == 1 or span(f"DX{c}")[0] > span(f"X{c-1}")[1] + 5), c
    if not any("A" in e_[1].split() for e_ in O_("sch", None) if e_[0] != "o"): tl.vec_in(LAST(1) + 10, LAST(1) + 14, item("A")[0][1])
    assert span("AT")[0] > LAST(1) + 1
    left = tl.sched(P_(0, O_("stpos", .3)), P_(1, O_('sthi', 0)) - 1, stats); assert not left and P_(1, O_('sthi', 0)) <= tb[1, 4], len(left)
    tl.vec_in(PP(4 + O_("c0pos", .9)), PP(4 + O_("c0pos", .9)) + 6, [Ins(ld0, tag="C0")])
    for i, off in ((5, 0), (7, 1)):
        a0 = aL + 8 * off; it_ = []
        for u in range(2):
            it_ += II(f"v_accvgpr_read_b32 v22, a{a0+4*u}\nv_accvgpr_read_b32 v23, a{a0+4*u+1}\nv_add_f32 v22, v22, v23")
            it_ += [Ins(f"ds_write_b32 v21, v22 offset:{64*u}", tag="CS")]
        left = tl.stream(tb[i, 3], tb[i, 4] - 1, it_); assert not left
        if i == 5:
            it_ = []
            if S_:
                for u in range(2): it_ += II(f"v_add_f32 v{176+4*u}, v{176+4*u}, v{177+4*u}") + [Ins(f"ds_write_b32 v21, v{176+4*u} offset:{512+64*u}", tag="CS")]
            left = tl.stream(tb[i, 4] + 6, tb[i, 5] - 1, it_ + II(f"v_add_u32 v21, {L_V - L_K}, v21")); assert not left
    it = [W(vm="SL")]
    for t in range(4): it += II(f"v_rsq_f32 v{vAQ+t}, v{57+2*t}")
    for t in range(4): it += II(f"v_sub_f32 v{vNMU+t}, 0, v{56+2*t}\nv_mov_b32 v{vIR+t}, v{57+2*t}")
    for t in range(4): it += II(f"v_mul_f32 v{vAE+t}, {f32(-LOG2E)}, v{vAQ+t}\nv_mul_f32 v{vAQ+t}, {f32(LOG2E * 128 ** -0.5)}, v{vAQ+t}")
    h0 = tb[6, 0] + 2
    if O_("slpos", .8) < 1:
        left = tl.stream(P_(5, O_("slpos", .8)), tb[6, 0] - 1, it); assert not left, len(left)
        it = []
    else: it[0].guards = {f"v{56+k}" for k in range(8)}; h0 = P_(6, O_("slpos", .8) - 1) + 2
    NV = 3 if S_ else 4
    for v in range(NV): it += II(f"v_xor_b32 v{28+v}, {512 if (S_ and v == 2) else 128*v}, v54")
    def csread(v): return [Ins(f"ds_read_b128 {V(48+8*(v&1)+4*m,4)}, v{28+v} offset:{64*m}", tag=f"CG{v}") for m in range(2)]
    it += csread(0)
    for v in range(NV):
        if v < NV - 1: it += csread(v + 1)
        it += [W(lgkm=f"CG{v}")]
        for m in range(2):
            for t in range(4):
                d = 128 + m * 64 + (v * 4 + t) * 4
                for r in range(4): it += II(f"v_fmac_f32 v{d+r}, v{48+8*(v&1)+4*m+r}, v{vNMU+t}")
    mv30 = Ins(f"v_add_u32 v30, {L_V - L_K}, v28"); it.append(mv30)
    it += II(f"s_add_u32 s{sCnt}, s{sFs}, s{sBo}")
    if not S_: it += II(f"s_and_b32 s{sT2}, s{sWave}, 2\ns_lshl_b32 s{sT2}, s{sT2}, 9\nv_add_u32 v28, s{sT2}, v{vL16}\nv_xor_b32 v29, 0x400, v28")
    else:
        it += II(f"s_and_b32 s{sT2}, s{sHead}, 1\ns_lshl_b32 s{sT2}, s{sT2}, 11\nv_add_u32 v28, s{sT2}, v{vL16}\ns_xor_b32 s{sT2}, s{sHead}, s{sWave}\ns_and_b32 s{sT2}, s{sT2}, 1\ns_lshl_b32 s{sT2}, s{sT2}, 3\ns_add_u32 s{sT2}, s{sT2}, 1024\nv_add_u32 v29, s{sT2}, v{vL16}")
    rest = []
    for n in range(8):
        t, i = n >> 1, n & 1
        N = 4 if (S_ and i == 1) else 8
        gr = [128 + ((2 * i + hf) * 4 + t) * 4 + r for hf in range(2) for r in range(4)][:N]
        ur = [x + 64 for x in gr]; q = []
        if n < O_("nh", 0):
            for k in range(N): q += II(f"v_mul_f32 v{ur[k]}, v{ur[k]}, v{gr[k]}\nv_mul_f32 v{gr[k]}, v{vAE+t}, v{gr[k]}")
            for k in range(N): q += II(f"v_exp_f32 v{gr[k]}, v{gr[k]}") + (II(f"v_fma_f32 v{gr[k-2]}, v{gr[k-2]}, v{vIR+t}, v{vIR+t}") if k >= 2 else [])
            for k in range(N): q += II(f"v_rcp_f32 v{gr[k]}, v{gr[k]}") + II(f"v_fma_f32 v{gr[k+N-2]}, v{gr[k+N-2]}, v{vIR+t}, v{vIR+t}" if k < 2 else f"v_mul_f32 v{gr[k-2]}, v{gr[k-2]}, v{ur[k-2]}")
            for k in (N - 2, N - 1): q += II(f"v_mul_f32 v{gr[k]}, v{gr[k]}, v{ur[k]}")
        else:
            o = t & 1; ae, ir = V(vAE + t - o, 2), V(vIR + t - o, 2)
            for k in range(0, N, 2): q += II(f"v_pk_mul_f32 {V(ur[k],2)}, {V(ur[k],2)}, {V(gr[k],2)}\nv_pk_mul_f32 {V(gr[k],2)}, {V(gr[k],2)}, {ae} op_sel:[0,{o}] op_sel_hi:[1,{o}]")
            for k in range(N): q += II(f"v_exp_f32 v{gr[k]}, v{gr[k]}")
            for k in range(0, N, 2): q += II(f"v_pk_fma_f32 {V(gr[k],2)}, {V(gr[k],2)}, {ir}, {ir} op_sel:[0,{o},{o}] op_sel_hi:[1,{o},{o}]")
            for k in range(N): q += II(f"v_rcp_f32 v{gr[k]}, v{gr[k]}")
            for k in range(0, N, 2): q += II(f"v_pk_mul_f32 {V(gr[k],2)}, {V(gr[k],2)}, {V(ur[k],2)}")
        for k in range(N // 2): q += II(f"v_cvt_pk_bf16_f32 v{gr[0]+k}, v{gr[2*k]}, v{gr[2*k+1]}")
        q += II(f"buffer_store_dwordx{N//2} {V(gr[0],N//2)}, v{28+i}, {SR(sB)}, s{sCnt} offen sc1")
        if i == 1 and t < 3: q += II(f"s_add_u32 s{sCnt}, s{sCnt}, {BSTRIDE}")
        if n < O_("nh", 0): it += q
        else: rest += q
    lastcs = [x for x in it if x.tag == f"CG{NV-1}"][-1]
    left = tl.sched(h0, end - 1, it, look=O_("look", 70))
    assert len(left) <= 54 * O_("nh", 0) and not any(x is mv30 for x in left)
    pos = [k for k, gp in enumerate(tl.g) if any(x is lastcs for x in gp.vec)]
    assert pos and pos[0] < tb[6, 6], (pos, tb[6, 6])

    for nm, i in [(f"p{i}", i) for i in range(1, 8)]:
        tl.g[tb[i, 0]].scal = stamp_ins(STAMPS.get(nm)) + tl.g[tb[i, 0]].scal
    body = tl.emit(0, end, "proj" + var)
    print("h epilogue leftover", len(left), "of", len(it), file=sys.stderr)
    return first_reads, body, left + rest

def gen_kernel():
    b = Block(); b.name = "setup"
    b.e(f"s_cmp_ge_u32 s2, 256\ns_cbranch_scc1 L_end\ns_mov_b32 s{sFB}, 0")
    if OPT.get("shuffle"): b.e("s_and_b32 s3, s2, 7\ns_lshl_b32 s3, s3, 5\ns_lshr_b32 s2, s2, 3\ns_or_b32 s2, s2, s3")
    if OPT.get("delay"): b.e(f"s_mov_b32 s3, {OPT['delay']}\nL_dly:\ns_sub_u32 s3, s3, 1\ns_cmp_lg_u32 s3, 0\ns_cbranch_scc1 L_dly")
    if OPT["stamp"]:
        for i in range(20): b.e(f"s_mov_b32 s{72+i}, 0")
        stamp(b, "start")
    b2 = Block(); b2.name = "setup1"; b_ = b; b = b2
    b.e("L_restart:")
    for sr, off in ((sX, 0), (sW1, 48), (sW3, 56), (sWQ, 24)): b.e(f"s_load_dwordx2 s[{sr}:{sr+1}], s[0:1], {off}")
    T0, T1, T2, T3, T4 = 56, 57, 58, 59, 60
    vl, vc, vg, vi2, vi3 = 61, 62, 63, 22, 23
    b.e("s_getpc_b64 s[100:101]\nL_pc:")
    b.e(f"s_lshr_b32 s{sT}, s2, 3\ns_mul_i32 s{sT2}, s{sT}, 2560\nv_mul_u32_u24 v108, 10, v0\nv_add_u32 v108, s{sT2}, v108\nv_and_b32 v108, 0xffffff80, v108\nv_min_u32 v108, L_code_end-L_pc, v108\nv_mov_b32 v109, s101")
    b.e(f"v_add_co_u32 v108, vcc, s100, v108\nv_lshrrev_b32 v{T0}, 6, v0\nv_and_b32 v{vc}, 15, v0\nv_addc_co_u32 v109, vcc, 0, v109, vcc\nglobal_load_dword v107, v[108:109], off")
    b.e(f"v_readfirstlane_b32 s{sWave}, v{T0}\nv_bfe_u32 v{vg}, v0, 4, 2\ns_and_b32 s{sT}, s{sT}, 3\ns_lshr_b32 s{sQb}, s2, 5")
    b.e(f"s_lshl_b32 s{sW16k}, s{sWave}, 14\ns_lshl_b32 s{sXb}, s{sQb}, 18\ns_lshl_b32 s{sT2}, s{sWave}, 16\ns_add_u32 s{sXb}, s{sXb}, s{sT2}")
    b.e(f"s_lshl_b32 s100, s{sT}, 12\ns_add_u32 s100, s100, s{sW16k}\ns_lshl_b32 s101, s{sT}, 14\ns_add_u32 s101, s101, s{sXb}")
    b.e(f"s_and_b32 s{sHead}, s2, 7\ns_lshl_b32 s{sHead}, s{sHead}, 2\ns_add_u32 s{sHead}, s{sHead}, s{sT}")
    b.e(f"v_xor_b32 v{T0}, v{vg}, v{vc}\nv_lshlrev_b32 v{T0}, 4, v{T0}\nv_lshl_add_u32 v{vDX}, v{vg}, 10, v{T0}")
    for p in range(1, 4): b.e(f"v_xor_b32 v{T2}, {64*p}, v{vDX}\nv_add_u32 v{vDX+p}, {p*3072}, v{T2}")
    b.e(f"s_mov_b32 s{sX+2}, 0x200000\ns_mov_b32 s{sX+3}, 0x20000\ns_waitcnt lgkmcnt(0)")
    stamp(b, "karg")
    b.e(f"s_and_b32 s{sX+1}, s{sX+1}, 0xffff")
    xg = xdma(0); wg = wdma(0)
    emit_grp(b, xg[0])
    for sr, off in ((sK, 8), (sV, 16), (sB, 88), (sH, 88), (sWS, 88), (sDBG, 80), (sWO, 32), (sW2, 64), (sOut, 72)):
        b.e(f"s_load_dwordx2 s[{sr}:{sr+1}], s[0:1], {off}")
    b.e(f"s_and_b32 s{sT2}, s{sHead}, 3\ns_lshr_b32 s3, s{sT2}, 1\ns_add_u32 s{sT}, s3, 8\ns_mul_i32 s3, s3, 3\ns_add_u32 s3, s3, 8\ns_lshl_b32 s{sFs}, s{sT2}, 1\ns_bitcmp1_b32 s2, 0")
    b.e(f"s_cselect_b32 s{sT}, s{sT}, s{sT2}\ns_cselect_b32 s{sFs}, s3, s{sFs}\ns_add_u32 s{sT}, s{sT}, s{sT2}\ns_lshr_b32 s3, s{sHead}, 3\ns_mul_i32 s3, s3, 14\ns_add_u32 s{sT}, s{sT}, s3\ns_lshl_b32 s{sT}, s{sT}, 6")
    ptr_add(b, sW1, f"s{sT}"); ptr_add(b, sW3, f"s{sT}")
    b.e(f"s_sub_u32 s{sT2}, {512*3584}, s{sT}\ns_add_u32 s{sFs}, s{sFs}, s3\ns_add_u32 s{sFs}, s{sFs}, 128\ns_lshl_b32 s{sFs}, s{sFs}, 10")
    srd_fin(b, sW1, f"s{sT2}"); srd_fin(b, sW3, f"s{sT2}")
    b.e(f"s_lshr_b32 s{sBo}, s{sXb}, 14\nv_and_b32 v{vl}, 63, v0")
    b.e(f"v_lshrrev_b32 v{T0}, 2, v{vl}\nv_and_b32 v{T1}, 3, v0\nv_lshl_add_u32 v{T1}, v{T0}, 7, v{T1}\nv_add_u32 v{T1}, s{sBo}, v{T1}\nv_mul_u32_u24 v101, 3584, v{T1}\nv_lshl_add_u32 v103, v{T0}, 26, v101")
    if not OPT.get("noptouch"): b.e(f"buffer_load_dword v105, v103, {SR(sW1)}, 0 offen\nbuffer_load_dword v106, v103, {SR(sW3)}, 0 offen")
    b.e(f"s_lshl_b32 s{sCnt}, s{sQb}, 7\ns_lshl_b32 s{sT2}, s{sHead}, 2\ns_add_u32 s{sCnt}, s{sCnt}, s{sT2}\ns_add_u32 s{sCnt}, s{sCnt}, s{sWave}\nv_lshlrev_b32 v{vL16}, 4, v{vl}")
    for g in (xg[1], xg[2], xg[3])[:OPT.get("nx", 1)]: emit_grp(b, g)
    b.e(f"s_lshl_b32 s{sT}, s{sHead}, 8"); ptr_add(b, sWQ, f"s{sT}"); b.e(f"s_sub_u32 s{sT2}, 0x400000, s{sT}")
    srd_fin(b, sWQ, f"s{sT2}")
    b.e(f"v_lshrrev_b32 v{T0}, 3, v{vl}\nv_bfe_u32 v{T1}, v0, 1, 2\nv_lshl_add_u32 v{T1}, v{T0}, 7, v{T1}\nv_add_u32 v{T1}, s{sBo}, v{T1}\nv_and_b32 v{T2}, 1, v0\nv_lshlrev_b32 v{T2}, 7, v{T2}\nv_lshl_add_u32 v100, v{T1}, 13, v{T2}\nv_lshl_add_u32 v102, v{T0}, 26, v100")
    if OPT.get("q0first"): b.e(f"buffer_load_dword a252, v102, {SR(sWQ)}, 0 offen")
    b.e(f"s_bfe_u32 s{sSp}, s2, 0x20001\ns_lshr_b32 s{sTc}, s2, 6\ns_bfe_u32 s{sTr}, s2, 0x30003\ns_and_b32 s{sT}, s2, 1\ns_lshl_b32 s{sT}, s{sT}, 3\ns_add_u32 s{sTr}, s{sTr}, s{sT}")
    b.e(f"s_lshl_b32 s{sW8k}, s{sWave}, 13\ns_lshl_b32 s{sW4k}, s{sWave}, 12\ns_mul_i32 s{sBo}, s{sBo}, {BSTRIDE}")
    b.e(f"s_lshl_b32 s{sWQo}, s{sWave}, 18\ns_mul_i32 s{sW13o}, s{sWave}, {32*3584}\ns_mov_b32 s{sKo}, s{sW8k}\ns_mov_b32 s{sVo}, s{sW8k}")
    b.e(f"v_mul_u32_u24 v{T0}, 3584, v{T0}\nv_and_b32 v{T1}, 7, v0\nv_and_b32 v{T2}, 1, v{vg}\nv_lshlrev_b32 v{T2}, 1, v{T2}\nv_xor_b32 v{T1}, v{T1}, v{T2}")
    for p in range(4): b.e(f"v_xor_b32 v{T2}, {4*(p&1)}, v{T1}\nv_lshl_add_u32 v{T2}, v{T2}, 4, v{T0}\nv_add_u32 v{vD13+p}, {p*27648}, v{T2}")
    b.e(f"v_lshlrev_b32 v{T0}, 2, v{vg}\nv_xor_b32 v{T0}, v{vc}, v{T0}\nv_lshlrev_b32 v{T0}, 4, v{T0}\nv_lshl_add_u32 v{vDQ}, v{vg}, 13, v{T0}")
    for p in range(1, 4): b.e(f"v_add_u32 v{vDQ+p}, {p*31744}, v{vDQ}")
    b.e("s_waitcnt lgkmcnt(0)")
    late = [xg[1], xg[2], xg[3], wg[0], wg[1]][OPT.get("nx", 1):]
    if OPT.get("wfirst"): late = late[-2:] + late[:-2]
    stamp(b, "a1")
    c = Block(); c.name = "setup2"
    c.e(f"s_lshl_b32 s{sT}, s{sHead}, 19"); ptr_add(c, sK, f"s{sT}"); ptr_add(c, sV, f"s{sT}")
    srd_fin(c, sK, 0x80000); srd_fin(c, sV, 0x80000)
    wso = OPT.get("wsoff", 0) << 20
    if wso: ptr_add(c, sWS, wso)
    ptr_add(c, sB, WS_B + wso); ptr_add(c, sH, WS_B + wso); srd_fin(c, sB, 128 * BSTRIDE)
    srd_fin(c, sH, 0)
    srd_fin(c, sWS, 0x28000); srd_fin(c, sDBG, 256); srd_fin(c, sOut, 0x200000)
    srd_fin(c, sWO, 0 if OPT.get("noA") else 4096 * 1024); srd_fin(c, sW2, 0 if OPT.get("noA") else 1792 * 1024)
    c.e(f"v_bfe_u32 v{vi2}, v0, 2, 2\nv_and_b32 v{vi3}, 3, v0")
    c.e(f"v_lshl_add_u32 v{T0}, v{vg}, 3, v{vi2}\nv_lshlrev_b32 v{T1}, 8, v{T0}\nv_lshl_add_u32 v{T1}, v{vi3}, 4, v{T1}\nv_add_u32 v{T1}, {L_SP}, v{T1}\nv_xor_b32 v{T3}, s{sWave}, v{vi2}")
    for i in range(4): c.e(f"v_xor_b32 v{T2}, {i}, v{T3}\nv_lshl_add_u32 v{vWQA+i}, v{T2}, 6, v{T1}")
    c.e(f"v_lshlrev_b32 v{T1}, 7, v{T0}\nv_lshl_add_u32 v{T1}, v{vi3}, 3, v{T1}\nv_add_u32 v{T1}, {L_V}, v{T1}")
    c.e(f"v_and_b32 v{T3}, 1, v{vg}\nv_lshlrev_b32 v{T3}, 1, v{T3}\nv_lshrrev_b32 v{T4}, 1, v{vi2}\nv_or_b32 v{T3}, v{T3}, v{T4}")
    c.e(f"s_and_b32 s3, s{sHead}, 1\ns_sub_u32 s{sT2}, 2, s3\ns_lshl_b32 s3, s3, 1\ns_and_b32 s{sT}, s{sWave}, 1\ns_or_b32 s{sT}, s{sT}, s3\ns_xor_b32 s3, s{sWave}, 2\ns_bitcmp1_b32 s2, 0\ns_cselect_b32 s{sT}, s{sT}, s{sWave}\ns_cselect_b32 s{sT2}, s{sT2}, s3")
    for i in (0, 2): c.e(f"v_xor_b32 v{T2}, s{sT2 if i else sT}, v{T3}\nv_lshl_add_u32 v{vW13A+i}, v{T2}, 5, v{T1}\nv_xor_b32 v{vW13A+i+1}, 32, v{vW13A+i}")
    for r in range(8): c.e(f"v_mov_b32 v{176+r}, 0")
    for r in range(4): c.e(f"v_accvgpr_write_b32 a{aCHK+r}, -1")
    c.e(f"v_xor_b32 v{T0}, v{vg}, v{vc}\nv_lshlrev_b32 v{T1}, 8, v{vc}\nv_add_u32 v{T3}, s{sW16k}, v{T1}\ns_lshl_b32 s{sT}, s{sWave}, 2")
    for i in range(4): c.e(f"v_xor_b32 v{T2}, {4*i}, v{T0}\nv_lshl_add_u32 v{vXA+i}, v{T2}, 4, v{T3}\nv_xor_b32 v{T2}, s{sT}, v{T2}\nv_lshl_add_u32 v{vKA+i}, v{T2}, 4, v{T1}")
    c.e(f"v_lshl_add_u32 v{T0}, v{vg}, 2, v{vi2}\nv_lshlrev_b32 v{T1}, 8, v{T0}\nv_lshl_add_u32 v{T1}, v{vi3}, 3, v{T1}\nv_add_u32 v{T1}, {L_V}, v{T1}\nv_and_b32 v{T0}, 7, v{T0}")
    for dt in range(8): c.e(f"v_xor_b32 v{T2}, {dt}, v{T0}\nv_lshl_add_u32 v{vVA+dt}, v{T2}, 5, v{T1}")
    c.e(f"v_lshlrev_b32 v{T1}, 8, v{vg}\nv_xor_b32 v{T0}, v{vg}, v{vc}")
    for p in range(4): c.e(f"v_xor_b32 v{T2}, {4*p}, v{T0}\nv_lshl_add_u32 v{vDK+p}, v{T2}, 4, v{T1}")
    c.e(f"v_lshlrev_b32 v{T0}, 1, v{vg}\nv_xor_b32 v{T0}, v{T0}, v{vc}")
    for p in range(2): c.e(f"v_xor_b32 v{T2}, {8*p}, v{T0}\nv_lshl_add_u32 v{vDV+p}, v{T2}, 4, v{T1}")
    if OPT.get("half1"): c.e(f"v_bfe_u32 v{T0}, v0, 1, 1\nv_add_u32 v{T0}, -1, v{T0}\nv_and_b32 v{T0}, 0x3f803f80, v{T0}")
    else: c.e(f"v_mov_b32 v{T0}, 0x3f803f80")
    for i in range(4): c.e(f"v_accvgpr_write_b32 a{aONES+i}, v{T0}")
    c.e(f"s_lshl_b32 s{sT}, s{sQb}, 5\nv_and_b32 v51, 7, v0\nv_lshlrev_b32 v51, 5, v51\ns_cmp_eq_u32 s{sFB}, 0\ns_cselect_b32 s{sT}, s{sT}, {OOB}")
    c.e(f"v_mov_b32 v{T0}, {OOB}\nv_mov_b32 v{T1}, s{sT}\nv_cmp_eq_u32 vcc, 0, v0\nv_mov_b32 v49, 1\nv_cndmask_b32 v48, v{T0}, v{T1}, vcc")
    c.e(f"s_lshl_b32 s{sT}, s{sQb}, 5\ns_add_u32 s{sT}, s{sT}, s{sHead}\ns_lshl_b32 s{sT}, s{sT}, 7\ns_add_u32 s{sT}, s{sT}, {WS_FH}\ns_cmp_eq_u32 s{sFB}, 0\ns_cselect_b32 s{sT}, s{sT}, {OOB >> 1}")
    c.e(f"s_and_b32 s{sT2}, s{sHead}, 7\ns_mul_i32 s{sT2}, s{sT2}, 124\ns_sub_u32 s{sT2}, {WS_FO-WS_FH}, s{sT2}\nv_mov_b32 v{T2}, s{sT}\nv_mad_u32_u24 v{T1}, v0, s{sT2}, v{T2}\nv_cmp_gt_u32 vcc, 2, v0\nv_mov_b32 v55, 0\nv_cndmask_b32 v53, v{T0}, v{T1}, vcc")
    c.e(f"s_lshr_b32 s{sT}, s{sXb}, 7\nv_lshlrev_b32 v52, 3, v{vc}\nv_add_u32 v52, s{sT}, v52")
    c.e(f"s_lshl_b32 s{sT}, s{sWave}, 7\nv_lshlrev_b32 v54, 4, v{vg}\nv_add_u32 v54, s{sT}, v54\nv_add_u32 v54, {L_K+32768}, v54\ns_add_u32 s{sT}, s{sT}, {L_K+32768}\nv_lshl_add_u32 v21, v{vc}, 2, s{sT}")
    for i in range(4): c.e(f"v_accvgpr_write_b32 a{aZ+i}, 0")
    c.e(f"v_and_b32 v{vIDX}, 1, v0\nv_mul_u32_u24 v{vIDX}, 0xaaaa, v{vIDX}\nv_add_u32 v{vIDX}, 0x4444, v{vIDX}")
    c.e(f"v_mfma_f32_32x32x16_bf16 {A(aL,16)}, {A(aZ,4)}, {A(aZ,4)}, 0")
    stamp(c, "a2")
    c.e(f"s_lshl_b32 s{sT2}, s{sCnt}, 4\nv_lshrrev_b32 v{T2}, 5, v{vl}\nv_lshl_add_u32 v{T1}, v{T2}, 3, s{sT2}\nv_lshl_add_u32 v{T2}, v{T2}, 9, v{vL16}\nv_and_b32 v{T3}, 31, v0\nv_cmp_eq_u32 vcc, 0, v{T3}\nv_cndmask_b32 v{T1}, v{T0}, v{T1}, vcc")
    c.e("v_mov_b32 v22, v102\nv_mov_b32 v23, v103\nv_accvgpr_write_b32 a254, v108\nv_accvgpr_write_b32 a255, v109")
    c.e("v_mov_b32 v60, v108\nv_mov_b32 v61, v109")
    su_ = c.ins; c.ins = []
    rd_scc = lambda x: x.op.startswith(("s_addc", "s_subb", "s_cselect", "s_cbranch"))
    wr_scc = lambda x: x.kind == "salu" and not x.op.startswith(("s_mov", "s_mul", "s_cselect"))
    def scc_live(k):
        for x in su_[k:]:
            if rd_scc(x): return True
            if wr_scc(x): return False
        return False
    lq = [[Ins(y.text.replace(f"s{sT}", "s95" if False else f"s{sOut+2}"), tag=y.tag) for y in ([*g[0], x] if x is g[1][0] else [x])] for g in late for x in g[1]]
    nxt_ = OPT.get("il0", 60); per = OPT.get("ilp", 10)
    outfin = [x for x in su_ if f"s{sOut+2}" in x.writes]; su_ = [x for x in su_ if x not in outfin]
    for k_, x in enumerate(su_):
        if lq and k_ >= nxt_ and not (len(lq[0]) > 1 and scc_live(k_)): c.ext(lq.pop(0)); nxt_ = k_ + per
        c.add(x)
    for q in lq: c.ext(q)
    c.ext(outfin)
    def pre_items(blk):
        for n in OPT["pre"].split():
            if n == "Q0": blk.e(f"buffer_load_dword a252, v22, {SR(sWQ)}, 0 offen")
            if n == "G1": blk.e(f"s_mov_b32 s{sT}, {128*3584}\nbuffer_load_dword a252, v23, {SR(sW1)}, s{sT} offen\nbuffer_load_dword a252, v23, {SR(sW3)}, s{sT} offen")
            if n == "S":
                blk.e(f"s_lshl_b32 s{sT}, s{sCnt}, 11")
                for r in range(2): blk.e(f"buffer_load_dwordx4 {V(72+4*r,4)}, v{T2}, {SR(sX)}, s{sT} offen offset:{512*r}", tag="SR")
        blk.e(f"buffer_store_dword v55, v53, {SR(sWS)}, 0 offen sc1")
    if not OPT.get("prelate", 1): pre_items(c)
    stamp(c, "a4")
    c_ = c; c = Block(); c.wait(vm="SR")
    X = lambda k: 88 + k + (8 if k >= 8 else 0)
    for k in range(8): c.e(f"v_lshlrev_b32 v{X(2*k)}, 16, v{72+k}\nv_and_b32 v{X(2*k+1)}, 0xffff0000, v{72+k}")
    def wred(d):
        c.e("v_add_f32 v120, v120, v121")
        for sh in (8, 4, 2, 1): c.e(f"v_add_f32_dpp v120, v120, v120 row_ror:{sh} row_mask:0xf bank_mask:0xf")
        c.e(f"v_mov_b32 v121, v120\nv_permlane16_swap_b32 v121, v120\nv_add_f32 v120, v120, v121\nv_mul_f32 v{d}, {f32(1/512)}, v120")
    for k in range(7):
        for r in range(2): c.e(f"v_add_f32 v{120+r}, v{X(8*r+k+1)}, v{X(8*r) if k == 0 else (120+r)}")
    wred(122)
    for k in range(16): c.e(f"v_sub_f32 v{X(k)}, v{X(k)}, v122")
    for k in range(8):
        for r in range(2): c.e(f"v_mul_f32 v{120+r}, v{X(8*r)}, v{X(8*r)}" if k == 0 else f"v_fmac_f32 v{120+r}, v{X(8*r+k)}, v{X(8*r+k)}")
    wred(123)
    def rnd(r): c.e(f"v_cvt_pk_bf16_f32 v{r}, v{r}, v{r}\nv_and_b32 v{r}, 0xffff0000, v{r}")
    rnd(122); rnd(123); c.e(f"v_add_f32 v123, {f32(1e-5)}, v123"); rnd(123); c.e("v_sqrt_f32 v123, v123"); rnd(123); c.e("v_mul_f32 v123, v123, v123")
    c.e(f"buffer_store_dwordx2 v[122:123], v{T1}, {SR(sWS)}, 0 offen sc1", tag="ST")
    st_ = [x for x in c.ins if x.kind != "nop"]; c = c_
    def stats():
        w_ = W(vm="SR"); w_.guards = {f"v{72+k}" for k in range(8)}
        return [w_] + [Ins(x.text, tag=x.tag) for x in st_[1:]]
    PJ = {}
    for var in "FS":
      first_reads, proj, hleft = gen_proj(stats(), var)
      e = Block(); e.name = "projepi"
      stamp(e, "projend")
      for i in range(4): e.e(f"v_xor_b32 v{24+i}, {128*i}, v30")
      def cq(i): return [Ins(f"ds_read_b128 {V(48+8*(i&1)+4*hf,4)}, v{24+i} offset:{64*hf}", tag=f"CQ{i}") for hf in range(2)]
      e.ext(cq(0) + cq(1))
      nfirst = [k for k, x in enumerate(hleft) if x.kind == "vstore"][0] + 1
      e.ext(hleft[:nfirst]); hleft = hleft[nfirst:]
      H = 192
      for ds in range(4):
          e.wait(lgkm=f"CQ{ds}")
          for t in range(4):
              d = Q(t, ds); h = H + 16 * (t & 1); o = t & 1; nm, aq = V(vNMU + t - o, 2), V(vAQ + t - o, 2); CS = 48 + 8 * (ds & 1)
              for k in range(4): e.e(f"v_accvgpr_read_b32 v{h+k}, a{128+(t*4+ds)*4+k}")
              prs = [(d, CS), (d + 2, CS + 2), (h, CS + 4), (h + 2, CS + 6)]
              for x, cs in prs: e.e(f"v_pk_fma_f32 {V(x,2)}, {V(cs,2)}, {nm}, {V(x,2)} op_sel:[0,{o},0] op_sel_hi:[1,{o},1]")
              for x, cs in prs:
                if OPT.get("bQ"): e.e(f"v_pk_fma_f32 {V(x,2)}, {V(x,2)}, {aq}, {aq} op_sel:[0,{o},{o}] op_sel_hi:[1,{o},{o}] neg_lo:[0,0,1] neg_hi:[0,0,1]")
                else: e.e(f"v_pk_mul_f32 {V(x,2)}, {V(x,2)}, {aq} op_sel:[0,{o}] op_sel_hi:[1,{o}]")
              for k, (x, cs) in enumerate(prs): e.e(f"v_cvt_pk_bf16_f32 v{d+k}, v{x}, v{x+1}")
          if ds < 2: e.ext(cq(ds + 2))
      PM = 48
      ch = [MF(V(PM + 4 * t, 4), A(KF(0, ds), 4), V(Q(t, ds), 4), "0" if n == 0 else V(PM + 4 * t, 4)) for t in range(4) for n, ds in enumerate(snake(t))]
      run = 0
      for k, x in enumerate(hleft):
          run = run + 1 if x.kind == "trans" else 0
          if ch and x.kind == "trans" and 3 <= run <= 5: e.add(ch.pop(0))
          e.add(x)
      e.ext(ch)
      h_ = Block(); h_.name = "projhead"
      if var == "F": h_.e("L_proj_F:")
      if not OPT.get("wfirst"): h_.wait(vm="DX0"); h_.ext(xreads(0))
      if OPT.get("prelate", 1) == 1: pre_items(h_)
      h_.wait(vm="DW0"); stamp(h_, "a6"); h_.e("s_barrier"); h_.ext(first_reads)
      if OPT.get("prelate", 1) == 2: pre_items(h_)
      if OPT.get("wfirst"): h_.wait(vm="DX0"); h_.ext(xreads(0))
      h_.wait(lgkm=["W0", "X0"]); stamp(h_, "p0")
      e.e("s_cmp_eq_u32 0, 0")
      if var == "F": e.e("s_branch L_proj_join")
      PJ[var] = [h_, proj, e]
    stamp(c, "a5")
    for _ in range(OPT.get("pad1", 0)): c.e("s_nop 0")
    c.e("s_bitcmp1_b32 s2, 0\ns_cbranch_scc0 " + ("L_proj_join" if OPT.get("warm", 1) else "L_proj_F"))
    e = Block(); e.name = "join"; e.e("L_proj_join:\ns_cbranch_scc0 L_proj_F")
    e.e(f"s_cmp_lg_u32 s{sFB}, 0\ns_cbranch_scc1 L_truemax")
    e2 = Block(); e2.name = "premax"
    def rowmax_finish(blk, src, dl=0):
        for sw in ("32", "16"):
            for t in range(4): blk.e(f"v_mov_b32 v{vT+t}, v{src(t)}")
            for t in range(4): blk.e(f"v_permlane{sw}_swap_b32 v{vT+t}, v{src(t)}")
            for t in range(4): blk.e(f"v_max_f32 v{src(t) if sw == '32' else vT+t}, v{src(t)}, v{vT+t}")
        for t in range(4):
            for r in range(4): blk.e(f"v_sub_f32 v{vNM+4*t+r}, {f32(-dl) if dl else 0}, v{vT+t}")
    for t in range(4):
        s0 = PM + 4 * t
        e2.e(f"v_max3_f32 v{s0}, v{s0}, v{s0+1}, v{s0+2}\nv_max_f32 v{s0}, v{s0}, v{s0+3}")
    rowmax_finish(e2, lambda t: PM + 4 * t, OPT.get('dl', 0))
    if OPT.get("nmc") is not None:
        e2.ins = e2.ins[:-16] + II("\n".join(f"v_mov_b32 v{vNM+r}, {f32(OPT['nmc'])}" for r in range(16)))
    a_, b_2, c_2, d_, e_2, f_ = sBs[0], sBs[1], sBs[2], sBs[3], sHp[2], sHp[3]
    li = II(f"""s_lshl_b32 s{c_2}, s{sQb}, 13
s_add_u32 s{c_2}, s{c_2}, 32768
s_sub_u32 s{c_2}, s{c_2}, s{sW8k}
s_lshr_b32 s{a_}, s2, 3
s_mul_i32 s{b_2}, s{a_}, {14*1024}
s_lshl_b32 s{a_}, s{a_}, 15
s_lshl_b32 s3, s{sSp}, 20
s_add_u32 s{a_}, s{a_}, s3
s_mul_i32 s3, s{sSp}, {448*1024}
s_add_u32 s{b_2}, s{b_2}, s3
s_lshl_b32 s{d_}, s{sQb}, 5
s_add_u32 s{d_}, s{d_}, s{sHead}
s_lshl_b32 s{d_}, s{d_}, 7
s_add_u32 s{d_}, s{d_}, {WS_FH}
s_lshr_b32 s{e_2}, s{sTr}, 1
s_lshl_b32 s{e_2}, s{e_2}, 2
s_add_u32 s{e_2}, s{e_2}, s{sSp}
s_lshl_b32 s{e_2}, s{e_2}, 10
s_add_u32 s{e_2}, s{e_2}, {WS_FH}
s_mul_i32 s{f_}, s{sTc}, 3584
v_and_b32 v28, 15, v0
v_lshrrev_b32 v29, 6, v0
v_lshl_add_u32 v28, v29, 4, v28
v_bfe_u32 v29, v0, 4, 2
v_lshlrev_b32 v29, 29, v29
v_lshl_add_u32 v29, v28, 7, v29
v_add_u32 v28, s{c_2}, v29
""" + (f"s_sub_u32 s{sT}, s{sKo}, 32768\nbuffer_load_dword a252, v28, {SR(sK)}, s{sT} offen\n" if OPT.get("l0t", 0) & 1 else "") + (f"buffer_load_dword a252, v28, {SR(sV)}, s{sW8k} offen\n" if OPT.get("l0t", 0) & 2 else "") + f"""buffer_load_dword a252, v28, {SR(sV)}, s{sVo} offen
v_bfe_u32 v30, v0, 4, 1
v_mul_u32_u24 v30, 0xffff, v30
v_lshlrev_b32 v30, 13, v30
v_sub_u32 v30, v29, v30
v_add_u32 v30, s{a_}, v30
v_add_u32 v29, s{b_2}, v29
v_lshl_add_u32 v21, v0, 18, s{d_}
v_mov_b32 v22, 1
v_and_b32 v23, 7, v0
v_lshl_add_u32 v23, v23, 7, s{e_2}
v_and_b32 v24, 8, v0
v_cmp_eq_u32 vcc, 0, v24
v_and_b32 v24, 3, v0
v_lshlrev_b32 v24, 10, v24
v_xor_b32 v24, s{d_}, v24
v_cndmask_b32 v23, v24, v23, vcc
v_cndmask_b32 v31, 7, v22, vcc
v_and_b32 v27, 31, v0
v_min_u32 v27, 27, v27
v_lshl_add_u32 v27, v27, 7, s{f_}
v_bfe_u32 v26, v0, 5, 1
v_mul_u32_u24 v26, {BSTRIDE}, v26
v_add_u32 v27, v27, v26
v_accvgpr_read_b32 v24, a254
v_accvgpr_read_b32 v25, a255
s_mov_b32 s{sCnt}, 7
s_mov_b32 s{sTW}, 0
s_mov_b32 s{sT2W}, 0""")
    first, even, odd, last = gen_attention(li)
    l0 = Block(); l0.e("L_att_start:")
    if OPT.get("bO"):
        hx = int(f32(1.5 * 2.0 ** (OPT["bO"] - 4)), 16) >> 16
        for r in range(4): l0.e(f"v_mov_b32 v{252+r}, {hex(hx * 0x10001)}")
    stamp(l0, "att0")
    l1 = Block(); stamp(l1, "loop")
    l1b = Block(); l1b.e(".p2align 6\n" + "s_nop 0\n" * OPT.get("pad3", 0) + "L_att_loop:")
    l4 = Block(); l4.e("L_att_last:"); stamp(l4, "last")
    for _ in range(OPT.get("pad2", 0)): l4.e("s_nop 0")
    if OPT.get("loopstamp"):
        l1b.e(f"s_memtime s[96:97]\ns_mov_b32 m0, s{sCnt}\ns_waitcnt lgkmcnt(0)\nv_writelane_b32 v31, s96, m0")
        for i in range(8): l4.e(f"v_readlane_b32 s{74+2*i}, v31, {7-i}\nv_readlane_b32 s{75+2*i}, v31, {7-i}")
    f = Block(); f.name = "check"
    stamp(f, "attend")
    vRL = vNM
    for _ in range(min(OPT.get("osf", 2), len(OSTORES))): emit_grp(f, OSTORES.pop(0))
    f.add(last.tailchk)
    f.e(f"s_mov_b32 s{sT}, {f32(2.0**OPT.get('lmax', 100))}")
    f.e(f"v_max3_f32 v{vT}, v{vRL+4}, v{vRL+5}, v{vRL+6}\nv_max_f32 v{vT}, v{vT}, v{vRL+7}\nv_accvgpr_read_b32 v{vT+1}, a{aCHK}")
    f.e(f"v_add_f32 v{vT}, v{vT}, v{vT+1}\nv_cmp_nlt_f32 vcc, v{vT}, s{sT}")
    f.e(f"s_cmp_lg_u64 vcc, 0\ns_cselect_b32 s{sT}, 1, 0")
    f.e(f"v_mov_b32 v{vT}, s{sT}\nv_and_b32 v{vT+1}, 3, v0\nv_lshlrev_b32 v{vT+1}, 12, v{vT+1}\ns_add_u32 s{sT}, s{sWave}, {7*4096}\ns_lshl_b32 s{sT}, s{sT}, 2\nv_add_u32 v{vT+1}, s{sT}, v{vT+1}")
    f.e(f"ds_write_b32 v{vT+1}, v{vT}", tag="VW"); f.e(f"s_add_u32 s{sT}, s{sM}, {7*16384}\nv_mov_b32 v{vT+1}, s{sT}")
    if OSTORES: emit_grp(f, OSTORES.pop(0))
    f.e(f"s_lshl_b32 s{sT}, s{sWave}, 6\ns_or_b32 s{sT}, s{sT}, {L_V}\ns_and_b32 s{sT2}, s{sTr}, 1\ns_lshl_b32 s{sT2}, s{sT2}, 12")
    for v in range(2): f.e(f"v_xor_b32 v{vRAs+v}, s{sT}, v{vVA+v}")
    for st in (1, 2):
        for v in range(2): f.e(f"v_add_u32 v{vRAs+2*st+v}, {st*65536}, v{vRAs+v}")
    for st in range(3):
        for v in range(2): f.e(f"v_xor_b32 v{vRAg+4*st+v}, s{sT2}, v{vRAs+2*st+v}\nv_xor_b32 v{vRAg+4*st+2+v}, 0x1000, v{vRAg+4*st+v}")
        f.e(f"v_add_u32 v{vRB[st]}, {st*65536}, v{vL16}")
    while OSTORES: emit_grp(f, OSTORES.pop(0))
    fpos = len(f.ins)
    f.wait(lgkm="VW", vm=[f"U{u}" for u in RD[-1]] + (["OS"] if OPT["flagstage"] < 0 else [])); f.e("s_barrier")
    f.e(f"ds_read_b128 v[2:5], v{vT+1}", tag="FL")
    for u in RD[-1]: f.ext(ureads(u))
    f.wait(lgkm="FL")
    f.e(f"v_or_b32 v2, v2, v3\nv_or3_b32 v2, v2, v4, v5\nv_readfirstlane_b32 s{sT}, v2")
    f.e(f"s_andn2_b32 s{sT}, s{sT}, s{sFB}\ns_cmp_lg_u32 s{sT}, 0\n" + ("" if OPT.get("nofb") else "s_cbranch_scc1 L_fallback"))
    k = Block(); k.name = "tail"
    stamp(k, "tail0")
    su = II(f"""s_and_b32 s{sT}, s{sHead}, 7
s_mul_i32 s{sT}, s{sT}, 124
s_sub_u32 s{sT}, {WS_FO-WS_FH}, s{sT}
v_add_u32 v26, s{sT}, v21
v_mov_b32 v25, 1
v_and_b32 v{vPA}, 7, v0
s_lshr_b32 s{sT}, s{sTr}, 1
s_lshl_b32 s{sT}, s{sT}, 2
s_add_u32 s{sT}, s{sT}, s{sSp}
s_lshl_b32 s{sT}, s{sT}, 10
s_add_u32 s{sT}, s{sT}, {WS_FO}
v_lshl_add_u32 v{vPA}, v{vPA}, 2, s{sT}
s_add_u32 s100, s{sWS}, s{sT}
s_addc_u32 s101, s{sWS+1}, 0
v_and_b32 v27, 3, v0
v_lshlrev_b32 v27, 4, v27
v_bfe_u32 v24, v0, 2, 4
v_lshl_add_u32 v27, v24, 10, v27""")
    nU = 10
    if OPT["flagstage"] < 0:
        su = [Ins(x.text.replace("v25", "v22").replace("v24", "v28")) for x in su]
        f.ins[fpos:fpos] = su; su = []
        k.e(f"buffer_store_dword v22, v26, {SR(sWS)}, 0 offen sc1")
    for n in range(10):
        if n not in EARLY: emit_grp(k, udma(n))
    k.ext(su)
    k.wait(lgkm="R")
    ldf = f"buffer_load_dword v{vPoll}, v{vPA}, {SR(sWS)}, 0 offen sc1"
    allset = f"v_cmp_eq_u32 vcc, 0, v{vPoll}\ns_nop 0\ns_cmp_eq_u64 vcc, 0"
    polled = False
    def take(n):
        nonlocal nU
        if n > 21: return []
        limit = min(RD[max(m for m in range(n + 1) if m - 7 not in OPT.get("nobs", ()))][0] + 10, len(UNITS))
        r = []
        while nU < limit:
            kd, a_ = UNITS[nU]
            if kd == "Bs" and not (polled and (a_ < 4 or n - 7 >= OPT["bsat"][a_])): break
            r.append(udma(nU)); nU += 1
        return r
    def pack(src, dst): return II("\n".join(f"v_cvt_pk_bf16_f32 v{dst+r}, v{src+2*r}, v{src+2*r+1}" for r in range(8)) + "\n" + "\n".join(f"v_min_u32 v{dst+r}, -2, v{dst+r}" for r in range(8)))
    def xst(which, lam, reg):
        return (II(f"s_xor_b32 s{sCnt}, s{sXR}, {lam*65536 + (which*4+lam)*8192}"),
                [Ins(f"buffer_store_dwordx4 {V(reg+4*m,4)}, v{vL16}, {SR(sXP)}, s{sCnt} offen offset:{m*1024} sc1") for m in range(2)], [])
    def xld(which, lam, tag, so=sCnt):
        if OPT.get("xdummy") == 2: return (II(f"s_mov_b32 s{so}, 0x40000000"), [Ins(f"buffer_load_dwordx4 {V(IN(which,lam)+4*m,4)}, v{vL16}, {SR(sXP)}, s{so} offen offset:{m*1024} sc1", tag=tag) for m in range(2)], [])
        if OPT.get("xdummy") == 1: return (II(f"s_add_u32 s{so}, s{sBo}, {(which*4+lam-1)*2048 % 4096 + ((which*4+lam-1)//2)*BSTRIDE}"), [Ins(f"buffer_load_dwordx4 {V(IN(which,lam)+4*m,4)}, v{vL16}, {SR(sB)}, s{so} offen offset:{m*1024} sc1", tag=tag) for m in range(2)], [])
        return (II(f"s_add_u32 s{so}, s{sXR}, {(which*4+lam)*8192}"),
                [Ins(f"buffer_load_dwordx4 {V(IN(which,lam)+4*m,4)}, v{vL16}, {SR(sXP)}, s{so} offen offset:{m*1024} sc1", tag=tag) for m in range(2)], [])
    IN = lambda which, lam: ACG(2 * lam, 0) + (0 if which else 8)
    def arrived(name, parts):
        regs = [IN(w_, l_) + r for w_, l_ in parts for r in range(8)]
        t = f"v_max3_u32 v28, v{regs[0]}, v{regs[1]}, v{regs[2]}\nv_max3_u32 v29, v{regs[3]}, v{regs[4]}, v{regs[5]}\n"
        for m in range(6, len(regs), 2): t += f"v_max3_u32 v{28+(m>>1)%2}, v{28+(m>>1)%2}, v{regs[m]}, v{regs[m+1]}\n"
        t += "v_max_u32 v28, v28, v29\nv_cmp_eq_u32 vcc, -1, v28\ns_nop 0\ns_cmp_eq_u64 vcc, 0"
        ld = "\n".join(x.text for w_, l_ in parts for g in [xld(w_, l_, None, sT)] for x in g[0] + g[1])
        r = poll_check(name, 0, ld, t)
        return r[:-5], r[-5:]
    G0, S0 = ACG(0, 0), ACS(2, 0)
    def unp(src, dst): return II("\n".join(f"v_lshlrev_b32 v{dst(2*r)}, 16, v{src+r}\nv_and_b32 v{dst(2*r+1)}, 0xffff0000, v{src+r}" for r in range(8)))
    gm = []
    for lam in (1, 2, 3):
        for h_ in range(2):
            for r in range(4): gm += II(f"v_lshlrev_b32 v{2+2*r}, 16, v{IN(1,lam)+4*h_+r}\nv_and_b32 v{3+2*r}, 0xffff0000, v{IN(1,lam)+4*h_+r}")
            for r in range(8): gm += II(f"v_add_f32 v{G0+8*h_+r}, v{G0+8*h_+r}, v{2+r}")
    nsum = len(gm)
    for h_ in range(2):
        g_ = lambda r: G0 + 8 * h_ + r
        for r in range(8): gm += II(f"v_mul_f32 v{2+r}, {f32(-LOG2E)}, v{g_(r)}")
        for r in range(8): gm += II(f"v_exp_f32 v{2+r}, v{2+r}") + (II(f"v_add_f32 v{r}, 1.0, v{r}") if r >= 2 else [])
        for r in range(8): gm += II(f"v_rcp_f32 v{2+r}, v{2+r}") + II(f"v_add_f32 v{8+r}, 1.0, v{8+r}" if r < 2 else f"v_mul_f32 v{g_(r-2)}, v{g_(r-2)}, v{r}")
        for r in (6, 7): gm += II(f"v_mul_f32 v{g_(r)}, v{g_(r)}, v{2+r}")
    nrest = len(gm) - nsum
    ta = II(f"""v_and_b32 v10, 15, v0
v_bfe_u32 v11, v0, 4, 2
v_and_b32 v18, 7, v0
v_xor_b32 v11, v11, v18
v_lshlrev_b32 v10, 7, v10
v_lshl_add_u32 v10, v11, 4, v10
v_add_u32 v10, s{sM}, v10
v_xor_b32 v11, 64, v10
v_and_b32 v18, 3, v0
v_lshlrev_b32 v18, 1, v18
v_bfe_u32 v19, v0, 2, 3
v_xor_b32 v18, v18, v19
v_bfe_u32 v19, v0, 2, 4
v_lshlrev_b32 v19, 7, v19
v_lshl_add_u32 v18, v18, 4, v19
v_add_u32 v18, s{sM}, v18
v_xor_b32 v19, 16, v18""")
    XR = IN(1, 1)
    at = lambda tl, y: max(q for q, gp in enumerate(tl.g) if any(x is y for x in gp.vec))
    for n in range(23):
        i = n - 7
        stamp(k, f"g{n}" if n < 7 else f"s{i}")
        tl = TL()
        if n < 7:
            for c_, j in enumerate((2, 3, 4, 5, 6, 7, 0, 1) if n == 6 else range(8)):
                for v in ((0, 1) if c_ % 2 == 0 else (1, 0)):
                    d = V(ACG(j, v), 4)
                    for m, ks in enumerate((0, 1) if v == (c_ & 1) else (1, 0)):
                        tl.add(MF(d, R(*AG(n, v, ks), 4), V(BF(n, j * 2 + ks), 4), OPT.get("bg", "0") if (n == 0 and m == 0) else d))
        else:
            for e_ in range(2):
                for v in ((0, 1) if e_ == 0 else (1, 0)):
                    d = V(ACS(2 * ((i >> 2) & 1) + e_, v), 4)
                    for m, ks in enumerate(range(8) if v == e_ else range(7, -1, -1)):
                        tl.add(MF(d, A(AS(v, (i & 3) * 8 + ks), 4), V(BF(n, e_ * 8 + ks), 4), OPT.get("bs", "0") if (i in (0, 4, 8) and m == 0) else d))
        bar = bool(RD[n]) and i not in OPT.get("nobs", ())
        need = []
        if bar:
            m = n
            while True:
                need += RD[m]; m += 1
                if m > 21 or m - 7 not in OPT.get("nobs", ()): break
        grp = []; vm = [f"U{u}" for u in need]
        assert all(u < nU for u in need), n
        if n == OPT["flagstage"]: vm.append("OS"); grp.append(([], II(f"buffer_store_dword v25, v26, {SR(sWS)}, 0 offen sc1"), []))
        ck = None
        if i == OPT["gck"]: vm.append("IG"); ck = arrived("g", [(1, 1), (1, 2), (1, 3)])
        if i == 11: vm.append("I1"); ck = arrived("s1", [(0, 1)])
        f2 = OPT.get("fin2")
        if i == 15 and not f2: vm.append("I2"); ck = arrived("s2", [(0, 2)])
        if vm: tl.scal_at(0, W(vm=vm))
        span = n == OPT["pollstage"] and OPT["polld"] == 2
        if bar: tl.scal_at(1, Ins("s_barrier"))
        if RD[n]: tl.scal_at(31, W(lgkm="R") if not span else Ins("s_waitcnt lgkmcnt(2)"))
        lo = 3
        if n == OPT["pollstage"]: tl.scal_at(OPT.get("pollgap", 2), Ins(f"s_load_dwordx8 s[{sK}:{sK+7}], s[100:101], 0 glc", tag="R"))
        if n == OPT["pollstage"] + OPT["polld"]:
            pc = poll_check("o", vPoll, ldf, allset)
            g = tl.g[2]; g.load += 2; polled = True; lo = 5
            g.vec += II(f"s_and_b64 s[{sK}:{sK+1}], s[{sK}:{sK+1}], s[{sK+2}:{sK+3}]\ns_and_b64 s[{sK+4}:{sK+5}], s[{sK+4}:{sK+5}], s[{sK+6}:{sK+7}]\ns_and_b64 s[{sK}:{sK+1}], s[{sK}:{sK+1}], s[{sK+4}:{sK+5}]\ns_and_b32 s{sK}, s{sK}, s{sK+1}") + pc[-2:]
        pk = []
        pw = OPT.get("pw2", 1)
        if n == 6: pk = [(11, 21, pack(ACG(2, 0), ACG(2, 0)))] if not pw else [(11, 31, pack(ACG(2, 0), ACG(2, 0)) + pack(ACG(4, 0), ACG(4, 0))[:8])]
        gst = OPT.get("gst", 0)
        if i == 0 and gst == 0: pk = [(0, 14, pack(ACG(4, 0), ACG(4, 0))), (8, 24, pack(ACG(6, 0), ACG(6, 0)))] if not pw else [(0, 25, pack(ACG(4, 0), ACG(4, 0))[8:] + pack(ACG(6, 0), ACG(6, 0)))]
        if i == 0 and gst > 0: pk = [(0, 31, pack(ACG(4, 0), ACG(4, 0))[8 if pw else 0:] + pack(ACG(6, 0), ACG(6, 0)))]
        if i in (4, 8, 12): pk = [(4 if not pw else 2, (OPT.get("s3lo", 16) - 2) if (i == 12 or not pw) else 24, pack(ACS(2 * ((i // 4 + 1) & 1), 0), IN(0, i // 4)))]
        grp += take(n)
        if i == OPT["gld"]: grp += [xld(1, lam, "IG") for lam in (1, 2, 3)]
        if i == 8: grp.append(xld(0, 1, "I1"))
        g1 = OPT.get("g1early", 0)
        if i == gst: grp += [xst(1, lam, IN(1, lam)) for lam in (1, 2, 3) if lam > g1]
        if n == 6 and g1: late_ = [xst(1, lam, IN(1, lam)) for lam in range(1, g1 + 1)]
        else: late_ = []
        if i in (4, 8, 12): grp.append(xst(0, i // 4, IN(0, i // 4)))
        if i == 12:
            lo = OPT.get("s3lo", 16)
            grp += [([], II(f"buffer_load_dwordx4 {V(XR,4)}, v27, {SR(sX)}, s{sOo} offen\nbuffer_load_dwordx4 {V(XR+4,4)}, v27, {SR(sX)}, s{sXW} offen"), []), xld(0, 2, "I2")]
            assert not any({f"v{XR+r}" for r in range(8)} & y.reads for y in gm)
        if i == OPT.get("i3st", 15): lo = OPT["i3gap"]; grp.append(xld(0, 3, "I3"))
        if i == 0 and gst == 0 and g1 and len(grp) == 3 - g1: lo = 17
        spill = []
        while sum(len(g[1]) + len(g[0]) // 2 for g in grp) > 22: spill.insert(0, grp.pop())
        nv = sum(len(g[1]) for g in grp)
        if grp and n < 7 and OPT.get("gfront"):
            q = lo - 1
            for g in grp:
                gp = tl.g[q]; gp.vec += g[0] + g[1]; gp.load += 6; q += OPT["gfront"]
            for g in spill: tl.g[q].vec += g[0] + g[1]; tl.g[q].load += 6; q += OPT["gfront"]
            spill = []
        elif grp: tl.spread(lo, min(29, lo + 4 * nv - 4) if i > 0 else (29 if not late_ else 18), grp)
        if late_: tl.spread(24, 29, late_); grp += late_
        rd = [x for u in RD[n] for x in ureads(u)]
        if span: rd += II(f"ds_read_b32 v28, v{vL16}\nds_read_b32 v28, v{vL16}")
        if len(rd) > 26: tl.vec_in(2, OPT.get("grh", 25), rd)
        elif rd:
            rh = OPT.get("rh", 20)
            while rh < 27 and sum(tl.g[q].load == 0 for q in range(2, rh + 1)) < len(rd): rh += 1
            free = [q for q in range(2, rh + 1) if tl.g[q].load == 0]
            drop = len(free) - len(rd)
            if drop < 0: tl.vec_in(2, 27, rd)
            else:
                for m in range(drop): free[(2 * m + 1) * len(free) // (2 * drop)] = None
                for x, q in zip(rd, [q for q in free if q is not None]): tl.vec_at(q, x)
        for lo_, hi_, its in pk:
            room = sum(max(0, 2 - tl.g[q].load) for q in range(lo_, hi_ + 1))
            left = tl.stream(lo_, hi_, its, cap=2 if room >= len(its) else 3); assert not left, (n, len(left))
            for y in its:
                for q, gp in enumerate(tl.g): assert not (gp.m.writes & y.reads) or at(tl, y) >= q, n
                for g in grp:
                    for x in g[1]: assert not (y.writes & x.reads) or at(tl, x) > at(tl, y), n
        q0 = 0
        if ck:
            left = tl.stream(0, 29, ck[0]); assert not left
            q0 = at(tl, ck[0][-1]) + 1; tl.g[q0].vec += ck[1]; tl.g[q0].load += 2; q0 += 1
        if i == 5: left = tl.stream(0, 31, ta); assert not left
        if i == 11: left = tl.stream(q0, 29, unp(IN(0, 1), lambda r: S0 + r)); assert not left
        if f2 and i == 14:
            TT = lambda r: IN(1, 2) + r if r < 8 else IN(1, 3) + r - 8
            assert not gm or not any({f"v{TT(r)}" for r in range(16)} & y.reads for y in gm)
            gm = tl.sched(0, f2[0] - 2, gm); assert not gm
            c2 = arrived("s2", [(0, 2)])
            left = tl.stream(f2[0] - 1, 28, [W(vm="I2")] + c2[0]); assert not left
            q2 = at(tl, c2[0][-1]) + 1; tl.g[q2].vec += c2[1]; tl.g[q2].load += 2
            l14 = tl.stream(q2 + 1, 31, unp(IN(0, 2), TT))
        if f2 and i == 15:
            xu = unp(XR, lambda r: 128 + r)
            left = tl.stream(0, f2[1] - 1, l14 + xu[:8]); assert len(left) <= 8
            c3 = arrived("s3", [(0, 3)])
            l_ = tl.stream(f2[1] - 1, 28, [W(vm="I3")] + c3[0]); assert not l_
            q3 = at(tl, c3[0][-1]) + 1; tl.g[q3].vec += c3[1]; tl.g[q3].load += 2
            u3 = unp(IN(0, 3), lambda r: 160 + r)
            def half(e_): return u3[8*e_:8*e_+8] + II("\n".join(f"v_add_f32 v{TT(r)}, v{TT(r)}, v{160+r}" for r in range(8*e_, 8*e_+8)))
            fin0 = II("\n".join(f"v_add_f32 v{S0+r}, v{S0+r}, v{TT(r)}" for r in range(8)) + "\n" + "\n".join(f"v_mul_f32 v{S0+r}, v{S0+r}, v{G0+r}" for r in range(8)))
            fin0 += II("\n".join(f"ds_write_b128 v{10+v}, {V(S0+v*4,4)}" for v in range(2))) + II("\n".join(f"ds_read_b128 {V(144+m*4,4)}, v{18+m}" for m in range(2)), tag="T0")
            l_ = tl.stream(q3 + 1, 19, half(0) + left + half(1))
            finl = tl.stream(20, 31, l_[:max(0, len(l_) - 16)] + fin0 + l_[max(0, len(l_) - 16):])
            print("final: left over", len(finl), file=sys.stderr)
        if i == 15 and not OPT.get("fin") and not f2: left = tl.stream(q0, 31, unp(IN(0, 2), lambda r: 144 + r) + unp(XR, lambda r: 128 + r)); assert not left
        if i == 15 and OPT.get("fin"):
            left = tl.stream(q0, OPT["fin"] - 1, unp(IN(0, 2), lambda r: 144 + r)); assert not left
            c3 = arrived("s3", [(0, 3)])
            left = tl.stream(OPT["fin"] - 1, 28, [W(vm="I3")] + c3[0]); assert not left
            q3 = at(tl, c3[0][-1]) + 1; tl.g[q3].vec += c3[1]; tl.g[q3].load += 2
            finl = tl.stream(q3 + 1, 31, unp(IN(0, 3), lambda r: 160 + r) + unp(XR, lambda r: 128 + r))
        if i >= OPT["gck"] and gm: gm = (tl.sched if OPT.get("gsched", 1) else tl.stream)(q0 if i == OPT["gck"] else 0, 31, gm)
        k.ext(tl.emit(0, 32, "x").ins)
        for g in spill: emit_grp(k, g)
    assert nU == len(UNITS)
    stamp(k, "send")
    print("g math left over", len(gm), file=sys.stderr)
    k.ext(gm)
    def padd(acc, tmp):
        for r in range(0, 16, 2): k.e(f"v_pk_add_f32 {V(acc+r,2)}, {V(acc+r,2)}, {V(tmp+r,2)}")
    if OPT.get("fin2"):
        k.ext(finl)
        for r in range(8, 16, 2): k.e(f"v_pk_add_f32 {V(S0+r,2)}, {V(S0+r,2)}, {V(TT(r),2)}")
        for r in range(8, 16, 2): k.e(f"v_pk_mul_f32 {V(S0+r,2)}, {V(S0+r,2)}, {V(G0+r,2)}")
        for v in range(2): k.e(f"ds_write_b128 v{10+v}, {V(S0+8+v*4,4)} offset:2048")
        for m in range(2): k.e(f"ds_read_b128 {V(152+m*4,4)}, v{18+m} offset:2048", tag="T1")
        for e_ in range(2):
            if e_: k.ext(xu[8:])
            k.wait(lgkm=f"T{e_}")
            for r in range(0, 8, 2): k.e(f"v_pk_add_f32 {V(128+8*e_+r,2)}, {V(128+8*e_+r,2)}, {V(144+8*e_+r,2)}")
            for r in range(4): k.e(f"v_cvt_pk_bf16_f32 v{176+4*e_+r}, v{128+8*e_+2*r}, v{129+8*e_+2*r}")
            k.e(f"buffer_store_dwordx4 {V(176+4*e_,4)}, v27, {SR(sOut)}, s{sXW if e_ else sOo} offen")
    else:
        if not OPT.get("fin"):
            k.wait(vm="I3")
            ck = arrived("s3", [(0, 3)]); k.ext(ck[0] + ck[1])
            stamp(k, "spolled")
            k.ext(unp(IN(0, 3), lambda r: 160 + r)); finx = []
        else:
            finx = [x for x in finl if int(list(x.writes)[0][1:]) < 144]; k.ext([x for x in finl if x not in finx])
        padd(144, 160); padd(S0, 144)
        for r in range(0, 16, 2): k.e(f"v_pk_mul_f32 {V(S0+r,2)}, {V(S0+r,2)}, {V(G0+r,2)}")
        for e_ in range(2):
            for v in range(2): k.e(f"ds_write_b128 v{10+v}, {V(S0+(e_*2+v)*4,4)} offset:{e_*2048}")
        for e_ in range(2):
            for m in range(2): k.e(f"ds_read_b128 {V(160+e_*8+m*4,4)}, v{18+m} offset:{e_*2048}", tag=f"T{e_}")
        k.ext(finx)
        for e_ in range(2):
            k.wait(lgkm=f"T{e_}")
            for r in range(0, 8, 2): k.e(f"v_pk_add_f32 {V(128+8*e_+r,2)}, {V(128+8*e_+r,2)}, {V(160+8*e_+r,2)}")
            for r in range(4): k.e(f"v_cvt_pk_bf16_f32 v{176+4*e_+r}, v{128+8*e_+2*r}, v{129+8*e_+2*r}")
            k.e(f"buffer_store_dwordx4 {V(176+4*e_,4)}, v27, {SR(sOut)}, s{sXW if e_ else sOo} offen {OPT.get('outf', '')}")
    z = Block(); z.name = "end"
    if OPT.get("encode") is not None:
        z.e("s_waitcnt vmcnt(0) lgkmcnt(0)"); stamp(z, "end")
        i0, i1 = (STAMPS[x] for x in OPT["encode"])
        fld = 72 if OPT.get("enccyc") else 73
        z.e(f"s_sub_u32 s92, s{fld+2*i1}, s{fld+2*i0}")
        if OPT.get("encskew"):
            z.e("s_load_dwordx2 s[96:97], s[0:1], 80\ns_waitcnt lgkmcnt(0)"); srd_fin(z, 96, 256)
            z.e("v_mov_b32 v2, s73\nv_not_b32 v3, v2\nv_lshlrev_b32 v4, 20, v0\nbuffer_atomic_umax v2, v4, s[96:99], 0 offen offset:4\nbuffer_atomic_umax v3, v4, s[96:99], 0 offen offset:8\ns_waitcnt vmcnt(0)")
            z.e("s_mov_b32 s92, 3000\nL_enc0:\ns_sleep 1\ns_sub_u32 s92, s92, 1\ns_cbranch_scc0 L_enc0")
            z.e("v_mov_b32 v4, 0\nbuffer_load_dwordx2 v[2:3], v4, s[96:99], 0 offen offset:4 sc1\ns_waitcnt vmcnt(0)\nv_not_b32 v3, v3\nv_sub_u32 v2, v2, v3\ns_nop 1\nv_readfirstlane_b32 s92, v2\ns_nop 3\ns_lshl_b32 s92, s92, 2")
        if OPT.get("encx") is not None: z.e(f"s_and_b32 s3, s2, {OPT.get('encm', 7)}\ns_cmp_eq_u32 s3, {OPT['encx']}\ns_cselect_b32 s92, s92, 0")
        z.e("s_lshr_b32 s92, s92, 2" if OPT.get("enccyc") else "s_lshl_b32 s92, s92, 2")
        z.e(f"s_add_u32 s92, s92, 20000\nL_enc:\ns_sleep 1\ns_memrealtime s[98:99]\ns_waitcnt lgkmcnt(0)\ns_sub_u32 s98, s98, s73\ns_cmp_lt_u32 s98, s92\ns_cbranch_scc1 L_enc")
    elif OPT["stamp"]:
        z.e("s_waitcnt vmcnt(0) lgkmcnt(0)"); stamp(z, "end")
        z.e(f"s_load_dwordx2 s[96:97], s[0:1], 88\ns_waitcnt lgkmcnt(0)"); ptr_add(z, 96, 0x8000000 + 0x40000); srd_fin(z, 96, 0x40000)
        for i in range(20): z.e(f"v_mov_b32 v{36+i}, s{72+i}")
        z.e(f"s_lshl_b32 s92, s2, 2\ns_add_u32 s92, s92, s{sWave}\ns_lshl_b32 s92, s92, 7\nv_mov_b32 v2, s92\ns_mov_b64 exec, 1")
        for i in range(5): z.e(f"buffer_store_dwordx4 {V(36+4*i,4)}, v2, s[96:99], 0 offen offset:{16*i}")
    z.e("L_end:\ns_endpgm")
    fb = Block(); fb.name = "fb"
    fb.e(f"L_fallback:\ns_mov_b32 s{sFB}, 1\ns_waitcnt vmcnt(0) lgkmcnt(0)\ns_barrier\ns_branch L_restart")
    m0 = Block(); m0.name = "tm0"
    m0.e(f"L_truemax:\ns_mov_b32 s{sKo}, s{sW8k}\ns_mov_b32 s{sCnt}, 16")
    for t in range(4): m0.e(f"v_mov_b32 v{vNM+4*t}, 0xff800000")
    m0.e("s_waitcnt vmcnt(0) lgkmcnt(0)")
    m1 = Block(); m1.name = "tm1"
    m1.e("L_tm_loop:\ns_barrier")
    emit_grp(m1, dma_K(0, 0, "DK")); emit_grp(m1, dma_K(1, 0, "DK"))
    m1.e("s_waitcnt vmcnt(0)\ns_barrier")
    for g in range(8):
        m1.ext(kreads(g, 0, 0, "K0")); m1.e("s_waitcnt lgkmcnt(0)")
        for t in range(4): m1.ext(qk_chain(t, 0, "0"))
        for t in range(4):
            s0 = vS + 4 * t
            m1.e(f"v_max3_f32 v{vNM+4*t}, v{vNM+4*t}, v{s0}, v{s0+1}\nv_max3_f32 v{vNM+4*t}, v{vNM+4*t}, v{s0+2}, v{s0+3}")
    m1.e(f"s_sub_u32 s{sCnt}, s{sCnt}, 1\ns_cmp_lg_u32 s{sCnt}, 0\ns_cbranch_scc1 L_tm_loop")
    m2 = Block(); m2.name = "tm2"
    rowmax_finish(m2, lambda t: vNM + 4 * t)
    m2.e(f"s_mov_b32 s{sKo}, s{sW8k}\ns_barrier")
    emit_grp(m2, dma_K(0, 0, "DK")); emit_grp(m2, dma_K(1, 0, "DK"))
    m2.e(f"s_add_u32 s{sKo}, s{sKo}, 32768\ns_waitcnt vmcnt(0)\ns_barrier")
    m2.ext(kreads(0, 0, 0, "K0")); m2.e("s_waitcnt lgkmcnt(0)\ns_branch L_att_start")
    att = [l0, first, l1, l1b, even, odd, l1b, even, odd, l4, last, f]
    front = [b2, c] + PJ['F'] + [e]; frontS = [b2, c] + PJ['S'] + [e]
    vb = []
    finalize([[b_] + front + [e2] + att + [k, z], [b_] + frontS + [e2] + att + [fb] + frontS + [m0, m1, m1, m2] + att + [k, z], [b_] + front + [m0, m1]] + [[s] for s in SLOW], vb)
    for fr in (front, frontS): check_groups([x for bb in [b_] + fr + [e2] + att + [k, z] for x in bb.ins])
    for x in vb:
        if x[0].startswith("att") or x[0] in ("projF", "projS"): print("nop:", x, file=sys.stderr)
    cend = Block(); cend.e('L_code_end:')
    layout = [b_, b2, c] + PJ['S'] + [e, e2, l0, first, l1, l1b, even, odd, l4, last, f, k, z] + (SLOW[::-1] if OPT.get('slownear', 1) else []) + PJ['F'] + [cend, fb, m0, m1, m2] + ([] if OPT.get('slownear', 1) else SLOW)
    note = {id(b2): "set-up, first loads", id(c): "set-up under the first loads", id(PJ['S'][0]): "projection, odd ids (48 FFN columns)", id(PJ['F'][0]): "projection, even ids (64 FFN columns)",
            id(PJ['S'][2]): "Q and the rest of h; scores of the first 16 keys", id(PJ['F'][2]): "Q and the rest of h; scores of the first 16 keys", id(e2): "stand-in row maximum",
            id(first): "tile 0: scores and exponentials only", id(even): "tile pair: QK of the next tile beside PV of this one", id(last): "tiles 14 and 15, normalisation and O stores",
            id(f): "check of the stand-in maximum", id(k): "tail: g stages, then the four row strips", id(fb): "stand-in was unsafe: start again", id(m0): "true row maximum over all keys", id(SLOW[-1]): "bounded waits"}
    return kernel_head(KN) + "\n".join((f"; ---- {note[id(x)]}\n" if id(x) in note else "") + x.text() for x in layout) + "\n" + kernel_desc(KN, 512, 256)


DOC = """
;
; Workgroup (q block of 256 rows, head); each wave owns 64 rows.  All products use v_mfma_f32_16x16x32_bf16, transposed (D = [columns x rows]),
;     Row statistics are computed once (8 rows per workgroup) and handed round through d_ws; a counter in d_debug says when.
;     h = silu(gate) * up goes to d_ws in fragment order.  Even ids take 64 FFN columns, odd ids 48 (two variants of the code).
;  2. attention over 16 tiles of 128 keys, K/V staged by LDS-DMA.  exp2(s - m) uses as m the maximum over the row's first 16 keys, less 32
;     (it enters as the C operand), so m never exceeds the true maximum and nothing underflows earlier than with it.  Overflow, the one way this
; Hand-offs: write-through (sc1) stores, then vmcnt + barrier, then a flag in d_ws that this launch cleared before its counter was complete;
; partial tiles are recognised by the absence of an all-ones mark written earlier in the launch.  Every wait loop is bounded.
"""
def build():
    head = open("cdna_kernels/" + NAME + ".s.ref").read().split("; Override launch")[0]
    s = head + "; @launch grid=(256,1,1) block=(256,1,1) lds=163840\n" + '.amdgcn_target "amdgcn-amd-amdhsa--gfx950"\n' + DOC.lstrip("\n")
    plan_units()
    return s + gen_kernel()

if __name__ == "__main__":
    out = sys.argv[1] if len(sys.argv) > 1 else "cdna_kernels/" + NAME + ".s"
    for a in sys.argv[2:]:
        k, v = a.split("="); OPT[k] = eval(v)
    names = OPT.get("stamps", "p0,p4,projend,att0,loop,last,tail0,gend").split(",")
    STAMPS.update({n: i + 1 for i, n in enumerate(names)}); STAMPS["start"] = 0; STAMPS["end"] = 9
    txt = build()
    if OPT.get("jit2"):
        import random
        random.seed(OPT["jit2"]); out_ = []; n_ = 0; lines = txt.split("\n"); live = False
        for k_, l in enumerate(lines):
            out_.append(l)
            if l.startswith("; ---- projection") or l.startswith("; ---- tile pair"): live = True
            if l.startswith("; ---- Q and the rest") or l.startswith("; ---- bounded") or l.startswith("; ---- stand-in was"): live = False
            nxt = [x.strip() for x in lines[k_ + 1:k_ + 12] if x.strip().startswith("s_") and not x.strip().startswith(("s_waitcnt", "s_barrier", "s_nop", "s_mov", "s_mul"))]
            safe = not nxt or not nxt[0].startswith(("s_cselect", "s_cbranch", "s_addc", "s_subb"))
            if live and safe and (l.strip() == "s_barrier" or ("v_mfma" in l and random.random() < .02)):
                n_ += 1
                out_.append(f"    s_mul_i32 s96, s96, 0x9e3779b1\n    s_add_u32 s96, s96, s{sWave}\n    s_add_u32 s96, s96, s2\n    s_lshr_b32 s97, s96, 28\nL_j2_{n_}:\n    s_sleep 1\n    s_sub_u32 s97, s97, 1\n    s_cbranch_scc0 L_j2_{n_}")
        txt = "\n".join(out_).replace("L_restart:\n", "L_restart:\n    s_memtime s[96:97]\n    s_waitcnt lgkmcnt(0)\n").replace("s_mul_i32 s66, s65, 2560", "s_mul_i32 s66, s65, 2560")
    def nt(pat):
        global txt
        txt = re.sub(pat, lambda m: m.group(0).replace(" lds", "") + " nt" + (" lds" if m.group(0).endswith(" lds") else ""), txt, flags=re.M)
    srs = {"w": r"s\[(8:11|12:15|16:19)\]", "k": r"s\[(20:23|24:27)\]", "t": r"s\[(44:47|48:51)\]", "x": r"s\[4:7\]"}
    for c in OPT.get("ntt", ""): nt(r"^    buffer_load_dword [av]\d+, v\d+, " + srs[c] + r".*offen$")
    for c in OPT.get("ntd", ""): nt(r"^    buffer_load_dwordx4 v\d+, " + srs[c] + r".* lds$")
    if OPT.get("ntsr"): nt(r"^    buffer_load_dwordx4 v\[7[26]:7[59]\], v58, s\[4:7\].*\d$")
    if OPT.get("ntx0"):
        parts = re.split(r"(?m)^(?=; ---- )", txt)
        for i_, p_ in enumerate(parts):
            if p_.startswith("; ---- set-up" + ("," if OPT["ntx0"] == 1 else "")):
                txt = p_; nt(r"^    buffer_load_dwordx4 v\d+, " + srs["x"] + r".* lds$"); parts[i_] = txt
        txt = "".join(parts)
    if OPT.get("ntc"): txt = txt.replace("global_load_dword v107, v[108:109], off", "global_load_dword v107, v[108:109], off nt")
    if OPT.get("ntk0"):
        parts = re.split(r"(?m)^(?=; ---- )", txt)
        for i_, p_ in enumerate(parts):
            if p_.startswith("; ---- projection"):
                txt = p_; nt(r"^    buffer_load_dwordx4 v\d+, " + srs["k"] + r".* lds$"); parts[i_] = txt
        txt = "".join(parts)
    open(out, "w").write(txt)
```

```python
import sys, math, struct, re
sys.path.insert(0, "gen")
from asmgen import *

NAME = "recurrent_scan__mha_block_cached__glu_gated_swiglu__prompt"
KN = NAME + "_kernel"
WS_ST, WS_FH, WS_FO, WS_FG, WS_FS = 0, 0x8000, 0x10000, 0x18000, 0x20000
WS_B, WS_X = 0x200000, 0x2000000
BSTRIDE = 184 * 1024
LOG2E = 1.4426950408889634
OOB = 0x7ffffff0
def f32(x): return "0x%08x" % struct.unpack("<I", struct.pack("<f", x))[0]
OPT = dict(stamp=False, early=7, pollstage=3, polld=1, htrip=2, flagstage=0, osr=1, osg=4, fgstage=5, fsstage=11, lead=5, ramp=0, dl=-32, lmax=120, clr2=1, dd3=1, htouch=0, i3st=14, i3gap=3, s3lo=12, fin2=(20, 10), tq0=0, pa=.1, pb=.75, pc=.4, x2o=.15, x3a=.92, nh=3, nhS=4, stpos=.55, sthi=.5, stposS=.52, sthiS=.51, il0=40, ilp=11, pre="Q0 S",
    sch=[(.1,'W1 r1 G1'),(.75,'x1 W2 Q1'),('o',1,1.45,1.65),(0,'r2 G2'),(1.93,'A W3'),(2.25,'x2 W4 G3 Q2'),('o',2,3.05,3.25),(0,'r3 Q3 C'),(3.7,'x3 W5'),(4.5,'W6'),('o',3,4.6,4.9)], clrpos=(7, 5), asat=(-9, -9, -9, -9, 0, 0, 1, 1, 2, 2, 3, 3, 4, 4, 6, 5), bsat=(0, 0, 0, 0, 0, 2, 2, 3, 4, 6, 6, 7, 8, 10, 10, 11), gld=4, gck=7)

L_K, L_SP, L_V = 0, 65536, 98304
sX, sWQ, sW1, sW3, sK, sV, sB, sH, sWS, sDBG, sWO, sW2, sOut = range(4, 56, 4)
sHead, sQb, sWave, sW8k, sW4k, sXb, sKo, sVo, sCnt, sT, sT2, sWQo, sW13o, sBo, sFB, sW16k = range(56, 72)
sTr, sTc, sSp = 93, 94, 95
sTW, sT2W = 100, 101
sFs, sFv = 92, sOut + 2
vL16, vKA, vVA, vDK, vDV, vIDX, vT = 1, 2, 6, 14, 18, 20, 24
vS, vNM = 32, 48
def Q(t, ds): return 64 + (t * 4 + ds) * 4
def P(pb, kk, t): return 128 + pb * 64 + (t * 4 + kk) * 4
def O(dt, t): return (dt * 4 + t) * 4
def VF(b, kk): return (128 + b * 16 if b < 4 else 148 + b * 16) + kk * 4
aL, aONES = 192, 208
def KF(b, ds): return 212 + b * 16 + ds * 4
aCHK, aZ = 244, 248
vWQA, vW13A, vDQ, vD13, vXA, vDX = 24, 28, 32, 36, 40, 44

def SR(s): return f"s[{s}:{s+3}]"
def MF(d, a, bb, c): return Ins(f"v_mfma_f32_16x16x32_bf16 {d}, {a}, {bb}, {c}")
def II(txt, tag=None): return [Ins(x, tag=tag) for x in txt.split("\n") if x.strip()]
def srd_fin(b, d, nrec):
    b.e(f"s_and_b32 s{d+1}, s{d+1}, 0xffff\ns_mov_b32 s{d+2}, {nrec}\ns_mov_b32 s{d+3}, 0x20000")
def ptr_add(b, d, off): b.e(f"s_add_u32 s{d}, s{d}, {off}\ns_addc_u32 s{d+1}, s{d+1}, 0")

def stamp_ins(i):
    if not OPT["stamp"] or i is None: return []
    return II(f"s_waitcnt lgkmcnt(0)\ns_memtime s[96:97]\ns_memrealtime s[98:99]\ns_waitcnt lgkmcnt(0)\ns_mov_b32 s{72+2*i}, s96\ns_mov_b32 s{73+2*i}, s98")
_jit = [0]
def jitter(b, wave=False):
    if not OPT.get("jit"): return
    _jit[0] += 1; n = _jit[0]
    b.e(f"s_waitcnt lgkmcnt(0)\ns_memtime s[96:97]\ns_waitcnt lgkmcnt(0)\ns_lshr_b32 s96, s96, {4 if wave else 14}\ns_add_u32 s96, s96, s2\ns_mul_i32 s96, s96, 0x9e3779b1\ns_lshr_b32 s96, s96, 16\ns_mul_i32 s96, s96, {OPT['jit'] // (8 if wave else 1)}\ns_lshr_b32 s96, s96, 16\ns_add_u32 s96, s96, 1")
    b.e(f"L_jit{n}:\ns_sleep 1\ns_sub_u32 s96, s96, 1\ns_cmp_lg_u32 s96, 0\ns_cbranch_scc1 L_jit{n}")
STAMPS = {}
def stamp(b, name):
    b.ext(stamp_ins(STAMPS.get(name)))
    if name in ("karg", "projend", "last", "tail0", "s0", "s6", "s13"): jitter(b)
    if name in ("p0", "att0", "loop", "attend", "send") or re.fullmatch(r"[gs]\d+", name): jitter(b, True)

class Gap:
    def __init__(self, m): self.m = m; self.scal = []; self.vec = []; self.load = 0
def cost_of(ins): return 2 if (ins.kind == "trans" or ins.is_vmem) else (0 if ins.kind in ("salu", "wait", "sctl", "label") else 1)
def is_ds(x): return x.kind in ("dsread", "dswrite")
def dep(a, b): return bool(a.writes & (b.reads | b.writes)) or bool(a.reads & b.writes)
class TL:
    def __init__(self): self.g = []; self.ddpen = 1; self.vmpen = OPT.get("vmpen", .5)
    def add(self, m):
        gp = Gap(m); self.g.append(gp)
        if m.op.startswith("v_smfmac"): gp.load = 1
        if "32x32" in m.op: gp.load = -4
        return len(self.g) - 1
    def pen(self, i, ins):
        gp = self.g[i]; l = gp.load + cost_of(ins)
        if is_ds(ins) and any(x.is_vmem for x in gp.vec): l += self.vmpen
        if is_ds(ins):
            if any(is_ds(x) for x in gp.vec): l += self.ddpen
            if any(x.is_valu and dep(x, ins) for x in gp.vec): l += 2
        return l
    def vec_at(self, i, ins):
        gp = self.g[i]; k = len(gp.vec)
        if is_ds(ins) or ins.is_vmem:
            while k > 0 and gp.vec[k - 1].is_valu and not dep(gp.vec[k - 1], ins): k -= 1
        gp.vec.insert(k, ins); gp.load += cost_of(ins)
    def vec_in(self, lo, hi, items):
        extra = {i: 0 for i in range(lo, hi + 1)}
        cand = []
        for it in items:
            i = min(extra, key=lambda k: (max(self.pen(k, it) + extra[k], 2), self.pen(k, it) + extra[k] if not OPT.get("pack") else 0, k)); cand.append(i); extra[i] += 1 + self.ddpen
        cand.sort()
        for i, it in zip(cand, items): self.vec_at(i, it)
        return cand
    def scal_at(self, i, ins, later=True):
        while self.g[i].scal: i += 1 if later else -1
        self.g[i].scal.append(ins); return i
    def spread(self, lo, hi, groups):
        n = sum(len(g[1]) for g in groups); k = 0; prev = lo - 3
        for grp in groups:
            sc, ve, post = grp
            for x in ve: x.grp = grp; x.role = "vec"
            first = True
            for it in ve:
                tgt = lo + (hi - lo) * k // max(n - 1, 1); k += 1
                mn = prev + 1
                if first:
                    i = max(prev + 1, tgt - len(sc) - 1)
                    for x in sc: i = self.scal_at(i, x) + 1
                    mn = max(mn, i); first = False
                cands = [j for j in range(max(mn, tgt - 1), max(mn, tgt - 1) + 4) if j < len(self.g)]
                j = min(cands, key=lambda z: (self.g[z].load, abs(z - tgt)))
                self.vec_at(j, it); prev = j
            for x in post: prev = self.scal_at(prev + 1, x)
        return prev
    def stream(self, lo, hi, items, cap=2):
        i = lo; items = list(items)
        while items and i <= hi:
            it = items[0]; c = cost_of(it)
            if c == 0:
                i += 1
                while i <= hi and self.g[i].scal: i += 1
                if i > hi: break
                self.g[i].scal.append(it); items.pop(0); continue
            if self.pen(i, it) <= cap: self.vec_at(i, it); items.pop(0)
            else: i += 1
        return items
    def sched(self, lo, hi, items, look=70, lat=6):
        items = list(items); rw = {}; pos = {}
        for x in items:
            r, w = set(x.reads), set(x.writes)
            if x.waitfor is not None:
                for y in items:
                    if y.tag is not None and any(y.tag in t for t in x.waitfor.values()): r |= y.writes; w |= y.writes
                r |= getattr(x, "guards", set()); w |= getattr(x, "guards", set())
            if x.is_vmem: r.add("vm"); w.add("vm")
            if x.kind == "salu": r.add("scc"); w.add("scc")
            rw[id(x)] = (r, w)
        dp = lambda a, b: bool(rw[id(a)][1] & (rw[id(b)][0] | rw[id(b)][1])) or bool(rw[id(a)][0] & rw[id(b)][1])
        placed = []
        def ready(k, i):
            x = items[k]
            if any(dp(y, x) for y in items[:k]): return False
            for y in placed[-40:]:
                if not dp(y, x): continue
                d = 0
                if cost_of(x) == 0 or is_ds(x) or x.is_vmem: d = 1 if cost_of(y) > 0 or cost_of(x) == 0 else 0
                if x.waitfor is not None and is_ds(y): d = lat
                if (getattr(x, "dpp", False) or getattr(x, "permlane", False)) and y.is_valu: d = 2
                if i < pos[id(y)] + d: return False
            return True
        for i in range(lo, hi + 1):
            for want in (0, 2, 1, 1, 1, 1, 1, 1):
                for k in range(min(look, len(items))):
                    x = items[k]
                    if cost_of(x) != want: continue
                    if (self.g[i].scal if want == 0 else self.pen(i, x) > 2) or not ready(k, i): continue
                    if want == 0: self.g[i].scal.append(x)
                    else: self.vec_at(i, x)
                    pos[id(x)] = i; placed.append(x); items.pop(k); break
        return items
    def emit(self, lo, hi, name):
        b = Block(); b.name = name
        for gp in self.g[lo:hi]:
            if gp.m is not None: b.add(gp.m)
            b.ext(gp.scal); b.ext(gp.vec)
        return b

SLOW = []
def poll_check(name, vreg, load_txt, ready_cmp):
    inl = II(ready_cmp) + II(f"s_cbranch_scc0 L_spin_{name}\nL_back_{name}:")
    sl = Block(); sl.name = "spin" + name
    sl.e(f"L_spin_{name}:\ns_mov_b32 s3, 0x200000\nL_spin2_{name}:\ns_sleep {OPT.get('slp', 2)}\n{load_txt}\ns_waitcnt vmcnt(0)\ns_sub_u32 s3, s3, 1\ns_cmp_eq_u32 s3, 0\ns_cbranch_scc1 L_back_{name}")
    sl.e(ready_cmp); sl.e(f"s_cbranch_scc0 L_spin2_{name}\ns_branch L_back_{name}")
    SLOW.append(sl)
    return inl

def dma_K(half, buf, tag):
    return (II(f"s_add_u32 m0, s{sW8k}, {L_K + buf*32768 + half*4096}"),
            [Ins(f"buffer_load_dwordx4 v{vDK+p}, {SR(sK)}, s{sKo} offen offset:{p*1024} lds", tag=tag) for p in range(4)],
            II(f"s_add_u32 s{sKo}, s{sKo}, {4096 if half == 0 else 28672}"))
def dma_V(half, buf, tag):
    return (II(f"s_add_u32 m0, s{sW8k}, {L_V + buf*32768 + half*4096}"),
            [Ins(f"buffer_load_dwordx4 v{vDV+(p&1)}, {SR(sV)}, s{sVo} offen offset:{p*1024} lds", tag=tag) for p in range(4)],
            II(f"s_add_u32 s{sVo}, s{sVo}, {4096 if half == 0 else 28672}"))
def emit_grp(b, d): b.ext(d[0]); b.ext(d[1]); b.ext(d[2])
def check_groups(trace):
    last = {}; cnt = {}
    for x in trace:
        g = getattr(x, "grp", None)
        if g is not None and x.role == "vec":
            for r in x.reads:
                ws_ = [sc for sc in g[0] if r in sc.writes]
                if ws_: assert last.get(r) is ws_[-1], ("group scalar clobbered", x.text, last.get(r))
            for sc in g[2]:
                for r in sc.writes & x.reads:
                    key = (id(g), r)
                    if x is g[1][0]: cnt[key] = last.get(r)
                    assert last.get(r) is cnt[key] and (len(g[1]) == 1 or last.get(r) is not sc), ("post scalar order", x.text)
        for r in x.writes:
            if r[0] == "s" or r == "m0": last[r] = x
def kreads(g, buf, fb, tag):
    return [Ins(f"ds_read_b128 {A(KF(fb,ds),4)}, v{vKA+ds} offset:{buf*32768+g*4096}", tag=tag) for ds in range(4)]
def vreads(dt, buf, fb, tag):
    return [Ins(f"ds_read_b64_tr_b16 {A(VF(fb,kk)+2*kh,2)}, v{vVA+dt} offset:{buf*32768+(32*kk+16*kh)*256}", tag=tag) for kk in range(4) for kh in range(2)]
def snake(t): return range(4) if (t % 2 == 0 or OPT.get("nosnake")) else range(3, -1, -1)
def qk_chain(t, fb, c0):
    d = V(vS + 4 * t, 4)
    return [MF(d, A(KF(fb, ds), 4), V(Q(t, ds), 4), c0 if n == 0 else d) for n, ds in enumerate(snake(t))]
def pv_chain(dt, t, fb, pb):
    d = A(O(dt, t), 4)
    return [MF(d, A(VF(fb, kk), 4), V(P(pb, kk, t), 4), d) for kk in snake(t)]
def rs(t, kp, pb): return Ins(f"v_smfmac_f32_16x16x64_bf16 {A(aL+4*t,4)}, {A(aONES,4)}, {V(P(pb,2*kp,t),8)}, v{vIDX}")

vDA, vB1, vPoll, vPA = 14, 30, 29, 23
vRAs, vRB, vRAg = 6, (12, 13, 20), 48
sM, sAo, sWOo, sW2o = sW4k, sT2, sWQo, sW13o
sBg, sQ0, sBt = sXb, sW1 + 3, sKo
sBs = [sDBG, sDBG + 1, sDBG + 2, sDBG + 3]
sXP = sH
sXW, sXR, sOo, sFl2 = sW16k, 92, sQ0, 99
sGk = list(range(sWQ, sWQ + 7))
sHp = list(range(sW3, sW3 + 4))
UNITS = []; USEQ = {}; RD = {}
def plan_units():
    for n in range(-1, 22):
        r = [("Ag", n + 1), ("Bg", n + 1)] if n < 6 else [("Bs", n - 6)]
        r = [("As", a) for a in range(16) if OPT["asat"][a] == n] + r if n == 6 else r + [("As", a) for a in range(16) if OPT["asat"][a] == n]
        RD[n] = list(range(len(UNITS), len(UNITS) + len(r))); UNITS.extend(r)
    RD[22] = []
    USEQ.update({u: n for n, u in enumerate(UNITS)})
    for a in range(16): assert OPT["asat"][a] <= 6 + a // 4
    assert OPT["asat"][14] >= 6 and max(OPT["asat"]) <= 9
def udma(n):
    kind, i = UNITS[n] if isinstance(n, int) else n
    m0 = f"s_add_u32 m0, s{sM}, {uslot((kind, i))*16384}\n"; tag = f"U{n}" if isinstance(n, int) else f"E{i}"
    rot = OPT.get("rot", 1)
    if kind[0] == "A":
        sr, so = (sW2, sW2o) if kind == "Ag" else (sWO, sWOo)
        if kind == "As": ad = f"s_xor_b32 s{sAo}, s{so}, {i*65536}"
        else: ad = f"s_lshl_b32 s{sAo}, s{sGk[i]}, 5\ns_add_u32 s{sAo}, s{sAo}, s{so}"
        return (II(m0 + ad),
                [Ins(f"buffer_load_dwordx4 v{vDA+p}, {SR(sr)}, s{sAo} offen offset:{p*1024} lds", tag=tag) for p in range(4)], [])
    if kind == "Bg":
        return (II(m0 + f"s_add_u32 s{sBt}, s{sBg}, s{sGk[i]}"),
                [Ins(f"buffer_load_dwordx4 v{vL16 if p < 2 else vB1}, {SR(sB)}, s{sBt} offen offset:{p*1024} sc1 lds", tag=tag) for p in range(4)], [])
    bs, hp = sBs[(1, 2, 3, 0)[i >> 2]], sHp[i & 3]
    return (II(m0 + f"s_add_u32 s{sBt}, s{bs}, s{hp}"),
            [Ins(f"buffer_load_dwordx4 v{vL16}, {SR(sB)}, s{sBt} offen offset:{p*1024} sc1 lds", tag=tag) for p in range(4)], [])
XSLOT = {("As", 0): 0, ("As", 1): 1, ("As", 2): 4, ("As", 3): 5}
def uslot(u): return XSLOT[u] if u not in USEQ else USEQ[u] % 10
def uloc(u): sl = uslot(u); return sl // 4, (sl % 4) * 16384
_first = list(range(160, 192, 4)) + list(range(0, 32, 4))
ASREG = _first + [r for r in range(0, 256, 4) if r not in _first]
assert ASREG[56:60] == [224, 228, 232, 236]
def AS(v, ks): return ASREG[ks * 2 + v]
def AG(i, v, ks): return ("v", 32 + (v * 2 + ks) * 4) if i % 2 == 0 else ("a", 224 + (v * 2 + ks) * 4)
def BF(n, m): return 64 + (n & 1) * 64 + m * 4
def ACG(j, v): return 192 + (j * 2 + v) * 4
def ACS(q, v): return 32 + (q * 2 + v) * 4
def ureads(u, vRAs=vRAs):
    kind, i = UNITS[u] if isinstance(u, int) else u
    st, o = uloc((kind, i))
    if kind == "As":
        return [Ins(f"ds_read_b64_tr_b16 {A(AS(v,2*i+ks)+2*kh,2)}, v{vRAs+2*st+v} offset:{o+ks*8192+kh*4096}", tag="R") for ks in range(2) for v in range(2) for kh in range(2)]
    if kind == "Ag":
        return [Ins(f"ds_read_b64_tr_b16 {R(AG(i,v,ks)[0], AG(i,v,ks)[1]+2*kh, 2)}, v{vRAg+4*st+2*kh+v} offset:{o+ks*8192}", tag="R") for v in range(2) for ks in range(2) for kh in range(2)]
    n = i if kind == "Bg" else 7 + i
    return [Ins(f"ds_read_b128 {V(BF(n,m),4)}, v{vRB[st]} offset:{o+m*1024}", tag="R") for m in range(16)]
OSTORES = []
EARLY = []

def gen_attention(l0items):
    tl = TL()
    phases = [-1, 0, 1, 2, 3, 15]
    VPOS = OPT.get("vmpos", (5, 13, 21, 29))
    start = {}; stepb = {}
    for p in phases:
        start[p] = len(tl.g)
        if p == 15:
            def pv(dt, t, vs, pb, fwd):
                d = A(O(dt, t), 4)
                for kk in (range(4) if fwd else range(3, -1, -1)): tl.add(MF(d, A(VF(vs, kk), 4), V(P(pb, kk, t), 4), d))
            FR = [(i, t) for i in range(4) for t in range(4)]
            ost = lambda n: 64 + 4 * n
            mk = lambda n: MF(A(aCHK, 4), A(aZ, 4), V(ost(n), 4), "0" if n == 0 else A(aCHK, 4))
            xb = {}; yb = {}; cdone = {}; chkpos = {}
            def chk(n): chkpos[n] = tl.add(mk(n))
            for s in range(8):
                xb[s] = len(tl.g)
                for t in range(4):
                    for m in qk_chain(t, s & 1, V(vNM + 4 * t, 4)): tl.add(m)
                for t in (2 * (s & 1), 2 * (s & 1) + 1): pv(s >> 1, t, (s >> 1) & 1, 0, 1 - (t & 1))
                tl.add(rs(s >> 1, s & 1, 0))
            xb[8] = len(tl.g)
            wend = lambda n: 1 + (n + 1) * OPT.get("yw", 20) / 12 if n < 12 else n + 10
            nchk = 0
            for u in range(24):
                bl, t = u >> 2, u & 3; s0, s1 = (0, 4) if bl % 2 == 0 else (1, 5); yb[u] = len(tl.g)
                if bl == 0: tl.add(rs(t, 0, 1)); tl.add(rs(t, 1, 1))
                if bl < 2:
                    o_ = [(2 * bl, s0), (2 * bl + 1, s1)][::1 if t % 2 == 0 else -1]
                    pv(o_[0][0], t, o_[0][1], 1, 1); pv(o_[1][0], t, o_[1][1], 1, 0); cdone[u] = len(tl.g) - 1
                else:
                    dt = bl + 2
                    if t % 2 == 0: pv(dt, t, s0, 0, 1); pv(dt, t, s1, 1, 1)
                    else: pv(dt, t, s1, 1, 0); pv(dt, t, s0, 0, 0)
                    if dt & 1: cdone[2 * dt - 2 + t] = len(tl.g) - 1
                if nchk < 12 and wend(nchk) <= u + .5: chk(nchk); nchk += 1
            yb[24] = len(tl.g); assert nchk == 12
            continue
        for s in range(8):
            stepb[p, s] = len(tl.g)
            if p != 15:
                for t in range(4):
                    for m in qk_chain(t, s & 1, V(vNM + 4 * t, 4) if not OPT.get("nm0") else "0"): tl.add(m)
            if p == -1:
                if OPT.get("bO"): tl.add(Ins(f"v_mfma_f32_32x32x16_bf16 {A(16*s,16)}, {A(aONES,4)}, v[252:255], 0"))
                else: tl.add(Ins(f"v_mfma_f32_32x32x16_bf16 {A(16*s,16)}, {A(aZ,4)}, {A(aZ,4)}, 0"))
                if s == 0: tl.add(Ins(f"v_mfma_f32_32x32x16_bf16 {A(aL,16)}, {A(aZ,4)}, {A(aZ,4)}, 0"))
            else:
                if OPT.get("rsadj"):
                    tl_ = s >> 1; order = [t for t in range(4) if t != tl_] + [tl_]
                    for n_, t in enumerate(order):
                        d = A(O(s, t), 4); fwd = (n_ + s) % 2 == 0
                        for kk in (range(4) if fwd else range(3, -1, -1)): tl.add(MF(d, A(VF(s & 1, kk), 4), V(P(p & 1, kk, t), 4), d))
                else:
                    for t in range(4):
                        for m in pv_chain(s, t, s & 1, p & 1): tl.add(m)
                if p != 15:
                    tl.add(rs(s >> 1, s & 1, p & 1))
    end = len(tl.g)
    nxt = {p: (start[phases[i + 1]] if i + 1 < len(phases) else end) for i, p in enumerate(phases)}
    for p in phases:
        if p == 15: continue
        pb = (p + 1) & 1
        for s in range(8):
            b0 = stepb[p, s]; nb = stepb[p, s + 1] if s < 7 else nxt[p]
            for t in range(4):
                sr = vS + 4 * t
                ex = [Ins(f"v_exp_f32 v{sr+r}, v{sr+r}") for r in range(4)]
                pd = P(pb, s >> 1, t) + 2 * (s & 1)
                cv = [Ins(f"v_cvt_pk_bf16_f32 v{pd+h}, v{sr+2*h}, v{sr+2*h+1}") for h in range(2)]
                if p >= 0:
                    o = b0 + 8 * t + (1 if t == 3 else 0)
                    pe = [o + 8 + 2 * r for r in range(4)]; pc = [o + 11, o + 15]
                else:
                    pe = [b0 + 4 * t + 8 + r for r in range(4)]; pc = [b0 + 4 * t + 10, b0 + 4 * t + 12]
                    if s == 7:
                        pe = [min(x, nb - 1) for x in pe]; pc = [min(x, nb - 1) for x in pc]
                        if t == 3: pe = [nb + 0, nb + 2, nb + 4, nb + 6]; pc = [nb + 3, nb + 7]
                seq = sorted([(pe[0],0,ex[0]),(pe[1],1,ex[1]),(pc[0],3 if p < 0 else 2,cv[0]),(pe[2],2.5,ex[2]),(pe[3],4,ex[3]),(pc[1],5,cv[1])], key=lambda z: (z[0], z[1]))
                for pos, _, ins in seq: tl.vec_at(pos, ins)
    for p in phases:
        if p == 15: continue
        if 0 <= p < 15:
            grps = [dma_K(0, p & 1, "DK"), dma_K(1, p & 1, "DK"), dma_V(0, (p + 1) & 1, "DV"), dma_V(1, (p + 1) & 1, "DV")]
            for s in range(8):
                tl.scal_at(stepb[p, s] + 15, W(lgkm=f"V{s}"), later=False)
                tl.scal_at(stepb[p, s] + 31, W(lgkm=f"K{(s+1)&7}"), later=False)
            if OPT.get("kvtouch", 1): grps.append(([], II(f"buffer_load_dword a252, v28, {SR(sK if p % 2 == 0 else sV)}, s{sKo if p % 2 == 0 else sVo} offen"), []))
            so, sr = (sTW, sWO) if p % 2 == 0 else (sT2W, sW2)
            grps.append((II(f"s_cmp_le_u32 s{sCnt}, {OPT.get('wtrip', 2)}\ns_cselect_b32 s{sT}, s{so}, 0x40000000"), II(f"buffer_load_dword a252, v{30 if p % 2 == 0 else 29}, {SR(sr)}, s{sT} offen"),
                         II(f"s_add_u32 s{so}, s{so}, {0x4000 if (p % 2 == 0 and OPT.get('wo2', 1)) else 0x2000}\ns_and_b32 s{so}, s{so}, {0x7fff if p % 2 == 0 else 0x3fff}")))
            if p % 2 == 0 and OPT.get("cpl", 1): grps.append(([], II("global_load_dword a252, v[24:25], off"), []))
            if p % 2 == 1:
                grps.append(([], II(f"buffer_store_dword v22, v21, {SR(sWS)}, 0 offen sc1"), []))
                tl.vec_at(stepb[p, 7] + 3, Ins("v_add_u32 v22, 1, v22"))
            clr = II(f"buffer_store_dwordx4 {A(aCHK,4)}, v{vL16}, {SR(sXP)}, s{sT2} offen offset:{1024*(p&1)} sc1")
            if OPT.get("clr2"):
                if p % 2 == 1: grps.append(([], II(f"buffer_store_dwordx4 {A(aCHK,4)}, v{vL16}, {SR(sXP)}, s{sT2} offen sc1") + clr, []))
            elif OPT.get("clrpos") is not None: tl.vec_at(stepb[p, OPT["clrpos"][0]] + OPT["clrpos"][1], clr[0])
            elif not OPT.get("noclr"): grps.append(([], clr, []))
            if p % 2 == 0:
                q = stepb[p, 0] + 6
                for x in II(f"s_cmp_lt_u32 s{sCnt}, 5\ns_subb_u32 s3, s{sCnt}, 0\ns_and_b32 s{sT2}, s3, 3\ns_lshl_b32 s{sT2}, s{sT2}, 3\ns_or_b32 s{sT2}, s{sT2}, s3\ns_lshl_b32 s{sT2}, s{sT2}, 13\ns_xor_b32 s{sT2}, s{sT2}, s{sXR}\ns_cmp_gt_u32 s{sCnt}, 1\ns_cselect_b32 s{sT2}, s{sT2}, 0x40000000"):
                    q2 = tl.scal_at(q, x); assert q2 == q; q += 1
            if p % 2 == 0 and OPT.get("otouch"):
                grps.append((II(f"s_sub_u32 s3, s{sCnt}, {OPT['otouch']}\ns_mul_i32 s{sT}, s3, {BSTRIDE}\ns_add_u32 s{sT}, s{sT}, s{sBo}\ns_cmp_lt_u32 s3, 4\ns_cselect_b32 s{sT}, s{sT}, 0x40000000"), II(f"buffer_load_dword a252, v26, {SR(sB)}, s{sT} offen"), []))
            if p % 2 == 1 and OPT.get("htouch", 1):
                grps.append((II(f"s_cmp_eq_u32 s{sCnt}, {OPT.get('htrip', 1)}\ns_cselect_b32 s{sT}, s{sBg}, 0x40000000"), II(f"buffer_load_dword a252, v27, {SR(sB)}, s{sT} offen"), []))
            k = 0
            for grp in grps:
                for j, x in enumerate(grp[1]):
                    gi = stepb[p, k // len(VPOS)] + VPOS[k % len(VPOS)]; k += 1
                    if j == 0:
                        q = gi
                        for y in reversed(grp[0]):
                            q2 = tl.scal_at(q - 1, y, later=False); assert len(grp[0]) == 1 or q2 == q - 1; q = q2
                    tl.vec_at(gi, x); x.grp = grp; x.role = "vec"
                for x in grp[2]: gi = tl.scal_at(gi + 1, x)
            assert gi < stepb[p, 7]
            e_ = stepb[p, 7]
            if p % 2 == 1:
                tl.scal_at(e_ + 29, Ins(f"s_sub_u32 s{sCnt}, s{sCnt}, 1")); tl.scal_at(e_ + 30, Ins(f"s_cmp_lg_u32 s{sCnt}, 0")); tl.scal_at(e_ + 32, Ins("s_cbranch_scc1 L_att_loop"))
        for s in range(8):
            b0 = stepb[p, s]; nb = stepb[p, s + 1] if s < 7 else nxt[p]
            ns, npz = (s + 1) & 7, (p + 1 if s == 7 else p)
            if s == 7:
                i = tl.scal_at(b0 + (5 if p >= 0 else 4), W(lgkm=["V7", "K7"], vm=["DK", "DV"]))
                if not (OPT.get("nobar") and p >= 0): tl.scal_at(i + 1, Ins("s_barrier"))
            if p >= 0:
                kr = kreads(ns, (npz + 1) & 1, ns & 1, f"K{ns}"); vr = vreads(ns, npz & 1, ns & 1, f"V{ns}")
                free = [o for o in range(7 if s == 7 else 1, 32, 2) if not any(x.is_vmem for x in tl.g[b0 + o].vec)]
                assert len(free) >= 12
                for x, o in zip(kr + vr, free): tl.vec_at(b0 + o, x)
            else:
                tl.vec_in(b0 + 6, b0 + 10, kreads(ns, (npz + 1) & 1, ns & 1, f"K{ns}"))
                if s == 7: tl.vec_in(b0 + 10, nb - 1, vreads(0, 0, 0, "V0"))
                tl.scal_at(nb - 1, W(lgkm=f"K{ns}"), later=False)
    rot = OPT.get("rot", 1)
    sc = f"""s_add_u32 s{sXP}, s{sWS}, {WS_X}
s_addc_u32 s{sXP+1}, s{sWS+1}, 0
s_mov_b32 s{sXP+2}, 0x1000000
s_lshl_b32 s{sT}, s{sTr}, 2
s_add_u32 s{sT}, s{sT}, s{sTc}
s_lshl_b32 s{sT}, s{sT}, 2
s_add_u32 s{sT}, s{sT}, s{sSp}
s_lshl_b32 s{sT}, s{sT}, 16
s_lshl_b32 s{sXR}, s{sWave}, 11
s_add_u32 s{sXR}, s{sXR}, s{sT}
"""
    sc += f"""s_lshl_b32 s{sT}, s{sTc}, 8
s_lshl_b32 s{sWOo}, s{sWave}, 14
s_add_u32 s{sWOo}, s{sWOo}, s{sT}
s_mul_i32 s{sW2o}, s{sSp}, {448*1024}
s_add_u32 s{sW2o}, s{sW2o}, s{sWOo}
s_lshl_b32 s{sT}, s{sSp}, 20
s_add_u32 s{sWOo}, s{sWOo}, s{sT}
s_lshr_b32 s{sQ0}, s{sTr}, 1
s_lshl_b32 s{sQ0}, s{sQ0}, 2
s_and_b32 s{sT}, s{sTr}, 1
s_add_u32 s{sQ0}, s{sQ0}, s{sT}
s_lshl_b32 s{sQ0}, s{sQ0}, 2
s_xor_b32 s{sT}, s{sWave}, s{sSp}
s_and_b32 s{sT2}, s{sT}, 2
s_add_u32 s{sT}, s{sT}, s{sT2}
s_lshl_b32 s{sT}, s{sT}, 1
s_add_u32 s{sT}, s{sT}, s{sQ0}
s_mul_i32 s{sBg}, s{sT}, {BSTRIDE}
s_mul_i32 s{sT}, s{sSp}, {14*1024}
s_add_u32 s{sT}, s{sT}, {128*1024}
s_add_u32 s{sBg}, s{sBg}, s{sT}
s_lshl_b32 s{sT}, s{sHead}, 12
s_add_u32 s{sBo}, s{sBo}, s{sT}
s_mul_i32 s{sGk[0]}, s{sTc}, {4096*rot}
s_mul_i32 s{sHp[0]}, s{sTc}, {8192*rot}
s_lshl_b32 s{sT2}, s{sHp[0]}, 5
s_xor_b32 s{sWOo}, s{sWOo}, s{sT2}
"""
    for i in range(1, 7): sc += f"s_add_u32 s{sGk[i]}, s{sGk[i-1]}, 2048\ns_cmp_eq_u32 s{sGk[i]}, {7*2048}\ns_cselect_b32 s{sGk[i]}, 0, s{sGk[i]}\n"
    for i in range(1, 4): sc += f"s_xor_b32 s{sHp[i]}, s{sHp[0]}, {8192*i}\n"
    sc += f"""s_lshr_b32 s{sT}, s{sWave}, 1
s_mul_i32 s{sT}, s{sT}, {BSTRIDE}
s_and_b32 s3, s{sWave}, 1
s_lshl_b32 s3, s3, 12
s_add_u32 s3, s3, s{sT}
s_lshl_b32 s{sT}, s{sSp}, 15
s_add_u32 s3, s3, s{sT}
"""
    for lam in (3, 2, 1, 0):
        sc += f"s_xor_b32 s{sT}, s{sSp}, {lam}\ns_and_b32 s{sT2}, s{sT}, 2\ns_add_u32 s{sT}, s{sT}, s{sT2}\ns_lshl_b32 s{sT}, s{sT}, 1\ns_add_u32 s{sT}, s{sT}, s{sQ0}\ns_mul_i32 s{sBs[lam]}, s{sT}, {BSTRIDE}\ns_add_u32 s{sBs[lam]}, s{sBs[lam]}, s3\n"
    sc += f"""s_lshl_b32 s{sOo}, s{sT}, 14
s_lshl_b32 s{sT}, s{sTc}, 8
s_add_u32 s{sOo}, s{sOo}, s{sT}
s_lshl_b32 s{sT}, s{sWave}, 6
s_add_u32 s{sOo}, s{sOo}, s{sT}
s_add_u32 s{sXW}, s{sOo}, 16384
"""
    if OPT.get("noBg"): sc += f"s_mov_b32 s{sBg}, 0x40000000\n"
    if OPT.get("noOS"): sc += f"s_mov_b32 s{sBo}, 0x40000000\n"
    left = tl.sched(start[-1], nxt[-1] - 1, l0items + II(sc), look=200)
    print("first phase: left over", len(left), file=sys.stderr)
    tl.g[nxt[-1] - 1].vec += left
    T = vT
    VM1 = OPT.get("y1vm", (10, 19, 24))
    for s_ in range(8):
        for t in range(4):
            sr = vS + 4 * t; pd = P(1, s_ >> 1, t) + 2 * (s_ & 1)
            ps = [o + (1 if o >= 24 else 0) for o in range(8 + 6 * t, 14 + 6 * t)]
            for r in range(4): tl.vec_at(xb[s_] + ps[(0, 1, 3, 4)[r]], Ins(f"v_exp_f32 v{sr+r}, v{sr+r}"))
            for h in range(2):
                q = ps[2 + 3 * h]
                if q % 25 in VM1: q += 1
                tl.vec_at(xb[s_] + q, Ins(f"v_cvt_pk_bf16_f32 v{pd+h}, v{sr+2*h}, v{sr+2*h+1}"))
    for x in range(8):
        if x % 2 == 0: tl.scal_at(xb[x] + 15, W(lgkm=f"V{x//2}"))
        if x < 7: tl.scal_at(xb[x + 1] - 1, W(lgkm=f"K{x+1}"))
    for bl in range(6): tl.scal_at(yb[4 * bl] + (1 if bl == 0 else -1), W(lgkm=f"Y{bl}"))
    mb = OPT.get("ymb", 5)
    tl.scal_at(xb[mb] + 20, W(vm=["DV", "E1"])); tl.scal_at(xb[mb] + 21, Ins("s_barrier"))
    tl.scal_at(yb[0] + 2, W(lgkm="R")); tl.scal_at(yb[0] + 3, Ins("s_barrier"))
    b2 = OPT.get("yb2", 5)
    tl.scal_at(yb[b2], W(vm="E3")); tl.scal_at(yb[b2] + 1, Ins("s_barrier"))
    b3 = OPT.get("yb3", 11)
    tl.scal_at(yb[b3], W(lgkm="R")); tl.scal_at(yb[b3] + 1, Ins("s_barrier"))
    tl.scal_at(yb[20], Ins("s_barrier"))
    ld1 = f"buffer_load_dword v{vPoll}, v23, {SR(sWS)}, 0 offen sc1"
    chk1 = poll_check("h", vPoll, ld1, f"v_cmp_gt_u32 vcc, v31, v{vPoll}\ns_nop 0\ns_cmp_eq_u64 vcc, 0")
    def put(grps, slots):
        slots = list(slots); prev = slots[0] - 5
        for g in grps:
            for x in g[1]:
                gi = slots.pop(0)
                if x is g[1][0] and g[0]:
                    free = [q for q in range(max(prev + 1, gi - 5), gi) if not tl.g[q].scal][-len(g[0]):]
                    free = sorted(free + [gi - 1] * (len(g[0]) - len(free)))
                    for y, q in zip(g[0], free): tl.g[q].scal.append(y)
                tl.vec_at(gi, x); x.grp = g; x.role = "vec"; prev = gi
            for y in g[2]: tl.scal_at(gi + 1, y)
    assert [UNITS[u][0] for u in range(7)] == ["Ag", "Bg", "Ag", "Bg", "As", "As", "Ag"]
    sl = [xb[0] + 1, xb[0] + 5] + [xb[x] + o for x in range(8) for o in VM1]
    put([([], [Ins(ld1, tag="C1")], [])], [sl[-1]])
    put([dma_V(0, 1, "DV"), dma_V(1, 1, "DV"), udma(("As", 0)), udma(("As", 1)), udma(("As", 2)), udma(("As", 3))], sl[1:-1])
    Y = lambda f: yb[int(f)] + int((f - int(f)) * (yb[min(int(f) + 1, 24)] - yb[int(f)]))
    for n in range(16):
        i, t = FR[n]
        OSTORES.append((II(f"s_add_u32 s{sCnt}, s{sBo}, {t*BSTRIDE}"),
                        [Ins(f"buffer_store_dwordx4 {V(ost(n),4)}, v{vL16}, {SR(sB)}, s{sCnt} offen offset:{1024*i} sc1", tag="OS")], []))
    ospos = {}
    for n in range(14): ospos[n] = Y(wend(n)) + 3; put([OSTORES.pop(0)], [ospos[n]])
    def slots(lo, n, d):
        r = []
        while len(r) < n:
            while tl.g[lo].load: lo += 1
            r.append(lo); lo += d
        return r
    d1 = OPT.get("yd1", 5)
    sa = slots(yb[0] + 9, 16, d1)
    gp = tl.g[sa[8] - 1]; gp.vec += [W(vm="C1")] + chk1; gp.load += 1
    put([udma(0), udma(2), udma(1), udma(3)], sa)
    put([udma(4), udma(5)], slots(max(yb[b3] + 4, sa[-1] + d1), 8, OPT.get("yd2", 8)))
    EARLY[:] = [0, 1, 2, 3, 4, 5] + [6, 8][:OPT.get("e3", 1)]
    if EARLY[6:]: put([udma(u) for u in EARLY[6:]], slots(yb[20] + 4, 4 * len(EARLY[6:]), 7 // len(EARLY[6:])))
    su = II(f"""v_bfe_u32 v{T}, v0, 4, 2
v_mul_u32_u24 v{T}, 768, v{T}
v_add_u32 v{vDA}, v{vDV}, v{T}
v_add_u32 v{vDA+1}, v{vDV+1}, v{T}
v_add_u32 v{vDA+1}, 3072, v{vDA+1}
v_add_u32 v{vDA+2}, 6144, v{vDA}
v_add_u32 v{vDA+3}, 6144, v{vDA+1}
v_add_u32 v{vB1}, {BSTRIDE-2048}, v{vL16}""")
    su2 = II(f"""s_lshl_b32 s{sT}, s{sWave}, 6
s_or_b32 s{sT}, s{sT}, {L_V}
v_xor_b32 v25, s{sT}, v{vVA}
v_xor_b32 v26, s{sT}, v{vVA+1}
v_add_u32 v27, 0x10000, v25
v_add_u32 v28, 0x10000, v26""")
    tl.ddpen = 3; tl.vmpen = 4
    for x in range(7): tl.vec_in(xb[x], xb[x] + 17, kreads(x + 1, 1, (x + 1) & 1, f"K{x+1}"))
    for dt in range(1, 4): tl.vec_in(xb[2 * dt - 2] + 10, xb[2 * dt] + 9, vreads(dt, 0, dt & 1, f"V{dt}"))
    tl.vec_in(xb[6], xb[7] + 10, vreads(0, 1, 0, "Y0")); tl.vec_in(xb[6] + 16, xb[8] - 4, vreads(1, 1, 4, "Y0"))
    assert mb <= 5
    tl.vec_in(xb[mb] + 22, xb[8] - 3, ureads(("As", 0), 25) + ureads(("As", 1), 25))
    for bl in range(1, 6):
        s0, s1 = (0, 4) if bl % 2 == 0 else (1, 5)
        r = vreads(2, 1, s0, "Y1") + vreads(3, 1, s1, "Y1") if bl == 1 else vreads(bl + 2, 0, s0, f"Y{bl}") + vreads(bl + 2, 1, s1, f"Y{bl}")
        tl.vec_in(yb[4 * bl - 4], yb[4 * bl] - 7, r)
    def even(lo, hi, items):
        qs = [q for q in range(lo, hi + 1) if not any(x.is_vmem for x in tl.g[q].vec)]
        add = {q: 0 for q in qs}
        for x in items:
            q = min(qs, key=lambda z: (tl.g[z].load + add[z], z)); add[q] += 1
        left = list(items)
        for q in qs:
            for _ in range(add[q]): tl.vec_at(q, left.pop(0))
    even(xb[0], xb[2], su)
    left = tl.stream(xb[2], xb[4], su2, cap=3); assert not left
    vRL = vNM
    def lr(t): return II(f"v_accvgpr_read_b32 v{vRL+4+t}, a{aL+4*t}\nv_accvgpr_read_b32 v{vRL+t}, a{aL+4*t+1}\nv_add_f32 v{vRL+4+t}, v{vRL+4+t}, v{vRL+t}\nv_rcp_f32 v{vRL+t}, v{vRL+4+t}")
    where = lambda y: max(q for q, gp in enumerate(tl.g) if any(x is y for x in gp.vec))
    lo = 0; tail_ = []
    for n in range(16):
        i, t = FR[n]; o = ost(n); tb = vS + 8 * (n & 1)
        ar = [(k, O(2 * i + (k >> 2), t) + (k & 3)) for k in range(8)]
        if t & 1 and n < 8: ar = ar[4:] + ar[:4]
        items = (lr(t) if n < 4 else []) + II("\n".join(f"v_accvgpr_read_b32 v{tb+k}, a{a_}" for k, a_ in ar))
        items += II("\n".join(f"v_mul_f32 v{tb+k}, v{tb+k}, v{vRL+t}" for k, a_ in ar))
        items += II("\n".join(f"v_cvt_pk_bf16_f32 v{o+k}, v{tb+2*k}, v{tb+2*k+1}" for k in range(4)))
        lo = max(lo, cdone[n] + 2)
        if n == 15: tail_ = items; continue
        w1 = min(Y(wend(n)) + 1, end - 1); assert w1 < min(ospos.get(n, end), chkpos.get(n, end + 1) - 1) and w1 - lo >= 4, n
        if n == 4:
            assert yb[b2] + 1 < lo < yb[b3] - 24
            tl.vec_in(lo, yb[b3] - 6, ureads(("As", 2), 25) + ureads(("As", 3), 25))
        even(lo, w1, items); lo = w1 + 1
    print("ending: VALU left over", len(tail_), file=sys.stderr)
    blk = {p: tl.emit(start[p], nxt[p], f"att{p}") for p in phases}
    tx = lambda b: [(i.text, str(i.waitfor), i.tag) for i in b.ins]
    assert tx(blk[0]) == tx(blk[2]) and tx(blk[1]) == tx(blk[3])
    last = blk[15]
    for nm, x in (("x2", 0), ("x3", 12)):
        k_ = next(q for q, y in enumerate(last.ins) if y is tl.g[yb[x]].m); last.ins[k_:k_] = stamp_ins(STAMPS.get(nm))
    if OPT.get("osl"):
        assert len(tail_) == 20
        o13, o14 = OSTORES.pop(0), OSTORES.pop(0)
        last.ins += o13[0] + o13[1] + tail_[:8] + [mk(12)] + o14[0] + tail_[8:12] + o14[1] + [mk(13)] + tail_[12:16] + [mk(14)] + tail_[16:]
    else: last.ins += tail_[:-12] + [mk(12)] + tail_[-12:-8] + [mk(13)] + tail_[-8:-4] + [mk(14)] + tail_[-4:]
    last.tailchk = mk(15)
    return blk[-1], blk[0], blk[1], last

PARTS = [("G", 0), ("Q", 0), ("G", 1), ("Q", 1), ("G", 2), ("G", 3), ("Q", 2), ("Q", 3)]
SLOT = lambda i: (L_V + 32768, L_SP, L_V)[i % 3]
vNMU, vAQ, vAE, vIR = 32, 36, 40, 44
def XB(c, t, ks): return (c & 1) * 64 + (t * 4 + ks) * 4
def WF(fb, ks): return 212 + fb * 16 + ks * 4
def pacc(kind, u, t):
    if kind == "G": return V(128 + (u & 1) * 64 + ((u >> 1) * 4 + t) * 4, 4)
    ds, hf = u >> 1, u & 1
    return V(Q(t, ds), 4) if hf == 0 else A(128 + (t * 4 + ds) * 4, 4)
def wdma(i):
    kind, c = PARTS[i]; base = SLOT(i); g = []
    if kind == "Q":
        for half in range(2):
            g.append((II(f"s_add_u32 m0, s{sW8k}, {base + half*4096}\ns_add_u32 s{sT}, s{sWQo}, {(c*128+16*half)*8192}"),
                      [Ins(f"buffer_load_dwordx4 v{vDQ+p}, {SR(sWQ)}, s{sT} offen offset:{p*1024} lds", tag=f"DW{i}") for p in range(4)], []))
    else:
        for k, sr in enumerate((sW1, sW3)):
            g.append((II(f"s_add_u32 m0, s{sW4k}, {base + k*16384}\ns_add_u32 s{sT}, s{sW13o}, {c*128*3584}"),
                      [Ins(f"buffer_load_dwordx4 v{vD13+p}, {SR(sr)}, s{sT} offen offset:{p*1024} lds", tag=f"DW{i}") for p in range(4)], []))
    return g
def xdma(c):
    return [(II(f"s_xor_b32 m0, s100, {t*4096}\ns_xor_b32 s{sT}, s101, {t*16384 + c*256}"),
             [Ins(f"buffer_load_dwordx4 v{vDX+p}, {SR(sX)}, s{sT} offen offset:{p*1024} lds", tag=f"DX{c}") for p in range(4)], []) for t in range(4)]
def xreads(c):
    return [Ins(f"ds_read_b128 {A(XB(c,t,ks),4)}, v{vXA+ks} offset:{t*4096}", tag=f"X{c}") for t in range(4) for ks in range(4)]

def gen_proj(stats, var):
    S_ = var == "S"
    O_ = lambda k, d: OPT.get(k + var, OPT.get(k, d))
    tiles = lambda i: [0, 1, 4, 5, 2, 3] if (S_ and PARTS[i][0] == "G") else list(range(8))
    base = {"G": L_V, "Q": L_SP}
    def wreads(i, u, tag):
        kind, c = PARTS[i]; off0 = SLOT(i) - base[kind]; assert 0 <= off0 <= 32768
        r = []
        for ks in range(4):
            for kh in range(2):
                if kind == "Q": ad, off = vWQA + (u >> 1), ks * 8192 + kh * 1024 + 8 * (u & 1)
                else: ad, off = vW13A + (u >> 1), ks * 4096 + kh * 512 + 16384 * (u & 1)
                r.append(Ins(f"ds_read_b64_tr_b16 {A(WF(u&1,ks)+2*kh,2)}, v{ad} offset:{off0+off}", tag=tag))
        return r
    first_reads = wreads(0, 0, "W0")
    tl = TL(); tb = {}
    for i, (kind, c) in enumerate(PARTS):
        for pos_, u in enumerate(tiles(i)):
            tb[i, pos_] = len(tl.g)
            for t in range(4):
                d = pacc(kind, u, t)
                for n, ks in enumerate(snake(t)):
                    tl.add(MF(d, A(WF(u & 1, ks), 4), A(XB(c, t, ks), 4), OPT.get("b" + kind, "0") if (c == 0 and n == 0) else d))
            if u < 2 or (S_ and kind == "G" and u >= 4):
                d = A(aL + (8 if kind == "Q" else 0) + 4 * u, 4) if u < 2 else V(176 + 4 * (u - 4), 4)
                for kp in range(2): tl.add(Ins(f"v_smfmac_f32_16x16x64_bf16 {d}, {A(aONES,4)}, {A(WF(u&1,2*kp),8)}, v{vIDX}"))
    end = len(tl.g)
    tb[8, 0] = end
    LAST = lambda i: tb[i, len(tiles(i)) - 1]
    extra_vm = {1: ["ST"], 7: ["DK0"]}
    for i, (kind, c) in enumerate(PARTS):
        for u in range(len(tiles(i))):
            b0 = tb[i, u]; nb = tb.get((i, u + 1), tb[i + 1, 0])
            if b0 != LAST(i):
                r = wreads(i, tiles(i)[u + 1], f"W{u+1}")
                for k, x in enumerate(r): tl.vec_at(b0 + O_('wpos', (0, 1, 2, 4, 5, 6, 8, 9))[k], x)
                tl.scal_at(nb - 1, W(lgkm=f"W{u+1}"), later=False)
            else:
                vm = ([f"DW{i+1}"] if i < 7 else []) + extra_vm.get(i, [])
                tl.scal_at(b0, W(vm=vm, lgkm={4: ["X3"], 5: ["CS"], 7: ["CS"]}.get(i)))
                tl.scal_at(b0 + 1, Ins("s_barrier"))
                if i < 7:
                    nk = PARTS[i + 1][0]
                    if not 0 <= SLOT(i + 1) - base[nk] <= 32768:
                        dlt = SLOT(i + 1) - base[nk]; base[nk] += dlt
                        ad = vWQA if nk == "Q" else vW13A
                        for k in range(4): tl.vec_at(b0 + k // 2, Ins(f"v_add_u32 v{ad+k}, {dlt & 0xffffffff}, v{ad+k}"))
                    tl.vec_in(b0 + 2, b0 + 9, wreads(i + 1, 0, "W0"))
                    tl.scal_at(nb - 1, W(lgkm="W0"), later=False)
                else:
                    tl.vec_in(b0 + 2, b0 + 9, kreads(0, 0, 0, "K0"))
    P_ = lambda i, f: tb[i, 0] + int(f * (tb[i + 1, 0] - tb[i, 0]))
    def xout(c, lo, hi):
        j = tl.scal_at(lo, W(vm=f"DX{c}"))
        cc = tl.vec_in(j, hi, xreads(c))
        return cc[-1]
    def tch(dst, ad, sr, so): return Ins(f"buffer_load_dword a252, v{ad}, {SR(sr)}, {so} offen")
    TQ = lambda c: [(II(f"s_mov_b32 s{sT}, {c*128*8192}"), [tch(55, 22, sWQ, f"s{sT}")], [])]
    TG = lambda c: [(II(f"s_mov_b32 s{sT}, {c*128*3584}"), [tch(55, 23, sW1, f"s{sT}"), tch(55, 23, sW3, f"s{sT}")], [])]
    TK = [([], [tch(55, 53, sK, 0)], [])]; TV = [([], [tch(55, 53, sV, 0)], [])]
    kv = OPT.get("kvp", (9, 9, 9))
    at = lambda p: (TK if kv[0] == p else []) + (TV if kv[1] == p else []) + (TK2 if kv[2] == p else [])
    TK2 = [(II(f"s_mov_b32 s{sT}, 65536"), [tch(55, 53, sK, f"s{sT}")], [])]
    x1, x2, x3 = xdma(1), xdma(2), xdma(3)
    prev = [0]
    def sp(lo, hi, grps):
        lo = max(lo, prev[0] + 4); prev[0] = tl.spread(lo, max(hi, lo + 1), grps); return prev[0]
    SRL = [(II(f"s_lshl_b32 s{sT}, s{sCnt}, 11"), [Ins(f"buffer_load_dwordx4 {V(72+4*r,4)}, v58, {SR(sX)}, s{sT} offen offset:{512*r}", tag="SR") for r in range(2)], [])]
    CP = [([], II("global_load_dword a252, v[60:61], off"), [])]
    item = lambda n: {"W": lambda: wdma(int(n[1])), "Q": lambda: TQ(int(n[1])), "G": lambda: TG(int(n[1])), "S": lambda: SRL, "C": lambda: CP, "K": lambda: TK, "V": lambda: TV, "k": lambda: TK2,
                      "A": lambda: [([], [Ins(f"buffer_atomic_add v49, v48, {SR(sDBG)}, 0 offen", tag="AT")], [])],
                      "r": lambda: (x1, x2, x3)[int(n[1]) - 1][:1], "x": lambda: (x1, x2, x3)[int(n[1]) - 1][1:]}[n[0]]()
    PP = lambda f: P_(int(f), f - int(f))
    for ent in O_("sch", None):
        if ent[0] == "o":
            l = xout(ent[1], PP(ent[2]), min(PP(ent[3]), LAST((0, 1, 3, 4)[ent[1]]) - 6))
            assert PP(ent[2]) >= tb[(0, 0, 2, 4)[ent[1]], 0]
            if ent[1] < 3: prev[0] = max(prev[0], tl.scal_at(l + 5, W(lgkm=f"X{ent[1]}")))
        else:
            g_ = [g for n in ent[1].split() for g in item(n)]
            lo = max(PP(ent[0]), prev[0] + 4)
            sp(lo, lo + int((ent[2] if len(ent) > 2 else O_('dsp', 4.4)) * (sum(len(g[1]) for g in g_) - 1)), g_)
    w7 = O_("w7", 0)
    if not w7: sp(P_(5, .03), P_(5, .3), wdma(7))
    ld0 = f"buffer_load_dword v50, v51, {SR(sDBG)}, 0 offen sc1"
    ck0 = O_("ck0", .33)
    g = tl.g[P_(5, ck0)]
    g.vec += [W(vm="C0")] + poll_check("st" + var, 50, ld0, f"v_cmp_gt_u32 vcc, 32, v50\ns_nop 0\ns_cmp_eq_u64 vcc, 0"); g.load += 2
    sp(P_(5, ck0) + 3, P_(5, ck0 + .1), [([], [Ins(f"buffer_load_dwordx2 {V(56+2*t,2)}, v52, {SR(sWS)}, 0 offen offset:{128*t} sc1", tag="SL") for t in range(4)], [])])
    if w7:
        l = sp(P_(5, w7), P_(5, w7) + 30, wdma(7)); assert l < P_(5, min(O_("slpos", .8), 1))
    sp(0, P_(5, O_("k0e", .97)), [dma_K(0, 0, "DK0"), dma_K(1, 0, "DK0")])
    sp(P_(6, O_("v0a", .3)), P_(6, O_("v0b", .9)), [dma_V(0, 0, "DV"), dma_V(1, 0, "DV")])
    sp(P_(7, O_("v0a", .3)), P_(7, O_("v0b", .9)), [dma_K(0, 1, "DK"), dma_K(1, 1, "DK")])
    def span(tag):
        ps = [q for q, gp in enumerate(tl.g) for x in gp.vec if x.tag == tag]; return min(ps), max(ps)
    for i in range(1, 8):
        assert span(f"DW{i}")[1] < LAST(i - 1) and (i < 3 or span(f"DW{i}")[0] > LAST(i - 3) + 1), i
    for c in (1, 2, 3): assert span(f"DX{c}")[1] < span(f"X{c}")[0] and (c == 1 or span(f"DX{c}")[0] > span(f"X{c-1}")[1] + 5), c
    if not any("A" in e_[1].split() for e_ in O_("sch", None) if e_[0] != "o"): tl.vec_in(LAST(1) + 10, LAST(1) + 14, item("A")[0][1])
    assert span("AT")[0] > LAST(1) + 1
    left = tl.sched(P_(0, O_("stpos", .3)), P_(1, O_('sthi', 0)) - 1, stats); assert not left and P_(1, O_('sthi', 0)) <= tb[1, 4], len(left)
    tl.vec_in(PP(4 + O_("c0pos", .9)), PP(4 + O_("c0pos", .9)) + 6, [Ins(ld0, tag="C0")])
    for i, off in ((5, 0), (7, 1)):
        a0 = aL + 8 * off; it_ = []
        for u in range(2):
            it_ += II(f"v_accvgpr_read_b32 v22, a{a0+4*u}\nv_accvgpr_read_b32 v23, a{a0+4*u+1}\nv_add_f32 v22, v22, v23")
            it_ += [Ins(f"ds_write_b32 v21, v22 offset:{64*u}", tag="CS")]
        left = tl.stream(tb[i, 3], tb[i, 4] - 1, it_); assert not left
        if i == 5:
            it_ = []
            if S_:
                for u in range(2): it_ += II(f"v_add_f32 v{176+4*u}, v{176+4*u}, v{177+4*u}") + [Ins(f"ds_write_b32 v21, v{176+4*u} offset:{512+64*u}", tag="CS")]
            left = tl.stream(tb[i, 4] + 6, tb[i, 5] - 1, it_ + II(f"v_add_u32 v21, {L_V - L_K}, v21")); assert not left
    it = [W(vm="SL")]
    for t in range(4): it += II(f"v_rsq_f32 v{vAQ+t}, v{57+2*t}")
    for t in range(4): it += II(f"v_sub_f32 v{vNMU+t}, 0, v{56+2*t}\nv_mov_b32 v{vIR+t}, v{57+2*t}")
    for t in range(4): it += II(f"v_mul_f32 v{vAE+t}, {f32(-LOG2E)}, v{vAQ+t}\nv_mul_f32 v{vAQ+t}, {f32(LOG2E * 128 ** -0.5)}, v{vAQ+t}")
    h0 = tb[6, 0] + 2
    if O_("slpos", .8) < 1:
        left = tl.stream(P_(5, O_("slpos", .8)), tb[6, 0] - 1, it); assert not left, len(left)
        it = []
    else: it[0].guards = {f"v{56+k}" for k in range(8)}; h0 = P_(6, O_("slpos", .8) - 1) + 2
    NV = 3 if S_ else 4
    for v in range(NV): it += II(f"v_xor_b32 v{28+v}, {512 if (S_ and v == 2) else 128*v}, v54")
    def csread(v): return [Ins(f"ds_read_b128 {V(48+8*(v&1)+4*m,4)}, v{28+v} offset:{64*m}", tag=f"CG{v}") for m in range(2)]
    it += csread(0)
    for v in range(NV):
        if v < NV - 1: it += csread(v + 1)
        it += [W(lgkm=f"CG{v}")]
        for m in range(2):
            for t in range(4):
                d = 128 + m * 64 + (v * 4 + t) * 4
                for r in range(4): it += II(f"v_fmac_f32 v{d+r}, v{48+8*(v&1)+4*m+r}, v{vNMU+t}")
    mv30 = Ins(f"v_add_u32 v30, {L_V - L_K}, v28"); it.append(mv30)
    it += II(f"s_add_u32 s{sCnt}, s{sFs}, s{sBo}")
    if not S_: it += II(f"s_and_b32 s{sT2}, s{sWave}, 2\ns_lshl_b32 s{sT2}, s{sT2}, 9\nv_add_u32 v28, s{sT2}, v{vL16}\nv_xor_b32 v29, 0x400, v28")
    else:
        it += II(f"s_and_b32 s{sT2}, s{sHead}, 1\ns_lshl_b32 s{sT2}, s{sT2}, 11\nv_add_u32 v28, s{sT2}, v{vL16}\ns_xor_b32 s{sT2}, s{sHead}, s{sWave}\ns_and_b32 s{sT2}, s{sT2}, 1\ns_lshl_b32 s{sT2}, s{sT2}, 3\ns_add_u32 s{sT2}, s{sT2}, 1024\nv_add_u32 v29, s{sT2}, v{vL16}")
    rest = []
    for n in range(8):
        t, i = n >> 1, n & 1
        N = 4 if (S_ and i == 1) else 8
        gr = [128 + ((2 * i + hf) * 4 + t) * 4 + r for hf in range(2) for r in range(4)][:N]
        ur = [x + 64 for x in gr]; q = []
        if n < O_("nh", 0):
            for k in range(N): q += II(f"v_mul_f32 v{ur[k]}, v{ur[k]}, v{gr[k]}\nv_mul_f32 v{gr[k]}, v{vAE+t}, v{gr[k]}")
            for k in range(N): q += II(f"v_exp_f32 v{gr[k]}, v{gr[k]}") + (II(f"v_fma_f32 v{gr[k-2]}, v{gr[k-2]}, v{vIR+t}, v{vIR+t}") if k >= 2 else [])
            for k in range(N): q += II(f"v_rcp_f32 v{gr[k]}, v{gr[k]}") + II(f"v_fma_f32 v{gr[k+N-2]}, v{gr[k+N-2]}, v{vIR+t}, v{vIR+t}" if k < 2 else f"v_mul_f32 v{gr[k-2]}, v{gr[k-2]}, v{ur[k-2]}")
            for k in (N - 2, N - 1): q += II(f"v_mul_f32 v{gr[k]}, v{gr[k]}, v{ur[k]}")
        else:
            o = t & 1; ae, ir = V(vAE + t - o, 2), V(vIR + t - o, 2)
            for k in range(0, N, 2): q += II(f"v_pk_mul_f32 {V(ur[k],2)}, {V(ur[k],2)}, {V(gr[k],2)}\nv_pk_mul_f32 {V(gr[k],2)}, {V(gr[k],2)}, {ae} op_sel:[0,{o}] op_sel_hi:[1,{o}]")
            for k in range(N): q += II(f"v_exp_f32 v{gr[k]}, v{gr[k]}")
            for k in range(0, N, 2): q += II(f"v_pk_fma_f32 {V(gr[k],2)}, {V(gr[k],2)}, {ir}, {ir} op_sel:[0,{o},{o}] op_sel_hi:[1,{o},{o}]")
            for k in range(N): q += II(f"v_rcp_f32 v{gr[k]}, v{gr[k]}")
            for k in range(0, N, 2): q += II(f"v_pk_mul_f32 {V(gr[k],2)}, {V(gr[k],2)}, {V(ur[k],2)}")
        for k in range(N // 2): q += II(f"v_cvt_pk_bf16_f32 v{gr[0]+k}, v{gr[2*k]}, v{gr[2*k+1]}")
        q += II(f"buffer_store_dwordx{N//2} {V(gr[0],N//2)}, v{28+i}, {SR(sB)}, s{sCnt} offen sc1")
        if i == 1 and t < 3: q += II(f"s_add_u32 s{sCnt}, s{sCnt}, {BSTRIDE}")
        if n < O_("nh", 0): it += q
        else: rest += q
    lastcs = [x for x in it if x.tag == f"CG{NV-1}"][-1]
    left = tl.sched(h0, end - 1, it, look=O_("look", 70))
    assert len(left) <= 54 * O_("nh", 0) and not any(x is mv30 for x in left)
    pos = [k for k, gp in enumerate(tl.g) if any(x is lastcs for x in gp.vec)]
    assert pos and pos[0] < tb[6, 6], (pos, tb[6, 6])

    for nm, i in [(f"p{i}", i) for i in range(1, 8)]:
        tl.g[tb[i, 0]].scal = stamp_ins(STAMPS.get(nm)) + tl.g[tb[i, 0]].scal
    body = tl.emit(0, end, "proj" + var)
    print("h epilogue leftover", len(left), "of", len(it), file=sys.stderr)
    return first_reads, body, left + rest

def gen_kernel():
    b = Block(); b.name = "setup"
    b.e(f"s_cmp_ge_u32 s2, 256\ns_cbranch_scc1 L_end\ns_mov_b32 s{sFB}, 0")
    if OPT.get("shuffle"): b.e("s_and_b32 s3, s2, 7\ns_lshl_b32 s3, s3, 5\ns_lshr_b32 s2, s2, 3\ns_or_b32 s2, s2, s3")
    if OPT.get("delay"): b.e(f"s_mov_b32 s3, {OPT['delay']}\nL_dly:\ns_sub_u32 s3, s3, 1\ns_cmp_lg_u32 s3, 0\ns_cbranch_scc1 L_dly")
    if OPT["stamp"]:
        for i in range(20): b.e(f"s_mov_b32 s{72+i}, 0")
        stamp(b, "start")
    b2 = Block(); b2.name = "setup1"; b_ = b; b = b2
    b.e("L_restart:")
    for sr, off in ((sX, 0), (sW1, 48), (sW3, 56), (sWQ, 24)): b.e(f"s_load_dwordx2 s[{sr}:{sr+1}], s[0:1], {off}")
    T0, T1, T2, T3, T4 = 56, 57, 58, 59, 60
    vl, vc, vg, vi2, vi3 = 61, 62, 63, 22, 23
    b.e("s_getpc_b64 s[100:101]\nL_pc:")
    b.e(f"s_lshr_b32 s{sT}, s2, 3\ns_mul_i32 s{sT2}, s{sT}, 2560\nv_mul_u32_u24 v108, 10, v0\nv_add_u32 v108, s{sT2}, v108\nv_and_b32 v108, 0xffffff80, v108\nv_min_u32 v108, L_code_end-L_pc, v108\nv_mov_b32 v109, s101")
    b.e(f"v_add_co_u32 v108, vcc, s100, v108\nv_lshrrev_b32 v{T0}, 6, v0\nv_and_b32 v{vc}, 15, v0\nv_addc_co_u32 v109, vcc, 0, v109, vcc\nglobal_load_dword v107, v[108:109], off")
    b.e(f"v_readfirstlane_b32 s{sWave}, v{T0}\nv_bfe_u32 v{vg}, v0, 4, 2\ns_and_b32 s{sT}, s{sT}, 3\ns_lshr_b32 s{sQb}, s2, 5")
    b.e(f"s_lshl_b32 s{sW16k}, s{sWave}, 14\ns_lshl_b32 s{sXb}, s{sQb}, 18\ns_lshl_b32 s{sT2}, s{sWave}, 16\ns_add_u32 s{sXb}, s{sXb}, s{sT2}")
    b.e(f"s_lshl_b32 s100, s{sT}, 12\ns_add_u32 s100, s100, s{sW16k}\ns_lshl_b32 s101, s{sT}, 14\ns_add_u32 s101, s101, s{sXb}")
    b.e(f"s_and_b32 s{sHead}, s2, 7\ns_lshl_b32 s{sHead}, s{sHead}, 2\ns_add_u32 s{sHead}, s{sHead}, s{sT}")
    b.e(f"v_xor_b32 v{T0}, v{vg}, v{vc}\nv_lshlrev_b32 v{T0}, 4, v{T0}\nv_lshl_add_u32 v{vDX}, v{vg}, 10, v{T0}")
    for p in range(1, 4): b.e(f"v_xor_b32 v{T2}, {64*p}, v{vDX}\nv_add_u32 v{vDX+p}, {p*3072}, v{T2}")
    b.e(f"s_mov_b32 s{sX+2}, 0x200000\ns_mov_b32 s{sX+3}, 0x20000\ns_waitcnt lgkmcnt(0)")
    stamp(b, "karg")
    b.e(f"s_and_b32 s{sX+1}, s{sX+1}, 0xffff")
    xg = xdma(0); wg = wdma(0)
    emit_grp(b, xg[0])
    for sr, off in ((sK, 8), (sV, 16), (sB, 88), (sH, 88), (sWS, 88), (sDBG, 80), (sWO, 32), (sW2, 64), (sOut, 72)):
        b.e(f"s_load_dwordx2 s[{sr}:{sr+1}], s[0:1], {off}")
    b.e(f"s_and_b32 s{sT2}, s{sHead}, 3\ns_lshr_b32 s3, s{sT2}, 1\ns_add_u32 s{sT}, s3, 8\ns_mul_i32 s3, s3, 3\ns_add_u32 s3, s3, 8\ns_lshl_b32 s{sFs}, s{sT2}, 1\ns_bitcmp1_b32 s2, 0")
    b.e(f"s_cselect_b32 s{sT}, s{sT}, s{sT2}\ns_cselect_b32 s{sFs}, s3, s{sFs}\ns_add_u32 s{sT}, s{sT}, s{sT2}\ns_lshr_b32 s3, s{sHead}, 3\ns_mul_i32 s3, s3, 14\ns_add_u32 s{sT}, s{sT}, s3\ns_lshl_b32 s{sT}, s{sT}, 6")
    ptr_add(b, sW1, f"s{sT}"); ptr_add(b, sW3, f"s{sT}")
    b.e(f"s_sub_u32 s{sT2}, {512*3584}, s{sT}\ns_add_u32 s{sFs}, s{sFs}, s3\ns_add_u32 s{sFs}, s{sFs}, 128\ns_lshl_b32 s{sFs}, s{sFs}, 10")
    srd_fin(b, sW1, f"s{sT2}"); srd_fin(b, sW3, f"s{sT2}")
    b.e(f"s_lshr_b32 s{sBo}, s{sXb}, 14\nv_and_b32 v{vl}, 63, v0")
    b.e(f"v_lshrrev_b32 v{T0}, 2, v{vl}\nv_and_b32 v{T1}, 3, v0\nv_lshl_add_u32 v{T1}, v{T0}, 7, v{T1}\nv_add_u32 v{T1}, s{sBo}, v{T1}\nv_mul_u32_u24 v101, 3584, v{T1}\nv_lshl_add_u32 v103, v{T0}, 26, v101")
    if not OPT.get("noptouch"): b.e(f"buffer_load_dword v105, v103, {SR(sW1)}, 0 offen\nbuffer_load_dword v106, v103, {SR(sW3)}, 0 offen")
    b.e(f"s_lshl_b32 s{sCnt}, s{sQb}, 7\ns_lshl_b32 s{sT2}, s{sHead}, 2\ns_add_u32 s{sCnt}, s{sCnt}, s{sT2}\ns_add_u32 s{sCnt}, s{sCnt}, s{sWave}\nv_lshlrev_b32 v{vL16}, 4, v{vl}")
    for g in (xg[1], xg[2], xg[3])[:OPT.get("nx", 1)]: emit_grp(b, g)
    b.e(f"s_lshl_b32 s{sT}, s{sHead}, 8"); ptr_add(b, sWQ, f"s{sT}"); b.e(f"s_sub_u32 s{sT2}, 0x400000, s{sT}")
    srd_fin(b, sWQ, f"s{sT2}")
    b.e(f"v_lshrrev_b32 v{T0}, 3, v{vl}\nv_bfe_u32 v{T1}, v0, 1, 2\nv_lshl_add_u32 v{T1}, v{T0}, 7, v{T1}\nv_add_u32 v{T1}, s{sBo}, v{T1}\nv_and_b32 v{T2}, 1, v0\nv_lshlrev_b32 v{T2}, 7, v{T2}\nv_lshl_add_u32 v100, v{T1}, 13, v{T2}\nv_lshl_add_u32 v102, v{T0}, 26, v100")
    if OPT.get("q0first"): b.e(f"buffer_load_dword a252, v102, {SR(sWQ)}, 0 offen")
    b.e(f"s_bfe_u32 s{sSp}, s2, 0x20001\ns_lshr_b32 s{sTc}, s2, 6\ns_bfe_u32 s{sTr}, s2, 0x30003\ns_and_b32 s{sT}, s2, 1\ns_lshl_b32 s{sT}, s{sT}, 3\ns_add_u32 s{sTr}, s{sTr}, s{sT}")
    b.e(f"s_lshl_b32 s{sW8k}, s{sWave}, 13\ns_lshl_b32 s{sW4k}, s{sWave}, 12\ns_mul_i32 s{sBo}, s{sBo}, {BSTRIDE}")
    b.e(f"s_lshl_b32 s{sWQo}, s{sWave}, 18\ns_mul_i32 s{sW13o}, s{sWave}, {32*3584}\ns_mov_b32 s{sKo}, s{sW8k}\ns_mov_b32 s{sVo}, s{sW8k}")
    b.e(f"v_mul_u32_u24 v{T0}, 3584, v{T0}\nv_and_b32 v{T1}, 7, v0\nv_and_b32 v{T2}, 1, v{vg}\nv_lshlrev_b32 v{T2}, 1, v{T2}\nv_xor_b32 v{T1}, v{T1}, v{T2}")
    for p in range(4): b.e(f"v_xor_b32 v{T2}, {4*(p&1)}, v{T1}\nv_lshl_add_u32 v{T2}, v{T2}, 4, v{T0}\nv_add_u32 v{vD13+p}, {p*27648}, v{T2}")
    b.e(f"v_lshlrev_b32 v{T0}, 2, v{vg}\nv_xor_b32 v{T0}, v{vc}, v{T0}\nv_lshlrev_b32 v{T0}, 4, v{T0}\nv_lshl_add_u32 v{vDQ}, v{vg}, 13, v{T0}")
    for p in range(1, 4): b.e(f"v_add_u32 v{vDQ+p}, {p*31744}, v{vDQ}")
    b.e("s_waitcnt lgkmcnt(0)")
    late = [xg[1], xg[2], xg[3], wg[0], wg[1]][OPT.get("nx", 1):]
    if OPT.get("wfirst"): late = late[-2:] + late[:-2]
    stamp(b, "a1")
    c = Block(); c.name = "setup2"
    c.e(f"s_lshl_b32 s{sT}, s{sHead}, 19"); ptr_add(c, sK, f"s{sT}"); ptr_add(c, sV, f"s{sT}")
    srd_fin(c, sK, 0x80000); srd_fin(c, sV, 0x80000)
    wso = OPT.get("wsoff", 0) << 20
    if wso: ptr_add(c, sWS, wso)
    ptr_add(c, sB, WS_B + wso); ptr_add(c, sH, WS_B + wso); srd_fin(c, sB, 128 * BSTRIDE)
    srd_fin(c, sH, 0)
    srd_fin(c, sWS, 0x28000); srd_fin(c, sDBG, 256); srd_fin(c, sOut, 0x200000)
    srd_fin(c, sWO, 0 if OPT.get("noA") else 4096 * 1024); srd_fin(c, sW2, 0 if OPT.get("noA") else 1792 * 1024)
    c.e(f"v_bfe_u32 v{vi2}, v0, 2, 2\nv_and_b32 v{vi3}, 3, v0")
    c.e(f"v_lshl_add_u32 v{T0}, v{vg}, 3, v{vi2}\nv_lshlrev_b32 v{T1}, 8, v{T0}\nv_lshl_add_u32 v{T1}, v{vi3}, 4, v{T1}\nv_add_u32 v{T1}, {L_SP}, v{T1}\nv_xor_b32 v{T3}, s{sWave}, v{vi2}")
    for i in range(4): c.e(f"v_xor_b32 v{T2}, {i}, v{T3}\nv_lshl_add_u32 v{vWQA+i}, v{T2}, 6, v{T1}")
    c.e(f"v_lshlrev_b32 v{T1}, 7, v{T0}\nv_lshl_add_u32 v{T1}, v{vi3}, 3, v{T1}\nv_add_u32 v{T1}, {L_V}, v{T1}")
    c.e(f"v_and_b32 v{T3}, 1, v{vg}\nv_lshlrev_b32 v{T3}, 1, v{T3}\nv_lshrrev_b32 v{T4}, 1, v{vi2}\nv_or_b32 v{T3}, v{T3}, v{T4}")
    c.e(f"s_and_b32 s3, s{sHead}, 1\ns_sub_u32 s{sT2}, 2, s3\ns_lshl_b32 s3, s3, 1\ns_and_b32 s{sT}, s{sWave}, 1\ns_or_b32 s{sT}, s{sT}, s3\ns_xor_b32 s3, s{sWave}, 2\ns_bitcmp1_b32 s2, 0\ns_cselect_b32 s{sT}, s{sT}, s{sWave}\ns_cselect_b32 s{sT2}, s{sT2}, s3")
    for i in (0, 2): c.e(f"v_xor_b32 v{T2}, s{sT2 if i else sT}, v{T3}\nv_lshl_add_u32 v{vW13A+i}, v{T2}, 5, v{T1}\nv_xor_b32 v{vW13A+i+1}, 32, v{vW13A+i}")
    for r in range(8): c.e(f"v_mov_b32 v{176+r}, 0")
    for r in range(4): c.e(f"v_accvgpr_write_b32 a{aCHK+r}, -1")
    c.e(f"v_xor_b32 v{T0}, v{vg}, v{vc}\nv_lshlrev_b32 v{T1}, 8, v{vc}\nv_add_u32 v{T3}, s{sW16k}, v{T1}\ns_lshl_b32 s{sT}, s{sWave}, 2")
    for i in range(4): c.e(f"v_xor_b32 v{T2}, {4*i}, v{T0}\nv_lshl_add_u32 v{vXA+i}, v{T2}, 4, v{T3}\nv_xor_b32 v{T2}, s{sT}, v{T2}\nv_lshl_add_u32 v{vKA+i}, v{T2}, 4, v{T1}")
    c.e(f"v_lshl_add_u32 v{T0}, v{vg}, 2, v{vi2}\nv_lshlrev_b32 v{T1}, 8, v{T0}\nv_lshl_add_u32 v{T1}, v{vi3}, 3, v{T1}\nv_add_u32 v{T1}, {L_V}, v{T1}\nv_and_b32 v{T0}, 7, v{T0}")
    for dt in range(8): c.e(f"v_xor_b32 v{T2}, {dt}, v{T0}\nv_lshl_add_u32 v{vVA+dt}, v{T2}, 5, v{T1}")
    c.e(f"v_lshlrev_b32 v{T1}, 8, v{vg}\nv_xor_b32 v{T0}, v{vg}, v{vc}")
    for p in range(4): c.e(f"v_xor_b32 v{T2}, {4*p}, v{T0}\nv_lshl_add_u32 v{vDK+p}, v{T2}, 4, v{T1}")
    c.e(f"v_lshlrev_b32 v{T0}, 1, v{vg}\nv_xor_b32 v{T0}, v{T0}, v{vc}")
    for p in range(2): c.e(f"v_xor_b32 v{T2}, {8*p}, v{T0}\nv_lshl_add_u32 v{vDV+p}, v{T2}, 4, v{T1}")
    if OPT.get("half1"): c.e(f"v_bfe_u32 v{T0}, v0, 1, 1\nv_add_u32 v{T0}, -1, v{T0}\nv_and_b32 v{T0}, 0x3f803f80, v{T0}")
    else: c.e(f"v_mov_b32 v{T0}, 0x3f803f80")
    for i in range(4): c.e(f"v_accvgpr_write_b32 a{aONES+i}, v{T0}")
    c.e(f"s_lshl_b32 s{sT}, s{sQb}, 5\nv_and_b32 v51, 7, v0\nv_lshlrev_b32 v51, 5, v51\ns_cmp_eq_u32 s{sFB}, 0\ns_cselect_b32 s{sT}, s{sT}, {OOB}")
    c.e(f"v_mov_b32 v{T0}, {OOB}\nv_mov_b32 v{T1}, s{sT}\nv_cmp_eq_u32 vcc, 0, v0\nv_mov_b32 v49, 1\nv_cndmask_b32 v48, v{T0}, v{T1}, vcc")
    c.e(f"s_lshl_b32 s{sT}, s{sQb}, 5\ns_add_u32 s{sT}, s{sT}, s{sHead}\ns_lshl_b32 s{sT}, s{sT}, 7\ns_add_u32 s{sT}, s{sT}, {WS_FH}\ns_cmp_eq_u32 s{sFB}, 0\ns_cselect_b32 s{sT}, s{sT}, {OOB >> 1}")
    c.e(f"s_and_b32 s{sT2}, s{sHead}, 7\ns_mul_i32 s{sT2}, s{sT2}, 124\ns_sub_u32 s{sT2}, {WS_FO-WS_FH}, s{sT2}\nv_mov_b32 v{T2}, s{sT}\nv_mad_u32_u24 v{T1}, v0, s{sT2}, v{T2}\nv_cmp_gt_u32 vcc, 2, v0\nv_mov_b32 v55, 0\nv_cndmask_b32 v53, v{T0}, v{T1}, vcc")
    c.e(f"s_lshr_b32 s{sT}, s{sXb}, 7\nv_lshlrev_b32 v52, 3, v{vc}\nv_add_u32 v52, s{sT}, v52")
    c.e(f"s_lshl_b32 s{sT}, s{sWave}, 7\nv_lshlrev_b32 v54, 4, v{vg}\nv_add_u32 v54, s{sT}, v54\nv_add_u32 v54, {L_K+32768}, v54\ns_add_u32 s{sT}, s{sT}, {L_K+32768}\nv_lshl_add_u32 v21, v{vc}, 2, s{sT}")
    for i in range(4): c.e(f"v_accvgpr_write_b32 a{aZ+i}, 0")
    c.e(f"v_and_b32 v{vIDX}, 1, v0\nv_mul_u32_u24 v{vIDX}, 0xaaaa, v{vIDX}\nv_add_u32 v{vIDX}, 0x4444, v{vIDX}")
    c.e(f"v_mfma_f32_32x32x16_bf16 {A(aL,16)}, {A(aZ,4)}, {A(aZ,4)}, 0")
    stamp(c, "a2")
    c.e(f"s_lshl_b32 s{sT2}, s{sCnt}, 4\nv_lshrrev_b32 v{T2}, 5, v{vl}\nv_lshl_add_u32 v{T1}, v{T2}, 3, s{sT2}\nv_lshl_add_u32 v{T2}, v{T2}, 9, v{vL16}\nv_and_b32 v{T3}, 31, v0\nv_cmp_eq_u32 vcc, 0, v{T3}\nv_cndmask_b32 v{T1}, v{T0}, v{T1}, vcc")
    c.e("v_mov_b32 v22, v102\nv_mov_b32 v23, v103\nv_accvgpr_write_b32 a254, v108\nv_accvgpr_write_b32 a255, v109")
    c.e("v_mov_b32 v60, v108\nv_mov_b32 v61, v109")
    su_ = c.ins; c.ins = []
    rd_scc = lambda x: x.op.startswith(("s_addc", "s_subb", "s_cselect", "s_cbranch"))
    wr_scc = lambda x: x.kind == "salu" and not x.op.startswith(("s_mov", "s_mul", "s_cselect"))
    def scc_live(k):
        for x in su_[k:]:
            if rd_scc(x): return True
            if wr_scc(x): return False
        return False
    lq = [[Ins(y.text.replace(f"s{sT}", "s95" if False else f"s{sOut+2}"), tag=y.tag) for y in ([*g[0], x] if x is g[1][0] else [x])] for g in late for x in g[1]]
    nxt_ = OPT.get("il0", 60); per = OPT.get("ilp", 10)
    outfin = [x for x in su_ if f"s{sOut+2}" in x.writes]; su_ = [x for x in su_ if x not in outfin]
    for k_, x in enumerate(su_):
        if lq and k_ >= nxt_ and not (len(lq[0]) > 1 and scc_live(k_)): c.ext(lq.pop(0)); nxt_ = k_ + per
        c.add(x)
    for q in lq: c.ext(q)
    c.ext(outfin)
    def pre_items(blk):
        for n in OPT["pre"].split():
            if n == "Q0": blk.e(f"buffer_load_dword a252, v22, {SR(sWQ)}, 0 offen")
            if n == "G1": blk.e(f"s_mov_b32 s{sT}, {128*3584}\nbuffer_load_dword a252, v23, {SR(sW1)}, s{sT} offen\nbuffer_load_dword a252, v23, {SR(sW3)}, s{sT} offen")
            if n == "S":
                blk.e(f"s_lshl_b32 s{sT}, s{sCnt}, 11")
                for r in range(2): blk.e(f"buffer_load_dwordx4 {V(72+4*r,4)}, v{T2}, {SR(sX)}, s{sT} offen offset:{512*r}", tag="SR")
        blk.e(f"buffer_store_dword v55, v53, {SR(sWS)}, 0 offen sc1")
    if not OPT.get("prelate", 1): pre_items(c)
    stamp(c, "a4")
    c_ = c; c = Block(); c.wait(vm="SR")
    X = lambda k: 88 + k + (8 if k >= 8 else 0)
    for k in range(8): c.e(f"v_lshlrev_b32 v{X(2*k)}, 16, v{72+k}\nv_and_b32 v{X(2*k+1)}, 0xffff0000, v{72+k}")
    def wred(d):
        c.e("v_add_f32 v120, v120, v121")
        for sh in (8, 4, 2, 1): c.e(f"v_add_f32_dpp v120, v120, v120 row_ror:{sh} row_mask:0xf bank_mask:0xf")
        c.e(f"v_mov_b32 v121, v120\nv_permlane16_swap_b32 v121, v120\nv_add_f32 v120, v120, v121\nv_mul_f32 v{d}, {f32(1/512)}, v120")
    for k in range(7):
        for r in range(2): c.e(f"v_add_f32 v{120+r}, v{X(8*r+k+1)}, v{X(8*r) if k == 0 else (120+r)}")
    wred(122)
    for k in range(16): c.e(f"v_sub_f32 v{X(k)}, v{X(k)}, v122")
    for k in range(8):
        for r in range(2): c.e(f"v_mul_f32 v{120+r}, v{X(8*r)}, v{X(8*r)}" if k == 0 else f"v_fmac_f32 v{120+r}, v{X(8*r+k)}, v{X(8*r+k)}")
    wred(123)
    def rnd(r): c.e(f"v_cvt_pk_bf16_f32 v{r}, v{r}, v{r}\nv_and_b32 v{r}, 0xffff0000, v{r}")
    rnd(122); rnd(123); c.e(f"v_add_f32 v123, {f32(1e-5)}, v123"); rnd(123); c.e("v_sqrt_f32 v123, v123"); rnd(123); c.e("v_mul_f32 v123, v123, v123")
    c.e(f"buffer_store_dwordx2 v[122:123], v{T1}, {SR(sWS)}, 0 offen sc1", tag="ST")
    st_ = [x for x in c.ins if x.kind != "nop"]; c = c_
    def stats():
        w_ = W(vm="SR"); w_.guards = {f"v{72+k}" for k in range(8)}
        return [w_] + [Ins(x.text, tag=x.tag) for x in st_[1:]]
    PJ = {}
    for var in "FS":
      first_reads, proj, hleft = gen_proj(stats(), var)
      e = Block(); e.name = "projepi"
      stamp(e, "projend")
      for i in range(4): e.e(f"v_xor_b32 v{24+i}, {128*i}, v30")
      def cq(i): return [Ins(f"ds_read_b128 {V(48+8*(i&1)+4*hf,4)}, v{24+i} offset:{64*hf}", tag=f"CQ{i}") for hf in range(2)]
      e.ext(cq(0) + cq(1))
      nfirst = [k for k, x in enumerate(hleft) if x.kind == "vstore"][0] + 1
      e.ext(hleft[:nfirst]); hleft = hleft[nfirst:]
      H = 192
      for ds in range(4):
          e.wait(lgkm=f"CQ{ds}")
          for t in range(4):
              d = Q(t, ds); h = H + 16 * (t & 1); o = t & 1; nm, aq = V(vNMU + t - o, 2), V(vAQ + t - o, 2); CS = 48 + 8 * (ds & 1)
              for k in range(4): e.e(f"v_accvgpr_read_b32 v{h+k}, a{128+(t*4+ds)*4+k}")
              prs = [(d, CS), (d + 2, CS + 2), (h, CS + 4), (h + 2, CS + 6)]
              for x, cs in prs: e.e(f"v_pk_fma_f32 {V(x,2)}, {V(cs,2)}, {nm}, {V(x,2)} op_sel:[0,{o},0] op_sel_hi:[1,{o},1]")
              for x, cs in prs:
                if OPT.get("bQ"): e.e(f"v_pk_fma_f32 {V(x,2)}, {V(x,2)}, {aq}, {aq} op_sel:[0,{o},{o}] op_sel_hi:[1,{o},{o}] neg_lo:[0,0,1] neg_hi:[0,0,1]")
                else: e.e(f"v_pk_mul_f32 {V(x,2)}, {V(x,2)}, {aq} op_sel:[0,{o}] op_sel_hi:[1,{o}]")
              for k, (x, cs) in enumerate(prs): e.e(f"v_cvt_pk_bf16_f32 v{d+k}, v{x}, v{x+1}")
          if ds < 2: e.ext(cq(ds + 2))
      PM = 48
      ch = [MF(V(PM + 4 * t, 4), A(KF(0, ds), 4), V(Q(t, ds), 4), "0" if n == 0 else V(PM + 4 * t, 4)) for t in range(4) for n, ds in enumerate(snake(t))]
      run = 0
      for k, x in enumerate(hleft):
          run = run + 1 if x.kind == "trans" else 0
          if ch and x.kind == "trans" and 3 <= run <= 5: e.add(ch.pop(0))
          e.add(x)
      e.ext(ch)
      h_ = Block(); h_.name = "projhead"
      if var == "F": h_.e("L_proj_F:")
      if not OPT.get("wfirst"): h_.wait(vm="DX0"); h_.ext(xreads(0))
      if OPT.get("prelate", 1) == 1: pre_items(h_)
      h_.wait(vm="DW0"); stamp(h_, "a6"); h_.e("s_barrier"); h_.ext(first_reads)
      if OPT.get("prelate", 1) == 2: pre_items(h_)
      if OPT.get("wfirst"): h_.wait(vm="DX0"); h_.ext(xreads(0))
      h_.wait(lgkm=["W0", "X0"]); stamp(h_, "p0")
      e.e("s_cmp_eq_u32 0, 0")
      if var == "F": e.e("s_branch L_proj_join")
      PJ[var] = [h_, proj, e]
    stamp(c, "a5")
    for _ in range(OPT.get("pad1", 0)): c.e("s_nop 0")
    c.e("s_bitcmp1_b32 s2, 0\ns_cbranch_scc0 " + ("L_proj_join" if OPT.get("warm", 1) else "L_proj_F"))
    e = Block(); e.name = "join"; e.e("L_proj_join:\ns_cbranch_scc0 L_proj_F")
    e.e(f"s_cmp_lg_u32 s{sFB}, 0\ns_cbranch_scc1 L_truemax")
    e2 = Block(); e2.name = "premax"
    def rowmax_finish(blk, src, dl=0):
        for sw in ("32", "16"):
            for t in range(4): blk.e(f"v_mov_b32 v{vT+t}, v{src(t)}")
            for t in range(4): blk.e(f"v_permlane{sw}_swap_b32 v{vT+t}, v{src(t)}")
            for t in range(4): blk.e(f"v_max_f32 v{src(t) if sw == '32' else vT+t}, v{src(t)}, v{vT+t}")
        for t in range(4):
            for r in range(4): blk.e(f"v_sub_f32 v{vNM+4*t+r}, {f32(-dl) if dl else 0}, v{vT+t}")
    for t in range(4):
        s0 = PM + 4 * t
        e2.e(f"v_max3_f32 v{s0}, v{s0}, v{s0+1}, v{s0+2}\nv_max_f32 v{s0}, v{s0}, v{s0+3}")
    rowmax_finish(e2, lambda t: PM + 4 * t, OPT.get('dl', 0))
    if OPT.get("nmc") is not None:
        e2.ins = e2.ins[:-16] + II("\n".join(f"v_mov_b32 v{vNM+r}, {f32(OPT['nmc'])}" for r in range(16)))
    a_, b_2, c_2, d_, e_2, f_ = sBs[0], sBs[1], sBs[2], sBs[3], sHp[2], sHp[3]
    li = II(f"""s_lshl_b32 s{c_2}, s{sQb}, 13
s_add_u32 s{c_2}, s{c_2}, 32768
s_sub_u32 s{c_2}, s{c_2}, s{sW8k}
s_lshr_b32 s{a_}, s2, 3
s_mul_i32 s{b_2}, s{a_}, {14*1024}
s_lshl_b32 s{a_}, s{a_}, 15
s_lshl_b32 s3, s{sSp}, 20
s_add_u32 s{a_}, s{a_}, s3
s_mul_i32 s3, s{sSp}, {448*1024}
s_add_u32 s{b_2}, s{b_2}, s3
s_lshl_b32 s{d_}, s{sQb}, 5
s_add_u32 s{d_}, s{d_}, s{sHead}
s_lshl_b32 s{d_}, s{d_}, 7
s_add_u32 s{d_}, s{d_}, {WS_FH}
s_lshr_b32 s{e_2}, s{sTr}, 1
s_lshl_b32 s{e_2}, s{e_2}, 2
s_add_u32 s{e_2}, s{e_2}, s{sSp}
s_lshl_b32 s{e_2}, s{e_2}, 10
s_add_u32 s{e_2}, s{e_2}, {WS_FH}
s_mul_i32 s{f_}, s{sTc}, 3584
v_and_b32 v28, 15, v0
v_lshrrev_b32 v29, 6, v0
v_lshl_add_u32 v28, v29, 4, v28
v_bfe_u32 v29, v0, 4, 2
v_lshlrev_b32 v29, 29, v29
v_lshl_add_u32 v29, v28, 7, v29
v_add_u32 v28, s{c_2}, v29
""" + (f"s_sub_u32 s{sT}, s{sKo}, 32768\nbuffer_load_dword a252, v28, {SR(sK)}, s{sT} offen\n" if OPT.get("l0t", 0) & 1 else "") + (f"buffer_load_dword a252, v28, {SR(sV)}, s{sW8k} offen\n" if OPT.get("l0t", 0) & 2 else "") + f"""buffer_load_dword a252, v28, {SR(sV)}, s{sVo} offen
v_bfe_u32 v30, v0, 4, 1
v_mul_u32_u24 v30, 0xffff, v30
v_lshlrev_b32 v30, 13, v30
v_sub_u32 v30, v29, v30
v_add_u32 v30, s{a_}, v30
v_add_u32 v29, s{b_2}, v29
v_lshl_add_u32 v21, v0, 18, s{d_}
v_mov_b32 v22, 1
v_and_b32 v23, 7, v0
v_lshl_add_u32 v23, v23, 7, s{e_2}
v_and_b32 v24, 8, v0
v_cmp_eq_u32 vcc, 0, v24
v_and_b32 v24, 3, v0
v_lshlrev_b32 v24, 10, v24
v_xor_b32 v24, s{d_}, v24
v_cndmask_b32 v23, v24, v23, vcc
v_cndmask_b32 v31, 7, v22, vcc
v_and_b32 v27, 31, v0
v_min_u32 v27, 27, v27
v_lshl_add_u32 v27, v27, 7, s{f_}
v_bfe_u32 v26, v0, 5, 1
v_mul_u32_u24 v26, {BSTRIDE}, v26
v_add_u32 v27, v27, v26
v_accvgpr_read_b32 v24, a254
v_accvgpr_read_b32 v25, a255
s_mov_b32 s{sCnt}, 7
s_mov_b32 s{sTW}, 0
s_mov_b32 s{sT2W}, 0""")
    first, even, odd, last = gen_attention(li)
    l0 = Block(); l0.e("L_att_start:")
    if OPT.get("bO"):
        hx = int(f32(1.5 * 2.0 ** (OPT["bO"] - 4)), 16) >> 16
        for r in range(4): l0.e(f"v_mov_b32 v{252+r}, {hex(hx * 0x10001)}")
    stamp(l0, "att0")
    l1 = Block(); stamp(l1, "loop")
    l1b = Block(); l1b.e(".p2align 6\n" + "s_nop 0\n" * OPT.get("pad3", 0) + "L_att_loop:")
    l4 = Block(); l4.e("L_att_last:"); stamp(l4, "last")
    for _ in range(OPT.get("pad2", 0)): l4.e("s_nop 0")
    if OPT.get("loopstamp"):
        l1b.e(f"s_memtime s[96:97]\ns_mov_b32 m0, s{sCnt}\ns_waitcnt lgkmcnt(0)\nv_writelane_b32 v31, s96, m0")
        for i in range(8): l4.e(f"v_readlane_b32 s{74+2*i}, v31, {7-i}\nv_readlane_b32 s{75+2*i}, v31, {7-i}")
    f = Block(); f.name = "check"
    stamp(f, "attend")
    vRL = vNM
    for _ in range(min(OPT.get("osf", 2), len(OSTORES))): emit_grp(f, OSTORES.pop(0))
    f.add(last.tailchk)
    f.e(f"s_mov_b32 s{sT}, {f32(2.0**OPT.get('lmax', 100))}")
    f.e(f"v_max3_f32 v{vT}, v{vRL+4}, v{vRL+5}, v{vRL+6}\nv_max_f32 v{vT}, v{vT}, v{vRL+7}\nv_accvgpr_read_b32 v{vT+1}, a{aCHK}")
    f.e(f"v_add_f32 v{vT}, v{vT}, v{vT+1}\nv_cmp_nlt_f32 vcc, v{vT}, s{sT}")
    f.e(f"s_cmp_lg_u64 vcc, 0\ns_cselect_b32 s{sT}, 1, 0")
    f.e(f"v_mov_b32 v{vT}, s{sT}\nv_and_b32 v{vT+1}, 3, v0\nv_lshlrev_b32 v{vT+1}, 12, v{vT+1}\ns_add_u32 s{sT}, s{sWave}, {7*4096}\ns_lshl_b32 s{sT}, s{sT}, 2\nv_add_u32 v{vT+1}, s{sT}, v{vT+1}")
    f.e(f"ds_write_b32 v{vT+1}, v{vT}", tag="VW"); f.e(f"s_add_u32 s{sT}, s{sM}, {7*16384}\nv_mov_b32 v{vT+1}, s{sT}")
    if OSTORES: emit_grp(f, OSTORES.pop(0))
    f.e(f"s_lshl_b32 s{sT}, s{sWave}, 6\ns_or_b32 s{sT}, s{sT}, {L_V}\ns_and_b32 s{sT2}, s{sTr}, 1\ns_lshl_b32 s{sT2}, s{sT2}, 12")
    for v in range(2): f.e(f"v_xor_b32 v{vRAs+v}, s{sT}, v{vVA+v}")
    for st in (1, 2):
        for v in range(2): f.e(f"v_add_u32 v{vRAs+2*st+v}, {st*65536}, v{vRAs+v}")
    for st in range(3):
        for v in range(2): f.e(f"v_xor_b32 v{vRAg+4*st+v}, s{sT2}, v{vRAs+2*st+v}\nv_xor_b32 v{vRAg+4*st+2+v}, 0x1000, v{vRAg+4*st+v}")
        f.e(f"v_add_u32 v{vRB[st]}, {st*65536}, v{vL16}")
    while OSTORES: emit_grp(f, OSTORES.pop(0))
    fpos = len(f.ins)
    f.wait(lgkm="VW", vm=[f"U{u}" for u in RD[-1]] + (["OS"] if OPT["flagstage"] < 0 else [])); f.e("s_barrier")
    f.e(f"ds_read_b128 v[2:5], v{vT+1}", tag="FL")
    for u in RD[-1]: f.ext(ureads(u))
    f.wait(lgkm="FL")
    f.e(f"v_or_b32 v2, v2, v3\nv_or3_b32 v2, v2, v4, v5\nv_readfirstlane_b32 s{sT}, v2")
    f.e(f"s_andn2_b32 s{sT}, s{sT}, s{sFB}\ns_cmp_lg_u32 s{sT}, 0\n" + ("" if OPT.get("nofb") else "s_cbranch_scc1 L_fallback"))
    k = Block(); k.name = "tail"
    stamp(k, "tail0")
    su = II(f"""s_and_b32 s{sT}, s{sHead}, 7
s_mul_i32 s{sT}, s{sT}, 124
s_sub_u32 s{sT}, {WS_FO-WS_FH}, s{sT}
v_add_u32 v26, s{sT}, v21
v_mov_b32 v25, 1
v_and_b32 v{vPA}, 7, v0
s_lshr_b32 s{sT}, s{sTr}, 1
s_lshl_b32 s{sT}, s{sT}, 2
s_add_u32 s{sT}, s{sT}, s{sSp}
s_lshl_b32 s{sT}, s{sT}, 10
s_add_u32 s{sT}, s{sT}, {WS_FO}
v_lshl_add_u32 v{vPA}, v{vPA}, 2, s{sT}
s_add_u32 s100, s{sWS}, s{sT}
s_addc_u32 s101, s{sWS+1}, 0
v_and_b32 v27, 3, v0
v_lshlrev_b32 v27, 4, v27
v_bfe_u32 v24, v0, 2, 4
v_lshl_add_u32 v27, v24, 10, v27""")
    nU = 10
    if OPT["flagstage"] < 0:
        su = [Ins(x.text.replace("v25", "v22").replace("v24", "v28")) for x in su]
        f.ins[fpos:fpos] = su; su = []
        k.e(f"buffer_store_dword v22, v26, {SR(sWS)}, 0 offen sc1")
    for n in range(10):
        if n not in EARLY: emit_grp(k, udma(n))
    k.ext(su)
    k.wait(lgkm="R")
    ldf = f"buffer_load_dword v{vPoll}, v{vPA}, {SR(sWS)}, 0 offen sc1"
    allset = f"v_cmp_eq_u32 vcc, 0, v{vPoll}\ns_nop 0\ns_cmp_eq_u64 vcc, 0"
    polled = False
    def take(n):
        nonlocal nU
        if n > 21: return []
        limit = min(RD[max(m for m in range(n + 1) if m - 7 not in OPT.get("nobs", ()))][0] + 10, len(UNITS))
        r = []
        while nU < limit:
            kd, a_ = UNITS[nU]
            if kd == "Bs" and not (polled and (a_ < 4 or n - 7 >= OPT["bsat"][a_])): break
            r.append(udma(nU)); nU += 1
        return r
    def pack(src, dst): return II("\n".join(f"v_cvt_pk_bf16_f32 v{dst+r}, v{src+2*r}, v{src+2*r+1}" for r in range(8)) + "\n" + "\n".join(f"v_min_u32 v{dst+r}, -2, v{dst+r}" for r in range(8)))
    def xst(which, lam, reg):
        return (II(f"s_xor_b32 s{sCnt}, s{sXR}, {lam*65536 + (which*4+lam)*8192}"),
                [Ins(f"buffer_store_dwordx4 {V(reg+4*m,4)}, v{vL16}, {SR(sXP)}, s{sCnt} offen offset:{m*1024} sc1") for m in range(2)], [])
    def xld(which, lam, tag, so=sCnt):
        if OPT.get("xdummy") == 2: return (II(f"s_mov_b32 s{so}, 0x40000000"), [Ins(f"buffer_load_dwordx4 {V(IN(which,lam)+4*m,4)}, v{vL16}, {SR(sXP)}, s{so} offen offset:{m*1024} sc1", tag=tag) for m in range(2)], [])
        if OPT.get("xdummy") == 1: return (II(f"s_add_u32 s{so}, s{sBo}, {(which*4+lam-1)*2048 % 4096 + ((which*4+lam-1)//2)*BSTRIDE}"), [Ins(f"buffer_load_dwordx4 {V(IN(which,lam)+4*m,4)}, v{vL16}, {SR(sB)}, s{so} offen offset:{m*1024} sc1", tag=tag) for m in range(2)], [])
        return (II(f"s_add_u32 s{so}, s{sXR}, {(which*4+lam)*8192}"),
                [Ins(f"buffer_load_dwordx4 {V(IN(which,lam)+4*m,4)}, v{vL16}, {SR(sXP)}, s{so} offen offset:{m*1024} sc1", tag=tag) for m in range(2)], [])
    IN = lambda which, lam: ACG(2 * lam, 0) + (0 if which else 8)
    def arrived(name, parts):
        regs = [IN(w_, l_) + r for w_, l_ in parts for r in range(8)]
        t = f"v_max3_u32 v28, v{regs[0]}, v{regs[1]}, v{regs[2]}\nv_max3_u32 v29, v{regs[3]}, v{regs[4]}, v{regs[5]}\n"
        for m in range(6, len(regs), 2): t += f"v_max3_u32 v{28+(m>>1)%2}, v{28+(m>>1)%2}, v{regs[m]}, v{regs[m+1]}\n"
        t += "v_max_u32 v28, v28, v29\nv_cmp_eq_u32 vcc, -1, v28\ns_nop 0\ns_cmp_eq_u64 vcc, 0"
        ld = "\n".join(x.text for w_, l_ in parts for g in [xld(w_, l_, None, sT)] for x in g[0] + g[1])
        r = poll_check(name, 0, ld, t)
        return r[:-5], r[-5:]
    G0, S0 = ACG(0, 0), ACS(2, 0)
    def unp(src, dst): return II("\n".join(f"v_lshlrev_b32 v{dst(2*r)}, 16, v{src+r}\nv_and_b32 v{dst(2*r+1)}, 0xffff0000, v{src+r}" for r in range(8)))
    gm = []
    for lam in (1, 2, 3):
        for h_ in range(2):
            for r in range(4): gm += II(f"v_lshlrev_b32 v{2+2*r}, 16, v{IN(1,lam)+4*h_+r}\nv_and_b32 v{3+2*r}, 0xffff0000, v{IN(1,lam)+4*h_+r}")
            for r in range(8): gm += II(f"v_add_f32 v{G0+8*h_+r}, v{G0+8*h_+r}, v{2+r}")
    nsum = len(gm)
    for h_ in range(2):
        g_ = lambda r: G0 + 8 * h_ + r
        for r in range(8): gm += II(f"v_mul_f32 v{2+r}, {f32(-LOG2E)}, v{g_(r)}")
        for r in range(8): gm += II(f"v_exp_f32 v{2+r}, v{2+r}") + (II(f"v_add_f32 v{r}, 1.0, v{r}") if r >= 2 else [])
        for r in range(8): gm += II(f"v_rcp_f32 v{2+r}, v{2+r}") + II(f"v_add_f32 v{8+r}, 1.0, v{8+r}" if r < 2 else f"v_mul_f32 v{g_(r-2)}, v{g_(r-2)}, v{r}")
        for r in (6, 7): gm += II(f"v_mul_f32 v{g_(r)}, v{g_(r)}, v{2+r}")
    nrest = len(gm) - nsum
    ta = II(f"""v_and_b32 v10, 15, v0
v_bfe_u32 v11, v0, 4, 2
v_and_b32 v18, 7, v0
v_xor_b32 v11, v11, v18
v_lshlrev_b32 v10, 7, v10
v_lshl_add_u32 v10, v11, 4, v10
v_add_u32 v10, s{sM}, v10
v_xor_b32 v11, 64, v10
v_and_b32 v18, 3, v0
v_lshlrev_b32 v18, 1, v18
v_bfe_u32 v19, v0, 2, 3
v_xor_b32 v18, v18, v19
v_bfe_u32 v19, v0, 2, 4
v_lshlrev_b32 v19, 7, v19
v_lshl_add_u32 v18, v18, 4, v19
v_add_u32 v18, s{sM}, v18
v_xor_b32 v19, 16, v18""")
    XR = IN(1, 1)
    at = lambda tl, y: max(q for q, gp in enumerate(tl.g) if any(x is y for x in gp.vec))
    for n in range(23):
        i = n - 7
        stamp(k, f"g{n}" if n < 7 else f"s{i}")
        tl = TL()
        if n < 7:
            for c_, j in enumerate((2, 3, 4, 5, 6, 7, 0, 1) if n == 6 else range(8)):
                for v in ((0, 1) if c_ % 2 == 0 else (1, 0)):
                    d = V(ACG(j, v), 4)
                    for m, ks in enumerate((0, 1) if v == (c_ & 1) else (1, 0)):
                        tl.add(MF(d, R(*AG(n, v, ks), 4), V(BF(n, j * 2 + ks), 4), OPT.get("bg", "0") if (n == 0 and m == 0) else d))
        else:
            for e_ in range(2):
                for v in ((0, 1) if e_ == 0 else (1, 0)):
                    d = V(ACS(2 * ((i >> 2) & 1) + e_, v), 4)
                    for m, ks in enumerate(range(8) if v == e_ else range(7, -1, -1)):
                        tl.add(MF(d, A(AS(v, (i & 3) * 8 + ks), 4), V(BF(n, e_ * 8 + ks), 4), OPT.get("bs", "0") if (i in (0, 4, 8) and m == 0) else d))
        bar = bool(RD[n]) and i not in OPT.get("nobs", ())
        need = []
        if bar:
            m = n
            while True:
                need += RD[m]; m += 1
                if m > 21 or m - 7 not in OPT.get("nobs", ()): break
        grp = []; vm = [f"U{u}" for u in need]
        assert all(u < nU for u in need), n
        if n == OPT["flagstage"]: vm.append("OS"); grp.append(([], II(f"buffer_store_dword v25, v26, {SR(sWS)}, 0 offen sc1"), []))
        ck = None
        if i == OPT["gck"]: vm.append("IG"); ck = arrived("g", [(1, 1), (1, 2), (1, 3)])
        if i == 11: vm.append("I1"); ck = arrived("s1", [(0, 1)])
        f2 = OPT.get("fin2")
        if i == 15 and not f2: vm.append("I2"); ck = arrived("s2", [(0, 2)])
        if vm: tl.scal_at(0, W(vm=vm))
        span = n == OPT["pollstage"] and OPT["polld"] == 2
        if bar: tl.scal_at(1, Ins("s_barrier"))
        if RD[n]: tl.scal_at(31, W(lgkm="R") if not span else Ins("s_waitcnt lgkmcnt(2)"))
        lo = 3
        if n == OPT["pollstage"]: tl.scal_at(OPT.get("pollgap", 2), Ins(f"s_load_dwordx8 s[{sK}:{sK+7}], s[100:101], 0 glc", tag="R"))
        if n == OPT["pollstage"] + OPT["polld"]:
            pc = poll_check("o", vPoll, ldf, allset)
            g = tl.g[2]; g.load += 2; polled = True; lo = 5
            g.vec += II(f"s_and_b64 s[{sK}:{sK+1}], s[{sK}:{sK+1}], s[{sK+2}:{sK+3}]\ns_and_b64 s[{sK+4}:{sK+5}], s[{sK+4}:{sK+5}], s[{sK+6}:{sK+7}]\ns_and_b64 s[{sK}:{sK+1}], s[{sK}:{sK+1}], s[{sK+4}:{sK+5}]\ns_and_b32 s{sK}, s{sK}, s{sK+1}") + pc[-2:]
        pk = []
        pw = OPT.get("pw2", 1)
        if n == 6: pk = [(11, 21, pack(ACG(2, 0), ACG(2, 0)))] if not pw else [(11, 31, pack(ACG(2, 0), ACG(2, 0)) + pack(ACG(4, 0), ACG(4, 0))[:8])]
        gst = OPT.get("gst", 0)
        if i == 0 and gst == 0: pk = [(0, 14, pack(ACG(4, 0), ACG(4, 0))), (8, 24, pack(ACG(6, 0), ACG(6, 0)))] if not pw else [(0, 25, pack(ACG(4, 0), ACG(4, 0))[8:] + pack(ACG(6, 0), ACG(6, 0)))]
        if i == 0 and gst > 0: pk = [(0, 31, pack(ACG(4, 0), ACG(4, 0))[8 if pw else 0:] + pack(ACG(6, 0), ACG(6, 0)))]
        if i in (4, 8, 12): pk = [(4 if not pw else 2, (OPT.get("s3lo", 16) - 2) if (i == 12 or not pw) else 24, pack(ACS(2 * ((i // 4 + 1) & 1), 0), IN(0, i // 4)))]
        grp += take(n)
        if i == OPT["gld"]: grp += [xld(1, lam, "IG") for lam in (1, 2, 3)]
        if i == 8: grp.append(xld(0, 1, "I1"))
        g1 = OPT.get("g1early", 0)
        if i == gst: grp += [xst(1, lam, IN(1, lam)) for lam in (1, 2, 3) if lam > g1]
        if n == 6 and g1: late_ = [xst(1, lam, IN(1, lam)) for lam in range(1, g1 + 1)]
        else: late_ = []
        if i in (4, 8, 12): grp.append(xst(0, i // 4, IN(0, i // 4)))
        if i == 12:
            lo = OPT.get("s3lo", 16)
            grp += [([], II(f"buffer_load_dwordx4 {V(XR,4)}, v27, {SR(sX)}, s{sOo} offen\nbuffer_load_dwordx4 {V(XR+4,4)}, v27, {SR(sX)}, s{sXW} offen"), []), xld(0, 2, "I2")]
            assert not any({f"v{XR+r}" for r in range(8)} & y.reads for y in gm)
        if i == OPT.get("i3st", 15): lo = OPT["i3gap"]; grp.append(xld(0, 3, "I3"))
        if i == 0 and gst == 0 and g1 and len(grp) == 3 - g1: lo = 17
        spill = []
        while sum(len(g[1]) + len(g[0]) // 2 for g in grp) > 22: spill.insert(0, grp.pop())
        nv = sum(len(g[1]) for g in grp)
        if grp and n < 7 and OPT.get("gfront"):
            q = lo - 1
            for g in grp:
                gp = tl.g[q]; gp.vec += g[0] + g[1]; gp.load += 6; q += OPT["gfront"]
            for g in spill: tl.g[q].vec += g[0] + g[1]; tl.g[q].load += 6; q += OPT["gfront"]
            spill = []
        elif grp: tl.spread(lo, min(29, lo + 4 * nv - 4) if i > 0 else (29 if not late_ else 18), grp)
        if late_: tl.spread(24, 29, late_); grp += late_
        rd = [x for u in RD[n] for x in ureads(u)]
        if span: rd += II(f"ds_read_b32 v28, v{vL16}\nds_read_b32 v28, v{vL16}")
        if len(rd) > 26: tl.vec_in(2, OPT.get("grh", 25), rd)
        elif rd:
            rh = OPT.get("rh", 20)
            while rh < 27 and sum(tl.g[q].load == 0 for q in range(2, rh + 1)) < len(rd): rh += 1
            free = [q for q in range(2, rh + 1) if tl.g[q].load == 0]
            drop = len(free) - len(rd)
            if drop < 0: tl.vec_in(2, 27, rd)
            else:
                for m in range(drop): free[(2 * m + 1) * len(free) // (2 * drop)] = None
                for x, q in zip(rd, [q for q in free if q is not None]): tl.vec_at(q, x)
        for lo_, hi_, its in pk:
            room = sum(max(0, 2 - tl.g[q].load) for q in range(lo_, hi_ + 1))
            left = tl.stream(lo_, hi_, its, cap=2 if room >= len(its) else 3); assert not left, (n, len(left))
            for y in its:
                for q, gp in enumerate(tl.g): assert not (gp.m.writes & y.reads) or at(tl, y) >= q, n
                for g in grp:
                    for x in g[1]: assert not (y.writes & x.reads) or at(tl, x) > at(tl, y), n
        q0 = 0
        if ck:
            left = tl.stream(0, 29, ck[0]); assert not left
            q0 = at(tl, ck[0][-1]) + 1; tl.g[q0].vec += ck[1]; tl.g[q0].load += 2; q0 += 1
        if i == 5: left = tl.stream(0, 31, ta); assert not left
        if i == 11: left = tl.stream(q0, 29, unp(IN(0, 1), lambda r: S0 + r)); assert not left
        if f2 and i == 14:
            TT = lambda r: IN(1, 2) + r if r < 8 else IN(1, 3) + r - 8
            assert not gm or not any({f"v{TT(r)}" for r in range(16)} & y.reads for y in gm)
            gm = tl.sched(0, f2[0] - 2, gm); assert not gm
            c2 = arrived("s2", [(0, 2)])
            left = tl.stream(f2[0] - 1, 28, [W(vm="I2")] + c2[0]); assert not left
            q2 = at(tl, c2[0][-1]) + 1; tl.g[q2].vec += c2[1]; tl.g[q2].load += 2
            l14 = tl.stream(q2 + 1, 31, unp(IN(0, 2), TT))
        if f2 and i == 15:
            xu = unp(XR, lambda r: 128 + r)
            left = tl.stream(0, f2[1] - 1, l14 + xu[:8]); assert len(left) <= 8
            c3 = arrived("s3", [(0, 3)])
            l_ = tl.stream(f2[1] - 1, 28, [W(vm="I3")] + c3[0]); assert not l_
            q3 = at(tl, c3[0][-1]) + 1; tl.g[q3].vec += c3[1]; tl.g[q3].load += 2
            u3 = unp(IN(0, 3), lambda r: 160 + r)
            def half(e_): return u3[8*e_:8*e_+8] + II("\n".join(f"v_add_f32 v{TT(r)}, v{TT(r)}, v{160+r}" for r in range(8*e_, 8*e_+8)))
            fin0 = II("\n".join(f"v_add_f32 v{S0+r}, v{S0+r}, v{TT(r)}" for r in range(8)) + "\n" + "\n".join(f"v_mul_f32 v{S0+r}, v{S0+r}, v{G0+r}" for r in range(8)))
            fin0 += II("\n".join(f"ds_write_b128 v{10+v}, {V(S0+v*4,4)}" for v in range(2))) + II("\n".join(f"ds_read_b128 {V(144+m*4,4)}, v{18+m}" for m in range(2)), tag="T0")
            l_ = tl.stream(q3 + 1, 19, half(0) + left + half(1))
            finl = tl.stream(20, 31, l_[:max(0, len(l_) - 16)] + fin0 + l_[max(0, len(l_) - 16):])
            print("final: left over", len(finl), file=sys.stderr)
        if i == 15 and not OPT.get("fin") and not f2: left = tl.stream(q0, 31, unp(IN(0, 2), lambda r: 144 + r) + unp(XR, lambda r: 128 + r)); assert not left
        if i == 15 and OPT.get("fin"):
            left = tl.stream(q0, OPT["fin"] - 1, unp(IN(0, 2), lambda r: 144 + r)); assert not left
            c3 = arrived("s3", [(0, 3)])
            left = tl.stream(OPT["fin"] - 1, 28, [W(vm="I3")] + c3[0]); assert not left
            q3 = at(tl, c3[0][-1]) + 1; tl.g[q3].vec += c3[1]; tl.g[q3].load += 2
            finl = tl.stream(q3 + 1, 31, unp(IN(0, 3), lambda r: 160 + r) + unp(XR, lambda r: 128 + r))
        if i >= OPT["gck"] and gm: gm = (tl.sched if OPT.get("gsched", 1) else tl.stream)(q0 if i == OPT["gck"] else 0, 31, gm)
        k.ext(tl.emit(0, 32, "x").ins)
        for g in spill: emit_grp(k, g)
    assert nU == len(UNITS)
    stamp(k, "send")
    print("g math left over", len(gm), file=sys.stderr)
    k.ext(gm)
    def padd(acc, tmp):
        for r in range(0, 16, 2): k.e(f"v_pk_add_f32 {V(acc+r,2)}, {V(acc+r,2)}, {V(tmp+r,2)}")
    if OPT.get("fin2"):
        k.ext(finl)
        for r in range(8, 16, 2): k.e(f"v_pk_add_f32 {V(S0+r,2)}, {V(S0+r,2)}, {V(TT(r),2)}")
        for r in range(8, 16, 2): k.e(f"v_pk_mul_f32 {V(S0+r,2)}, {V(S0+r,2)}, {V(G0+r,2)}")
        for v in range(2): k.e(f"ds_write_b128 v{10+v}, {V(S0+8+v*4,4)} offset:2048")
        for m in range(2): k.e(f"ds_read_b128 {V(152+m*4,4)}, v{18+m} offset:2048", tag="T1")
        for e_ in range(2):
            if e_: k.ext(xu[8:])
            k.wait(lgkm=f"T{e_}")
            for r in range(0, 8, 2): k.e(f"v_pk_add_f32 {V(128+8*e_+r,2)}, {V(128+8*e_+r,2)}, {V(144+8*e_+r,2)}")
            for r in range(4): k.e(f"v_cvt_pk_bf16_f32 v{176+4*e_+r}, v{128+8*e_+2*r}, v{129+8*e_+2*r}")
            k.e(f"buffer_store_dwordx4 {V(176+4*e_,4)}, v27, {SR(sOut)}, s{sXW if e_ else sOo} offen")
    else:
        if not OPT.get("fin"):
            k.wait(vm="I3")
            ck = arrived("s3", [(0, 3)]); k.ext(ck[0] + ck[1])
            stamp(k, "spolled")
            k.ext(unp(IN(0, 3), lambda r: 160 + r)); finx = []
        else:
            finx = [x for x in finl if int(list(x.writes)[0][1:]) < 144]; k.ext([x for x in finl if x not in finx])
        padd(144, 160); padd(S0, 144)
        for r in range(0, 16, 2): k.e(f"v_pk_mul_f32 {V(S0+r,2)}, {V(S0+r,2)}, {V(G0+r,2)}")
        for e_ in range(2):
            for v in range(2): k.e(f"ds_write_b128 v{10+v}, {V(S0+(e_*2+v)*4,4)} offset:{e_*2048}")
        for e_ in range(2):
            for m in range(2): k.e(f"ds_read_b128 {V(160+e_*8+m*4,4)}, v{18+m} offset:{e_*2048}", tag=f"T{e_}")
        k.ext(finx)
        for e_ in range(2):
            k.wait(lgkm=f"T{e_}")
            for r in range(0, 8, 2): k.e(f"v_pk_add_f32 {V(128+8*e_+r,2)}, {V(128+8*e_+r,2)}, {V(160+8*e_+r,2)}")
            for r in range(4): k.e(f"v_cvt_pk_bf16_f32 v{176+4*e_+r}, v{128+8*e_+2*r}, v{129+8*e_+2*r}")
            k.e(f"buffer_store_dwordx4 {V(176+4*e_,4)}, v27, {SR(sOut)}, s{sXW if e_ else sOo} offen {OPT.get('outf', '')}")
    z = Block(); z.name = "end"
    if OPT.get("encode") is not None:
        z.e("s_waitcnt vmcnt(0) lgkmcnt(0)"); stamp(z, "end")
        i0, i1 = (STAMPS[x] for x in OPT["encode"])
        fld = 72 if OPT.get("enccyc") else 73
        z.e(f"s_sub_u32 s92, s{fld+2*i1}, s{fld+2*i0}")
        if OPT.get("encskew"):
            z.e("s_load_dwordx2 s[96:97], s[0:1], 80\ns_waitcnt lgkmcnt(0)"); srd_fin(z, 96, 256)
            z.e("v_mov_b32 v2, s73\nv_not_b32 v3, v2\nv_lshlrev_b32 v4, 20, v0\nbuffer_atomic_umax v2, v4, s[96:99], 0 offen offset:4\nbuffer_atomic_umax v3, v4, s[96:99], 0 offen offset:8\ns_waitcnt vmcnt(0)")
            z.e("s_mov_b32 s92, 3000\nL_enc0:\ns_sleep 1\ns_sub_u32 s92, s92, 1\ns_cbranch_scc0 L_enc0")
            z.e("v_mov_b32 v4, 0\nbuffer_load_dwordx2 v[2:3], v4, s[96:99], 0 offen offset:4 sc1\ns_waitcnt vmcnt(0)\nv_not_b32 v3, v3\nv_sub_u32 v2, v2, v3\ns_nop 1\nv_readfirstlane_b32 s92, v2\ns_nop 3\ns_lshl_b32 s92, s92, 2")
        if OPT.get("encx") is not None: z.e(f"s_and_b32 s3, s2, {OPT.get('encm', 7)}\ns_cmp_eq_u32 s3, {OPT['encx']}\ns_cselect_b32 s92, s92, 0")
        z.e("s_lshr_b32 s92, s92, 2" if OPT.get("enccyc") else "s_lshl_b32 s92, s92, 2")
        z.e(f"s_add_u32 s92, s92, 20000\nL_enc:\ns_sleep 1\ns_memrealtime s[98:99]\ns_waitcnt lgkmcnt(0)\ns_sub_u32 s98, s98, s73\ns_cmp_lt_u32 s98, s92\ns_cbranch_scc1 L_enc")
    elif OPT["stamp"]:
        z.e("s_waitcnt vmcnt(0) lgkmcnt(0)"); stamp(z, "end")
        z.e(f"s_load_dwordx2 s[96:97], s[0:1], 88\ns_waitcnt lgkmcnt(0)"); ptr_add(z, 96, 0x8000000 + 0x40000); srd_fin(z, 96, 0x40000)
        for i in range(20): z.e(f"v_mov_b32 v{36+i}, s{72+i}")
        z.e(f"s_lshl_b32 s92, s2, 2\ns_add_u32 s92, s92, s{sWave}\ns_lshl_b32 s92, s92, 7\nv_mov_b32 v2, s92\ns_mov_b64 exec, 1")
        for i in range(5): z.e(f"buffer_store_dwordx4 {V(36+4*i,4)}, v2, s[96:99], 0 offen offset:{16*i}")
    z.e("L_end:\ns_endpgm")
    fb = Block(); fb.name = "fb"
    fb.e(f"L_fallback:\ns_mov_b32 s{sFB}, 1\ns_waitcnt vmcnt(0) lgkmcnt(0)\ns_barrier\ns_branch L_restart")
    m0 = Block(); m0.name = "tm0"
    m0.e(f"L_truemax:\ns_mov_b32 s{sKo}, s{sW8k}\ns_mov_b32 s{sCnt}, 16")
    for t in range(4): m0.e(f"v_mov_b32 v{vNM+4*t}, 0xff800000")
    m0.e("s_waitcnt vmcnt(0) lgkmcnt(0)")
    m1 = Block(); m1.name = "tm1"
    m1.e("L_tm_loop:\ns_barrier")
    emit_grp(m1, dma_K(0, 0, "DK")); emit_grp(m1, dma_K(1, 0, "DK"))
    m1.e("s_waitcnt vmcnt(0)\ns_barrier")
    for g in range(8):
        m1.ext(kreads(g, 0, 0, "K0")); m1.e("s_waitcnt lgkmcnt(0)")
        for t in range(4): m1.ext(qk_chain(t, 0, "0"))
        for t in range(4):
            s0 = vS + 4 * t
            m1.e(f"v_max3_f32 v{vNM+4*t}, v{vNM+4*t}, v{s0}, v{s0+1}\nv_max3_f32 v{vNM+4*t}, v{vNM+4*t}, v{s0+2}, v{s0+3}")
    m1.e(f"s_sub_u32 s{sCnt}, s{sCnt}, 1\ns_cmp_lg_u32 s{sCnt}, 0\ns_cbranch_scc1 L_tm_loop")
    m2 = Block(); m2.name = "tm2"
    rowmax_finish(m2, lambda t: vNM + 4 * t)
    m2.e(f"s_mov_b32 s{sKo}, s{sW8k}\ns_barrier")
    emit_grp(m2, dma_K(0, 0, "DK")); emit_grp(m2, dma_K(1, 0, "DK"))
    m2.e(f"s_add_u32 s{sKo}, s{sKo}, 32768\ns_waitcnt vmcnt(0)\ns_barrier")
    m2.ext(kreads(0, 0, 0, "K0")); m2.e("s_waitcnt lgkmcnt(0)\ns_branch L_att_start")
    att = [l0, first, l1, l1b, even, odd, l1b, even, odd, l4, last, f]
    front = [b2, c] + PJ['F'] + [e]; frontS = [b2, c] + PJ['S'] + [e]
    vb = []
    finalize([[b_] + front + [e2] + att + [k, z], [b_] + frontS + [e2] + att + [fb] + frontS + [m0, m1, m1, m2] + att + [k, z], [b_] + front + [m0, m1]] + [[s] for s in SLOW], vb)
    for fr in (front, frontS): check_groups([x for bb in [b_] + fr + [e2] + att + [k, z] for x in bb.ins])
    for x in vb:
        if x[0].startswith("att") or x[0] in ("projF", "projS"): print("nop:", x, file=sys.stderr)
    cend = Block(); cend.e('L_code_end:')
    layout = [b_, b2, c] + PJ['S'] + [e, e2, l0, first, l1, l1b, even, odd, l4, last, f, k, z] + (SLOW[::-1] if OPT.get('slownear', 1) else []) + PJ['F'] + [cend, fb, m0, m1, m2] + ([] if OPT.get('slownear', 1) else SLOW)
    note = {id(b2): "set-up, first loads", id(c): "set-up under the first loads", id(PJ['S'][0]): "projection, odd ids (48 FFN columns)", id(PJ['F'][0]): "projection, even ids (64 FFN columns)",
            id(PJ['S'][2]): "Q and the rest of h; scores of the first 16 keys", id(PJ['F'][2]): "Q and the rest of h; scores of the first 16 keys", id(e2): "stand-in row maximum",
            id(first): "tile 0: scores and exponentials only", id(even): "tile pair: QK of the next tile beside PV of this one", id(last): "tiles 14 and 15, normalisation and O stores",
            id(f): "check of the stand-in maximum", id(k): "tail: g stages, then the four row strips", id(fb): "stand-in was unsafe: start again", id(m0): "true row maximum over all keys", id(SLOW[-1]): "bounded waits"}
    return kernel_head(KN) + "\n".join((f"; ---- {note[id(x)]}\n" if id(x) in note else "") + x.text() for x in layout) + "\n" + kernel_desc(KN, 512, 256)


DOC = """
;
; Workgroup (q block of 256 rows, head); each wave owns 64 rows.  All products use v_mfma_f32_16x16x32_bf16, transposed (D = [columns x rows]),
;     Row statistics are computed once (8 rows per workgroup) and handed round through d_ws; a counter in d_debug says when.
;     h = silu(gate) * up goes to d_ws in fragment order.  Even ids take 64 FFN columns, odd ids 48 (two variants of the code).
;  2. attention over 16 tiles of 128 keys, K/V staged by LDS-DMA.  exp2(s - m) uses as m the maximum over the row's first 16 keys, less 32
;     (it enters as the C operand), so m never exceeds the true maximum and nothing underflows earlier than with it.  Overflow, the one way this
; Hand-offs: write-through (sc1) stores, then vmcnt + barrier, then a flag in d_ws that this launch cleared before its counter was complete;
; partial tiles are recognised by the absence of an all-ones mark written earlier in the launch.  Every wait loop is bounded.
"""
def build():
    head = open("cdna_kernels/" + NAME + ".s.ref").read().split("; Override launch")[0]
    s = head + "; @launch grid=(256,1,1) block=(256,1,1) lds=163840\n" + '.amdgcn_target "amdgcn-amd-amdhsa--gfx950"\n' + DOC.lstrip("\n")
    plan_units()
    return s + gen_kernel()

if __name__ == "__main__":
    out = sys.argv[1] if len(sys.argv) > 1 else "cdna_kernels/" + NAME + ".s"
    for a in sys.argv[2:]:
        k, v = a.split("="); OPT[k] = eval(v)
    names = OPT.get("stamps", "p0,p4,projend,att0,loop,last,tail0,gend").split(",")
    STAMPS.update({n: i + 1 for i, n in enumerate(names)}); STAMPS["start"] = 0; STAMPS["end"] = 9
    txt = build()
    if OPT.get("jit2"):
        import random
        random.seed(OPT["jit2"]); out_ = []; n_ = 0; lines = txt.split("\n"); live = False
        for k_, l in enumerate(lines):
            out_.append(l)
            if l.startswith("; ---- projection") or l.startswith("; ---- tile pair"): live = True
            if l.startswith("; ---- Q and the rest") or l.startswith("; ---- bounded") or l.startswith("; ---- stand-in was"): live = False
            nxt = [x.strip() for x in lines[k_ + 1:k_ + 12] if x.strip().startswith("s_") and not x.strip().startswith(("s_waitcnt", "s_barrier", "s_nop", "s_mov", "s_mul"))]
            safe = not nxt or not nxt[0].startswith(("s_cselect", "s_cbranch", "s_addc", "s_subb"))
            if live and safe and (l.strip() == "s_barrier" or ("v_mfma" in l and random.random() < .02)):
                n_ += 1
                out_.append(f"    s_mul_i32 s96, s96, 0x9e3779b1\n    s_add_u32 s96, s96, s{sWave}\n    s_add_u32 s96, s96, s2\n    s_lshr_b32 s97, s96, 28\nL_j2_{n_}:\n    s_sleep 1\n    s_sub_u32 s97, s97, 1\n    s_cbranch_scc0 L_j2_{n_}")
        txt = "\n".join(out_).replace("L_restart:\n", "L_restart:\n    s_memtime s[96:97]\n    s_waitcnt lgkmcnt(0)\n").replace("s_mul_i32 s66, s65, 2560", "s_mul_i32 s66, s65, 2560")
    def nt(pat):
        global txt
        txt = re.sub(pat, lambda m: m.group(0).replace(" lds", "") + " nt" + (" lds" if m.group(0).endswith(" lds") else ""), txt, flags=re.M)
    srs = {"w": r"s\[(8:11|12:15|16:19)\]", "k": r"s\[(20:23|24:27)\]", "t": r"s\[(44:47|48:51)\]", "x": r"s\[4:7\]"}
    for c in OPT.get("ntt", ""): nt(r"^    buffer_load_dword [av]\d+, v\d+, " + srs[c] + r".*offen$")
    for c in OPT.get("ntd", ""): nt(r"^    buffer_load_dwordx4 v\d+, " + srs[c] + r".* lds$")
    if OPT.get("ntsr"): nt(r"^    buffer_load_dwordx4 v\[7[26]:7[59]\], v58, s\[4:7\].*\d$")
    if OPT.get("ntx0"):
        parts = re.split(r"(?m)^(?=; ---- )", txt)
        for i_, p_ in enumerate(parts):
            if p_.startswith("; ---- set-up" + ("," if OPT["ntx0"] == 1 else "")):
                txt = p_; nt(r"^    buffer_load_dwordx4 v\d+, " + srs["x"] + r".* lds$"); parts[i_] = txt
        txt = "".join(parts)
    if OPT.get("ntc"): txt = txt.replace("global_load_dword v107, v[108:109], off", "global_load_dword v107, v[108:109], off nt")
    if OPT.get("ntk0"):
        parts = re.split(r"(?m)^(?=; ---- )", txt)
        for i_, p_ in enumerate(parts):
            if p_.startswith("; ---- projection"):
                txt = p_; nt(r"^    buffer_load_dwordx4 v\d+, " + srs["k"] + r".* lds$"); parts[i_] = txt
        txt = "".join(parts)
    open(out, "w").write(txt)
```
